```python
import torch

def _softmax(x, axis=-1):
    return torch.softmax(x, dim=axis)
def _gelu(x):
    return torch.nn.functional.gelu(x, approximate="tanh")
def _silu(x):
    return torch.nn.functional.silu(x)
def _sigmoid(x):
    return torch.sigmoid(x)
def _layernorm(x, axis=-1, eps=1e-5):
    m = x.mean(dim=axis, keepdim=True)
    v = x.var(dim=axis, keepdim=True, unbiased=False)
    return (x - m) / torch.sqrt(v + eps)
def _scatter_add(tgt, idx, src, axis=0):
    return tgt.clone().index_add_(axis, idx, src)
def _segment_sum(src, seg, n):
    out = torch.zeros((n,) + src.shape[1:], dtype=src.dtype)
    return out.index_add_(0, seg, src)
def _pad(x, pw):
    flat = tuple(v for pair in reversed(pw) for v in pair)
    return torch.nn.functional.pad(x, flat)

kernel_name = 'gated_mix__spectral_gfnet__softmax_full_mha__prompt'

def setup_inputs():

    _w = (lambda a: (lambda t: t.to(torch.bfloat16) if t.is_floating_point() else t)(torch.as_tensor(a)))
    def _A_setup():
        B, S, D = 1, 2048, 448
        Df = D // 2 + 1
        return {
            "x": _w((lambda *s: torch.randn(*s, dtype=torch.bfloat16) * 0.05)(B, S, D)),
            "w_r": _w((lambda *s: torch.randn(*s, dtype=torch.bfloat16) * 6.4)(S, Df) * 0.02),
            "w_i": _w((lambda *s: torch.randn(*s, dtype=torch.bfloat16) * 6.4)(S, Df) * 0.02),
        }
    _A_in = _A_setup()

    def _B_setup():
        B, S, D = 1, 2048, 448
        return {
            "x": _w((lambda *s: torch.randn(*s, dtype=torch.bfloat16) * 0.05)(B, S, D)),
            "wqkv": _w((lambda *s: torch.randn(*s, dtype=torch.bfloat16) * 0.8)(D, 3 * D)),
            "wo": _w((lambda *s: torch.randn(*s, dtype=torch.bfloat16) * 0.05)(D, D)),
        }
    _B_in = _B_setup()

    return {
        "A_x": _A_in["x"],
        "A_w_r": _A_in["w_r"],
        "A_w_i": _A_in["w_i"],
        "B_x": _B_in["x"],
        "B_wqkv": _B_in["wqkv"],
        "B_wo": _B_in["wo"],
        "gate_w": _w((lambda *s: torch.randn(*s, dtype=torch.bfloat16) * 0.05)(448) * 16.0),
    }

def reference(A_x, A_w_r, A_w_i, B_x, B_wqkv, B_wo, gate_w):
    def _A_ref(x, w_r, w_i):
        B, S, D = x.shape
        X = (lambda x, axes=(-2,-1): torch.fft.rfft2(x.float(), dim=axes))(x, axes=(-2, -1))
        W = w_r + 1j * w_i
        X = X * W
        y = (lambda x, s, axes=(-2,-1): torch.fft.irfft2(x, s=s, dim=axes).to(torch.bfloat16))(X, (S, D), axes=(-2, -1))
        return y

    def _B_ref(x, wqkv, wo):
        B, S, D = x.shape
        H = 16; Dh = D // H
        qkv = (lambda x, *d: x.permute(*d))((x @ wqkv).reshape(B, S, 3, H, Dh), 2, 0, 3, 1, 4)
        q, k, v = qkv[0], qkv[1], qkv[2]
        scale = Dh ** -0.5
        scores = torch.einsum("bhqd,bhkd->bhqk", q, k) * scale
        p = _softmax(scores, axis=-1)
        o = torch.einsum("bhqk,bhkd->bhqd", p, v)
        return (lambda x, *d: x.permute(*d))(o, 0, 2, 1, 3).reshape(B, S, D) @ wo

    x = A_x
    g = _sigmoid((x * gate_w).sum(-1, keepdims=True))
    a = _A_ref(x, A_w_r, A_w_i)
    b = _B_ref(x, B_wqkv, B_wo)
    return g * a + (1 - g) * b
```

```python
import re

TRANS = ("v_exp_f32", "v_log_f32", "v_rcp_f32", "v_rsq_f32", "v_sqrt_f32", "v_sin_f32", "v_cos_f32")

def regs_of(tok):
    tok = tok.strip()
    tok = re.sub(r"^-", "", tok)
    m = re.match(r"^abs\((.*)\)$", tok) or re.match(r"^\|(.*)\|$", tok)
    if m: tok = m.group(1)
    m = re.match(r"^([vsa])\[(\d+):(\d+)\]$", tok)
    if m: return {(m.group(1), i) for i in range(int(m.group(2)), int(m.group(3)) + 1)}
    m = re.match(r"^([vsa])(\d+)$", tok)
    if m: return {(m.group(1), int(m.group(2)))}
    if tok in ("vcc", "vcc_lo", "vcc_hi"): return {("vcc", 0)}
    if tok in ("exec", "exec_lo", "exec_hi"): return {("exec", 0)}
    if tok == "m0": return {("m0", 0)}
    return set()

class I:
    def __init__(self, text):
        self.text = text
        t = text.split(";")[0].strip()
        self.label = t.endswith(":")
        self.directive = t.startswith(".")
        self.mn = "" if (self.label or self.directive or not t) else t.split()[0]
        rest = t[len(self.mn):].strip() if self.mn else ""
        ops = []
        depth = 0; cur = ""
        for ch in rest:
            if ch == "[": depth += 1
            if ch == "]": depth -= 1
            if ch == "," and depth == 0: ops.append(cur.strip()); cur = ""
            else: cur += ch
        if cur.strip(): ops.append(cur.strip())
        if ops:
            parts = ops[-1].split()
            ops[-1] = parts[0]; self.mods = parts[1:]
        else: self.mods = []
        self.ops = ops
        mn = self.mn
        self.is_mfma = mn.startswith("v_mfma") or mn.startswith("v_smfmac")
        self.is_smf = mn.startswith("v_smfmac")
        self.is_valu = mn.startswith("v_") and not self.is_mfma
        self.is_trans = any(mn.startswith(x) for x in TRANS)
        self.is_vmem = mn.startswith(("buffer_", "global_", "flat_"))
        self.is_ds = mn.startswith("ds_")
        self.is_salu = mn.startswith("s_")
        self.is_perml = mn.startswith("v_permlane")
        self.is_rdl = mn.startswith(("v_readfirstlane", "v_readlane"))
        self.is_lds_dma = self.is_vmem and ("lds" in self.mods or "_lds_" in mn)
        self.is_store = self.is_vmem and "store" in mn
        R = [regs_of(o) for o in ops]
        self.defs = set(); self.uses = set(); self.srcC = set(); self.srcAB = set(); self.sdata = set()
        if self.is_mfma:
            self.defs = R[0]; self.srcAB = R[1] | R[2]
            if self.is_smf: self.srcC = set(R[0]); self.srcAB |= R[3]
            else: self.srcC = R[3]
            self.uses = self.srcAB | self.srcC
            self.passes = 8 if "32x32" in mn else 4
        elif self.is_valu:
            if mn.startswith("v_cmp"):
                self.defs = R[0]; self.uses = set().union(*R[1:])
            elif self.is_perml:
                self.defs = R[0] | R[1]; self.uses = R[0] | R[1]
            else:
                self.defs = R[0]; self.uses = set().union(*R[1:]) if len(R) > 1 else set()
                if mn.startswith(("v_fmac", "v_mac", "v_dot2c")) or "UNUSED_PRESERVE" in text: self.uses |= R[0]
                if mn.startswith(("v_add_co", "v_sub_co", "v_addc_co")): self.defs |= R[1]
                if mn.startswith("v_cndmask") and len(ops) == 3: self.uses |= {("vcc", 0)}
        elif self.is_vmem:
            if self.is_lds_dma:
                self.uses = set().union(*R) | {("m0", 0)}
            elif self.is_store:
                self.uses = set().union(*R)
                self.sdata = R[0] if mn.startswith("buffer_") else R[1]
            else:
                self.defs = R[0]; self.uses = set().union(*R[1:])
        elif self.is_ds:
            if mn.startswith(("ds_read", "ds_bpermute", "ds_permute", "ds_swizzle")) or "_rtn" in mn:
                self.defs = R[0]; self.uses = set().union(*R[1:])
            else:
                self.uses = set().union(*R)
        elif self.is_salu:
            if mn.startswith(("s_cmp", "s_waitcnt", "s_nop", "s_barrier", "s_branch", "s_cbranch", "s_endpgm", "s_setprio", "s_sleep")):
                self.uses = set().union(*R) if R else set()
            else:
                self.defs = R[0] if R else set(); self.uses = set().union(*R[1:]) if len(R) > 1 else set()
                if "saveexec" in mn: self.defs |= {("exec", 0)}
    def states(self):
        if self.label or self.directive or not self.mn: return 0
        if self.mn == "s_nop": return int(self.ops[0], 0) + 1
        return 1

def need(p, c):
    n = 0
    vp = {r for r in p.defs if r[0] in "va"}
    sp = {r for r in p.defs if r[0] in ("s", "vcc")}
    if p.is_valu:
        if c.is_mfma and vp & c.uses: n = max(n, 2)
        if c.is_perml and vp & c.uses: n = max(n, 2)
        if c.is_rdl and vp & c.uses: n = max(n, 1)
        if p.is_trans and c.is_valu and not c.is_trans and vp & c.uses: n = max(n, 1)
        if p.is_trans and (c.is_vmem or c.is_ds) and vp & c.uses: n = max(n, 1)
        if "dpp" in c.text and vp & c.uses: n = max(n, 2)
        if "sdwa" in p.text and c.is_valu and vp & (c.uses | c.defs): n = max(n, 1)
        if sp & c.uses:
            if c.is_vmem: n = max(n, 5)
            elif c.is_valu: n = max(n, 2)
            elif c.is_salu: n = max(n, 2)
        if ("exec", 0) in p.defs and c.is_mfma: n = max(n, 4)
    if p.is_mfma:
        big = {8: 12, 4: 8}[p.passes]
        if c.is_mfma:
            if vp & c.srcAB: n = max(n, big)
            if vp & c.srcC and not (c.srcC == vp and c.passes == p.passes): n = max(n, {8: 10, 4: 6}[p.passes])
            if vp & c.defs and not (c.srcC == vp) : n = max(n, 0)
        elif c.is_valu or c.is_vmem or c.is_ds:
            if vp & (c.uses | c.defs): n = max(n, big)
        if c.is_valu and (p.srcC & c.defs): n = max(n, {8: 7, 4: 3}[p.passes])
    if p.is_store and len(p.sdata) >= 3 and (p.sdata & c.defs):
        n = max(n, 2 if c.is_valu else 1)
    if p.is_salu and ("m0", 0) in p.defs and c.is_lds_dma: n = max(n, 1)
    if p.is_salu and ("exec", 0) in p.defs and (c.is_perml or "dpp" in c.text): n = max(n, 1)
    return n

WINDOW = 20
def fix_hazards(lines, report=None):
    out = []
    for t in lines:
        c = I(t)
        if c.mn:
            dist = 0; req = 0
            for p in reversed(out):
                if dist > WINDOW: break
                if p.mn:
                    n = need(p, c)
                    if n > dist: req = max(req, n - dist)
                dist += p.states()
            while req > 0:
                k = min(req, 16)
                out.append(I(f"    s_nop {k-1}"))
                if report is not None: report.append((k, t.strip()))
                req -= k
        out.append(c)
    return [o.text for o in out]

def check_seq(lines):
    rep = []
    fix_hazards(lines, rep)
    return rep

class Asm:
    def __init__(self): self.L = []
    def __call__(self, s):
        for l in s.split("\n"):
            if l.strip(): self.L.append("    " + l.strip() if not l.strip().endswith(":") else l.strip())
    def label(self, n): self.L.append(n + ":")
    def mark(self): return len(self.L)
def vr(a, n=1): return f"v{a}" if n == 1 else f"v[{a}:{a+n-1}]"
def sr(a, n=1): return f"s{a}" if n == 1 else f"s[{a}:{a+n-1}]"
```

```python
from asmlib import *
import math
WS_Q, WS_K, WS_V, WS_Y, WS_W, WS_O, WS_Z, WS_G = 0x0, 0x200000, 0x400000, 0x600000, 0x800000, 0xA00000, 0xC00000, 0xE00000
WS_BYTES = 0x1000000
import struct
def f2u(x): return struct.unpack("<I", struct.pack("<f", x))[0]
QSCALE = f2u(28 ** -0.5 * math.log2(math.e))

def gen_k1():
    A = Asm()
    sX, sB, sWS, sWR, sWI = 8, 12, 16, 20, 24
    sPC = 28
    sW, sMT, sNT, sC, sCA, sCB, sPITCH, sP4, sT, sT2, sBB = 30, 31, 32, 33, 34, 35, 36, 37, 38, 39, 40
    sGS, sLA, sLB, sP64, sP384, sJ = 41, 42, 43, 44, 45, 46
    sW0 = 48
    sWST = 52
    sM = 54
    ACC = 0
    vL, vA0, vA1, vB = 64, 65, 66, 67
    vRA, vRB = 68, 72
    FA, FB = 76, 84
    MC, MS, MN = 116, 124, 132
    WL = 140
    vT = 156
    vWO = 172
    vST = 173
    PK = 176
    NV = 208

    A("s_cmp_ge_u32 s2, 256")
    A("s_cbranch_scc1 k1_end")
    A(f"s_load_dwordx2 {sr(sX,2)}, s[0:1], 0")
    A(f"s_load_dwordx2 {sr(sB,2)}, s[0:1], 32")
    A(f"s_load_dwordx2 {sr(sWS,2)}, s[0:1], 72")
    A(f"s_load_dwordx2 {sr(sWR,2)}, s[0:1], 8")
    A(f"s_load_dwordx2 {sr(sWI,2)}, s[0:1], 16")
    A(f"s_getpc_b64 {sr(sPC,2)}")
    A("k1_pc:")
    A(f"v_and_b32 v{vL}, 63, v0")
    A(f"v_lshrrev_b32 v{vT}, 6, v0")
    A(f"v_mul_u32_u24 v{vT+1}, 24, v{vT}")
    A(f"v_add_lshl_u32 v{vT+1}, v{vT+1}, v{vL}, 7")
    A("s_mov_b64 exec, 0xffffff")
    A(f"global_load_dword v{vT+2}, v{vT+1}, {sr(sPC,2)}")
    A("s_mov_b64 exec, -1")
    A(f"v_readfirstlane_b32 s{sW}, v{vT}")
    A(f"s_lshr_b32 s{sJ}, s2, 3")
    A(f"s_and_b32 s{sT}, s{sJ}, 3")
    A(f"s_lshr_b32 s{sT2}, s{sJ}, 2")
    A(f"s_bfe_u32 s{sMT}, s2, 0x20001")
    A(f"s_lshl_b32 s{sMT}, s{sMT}, 2")
    A(f"s_add_u32 s{sMT}, s{sMT}, s{sT}")
    A(f"s_and_b32 s{sNT}, s2, 1")
    A(f"s_lshl_b32 s{sNT}, s{sNT}, 3")
    A(f"s_add_u32 s{sNT}, s{sNT}, s{sT2}")
    A(f"s_lshl_b32 s{sT}, s{sT}, 1")
    A(f"s_add_u32 s{sC}, s{sT}, s{sT2}")
    A(f"s_cmp_ge_u32 s{sC}, 7")
    A(f"s_cselect_b32 s{sT}, 7, 0")
    A(f"s_sub_u32 s{sC}, s{sC}, s{sT}")
    A(f"s_lshl_b32 s{sBB}, s{sMT}, 2")
    A(f"s_add_u32 s{sBB}, s{sBB}, s{sW}")
    A(f"s_movk_i32 s{sPITCH}, 1024")
    A(f"s_cmp_ge_u32 s{sNT}, 12")
    A(f"s_cselect_b32 s{sPITCH}, s{sPITCH}, 2688")
    A(f"s_cselect_b32 s{sGS}, 64, 56")
    A(f"s_mul_i32 s{sT}, s{sNT}, 224")
    A(f"s_lshl_b32 s{sT2}, s{sNT}, 8")
    A(f"s_sub_u32 s{sT2}, s{sT2}, 3072")
    A(f"s_cmp_ge_u32 s{sNT}, 12")
    A(f"s_cselect_b32 s{sCB}, s{sT2}, s{sT}")
    A(f"s_lshl_b32 s{sP4}, s{sPITCH}, 2")
    A(f"s_sub_u32 s{sP4}, s{sP4}, 1024")
    A(f"s_lshl_b32 s{sP64}, s{sPITCH}, 6")
    A(f"s_mul_i32 s{sP384}, s{sP64}, 7")
    A(f"s_lshl_b32 s{sT}, s{sC}, 2")
    A(f"s_add_u32 s{sT}, s{sT}, s{sW}")
    A(f"s_lshl_b32 s{sT}, s{sT}, 4")
    A(f"s_mul_i32 s{sT}, s{sT}, s{sPITCH}")
    A(f"s_add_u32 s{sCB}, s{sCB}, s{sT}")
    A(f"s_mul_i32 s{sCA}, s{sBB}, 896")
    A(f"s_lshl_b32 s{sT}, s{sC}, 7")
    A(f"s_add_u32 s{sCA}, s{sCA}, s{sT}")
    A(f"s_lshl_b32 s{sLA}, s{sW}, 12")
    A(f"s_add_u32 s{sLB}, s{sLA}, 16384")
    A(f"v_lshrrev_b32 v{vT}, 3, v{vL}")
    A(f"v_mul_u32_u24 v{vA0}, 57344, v{vT}")
    A(f"v_lshrrev_b32 v{vT+1}, 4, v{vL}")
    A(f"v_and_b32 v{vT+3}, 7, v{vL}")
    A(f"v_xor_b32 v{vT+3}, v{vT+3}, v{vT+1}")
    A(f"v_lshl_add_u32 v{vA0}, v{vT+3}, 4, v{vA0}")
    A(f"v_xor_b32 v{vA1}, 64, v{vA0}")
    A(f"v_mul_u32_u24 v{vB}, s{sPITCH}, v{vT+1}")
    A(f"v_bfe_u32 v{vT+3}, v{vL}, 2, 2")
    A(f"v_xor_b32 v{vT+3}, v{vT+3}, v{vT+1}")
    A(f"v_lshl_add_u32 v{vB}, v{vT+3}, 6, v{vB}")
    A(f"v_and_b32 v{vT+3}, 3, v{vL}")
    A(f"v_lshl_add_u32 v{vB}, v{vT+3}, 4, v{vB}")
    A(f"s_getpc_b64 {sr(56,2)}")
    A("s_add_u32 s56, s56, tab_fwd@rel32@lo+4")
    A("s_addc_u32 s57, s57, tab_fwd@rel32@hi+12")
    A(f"s_mov_b32 s{sX+2}, 1835008")
    A(f"s_mov_b32 s{sX+3}, 0x20000")
    A(f"s_mov_b32 s{sB+2}, 458752")
    A(f"s_mov_b32 s{sB+3}, 0x20000")
    A("s_waitcnt lgkmcnt(0)")
    A(f"s_cmp_ge_u32 s{sNT}, 12")
    A(f"s_cselect_b32 s{sB}, s56, s{sB}")
    A(f"s_cselect_b32 s{sB+1}, s57, s{sB+1}")
    A(f"s_cselect_b32 s{sB+2}, s{sB+2}, 1204224")

    def issue_chunk(slot):
        A(f"s_add_u32 m0, s{sLA}, {32768*slot}")
        for i in range(4):
            if i == 0: so = sCA
            else:
                A(f"s_add_u32 s{sT}, s{sCA}, {i*457728}"); so = sT
            A(f"buffer_load_dwordx4 v{vA0 if i%2==0 else vA1}, {sr(sX,4)}, s{so} offen offset:{1024*i} lds")
        A(f"s_add_u32 m0, s{sLB}, {32768*slot}")
        for i in range(4):
            if i == 0: so = sCB
            elif i == 1: A(f"s_add_u32 s{sT}, s{sCB}, s{sP4}"); so = sT
            else: A(f"s_add_u32 s{sT}, s{sT}, s{sP4}"); so = sT
            A(f"buffer_load_dwordx4 v{vB}, {sr(sB,4)}, s{so} offen offset:{1024*i} lds")
        A(f"s_add_u32 s{sCA}, s{sCA}, 128")
        A(f"s_add_u32 s{sCB}, s{sCB}, s{sP64}")
        A(f"s_add_u32 s{sC}, s{sC}, 1")
        A(f"s_cmp_eq_u32 s{sC}, 7")
        A(f"s_cselect_b32 s{sT}, 896, 0")
        A(f"s_cselect_b32 s{sT2}, s{sP384}, 0")
        A(f"s_cselect_b32 s{sC}, 0, s{sC}")
        A(f"s_sub_u32 s{sCA}, s{sCA}, s{sT}")
        A(f"s_sub_u32 s{sCB}, s{sCB}, s{sT2}")
    for s in range(5): issue_chunk(s)

    for r in (sWS, sWR, sWI):
        A(f"s_mov_b32 s{r+2}, {WS_BYTES if r == sWS else 921600}")
        A(f"s_mov_b32 s{r+3}, 0x20000")
    A(f"v_and_b32 v{vT}, 31, v{vL}")
    A(f"v_lshrrev_b32 v{vT+1}, 5, v{vL}")
    A(f"v_bfe_u32 v{vT+2}, v{vL}, 1, 3")
    A(f"v_xor_b32 v{vT+2}, v{vT+2}, v{vT+1}")
    A(f"v_lshlrev_b32 v{vT+2}, 4, v{vT+2}")
    A(f"v_lshl_add_u32 v{vT+2}, v{vT}, 7, v{vT+2}")
    A(f"v_add_u32 v{vRA}, s{sLA}, v{vT+2}")
    for u in range(1, 4): A(f"v_xor_b32 v{vRA+u}, {32*u}, v{vRA}")
    A(f"v_bfe_u32 v{vT+2}, v{vL}, 2, 2")
    A(f"v_lshl_add_u32 v{vT+3}, v{vT+1}, 3, v{vT+2}")
    A(f"v_lshlrev_b32 v{vT+3}, 8, v{vT+3}")
    A(f"v_add_u32 v{vT+3}, 16384, v{vT+3}")
    A(f"v_bfe_u32 v{vT+4}, v{vL}, 4, 1")
    A(f"v_lshlrev_b32 v{vT+4}, 5, v{vT+4}")
    A(f"v_and_b32 v{vT+5}, 3, v{vL}")
    A(f"v_lshl_add_u32 v{vT+4}, v{vT+5}, 3, v{vT+4}")
    A(f"v_lshlrev_b32 v{vT+2}, 6, v{vT+2}")
    for g in range(4):
        A(f"v_xor_b32 v{vT+5}, v{vT+4}, v{vT+2}")
        A(f"v_add_u32 v{vRB+g}, v{vT+5}, v{vT+3}")
        if g < 3: A(f"v_add_u32 v{vT+4}, s{sGS}, v{vT+4}")
    A(f"s_lshr_b32 s{sT}, s2, 2")
    A(f"s_and_b32 s{sT2}, s{sT}, 3")
    A(f"s_lshr_b32 s{sT}, s{sT}, 2")
    A(f"s_lshl_b32 s{sT2}, s{sT2}, 3")
    A(f"s_lshl_b32 s{sW0}, s{sW}, 1")
    A(f"s_add_u32 s{sT2}, s{sT2}, s{sW0}")
    A(f"s_lshl_b32 s{sW0}, s{sT}, 7")
    A(f"s_add_u32 s{sW0}, s{sW0}, s{sT2}")
    A(f"s_mul_i32 s{sW0}, s{sW0}, 450")
    for i in range(1, 4): A(f"s_add_u32 s{sW0+i}, s{sW0}, {14400*i}")
    A(f"s_lshl_b32 s{sWST}, s{sT}, 5")
    A(f"s_add_u32 s{sWST}, s{sWST}, s{sT2}")
    A(f"s_lshl_b32 s{sWST}, s{sWST}, 12")
    A(f"s_and_b32 s{sT}, s2, 3")
    A(f"s_lshl_b32 s{sT2}, s{sT}, 10")
    A(f"s_add_u32 s{sWST}, s{sWST}, s{sT2}")
    A(f"s_add_u32 s{sWST}, s{sWST}, {WS_W}")
    A(f"s_lshl_b32 s{sT}, s{sT}, 7")
    A(f"v_lshl_add_u32 v{vWO}, v{vL}, 1, s{sT}")
    A(f"v_lshlrev_b32 v{vST}, 4, v{vL}")
    A(f"s_cmp_lt_u32 s{sNT}, 12")
    A("s_cbranch_scc1 k1_nom")
    A(f"v_lshl_add_u32 v{vT+2}, v{vT+1}, 8, s{sBB}")
    A(f"v_mul_u32_u24 v{vT+2}, v{vT+2}, v{vT}")
    A(f"v_cvt_f32_u32 v{vT+2}, v{vT+2}")
    A(f"v_mul_f32 v{vT+2}, {hex(f2u(1/2048))}, v{vT+2}")
    A(f"v_cvt_f32_u32 v{vT+3}, v{vT}")
    A(f"v_mul_f32 v{vT+3}, {hex(f2u(1/32))}, v{vT+3}")
    for t in range(2):
        for jp in range(4):
            for e in range(2):
                j = 2 * jp + e
                n = 16 * t + 8 * (j >> 2) + (j & 3)
                A(f"v_fmamk_f32 v{vT+4+e}, v{vT+3}, {hex(f2u(float(n)))}, v{vT+2}")
                A(f"v_fract_f32 v{vT+4+e}, v{vT+4+e}")
            A(f"v_cos_f32 v{vT+6}, v{vT+4}")
            A(f"v_cos_f32 v{vT+7}, v{vT+5}")
            A(f"v_sin_f32 v{vT+8}, v{vT+4}")
            A(f"v_sin_f32 v{vT+9}, v{vT+5}")
            A(f"v_cvt_pk_bf16_f32 v{MC+4*t+jp}, v{vT+6}, v{vT+7}")
            A(f"v_cvt_pk_bf16_f32 v{MS+4*t+jp}, v{vT+8}, v{vT+9}")
            A(f"v_cvt_pk_bf16_f32 v{MN+4*t+jp}, -v{vT+8}, -v{vT+9}")
    A("k1_nom:")

    def reads(buf, slot, u):
        off = 32768 * (slot & 1)
        A(f"ds_read_b128 {vr(FA+4*buf,4)}, v{vRA+u} offset:{off}")
        for g in range(4):
            A(f"ds_read_b64_tr_b16 {vr(FB+16*buf+4*g,2)}, v{vRB+g} offset:{off+4096*u}")
            A(f"ds_read_b64_tr_b16 {vr(FB+16*buf+4*g+2,2)}, v{vRB+g} offset:{off+4096*u+1024}")
    def mfmas(buf, swap, first):
        for g in range(4):
            a, b = vr(FA+4*buf,4), vr(FB+16*buf+4*g,4)
            if swap: a, b = b, a
            c = "0" if first else vr(ACC+16*g,16)
            A(f"v_mfma_f32_32x32x16_bf16 {vr(ACC+16*g,16)}, {a}, {b}, {c}")
    def wloads(kk):
        for p, srd in enumerate((sWR, sWI)):
            for i in range(4):
                A(f"buffer_load_ushort v{WL+8*kk+4*p+i}, v{vWO}, {sr(srd,4)}, s{sW0+i} offen offset:{450*kk}")
    def mainloop(swap):
        waits = [32, 24, 24, 24, 32, 24, 16]
        for i in range(7):
            slot = i % 5
            if i in (2, 4, 5):
                d = 65536 if i != 5 else -131072
                for r in list(range(vRA, vRA+4)) + list(range(vRB, vRB+4)):
                    A(f"v_add_u32 v{r}, {hex(d & 0xffffffff)}, v{r}")
            A(f"s_waitcnt vmcnt({waits[i]})")
            A("s_barrier")
            reads(0, slot, 0)
            if i > 0: mfmas(1, swap, False)
            if i in (1, 2): issue_chunk((i - 1) % 5)
            if i == 3: wloads(0); wloads(1)
            for u in range(1, 4):
                reads(u & 1, slot, u)
                A("s_waitcnt lgkmcnt(9)")
                mfmas((u - 1) & 1, swap, i == 0 and u == 1)
            A("s_waitcnt lgkmcnt(0)")
        mfmas(1, swap, False)
    def wstore():
        A("s_waitcnt vmcnt(0)")
        for kk in range(2):
            for p in range(4):
                A(f"v_lshl_or_b32 v{WL+8*kk+p}, v{WL+8*kk+2*p+1}, 16, v{WL+8*kk+2*p}")
        for kk in range(2):
            if kk: A(f"s_add_u32 s{sWST}, s{sWST}, 4096")
            A(f"buffer_store_dwordx4 {vr(WL+8*kk,4)}, v{vST}, {sr(sWS,4)}, s{sWST} offen")

    A(f"s_cmp_ge_u32 s{sNT}, 8")
    A("s_cbranch_scc1 k1_vd")
    mainloop(True)
    wstore()
    A(f"s_and_b32 s{sT}, s{sNT}, 3")
    A(f"s_lshl_b32 s{sT}, s{sT}, 8")
    A(f"s_add_u32 s{sT}, s{sT}, s{sBB}")
    A(f"s_lshl_b32 s{sT}, s{sT}, 11")
    A(f"s_cmp_ge_u32 s{sNT}, 4")
    A(f"s_cselect_b32 s{sT2}, {WS_K}, {WS_Q}")
    A(f"s_add_u32 s{sT}, s{sT}, s{sT2}")
    A(f"s_cmp_ge_u32 s{sNT}, 4")
    A(f"s_cselect_b32 s{sGS}, 1.0, {hex(QSCALE)}")
    A(f"s_cselect_b32 s{sLA}, 0x3f803f80, 0")
    A(f"s_cselect_b32 s{sLB}, 0x3f80, 0")
    A(f"s_cselect_b32 s{sC}, 12, 0")
    A(f"v_mov_b32 v{vT+6}, s{sLA}")
    A(f"v_mov_b32 v{vT+7}, s{sLB}")
    A(f"v_lshrrev_b32 v{vT}, 1, v{vL}")
    A(f"v_xor_b32 v{vT}, v{vT}, v{vL}")
    A(f"v_and_b32 v{vT}, 4, v{vT}")
    A(f"v_mul_u32_u24 v{vT}, 3, v{vT}")
    A(f"v_and_b32 v{vT}, s{sC}, v{vT}")
    A(f"v_xor_b32 v{vT}, v{vT}, v{vL}")
    A(f"v_lshlrev_b32 v{vST}, 4, v{vT}")
    A(f"v_cmp_lt_u32 vcc, 31, v{vL}")
    for g in range(4):
        for r in range(16): A(f"v_mul_f32 v{ACC+16*g+r}, s{sGS}, v{ACC+16*g+r}")
        for r in range(8): A(f"v_cvt_pk_bf16_f32 v{PK+8*g+r}, v{ACC+16*g+2*r}, v{ACC+16*g+2*r+1}")
        A(f"v_cndmask_b32 v{PK+8*g+6}, v{PK+8*g+6}, v{vT+6}, vcc")
        A(f"v_cndmask_b32 v{PK+8*g+7}, v{PK+8*g+7}, v{vT+7}, vcc")
        if g: A(f"s_add_u32 s{sT}, s{sT}, {64*2048}")
        A(f"buffer_store_dwordx4 {vr(PK+8*g,4)}, v{vST}, {sr(sWS,4)}, s{sT} offen")
        A(f"buffer_store_dwordx4 {vr(PK+8*g+4,4)}, v{vST}, {sr(sWS,4)}, s{sT} offen offset:1024")
    A("s_branch k1_pf")
    A("k1_vd:")
    mainloop(False)
    wstore()
    A(f"s_cmp_ge_u32 s{sNT}, 12")
    A("s_cbranch_scc1 k1_dft")
    A(f"s_and_b32 s{sT}, s{sNT}, 3")
    A(f"s_lshl_b32 s{sT}, s{sT}, 8")
    A(f"s_add_u32 s{sT}, s{sT}, s{sBB}")
    A(f"s_lshl_b32 s{sT}, s{sT}, 11")
    A(f"s_add_u32 s{sT}, s{sT}, {WS_V}")
    A(f"v_and_b32 v{vT}, 31, v{vL}")
    A(f"v_cmp_eq_u32 vcc, 28, v{vT}")
    A(f"v_mov_b32 v{vT+1}, 0x3f803f80")
    A(f"v_cndmask_b32 v{vT+1}, 0, v{vT+1}, vcc")
    A(f"v_cmp_lt_u32 vcc, 27, v{vT}")
    for g in range(4):
        for r in range(8): A(f"v_cvt_pk_bf16_f32 v{PK+8*g+r}, v{ACC+16*g+2*r}, v{ACC+16*g+2*r+1}")
        for r in range(8): A(f"v_cndmask_b32 v{PK+8*g+r}, v{PK+8*g+r}, v{vT+1}, vcc")
        if g: A(f"s_add_u32 s{sT}, s{sT}, {64*2048}")
        A(f"buffer_store_dwordx4 {vr(PK+8*g,4)}, v{vST}, {sr(sWS,4)}, s{sT} offen")
        A(f"buffer_store_dwordx4 {vr(PK+8*g+4,4)}, v{vST}, {sr(sWS,4)}, s{sT} offen offset:1024")
    A("s_branch k1_pf")
    A("k1_dft:")
    A(f"s_lshl_b32 s{sT}, s{sBB}, 3")
    A(f"s_lshl_b32 s{sT2}, s{sNT}, 1")
    A(f"s_add_u32 s{sT}, s{sT}, s{sT2}")
    A(f"s_sub_u32 s{sT}, s{sT}, 24")
    A(f"s_lshl_b32 s{sT}, s{sT}, 12")
    A(f"s_add_u32 s{sT}, s{sT}, {WS_Y}")
    for g in range(4):
        for r in range(8): A(f"v_cvt_pk_bf16_f32 v{PK+8*g+r}, v{ACC+16*g+2*r}, v{ACC+16*g+2*r+1}")
    for cg in range(2):
        xr, xi = PK + 16 * cg, PK + 16 * cg + 8
        yr, yi = ACC + 32 * cg, ACC + 32 * cg + 16
        for t in range(2):
            A(f"v_mfma_f32_32x32x16_bf16 {vr(yr,16)}, {vr(MC+4*t,4)}, {vr(xr+4*t,4)}, {'0' if t == 0 else vr(yr,16)}")
            A(f"v_mfma_f32_32x32x16_bf16 {vr(yi,16)}, {vr(MC+4*t,4)}, {vr(xi+4*t,4)}, {'0' if t == 0 else vr(yi,16)}")
        for t in range(2):
            A(f"v_mfma_f32_32x32x16_bf16 {vr(yr,16)}, {vr(MS+4*t,4)}, {vr(xi+4*t,4)}, {vr(yr,16)}")
            A(f"v_mfma_f32_32x32x16_bf16 {vr(yi,16)}, {vr(MN+4*t,4)}, {vr(xr+4*t,4)}, {vr(yi,16)}")
    for g in range(4):
        P = FA + 8 * g
        for r in range(8): A(f"v_cvt_pk_bf16_f32 v{P+r}, v{ACC+16*g+2*r}, v{ACC+16*g+2*r+1}")
        for t in range(2):
            A(f"v_permlane32_swap_b32 v{P+4*t}, v{P+4*t+2}")
            A(f"v_permlane32_swap_b32 v{P+4*t+1}, v{P+4*t+3}")
        if g == 2: A(f"s_add_u32 s{sT}, s{sT}, 4096")
        for t in range(2):
            A(f"buffer_store_dwordx4 {vr(P+4*t,4)}, v{vST}, {sr(sWS,4)}, s{sT} offen offset:{(g&1)*2048+1024*t}")
    A("k1_pf:")
    A(f"s_cmp_lg_u32 s{sW}, 0")
    A("s_cbranch_scc1 k1_end")
    A(f"s_cmp_ge_u32 s{sJ}, 8")
    A("s_cbranch_scc1 k1_end")
    A(f"s_getpc_b64 {sr(56,2)}")
    A("s_add_u32 s56, s56, tab_small@rel32@lo+4")
    A("s_addc_u32 s57, s57, tab_small@rel32@hi+12")
    A(f"s_getpc_b64 {sr(58,2)}")
    A("s_add_u32 s58, s58, k2_kernel@rel32@lo+4")
    A("s_addc_u32 s59, s59, k2_kernel@rel32@hi+12")
    A(f"s_cmp_ge_u32 s{sJ}, 6")
    A(f"s_cselect_b32 s56, s58, s56")
    A(f"s_cselect_b32 s57, s59, s57")
    A(f"s_cselect_b32 s{sT}, 6, 0")
    A(f"s_sub_u32 s{sT}, s{sJ}, s{sT}")
    A(f"s_lshl_b32 s{sT}, s{sT}, 13")
    A(f"v_lshl_add_u32 v{vT}, v{vL}, 7, s{sT}")
    A(f"global_load_dword v{vT+1}, v{vT}, s[56:57]")
    A("k1_end:")
    A("s_endpgm")
    return A.L, NV, 64
```

```python
from asmlib import *
from k1 import WS_Q, WS_K, WS_V, WS_Y, WS_W, WS_O, WS_Z, WS_G, WS_BYTES, f2u
import math
TS_F64, TS_F32, TS_TW, TS_BYTES = 0, 24576, 30720, 47104
LDS_RED, LDS_FLAG, LDS_MAX, LDS_Y = 0, 65536, 65536 + 256, 65536 + 4096
K2_LDS = LDS_Y + 8192

def gen_k2():
    A = Asm()
    sWS, sX, sTB = 8, 12, 16
    sW, sJ, sXC, sHD, sQB, sT, sT2, sCNT, sI, sKO, sLO, sHI, sVO, sPASS = 20, 21, 22, 23, 24, 25, 26, 27, 28, 29, 30, 31, 32, 33
    sK0 = 34
    O, S, Q, KV = 0, 64, 128, 160
    vL, vO16, vIDX, vT = 208, 209, 210, 212
    NV = 256
    A("s_cmp_ge_u32 s2, 256")
    A("s_cbranch_scc1 k2_end")
    A(f"s_load_dwordx2 {sr(sWS,2)}, s[0:1], 72")
    A(f"v_lshrrev_b32 v{vT}, 6, v0")
    A(f"v_and_b32 v{vL}, 63, v0")
    A(f"s_mov_b32 s{sWS+2}, {WS_BYTES}")
    A(f"s_mov_b32 s{sWS+3}, 0x20000")
    A(f"v_readfirstlane_b32 s{sW}, v{vT}")
    A(f"v_lshlrev_b32 v{vO16}, 4, v{vL}")
    A(f"s_and_b32 s{sXC}, s2, 7")
    A(f"s_lshr_b32 s{sJ}, s2, 3")
    A(f"s_cmp_eq_u32 s{sW}, 4")
    A("s_cbranch_scc1 k2_aux")
    A(f"s_lshr_b32 s{sHD}, s{sJ}, 4")
    A(f"s_lshl_b32 s{sHD}, s{sHD}, 3")
    A(f"s_add_u32 s{sHD}, s{sHD}, s{sXC}")
    A(f"s_and_b32 s{sQB}, s{sJ}, 15")
    A(f"s_cmp_eq_u32 s{sW}, 0")
    A(f"s_cselect_b32 s{sCNT}, 13, 17")
    A(f"s_mul_i32 s{sT}, s{sW}, 17")
    A(f"s_sub_u32 s{sT}, s{sT}, 4")
    A(f"s_max_i32 s{sT}, s{sT}, 0")
    A(f"s_lshl_b32 s{sT2}, s{sW}, 4")
    A(f"s_cmp_lt_u32 s{sJ}, 28")
    A(f"s_cselect_b32 s{sCNT}, s{sCNT}, 16")
    A(f"s_cselect_b32 s{sT}, s{sT}, s{sT2}")
    A(f"s_lshl_b32 s{sT2}, s{sHD}, 6")
    A(f"s_add_u32 s{sT}, s{sT}, s{sT2}")
    A(f"s_lshl_b32 s{sLO}, s{sT}, 11")
    A(f"s_add_u32 s{sLO}, s{sLO}, {WS_K}")
    A(f"s_lshl_b32 s{sT}, s{sCNT}, 11")
    A(f"s_add_u32 s{sHI}, s{sLO}, s{sT}")
    A(f"s_mul_i32 s{sT}, s{sQB}, s{sCNT}")
    A(f"s_lshr_b32 s{sT}, s{sT}, 4")
    A(f"s_lshl_b32 s{sT}, s{sT}, 11")
    A(f"s_add_u32 s{sK0}, s{sLO}, s{sT}")
    A(f"s_lshl_b32 s{sT}, s{sQB}, 2")
    A(f"s_add_u32 s{sT}, s{sT}, s{sT2}")
    A(f"s_lshl_b32 s{sT}, s{sT}, 11")
    A("s_waitcnt lgkmcnt(0)")
    def kvload(st):
        b = KV + 16 * st
        return [f"s_add_u32 s{sVO}, s{sKO}, {WS_V - WS_K}",
                f"buffer_load_dwordx4 {vr(b,4)}, v{vO16}, {sr(sWS,4)}, s{sKO} offen",
                f"buffer_load_dwordx4 {vr(b+4,4)}, v{vO16}, {sr(sWS,4)}, s{sKO} offen offset:1024",
                f"buffer_load_dwordx4 {vr(b+8,4)}, v{vO16}, {sr(sWS,4)}, s{sVO} offen",
                f"buffer_load_dwordx4 {vr(b+12,4)}, v{vO16}, {sr(sWS,4)}, s{sVO} offen offset:1024",
                f"s_add_u32 s{sKO}, s{sKO}, 2048",
                f"s_cmp_ge_u32 s{sKO}, s{sHI}",
                f"s_cselect_b32 s{sKO}, s{sLO}, s{sKO}"]
    for q in range(4):
        if q == 2: A(f"s_add_u32 s{sT}, s{sT}, 4096")
        for t in range(2):
            A(f"buffer_load_dwordx4 {vr(Q+8*q+4*t,4)}, v{vO16}, {sr(sWS,4)}, s{sT} offen offset:{2048*(q&1)+1024*t}")
    A(f"s_mov_b32 s{sPASS}, 0")
    A(f"v_mov_b32 v{vIDX}, 0xdddddddd")
    A(f"v_mov_b32 v{vT}, 0")
    A(f"v_mov_b32 v{vT+1}, {LDS_FLAG}")
    A(f"ds_write_b32 v{vT+1}, v{vT}")
    A("k2_pass:")
    A(f"s_mov_b32 s{sKO}, s{sK0}")
    for x in kvload(0): A(x)
    for x in kvload(1): A(x)
    for r in range(64): A(f"v_mov_b32 v{O+r}, 0")
    for r in range(16): A(f"v_mov_b32 v{S+48+r}, 0")
    for r in range(8): A(f"v_mov_b32 v{KV+32+8+r}, 0")
    A(f"s_mov_b32 s{sI}, s{sCNT}")
    A("s_waitcnt vmcnt(6)")
    def qk(q, st, half):
        c = "0" if half == 0 else vr(S+16*q,16)
        return f"v_mfma_f32_32x32x16_bf16 {vr(S+16*q,16)}, {vr(KV+16*st+4*half,4)}, {vr(Q+8*q+4*half,4)}, {c}"
    def pv(q, st, half):
        return f"v_smfmac_f32_32x32x32_bf16 {vr(O+16*q,16)}, {vr(KV+16*st+8+4*half,4)}, {vr(S+16*q+8*half,8)}, v{vIDX}"
    A(qk(0, 0, 0)); A(qk(0, 0, 1))
    A("s_nop 7")
    loop_start = A.mark()
    A("k2_loop:")
    for st in range(3):
        nxt, prv = (st + 1) % 3, (st + 2) % 3
        for q in range(4):
            e = [f"v_exp_f32 v{S+16*q+r}, v{S+16*q+r}" for r in range(16)]
            qn, stn = (q + 1, st) if q < 3 else (0, nxt)
            qp, stp = (q - 1, st) if q > 0 else (3, prv)
            fill = {}
            if q == 1:
                ld = kvload(prv)
                fill[0] = ["s_waitcnt vmcnt(4)"]
                for k, x in enumerate(ld): fill.setdefault(8 + k, []).append(x)
            if q == 3:
                pre = ["s_waitcnt vmcnt(6)"]
            else: pre = []
            if q == 2:
                fill[1] = [f"s_sub_u32 s{sI}, s{sI}, 1"]
            for x in pre: A(x)
            seq = [qk(qn, stn, 0)] + e[0:4] + [qk(qn, stn, 1)] + e[4:8] + [pv(qp, stp, 0)] + e[8:12] + [pv(qp, stp, 1)] + e[12:16]
            ei = 0
            for x in seq:
                A(x)
                if x.startswith("v_exp"):
                    for y in fill.get(ei, []): A(y)
                    ei += 1
        A(f"s_cmp_eq_u32 s{sI}, 0")
        if st < 2: A(f"s_cbranch_scc1 k2_x{st}")
        else: A("s_cbranch_scc0 k2_loop")
    loop_end = A.mark()
    for st in (2, 0, 1):
        if st != 2: A(f"k2_x{st}:")
        A("s_nop 1")
        A(pv(3, st, 0)); A(pv(3, st, 1))
        if st != 1: A("s_branch k2_red")
    A("k2_red:")
    A(f"s_lshl_b32 s{sT}, s{sW}, 12")
    A(f"v_add_u32 v{vT}, s{sT}, v{vO16}")
    A(f"s_lshl_b32 s{sT}, s{sW}, 14")
    A(f"v_add_u32 v{vT+1}, s{sT}, v{vO16}")
    for q in range(4):
        if q == 3: A("s_nop 7")
        for g in range(4):
            A(f"ds_write_b128 v{vT}, {vr(O+16*q+4*g,4)} offset:{16384*q+1024*g}")
    A("s_waitcnt vmcnt(0) lgkmcnt(0)")
    A("s_barrier")
    for w in range(4):
        for g in range(4):
            A(f"ds_read_b128 {vr(S+16*w+4*g,4)}, v{vT+1} offset:{4096*w+1024*g}")
    A(f"s_lshl_b32 s{sT}, s{sQB}, 2")
    A(f"s_add_u32 s{sT}, s{sT}, s{sW}")
    A(f"s_mul_i32 s{sT}, s{sT}, 28672")
    A(f"s_add_u32 s{sT}, s{sT}, {WS_O}")
    A(f"s_mul_i32 s{sT2}, s{sHD}, 7")
    A(f"v_lshrrev_b32 v{vT+2}, 5, v{vL}")
    A(f"v_add_u32 v{vT+2}, s{sT2}, v{vT+2}")
    A(f"v_and_b32 v{vT+3}, 31, v{vL}")
    A(f"v_lshlrev_b32 v{vT+3}, 4, v{vT+3}")
    A(f"v_and_b32 v{vT+4}, 1, v{vT+2}")
    A(f"v_lshl_add_u32 v{vT+3}, v{vT+4}, 3, v{vT+3}")
    A(f"v_lshrrev_b32 v{vT+2}, 1, v{vT+2}")
    A(f"v_lshl_add_u32 v{vT+3}, v{vT+2}, 9, v{vT+3}")
    A("s_waitcnt lgkmcnt(8)")
    for r in range(16): A(f"v_add_f32 v{S+r}, v{S+r}, v{S+16+r}")
    A("s_waitcnt lgkmcnt(0)")
    for r in range(16): A(f"v_add_f32 v{S+32+r}, v{S+32+r}, v{S+48+r}")
    for r in range(16): A(f"v_add_f32 v{S+r}, v{S+r}, v{S+32+r}")
    A(f"v_mov_b32 v{vT+4}, v{S+12}")
    A(f"v_mov_b32 v{vT+5}, v{S+12}")
    A(f"v_permlane32_swap_b32 v{vT+4}, v{vT+5}")
    A(f"v_rcp_f32 v{vT+6}, v{vT+5}")
    A(f"v_add_f32 v{vT+7}, abs(v{S}), abs(v{S+1})")
    for r in range(2, 16): A(f"v_add_f32 v{vT+7}, v{vT+7}, abs(v{S+r})")
    A(f"v_cmp_nle_f32 vcc, {hex(f2u(2.0**-60))}, v{vT+5}")
    A(f"s_mov_b64 s[36:37], vcc")
    A(f"v_cmp_nge_f32 vcc, {hex(f2u(2.0**60))}, v{vT+5}")
    A(f"s_or_b64 s[36:37], s[36:37], vcc")
    A(f"v_cmp_nge_f32 vcc, {hex(f2u(2.0**120))}, v{vT+7}")
    A(f"s_or_b64 s[36:37], s[36:37], vcc")
    for r in range(16): A(f"v_mul_f32 v{S+r}, v{S+r}, v{vT+6}")
    for r in range(8): A(f"v_cvt_pk_bf16_f32 v{S+16+r}, v{S+2*r}, v{S+2*r+1}")
    for g in range(4):
        if g == 3: A("s_mov_b64 exec, 0xffffffff")
        A(f"buffer_store_dwordx2 {vr(S+16+2*g,2)}, v{vT+3}, {sr(sWS,4)}, s{sT} offen offset:{512*g}")
    A("s_mov_b64 exec, -1")
    A(f"s_cmp_lg_u32 s{sPASS}, 0")
    A("s_cbranch_scc1 k2_end")
    A("s_cmp_eq_u64 s[36:37], 0")
    A("s_cbranch_scc1 k2_noflag")
    A(f"v_mov_b32 v{vT+4}, {LDS_FLAG}")
    A(f"v_mov_b32 v{vT+5}, 1")
    A(f"ds_write_b32 v{vT+4}, v{vT+5}")
    A("k2_noflag:")
    A(f"v_mov_b32 v{vT+4}, {LDS_FLAG}")
    A("s_waitcnt lgkmcnt(0)")
    A("s_barrier")
    A(f"ds_read_b32 v{vT+5}, v{vT+4}")
    A("s_waitcnt lgkmcnt(0)")
    A(f"v_readfirstlane_b32 s{sT}, v{vT+5}")
    A(f"s_cmp_eq_u32 s{sT}, 0")
    A("s_cbranch_scc1 k2_end")
    A(f"s_mov_b32 s{sPASS}, 1")
    for q in range(4): A(f"v_mov_b32 v{O+q}, 0xff800000")
    A(f"s_mov_b32 s{sKO}, s{sLO}")
    A("k2_maxloop:")
    A(f"buffer_load_dwordx4 {vr(KV,4)}, v{vO16}, {sr(sWS,4)}, s{sKO} offen")
    A(f"buffer_load_dwordx4 {vr(KV+4,4)}, v{vO16}, {sr(sWS,4)}, s{sKO} offen offset:1024")
    A("s_waitcnt vmcnt(0)")
    for q in range(4): A(qk(q, 0, 0)); A(qk(q, 0, 1))
    A("s_nop 15")
    for q in range(4):
        for r in range(8): A(f"v_max3_f32 v{O+q}, v{O+q}, v{S+16*q+2*r}, v{S+16*q+2*r+1}")
    A(f"s_add_u32 s{sKO}, s{sKO}, 2048")
    A(f"s_cmp_lt_u32 s{sKO}, s{sHI}")
    A("s_cbranch_scc1 k2_maxloop")
    A(f"s_lshl_b32 s{sT}, s{sW}, 8")
    A(f"v_lshl_add_u32 v{vT}, v{vL}, 2, s{sT}")
    for q in range(4): A(f"ds_write_b32 v{vT}, v{O+q} offset:{1024*q}")
    A(f"v_and_b32 v{vT+1}, 31, v{vL}")
    A(f"v_lshlrev_b32 v{vT+1}, 2, v{vT+1}")
    A("s_waitcnt lgkmcnt(0)")
    A("s_barrier")
    for q in range(4):
        for k in range(8): A(f"ds_read_b32 v{S+8*q+k}, v{vT+1} offset:{1024*q+128*k}")
        A("s_waitcnt lgkmcnt(0)")
    A("s_barrier")
    A(f"v_cmp_lt_u32 vcc, 31, v{vL}")
    for q in range(4):
        m = S + 8 * q
        A(f"v_max3_f32 v{m}, v{m}, v{m+1}, v{m+2}")
        A(f"v_max3_f32 v{m}, v{m}, v{m+3}, v{m+4}")
        A(f"v_max3_f32 v{m}, v{m}, v{m+5}, v{m+6}")
        A(f"v_max_f32 v{m}, v{m}, v{m+7}")
        A(f"v_xor_b32 v{m}, 0x80000000, v{m}")
        A(f"v_and_b32 v{m+1}, 0xffff0000, v{m}")
        A(f"v_sub_f32 v{m+2}, v{m}, v{m+1}")
        A(f"v_and_b32 v{m+3}, 0xffff0000, v{m+2}")
        A(f"v_sub_f32 v{m+4}, v{m+2}, v{m+3}")
        A(f"v_lshrrev_b32 v{m+1}, 16, v{m+1}")
        A(f"v_or_b32 v{m+1}, v{m+1}, v{m+3}")
        A(f"v_lshrrev_b32 v{m+4}, 16, v{m+4}")
        A(f"v_cndmask_b32 v{Q+8*q+6}, v{Q+8*q+6}, v{m+1}, vcc")
        A(f"v_cndmask_b32 v{Q+8*q+7}, v{Q+8*q+7}, v{m+4}, vcc")
    A("s_branch k2_pass")

    A("k2_aux:")
    A("s_setprio 3")
    sCOL, sGW = 27, 40
    A(f"s_getpc_b64 {sr(sTB,2)}")
    A(f"s_add_u32 s{sTB}, s{sTB}, tab_small@rel32@lo+4")
    A(f"s_addc_u32 s{sTB+1}, s{sTB+1}, tab_small@rel32@hi+12")
    A(f"s_mov_b32 s{sTB+2}, {TS_BYTES}")
    A(f"s_mov_b32 s{sTB+3}, 0x20000")
    A(f"s_mul_i32 s{sCOL}, s{sXC}, 28")
    A(f"s_add_u32 s{sCOL}, s{sCOL}, s{sJ}")
    A(f"s_cmp_lt_u32 s{sJ}, 28")
    A("s_waitcnt lgkmcnt(0)")
    A("s_cbranch_scc1 k2_fft")
    A(f"s_load_dwordx2 {sr(sX,2)}, s[0:1], 0")
    A(f"s_load_dwordx2 {sr(sGW,2)}, s[0:1], 48")
    A(f"s_mov_b32 s{sX+2}, 1835008")
    A(f"s_mov_b32 s{sX+3}, 0x20000")
    A(f"s_mov_b32 s{sGW+2}, 896")
    A(f"s_mov_b32 s{sGW+3}, 0x20000")
    A(f"s_sub_u32 s{sT}, s{sJ}, 28")
    A(f"s_lshl_b32 s{sT}, s{sT}, 3")
    A(f"s_add_u32 s{sQB}, s{sT}, s{sXC}")
    A(f"s_mul_i32 s{sKO}, s{sQB}, 1792")
    A(f"s_mov_b32 s{sVO}, 0")
    A(f"v_and_b32 v1, 31, v{vL}")
    A(f"v_lshrrev_b32 v2, 5, v{vL}")
    A("v_lshlrev_b32 v2, 4, v2")
    A("v_mul_u32_u24 v3, 57344, v1")
    A("v_add_u32 v3, v3, v2")
    for r in range(32): A(f"v_mov_b32 v{64+r}, 0")
    A("s_waitcnt lgkmcnt(0)")
    A("k2_gloop:")
    for u in range(4):
        A(f"buffer_load_dwordx4 {vr(8+4*u,4)}, v3, {sr(sX,4)}, s{sKO} offen offset:{32*u}")
        A(f"buffer_load_dwordx4 {vr(24+4*u,4)}, v3, {sr(sX,4)}, s{sKO} offen offset:{896+32*u}")
        A(f"buffer_load_dwordx4 {vr(40+4*u,4)}, v2, {sr(sGW,4)}, s{sVO} offen offset:{32*u}")
    A(f"s_add_u32 s{sKO}, s{sKO}, 128")
    A(f"s_add_u32 s{sVO}, s{sVO}, 128")
    A("s_waitcnt vmcnt(0)")
    for u in range(4):
        A(f"v_mfma_f32_32x32x16_bf16 v[64:79], {vr(40+4*u,4)}, {vr(8+4*u,4)}, v[64:79]")
        A(f"v_mfma_f32_32x32x16_bf16 v[80:95], {vr(40+4*u,4)}, {vr(24+4*u,4)}, v[80:95]")
    A(f"s_cmp_lt_u32 s{sVO}, 896")
    A("s_cbranch_scc1 k2_gloop")
    A("s_nop 15")
    A(f"v_cmp_lt_u32 vcc, 31, v{vL}")
    A("v_cndmask_b32 v4, v64, v80, vcc")
    A(f"v_mul_f32 v4, {hex(f2u(-math.log2(math.e)))}, v4")
    A("v_exp_f32 v4, v4")
    A("v_add_f32 v4, 1.0, v4")
    A("v_rcp_f32 v4, v4")
    A(f"v_lshlrev_b32 v5, 2, v{vL}")
    A(f"s_lshl_b32 s{sT}, s{sQB}, 8")
    A(f"s_add_u32 s{sT}, s{sT}, {WS_G}")
    A(f"buffer_store_dword v4, v5, {sr(sWS,4)}, s{sT} offen")
    A(f"s_cmp_lg_u32 s{sQB}, 31")
    A("s_cbranch_scc1 k2_pf")
    A(f"s_movk_i32 s{sCOL}, 224")
    A("k2_fft:")
    CC, CS, CN = 0, 32, 64
    X = 96
    YF = 160
    WT = 212
    TM = 192
    vG = 244
    A(f"v_lshrrev_b32 v{TM}, 2, v{vL}")
    A(f"v_lshlrev_b32 v{TM}, 15, v{TM}")
    A(f"v_and_b32 v{TM+1}, 3, v{vL}")
    A(f"v_lshl_add_u32 v{vG}, v{TM+1}, 9, v{TM}")
    A(f"s_lshr_b32 s{sT}, s{sCOL}, 5")
    A(f"s_lshl_b32 s{sT}, s{sT}, 12")
    A(f"s_and_b32 s{sT2}, s{sCOL}, 31")
    A(f"s_lshl_b32 s{sT2}, s{sT2}, 4")
    A(f"s_add_u32 s{sT}, s{sT}, s{sT2}")
    for n in range(8):
        A(f"s_mov_b32 m0, {LDS_Y + 1024*n}")
        A(f"s_add_u32 s{sT2}, s{sT}, {WS_Y + (n>>2)*2048 + (n&3)*16*32768}")
        A(f"buffer_load_dwordx4 v{vG}, {sr(sWS,4)}, s{sT2} offen lds")
    for kind, base in enumerate((CC, CS, CN)):
        for f in range(8):
            off = TS_F64 + kind * 8192 + f * 1024
            if f % 4 == 0: A(f"s_mov_b32 s{sT2}, {off}")
            A(f"buffer_load_dwordx4 {vr(base+4*f,4)}, v{vO16}, {sr(sTB,4)}, s{sT2} offen offset:{1024*(f%4)}")
    A(f"v_lshlrev_b32 v{vG+1}, 12, v{vL}")
    A(f"s_lshl_b32 s{sT}, s{sCOL}, 4")
    for f in range(8):
        A(f"s_add_u32 s{sT2}, s{sT}, {WS_W + f*64*4096}")
        A(f"buffer_load_dwordx4 {vr(WT+4*f,4)}, v{vG+1}, {sr(sWS,4)}, s{sT2} offen")
    A(f"v_lshrrev_b32 v{TM}, 5, v{vL}")
    A(f"v_bfe_u32 v{TM+1}, v{vL}, 2, 2")
    A(f"v_lshl_add_u32 v{TM}, v{TM}, 2, v{TM+1}")
    A(f"v_lshlrev_b32 v{TM}, 6, v{TM}")
    A(f"v_bfe_u32 v{TM+1}, v{vL}, 4, 1")
    A(f"v_lshl_add_u32 v{TM}, v{TM+1}, 5, v{TM}")
    A(f"v_and_b32 v{TM+1}, 3, v{vL}")
    A(f"v_lshl_add_u32 v{TM}, v{TM+1}, 3, v{TM}")
    A(f"v_add_u32 v{TM}, {LDS_Y}, v{TM}")
    A("s_waitcnt vmcnt(32)")
    for p in range(2):
        for u in range(4):
            A(f"ds_read_b64_tr_b16 {vr(YF+16*p+4*u,2)}, v{TM} offset:{4096*p+1024*u}")
            A(f"ds_read_b64_tr_b16 {vr(YF+16*p+4*u+2,2)}, v{TM} offset:{4096*p+1024*u+512}")
    A("s_waitcnt vmcnt(24) lgkmcnt(0)")
    Yr = lambda u: vr(YF+4*u,4)
    Yi = lambda u: vr(YF+16+4*u,4)
    mf = lambda d, a, b, first=False: A(f"v_mfma_f32_32x32x16_bf16 {vr(d,16)}, {a}, {b}, {'0' if first else vr(d,16)}")
    for u in range(4):
        for mt in range(2):
            mf(X+16*mt, vr(CC+16*mt+4*u,4), Yr(u), u == 0)
            mf(X+32+16*mt, vr(CC+16*mt+4*u,4), Yi(u), u == 0)
    A("s_waitcnt vmcnt(8)")
    for u in range(4):
        for mt in range(2):
            mf(X+16*mt, vr(CS+16*mt+4*u,4), Yi(u))
            mf(X+32+16*mt, vr(CN+16*mt+4*u,4), Yr(u))
    A("s_waitcnt vmcnt(0)")
    for mt in range(2):
        for g in range(4):
            w = WT + 4 * (4 * mt + g)
            for i in range(4):
                src_r, src_i = w + (i >> 1), w + 2 + (i >> 1)
                if i & 1:
                    A(f"v_and_b32 v{TM+2+i}, 0xffff0000, v{src_r}"); A(f"v_and_b32 v{TM+6+i}, 0xffff0000, v{src_i}")
                else:
                    A(f"v_lshlrev_b32 v{TM+2+i}, 16, v{src_r}"); A(f"v_lshlrev_b32 v{TM+6+i}, 16, v{src_i}")
            for i in range(4):
                xr, xi = X + 16*mt + 4*g + i, X + 32 + 16*mt + 4*g + i
                A(f"v_mul_f32 v{TM+10+i}, v{xr}, v{TM+2+i}")
                A(f"v_mul_f32 v{xr}, v{xr}, v{TM+6+i}")
                A(f"v_fma_f32 v{TM+10+i}, -v{xi}, v{TM+6+i}, v{TM+10+i}")
                A(f"v_fma_f32 v{xr}, v{xi}, v{TM+2+i}, v{xr}")
            d = 4 * (2 * mt + (g >> 1)) + 2 * (g & 1)
            xr0 = X + 16*mt + 4*g
            A(f"v_cvt_pk_bf16_f32 v{YF+d}, v{TM+10}, v{TM+11}")
            A(f"v_cvt_pk_bf16_f32 v{YF+d+1}, v{TM+12}, v{TM+13}")
            A(f"v_cvt_pk_bf16_f32 v{YF+16+d}, v{xr0}, v{xr0+1}")
            A(f"v_cvt_pk_bf16_f32 v{YF+16+d+1}, v{xr0+2}, v{xr0+3}")
    for u in range(4):
        for nt in range(2):
            mf(X+16*nt, Yr(u), vr(CC+16*nt+4*u,4), u == 0)
            mf(X+32+16*nt, Yi(u), vr(CC+16*nt+4*u,4), u == 0)
    for u in range(4):
        for nt in range(2):
            mf(X+16*nt, Yi(u), vr(CN+16*nt+4*u,4))
            mf(X+32+16*nt, Yr(u), vr(CS+16*nt+4*u,4))
    A("s_nop 7")
    for f in range(16):
        if f % 4 == 0: A(f"s_mov_b32 s{sT2}, {TS_TW + 1024*f}")
        A(f"buffer_load_dwordx4 {vr(4*f,4)}, v{vO16}, {sr(sTB,4)}, s{sT2} offen offset:{1024*(f%4)}")
    for f in range(6):
        if f % 4 == 0: A(f"s_mov_b32 s{sT2}, {TS_F32 + 1024*f}")
        A(f"buffer_load_dwordx4 {vr(64+4*f,4)}, v{vO16}, {sr(sTB,4)}, s{sT2} offen offset:{1024*(f%4)}")
    A(f"s_lshr_b32 s{sT}, s{sCOL}, 1")
    A(f"s_and_b32 s{sT2}, s{sCOL}, 1")
    A(f"s_mul_i32 s{sT2}, s{sT2}, 224")
    A(f"s_add_u32 s{sT}, s{sT}, s{sT2}")
    A(f"s_lshl_b32 s{sT}, s{sT}, 12")
    A(f"s_add_u32 s{sT}, s{sT}, {WS_Z}")
    A(f"v_and_b32 v{vG}, 31, v{vL}")
    A(f"v_lshlrev_b32 v{vG}, 6, v{vG}")
    A(f"v_lshrrev_b32 v{vG+1}, 5, v{vL}")
    A(f"v_lshl_add_u32 v{vG}, v{vG+1}, 4, v{vG}")
    for nt in range(2):
        A(f"s_waitcnt vmcnt({14 - 8*nt})")
        for g in range(4):
            for i in range(4):
                tr, ti = X + 16*nt + 4*g + i, X + 32 + 16*nt + 4*g + i
                c, s = 32*nt + 4*g + i, 32*nt + 16 + 4*g + i
                A(f"v_mul_f32 v{TM+10+i}, v{tr}, v{c}")
                A(f"v_mul_f32 v{tr}, v{tr}, v{s}")
                A(f"v_fma_f32 v{TM+10+i}, -v{ti}, v{s}, v{TM+10+i}")
                A(f"v_fma_f32 v{tr}, v{ti}, v{c}, v{tr}")
            d = 8 * nt + 2 * g
            tr0 = X + 16*nt + 4*g
            A(f"v_cvt_pk_bf16_f32 v{YF+d}, v{TM+10}, v{TM+11}")
            A(f"v_cvt_pk_bf16_f32 v{YF+d+1}, v{TM+12}, v{TM+13}")
            A(f"v_cvt_pk_bf16_f32 v{YF+16+d}, v{tr0}, v{tr0+1}")
            A(f"v_cvt_pk_bf16_f32 v{YF+16+d+1}, v{tr0+2}, v{tr0+3}")
    A("s_waitcnt vmcnt(0)")
    for t in range(2):
        for nt in range(2):
            mf(X+16*nt, vr(64+4*t,4), vr(YF+8*nt+4*t,4), t == 0)
            mf(X+32+16*nt, vr(64+4*t,4), vr(YF+16+8*nt+4*t,4), t == 0)
    for t in range(2):
        for nt in range(2):
            mf(X+16*nt, vr(80+4*t,4), vr(YF+16+8*nt+4*t,4))
            mf(X+32+16*nt, vr(72+4*t,4), vr(YF+8*nt+4*t,4))
    for p in range(2):
        if p == 1:
            A(f"s_cmp_eq_u32 s{sCOL}, 0")
            A("s_cbranch_scc1 k2_pf")
            A(f"s_cmp_eq_u32 s{sCOL}, 224")
            A("s_cbranch_scc1 k2_pf")
            A(f"s_add_u32 s{sT}, s{sT}, {112*4096}")
        for nt in range(2):
            z = X + 32*p + 16*nt; P = 8*(2*p+nt)
            for r in range(8): A(f"v_cvt_pk_bf16_f32 v{P+r}, v{z+2*r}, v{z+2*r+1}")
            for t in range(2):
                A(f"v_permlane32_swap_b32 v{P+4*t}, v{P+4*t+2}")
                A(f"v_permlane32_swap_b32 v{P+4*t+1}, v{P+4*t+3}")
            for t in range(2):
                A(f"buffer_store_dwordx4 {vr(P+4*t,4)}, v{vG}, {sr(sWS,4)}, s{sT} offen offset:{2048*nt+32*t}")
    A("k2_pf:")
    A(f"s_load_dwordx2 {sr(sX,2)}, s[0:1], 40")
    A(f"s_mov_b32 s{sX+2}, 401408")
    A(f"s_mov_b32 s{sX+3}, 0x20000")
    A(f"s_getpc_b64 {sr(sTB,2)}")
    A(f"s_add_u32 s{sTB}, s{sTB}, tab_inv@rel32@lo+4")
    A(f"s_addc_u32 s{sTB+1}, s{sTB+1}, tab_inv@rel32@hi+12")
    A(f"s_mov_b32 s{sTB+2}, 200704")
    A(f"v_lshlrev_b32 v1, 7, v{vL}")
    A(f"s_lshl_b32 s{sT}, s{sJ}, 13")
    A(f"v_add_u32 v1, s{sT}, v1")
    A(f"v_add_u32 v2, 0x40000, v1")
    A(f"buffer_load_dword v3, v1, {sr(sTB,4)}, 0 offen")
    A("s_waitcnt lgkmcnt(0)")
    A(f"buffer_load_dword v4, v1, {sr(sX,4)}, 0 offen")
    A(f"buffer_load_dword v5, v2, {sr(sX,4)}, 0 offen")
    A("k2_end:")
    A("s_endpgm")
    body = A.L[loop_start:loop_end]
    rep = check_seq(body + body)
    assert not rep, rep
    return A.L, NV, 64
```

```python
from asmlib import *
from k1 import WS_O, WS_Z, WS_G, WS_BYTES
CH = 20480
K3_LDS = 7 * CH
def gen_k3():
    A = Asm()
    sWS, sWO, sTB, sOUT = 8, 12, 16, 20
    sW, sJ, sMT, sNT, sC, sT, sT2, sB, sZ, sWOo, sF, sO, sLW, sROLE = 24, 25, 26, 27, 28, 29, 30, 31, 32, 33, 34, 35, 36, 37
    ACC = 0
    vL, vZ, vWO, vO16, vG, vRZ, vRW0, vRW1, vRF, vOM = 64, 65, 66, 67, 68, 69, 70, 71, 72, 73
    vT = 74
    OF = 84
    FR = 168
    NV = 248
    A("s_cmp_ge_u32 s2, 224")
    A("s_cbranch_scc1 k3_end")
    A(f"s_load_dwordx2 {sr(sWS,2)}, s[0:1], 72")
    A(f"s_load_dwordx2 {sr(sWO,2)}, s[0:1], 40")
    A(f"s_load_dwordx2 {sr(sOUT,2)}, s[0:1], 56")
    A(f"v_lshrrev_b32 v{vT}, 6, v0")
    A(f"v_and_b32 v{vL}, 63, v0")
    A(f"s_getpc_b64 {sr(sTB,2)}")
    A(f"s_add_u32 s{sTB}, s{sTB}, tab_inv@rel32@lo+4")
    A(f"s_addc_u32 s{sTB+1}, s{sTB+1}, tab_inv@rel32@hi+12")
    A(f"v_readfirstlane_b32 s{sW}, v{vT}")
    A(f"s_mov_b32 s{sTB+2}, 200704")
    A(f"s_mov_b32 s{sTB+3}, 0x20000")
    A(f"s_mov_b32 s{sWS+2}, {WS_BYTES}")
    A(f"s_mov_b32 s{sWS+3}, 0x20000")
    A(f"s_mov_b32 s{sWO+2}, 401408")
    A(f"s_mov_b32 s{sWO+3}, 0x20000")
    A(f"s_mov_b32 s{sOUT+2}, 1835008")
    A(f"s_mov_b32 s{sOUT+3}, 0x20000")
    A(f"s_lshr_b32 s{sJ}, s2, 3")
    A(f"s_and_b32 s{sT}, s{sJ}, 3")
    A(f"s_lshr_b32 s{sNT}, s{sJ}, 2")
    A(f"s_and_b32 s{sMT}, s2, 7")
    A(f"s_lshl_b32 s{sMT}, s{sMT}, 2")
    A(f"s_add_u32 s{sMT}, s{sMT}, s{sT}")
    A(f"s_lshl_b32 s{sT}, s{sT}, 1")
    A(f"s_add_u32 s{sC}, s{sT}, s{sNT}")
    A(f"s_cmp_ge_u32 s{sC}, 7")
    A(f"s_cselect_b32 s{sT}, 7, 0")
    A(f"s_sub_u32 s{sC}, s{sC}, s{sT}")
    A(f"s_and_b32 s{sB}, s{sW}, 1")
    A(f"s_lshl_b32 s{sT}, s{sMT}, 1")
    A(f"s_add_u32 s{sB}, s{sB}, s{sT}")
    A(f"s_lshr_b32 s{sROLE}, s{sW}, 1")
    A(f"s_lshl_b32 s{sT}, s{sC}, 5")
    A(f"s_and_b32 s{sT2}, s{sW}, 1")
    A(f"s_lshl_b32 s{sT2}, s{sT2}, 4")
    A(f"s_add_u32 s{sT}, s{sT}, s{sT2}")
    A(f"s_mul_i32 s{sT2}, s{sROLE}, 224")
    A(f"s_add_u32 s{sT}, s{sT}, s{sT2}")
    A(f"s_lshl_b32 s{sZ}, s{sT}, 12")
    A(f"s_lshl_b32 s{sT}, s{sMT}, 7")
    A(f"s_add_u32 s{sZ}, s{sZ}, s{sT}")
    A(f"s_add_u32 s{sZ}, s{sZ}, {WS_Z}")
    A(f"s_lshl_b32 s{sT}, s{sC}, 2")
    A(f"s_add_u32 s{sT}, s{sT}, s{sW}")
    A(f"s_mul_i32 s{sWOo}, s{sT}, {16*896}")
    A(f"s_lshl_b32 s{sT2}, s{sNT}, 6")
    A(f"s_add_u32 s{sWOo}, s{sWOo}, s{sT2}")
    A(f"s_lshl_b32 s{sF}, s{sT}, 10")
    A(f"s_mul_i32 s{sT2}, s{sNT}, 28672")
    A(f"s_add_u32 s{sF}, s{sF}, s{sT2}")
    A(f"s_lshl_b32 s{sT}, s{sC}, 2")
    A(f"s_add_u32 s{sT}, s{sT}, s{sROLE}")
    A(f"s_lshl_b32 s{sO}, s{sT}, 10")
    A(f"s_mul_i32 s{sT2}, s{sB}, 28672")
    A(f"s_add_u32 s{sO}, s{sO}, s{sT2}")
    A(f"s_add_u32 s{sO}, s{sO}, {WS_O}")
    A(f"s_lshl_b32 s{sLW}, s{sW}, 11")
    A(f"v_lshrrev_b32 v{vT}, 3, v{vL}")
    A(f"v_and_b32 v{vT+1}, 7, v{vL}")
    A(f"v_bfe_u32 v{vT+2}, v{vL}, 4, 1")
    A(f"v_lshlrev_b32 v{vT+2}, 2, v{vT+2}")
    A(f"v_xor_b32 v{vT+1}, v{vT+1}, v{vT+2}")
    A(f"v_lshlrev_b32 v{vZ}, 12, v{vT}")
    A(f"v_lshl_add_u32 v{vZ}, v{vT+1}, 4, v{vZ}")
    A(f"v_mul_u32_u24 v{vWO}, 896, v{vT}")
    A(f"v_lshrrev_b32 v{vT+2}, 2, v{vT+1}")
    A(f"v_mul_u32_u24 v{vT+2}, 448, v{vT+2}")
    A(f"v_and_b32 v{vT+1}, 3, v{vT+1}")
    A(f"v_lshl_add_u32 v{vT+2}, v{vT+1}, 4, v{vT+2}")
    A(f"v_add_u32 v{vWO}, v{vWO}, v{vT+2}")
    A(f"v_lshlrev_b32 v{vO16}, 4, v{vL}")
    A(f"s_cmp_eq_u32 s{sROLE}, 0")
    A(f"s_cselect_b32 s{sT}, 0x40000000, 0")
    A(f"v_add_u32 v{vOM}, s{sT}, v{vO16}")
    A(f"v_and_b32 v{vT+3}, 31, v{vL}")
    A(f"v_lshlrev_b32 v{vT+4}, 2, v{vT+3}")
    A(f"s_lshl_b32 s{sT}, s{sB}, 7")
    A(f"s_add_u32 s{sT}, s{sT}, {WS_G}")
    A("s_waitcnt lgkmcnt(0)")
    A(f"buffer_load_dword v{vG}, v{vT+4}, {sr(sWS,4)}, s{sT} offen")
    for i in range(7):
        A(f"s_add_u32 m0, s{sLW}, {CH*i}")
        A(f"s_add_u32 s{sT}, s{sZ}, {8*4096-1024}")
        A(f"buffer_load_dwordx4 v{vZ}, {sr(sWS,4)}, s{sZ} offen lds")
        A(f"buffer_load_dwordx4 v{vZ}, {sr(sWS,4)}, s{sT} offen offset:1024 lds")
        A(f"s_add_u32 m0, s{sLW}, {CH*i+8192}")
        A(f"s_add_u32 s{sT}, s{sWOo}, {8*896-1024}")
        A(f"buffer_load_dwordx4 v{vWO}, {sr(sWO,4)}, s{sWOo} offen lds")
        A(f"buffer_load_dwordx4 v{vWO}, {sr(sWO,4)}, s{sT} offen offset:1024 lds")
        A(f"s_lshr_b32 s{sT}, s{sLW}, 1")
        A(f"s_add_u32 m0, s{sT}, {CH*i+16384}")
        A("s_nop 0")
        A(f"buffer_load_dwordx4 v{vO16}, {sr(sTB,4)}, s{sF} offen lds")
        A(f"buffer_load_dwordx4 {vr(OF+12*i,4)}, v{vO16}, {sr(sWS,4)}, s{sO} offen")
        A(f"buffer_load_dwordx4 {vr(OF+12*i+4,4)}, v{vOM}, {sr(sWS,4)}, s{sO} offen offset:1024")
        A(f"buffer_load_dwordx4 {vr(OF+12*i+8,4)}, v{vOM}, {sr(sWS,4)}, s{sO} offen offset:2048")
        if i < 6:
            A(f"s_add_u32 s{sC}, s{sC}, 1")
            A(f"s_cmp_eq_u32 s{sC}, 7")
            A(f"s_cselect_b32 s{sC}, 0, s{sC}")
            A(f"s_cselect_b32 s{sT}, -6, 1")
            A(f"s_lshl_b32 s{sT2}, s{sT}, 17")
            A(f"s_add_u32 s{sZ}, s{sZ}, s{sT2}")
            A(f"s_mul_i32 s{sT2}, s{sT}, {64*896}")
            A(f"s_add_u32 s{sWOo}, s{sWOo}, s{sT2}")
            A(f"s_lshl_b32 s{sT2}, s{sT}, 12")
            A(f"s_add_u32 s{sF}, s{sF}, s{sT2}")
            A(f"s_add_u32 s{sO}, s{sO}, s{sT2}")
    A(f"v_lshrrev_b32 v{vT}, 5, v{vL}")
    A(f"v_bfe_u32 v{vT+1}, v{vL}, 2, 2")
    A(f"v_lshl_add_u32 v{vT}, v{vT}, 3, v{vT+1}")
    A(f"v_lshlrev_b32 v{vT}, 7, v{vT}")
    A(f"v_bfe_u32 v{vT+2}, v{vL}, 4, 1")
    A(f"v_lshl_add_u32 v{vT}, v{vT+2}, 5, v{vT}")
    A(f"v_and_b32 v{vT+2}, 3, v{vL}")
    A(f"v_lshl_add_u32 v{vT}, v{vT+2}, 3, v{vT}")
    A(f"v_lshrrev_b32 v{vT+1}, 1, v{vT+1}")
    A(f"v_lshl_add_u32 v{vRW0}, v{vT+1}, 6, v{vT}")
    A(f"v_xor_b32 v{vRW1}, 64, v{vRW0}")
    A(f"s_and_b32 s{sT}, s{sW}, 1")
    A(f"s_lshl_b32 s{sT}, s{sT}, 6")
    A(f"v_xor_b32 v{vRZ}, s{sT}, v{vRW0}")
    A(f"v_mov_b32 v{vRF}, v{vO16}")
    A(f"v_mul_u32_u24 v{vT+5}, 57344, v{vT+3}")
    A(f"v_lshrrev_b32 v{vT+2}, 5, v{vL}")
    A(f"v_lshl_add_u32 v{vT+5}, v{vT+2}, 4, v{vT+5}")
    A(f"s_mul_i32 s{sZ}, s{sB}, 896")
    A(f"s_mul_i32 s{sT}, s{sROLE}, 448")
    A(f"s_add_u32 s{sZ}, s{sZ}, s{sT}")
    A(f"s_lshl_b32 s{sT}, s{sNT}, 6")
    A(f"s_add_u32 s{sZ}, s{sZ}, s{sT}")
    mf = lambda d, a, b, first=False: A(f"v_mfma_f32_32x32x16_bf16 {vr(d,16)}, {a}, {b}, {'0' if first else vr(d,16)}")
    def advance(i, regs):
        if i in (3, 6):
            for r in regs: A(f"v_add_u32 v{r}, {hex(3*CH)}, v{r}")
    def trd(dst, addr, off):
        A(f"ds_read_b64_tr_b16 {vr(dst,2)}, v{addr} offset:{off}")
        A(f"ds_read_b64_tr_b16 {vr(dst+2,2)}, v{addr} offset:{off+512}")
    A(f"s_cmp_lg_u32 s{sROLE}, 0")
    A("s_cbranch_scc1 k3_role1")
    def m0(i):
        f = FR + 40 * (i & 1)
        for s in range(4): mf(ACC + 16 * (s >> 1), vr(f+16+4*s,4), vr(f+4*s,4), i == 0 and (s & 1) == 0)
        for n in range(2): mf(ACC + 32 + 16 * n, vr(f+32+4*n,4), vr(OF+12*i,4), i == 0)
    for i in range(7):
        advance(i, (vRZ, vRW0, vRW1, vRF))
        base = CH * (i % 3)
        f = FR + 40 * (i & 1)
        A(f"s_waitcnt vmcnt({8*(6-i)})")
        A("s_barrier")
        for s in range(4): trd(f + 4*s, vRZ, base + 2048*s)
        for s in range(4): A(f"ds_read_b128 {vr(f+16+4*s,4)}, v{vRF} offset:{base+16384+1024*s}")
        trd(f + 32, vRW0, base + 8192); trd(f + 36, vRW1, base + 8192)
        if i > 0: m0(i - 1)
        A("s_waitcnt lgkmcnt(0)")
    m0(6)
    A(f"v_sub_f32 v{vT}, 1.0, v{vG}")
    A("s_nop 7")
    for r in range(16):
        A(f"v_add_f32 v{FR+r}, v{ACC+r}, v{ACC+16+r}")
        A(f"v_sub_f32 v{ACC+16+r}, v{ACC+r}, v{ACC+16+r}")
    for r in range(16):
        A(f"v_mul_f32 v{ACC+48+r}, v{vT}, v{ACC+48+r}")
        A(f"v_fma_f32 v{ACC+48+r}, v{vG}, v{ACC+16+r}, v{ACC+48+r}")
    A("s_barrier")
    A(f"s_lshl_b32 s{sT}, s{sW}, 12")
    A(f"v_add_u32 v{vT+1}, s{sT}, v{vO16}")
    for g in range(4): A(f"ds_write_b128 v{vT+1}, {vr(ACC+48+4*g,4)} offset:{1024*g}")
    for r in range(16):
        A(f"v_mul_f32 v{ACC+32+r}, v{vT}, v{ACC+32+r}")
        A(f"v_fma_f32 v{ACC+r}, v{vG}, v{FR+r}, v{ACC+32+r}")
    A("s_branch k3_fin")
    A("k3_role1:")
    def m1(i):
        f = FR + 40 * (i & 1)
        for s in range(3):
            for n in range(2): mf(ACC + 32 + 16 * n, vr(f+8*s+4*n,4), vr(OF+12*i+4*s,4), i == 0 and s == 0)
    for i in range(7):
        advance(i, (vRW0, vRW1))
        base = CH * (i % 3)
        f = FR + 40 * (i & 1)
        A(f"s_waitcnt vmcnt({8*(6-i)})")
        A("s_barrier")
        for s in range(3):
            trd(f + 8*s, vRW0, base + 8192 + 2048*(s+1)); trd(f + 8*s + 4, vRW1, base + 8192 + 2048*(s+1))
        if i > 0: m1(i - 1)
        A("s_waitcnt lgkmcnt(0)")
    m1(6)
    A(f"v_sub_f32 v{vT}, 1.0, v{vG}")
    A("s_nop 7")
    for r in range(16): A(f"v_mul_f32 v{ACC+32+r}, v{vT}, v{ACC+32+r}")
    A("s_barrier")
    A(f"s_lshl_b32 s{sT}, s{sW}, 12")
    A(f"v_add_u32 v{vT+1}, s{sT}, v{vO16}")
    for g in range(4): A(f"ds_write_b128 v{vT+1}, {vr(ACC+32+4*g,4)} offset:{1024*g}")
    for r in range(16): A(f"v_mul_f32 v{ACC+r}, v{vT}, v{ACC+48+r}")
    A("k3_fin:")
    A(f"v_xor_b32 v{vT+1}, 8192, v{vT+1}")
    A("s_waitcnt lgkmcnt(0)")
    A("s_barrier")
    for g in range(4): A(f"ds_read_b128 {vr(ACC+16+4*g,4)}, v{vT+1} offset:{1024*g}")
    A("s_waitcnt lgkmcnt(0)")
    for r in range(16): A(f"v_add_f32 v{ACC+r}, v{ACC+r}, v{ACC+16+r}")
    for r in range(8): A(f"v_cvt_pk_bf16_f32 v{ACC+32+r}, v{ACC+2*r}, v{ACC+2*r+1}")
    for t in range(2):
        A(f"v_permlane32_swap_b32 v{ACC+32+4*t}, v{ACC+32+4*t+2}")
        A(f"v_permlane32_swap_b32 v{ACC+32+4*t+1}, v{ACC+32+4*t+3}")
    for t in range(2):
        A(f"buffer_store_dwordx4 {vr(ACC+32+4*t,4)}, v{vT+5}, {sr(sOUT,4)}, s{sZ} offen offset:{32*t}")
    A("k3_end:")
    A("s_endpgm")
    return A.L, NV, 64
```

```python
import sys, numpy as np
from asmlib import *
from k1 import gen_k1
from k2 import gen_k2, K2_LDS, TS_BYTES
from k3 import gen_k3, K3_LDS
NAME = "gated_mix__spectral_gfnet__softmax_full_mha__prompt"
def bf16(x):
    u = np.asarray(x, dtype=np.float32).view(np.uint32).astype(np.uint64)
    return ((u + 0x7fff + ((u >> 16) & 1)) >> 16).astype(np.uint16)
def perm(u, h, j): return 16 * u + 8 * (j >> 2) + 4 * h + (j & 3)
def cs(num, den):
    num = num % den
    a = 2 * np.pi * num / den
    c, s = np.cos(a), np.sin(a)
    c = np.where(np.abs(c) < 1e-12, 0.0, c); s = np.where(np.abs(s) < 1e-12, 0.0, s)
    return c, s
def small_tables():
    l = np.arange(64); m = l & 31; h = l >> 5
    out = []
    F = np.zeros((3, 2, 4, 64, 8))
    for mt in range(2):
        for u in range(4):
            for j in range(8):
                c, s = cs((32 * mt + m) * perm(u, h, j), 64)
                F[0, mt, u, :, j] = c; F[1, mt, u, :, j] = s; F[2, mt, u, :, j] = -s
    out.append(bf16(F).tobytes())
    G = np.zeros((3, 2, 64, 8))
    for t in range(2):
        for j in range(8):
            c, s = cs(m * perm(t, h, j), 32)
            G[0, t, :, j] = c; G[1, t, :, j] = s; G[2, t, :, j] = -s
    out.append(bf16(G).tobytes())
    T = np.zeros((2, 2, 4, 64, 4), np.float32)
    for nt in range(2):
        for g in range(4):
            for i in range(4):
                c, s = cs((32 * nt + m) * (8 * g + 4 * h + i), 2048)
                T[nt, 0, g, :, i] = c; T[nt, 1, g, :, i] = s
    out.append(T.tobytes())
    b = b"".join(out)
    assert len(b) == TS_BYTES
    q = np.frombuffer(b, dtype=np.uint64)
    return [".quad " + ",".join(hex(int(v)) for v in q[i:i+8]) for i in range(0, len(q), 8)]
def big_tables():
    L = []
    c448, _ = cs(np.arange(448), 448)
    for i, v in enumerate(bf16(c448)): L.append(f".set C{i},{int(v)}")
    SD = 2048 * 448
    for i, v in enumerate(bf16(2 * c448 / SD)): L.append(f".set D{i},{int(v)}")
    L.append(f".set D448,{int(bf16([1/SD])[0])}"); L.append(f".set D449,{int(bf16([-1/SD])[0])}")
    for kr in range(448):
        if kr <= 112: k2, ph = 2 * kr, 0
        elif kr < 224: k2, ph = 2 * (kr - 112), 112
        elif kr < 336: k2, ph = 2 * (kr - 224) + 1, 0
        else: k2, ph = 2 * (kr - 336) + 1, 112
        md, ad = 448, 0
        if kr == 0: ad = 448
        if kr == 112: k2, md, ad = 1, 2, 448
        L.append(f".set KA{kr},{k2}\n.set KB{kr},{ph}\n.set KC{kr},{md}\n.set KD{kr},{ad}")
    L.append(r""".altmacro
.macro FW4 a,b,c,d
.short C\a,C\b,C\c,C\d
.endm
.macro LK i
.short D\i
.endm
.macro IV1 d,r
LK %((KA\r*\d+KB\r)%KC\r+KD\r)
.endm
.p2align 8
tab_fwd:
.set td,0
.rept 448
.set tg,0
.rept 14
.set tk,(tg>>1)*32
.set tp,(tg&1)*112
.rept 8
FW4 %((tk*td+tp)%448),%(((tk+1)*td+tp)%448),%(((tk+2)*td+tp)%448),%(((tk+3)*td+tp)%448)
.set tk,tk+4
.endr
.set tg,tg+1
.endr
FW4 %((224*td)%448),112,112,112
.fill 60,2,0
.set td,td+1
.endr
.p2align 8
tab_inv:
.set tn,0
.rept 7
.set tc,0
.rept 28
.set tr,(tc>>2)*32+(tc&1)*16+((tc>>1)&1)*224
.set tl,0
.rept 64
.set tj,0
.rept 8
IV1 %(tn*32+(tl&31)),%(tr+(tl>>5)*8+tj)
.set tj,tj+1
.endr
.set tl,tl+1
.endr
.set tc,tc+1
.endr
.set tn,tn+1
.endr
.noaltmacro""")
    return L
def desc(name, nv, ns):
    return f""".p2align 6
.amdhsa_kernel {name}
  .amdhsa_next_free_vgpr {nv}
  .amdhsa_next_free_sgpr {ns}
  .amdhsa_accum_offset {(nv+3)//4*4}
  .amdhsa_group_segment_fixed_size 0
  .amdhsa_kernarg_size 80
  .amdhsa_user_sgpr_count 2
  .amdhsa_user_sgpr_kernarg_segment_ptr 1
  .amdhsa_system_sgpr_workgroup_id_x 1
.end_amdhsa_kernel"""
def main(path, which=(1, 2, 3)):
    ks = [("k1_kernel", gen_k1, 256, 256, 163840), ("k2_kernel", gen_k2, 256, 320, K2_LDS), ("k3_kernel", gen_k3, 224, 256, K3_LDS)]
    o = ["; gated mix of a GFNet spectral filter and 16-head softmax attention (3 launches; generated by gen/gen.py)"]
    for i, (n, g, grid, blk, lds) in enumerate(ks):
        if i + 1 in which: o.append(f"; @launch kernel={n} grid=({grid},1,1) block=({blk},1,1) lds={lds}")
    o.append('.amdgcn_target "amdgcn-amd-amdhsa--gfx950"')
    o.append(".text")
    ds = []
    for n, g, grid, blk, lds in ks:
        L, nv, ns = g()
        rep = []
        L = fix_hazards(L, rep)
        print(n, "lines", len(L), "nops inserted", len(rep), file=sys.stderr)
        if "-v" in sys.argv:
            for r in rep: print("   ", r, file=sys.stderr)
        o += [f".globl {n}", ".p2align 8", f".type {n},@function", f"{n}:"] + L
        ds.append(desc(n, nv, ns))
    o.append(".fill 2048,4,0xbf810000")
    o.append('.section .rodata,"a"')
    o += ds
    o.append(".p2align 8"); o.append("tab_small:"); o += small_tables()
    o.append(".fill 2048,1,0")
    o += big_tables()
    open(path, "w").write("\n".join(o) + "\n")
if __name__ == "__main__":
    main(sys.argv[1] if len(sys.argv) > 1 and not sys.argv[1].startswith("-") else f"cdna_kernels/{NAME}.s")
```

```python
import re

TRANS = ("v_exp_f32", "v_log_f32", "v_rcp_f32", "v_rsq_f32", "v_sqrt_f32", "v_sin_f32", "v_cos_f32")

def regs_of(tok):
    tok = tok.strip()
    tok = re.sub(r"^-", "", tok)
    m = re.match(r"^abs\((.*)\)$", tok) or re.match(r"^\|(.*)\|$", tok)
    if m: tok = m.group(1)
    m = re.match(r"^([vsa])\[(\d+):(\d+)\]$", tok)
    if m: return {(m.group(1), i) for i in range(int(m.group(2)), int(m.group(3)) + 1)}
    m = re.match(r"^([vsa])(\d+)$", tok)
    if m: return {(m.group(1), int(m.group(2)))}
    if tok in ("vcc", "vcc_lo", "vcc_hi"): return {("vcc", 0)}
    if tok in ("exec", "exec_lo", "exec_hi"): return {("exec", 0)}
    if tok == "m0": return {("m0", 0)}
    return set()

class I:
    def __init__(self, text):
        self.text = text
        t = text.split(";")[0].strip()
        self.label = t.endswith(":")
        self.directive = t.startswith(".")
        self.mn = "" if (self.label or self.directive or not t) else t.split()[0]
        rest = t[len(self.mn):].strip() if self.mn else ""
        ops = []
        depth = 0; cur = ""
        for ch in rest:
            if ch == "[": depth += 1
            if ch == "]": depth -= 1
            if ch == "," and depth == 0: ops.append(cur.strip()); cur = ""
            else: cur += ch
        if cur.strip(): ops.append(cur.strip())
        if ops:
            parts = ops[-1].split()
            ops[-1] = parts[0]; self.mods = parts[1:]
        else: self.mods = []
        self.ops = ops
        mn = self.mn
        self.is_mfma = mn.startswith("v_mfma") or mn.startswith("v_smfmac")
        self.is_smf = mn.startswith("v_smfmac")
        self.is_valu = mn.startswith("v_") and not self.is_mfma
        self.is_trans = any(mn.startswith(x) for x in TRANS)
        self.is_vmem = mn.startswith(("buffer_", "global_", "flat_"))
        self.is_ds = mn.startswith("ds_")
        self.is_salu = mn.startswith("s_")
        self.is_perml = mn.startswith("v_permlane")
        self.is_rdl = mn.startswith(("v_readfirstlane", "v_readlane"))
        self.is_lds_dma = self.is_vmem and ("lds" in self.mods or "_lds_" in mn)
        self.is_store = self.is_vmem and "store" in mn
        R = [regs_of(o) for o in ops]
        self.defs = set(); self.uses = set(); self.srcC = set(); self.srcAB = set(); self.sdata = set()
        if self.is_mfma:
            self.defs = R[0]; self.srcAB = R[1] | R[2]
            if self.is_smf: self.srcC = set(R[0]); self.srcAB |= R[3]
            else: self.srcC = R[3]
            self.uses = self.srcAB | self.srcC
            self.passes = 8 if "32x32" in mn else 4
        elif self.is_valu:
            if mn.startswith("v_cmp"):
                self.defs = R[0]; self.uses = set().union(*R[1:])
            elif self.is_perml:
                self.defs = R[0] | R[1]; self.uses = R[0] | R[1]
            else:
                self.defs = R[0]; self.uses = set().union(*R[1:]) if len(R) > 1 else set()
                if mn.startswith(("v_fmac", "v_mac", "v_dot2c")) or "UNUSED_PRESERVE" in text: self.uses |= R[0]
                if mn.startswith(("v_add_co", "v_sub_co", "v_addc_co")): self.defs |= R[1]
                if mn.startswith("v_cndmask") and len(ops) == 3: self.uses |= {("vcc", 0)}
        elif self.is_vmem:
            if self.is_lds_dma:
                self.uses = set().union(*R) | {("m0", 0)}
            elif self.is_store:
                self.uses = set().union(*R)
                self.sdata = R[0] if mn.startswith("buffer_") else R[1]
            else:
                self.defs = R[0]; self.uses = set().union(*R[1:])
        elif self.is_ds:
            if mn.startswith(("ds_read", "ds_bpermute", "ds_permute", "ds_swizzle")) or "_rtn" in mn:
                self.defs = R[0]; self.uses = set().union(*R[1:])
            else:
                self.uses = set().union(*R)
        elif self.is_salu:
            if mn.startswith(("s_cmp", "s_waitcnt", "s_nop", "s_barrier", "s_branch", "s_cbranch", "s_endpgm", "s_setprio", "s_sleep")):
                self.uses = set().union(*R) if R else set()
            else:
                self.defs = R[0] if R else set(); self.uses = set().union(*R[1:]) if len(R) > 1 else set()
                if "saveexec" in mn: self.defs |= {("exec", 0)}
    def states(self):
        if self.label or self.directive or not self.mn: return 0
        if self.mn == "s_nop": return int(self.ops[0], 0) + 1
        return 1

def need(p, c):
    n = 0
    vp = {r for r in p.defs if r[0] in "va"}
    sp = {r for r in p.defs if r[0] in ("s", "vcc")}
    if p.is_valu:
        if c.is_mfma and vp & c.uses: n = max(n, 2)
        if c.is_perml and vp & c.uses: n = max(n, 2)
        if c.is_rdl and vp & c.uses: n = max(n, 1)
        if p.is_trans and c.is_valu and not c.is_trans and vp & c.uses: n = max(n, 1)
        if p.is_trans and (c.is_vmem or c.is_ds) and vp & c.uses: n = max(n, 1)
        if "dpp" in c.text and vp & c.uses: n = max(n, 2)
        if "sdwa" in p.text and c.is_valu and vp & (c.uses | c.defs): n = max(n, 1)
        if sp & c.uses:
            if c.is_vmem: n = max(n, 5)
            elif c.is_valu: n = max(n, 2)
            elif c.is_salu: n = max(n, 2)
        if ("exec", 0) in p.defs and c.is_mfma: n = max(n, 4)
    if p.is_mfma:
        big = {8: 12, 4: 8}[p.passes]
        if c.is_mfma:
            if vp & c.srcAB: n = max(n, big)
            if vp & c.srcC and not (c.srcC == vp and c.passes == p.passes): n = max(n, {8: 10, 4: 6}[p.passes])
            if vp & c.defs and not (c.srcC == vp) : n = max(n, 0)
        elif c.is_valu or c.is_vmem or c.is_ds:
            if vp & (c.uses | c.defs): n = max(n, big)
        if c.is_valu and (p.srcC & c.defs): n = max(n, {8: 7, 4: 3}[p.passes])
    if p.is_store and len(p.sdata) >= 3 and (p.sdata & c.defs):
        n = max(n, 2 if c.is_valu else 1)
    if p.is_salu and ("m0", 0) in p.defs and c.is_lds_dma: n = max(n, 1)
    if p.is_salu and ("exec", 0) in p.defs and (c.is_perml or "dpp" in c.text): n = max(n, 1)
    return n

WINDOW = 20
def fix_hazards(lines, report=None):
    out = []
    for t in lines:
        c = I(t)
        if c.mn:
            dist = 0; req = 0
            for p in reversed(out):
                if dist > WINDOW: break
                if p.mn:
                    n = need(p, c)
                    if n > dist: req = max(req, n - dist)
                dist += p.states()
            while req > 0:
                k = min(req, 16)
                out.append(I(f"    s_nop {k-1}"))
                if report is not None: report.append((k, t.strip()))
                req -= k
        out.append(c)
    return [o.text for o in out]

def check_seq(lines):
    rep = []
    fix_hazards(lines, rep)
    return rep

class Asm:
    def __init__(self): self.L = []
    def __call__(self, s):
        for l in s.split("\n"):
            if l.strip(): self.L.append("    " + l.strip() if not l.strip().endswith(":") else l.strip())
    def label(self, n): self.L.append(n + ":")
    def mark(self): return len(self.L)
def vr(a, n=1): return f"v{a}" if n == 1 else f"v[{a}:{a+n-1}]"
def sr(a, n=1): return f"s{a}" if n == 1 else f"s[{a}:{a+n-1}]"

import os
DIAG = bool(os.environ.get("DIAG"))
WS_DBG = 0xF00000
class Stamps:
    def __init__(self, A, kidx): self.A = A; self.k = kidx; self.n = 0
    def begin(self):
        if DIAG:
            self.A("s_memrealtime s[64:65]"); self.A("s_memtime s[66:67]")
    def at(self, i):
        if DIAG: self.A(f"s_memtime s[{70+2*i}:{71+2*i}]")
    def dump(self, srd, swave, nwaves, vtmp):
        if not DIAG: return
        A = self.A
        A("s_waitcnt vmcnt(0)")
        A("s_memrealtime s[68:69]"); A("s_memtime s[98:99]")
        A(f"s_mul_i32 s100, s2, {nwaves}")
        A(f"s_add_u32 s100, s100, s{swave}")
        A("s_lshl_b32 s100, s100, 7")
        A(f"s_add_u32 s100, s100, {WS_DBG + self.k * 0x40000}")
        A("s_waitcnt lgkmcnt(0)")
        A(f"v_mov_b32 v{vtmp}, 0")
        A("s_mov_b64 exec, 1")
        for j, r in enumerate([64, 68, 66, 98] + [70 + 2 * i for i in range(14)]):
            A(f"v_mov_b32 v{vtmp+1}, s{r}")
            A(f"buffer_store_dword v{vtmp+1}, v{vtmp}, s[{srd}:{srd+3}], s100 offen offset:{4*j}")
        A("s_getreg_b32 s101, hwreg(HW_REG_HW_ID)")
        A(f"v_mov_b32 v{vtmp+1}, s101")
        A(f"buffer_store_dword v{vtmp+1}, v{vtmp}, s[{srd}:{srd+3}], s100 offen offset:{4*18}")
        A("s_getreg_b32 s101, hwreg(HW_REG_XCC_ID)")
        A(f"v_mov_b32 v{vtmp+1}, s101")
        A(f"buffer_store_dword v{vtmp+1}, v{vtmp}, s[{srd}:{srd+3}], s100 offen offset:{4*19}")
```

```python
from asmlib import *
import math, os
WS_Q, WS_K, WS_V, WS_Y, WS_W, WS_O, WS_Z, WS_G = 0x0, 0x200000, 0x400000, 0x600000, 0x800000, 0xA00000, 0xC00000, 0xE00000
WS_BYTES = 0x1000000
import struct
def f2u(x): return struct.unpack("<I", struct.pack("<f", x))[0]
QSCALE = f2u(28 ** -0.5 * math.log2(math.e))

def gen_k1():
    A = Asm()
    sX, sB, sWS, sWR, sWI = 8, 12, 16, 20, 24
    sPC = 28
    sW, sMT, sNT, sC, sCA, sCB, sPITCH, sP4, sT, sT2, sBB = 30, 31, 32, 33, 34, 35, 36, 37, 38, 39, 40
    sGS, sLA, sLB, sP64, sP384, sJ = 41, 42, 43, 44, 45, 46
    sW0 = 48
    sWST = 52
    sM = 54
    ACC = 0
    vL, vA0, vA1, vB = 64, 65, 66, 67
    vRA, vRB = 68, 72
    FA, FB = 76, 84
    MC, MS, MN = 116, 124, 132
    WL = 140
    vT = 156
    vWO = 172
    vST = 173
    PK = 176
    NV = 208

    A("s_cmp_ge_u32 s2, 256")
    A("s_cbranch_scc1 k1_end")
    ST = Stamps(A, 0); ST.begin()
    A(f"s_load_dwordx2 {sr(sX,2)}, s[0:1], 0")
    A(f"s_load_dwordx2 {sr(sB,2)}, s[0:1], 32")
    A(f"s_load_dwordx2 {sr(sWS,2)}, s[0:1], 72")
    A(f"s_load_dwordx2 {sr(sWR,2)}, s[0:1], 8")
    A(f"s_load_dwordx2 {sr(sWI,2)}, s[0:1], 16")
    A(f"s_getpc_b64 {sr(sPC,2)}")
    A("k1_pc:")
    A(f"v_and_b32 v{vL}, 63, v0")
    A(f"v_lshrrev_b32 v{vT}, 6, v0")
    A(f"v_mul_u32_u24 v{vT+1}, 24, v{vT}")
    A(f"v_add_lshl_u32 v{vT+1}, v{vT+1}, v{vL}, 7")
    A("s_mov_b64 exec, 0xffffff")
    A(f"global_load_dword v{vT+2}, v{vT+1}, {sr(sPC,2)}")
    A("s_mov_b64 exec, -1")
    A(f"v_readfirstlane_b32 s{sW}, v{vT}")
    A(f"s_lshr_b32 s{sJ}, s2, 3")
    A(f"s_and_b32 s{sT}, s{sJ}, 3")
    A(f"s_lshr_b32 s{sT2}, s{sJ}, 2")
    A(f"s_bfe_u32 s{sMT}, s2, 0x20001")
    A(f"s_lshl_b32 s{sMT}, s{sMT}, 2")
    A(f"s_add_u32 s{sMT}, s{sMT}, s{sT}")
    A(f"s_and_b32 s{sNT}, s2, 1")
    A(f"s_lshl_b32 s{sNT}, s{sNT}, 3")
    A(f"s_add_u32 s{sNT}, s{sNT}, s{sT2}")
    A(f"s_lshl_b32 s{sT}, s{sT}, 1")
    A(f"s_add_u32 s{sC}, s{sT}, s{sT2}")
    A(f"s_cmp_ge_u32 s{sC}, 7")
    A(f"s_cselect_b32 s{sT}, 7, 0")
    A(f"s_sub_u32 s{sC}, s{sC}, s{sT}")
    A(f"s_lshl_b32 s{sBB}, s{sMT}, 2")
    A(f"s_add_u32 s{sBB}, s{sBB}, s{sW}")
    A(f"s_movk_i32 s{sPITCH}, 1024")
    A(f"s_cmp_ge_u32 s{sNT}, 12")
    A(f"s_cselect_b32 s{sPITCH}, s{sPITCH}, 2688")
    A(f"s_cselect_b32 s{sGS}, 64, 56")
    A(f"s_mul_i32 s{sT}, s{sNT}, 224")
    A(f"s_lshl_b32 s{sT2}, s{sNT}, 8")
    A(f"s_sub_u32 s{sT2}, s{sT2}, 3072")
    A(f"s_cmp_ge_u32 s{sNT}, 12")
    A(f"s_cselect_b32 s{sCB}, s{sT2}, s{sT}")
    A(f"s_lshl_b32 s{sP4}, s{sPITCH}, 2")
    A(f"s_sub_u32 s{sP4}, s{sP4}, 1024")
    A(f"s_lshl_b32 s{sP64}, s{sPITCH}, 6")
    A(f"s_mul_i32 s{sP384}, s{sP64}, 7")
    A(f"s_lshl_b32 s{sT}, s{sC}, 2")
    A(f"s_add_u32 s{sT}, s{sT}, s{sW}")
    A(f"s_lshl_b32 s{sT}, s{sT}, 4")
    A(f"s_mul_i32 s{sT}, s{sT}, s{sPITCH}")
    A(f"s_add_u32 s{sCB}, s{sCB}, s{sT}")
    A(f"s_mul_i32 s{sCA}, s{sBB}, 896")
    A(f"s_lshl_b32 s{sT}, s{sC}, 7")
    A(f"s_add_u32 s{sCA}, s{sCA}, s{sT}")
    A(f"s_lshl_b32 s{sLA}, s{sW}, 12")
    A(f"s_add_u32 s{sLB}, s{sLA}, 16384")
    A(f"v_lshrrev_b32 v{vT}, 3, v{vL}")
    A(f"v_mul_u32_u24 v{vA0}, 57344, v{vT}")
    A(f"v_lshrrev_b32 v{vT+1}, 4, v{vL}")
    A(f"v_and_b32 v{vT+3}, 7, v{vL}")
    A(f"v_xor_b32 v{vT+3}, v{vT+3}, v{vT+1}")
    A(f"v_lshl_add_u32 v{vA0}, v{vT+3}, 4, v{vA0}")
    A(f"v_xor_b32 v{vA1}, 64, v{vA0}")
    A(f"v_mul_u32_u24 v{vB}, s{sPITCH}, v{vT+1}")
    A(f"v_bfe_u32 v{vT+3}, v{vL}, 2, 2")
    A(f"v_xor_b32 v{vT+3}, v{vT+3}, v{vT+1}")
    A(f"v_lshl_add_u32 v{vB}, v{vT+3}, 6, v{vB}")
    A(f"v_and_b32 v{vT+3}, 3, v{vL}")
    A(f"v_lshl_add_u32 v{vB}, v{vT+3}, 4, v{vB}")
    A(f"s_getpc_b64 {sr(56,2)}")
    A("s_add_u32 s56, s56, tab_fwd@rel32@lo+4")
    A("s_addc_u32 s57, s57, tab_fwd@rel32@hi+12")
    A(f"s_mov_b32 s{sX+2}, 1835008")
    A(f"s_mov_b32 s{sX+3}, 0x20000")
    A(f"s_mov_b32 s{sB+2}, 458752")
    A(f"s_mov_b32 s{sB+3}, 0x20000")
    A("s_waitcnt lgkmcnt(0)")
    A(f"s_cmp_ge_u32 s{sNT}, 12")
    A(f"s_cselect_b32 s{sB}, s56, s{sB}")
    A(f"s_cselect_b32 s{sB+1}, s57, s{sB+1}")
    A(f"s_cselect_b32 s{sB+2}, s{sB+2}, 1204224")

    def issue_chunk(slot):
        A(f"s_add_u32 m0, s{sLA}, {32768*slot}")
        for i in range(4):
            if i == 0: so = sCA
            else:
                A(f"s_add_u32 s{sT}, s{sCA}, {i*457728}"); so = sT
            if os.environ.get("X1") != "noA": A(f"buffer_load_dwordx4 v{vA0 if i%2==0 else vA1}, {sr(sX,4)}, s{so} offen offset:{1024*i} lds")
        A(f"s_add_u32 m0, s{sLB}, {32768*slot}")
        for i in range(4):
            if i == 0: so = sCB
            elif i == 1: A(f"s_add_u32 s{sT}, s{sCB}, s{sP4}"); so = sT
            else: A(f"s_add_u32 s{sT}, s{sT}, s{sP4}"); so = sT
            if os.environ.get("X1") != "noB": A(f"buffer_load_dwordx4 v{vB}, {sr(sB,4)}, s{so} offen offset:{1024*i} lds")
        A(f"s_add_u32 s{sCA}, s{sCA}, 128")
        A(f"s_add_u32 s{sCB}, s{sCB}, s{sP64}")
        A(f"s_add_u32 s{sC}, s{sC}, 1")
        A(f"s_cmp_eq_u32 s{sC}, 7")
        A(f"s_cselect_b32 s{sT}, 896, 0")
        A(f"s_cselect_b32 s{sT2}, s{sP384}, 0")
        A(f"s_cselect_b32 s{sC}, 0, s{sC}")
        A(f"s_sub_u32 s{sCA}, s{sCA}, s{sT}")
        A(f"s_sub_u32 s{sCB}, s{sCB}, s{sT2}")
    ST.at(0)
    for s in range(5): issue_chunk(s)
    ST.at(1)

    for r in (sWS, sWR, sWI):
        A(f"s_mov_b32 s{r+2}, {WS_BYTES if r == sWS else 921600}")
        A(f"s_mov_b32 s{r+3}, 0x20000")
    A(f"v_and_b32 v{vT}, 31, v{vL}")
    A(f"v_lshrrev_b32 v{vT+1}, 5, v{vL}")
    A(f"v_bfe_u32 v{vT+2}, v{vL}, 1, 3")
    A(f"v_xor_b32 v{vT+2}, v{vT+2}, v{vT+1}")
    A(f"v_lshlrev_b32 v{vT+2}, 4, v{vT+2}")
    A(f"v_lshl_add_u32 v{vT+2}, v{vT}, 7, v{vT+2}")
    A(f"v_add_u32 v{vRA}, s{sLA}, v{vT+2}")
    for u in range(1, 4): A(f"v_xor_b32 v{vRA+u}, {32*u}, v{vRA}")
    A(f"v_bfe_u32 v{vT+2}, v{vL}, 2, 2")
    A(f"v_lshl_add_u32 v{vT+3}, v{vT+1}, 3, v{vT+2}")
    A(f"v_lshlrev_b32 v{vT+3}, 8, v{vT+3}")
    A(f"v_add_u32 v{vT+3}, 16384, v{vT+3}")
    A(f"v_bfe_u32 v{vT+4}, v{vL}, 4, 1")
    A(f"v_lshlrev_b32 v{vT+4}, 5, v{vT+4}")
    A(f"v_and_b32 v{vT+5}, 3, v{vL}")
    A(f"v_lshl_add_u32 v{vT+4}, v{vT+5}, 3, v{vT+4}")
    A(f"v_lshlrev_b32 v{vT+2}, 6, v{vT+2}")
    for g in range(4):
        A(f"v_xor_b32 v{vT+5}, v{vT+4}, v{vT+2}")
        A(f"v_add_u32 v{vRB+g}, v{vT+5}, v{vT+3}")
        if g < 3: A(f"v_add_u32 v{vT+4}, s{sGS}, v{vT+4}")
    A(f"s_lshr_b32 s{sT}, s2, 2")
    A(f"s_and_b32 s{sT2}, s{sT}, 3")
    A(f"s_lshr_b32 s{sT}, s{sT}, 2")
    A(f"s_lshl_b32 s{sT2}, s{sT2}, 3")
    A(f"s_lshl_b32 s{sW0}, s{sW}, 1")
    A(f"s_add_u32 s{sT2}, s{sT2}, s{sW0}")
    A(f"s_lshl_b32 s{sW0}, s{sT}, 7")
    A(f"s_add_u32 s{sW0}, s{sW0}, s{sT2}")
    A(f"s_mul_i32 s{sW0}, s{sW0}, 450")
    for i in range(1, 4): A(f"s_add_u32 s{sW0+i}, s{sW0}, {14400*i}")
    A(f"s_lshl_b32 s{sWST}, s{sT}, 5")
    A(f"s_add_u32 s{sWST}, s{sWST}, s{sT2}")
    A(f"s_lshl_b32 s{sWST}, s{sWST}, 12")
    A(f"s_and_b32 s{sT}, s2, 3")
    A(f"s_lshl_b32 s{sT2}, s{sT}, 10")
    A(f"s_add_u32 s{sWST}, s{sWST}, s{sT2}")
    A(f"s_add_u32 s{sWST}, s{sWST}, {WS_W}")
    A(f"s_lshl_b32 s{sT}, s{sT}, 7")
    A(f"v_lshl_add_u32 v{vWO}, v{vL}, 1, s{sT}")
    A(f"v_lshlrev_b32 v{vST}, 4, v{vL}")
    A(f"s_cmp_lt_u32 s{sNT}, 12")
    A("s_cbranch_scc1 k1_nom")
    A(f"v_lshl_add_u32 v{vT+2}, v{vT+1}, 8, s{sBB}")
    A(f"v_mul_u32_u24 v{vT+2}, v{vT+2}, v{vT}")
    A(f"v_cvt_f32_u32 v{vT+2}, v{vT+2}")
    A(f"v_mul_f32 v{vT+2}, {hex(f2u(1/2048))}, v{vT+2}")
    A(f"v_cvt_f32_u32 v{vT+3}, v{vT}")
    A(f"v_mul_f32 v{vT+3}, {hex(f2u(1/32))}, v{vT+3}")
    for t in range(2):
        for jp in range(4):
            for e in range(2):
                j = 2 * jp + e
                n = 16 * t + 8 * (j >> 2) + (j & 3)
                A(f"v_fmamk_f32 v{vT+4+e}, v{vT+3}, {hex(f2u(float(n)))}, v{vT+2}")
                A(f"v_fract_f32 v{vT+4+e}, v{vT+4+e}")
            A(f"v_cos_f32 v{vT+6}, v{vT+4}")
            A(f"v_cos_f32 v{vT+7}, v{vT+5}")
            A(f"v_sin_f32 v{vT+8}, v{vT+4}")
            A(f"v_sin_f32 v{vT+9}, v{vT+5}")
            A(f"v_cvt_pk_bf16_f32 v{MC+4*t+jp}, v{vT+6}, v{vT+7}")
            A(f"v_cvt_pk_bf16_f32 v{MS+4*t+jp}, v{vT+8}, v{vT+9}")
            A(f"v_cvt_pk_bf16_f32 v{MN+4*t+jp}, -v{vT+8}, -v{vT+9}")
    A("k1_nom:")

    def reads(buf, slot, u):
        off = 32768 * (slot & 1)
        A(f"ds_read_b128 {vr(FA+4*buf,4)}, v{vRA+u} offset:{off}")
        for g in range(4):
            A(f"ds_read_b64_tr_b16 {vr(FB+16*buf+4*g,2)}, v{vRB+g} offset:{off+4096*u}")
            A(f"ds_read_b64_tr_b16 {vr(FB+16*buf+4*g+2,2)}, v{vRB+g} offset:{off+4096*u+1024}")
    def mfmas(buf, swap, first):
        for g in range(4):
            a, b = vr(FA+4*buf,4), vr(FB+16*buf+4*g,4)
            if swap: a, b = b, a
            c = "0" if first else vr(ACC+16*g,16)
            A(f"v_mfma_f32_32x32x16_bf16 {vr(ACC+16*g,16)}, {a}, {b}, {c}")
    def wloads(kk):
        for p, srd in enumerate((sWR, sWI)):
            for i in range(4):
                A(f"buffer_load_ushort v{WL+8*kk+4*p+i}, v{vWO}, {sr(srd,4)}, s{sW0+i} offen offset:{450*kk}")
    def mainloop(swap):
        waits = [32, 24, 24, 24, 32, 24, 16]
        for i in range(7):
            slot = i % 5
            if i in (2, 4, 5):
                d = 65536 if i != 5 else -131072
                for r in list(range(vRA, vRA+4)) + list(range(vRB, vRB+4)):
                    A(f"v_add_u32 v{r}, {hex(d & 0xffffffff)}, v{r}")
            A(f"s_waitcnt vmcnt({waits[i]})")
            A("s_barrier")
            ST.at(2 + i)
            reads(0, slot, 0)
            if i > 0: mfmas(1, swap, False)
            if i in (1, 2): issue_chunk((i - 1) % 5)
            if i == 3: wloads(0); wloads(1)
            for u in range(1, 4):
                reads(u & 1, slot, u)
                A("s_waitcnt lgkmcnt(9)")
                mfmas((u - 1) & 1, swap, i == 0 and u == 1)
            A("s_waitcnt lgkmcnt(0)")
        mfmas(1, swap, False)
        ST.at(9)
    def wstore():
        A("s_waitcnt vmcnt(0)")
        for kk in range(2):
            for p in range(4):
                A(f"v_lshl_or_b32 v{WL+8*kk+p}, v{WL+8*kk+2*p+1}, 16, v{WL+8*kk+2*p}")
        for kk in range(2):
            if kk: A(f"s_add_u32 s{sWST}, s{sWST}, 4096")
            A(f"buffer_store_dwordx4 {vr(WL+8*kk,4)}, v{vST}, {sr(sWS,4)}, s{sWST} offen")

    A(f"s_cmp_ge_u32 s{sNT}, 8")
    A("s_cbranch_scc1 k1_vd")
    mainloop(True)
    wstore()
    A(f"s_and_b32 s{sT}, s{sNT}, 3")
    A(f"s_lshl_b32 s{sT}, s{sT}, 8")
    A(f"s_add_u32 s{sT}, s{sT}, s{sBB}")
    A(f"s_lshl_b32 s{sT}, s{sT}, 11")
    A(f"s_cmp_ge_u32 s{sNT}, 4")
    A(f"s_cselect_b32 s{sT2}, {WS_K}, {WS_Q}")
    A(f"s_add_u32 s{sT}, s{sT}, s{sT2}")
    A(f"s_cmp_ge_u32 s{sNT}, 4")
    A(f"s_cselect_b32 s{sGS}, 1.0, {hex(QSCALE)}")
    A(f"s_cselect_b32 s{sLA}, 0x3f803f80, 0")
    A(f"s_cselect_b32 s{sLB}, 0x3f80, 0")
    A(f"s_cselect_b32 s{sC}, 12, 0")
    A(f"v_mov_b32 v{vT+6}, s{sLA}")
    A(f"v_mov_b32 v{vT+7}, s{sLB}")
    A(f"v_lshrrev_b32 v{vT}, 1, v{vL}")
    A(f"v_xor_b32 v{vT}, v{vT}, v{vL}")
    A(f"v_and_b32 v{vT}, 4, v{vT}")
    A(f"v_mul_u32_u24 v{vT}, 3, v{vT}")
    A(f"v_and_b32 v{vT}, s{sC}, v{vT}")
    A(f"v_xor_b32 v{vT}, v{vT}, v{vL}")
    A(f"v_lshlrev_b32 v{vST}, 4, v{vT}")
    A(f"v_cmp_lt_u32 vcc, 31, v{vL}")
    for g in range(4):
        for r in range(16): A(f"v_mul_f32 v{ACC+16*g+r}, s{sGS}, v{ACC+16*g+r}")
        for r in range(8): A(f"v_cvt_pk_bf16_f32 v{PK+8*g+r}, v{ACC+16*g+2*r}, v{ACC+16*g+2*r+1}")
        A(f"v_cndmask_b32 v{PK+8*g+6}, v{PK+8*g+6}, v{vT+6}, vcc")
        A(f"v_cndmask_b32 v{PK+8*g+7}, v{PK+8*g+7}, v{vT+7}, vcc")
        if g: A(f"s_add_u32 s{sT}, s{sT}, {64*2048}")
        A(f"buffer_store_dwordx4 {vr(PK+8*g,4)}, v{vST}, {sr(sWS,4)}, s{sT} offen")
        A(f"buffer_store_dwordx4 {vr(PK+8*g+4,4)}, v{vST}, {sr(sWS,4)}, s{sT} offen offset:1024")
    A("s_branch k1_pf")
    A("k1_vd:")
    mainloop(False)
    wstore()
    A(f"s_cmp_ge_u32 s{sNT}, 12")
    A("s_cbranch_scc1 k1_dft")
    A(f"s_and_b32 s{sT}, s{sNT}, 3")
    A(f"s_lshl_b32 s{sT}, s{sT}, 8")
    A(f"s_add_u32 s{sT}, s{sT}, s{sBB}")
    A(f"s_lshl_b32 s{sT}, s{sT}, 11")
    A(f"s_add_u32 s{sT}, s{sT}, {WS_V}")
    A(f"v_and_b32 v{vT}, 31, v{vL}")
    A(f"v_cmp_eq_u32 vcc, 28, v{vT}")
    A(f"v_mov_b32 v{vT+1}, 0x3f803f80")
    A(f"v_cndmask_b32 v{vT+1}, 0, v{vT+1}, vcc")
    A(f"v_cmp_lt_u32 vcc, 27, v{vT}")
    for g in range(4):
        for r in range(8): A(f"v_cvt_pk_bf16_f32 v{PK+8*g+r}, v{ACC+16*g+2*r}, v{ACC+16*g+2*r+1}")
        for r in range(8): A(f"v_cndmask_b32 v{PK+8*g+r}, v{PK+8*g+r}, v{vT+1}, vcc")
        if g: A(f"s_add_u32 s{sT}, s{sT}, {64*2048}")
        A(f"buffer_store_dwordx4 {vr(PK+8*g,4)}, v{vST}, {sr(sWS,4)}, s{sT} offen")
        A(f"buffer_store_dwordx4 {vr(PK+8*g+4,4)}, v{vST}, {sr(sWS,4)}, s{sT} offen offset:1024")
    A("s_branch k1_pf")
    A("k1_dft:")
    A(f"s_lshl_b32 s{sT}, s{sBB}, 3")
    A(f"s_lshl_b32 s{sT2}, s{sNT}, 1")
    A(f"s_add_u32 s{sT}, s{sT}, s{sT2}")
    A(f"s_sub_u32 s{sT}, s{sT}, 24")
    A(f"s_lshl_b32 s{sT}, s{sT}, 12")
    A(f"s_add_u32 s{sT}, s{sT}, {WS_Y}")
    for g in range(4):
        for r in range(8): A(f"v_cvt_pk_bf16_f32 v{PK+8*g+r}, v{ACC+16*g+2*r}, v{ACC+16*g+2*r+1}")
    for cg in range(2):
        xr, xi = PK + 16 * cg, PK + 16 * cg + 8
        yr, yi = ACC + 32 * cg, ACC + 32 * cg + 16
        for t in range(2):
            A(f"v_mfma_f32_32x32x16_bf16 {vr(yr,16)}, {vr(MC+4*t,4)}, {vr(xr+4*t,4)}, {'0' if t == 0 else vr(yr,16)}")
            A(f"v_mfma_f32_32x32x16_bf16 {vr(yi,16)}, {vr(MC+4*t,4)}, {vr(xi+4*t,4)}, {'0' if t == 0 else vr(yi,16)}")
        for t in range(2):
            A(f"v_mfma_f32_32x32x16_bf16 {vr(yr,16)}, {vr(MS+4*t,4)}, {vr(xi+4*t,4)}, {vr(yr,16)}")
            A(f"v_mfma_f32_32x32x16_bf16 {vr(yi,16)}, {vr(MN+4*t,4)}, {vr(xr+4*t,4)}, {vr(yi,16)}")
    for g in range(4):
        P = FA + 8 * g
        for r in range(8): A(f"v_cvt_pk_bf16_f32 v{P+r}, v{ACC+16*g+2*r}, v{ACC+16*g+2*r+1}")
        for t in range(2):
            A(f"v_permlane32_swap_b32 v{P+4*t}, v{P+4*t+2}")
            A(f"v_permlane32_swap_b32 v{P+4*t+1}, v{P+4*t+3}")
        if g == 2: A(f"s_add_u32 s{sT}, s{sT}, 4096")
        for t in range(2):
            A(f"buffer_store_dwordx4 {vr(P+4*t,4)}, v{vST}, {sr(sWS,4)}, s{sT} offen offset:{(g&1)*2048+1024*t}")
    A("k1_pf:")
    ST.at(10)
    ST.dump(sWS, sW, 4, vT+10)
    if DIAG: A("s_mov_b64 exec, -1")
    A(f"s_cmp_lg_u32 s{sW}, 0")
    A("s_cbranch_scc1 k1_end")
    A(f"s_cmp_ge_u32 s{sJ}, 8")
    A("s_cbranch_scc1 k1_end")
    A(f"s_getpc_b64 {sr(56,2)}")
    A("s_add_u32 s56, s56, tab_small@rel32@lo+4")
    A("s_addc_u32 s57, s57, tab_small@rel32@hi+12")
    A(f"s_getpc_b64 {sr(58,2)}")
    A("s_add_u32 s58, s58, k2_kernel@rel32@lo+4")
    A("s_addc_u32 s59, s59, k2_kernel@rel32@hi+12")
    A(f"s_cmp_ge_u32 s{sJ}, 6")
    A(f"s_cselect_b32 s56, s58, s56")
    A(f"s_cselect_b32 s57, s59, s57")
    A(f"s_cselect_b32 s{sT}, 6, 0")
    A(f"s_sub_u32 s{sT}, s{sJ}, s{sT}")
    A(f"s_lshl_b32 s{sT}, s{sT}, 13")
    A(f"v_lshl_add_u32 v{vT}, v{vL}, 7, s{sT}")
    A(f"global_load_dword v{vT+1}, v{vT}, s[56:57]")
    A("k1_end:")
    A("s_endpgm")
    return A.L, NV, 102 if DIAG else 64
```

```python
from asmlib import *
from k1 import WS_Q, WS_K, WS_V, WS_Y, WS_W, WS_O, WS_Z, WS_G, WS_BYTES, f2u
import math
TS_F64, TS_F32, TS_TW, TS_BYTES = 0, 24576, 30720, 47104
LDS_RED, LDS_FLAG, LDS_MAX, LDS_Y = 0, 65536, 65536 + 256, 65536 + 4096
K2_LDS = LDS_Y + 8192

def gen_k2():
    A = Asm()
    sWS, sX, sTB = 8, 12, 16
    sW, sJ, sXC, sHD, sQB, sT, sT2, sCNT, sI, sKO, sLO, sHI, sVO, sPASS = 20, 21, 22, 23, 24, 25, 26, 27, 28, 29, 30, 31, 32, 33
    sK0 = 34
    O, S, Q, KV = 0, 64, 128, 160
    vL, vO16, vIDX, vT = 208, 209, 210, 212
    NV = 256
    A("s_cmp_ge_u32 s2, 256")
    A("s_cbranch_scc1 k2_end")
    ST = Stamps(A, 1); ST.begin()
    A(f"s_load_dwordx2 {sr(sWS,2)}, s[0:1], 72")
    A(f"v_lshrrev_b32 v{vT}, 6, v0")
    A(f"v_and_b32 v{vL}, 63, v0")
    A(f"s_mov_b32 s{sWS+2}, {WS_BYTES}")
    A(f"s_mov_b32 s{sWS+3}, 0x20000")
    A(f"v_readfirstlane_b32 s{sW}, v{vT}")
    A(f"v_lshlrev_b32 v{vO16}, 4, v{vL}")
    A(f"s_and_b32 s{sXC}, s2, 7")
    A(f"s_lshr_b32 s{sJ}, s2, 3")
    A(f"s_cmp_eq_u32 s{sW}, 4")
    A("s_cbranch_scc1 k2_aux")
    A(f"s_lshr_b32 s{sHD}, s{sJ}, 4")
    A(f"s_lshl_b32 s{sHD}, s{sHD}, 3")
    A(f"s_add_u32 s{sHD}, s{sHD}, s{sXC}")
    A(f"s_and_b32 s{sQB}, s{sJ}, 15")
    A(f"s_cmp_eq_u32 s{sW}, 0")
    A(f"s_cselect_b32 s{sCNT}, 13, 17")
    A(f"s_mul_i32 s{sT}, s{sW}, 17")
    A(f"s_sub_u32 s{sT}, s{sT}, 4")
    A(f"s_max_i32 s{sT}, s{sT}, 0")
    A(f"s_lshl_b32 s{sT2}, s{sW}, 4")
    A(f"s_cmp_lt_u32 s{sJ}, 28")
    A(f"s_cselect_b32 s{sCNT}, s{sCNT}, 16")
    A(f"s_cselect_b32 s{sT}, s{sT}, s{sT2}")
    A(f"s_lshl_b32 s{sT2}, s{sHD}, 6")
    A(f"s_add_u32 s{sT}, s{sT}, s{sT2}")
    A(f"s_lshl_b32 s{sLO}, s{sT}, 11")
    A(f"s_add_u32 s{sLO}, s{sLO}, {WS_K}")
    A(f"s_lshl_b32 s{sT}, s{sCNT}, 11")
    A(f"s_add_u32 s{sHI}, s{sLO}, s{sT}")
    A(f"s_mul_i32 s{sT}, s{sQB}, s{sCNT}")
    A(f"s_lshr_b32 s{sT}, s{sT}, 4")
    A(f"s_lshl_b32 s{sT}, s{sT}, 11")
    A(f"s_add_u32 s{sK0}, s{sLO}, s{sT}")
    A(f"s_lshl_b32 s{sT}, s{sQB}, 2")
    A(f"s_add_u32 s{sT}, s{sT}, s{sT2}")
    A(f"s_lshl_b32 s{sT}, s{sT}, 11")
    A("s_waitcnt lgkmcnt(0)")
    def kvload(st):
        b = KV + 16 * st
        return [f"s_add_u32 s{sVO}, s{sKO}, {WS_V - WS_K}",
                f"buffer_load_dwordx4 {vr(b,4)}, v{vO16}, {sr(sWS,4)}, s{sKO} offen",
                f"buffer_load_dwordx4 {vr(b+4,4)}, v{vO16}, {sr(sWS,4)}, s{sKO} offen offset:1024",
                f"buffer_load_dwordx4 {vr(b+8,4)}, v{vO16}, {sr(sWS,4)}, s{sVO} offen",
                f"buffer_load_dwordx4 {vr(b+12,4)}, v{vO16}, {sr(sWS,4)}, s{sVO} offen offset:1024",
                f"s_add_u32 s{sKO}, s{sKO}, 2048",
                f"s_cmp_ge_u32 s{sKO}, s{sHI}",
                f"s_cselect_b32 s{sKO}, s{sLO}, s{sKO}"]
    for q in range(4):
        if q == 2: A(f"s_add_u32 s{sT}, s{sT}, 4096")
        for t in range(2):
            A(f"buffer_load_dwordx4 {vr(Q+8*q+4*t,4)}, v{vO16}, {sr(sWS,4)}, s{sT} offen offset:{2048*(q&1)+1024*t}")
    A(f"s_mov_b32 s{sPASS}, 0")
    A(f"v_mov_b32 v{vIDX}, 0xdddddddd")
    A(f"v_mov_b32 v{vT}, 0")
    A(f"v_mov_b32 v{vT+1}, {LDS_FLAG}")
    A(f"ds_write_b32 v{vT+1}, v{vT}")
    A("k2_pass:")
    A(f"s_mov_b32 s{sKO}, s{sK0}")
    for x in kvload(0): A(x)
    for x in kvload(1): A(x)
    for r in range(64): A(f"v_mov_b32 v{O+r}, 0")
    for r in range(16): A(f"v_mov_b32 v{S+48+r}, 0")
    for r in range(8): A(f"v_mov_b32 v{KV+32+8+r}, 0")
    A(f"s_mov_b32 s{sI}, s{sCNT}")
    ST.at(0)
    A("s_waitcnt vmcnt(6)")
    ST.at(1)
    def qk(q, st, half):
        c = "0" if half == 0 else vr(S+16*q,16)
        return f"v_mfma_f32_32x32x16_bf16 {vr(S+16*q,16)}, {vr(KV+16*st+4*half,4)}, {vr(Q+8*q+4*half,4)}, {c}"
    def pv(q, st, half):
        return f"v_smfmac_f32_32x32x32_bf16 {vr(O+16*q,16)}, {vr(KV+16*st+8+4*half,4)}, {vr(S+16*q+8*half,8)}, v{vIDX}"
    A(qk(0, 0, 0)); A(qk(0, 0, 1))
    A("s_nop 7")
    loop_start = A.mark()
    A("k2_loop:")
    for st in range(3):
        nxt, prv = (st + 1) % 3, (st + 2) % 3
        for q in range(4):
            e = [f"v_exp_f32 v{S+16*q+r}, v{S+16*q+r}" for r in range(16)]
            qn, stn = (q + 1, st) if q < 3 else (0, nxt)
            qp, stp = (q - 1, st) if q > 0 else (3, prv)
            fill = {}
            if q == 1:
                ld = kvload(prv)
                fill[0] = ["s_waitcnt vmcnt(4)"]
                for k, x in enumerate(ld): fill.setdefault(8 + k, []).append(x)
            if q == 3:
                pre = ["s_waitcnt vmcnt(6)"]
            else: pre = []
            if q == 2:
                fill[1] = [f"s_sub_u32 s{sI}, s{sI}, 1"]
            for x in pre: A(x)
            seq = [qk(qn, stn, 0)] + e[0:4] + [qk(qn, stn, 1)] + e[4:8] + [pv(qp, stp, 0)] + e[8:12] + [pv(qp, stp, 1)] + e[12:16]
            ei = 0
            for x in seq:
                A(x)
                if x.startswith("v_exp"):
                    for y in fill.get(ei, []): A(y)
                    ei += 1
        A(f"s_cmp_eq_u32 s{sI}, 0")
        if st < 2: A(f"s_cbranch_scc1 k2_x{st}")
        else: A("s_cbranch_scc0 k2_loop")
    loop_end = A.mark()
    for st in (2, 0, 1):
        if st != 2: A(f"k2_x{st}:")
        A("s_nop 1")
        A(pv(3, st, 0)); A(pv(3, st, 1))
        if st != 1: A("s_branch k2_red")
    A("k2_red:")
    ST.at(2)
    A(f"s_lshl_b32 s{sT}, s{sW}, 12")
    A(f"v_add_u32 v{vT}, s{sT}, v{vO16}")
    A(f"s_lshl_b32 s{sT}, s{sW}, 14")
    A(f"v_add_u32 v{vT+1}, s{sT}, v{vO16}")
    for q in range(4):
        if q == 3: A("s_nop 7")
        for g in range(4):
            A(f"ds_write_b128 v{vT}, {vr(O+16*q+4*g,4)} offset:{16384*q+1024*g}")
    A("s_waitcnt vmcnt(0) lgkmcnt(0)")
    ST.at(3)
    A("s_barrier")
    ST.at(4)
    for w in range(4):
        for g in range(4):
            A(f"ds_read_b128 {vr(S+16*w+4*g,4)}, v{vT+1} offset:{4096*w+1024*g}")
    A(f"s_lshl_b32 s{sT}, s{sQB}, 2")
    A(f"s_add_u32 s{sT}, s{sT}, s{sW}")
    A(f"s_mul_i32 s{sT}, s{sT}, 28672")
    A(f"s_add_u32 s{sT}, s{sT}, {WS_O}")
    A(f"s_mul_i32 s{sT2}, s{sHD}, 7")
    A(f"v_lshrrev_b32 v{vT+2}, 5, v{vL}")
    A(f"v_add_u32 v{vT+2}, s{sT2}, v{vT+2}")
    A(f"v_and_b32 v{vT+3}, 31, v{vL}")
    A(f"v_lshlrev_b32 v{vT+3}, 4, v{vT+3}")
    A(f"v_and_b32 v{vT+4}, 1, v{vT+2}")
    A(f"v_lshl_add_u32 v{vT+3}, v{vT+4}, 3, v{vT+3}")
    A(f"v_lshrrev_b32 v{vT+2}, 1, v{vT+2}")
    A(f"v_lshl_add_u32 v{vT+3}, v{vT+2}, 9, v{vT+3}")
    A("s_waitcnt lgkmcnt(8)")
    for r in range(16): A(f"v_add_f32 v{S+r}, v{S+r}, v{S+16+r}")
    A("s_waitcnt lgkmcnt(0)")
    for r in range(16): A(f"v_add_f32 v{S+32+r}, v{S+32+r}, v{S+48+r}")
    for r in range(16): A(f"v_add_f32 v{S+r}, v{S+r}, v{S+32+r}")
    A(f"v_mov_b32 v{vT+4}, v{S+12}")
    A(f"v_mov_b32 v{vT+5}, v{S+12}")
    A(f"v_permlane32_swap_b32 v{vT+4}, v{vT+5}")
    A(f"v_rcp_f32 v{vT+6}, v{vT+5}")
    A(f"v_add_f32 v{vT+7}, abs(v{S}), abs(v{S+1})")
    for r in range(2, 16): A(f"v_add_f32 v{vT+7}, v{vT+7}, abs(v{S+r})")
    A(f"v_cmp_nle_f32 vcc, {hex(f2u(2.0**-60))}, v{vT+5}")
    A(f"s_mov_b64 s[36:37], vcc")
    A(f"v_cmp_nge_f32 vcc, {hex(f2u(2.0**60))}, v{vT+5}")
    A(f"s_or_b64 s[36:37], s[36:37], vcc")
    A(f"v_cmp_nge_f32 vcc, {hex(f2u(2.0**120))}, v{vT+7}")
    A(f"s_or_b64 s[36:37], s[36:37], vcc")
    for r in range(16): A(f"v_mul_f32 v{S+r}, v{S+r}, v{vT+6}")
    for r in range(8): A(f"v_cvt_pk_bf16_f32 v{S+16+r}, v{S+2*r}, v{S+2*r+1}")
    for g in range(4):
        if g == 3: A("s_mov_b64 exec, 0xffffffff")
        A(f"buffer_store_dwordx2 {vr(S+16+2*g,2)}, v{vT+3}, {sr(sWS,4)}, s{sT} offen offset:{512*g}")
    A("s_mov_b64 exec, -1")
    A(f"s_cmp_lg_u32 s{sPASS}, 0")
    A("s_cbranch_scc1 k2_end")
    A("s_cmp_eq_u64 s[36:37], 0")
    A("s_cbranch_scc1 k2_noflag")
    A(f"v_mov_b32 v{vT+4}, {LDS_FLAG}")
    A(f"v_mov_b32 v{vT+5}, 1")
    A(f"ds_write_b32 v{vT+4}, v{vT+5}")
    A("k2_noflag:")
    A(f"v_mov_b32 v{vT+4}, {LDS_FLAG}")
    A("s_waitcnt lgkmcnt(0)")
    A("s_barrier")
    A(f"ds_read_b32 v{vT+5}, v{vT+4}")
    A("s_waitcnt lgkmcnt(0)")
    A(f"v_readfirstlane_b32 s{sT}, v{vT+5}")
    A(f"s_cmp_eq_u32 s{sT}, 0")
    A("s_cbranch_scc1 k2_dump" if DIAG else "s_cbranch_scc1 k2_end")
    A(f"s_mov_b32 s{sPASS}, 1")
    for q in range(4): A(f"v_mov_b32 v{O+q}, 0xff800000")
    A(f"s_mov_b32 s{sKO}, s{sLO}")
    A("k2_maxloop:")
    A(f"buffer_load_dwordx4 {vr(KV,4)}, v{vO16}, {sr(sWS,4)}, s{sKO} offen")
    A(f"buffer_load_dwordx4 {vr(KV+4,4)}, v{vO16}, {sr(sWS,4)}, s{sKO} offen offset:1024")
    A("s_waitcnt vmcnt(0)")
    for q in range(4): A(qk(q, 0, 0)); A(qk(q, 0, 1))
    A("s_nop 15")
    for q in range(4):
        for r in range(8): A(f"v_max3_f32 v{O+q}, v{O+q}, v{S+16*q+2*r}, v{S+16*q+2*r+1}")
    A(f"s_add_u32 s{sKO}, s{sKO}, 2048")
    A(f"s_cmp_lt_u32 s{sKO}, s{sHI}")
    A("s_cbranch_scc1 k2_maxloop")
    A(f"s_lshl_b32 s{sT}, s{sW}, 8")
    A(f"v_lshl_add_u32 v{vT}, v{vL}, 2, s{sT}")
    for q in range(4): A(f"ds_write_b32 v{vT}, v{O+q} offset:{1024*q}")
    A(f"v_and_b32 v{vT+1}, 31, v{vL}")
    A(f"v_lshlrev_b32 v{vT+1}, 2, v{vT+1}")
    A("s_waitcnt lgkmcnt(0)")
    A("s_barrier")
    for q in range(4):
        for k in range(8): A(f"ds_read_b32 v{S+8*q+k}, v{vT+1} offset:{1024*q+128*k}")
        A("s_waitcnt lgkmcnt(0)")
    A("s_barrier")
    A(f"v_cmp_lt_u32 vcc, 31, v{vL}")
    for q in range(4):
        m = S + 8 * q
        A(f"v_max3_f32 v{m}, v{m}, v{m+1}, v{m+2}")
        A(f"v_max3_f32 v{m}, v{m}, v{m+3}, v{m+4}")
        A(f"v_max3_f32 v{m}, v{m}, v{m+5}, v{m+6}")
        A(f"v_max_f32 v{m}, v{m}, v{m+7}")
        A(f"v_xor_b32 v{m}, 0x80000000, v{m}")
        A(f"v_and_b32 v{m+1}, 0xffff0000, v{m}")
        A(f"v_sub_f32 v{m+2}, v{m}, v{m+1}")
        A(f"v_and_b32 v{m+3}, 0xffff0000, v{m+2}")
        A(f"v_sub_f32 v{m+4}, v{m+2}, v{m+3}")
        A(f"v_lshrrev_b32 v{m+1}, 16, v{m+1}")
        A(f"v_or_b32 v{m+1}, v{m+1}, v{m+3}")
        A(f"v_lshrrev_b32 v{m+4}, 16, v{m+4}")
        A(f"v_cndmask_b32 v{Q+8*q+6}, v{Q+8*q+6}, v{m+1}, vcc")
        A(f"v_cndmask_b32 v{Q+8*q+7}, v{Q+8*q+7}, v{m+4}, vcc")
    A("s_branch k2_pass")

    A("k2_aux:")
    A("s_setprio 3")
    sCOL, sGW = 27, 40
    A(f"s_getpc_b64 {sr(sTB,2)}")
    A(f"s_add_u32 s{sTB}, s{sTB}, tab_small@rel32@lo+4")
    A(f"s_addc_u32 s{sTB+1}, s{sTB+1}, tab_small@rel32@hi+12")
    A(f"s_mov_b32 s{sTB+2}, {TS_BYTES}")
    A(f"s_mov_b32 s{sTB+3}, 0x20000")
    A(f"s_mul_i32 s{sCOL}, s{sXC}, 28")
    A(f"s_add_u32 s{sCOL}, s{sCOL}, s{sJ}")
    A(f"s_cmp_lt_u32 s{sJ}, 28")
    A("s_waitcnt lgkmcnt(0)")
    A("s_cbranch_scc1 k2_fft")
    A(f"s_load_dwordx2 {sr(sX,2)}, s[0:1], 0")
    A(f"s_load_dwordx2 {sr(sGW,2)}, s[0:1], 48")
    A(f"s_mov_b32 s{sX+2}, 1835008")
    A(f"s_mov_b32 s{sX+3}, 0x20000")
    A(f"s_mov_b32 s{sGW+2}, 896")
    A(f"s_mov_b32 s{sGW+3}, 0x20000")
    A(f"s_sub_u32 s{sT}, s{sJ}, 28")
    A(f"s_lshl_b32 s{sT}, s{sT}, 3")
    A(f"s_add_u32 s{sQB}, s{sT}, s{sXC}")
    A(f"s_mul_i32 s{sKO}, s{sQB}, 1792")
    A(f"s_mov_b32 s{sVO}, 0")
    A(f"v_and_b32 v1, 31, v{vL}")
    A(f"v_lshrrev_b32 v2, 5, v{vL}")
    A("v_lshlrev_b32 v2, 4, v2")
    A("v_mul_u32_u24 v3, 57344, v1")
    A("v_add_u32 v3, v3, v2")
    for r in range(32): A(f"v_mov_b32 v{64+r}, 0")
    A("s_waitcnt lgkmcnt(0)")
    A("k2_gloop:")
    for u in range(4):
        A(f"buffer_load_dwordx4 {vr(8+4*u,4)}, v3, {sr(sX,4)}, s{sKO} offen offset:{32*u}")
        A(f"buffer_load_dwordx4 {vr(24+4*u,4)}, v3, {sr(sX,4)}, s{sKO} offen offset:{896+32*u}")
        A(f"buffer_load_dwordx4 {vr(40+4*u,4)}, v2, {sr(sGW,4)}, s{sVO} offen offset:{32*u}")
    A(f"s_add_u32 s{sKO}, s{sKO}, 128")
    A(f"s_add_u32 s{sVO}, s{sVO}, 128")
    A("s_waitcnt vmcnt(0)")
    for u in range(4):
        A(f"v_mfma_f32_32x32x16_bf16 v[64:79], {vr(40+4*u,4)}, {vr(8+4*u,4)}, v[64:79]")
        A(f"v_mfma_f32_32x32x16_bf16 v[80:95], {vr(40+4*u,4)}, {vr(24+4*u,4)}, v[80:95]")
    A(f"s_cmp_lt_u32 s{sVO}, 896")
    A("s_cbranch_scc1 k2_gloop")
    A("s_nop 15")
    A(f"v_cmp_lt_u32 vcc, 31, v{vL}")
    A("v_cndmask_b32 v4, v64, v80, vcc")
    A(f"v_mul_f32 v4, {hex(f2u(-math.log2(math.e)))}, v4")
    A("v_exp_f32 v4, v4")
    A("v_add_f32 v4, 1.0, v4")
    A("v_rcp_f32 v4, v4")
    A(f"v_lshlrev_b32 v5, 2, v{vL}")
    A(f"s_lshl_b32 s{sT}, s{sQB}, 8")
    A(f"s_add_u32 s{sT}, s{sT}, {WS_G}")
    A(f"buffer_store_dword v4, v5, {sr(sWS,4)}, s{sT} offen")
    A(f"s_cmp_lg_u32 s{sQB}, 31")
    A("s_cbranch_scc1 k2_pf")
    A(f"s_movk_i32 s{sCOL}, 224")
    A("k2_fft:")
    CC, CS, CN = 0, 32, 64
    X = 96
    YF = 160
    WT = 212
    TM = 192
    vG = 244
    A(f"v_lshrrev_b32 v{TM}, 2, v{vL}")
    A(f"v_lshlrev_b32 v{TM}, 15, v{TM}")
    A(f"v_and_b32 v{TM+1}, 3, v{vL}")
    A(f"v_lshl_add_u32 v{vG}, v{TM+1}, 9, v{TM}")
    A(f"s_lshr_b32 s{sT}, s{sCOL}, 5")
    A(f"s_lshl_b32 s{sT}, s{sT}, 12")
    A(f"s_and_b32 s{sT2}, s{sCOL}, 31")
    A(f"s_lshl_b32 s{sT2}, s{sT2}, 4")
    A(f"s_add_u32 s{sT}, s{sT}, s{sT2}")
    for n in range(8):
        A(f"s_mov_b32 m0, {LDS_Y + 1024*n}")
        A(f"s_add_u32 s{sT2}, s{sT}, {WS_Y + (n>>2)*2048 + (n&3)*16*32768}")
        A(f"buffer_load_dwordx4 v{vG}, {sr(sWS,4)}, s{sT2} offen lds")
    for kind, base in enumerate((CC, CS, CN)):
        for f in range(8):
            off = TS_F64 + kind * 8192 + f * 1024
            if f % 4 == 0: A(f"s_mov_b32 s{sT2}, {off}")
            A(f"buffer_load_dwordx4 {vr(base+4*f,4)}, v{vO16}, {sr(sTB,4)}, s{sT2} offen offset:{1024*(f%4)}")
    A(f"v_lshlrev_b32 v{vG+1}, 12, v{vL}")
    A(f"s_lshl_b32 s{sT}, s{sCOL}, 4")
    for f in range(8):
        A(f"s_add_u32 s{sT2}, s{sT}, {WS_W + f*64*4096}")
        A(f"buffer_load_dwordx4 {vr(WT+4*f,4)}, v{vG+1}, {sr(sWS,4)}, s{sT2} offen")
    A(f"v_lshrrev_b32 v{TM}, 5, v{vL}")
    A(f"v_bfe_u32 v{TM+1}, v{vL}, 2, 2")
    A(f"v_lshl_add_u32 v{TM}, v{TM}, 2, v{TM+1}")
    A(f"v_lshlrev_b32 v{TM}, 6, v{TM}")
    A(f"v_bfe_u32 v{TM+1}, v{vL}, 4, 1")
    A(f"v_lshl_add_u32 v{TM}, v{TM+1}, 5, v{TM}")
    A(f"v_and_b32 v{TM+1}, 3, v{vL}")
    A(f"v_lshl_add_u32 v{TM}, v{TM+1}, 3, v{TM}")
    A(f"v_add_u32 v{TM}, {LDS_Y}, v{TM}")
    ST.at(0)
    A("s_waitcnt vmcnt(32)")
    ST.at(1)
    for p in range(2):
        for u in range(4):
            A(f"ds_read_b64_tr_b16 {vr(YF+16*p+4*u,2)}, v{TM} offset:{4096*p+1024*u}")
            A(f"ds_read_b64_tr_b16 {vr(YF+16*p+4*u+2,2)}, v{TM} offset:{4096*p+1024*u+512}")
    A("s_waitcnt vmcnt(24) lgkmcnt(0)")
    Yr = lambda u: vr(YF+4*u,4)
    Yi = lambda u: vr(YF+16+4*u,4)
    mf = lambda d, a, b, first=False: A(f"v_mfma_f32_32x32x16_bf16 {vr(d,16)}, {a}, {b}, {'0' if first else vr(d,16)}")
    for u in range(4):
        for mt in range(2):
            mf(X+16*mt, vr(CC+16*mt+4*u,4), Yr(u), u == 0)
            mf(X+32+16*mt, vr(CC+16*mt+4*u,4), Yi(u), u == 0)
    A("s_waitcnt vmcnt(8)")
    for u in range(4):
        for mt in range(2):
            mf(X+16*mt, vr(CS+16*mt+4*u,4), Yi(u))
            mf(X+32+16*mt, vr(CN+16*mt+4*u,4), Yr(u))
    A("s_waitcnt vmcnt(0)")
    ST.at(2)
    for mt in range(2):
        for g in range(4):
            w = WT + 4 * (4 * mt + g)
            for i in range(4):
                src_r, src_i = w + (i >> 1), w + 2 + (i >> 1)
                if i & 1:
                    A(f"v_and_b32 v{TM+2+i}, 0xffff0000, v{src_r}"); A(f"v_and_b32 v{TM+6+i}, 0xffff0000, v{src_i}")
                else:
                    A(f"v_lshlrev_b32 v{TM+2+i}, 16, v{src_r}"); A(f"v_lshlrev_b32 v{TM+6+i}, 16, v{src_i}")
            for i in range(4):
                xr, xi = X + 16*mt + 4*g + i, X + 32 + 16*mt + 4*g + i
                A(f"v_mul_f32 v{TM+10+i}, v{xr}, v{TM+2+i}")
                A(f"v_mul_f32 v{xr}, v{xr}, v{TM+6+i}")
                A(f"v_fma_f32 v{TM+10+i}, -v{xi}, v{TM+6+i}, v{TM+10+i}")
                A(f"v_fma_f32 v{xr}, v{xi}, v{TM+2+i}, v{xr}")
            d = 4 * (2 * mt + (g >> 1)) + 2 * (g & 1)
            xr0 = X + 16*mt + 4*g
            A(f"v_cvt_pk_bf16_f32 v{YF+d}, v{TM+10}, v{TM+11}")
            A(f"v_cvt_pk_bf16_f32 v{YF+d+1}, v{TM+12}, v{TM+13}")
            A(f"v_cvt_pk_bf16_f32 v{YF+16+d}, v{xr0}, v{xr0+1}")
            A(f"v_cvt_pk_bf16_f32 v{YF+16+d+1}, v{xr0+2}, v{xr0+3}")
    for u in range(4):
        for nt in range(2):
            mf(X+16*nt, Yr(u), vr(CC+16*nt+4*u,4), u == 0)
            mf(X+32+16*nt, Yi(u), vr(CC+16*nt+4*u,4), u == 0)
    for u in range(4):
        for nt in range(2):
            mf(X+16*nt, Yi(u), vr(CN+16*nt+4*u,4))
            mf(X+32+16*nt, Yr(u), vr(CS+16*nt+4*u,4))
    ST.at(3)
    A("s_nop 7")
    for f in range(16):
        if f % 4 == 0: A(f"s_mov_b32 s{sT2}, {TS_TW + 1024*f}")
        A(f"buffer_load_dwordx4 {vr(4*f,4)}, v{vO16}, {sr(sTB,4)}, s{sT2} offen offset:{1024*(f%4)}")
    for f in range(6):
        if f % 4 == 0: A(f"s_mov_b32 s{sT2}, {TS_F32 + 1024*f}")
        A(f"buffer_load_dwordx4 {vr(64+4*f,4)}, v{vO16}, {sr(sTB,4)}, s{sT2} offen offset:{1024*(f%4)}")
    A(f"s_lshr_b32 s{sT}, s{sCOL}, 1")
    A(f"s_and_b32 s{sT2}, s{sCOL}, 1")
    A(f"s_mul_i32 s{sT2}, s{sT2}, 224")
    A(f"s_add_u32 s{sT}, s{sT}, s{sT2}")
    A(f"s_lshl_b32 s{sT}, s{sT}, 12")
    A(f"s_add_u32 s{sT}, s{sT}, {WS_Z}")
    A(f"v_and_b32 v{vG}, 31, v{vL}")
    A(f"v_lshlrev_b32 v{vG}, 6, v{vG}")
    A(f"v_lshrrev_b32 v{vG+1}, 5, v{vL}")
    A(f"v_lshl_add_u32 v{vG}, v{vG+1}, 4, v{vG}")
    for nt in range(2):
        A(f"s_waitcnt vmcnt({14 - 8*nt})")
        for g in range(4):
            for i in range(4):
                tr, ti = X + 16*nt + 4*g + i, X + 32 + 16*nt + 4*g + i
                c, s = 32*nt + 4*g + i, 32*nt + 16 + 4*g + i
                A(f"v_mul_f32 v{TM+10+i}, v{tr}, v{c}")
                A(f"v_mul_f32 v{tr}, v{tr}, v{s}")
                A(f"v_fma_f32 v{TM+10+i}, -v{ti}, v{s}, v{TM+10+i}")
                A(f"v_fma_f32 v{tr}, v{ti}, v{c}, v{tr}")
            d = 8 * nt + 2 * g
            tr0 = X + 16*nt + 4*g
            A(f"v_cvt_pk_bf16_f32 v{YF+d}, v{TM+10}, v{TM+11}")
            A(f"v_cvt_pk_bf16_f32 v{YF+d+1}, v{TM+12}, v{TM+13}")
            A(f"v_cvt_pk_bf16_f32 v{YF+16+d}, v{tr0}, v{tr0+1}")
            A(f"v_cvt_pk_bf16_f32 v{YF+16+d+1}, v{tr0+2}, v{tr0+3}")
    A("s_waitcnt vmcnt(0)")
    ST.at(4)
    for t in range(2):
        for nt in range(2):
            mf(X+16*nt, vr(64+4*t,4), vr(YF+8*nt+4*t,4), t == 0)
            mf(X+32+16*nt, vr(64+4*t,4), vr(YF+16+8*nt+4*t,4), t == 0)
    for t in range(2):
        for nt in range(2):
            mf(X+16*nt, vr(80+4*t,4), vr(YF+16+8*nt+4*t,4))
            mf(X+32+16*nt, vr(72+4*t,4), vr(YF+8*nt+4*t,4))
    for p in range(2):
        if p == 1:
            A(f"s_cmp_eq_u32 s{sCOL}, 0")
            A("s_cbranch_scc1 k2_pf")
            A(f"s_cmp_eq_u32 s{sCOL}, 224")
            A("s_cbranch_scc1 k2_pf")
            A(f"s_add_u32 s{sT}, s{sT}, {112*4096}")
        for nt in range(2):
            z = X + 32*p + 16*nt; P = 8*(2*p+nt)
            for r in range(8): A(f"v_cvt_pk_bf16_f32 v{P+r}, v{z+2*r}, v{z+2*r+1}")
            for t in range(2):
                A(f"v_permlane32_swap_b32 v{P+4*t}, v{P+4*t+2}")
                A(f"v_permlane32_swap_b32 v{P+4*t+1}, v{P+4*t+3}")
            for t in range(2):
                A(f"buffer_store_dwordx4 {vr(P+4*t,4)}, v{vG}, {sr(sWS,4)}, s{sT} offen offset:{2048*nt+32*t}")
    A("k2_pf:")
    ST.at(5)
    A(f"s_load_dwordx2 {sr(sX,2)}, s[0:1], 40")
    A(f"s_mov_b32 s{sX+2}, 401408")
    A(f"s_mov_b32 s{sX+3}, 0x20000")
    A(f"s_getpc_b64 {sr(sTB,2)}")
    A(f"s_add_u32 s{sTB}, s{sTB}, tab_inv@rel32@lo+4")
    A(f"s_addc_u32 s{sTB+1}, s{sTB+1}, tab_inv@rel32@hi+12")
    A(f"s_mov_b32 s{sTB+2}, 200704")
    A(f"v_lshlrev_b32 v1, 7, v{vL}")
    A(f"s_lshl_b32 s{sT}, s{sJ}, 13")
    A(f"v_add_u32 v1, s{sT}, v1")
    A(f"v_add_u32 v2, 0x40000, v1")
    A(f"buffer_load_dword v3, v1, {sr(sTB,4)}, 0 offen")
    A("s_waitcnt lgkmcnt(0)")
    A(f"buffer_load_dword v4, v1, {sr(sX,4)}, 0 offen")
    A(f"buffer_load_dword v5, v2, {sr(sX,4)}, 0 offen")
    if DIAG: A("k2_dump:")
    ST.dump(sWS, sW, 5, 250)
    A("k2_end:")
    A("s_endpgm")
    body = A.L[loop_start:loop_end]
    rep = check_seq(body + body)
    assert not rep, rep
    return A.L, NV, 102 if DIAG else 64
```

```python
from asmlib import *
from k1 import WS_O, WS_Z, WS_G, WS_BYTES
CH = 20480
K3_LDS = 7 * CH
def gen_k3():
    A = Asm()
    sWS, sWO, sTB, sOUT = 8, 12, 16, 20
    sW, sJ, sMT, sNT, sC, sT, sT2, sB, sZ, sWOo, sF, sO, sLW, sROLE = 24, 25, 26, 27, 28, 29, 30, 31, 32, 33, 34, 35, 36, 37
    ACC = 0
    vL, vZ, vWO, vO16, vG, vRZ, vRW0, vRW1, vRF, vOM = 64, 65, 66, 67, 68, 69, 70, 71, 72, 73
    vT = 74
    OF = 84
    FR = 168
    NV = 248
    A("s_cmp_ge_u32 s2, 224")
    A("s_cbranch_scc1 k3_end")
    ST = Stamps(A, 2); ST.begin()
    A(f"s_load_dwordx2 {sr(sWS,2)}, s[0:1], 72")
    A(f"s_load_dwordx2 {sr(sWO,2)}, s[0:1], 40")
    A(f"s_load_dwordx2 {sr(sOUT,2)}, s[0:1], 56")
    A(f"v_lshrrev_b32 v{vT}, 6, v0")
    A(f"v_and_b32 v{vL}, 63, v0")
    A(f"s_getpc_b64 {sr(sTB,2)}")
    A(f"s_add_u32 s{sTB}, s{sTB}, tab_inv@rel32@lo+4")
    A(f"s_addc_u32 s{sTB+1}, s{sTB+1}, tab_inv@rel32@hi+12")
    A(f"v_readfirstlane_b32 s{sW}, v{vT}")
    A(f"s_mov_b32 s{sTB+2}, 200704")
    A(f"s_mov_b32 s{sTB+3}, 0x20000")
    A(f"s_mov_b32 s{sWS+2}, {WS_BYTES}")
    A(f"s_mov_b32 s{sWS+3}, 0x20000")
    A(f"s_mov_b32 s{sWO+2}, 401408")
    A(f"s_mov_b32 s{sWO+3}, 0x20000")
    A(f"s_mov_b32 s{sOUT+2}, 1835008")
    A(f"s_mov_b32 s{sOUT+3}, 0x20000")
    A(f"s_lshr_b32 s{sJ}, s2, 3")
    A(f"s_and_b32 s{sT}, s{sJ}, 3")
    A(f"s_lshr_b32 s{sNT}, s{sJ}, 2")
    A(f"s_and_b32 s{sMT}, s2, 7")
    A(f"s_lshl_b32 s{sMT}, s{sMT}, 2")
    A(f"s_add_u32 s{sMT}, s{sMT}, s{sT}")
    A(f"s_lshl_b32 s{sT}, s{sT}, 1")
    A(f"s_add_u32 s{sC}, s{sT}, s{sNT}")
    A(f"s_cmp_ge_u32 s{sC}, 7")
    A(f"s_cselect_b32 s{sT}, 7, 0")
    A(f"s_sub_u32 s{sC}, s{sC}, s{sT}")
    A(f"s_and_b32 s{sB}, s{sW}, 1")
    A(f"s_lshl_b32 s{sT}, s{sMT}, 1")
    A(f"s_add_u32 s{sB}, s{sB}, s{sT}")
    A(f"s_lshr_b32 s{sROLE}, s{sW}, 1")
    A(f"s_lshl_b32 s{sT}, s{sC}, 5")
    A(f"s_and_b32 s{sT2}, s{sW}, 1")
    A(f"s_lshl_b32 s{sT2}, s{sT2}, 4")
    A(f"s_add_u32 s{sT}, s{sT}, s{sT2}")
    A(f"s_mul_i32 s{sT2}, s{sROLE}, 224")
    A(f"s_add_u32 s{sT}, s{sT}, s{sT2}")
    A(f"s_lshl_b32 s{sZ}, s{sT}, 12")
    A(f"s_lshl_b32 s{sT}, s{sMT}, 7")
    A(f"s_add_u32 s{sZ}, s{sZ}, s{sT}")
    A(f"s_add_u32 s{sZ}, s{sZ}, {WS_Z}")
    A(f"s_lshl_b32 s{sT}, s{sC}, 2")
    A(f"s_add_u32 s{sT}, s{sT}, s{sW}")
    A(f"s_mul_i32 s{sWOo}, s{sT}, {16*896}")
    A(f"s_lshl_b32 s{sT2}, s{sNT}, 6")
    A(f"s_add_u32 s{sWOo}, s{sWOo}, s{sT2}")
    A(f"s_lshl_b32 s{sF}, s{sT}, 10")
    A(f"s_mul_i32 s{sT2}, s{sNT}, 28672")
    A(f"s_add_u32 s{sF}, s{sF}, s{sT2}")
    A(f"s_lshl_b32 s{sT}, s{sC}, 2")
    A(f"s_add_u32 s{sT}, s{sT}, s{sROLE}")
    A(f"s_lshl_b32 s{sO}, s{sT}, 10")
    A(f"s_mul_i32 s{sT2}, s{sB}, 28672")
    A(f"s_add_u32 s{sO}, s{sO}, s{sT2}")
    A(f"s_add_u32 s{sO}, s{sO}, {WS_O}")
    A(f"s_lshl_b32 s{sLW}, s{sW}, 11")
    A(f"v_lshrrev_b32 v{vT}, 3, v{vL}")
    A(f"v_and_b32 v{vT+1}, 7, v{vL}")
    A(f"v_bfe_u32 v{vT+2}, v{vL}, 4, 1")
    A(f"v_lshlrev_b32 v{vT+2}, 2, v{vT+2}")
    A(f"v_xor_b32 v{vT+1}, v{vT+1}, v{vT+2}")
    A(f"v_lshlrev_b32 v{vZ}, 12, v{vT}")
    A(f"v_lshl_add_u32 v{vZ}, v{vT+1}, 4, v{vZ}")
    A(f"v_mul_u32_u24 v{vWO}, 896, v{vT}")
    A(f"v_lshrrev_b32 v{vT+2}, 2, v{vT+1}")
    A(f"v_mul_u32_u24 v{vT+2}, 448, v{vT+2}")
    A(f"v_and_b32 v{vT+1}, 3, v{vT+1}")
    A(f"v_lshl_add_u32 v{vT+2}, v{vT+1}, 4, v{vT+2}")
    A(f"v_add_u32 v{vWO}, v{vWO}, v{vT+2}")
    A(f"v_lshlrev_b32 v{vO16}, 4, v{vL}")
    A(f"s_cmp_eq_u32 s{sROLE}, 0")
    A(f"s_cselect_b32 s{sT}, 0x40000000, 0")
    A(f"v_add_u32 v{vOM}, s{sT}, v{vO16}")
    A(f"v_and_b32 v{vT+3}, 31, v{vL}")
    A(f"v_lshlrev_b32 v{vT+4}, 2, v{vT+3}")
    A(f"s_lshl_b32 s{sT}, s{sB}, 7")
    A(f"s_add_u32 s{sT}, s{sT}, {WS_G}")
    A("s_waitcnt lgkmcnt(0)")
    ST.at(0)
    A(f"buffer_load_dword v{vG}, v{vT+4}, {sr(sWS,4)}, s{sT} offen")
    for i in range(7):
        A(f"s_add_u32 m0, s{sLW}, {CH*i}")
        A(f"s_add_u32 s{sT}, s{sZ}, {8*4096-1024}")
        A(f"buffer_load_dwordx4 v{vZ}, {sr(sWS,4)}, s{sZ} offen lds")
        A(f"buffer_load_dwordx4 v{vZ}, {sr(sWS,4)}, s{sT} offen offset:1024 lds")
        A(f"s_add_u32 m0, s{sLW}, {CH*i+8192}")
        A(f"s_add_u32 s{sT}, s{sWOo}, {8*896-1024}")
        A(f"buffer_load_dwordx4 v{vWO}, {sr(sWO,4)}, s{sWOo} offen lds")
        A(f"buffer_load_dwordx4 v{vWO}, {sr(sWO,4)}, s{sT} offen offset:1024 lds")
        A(f"s_lshr_b32 s{sT}, s{sLW}, 1")
        A(f"s_add_u32 m0, s{sT}, {CH*i+16384}")
        A("s_nop 0")
        A(f"buffer_load_dwordx4 v{vO16}, {sr(sTB,4)}, s{sF} offen lds")
        A(f"buffer_load_dwordx4 {vr(OF+12*i,4)}, v{vO16}, {sr(sWS,4)}, s{sO} offen")
        A(f"buffer_load_dwordx4 {vr(OF+12*i+4,4)}, v{vOM}, {sr(sWS,4)}, s{sO} offen offset:1024")
        A(f"buffer_load_dwordx4 {vr(OF+12*i+8,4)}, v{vOM}, {sr(sWS,4)}, s{sO} offen offset:2048")
        if i < 6:
            A(f"s_add_u32 s{sC}, s{sC}, 1")
            A(f"s_cmp_eq_u32 s{sC}, 7")
            A(f"s_cselect_b32 s{sC}, 0, s{sC}")
            A(f"s_cselect_b32 s{sT}, -6, 1")
            A(f"s_lshl_b32 s{sT2}, s{sT}, 17")
            A(f"s_add_u32 s{sZ}, s{sZ}, s{sT2}")
            A(f"s_mul_i32 s{sT2}, s{sT}, {64*896}")
            A(f"s_add_u32 s{sWOo}, s{sWOo}, s{sT2}")
            A(f"s_lshl_b32 s{sT2}, s{sT}, 12")
            A(f"s_add_u32 s{sF}, s{sF}, s{sT2}")
            A(f"s_add_u32 s{sO}, s{sO}, s{sT2}")
    ST.at(1)
    A(f"v_lshrrev_b32 v{vT}, 5, v{vL}")
    A(f"v_bfe_u32 v{vT+1}, v{vL}, 2, 2")
    A(f"v_lshl_add_u32 v{vT}, v{vT}, 3, v{vT+1}")
    A(f"v_lshlrev_b32 v{vT}, 7, v{vT}")
    A(f"v_bfe_u32 v{vT+2}, v{vL}, 4, 1")
    A(f"v_lshl_add_u32 v{vT}, v{vT+2}, 5, v{vT}")
    A(f"v_and_b32 v{vT+2}, 3, v{vL}")
    A(f"v_lshl_add_u32 v{vT}, v{vT+2}, 3, v{vT}")
    A(f"v_lshrrev_b32 v{vT+1}, 1, v{vT+1}")
    A(f"v_lshl_add_u32 v{vRW0}, v{vT+1}, 6, v{vT}")
    A(f"v_xor_b32 v{vRW1}, 64, v{vRW0}")
    A(f"s_and_b32 s{sT}, s{sW}, 1")
    A(f"s_lshl_b32 s{sT}, s{sT}, 6")
    A(f"v_xor_b32 v{vRZ}, s{sT}, v{vRW0}")
    A(f"v_mov_b32 v{vRF}, v{vO16}")
    A(f"v_mul_u32_u24 v{vT+5}, 57344, v{vT+3}")
    A(f"v_lshrrev_b32 v{vT+2}, 5, v{vL}")
    A(f"v_lshl_add_u32 v{vT+5}, v{vT+2}, 4, v{vT+5}")
    A(f"s_mul_i32 s{sZ}, s{sB}, 896")
    A(f"s_mul_i32 s{sT}, s{sROLE}, 448")
    A(f"s_add_u32 s{sZ}, s{sZ}, s{sT}")
    A(f"s_lshl_b32 s{sT}, s{sNT}, 6")
    A(f"s_add_u32 s{sZ}, s{sZ}, s{sT}")
    mf = lambda d, a, b, first=False: A(f"v_mfma_f32_32x32x16_bf16 {vr(d,16)}, {a}, {b}, {'0' if first else vr(d,16)}")
    def advance(i, regs):
        if i in (3, 6):
            for r in regs: A(f"v_add_u32 v{r}, {hex(3*CH)}, v{r}")
    def trd(dst, addr, off):
        A(f"ds_read_b64_tr_b16 {vr(dst,2)}, v{addr} offset:{off}")
        A(f"ds_read_b64_tr_b16 {vr(dst+2,2)}, v{addr} offset:{off+512}")
    A(f"s_cmp_lg_u32 s{sROLE}, 0")
    A("s_cbranch_scc1 k3_role1")
    def m0(i):
        f = FR + 40 * (i & 1)
        for s in range(4): mf(ACC + 16 * (s >> 1), vr(f+16+4*s,4), vr(f+4*s,4), i == 0 and (s & 1) == 0)
        for n in range(2): mf(ACC + 32 + 16 * n, vr(f+32+4*n,4), vr(OF+12*i,4), i == 0)
    for i in range(7):
        advance(i, (vRZ, vRW0, vRW1, vRF))
        base = CH * (i % 3)
        f = FR + 40 * (i & 1)
        A(f"s_waitcnt vmcnt({8*(6-i)})")
        A("s_barrier")
        ST.at(2 + i)
        for s in range(4): trd(f + 4*s, vRZ, base + 2048*s)
        for s in range(4): A(f"ds_read_b128 {vr(f+16+4*s,4)}, v{vRF} offset:{base+16384+1024*s}")
        trd(f + 32, vRW0, base + 8192); trd(f + 36, vRW1, base + 8192)
        if i > 0: m0(i - 1)
        A("s_waitcnt lgkmcnt(0)")
    m0(6)
    A(f"v_sub_f32 v{vT}, 1.0, v{vG}")
    A("s_nop 7")
    for r in range(16):
        A(f"v_add_f32 v{FR+r}, v{ACC+r}, v{ACC+16+r}")
        A(f"v_sub_f32 v{ACC+16+r}, v{ACC+r}, v{ACC+16+r}")
    for r in range(16):
        A(f"v_mul_f32 v{ACC+48+r}, v{vT}, v{ACC+48+r}")
        A(f"v_fma_f32 v{ACC+48+r}, v{vG}, v{ACC+16+r}, v{ACC+48+r}")
    A("s_barrier")
    A(f"s_lshl_b32 s{sT}, s{sW}, 12")
    A(f"v_add_u32 v{vT+1}, s{sT}, v{vO16}")
    for g in range(4): A(f"ds_write_b128 v{vT+1}, {vr(ACC+48+4*g,4)} offset:{1024*g}")
    for r in range(16):
        A(f"v_mul_f32 v{ACC+32+r}, v{vT}, v{ACC+32+r}")
        A(f"v_fma_f32 v{ACC+r}, v{vG}, v{FR+r}, v{ACC+32+r}")
    A("s_branch k3_fin")
    A("k3_role1:")
    def m1(i):
        f = FR + 40 * (i & 1)
        for s in range(3):
            for n in range(2): mf(ACC + 32 + 16 * n, vr(f+8*s+4*n,4), vr(OF+12*i+4*s,4), i == 0 and s == 0)
    for i in range(7):
        advance(i, (vRW0, vRW1))
        base = CH * (i % 3)
        f = FR + 40 * (i & 1)
        A(f"s_waitcnt vmcnt({8*(6-i)})")
        A("s_barrier")
        ST.at(2 + i)
        for s in range(3):
            trd(f + 8*s, vRW0, base + 8192 + 2048*(s+1)); trd(f + 8*s + 4, vRW1, base + 8192 + 2048*(s+1))
        if i > 0: m1(i - 1)
        A("s_waitcnt lgkmcnt(0)")
    m1(6)
    A(f"v_sub_f32 v{vT}, 1.0, v{vG}")
    A("s_nop 7")
    for r in range(16): A(f"v_mul_f32 v{ACC+32+r}, v{vT}, v{ACC+32+r}")
    A("s_barrier")
    A(f"s_lshl_b32 s{sT}, s{sW}, 12")
    A(f"v_add_u32 v{vT+1}, s{sT}, v{vO16}")
    for g in range(4): A(f"ds_write_b128 v{vT+1}, {vr(ACC+32+4*g,4)} offset:{1024*g}")
    for r in range(16): A(f"v_mul_f32 v{ACC+r}, v{vT}, v{ACC+48+r}")
    A("k3_fin:")
    ST.at(9)
    A(f"v_xor_b32 v{vT+1}, 8192, v{vT+1}")
    A("s_waitcnt lgkmcnt(0)")
    A("s_barrier")
    for g in range(4): A(f"ds_read_b128 {vr(ACC+16+4*g,4)}, v{vT+1} offset:{1024*g}")
    A("s_waitcnt lgkmcnt(0)")
    for r in range(16): A(f"v_add_f32 v{ACC+r}, v{ACC+r}, v{ACC+16+r}")
    for r in range(8): A(f"v_cvt_pk_bf16_f32 v{ACC+32+r}, v{ACC+2*r}, v{ACC+2*r+1}")
    for t in range(2):
        A(f"v_permlane32_swap_b32 v{ACC+32+4*t}, v{ACC+32+4*t+2}")
        A(f"v_permlane32_swap_b32 v{ACC+32+4*t+1}, v{ACC+32+4*t+3}")
    for t in range(2):
        A(f"buffer_store_dwordx4 {vr(ACC+32+4*t,4)}, v{vT+5}, {sr(sOUT,4)}, s{sZ} offen offset:{32*t}")
    ST.dump(sWS, sW, 4, vT+6)
    A("k3_end:")
    A("s_endpgm")
    return A.L, NV, 102 if DIAG else 64
```

```python
import sys, numpy as np
from asmlib import *
from k1 import gen_k1
from k2 import gen_k2, K2_LDS, TS_BYTES
from k3 import gen_k3, K3_LDS
NAME = "gated_mix__spectral_gfnet__softmax_full_mha__prompt"
def bf16(x):
    u = np.asarray(x, dtype=np.float32).view(np.uint32).astype(np.uint64)
    return ((u + 0x7fff + ((u >> 16) & 1)) >> 16).astype(np.uint16)
def perm(u, h, j): return 16 * u + 8 * (j >> 2) + 4 * h + (j & 3)
def cs(num, den):
    num = num % den
    a = 2 * np.pi * num / den
    c, s = np.cos(a), np.sin(a)
    c = np.where(np.abs(c) < 1e-12, 0.0, c); s = np.where(np.abs(s) < 1e-12, 0.0, s)
    return c, s
def small_tables():
    l = np.arange(64); m = l & 31; h = l >> 5
    out = []
    F = np.zeros((3, 2, 4, 64, 8))
    for mt in range(2):
        for u in range(4):
            for j in range(8):
                c, s = cs((32 * mt + m) * perm(u, h, j), 64)
                F[0, mt, u, :, j] = c; F[1, mt, u, :, j] = s; F[2, mt, u, :, j] = -s
    out.append(bf16(F).tobytes())
    G = np.zeros((3, 2, 64, 8))
    for t in range(2):
        for j in range(8):
            c, s = cs(m * perm(t, h, j), 32)
            G[0, t, :, j] = c; G[1, t, :, j] = s; G[2, t, :, j] = -s
    out.append(bf16(G).tobytes())
    T = np.zeros((2, 2, 4, 64, 4), np.float32)
    for nt in range(2):
        for g in range(4):
            for i in range(4):
                c, s = cs((32 * nt + m) * (8 * g + 4 * h + i), 2048)
                T[nt, 0, g, :, i] = c; T[nt, 1, g, :, i] = s
    out.append(T.tobytes())
    b = b"".join(out)
    assert len(b) == TS_BYTES
    q = np.frombuffer(b, dtype=np.uint64)
    return [".quad " + ",".join(hex(int(v)) for v in q[i:i+8]) for i in range(0, len(q), 8)]
def big_tables():
    L = []
    c448, _ = cs(np.arange(448), 448)
    for i, v in enumerate(bf16(c448)): L.append(f".set C{i},{int(v)}")
    SD = 2048 * 448
    for i, v in enumerate(bf16(2 * c448 / SD)): L.append(f".set D{i},{int(v)}")
    L.append(f".set D448,{int(bf16([1/SD])[0])}"); L.append(f".set D449,{int(bf16([-1/SD])[0])}")
    for kr in range(448):
        if kr <= 112: k2, ph = 2 * kr, 0
        elif kr < 224: k2, ph = 2 * (kr - 112), 112
        elif kr < 336: k2, ph = 2 * (kr - 224) + 1, 0
        else: k2, ph = 2 * (kr - 336) + 1, 112
        md, ad = 448, 0
        if kr == 0: ad = 448
        if kr == 112: k2, md, ad = 1, 2, 448
        L.append(f".set KA{kr},{k2}\n.set KB{kr},{ph}\n.set KC{kr},{md}\n.set KD{kr},{ad}")
    L.append(r""".altmacro
.macro FW4 a,b,c,d
.short C\a,C\b,C\c,C\d
.endm
.macro LK i
.short D\i
.endm
.macro IV1 d,r
LK %((KA\r*\d+KB\r)%KC\r+KD\r)
.endm
.p2align 8
tab_fwd:
.set td,0
.rept 448
.set tg,0
.rept 14
.set tk,(tg>>1)*32
.set tp,(tg&1)*112
.rept 8
FW4 %((tk*td+tp)%448),%(((tk+1)*td+tp)%448),%(((tk+2)*td+tp)%448),%(((tk+3)*td+tp)%448)
.set tk,tk+4
.endr
.set tg,tg+1
.endr
FW4 %((224*td)%448),112,112,112
.fill 60,2,0
.set td,td+1
.endr
.p2align 8
tab_inv:
.set tn,0
.rept 7
.set tc,0
.rept 28
.set tr,(tc>>2)*32+(tc&1)*16+((tc>>1)&1)*224
.set tl,0
.rept 64
.set tj,0
.rept 8
IV1 %(tn*32+(tl&31)),%(tr+(tl>>5)*8+tj)
.set tj,tj+1
.endr
.set tl,tl+1
.endr
.set tc,tc+1
.endr
.set tn,tn+1
.endr
.noaltmacro""")
    return L
def desc(name, nv, ns):
    return f""".p2align 6
.amdhsa_kernel {name}
  .amdhsa_next_free_vgpr {nv}
  .amdhsa_next_free_sgpr {ns}
  .amdhsa_accum_offset {(nv+3)//4*4}
  .amdhsa_group_segment_fixed_size 0
  .amdhsa_kernarg_size 80
  .amdhsa_user_sgpr_count 2
  .amdhsa_user_sgpr_kernarg_segment_ptr 1
  .amdhsa_system_sgpr_workgroup_id_x 1
.end_amdhsa_kernel"""
import os
def main(path, which=tuple(int(c) for c in os.environ.get('WHICH', '123'))):
    ks = [("k1_kernel", gen_k1, 256, 256, 163840), ("k2_kernel", gen_k2, 256, 320, K2_LDS), ("k3_kernel", gen_k3, 224, 256, K3_LDS)]
    o = ["; gated mix of a GFNet spectral filter and 16-head softmax attention (3 launches; generated by gen/gen.py)"]
    for i, (n, g, grid, blk, lds) in enumerate(ks):
        if i + 1 in which: o.append(f"; @launch kernel={n} grid=({grid},1,1) block=({blk},1,1) lds={lds}")
    o.append('.amdgcn_target "amdgcn-amd-amdhsa--gfx950"')
    o.append(".text")
    ds = []
    for n, g, grid, blk, lds in ks:
        L, nv, ns = g()
        rep = []
        x = os.environ.get("X1", "")
        if n == "k1_kernel":
            if x == "nost": L = [l for l in L if "buffer_store_dwordx4" not in l]
            if x == "nt": L = [l + " nt" if "buffer_store_dwordx4" in l else l for l in L]
            if x == "sc1": L = [l + " sc1" if "buffer_store_dwordx4" in l else l for l in L]
            if x == "sc01": L = [l + " sc0 sc1" if "buffer_store_dwordx4" in l else l for l in L]
            if x == "nopf": L = [l for l in L if "s[56:57]" not in l or "global_load" not in l]
        L = fix_hazards(L, rep)
        print(n, "lines", len(L), "nops inserted", len(rep), file=sys.stderr)
        if "-v" in sys.argv:
            for r in rep: print("   ", r, file=sys.stderr)
        o += [f".globl {n}", ".p2align 8", f".type {n},@function", f"{n}:"] + L
        ds.append(desc(n, nv, ns))
    o.append(".fill 2048,4,0xbf810000")
    o.append('.section .rodata,"a"')
    o += ds
    o.append(".p2align 8"); o.append("tab_small:"); o += small_tables()
    o.append(".fill 2048,1,0")
    o += big_tables()
    open(path, "w").write("\n".join(o) + "\n")
if __name__ == "__main__":
    main(sys.argv[1] if len(sys.argv) > 1 and not sys.argv[1].startswith("-") else f"cdna_kernels/{NAME}.s")
```

```python
from asmlib import *
import math, os
WS_Q, WS_K, WS_V, WS_Y, WS_W, WS_O, WS_Z, WS_G = 0x0, 0x200000, 0x400000, 0x600000, 0x840000, 0xA80000, 0xC40000, 0xE40000
YB, WP, ZP = 32896, 4224, 4224
WS_BYTES = 0x1000000
import struct
def f2u(x): return struct.unpack("<I", struct.pack("<f", x))[0]
QSCALE = f2u(28 ** -0.5 * math.log2(math.e))

STF = os.environ.get('STF', 'sc1')
def gen_k1():
    A = Asm()
    sX, sB, sWS, sWR, sWI = 8, 12, 16, 20, 24
    sPC = 28
    sW, sMT, sNT, sC, sCA, sCB, sPITCH, sP4, sT, sT2, sBB = 30, 31, 32, 33, 34, 35, 36, 37, 38, 39, 40
    sGS, sLA, sLB, sP64, sP384, sJ = 41, 42, 43, 44, 45, 46
    sW0 = 48
    sWST = 52
    sW8 = 47
    sGW = 60
    sC0 = 53
    vGW, vGA = 76, 84
    ACC = 0
    vL, vA0, vA1, vB = 64, 65, 66, 67
    vRA, vRB = 68, 72
    FA, FB = 76, 84
    MC, MS, MN = 116, 124, 132
    WL = 140
    vT = 156
    vWO = 172
    vST = 173
    PK = 176
    NV = 209

    A("s_cmp_ge_u32 s2, 256")
    A("s_cbranch_scc1 k1_end")
    ST = Stamps(A, 0); ST.begin()
    A(f"s_load_dwordx2 {sr(sX,2)}, s[0:1], 0")
    A(f"s_load_dwordx2 {sr(sB,2)}, s[0:1], 32")
    A(f"s_load_dwordx2 {sr(sWS,2)}, s[0:1], 72")
    A(f"s_load_dwordx2 {sr(sWR,2)}, s[0:1], 8")
    A(f"s_load_dwordx2 {sr(sWI,2)}, s[0:1], 16")
    A(f"s_load_dwordx2 {sr(sGW,2)}, s[0:1], 48")
    A(f"s_getpc_b64 {sr(sPC,2)}")
    A("k1_pc:")
    A(f"v_and_b32 v{vL}, 63, v0")
    A(f"v_lshrrev_b32 v{vT}, 6, v0")
    A(f"v_mul_u32_u24 v{vT+1}, 14, v{vT}")
    A(f"v_add_lshl_u32 v{vT+1}, v{vT+1}, v{vL}, 7")
    A("s_mov_b64 exec, 0x3fff")
    A(f"global_load_dword v208, v{vT+1}, {sr(sPC,2)}")
    A("s_mov_b64 exec, -1")
    A(f"v_readfirstlane_b32 s{sW8}, v{vT}")
    A(f"s_lshr_b32 s{sJ}, s2, 3")
    A(f"s_and_b32 s{sT}, s{sJ}, 3")
    A(f"s_lshr_b32 s{sT2}, s{sJ}, 2")
    A(f"s_bfe_u32 s{sMT}, s2, 0x20001")
    A(f"s_lshl_b32 s{sMT}, s{sMT}, 2")
    A(f"s_add_u32 s{sMT}, s{sMT}, s{sT}")
    A(f"s_and_b32 s{sNT}, s2, 1")
    A(f"s_lshl_b32 s{sNT}, s{sNT}, 3")
    A(f"s_add_u32 s{sNT}, s{sNT}, s{sT2}")
    A(f"s_lshl_b32 s{sT}, s{sT}, 1")
    A(f"s_add_u32 s{sC}, s{sT}, s{sT2}")
    A(f"s_cmp_ge_u32 s{sC}, 7")
    A(f"s_cselect_b32 s{sT}, 7, 0")
    A(f"s_sub_u32 s{sC}, s{sC}, s{sT}")
    A(f"s_and_b32 s{sW}, s{sW8}, 3")
    A(f"s_lshl_b32 s{sBB}, s{sMT}, 2")
    A(f"s_add_u32 s{sBB}, s{sBB}, s{sW}")
    A(f"s_movk_i32 s{sPITCH}, 1024")
    A(f"s_cmp_ge_u32 s{sNT}, 12")
    A(f"s_cselect_b32 s{sPITCH}, s{sPITCH}, 2688")
    A(f"s_cselect_b32 s{sGS}, 64, 56")
    A(f"s_lshl_b32 s{sLA}, s{sW}, 12")
    A(f"s_cmp_lt_u32 s{sW8}, 4")
    A("s_cbranch_scc1 k1_comp")
    A(f"s_mul_i32 s{sT}, s{sNT}, 224")
    A(f"s_lshl_b32 s{sT2}, s{sNT}, 8")
    A(f"s_sub_u32 s{sT2}, s{sT2}, 3072")
    A(f"s_cmp_ge_u32 s{sNT}, 12")
    A(f"s_cselect_b32 s{sCB}, s{sT2}, s{sT}")
    A(f"s_lshl_b32 s{sP4}, s{sPITCH}, 2")
    A(f"s_sub_u32 s{sP4}, s{sP4}, 1024")
    A(f"s_lshl_b32 s{sP64}, s{sPITCH}, 6")
    A(f"s_mul_i32 s{sP384}, s{sP64}, 7")
    A(f"s_lshl_b32 s{sT}, s{sC}, 2")
    A(f"s_add_u32 s{sT}, s{sT}, s{sW}")
    A(f"s_lshl_b32 s{sT}, s{sT}, 4")
    A(f"s_mul_i32 s{sT}, s{sT}, s{sPITCH}")
    A(f"s_add_u32 s{sCB}, s{sCB}, s{sT}")
    A(f"s_mul_i32 s{sCA}, s{sBB}, 896")
    A(f"s_lshl_b32 s{sT}, s{sC}, 7")
    A(f"s_add_u32 s{sCA}, s{sCA}, s{sT}")
    A(f"s_add_u32 s{sLB}, s{sLA}, 16384")
    A(f"v_lshrrev_b32 v{vT}, 3, v{vL}")
    A(f"v_mul_u32_u24 v{vA0}, 57344, v{vT}")
    A(f"v_lshrrev_b32 v{vT+1}, 4, v{vL}")
    A(f"v_and_b32 v{vT+3}, 7, v{vL}")
    A(f"v_xor_b32 v{vT+3}, v{vT+3}, v{vT+1}")
    A(f"v_lshl_add_u32 v{vA0}, v{vT+3}, 4, v{vA0}")
    A(f"v_xor_b32 v{vA1}, 64, v{vA0}")
    A(f"v_mul_u32_u24 v{vB}, s{sPITCH}, v{vT+1}")
    A(f"v_bfe_u32 v{vT+3}, v{vL}, 2, 2")
    A(f"v_xor_b32 v{vT+3}, v{vT+3}, v{vT+1}")
    A(f"v_lshl_add_u32 v{vB}, v{vT+3}, 6, v{vB}")
    A(f"v_and_b32 v{vT+3}, 3, v{vL}")
    A(f"v_lshl_add_u32 v{vB}, v{vT+3}, 4, v{vB}")
    A(f"s_getpc_b64 {sr(56,2)}")
    A("s_add_u32 s56, s56, tab_fwd@rel32@lo+4")
    A("s_addc_u32 s57, s57, tab_fwd@rel32@hi+12")
    A(f"s_mov_b32 s{sX+2}, 1835008")
    A(f"s_mov_b32 s{sX+3}, 0x20000")
    A(f"s_mov_b32 s{sB+2}, 458752")
    A(f"s_mov_b32 s{sB+3}, 0x20000")
    A("s_waitcnt lgkmcnt(0)")
    A(f"s_cmp_ge_u32 s{sNT}, 12")
    A(f"s_cselect_b32 s{sB}, s56, s{sB}")
    A(f"s_cselect_b32 s{sB+1}, s57, s{sB+1}")
    A(f"s_cselect_b32 s{sB+2}, s{sB+2}, 1204224")

    def issue_chunk(slot):
        A(f"s_add_u32 m0, s{sLA}, {32768*slot}")
        for i in range(4):
            if i == 0: so = sCA
            else:
                A(f"s_add_u32 s{sT}, s{sCA}, {i*457728}"); so = sT
            if os.environ.get("X1") != "noA": A(f"buffer_load_dwordx4 v{vA0 if i%2==0 else vA1}, {sr(sX,4)}, s{so} offen offset:{1024*i} lds")
        A(f"s_add_u32 m0, s{sLB}, {32768*slot}")
        for i in range(4):
            if i == 0: so = sCB
            elif i == 1: A(f"s_add_u32 s{sT}, s{sCB}, s{sP4}"); so = sT
            else: A(f"s_add_u32 s{sT}, s{sT}, s{sP4}"); so = sT
            if os.environ.get("X1") != "noB": A(f"buffer_load_dwordx4 v{vB}, {sr(sB,4)}, s{so} offen offset:{1024*i} lds")
        A(f"s_add_u32 s{sCA}, s{sCA}, 128")
        A(f"s_add_u32 s{sCB}, s{sCB}, s{sP64}")
        A(f"s_add_u32 s{sC}, s{sC}, 1")
        A(f"s_cmp_eq_u32 s{sC}, 7")
        A(f"s_cselect_b32 s{sT}, 896, 0")
        A(f"s_cselect_b32 s{sT2}, s{sP384}, 0")
        A(f"s_cselect_b32 s{sC}, 0, s{sC}")
        A(f"s_sub_u32 s{sCA}, s{sCA}, s{sT}")
        A(f"s_sub_u32 s{sCB}, s{sCB}, s{sT2}")
    A(f"v_bfe_u32 v{vT+3}, v{vL}, 2, 2")
    A(f"v_xor_b32 v{vT+3}, v{vT+3}, v{vT+1}")
    A(f"v_lshlrev_b32 v{vT+3}, 2, v{vT+3}")
    A(f"v_and_or_b32 v{vT+3}, v{vL}, 3, v{vT+3}")
    A(f"s_cmp_ge_u32 s{sNT}, 12")
    A(f"s_cselect_b32 s{sT}, 16, 14")
    A(f"v_cmp_le_u32 vcc, s{sT}, v{vT+3}")
    A(f"v_mov_b32 v{vT+4}, 0x40000000")
    A(f"s_mov_b32 s{sGW+2}, 896")
    A(f"s_mov_b32 s{sGW+3}, 0x20000")
    A(f"v_cndmask_b32 v{vB}, v{vB}, v{vT+4}, vcc")
    A(f"s_cmp_lg_u32 s{sNT}, 15")
    A("s_cbranch_scc1 k1_nog")
    A(f"v_and_b32 v{vT+4}, 15, v{vL}")
    A(f"v_lshlrev_b32 v{vT+5}, 1, v{vT+4}")
    A(f"s_lshl_b32 s{sT}, s{sW}, 5")
    A(f"s_lshl_b32 s{sT2}, s{sC}, 7")
    A(f"s_add_u32 s{sT}, s{sT}, s{sT2}")
    for i in range(7):
        A(f"buffer_load_ushort v{vGW+i}, v{vT+5}, {sr(sGW,4)}, s{sT} offen")
        if i < 6:
            A(f"s_add_u32 s{sT}, s{sT}, 128")
            A(f"s_cmp_ge_u32 s{sT}, 896")
            A(f"s_cselect_b32 s{sT2}, 896, 0")
            A(f"s_sub_u32 s{sT}, s{sT}, s{sT2}")
    A(f"v_and_b32 v{vT+5}, 3, v{vL}")
    A(f"v_xor_b32 v{vT+5}, 3, v{vT+5}")
    A(f"v_lshlrev_b32 v{vT+5}, 6, v{vT+5}")
    A(f"v_lshl_add_u32 v{vGA}, v{vT+4}, 8, v{vT+5}")
    A(f"v_add_u32 v{vGA}, s{sLB}, v{vGA}")
    A(f"v_add_u32 v{vGA+1}, 0x10000, v{vGA}")
    A("k1_nog:")
    ST.at(0)
    issue_chunk(0); issue_chunk(1)
    ST.at(1)
    for r in (sWS, sWR, sWI):
        A(f"s_mov_b32 s{r+2}, {WS_BYTES if r == sWS else 921600}")
        A(f"s_mov_b32 s{r+3}, 0x20000")
    A(f"s_lshr_b32 s{sT}, s2, 2")
    A(f"s_and_b32 s{sT2}, s{sT}, 3")
    A(f"s_lshr_b32 s{sT}, s{sT}, 2")
    A(f"s_lshl_b32 s{sT2}, s{sT2}, 3")
    A(f"s_lshl_b32 s{sW0}, s{sW}, 1")
    A(f"s_add_u32 s{sT2}, s{sT2}, s{sW0}")
    A(f"s_lshl_b32 s{sW0}, s{sT}, 7")
    A(f"s_add_u32 s{sW0}, s{sW0}, s{sT2}")
    A(f"s_mul_i32 s{sW0}, s{sW0}, 450")
    for i in range(1, 4): A(f"s_add_u32 s{sW0+i}, s{sW0}, {14400*i}")
    A(f"s_lshl_b32 s{sWST}, s{sT}, 5")
    A(f"s_add_u32 s{sWST}, s{sWST}, s{sT2}")
    A(f"s_mul_i32 s{sWST}, s{sWST}, {WP}")
    A(f"s_and_b32 s{sT}, s2, 3")
    A(f"s_lshl_b32 s{sT2}, s{sT}, 10")
    A(f"s_add_u32 s{sWST}, s{sWST}, s{sT2}")
    A(f"s_add_u32 s{sWST}, s{sWST}, {WS_W}")
    A(f"s_lshl_b32 s{sT}, s{sT}, 7")
    A(f"v_lshl_add_u32 v{vWO}, v{vL}, 1, s{sT}")
    A(f"v_lshlrev_b32 v{vST}, 4, v{vL}")
    def wloads(kk):
        for p, srd in enumerate((sWR, sWI)):
            for i in range(4):
                A(f"buffer_load_ushort v{WL+8*kk+4*p+i}, v{vWO}, {sr(srd,4)}, s{sW0+i} offen offset:{450*kk}")
    for i in range(7):
        A(f"s_waitcnt vmcnt({8 if i < 6 else 16})")
        A(f"s_cmp_lg_u32 s{sNT}, 15")
        A(f"s_cbranch_scc1 k1_ng{i}")
        A(f"ds_write_b16 v{vGA + ((i % 4) >> 1)}, v{vGW+i} offset:{32768*(i&1)}")
        A("s_waitcnt lgkmcnt(0)")
        A(f"k1_ng{i}:")
        A("s_barrier")
        ST.at(2 + i)
        if i + 2 <= 6: issue_chunk((i + 2) % 4)
        if i == 5: wloads(0); wloads(1)
    A("s_waitcnt vmcnt(0)")
    for kk in range(2):
        for p in range(4):
            A(f"v_lshl_or_b32 v{WL+8*kk+p}, v{WL+8*kk+2*p+1}, 16, v{WL+8*kk+2*p}")
    for kk in range(2):
        if kk: A(f"s_add_u32 s{sWST}, s{sWST}, {WP}")
        A(f"buffer_store_dwordx4 {vr(WL+8*kk,4)}, v{vST}, {sr(sWS,4)}, s{sWST} offen {STF}")
    A("s_branch k1_pf")
    A("k1_comp:")
    A(f"s_mov_b32 s{sWS+2}, {WS_BYTES}")
    A(f"s_mov_b32 s{sWS+3}, 0x20000")
    A(f"v_lshlrev_b32 v{vST}, 4, v{vL}")
    A(f"v_and_b32 v{vT}, 31, v{vL}")
    A(f"v_lshrrev_b32 v{vT+1}, 5, v{vL}")
    A(f"v_bfe_u32 v{vT+2}, v{vL}, 1, 3")
    A(f"v_xor_b32 v{vT+2}, v{vT+2}, v{vT+1}")
    A(f"v_lshlrev_b32 v{vT+2}, 4, v{vT+2}")
    A(f"v_lshl_add_u32 v{vT+2}, v{vT}, 7, v{vT+2}")
    A(f"v_add_u32 v{vRA}, s{sLA}, v{vT+2}")
    for u in range(1, 4): A(f"v_xor_b32 v{vRA+u}, {32*u}, v{vRA}")
    A(f"v_bfe_u32 v{vT+2}, v{vL}, 2, 2")
    A(f"v_lshl_add_u32 v{vT+3}, v{vT+1}, 3, v{vT+2}")
    A(f"v_lshlrev_b32 v{vT+3}, 8, v{vT+3}")
    A(f"v_add_u32 v{vT+3}, 16384, v{vT+3}")
    A(f"v_bfe_u32 v{vT+4}, v{vL}, 4, 1")
    A(f"v_lshlrev_b32 v{vT+4}, 5, v{vT+4}")
    A(f"v_and_b32 v{vT+5}, 3, v{vL}")
    A(f"v_lshl_add_u32 v{vT+4}, v{vT+5}, 3, v{vT+4}")
    A(f"v_lshlrev_b32 v{vT+2}, 6, v{vT+2}")
    for g in range(4):
        A(f"v_xor_b32 v{vT+5}, v{vT+4}, v{vT+2}")
        A(f"v_add_u32 v{vRB+g}, v{vT+5}, v{vT+3}")
        if g < 3: A(f"v_add_u32 v{vT+4}, s{sGS}, v{vT+4}")
    A(f"s_cmp_lt_u32 s{sNT}, 12")
    A("s_cbranch_scc1 k1_nom")
    A(f"v_lshl_add_u32 v{vT+2}, v{vT+1}, 8, s{sBB}")
    A(f"v_mul_u32_u24 v{vT+2}, v{vT+2}, v{vT}")
    A(f"v_cvt_f32_u32 v{vT+2}, v{vT+2}")
    A(f"v_mul_f32 v{vT+2}, {hex(f2u(1/2048))}, v{vT+2}")
    A(f"v_cvt_f32_u32 v{vT+3}, v{vT}")
    A(f"v_mul_f32 v{vT+3}, {hex(f2u(1/32))}, v{vT+3}")
    for t in range(2):
        for jp in range(4):
            for e in range(2):
                j = 2 * jp + e
                n = 16 * t + 8 * (j >> 2) + (j & 3)
                A(f"v_fmamk_f32 v{vT+4+e}, v{vT+3}, {hex(f2u(float(n)))}, v{vT+2}")
                A(f"v_fract_f32 v{vT+4+e}, v{vT+4+e}")
            A(f"v_cos_f32 v{vT+6}, v{vT+4}")
            A(f"v_cos_f32 v{vT+7}, v{vT+5}")
            A(f"v_sin_f32 v{vT+8}, v{vT+4}")
            A(f"v_sin_f32 v{vT+9}, v{vT+5}")
            A(f"v_cvt_pk_bf16_f32 v{MC+4*t+jp}, v{vT+6}, v{vT+7}")
            A(f"v_cvt_pk_bf16_f32 v{MS+4*t+jp}, v{vT+8}, v{vT+9}")
            A(f"v_cvt_pk_bf16_f32 v{MN+4*t+jp}, -v{vT+8}, -v{vT+9}")
    A("k1_nom:")

    def rdA(buf, slot, u):
        A(f"ds_read_b128 {vr(FA+4*buf,4)}, v{vRA+u} offset:{32768*(slot&1)}")
    def rdB(buf, slot, u, g):
        off = 32768 * (slot & 1) + 4096 * u
        A(f"ds_read_b64_tr_b16 {vr(FB+16*buf+4*g,2)}, v{vRB+g} offset:{off}")
        A(f"ds_read_b64_tr_b16 {vr(FB+16*buf+4*g+2,2)}, v{vRB+g} offset:{off+1024}")
    def mainloop(swap):
        A("s_waitcnt lgkmcnt(0)")
        A("s_barrier")
        ST.at(2)
        rdA(0, 0, 0)
        for g in range(4): rdB(0, 0, 0, g)
        for n in range(28):
            i, u = n // 4, n % 4
            buf = n & 1
            i2, u2 = (n + 1) // 4, (n + 1) % 4
            if u == 3 and i < 6:
                if i2 in (2, 4, 6):
                    d = 65536 if i2 != 4 else -65536
                    for r in list(range(vRA, vRA+4)) + list(range(vRB, vRB+4)):
                        A(f"v_add_u32 v{r}, {hex(d & 0xffffffff)}, v{r}")
                A("s_barrier")
                ST.at(2 + i2)
            for g in range(4):
                if n < 27: cnt = 6 if g == 0 else 7
                else: cnt = 6 - 2 * g
                A(f"s_waitcnt lgkmcnt({cnt})")
                a_, b_ = vr(FA+4*buf,4), vr(FB+16*buf+4*g,4)
                if swap: a_, b_ = b_, a_
                A(f"v_mfma_f32_32x32x16_bf16 {vr(ACC+16*g,16)}, {a_}, {b_}, {'0' if n == 0 else vr(ACC+16*g,16)}")
                if n < 27:
                    if g == 0: rdA(buf ^ 1, i2 % 4, u2)
                    rdB(buf ^ 1, i2 % 4, u2, g)
        ST.at(9)

    A(f"s_cmp_ge_u32 s{sNT}, 8")
    A("s_cbranch_scc1 k1_vd")
    mainloop(True)
    A(f"s_and_b32 s{sT}, s{sNT}, 3")
    A(f"s_lshl_b32 s{sT}, s{sT}, 8")
    A(f"s_add_u32 s{sT}, s{sT}, s{sBB}")
    A(f"s_lshl_b32 s{sT}, s{sT}, 11")
    A(f"s_cmp_ge_u32 s{sNT}, 4")
    A(f"s_cselect_b32 s{sT2}, {WS_K}, {WS_Q}")
    A(f"s_add_u32 s{sT}, s{sT}, s{sT2}")
    A(f"s_cmp_ge_u32 s{sNT}, 4")
    A(f"s_cselect_b32 s{sGS}, 1.0, {hex(QSCALE)}")
    A(f"s_cselect_b32 s{sLA}, 0x3f803f80, 0")
    A(f"s_cselect_b32 s{sLB}, 0x3f80, 0")
    A(f"s_cselect_b32 s{sC}, 12, 0")
    A(f"v_mov_b32 v{vT+6}, s{sLA}")
    A(f"v_mov_b32 v{vT+7}, s{sLB}")
    A(f"v_lshrrev_b32 v{vT}, 1, v{vL}")
    A(f"v_xor_b32 v{vT}, v{vT}, v{vL}")
    A(f"v_and_b32 v{vT}, 4, v{vT}")
    A(f"v_mul_u32_u24 v{vT}, 3, v{vT}")
    A(f"v_and_b32 v{vT}, s{sC}, v{vT}")
    A(f"v_xor_b32 v{vT}, v{vT}, v{vL}")
    A(f"v_lshlrev_b32 v{vST}, 4, v{vT}")
    A(f"v_cmp_lt_u32 vcc, 31, v{vL}")
    for g in range(4):
        for r in range(16): A(f"v_mul_f32 v{ACC+16*g+r}, s{sGS}, v{ACC+16*g+r}")
        for r in range(8): A(f"v_cvt_pk_bf16_f32 v{PK+8*g+r}, v{ACC+16*g+2*r}, v{ACC+16*g+2*r+1}")
        A(f"v_cndmask_b32 v{PK+8*g+6}, v{PK+8*g+6}, v{vT+6}, vcc")
        A(f"v_cndmask_b32 v{PK+8*g+7}, v{PK+8*g+7}, v{vT+7}, vcc")
        if g: A(f"s_add_u32 s{sT}, s{sT}, {64*2048}")
        A(f"buffer_store_dwordx4 {vr(PK+8*g,4)}, v{vST}, {sr(sWS,4)}, s{sT} offen {STF}")
        A(f"buffer_store_dwordx4 {vr(PK+8*g+4,4)}, v{vST}, {sr(sWS,4)}, s{sT} offen offset:1024 {STF}")
    A("s_branch k1_pf")
    A("k1_vd:")
    mainloop(False)
    A(f"s_cmp_ge_u32 s{sNT}, 12")
    A("s_cbranch_scc1 k1_dft")
    A(f"s_and_b32 s{sT}, s{sNT}, 3")
    A(f"s_lshl_b32 s{sT}, s{sT}, 8")
    A(f"s_add_u32 s{sT}, s{sT}, s{sBB}")
    A(f"s_lshl_b32 s{sT}, s{sT}, 11")
    A(f"s_add_u32 s{sT}, s{sT}, {WS_V}")
    A(f"v_and_b32 v{vT}, 31, v{vL}")
    A(f"v_cmp_eq_u32 vcc, 28, v{vT}")
    A(f"v_mov_b32 v{vT+1}, 0x3f803f80")
    A(f"v_cndmask_b32 v{vT+1}, 0, v{vT+1}, vcc")
    A(f"v_cmp_lt_u32 vcc, 27, v{vT}")
    for g in range(4):
        for r in range(8): A(f"v_cvt_pk_bf16_f32 v{PK+8*g+r}, v{ACC+16*g+2*r}, v{ACC+16*g+2*r+1}")
        for r in range(8): A(f"v_cndmask_b32 v{PK+8*g+r}, v{PK+8*g+r}, v{vT+1}, vcc")
        if g: A(f"s_add_u32 s{sT}, s{sT}, {64*2048}")
        A(f"buffer_store_dwordx4 {vr(PK+8*g,4)}, v{vST}, {sr(sWS,4)}, s{sT} offen {STF}")
        A(f"buffer_store_dwordx4 {vr(PK+8*g+4,4)}, v{vST}, {sr(sWS,4)}, s{sT} offen offset:1024 {STF}")
    A("s_branch k1_pf")
    A("k1_dft:")
    A(f"s_mul_i32 s{sT}, s{sBB}, {YB}")
    A(f"s_lshl_b32 s{sT2}, s{sNT}, 13")
    A(f"s_add_u32 s{sT}, s{sT}, s{sT2}")
    A(f"s_add_u32 s{sT}, s{sT}, {WS_Y - 12*8192}")
    A(f"s_cmp_lg_u32 s{sNT}, 15")
    A("s_cbranch_scc1 k1_nogs")
    A(f"s_lshl_b32 s{sT2}, s{sBB}, 7")
    A(f"s_add_u32 s{sT2}, s{sT2}, {WS_G}")
    A(f"v_lshrrev_b32 v{vT}, 1, v{vL}")
    A("s_mov_b32 exec_lo, 1")
    A("s_mov_b32 exec_hi, 1")
    A("s_nop 7")
    for g in range(4): A(f"buffer_store_dwordx4 {vr(ACC+48+4*g,4)}, v{vT}, {sr(sWS,4)}, s{sT2} offen offset:{32*g}")
    A("s_mov_b64 exec, -1")
    A("s_nop 1")
    for r in range(16): A(f"v_mov_b32 v{ACC+48+r}, 0")
    A("k1_nogs:")
    for g in range(4):
        for r in range(8): A(f"v_cvt_pk_bf16_f32 v{PK+8*g+r}, v{ACC+16*g+2*r}, v{ACC+16*g+2*r+1}")
    for cg in range(2):
        xr, xi = PK + 16 * cg, PK + 16 * cg + 8
        yr, yi = ACC + 32 * cg, ACC + 32 * cg + 16
        for t in range(2):
            A(f"v_mfma_f32_32x32x16_bf16 {vr(yr,16)}, {vr(MC+4*t,4)}, {vr(xr+4*t,4)}, {'0' if t == 0 else vr(yr,16)}")
            A(f"v_mfma_f32_32x32x16_bf16 {vr(yi,16)}, {vr(MC+4*t,4)}, {vr(xi+4*t,4)}, {'0' if t == 0 else vr(yi,16)}")
        for t in range(2):
            A(f"v_mfma_f32_32x32x16_bf16 {vr(yr,16)}, {vr(MS+4*t,4)}, {vr(xi+4*t,4)}, {vr(yr,16)}")
            A(f"v_mfma_f32_32x32x16_bf16 {vr(yi,16)}, {vr(MN+4*t,4)}, {vr(xr+4*t,4)}, {vr(yi,16)}")
    for g in range(4):
        P = FA + 8 * g
        for r in range(8): A(f"v_cvt_pk_bf16_f32 v{P+r}, v{ACC+16*g+2*r}, v{ACC+16*g+2*r+1}")
        for t in range(2):
            A(f"v_permlane32_swap_b32 v{P+4*t}, v{P+4*t+2}")
            A(f"v_permlane32_swap_b32 v{P+4*t+1}, v{P+4*t+3}")
        if g == 2: A(f"s_add_u32 s{sT}, s{sT}, 4096")
        for t in range(2):
            A(f"buffer_store_dwordx4 {vr(P+4*t,4)}, v{vST}, {sr(sWS,4)}, s{sT} offen offset:{(g&1)*2048+1024*t} {STF}")
    A("k1_pf:")
    ST.at(10)
    ST.dump(sWS, sW8, 8, vT+10)
    if DIAG: A("s_mov_b64 exec, -1")
    A(f"s_cmp_lg_u32 s{sW8}, 4")
    A("s_cbranch_scc1 k1_end")
    A(f"s_cmp_ge_u32 s{sJ}, 8")
    A("s_cbranch_scc1 k1_end")
    A(f"s_getpc_b64 {sr(56,2)}")
    A("s_add_u32 s56, s56, tab_small@rel32@lo+4")
    A("s_addc_u32 s57, s57, tab_small@rel32@hi+12")
    A(f"s_getpc_b64 {sr(58,2)}")
    A("s_add_u32 s58, s58, k2_kernel@rel32@lo+4")
    A("s_addc_u32 s59, s59, k2_kernel@rel32@hi+12")
    A(f"s_cmp_ge_u32 s{sJ}, 6")
    A(f"s_cselect_b32 s56, s58, s56")
    A(f"s_cselect_b32 s57, s59, s57")
    A(f"s_cselect_b32 s{sT}, 6, 0")
    A(f"s_sub_u32 s{sT}, s{sJ}, s{sT}")
    A(f"s_lshl_b32 s{sT}, s{sT}, 13")
    A(f"v_lshl_add_u32 v{vT}, v{vL}, 7, s{sT}")
    A(f"global_load_dword v{vT+1}, v{vT}, s[56:57]")
    A("k1_end:")
    A("s_endpgm")
    return A.L, NV, 102 if DIAG else 64
```

```python
from asmlib import *
from k1 import WS_Q, WS_K, WS_V, WS_Y, WS_W, WS_O, WS_Z, WS_G, WS_BYTES, f2u, YB, WP, ZP
import math, os
TS_F64, TS_F32, TS_TW, TS_BYTES = 0, 24576, 30720, 47104
LDS_FLAG, LDS_Y, LDS_Q = 49152, 49152 + 256, 49152 + 256 + 8192
K2_LDS = LDS_Q + 8192
N0 = int(os.environ.get("N0", 13)); N1 = (64 - N0) // 3
assert N0 + 3 * N1 == 64
OST = os.environ.get("OST", "")

def merge(ms, vs, lead=0):
    out = []; n = len(ms); k = 0
    for i, m in enumerate(ms):
        out.append(m)
        k2 = (len(vs) * (i + 1)) // n
        out += vs[k:k2]; k = k2
    return out

def gen_k2():
    A = Asm()
    sWS, sX, sTB = 8, 12, 16
    sW, sJ, sXC, sHD, sQB, sT, sT2, sCNT, sI, sKO, sLO, sHI, sVO, sPASS = 20, 21, 22, 23, 24, 25, 26, 27, 28, 29, 30, 31, 32, 33
    sK0, sPF, sQ = 34, 35, 40
    O, S, Q, KV = 0, 64, 128, 160
    vL, vO16, vIDX, vT = 208, 209, 210, 212
    NV = 256
    A("s_cmp_ge_u32 s2, 256")
    A("s_cbranch_scc1 k2_end")
    ST = Stamps(A, 1); ST.begin()
    A(f"s_load_dwordx2 {sr(sWS,2)}, s[0:1], 72")
    A(f"s_load_dwordx2 {sr(sX,2)}, s[0:1], 40")
    A(f"v_lshrrev_b32 v{vT}, 6, v0")
    A(f"v_and_b32 v{vL}, 63, v0")
    A(f"s_mov_b32 s{sWS+2}, {WS_BYTES}")
    A(f"s_mov_b32 s{sWS+3}, 0x20000")
    A(f"v_readfirstlane_b32 s{sW}, v{vT}")
    A(f"v_lshlrev_b32 v{vO16}, 4, v{vL}")
    A(f"s_and_b32 s{sXC}, s2, 7")
    A(f"s_lshr_b32 s{sJ}, s2, 3")
    A(f"s_cmp_eq_u32 s{sW}, 4")
    A("s_cbranch_scc1 k2_aux")
    A(f"s_lshr_b32 s{sHD}, s{sJ}, 4")
    A(f"s_lshl_b32 s{sHD}, s{sHD}, 3")
    A(f"s_add_u32 s{sHD}, s{sHD}, s{sXC}")
    A(f"s_and_b32 s{sQB}, s{sJ}, 15")
    A(f"s_cmp_eq_u32 s{sW}, 0")
    A(f"s_cselect_b32 s{sCNT}, {N0}, {N1}")
    A(f"s_mul_i32 s{sT}, s{sW}, {N1}")
    A(f"s_sub_u32 s{sT}, s{sT}, {N1-N0}")
    A(f"s_max_i32 s{sT}, s{sT}, 0")
    A(f"s_lshl_b32 s{sT2}, s{sW}, 4")
    A(f"s_cmp_le_u32 s2, 224")
    A(f"s_cselect_b32 s{sCNT}, s{sCNT}, 16")
    A(f"s_cselect_b32 s{sT}, s{sT}, s{sT2}")
    A(f"s_lshl_b32 s{sT2}, s{sHD}, 6")
    A(f"s_add_u32 s{sT}, s{sT}, s{sT2}")
    A(f"s_lshl_b32 s{sLO}, s{sT}, 11")
    A(f"s_add_u32 s{sLO}, s{sLO}, {WS_K}")
    A(f"s_lshl_b32 s{sT}, s{sCNT}, 11")
    A(f"s_add_u32 s{sHI}, s{sLO}, s{sT}")
    if os.environ.get("ROT"):
        A(f"s_mul_i32 s{sT}, s{sQB}, s{sCNT}")
        A(f"s_lshr_b32 s{sT}, s{sT}, 4")
        A(f"s_lshl_b32 s{sT}, s{sT}, 11")
        A(f"s_add_u32 s{sK0}, s{sLO}, s{sT}")
    else:
        A(f"s_mov_b32 s{sK0}, s{sLO}")
    A(f"s_lshl_b32 s{sT}, s{sQB}, 2")
    A(f"s_add_u32 s{sT}, s{sT}, s{sT2}")
    for s in range(4):
        A(f"s_add_u32 s{sQ+s}, s{sW}, {s+1}")
        A(f"s_and_b32 s{sQ+s}, s{sQ+s}, 3")
        A(f"s_add_u32 s{sT2}, s{sQ+s}, s{sT}")
        A(f"s_lshl_b32 s{sQ+4+s}, s{sT2}, 11")
    A(f"s_mov_b32 s{sKO}, s{sK0}")
    A(f"s_add_u32 s{sVO}, s{sKO}, {WS_V - WS_K}")
    A("s_waitcnt lgkmcnt(0)")
    def ldk(st, t): return f"buffer_load_dwordx4 {vr(KV+16*st+4*t,4)}, v{vO16}, {sr(sWS,4)}, s{sKO} offen offset:{1024*t}"
    def ldv(st, t): return f"buffer_load_dwordx4 {vr(KV+16*st+8+4*t,4)}, v{vO16}, {sr(sWS,4)}, s{sVO} offen offset:{1024*t}"
    def ldq(s, t): return f"buffer_load_dwordx4 {vr(Q+8*s+4*t,4)}, v{vO16}, {sr(sWS,4)}, s{sQ+4+s} offen offset:{1024*t}"
    adv = [f"s_add_u32 s{sKO}, s{sKO}, 2048", f"s_cmp_ge_u32 s{sKO}, s{sHI}", f"s_cselect_b32 s{sKO}, s{sLO}, s{sKO}"]
    setv = f"s_add_u32 s{sVO}, s{sKO}, {WS_V - WS_K}"
    A(f"s_lshl_b32 s{sT}, s{sW}, 11")
    A(f"s_add_u32 m0, s{sT}, {LDS_Q}")
    A(ldk(0, 0))
    A(f"buffer_load_dwordx4 v{vO16}, {sr(sWS,4)}, s{sQ+7} offen lds")
    A(f"buffer_load_dwordx4 v{vO16}, {sr(sWS,4)}, s{sQ+7} offen offset:1024 lds")
    for x in [ldk(0, 1), ldv(0, 0), ldv(0, 1)]: A(x)
    A(f"s_mov_b32 s{sPASS}, 0")
    A(f"s_cmp_eq_u32 s{sW}, 3")
    A(f"s_cselect_b32 s{sPF}, {os.environ.get(chr(80)+chr(70)+chr(84), 3)}, 0")
    A("s_branch k2_first")
    A("k2_pass:")
    A(f"s_mov_b32 s{sKO}, s{sK0}")
    A(setv)
    for x in [ldk(0, 0), ldk(0, 1), ldv(0, 0), ldv(0, 1)]: A(x)
    A("s_waitcnt vmcnt(0)")
    A("k2_first:")
    for x in adv + [setv, ldk(1, 0), ldk(1, 1), ldv(1, 0), ldv(1, 1)] + adv: A(x)
    A(f"s_cmp_lg_u32 s{sPASS}, 0")
    A("s_cbranch_scc1 k2_nobar")
    for r in range(64): A(f"v_mov_b32 v{O+r}, 0")
    A(f"v_mov_b32 v{vIDX}, 0xdddddddd")
    A(f"v_mov_b32 v{vT+1}, {LDS_FLAG}")
    A(f"ds_write_b64 v{vT+1}, {vr(O,2)}")
    for s_ in range(4):
        A(f"s_lshl_b32 s{sT}, s{sQ+s_}, 11")
        A(f"s_add_u32 s{sT}, s{sT}, {LDS_Q}")
        A(f"v_add_u32 v{vT+2+s_}, s{sT}, v{vO16}")
    A("s_waitcnt vmcnt(7) lgkmcnt(0)")
    A("s_barrier")
    for s_ in range(4):
        for t in range(2): A(f"ds_read_b128 {vr(Q+8*s_+4*t,4)}, v{vT+2+s_} offset:{1024*t}")
    A("s_branch k2_go")
    A("k2_nobar:")
    for r in range(64): A(f"v_mov_b32 v{O+r}, 0")
    A("k2_go:")
    A(f"s_mov_b32 s{sI}, s{sCNT}")
    def qk(q, st, half):
        c = "0" if half == 0 else vr(S+16*q,16)
        return f"v_mfma_f32_32x32x16_bf16 {vr(S+16*q,16)}, {vr(KV+16*st+4*half,4)}, {vr(Q+8*q+4*half,4)}, {c}"
    def pv(q, st, half):
        return f"v_smfmac_f32_32x32x32_bf16 {vr(O+16*q,16)}, {vr(KV+16*st+8+4*half,4)}, {vr(S+16*q+8*half,8)}, v{vIDX}"
    def tile(st, first):
        nxt, prv = (st + 1) % 3, (st + 2) % 3
        for q in range(4):
            e = [f"v_exp_f32 v{S+16*q+r}, v{S+16*q+r}" for r in range(16)]
            qn, stn = (q + 1, st) if q < 3 else (0, nxt)
            qp, stp = (q - 1, st) if q > 0 else (3, prv)
            aft = {0: [], 1: [], 2: [], 3: []}
            if q == 0: aft[2] = [ldk(prv, 0)]; aft[3] = [setv]
            if q == 1: aft[1] = ["s_waitcnt vmcnt(5)"]; aft[2] = [ldk(prv, 1)]; aft[3] = adv[0:2]
            if q == 2: aft[0] = [adv[2]]; aft[2] = [ldv(prv, 0)]; aft[3] = [f"s_sub_u32 s{sI}, s{sI}, 1", "s_waitcnt vmcnt(5)"]
            if q == 3: aft[2] = [ldv(prv, 1)]; aft[3] = [f"s_cmp_eq_u32 s{sI}, 0"]
            ms = [qk(qn, stn, 0), qk(qn, stn, 1), pv(qp, stp, 0), pv(qp, stp, 1)]
            if first and q == 0:
                A("s_waitcnt lgkmcnt(0)")
                ms[2] = ms[3] = None
            for k in range(4):
                if ms[k]: A(ms[k])
                for y in aft[k]: A(y)
                for x in e[4*k:4*k+4]: A(x)
    ST.at(0)
    A("s_waitcnt vmcnt(6) lgkmcnt(6)")
    ST.at(1)
    A(qk(0, 0, 0)); A(qk(0, 0, 1))
    A("s_nop 9")
    tile(0, True)
    A("s_cbranch_scc1 k2_x0")
    loop_start = A.mark()
    A("k2_loop:")
    for st in (1, 2, 0):
        tile(st, False)
        A(f"s_cbranch_scc1 k2_x{st}")
    A(f"s_cmp_gt_u32 s{sI}, s{sPF}")
    A("s_cbranch_scc1 k2_loop")
    loop_end = A.mark()
    A(f"s_mov_b32 s{sPF}, 0")
    A(f"v_mov_b32 v{vT}, {LDS_FLAG}")
    A(f"ds_write_b32 v{vT}, v{vT} offset:4")
    A("s_branch k2_loop")
    for st in (0, 1, 2):
        A(f"k2_x{st}:")
        A("s_nop 1")
        A(pv(3, st, 0)); A(pv(3, st, 1))
        if st != 2: A("s_branch k2_red")
    A("k2_red:")
    ST.at(2)
    for s in range(3):
        A(f"s_mul_i32 s{sT}, s{sQ+s}, 12288")
        A(f"v_add_u32 v{vT+s}, s{sT}, v{vO16}")
    for s in range(3):
        for g in range(4):
            A(f"ds_write_b128 v{vT+s}, {vr(O+16*s+4*g,4)} offset:{4096*s+1024*g}")
    A(f"s_mul_i32 s{sT}, s{sW}, 12288")
    A(f"v_add_u32 v{vT+1}, s{sT}, v{vO16}")
    A(f"s_lshl_b32 s{sT}, s{sQB}, 2")
    A(f"s_add_u32 s{sT}, s{sT}, s{sW}")
    A(f"s_mul_i32 s{sT}, s{sT}, 28672")
    A(f"s_add_u32 s{sT}, s{sT}, {WS_O}")
    A(f"s_mul_i32 s{sT2}, s{sHD}, 7")
    A(f"v_lshrrev_b32 v{vT+2}, 5, v{vL}")
    A(f"v_add_u32 v{vT+2}, s{sT2}, v{vT+2}")
    A(f"v_and_b32 v{vT+3}, 31, v{vL}")
    A(f"v_lshlrev_b32 v{vT+3}, 4, v{vT+3}")
    A(f"v_and_b32 v{vT+4}, 1, v{vT+2}")
    A(f"v_lshl_add_u32 v{vT+3}, v{vT+4}, 3, v{vT+3}")
    A(f"v_lshrrev_b32 v{vT+2}, 1, v{vT+2}")
    A(f"v_lshl_add_u32 v{vT+3}, v{vT+2}, 9, v{vT+3}")
    A("s_waitcnt lgkmcnt(0)")
    ST.at(3)
    A("s_barrier")
    ST.at(4)
    for s in range(3):
        for g in range(4):
            A(f"ds_read_b128 {vr(S+16*s+4*g,4)}, v{vT+1} offset:{4096*s+1024*g}")
    R = O + 48
    for s in range(3):
        A(f"s_waitcnt lgkmcnt({8-4*s})")
        for r in range(16): A(f"v_add_f32 v{R+r}, v{R+r}, v{S+16*s+r}")
    A(f"v_mov_b32 v{vT+4}, v{R+12}")
    A(f"v_mov_b32 v{vT+5}, v{R+12}")
    A(f"v_add_f32 v{vT+7}, abs(v{R}), abs(v{R+1})")
    A(f"v_add_f32 v{vT+7}, v{vT+7}, abs(v{R+2})")
    A(f"v_permlane32_swap_b32 v{vT+4}, v{vT+5}")
    A(f"v_rcp_f32 v{vT+6}, v{vT+5}")
    A(f"v_add_f32 v{vT+7}, v{vT+7}, abs(v{R+3})")
    for g in range(4):
        for r in range(4): A(f"v_mul_f32 v{S+4*g+r}, v{R+4*g+r}, v{vT+6}")
        for r in range(2): A(f"v_cvt_pk_bf16_f32 v{S+16+2*g+r}, v{S+4*g+2*r}, v{S+4*g+2*r+1}")
        if g == 3: A("s_mov_b64 exec, 0xffffffff")
        A(f"buffer_store_dwordx2 {vr(S+16+2*g,2)}, v{vT+3}, {sr(sWS,4)}, s{sT} offen offset:{512*g} {OST}")
    A("s_mov_b64 exec, -1")
    A(f"s_cmp_lg_u32 s{sPASS}, 0")
    A("s_cbranch_scc1 k2_end")
    for r in range(4, 16): A(f"v_add_f32 v{vT+7}, v{vT+7}, abs(v{R+r})")
    A(f"v_cmp_nle_f32 vcc, {hex(f2u(2.0**-60))}, v{vT+5}")
    A(f"s_mov_b64 s[36:37], vcc")
    A(f"v_cmp_nge_f32 vcc, {hex(f2u(2.0**60))}, v{vT+5}")
    A(f"s_or_b64 s[36:37], s[36:37], vcc")
    A(f"v_cmp_nge_f32 vcc, {hex(f2u(2.0**120))}, v{vT+7}")
    A(f"s_or_b64 s[36:37], s[36:37], vcc")
    A(f"v_mov_b32 v{vT+4}, {LDS_FLAG}")
    A("s_cbranch_scc0 k2_noflag")
    A(f"v_mov_b32 v{vT+5}, 1")
    A(f"ds_write_b32 v{vT+4}, v{vT+5}")
    A("k2_noflag:")
    A("s_waitcnt lgkmcnt(0)")
    A("s_barrier")
    A(f"ds_read_b32 v{vT+5}, v{vT+4}")
    A("s_waitcnt lgkmcnt(0)")
    A(f"v_readfirstlane_b32 s{sT}, v{vT+5}")
    A(f"s_cmp_eq_u32 s{sT}, 0")
    A("s_cbranch_scc1 k2_dump" if DIAG else "s_cbranch_scc1 k2_end")
    A(f"s_mov_b32 s{sPASS}, 1")
    A("s_waitcnt vmcnt(0)")
    for q in range(4): A(f"v_mov_b32 v{O+q}, 0xff800000")
    A(f"s_mov_b32 s{sKO}, s{sLO}")
    A("k2_maxloop:")
    A(ldk(0, 0)); A(ldk(0, 1))
    A("s_waitcnt vmcnt(0)")
    for q in range(4): A(qk(q, 0, 0)); A(qk(q, 0, 1))
    A("s_nop 15")
    for q in range(4):
        for r in range(8): A(f"v_max3_f32 v{O+q}, v{O+q}, v{S+16*q+2*r}, v{S+16*q+2*r+1}")
    A(f"s_add_u32 s{sKO}, s{sKO}, 2048")
    A(f"s_cmp_lt_u32 s{sKO}, s{sHI}")
    A("s_cbranch_scc1 k2_maxloop")
    A(f"s_lshl_b32 s{sT}, s{sW}, 8")
    A(f"v_lshl_add_u32 v{vT}, v{vL}, 2, s{sT}")
    A(f"v_and_b32 v{vT+1}, 31, v{vL}")
    A(f"v_lshlrev_b32 v{vT+1}, 2, v{vT+1}")
    for s in range(4):
        A(f"s_lshl_b32 s{sT}, s{sQ+s}, 10")
        A(f"v_add_u32 v{vT+2}, s{sT}, v{vT}")
        A(f"v_add_u32 v{vT+4+s}, s{sT}, v{vT+1}")
        A(f"ds_write_b32 v{vT+2}, v{O+s}")
    A("s_waitcnt lgkmcnt(0)")
    A("s_barrier")
    for s in range(4):
        for k in range(8): A(f"ds_read_b32 v{S+8*s+k}, v{vT+4+s} offset:{128*k}")
        A("s_waitcnt lgkmcnt(0)")
    A("s_barrier")
    A(f"v_cmp_lt_u32 vcc, 31, v{vL}")
    for q in range(4):
        m = S + 8 * q
        A(f"v_max3_f32 v{m}, v{m}, v{m+1}, v{m+2}")
        A(f"v_max3_f32 v{m}, v{m}, v{m+3}, v{m+4}")
        A(f"v_max3_f32 v{m}, v{m}, v{m+5}, v{m+6}")
        A(f"v_max_f32 v{m}, v{m}, v{m+7}")
        A(f"v_xor_b32 v{m}, 0x80000000, v{m}")
        A(f"v_and_b32 v{m+1}, 0xffff0000, v{m}")
        A(f"v_sub_f32 v{m+2}, v{m}, v{m+1}")
        A(f"v_and_b32 v{m+3}, 0xffff0000, v{m+2}")
        A(f"v_sub_f32 v{m+4}, v{m+2}, v{m+3}")
        A(f"v_lshrrev_b32 v{m+1}, 16, v{m+1}")
        A(f"v_or_b32 v{m+1}, v{m+1}, v{m+3}")
        A(f"v_lshrrev_b32 v{m+4}, 16, v{m+4}")
        A(f"v_cndmask_b32 v{Q+8*q+6}, v{Q+8*q+6}, v{m+1}, vcc")
        A(f"v_cndmask_b32 v{Q+8*q+7}, v{Q+8*q+7}, v{m+4}, vcc")
    A("s_branch k2_pass")

    A("k2_aux:")
    sCOL = 27
    A(f"s_getpc_b64 {sr(sTB,2)}")
    A(f"s_add_u32 s{sTB}, s{sTB}, tab_small@rel32@lo+4")
    A(f"s_addc_u32 s{sTB+1}, s{sTB+1}, tab_small@rel32@hi+12")
    A(f"s_mov_b32 s{sTB+2}, {TS_BYTES}")
    A(f"s_mov_b32 s{sTB+3}, 0x20000")
    A(f"s_mul_i32 s{sCOL}, s{sXC}, 28")
    A(f"s_add_u32 s{sCOL}, s{sCOL}, s{sJ}")
    A(f"s_cmp_eq_u32 s2, 224")
    A(f"s_cselect_b32 s{sCOL}, 224, s{sCOL}")
    C_ = lambda kind, mt, u: 48 * mt + 16 * kind + 4 * u
    X = 96
    YF = 160
    U0 = 192
    WT = 212
    TM = 244
    vG = 210
    A(f"v_lshrrev_b32 v{TM}, 2, v{vL}")
    A(f"v_mul_u32_u24 v{TM}, {YB}, v{TM}")
    A(f"v_and_b32 v{TM+1}, 3, v{vL}")
    A(f"v_lshl_add_u32 v{vG}, v{TM+1}, 9, v{TM}")
    A(f"v_mul_u32_u24 v{vG+1}, {WP}, v{vL}")
    A(f"s_lshr_b32 s{sT}, s{sCOL}, 5")
    A(f"s_lshl_b32 s{sT}, s{sT}, 12")
    A(f"s_and_b32 s{sT2}, s{sCOL}, 31")
    A(f"s_lshl_b32 s{sT2}, s{sT2}, 4")
    A(f"s_add_u32 s{sT}, s{sT}, s{sT2}")
    A(f"s_lshl_b32 s{sKO}, s{sCOL}, 4")
    A(f"v_lshrrev_b32 v{TM}, 5, v{vL}")
    A(f"v_bfe_u32 v{TM+1}, v{vL}, 2, 2")
    A(f"v_lshl_add_u32 v{TM}, v{TM}, 2, v{TM+1}")
    A(f"v_lshlrev_b32 v{TM}, 6, v{TM}")
    A(f"v_bfe_u32 v{TM+1}, v{vL}, 4, 1")
    A(f"v_lshl_add_u32 v{TM}, v{TM+1}, 5, v{TM}")
    A(f"v_and_b32 v{TM+1}, 3, v{vL}")
    A(f"v_lshl_add_u32 v{TM}, v{TM+1}, 3, v{TM}")
    A(f"v_add_u32 v{TM}, {LDS_Y}, v{TM}")
    A("s_waitcnt lgkmcnt(0)")
    A("s_barrier")
    A("s_cmp_gt_u32 s2, 224")
    A("s_cbranch_scc1 k2_poll")
    A("s_setprio 3")
    def ydma(n):
        A(f"s_mov_b32 m0, {LDS_Y + 1024*n}")
        A(f"s_add_u32 s{sT2}, s{sT}, {WS_Y + (n>>2)*2048 + (n&3)*16*YB}")
        A(f"buffer_load_dwordx4 v{vG}, {sr(sWS,4)}, s{sT2} offen lds")
    def cld(dst, off):
        A(f"s_mov_b32 s{sT2}, {off}")
        for f in range(4): A(f"buffer_load_dwordx4 {vr(dst+4*f,4)}, v{vO16}, {sr(sTB,4)}, s{sT2} offen offset:{1024*f}")
    def wld(f):
        return [f"s_add_u32 s{sT2}, s{sKO}, {WS_W + f*64*WP}",
                f"buffer_load_dwordx4 {vr(WT+4*f,4)}, v{vG+1}, {sr(sWS,4)}, s{sT2} offen"]
    for n in range(3): ydma(n)
    for kind in range(3): cld(C_(kind, 0, 0), TS_F64 + kind * 8192)
    A("s_waitcnt vmcnt(12)")
    for n in range(3, 6): ydma(n)
    for kind in range(3): cld(C_(kind, 1, 0), TS_F64 + kind * 8192 + 4096)
    A("s_waitcnt vmcnt(12)")
    for n in range(6, 8): ydma(n)
    for x in wld(0): A(x)
    ST.at(0)
    A("s_waitcnt vmcnt(1)")
    ST.at(1)
    for p in range(2):
        for u in range(4):
            A(f"ds_read_b64_tr_b16 {vr(YF+16*p+4*u,2)}, v{TM} offset:{4096*p+1024*u}")
            A(f"ds_read_b64_tr_b16 {vr(YF+16*p+4*u+2,2)}, v{TM} offset:{4096*p+1024*u+512}")
    for f in range(1, 4):
        for x in wld(f): A(x)
    A("s_waitcnt lgkmcnt(0)")
    Yr = lambda u: vr(YF+4*u,4)
    Yi = lambda u: vr(YF+16+4*u,4)
    mf = lambda d, a, b, first=False: f"v_mfma_f32_32x32x16_bf16 {vr(d,16)}, {a}, {b}, {'0' if first else vr(d,16)}"
    cf = lambda kind, mt, u: vr(C_(kind, mt, u), 4)
    def p3(mt):
        L = []
        for u in range(4):
            L += [mf(X+32*mt, cf(0, mt, u), Yr(u), u == 0), mf(X+32*mt+16, cf(0, mt, u), Yi(u), u == 0)]
        for u in range(4):
            L += [mf(X+32*mt, cf(1, mt, u), Yi(u)), mf(X+32*mt+16, cf(2, mt, u), Yr(u))]
        return L
    Ur = lambda u: (U0 + 4*u) if u < 2 else (YF + 4*u)
    Ui = lambda u: (U0 + 8 + 4*u) if u < 2 else (YF + 16 + 4*u)
    def cmul_pack(xr0, xi0, cr, ci, dr, di):
        L = []
        for i in range(4):
            L += [f"v_mul_f32 v{TM+8+i}, v{xr0+i}, v{cr(i)}", f"v_mul_f32 v{xr0+i}, v{xr0+i}, v{ci(i)}"]
        for i in range(4):
            L += [f"v_fma_f32 v{TM+8+i}, -v{xi0+i}, v{ci(i)}, v{TM+8+i}", f"v_fma_f32 v{xr0+i}, v{xi0+i}, v{cr(i)}, v{xr0+i}"]
        L += [f"v_cvt_pk_bf16_f32 v{dr}, v{TM+8}, v{TM+9}", f"v_cvt_pk_bf16_f32 v{dr+1}, v{TM+10}, v{TM+11}",
              f"v_cvt_pk_bf16_f32 v{di}, v{xr0}, v{xr0+1}", f"v_cvt_pk_bf16_f32 v{di+1}, v{xr0+2}, v{xr0+3}"]
        return L
    def wmul(mt):
        L = []
        for g in range(4):
            w = WT + 4 * (4 * mt + g)
            for i in range(4):
                op = "v_and_b32 v{}, 0xffff0000, v{}" if i & 1 else "v_lshlrev_b32 v{}, 16, v{}"
                L += [op.format(TM + i, w + (i >> 1)), op.format(TM + 4 + i, w + 2 + (i >> 1))]
            u = 2 * mt + (g >> 1)
            L += cmul_pack(X+32*mt+4*g, X+32*mt+16+4*g, lambda i: TM + i, lambda i: TM + 4 + i, Ur(u) + 2*(g&1), Ui(u) + 2*(g&1))
        return L
    def p4(nt, us):
        L = []
        for u in us:
            L += [mf(X+32*nt, vr(Ur(u),4), cf(0, nt, u), u == 0), mf(X+32*nt+16, vr(Ui(u),4), cf(0, nt, u), u == 0)]
        for u in us:
            L += [mf(X+32*nt, vr(Ui(u),4), cf(2, nt, u)), mf(X+32*nt+16, vr(Ur(u),4), cf(1, nt, u))]
        return L
    Tr = lambda nt: YF if nt == 0 else U0
    Ti = lambda nt: YF + 16 if nt == 0 else U0 + 8
    TW = lambda nt: 48 * nt
    F32 = WT
    def twid(nt):
        L = []
        for g in range(4):
            L += cmul_pack(X+32*nt+4*g, X+32*nt+16+4*g, lambda i: TW(nt) + 4*g + i, lambda i: TW(nt) + 16 + 4*g + i, Tr(nt) + 2*g, Ti(nt) + 2*g)
        return L
    def p5(nt):
        L = []
        for t in range(2):
            L += [mf(X+32*nt, vr(F32+4*t,4), vr(Tr(nt)+4*t,4), t == 0), mf(X+32*nt+16, vr(F32+4*t,4), vr(Ti(nt)+4*t,4), t == 0)]
        for t in range(2):
            L += [mf(X+32*nt, vr(F32+16+4*t,4), vr(Ti(nt)+4*t,4)), mf(X+32*nt+16, vr(F32+8+4*t,4), vr(Tr(nt)+4*t,4))]
        return L
    sZR, sZI = 29, 30
    def outp(nt):
        L = []
        for p in range(2):
            z = X + 32*nt + 16*p; P = TW(nt) + 8*p
            for r in range(8): L.append(f"v_cvt_pk_bf16_f32 v{P+r}, v{z+2*r}, v{z+2*r+1}")
            L.append("s_nop 1")
            for t in range(2):
                L += [f"v_permlane32_swap_b32 v{P+4*t}, v{P+4*t+2}", f"v_permlane32_swap_b32 v{P+4*t+1}, v{P+4*t+3}"]
            for t in range(2):
                L.append(f"buffer_store_dwordx4 {vr(P+4*t,4)}, v{vG}, {sr(sWS,4)}, s{sZR+p} offen offset:{2048*nt+32*t} {OST}")
        return L
    for x in p3(0): A(x)
    for f in range(4, 8):
        for x in wld(f): A(x)
    ST.at(2)
    A("s_waitcnt vmcnt(4)")
    A("s_nop 7")
    for x in merge(p3(1), wmul(0)): A(x)
    A("s_waitcnt vmcnt(0)")
    A("s_nop 7")
    for x in merge(p4(0, (0, 1)), wmul(1)): A(x)
    for x in p4(0, (2, 3)): A(x)
    ST.at(3)
    cld(TW(0), TS_TW); cld(TW(0) + 16, TS_TW + 4096)
    A(f"s_mov_b32 s{sT2}, {TS_F32}")
    for f in range(4): A(f"buffer_load_dwordx4 {vr(F32+4*f,4)}, v{vO16}, {sr(sTB,4)}, s{sT2} offen offset:{1024*f}")
    A(f"s_mov_b32 s{sT2}, {TS_F32+4096}")
    for f in range(2): A(f"buffer_load_dwordx4 {vr(F32+16+4*f,4)}, v{vO16}, {sr(sTB,4)}, s{sT2} offen offset:{1024*f}")
    A(f"s_lshr_b32 s{sT}, s{sCOL}, 1")
    A(f"s_and_b32 s{sT2}, s{sCOL}, 1")
    A(f"s_mul_i32 s{sT2}, s{sT2}, 224")
    A(f"s_add_u32 s{sT}, s{sT}, s{sT2}")
    A(f"s_mul_i32 s{sT}, s{sT}, {ZP}")
    A(f"s_add_u32 s{sZR}, s{sT}, {WS_Z}")
    A(f"s_add_u32 s{sZI}, s{sZR}, {112*ZP}")
    A(f"s_cmp_eq_u32 s{sCOL}, 0")
    A(f"s_cselect_b32 s{sZI}, {WS_G + 0x10000}, s{sZI}")
    A(f"s_cmp_eq_u32 s{sCOL}, 224")
    A(f"s_cselect_b32 s{sZI}, {WS_G + 0x12000}, s{sZI}")
    A(f"v_and_b32 v{vG}, 31, v{vL}")
    A(f"v_lshlrev_b32 v{vG}, 6, v{vG}")
    A(f"v_lshrrev_b32 v{vG+1}, 5, v{vL}")
    A(f"v_lshl_add_u32 v{vG}, v{vG+1}, 4, v{vG}")
    A("s_waitcnt vmcnt(6)")
    for x in merge(p4(1, (0, 1, 2, 3)), twid(0)): A(x)
    cld(TW(1), TS_TW + 8192); cld(TW(1) + 16, TS_TW + 12288)
    ST.at(4)
    A("s_waitcnt vmcnt(0)")
    for x in merge(p5(0), twid(1)): A(x)
    A("s_nop 1")
    for x in merge(p5(1), outp(0)): A(x)
    A("s_nop 7")
    for x in outp(1): A(x)
    ST.at(5)
    A("s_setprio 0")
    A("k2_poll:")
    A(f"v_mov_b32 v{TM}, {LDS_FLAG}")
    A(f"ds_read_b32 v{TM+1}, v{TM} offset:4")
    A("s_waitcnt lgkmcnt(0)")
    A(f"v_readfirstlane_b32 s{sT}, v{TM+1}")
    A(f"s_cmp_lg_u32 s{sT}, 0")
    A("s_cbranch_scc1 k2_pf")
    A("s_sleep 4")
    A("s_branch k2_poll")
    A("k2_pf:")
    A(f"s_mov_b32 s{sX+2}, 401408")
    A(f"s_mov_b32 s{sX+3}, 0x20000")
    A(f"s_getpc_b64 {sr(sTB,2)}")
    A(f"s_add_u32 s{sTB}, s{sTB}, tab_inv@rel32@lo+4")
    A(f"s_addc_u32 s{sTB+1}, s{sTB+1}, tab_inv@rel32@hi+12")
    A(f"s_mov_b32 s{sTB+2}, TAB_INV_BYTES")
    A(f"s_mov_b32 s{sTB+3}, 0x20000")
    A(f"s_lshl_b32 s{sT}, s{sJ}, 13")
    A(f"v_lshl_add_u32 v{TM}, v{vL}, 7, s{sT}")
    A(f"v_add_u32 v{TM+1}, 0x40000, v{TM}")
    A(f"buffer_load_dword v{TM+2}, v{TM}, {sr(sTB,4)}, 0 offen")
    A(f"buffer_load_dword v{TM+3}, v{TM+1}, {sr(sTB,4)}, 0 offen")
    A(f"buffer_load_dword v{TM+4}, v{TM}, {sr(sX,4)}, 0 offen")
    A(f"buffer_load_dword v{TM+5}, v{TM+1}, {sr(sX,4)}, 0 offen")
    A("s_barrier")
    A("s_barrier")
    if DIAG: A("k2_dump:")
    ST.dump(sWS, sW, 5, 250)
    A("k2_end:")
    A("s_endpgm")
    body = A.L[loop_start:loop_end]
    rep = check_seq(body + body)
    assert not rep, rep
    return A.L, NV, 102 if DIAG else 64
```

```python
from asmlib import *
from k1 import WS_O, WS_Z, WS_G, WS_BYTES, f2u, ZP
import math
CH = 16384
XCH = 7 * CH
K3_LDS = XCH + 16384
TAB_INV_BYTES = 401408
def gen_k3():
    A = Asm()
    sWS, sWO, sD, sOUT = 8, 12, 16, 20
    sW, sJ, sMT, sNT, sC, sT, sT2, sB, sZ, sWOo, sF, sLW, sROLE, sOA = 24, 25, 26, 27, 28, 29, 30, 31, 32, 33, 34, 36, 37, 38
    ACC = 0
    vL, vZ, vWO, vO16, vG, vR0, vR1, vOA = 32, 33, 34, 35, 36, 37, 38, 39
    vT = 40
    DF = 48
    FR = 160
    NV = 224
    A("s_cmp_ge_u32 s2, 224")
    A("s_cbranch_scc1 k3_end")
    ST = Stamps(A, 2); ST.begin()
    A(f"s_load_dwordx2 {sr(sWS,2)}, s[0:1], 72")
    A(f"s_load_dwordx2 {sr(sWO,2)}, s[0:1], 40")
    A(f"s_load_dwordx2 {sr(sOUT,2)}, s[0:1], 56")
    A(f"v_lshrrev_b32 v{vT}, 6, v0")
    A(f"v_and_b32 v{vL}, 63, v0")
    A(f"s_getpc_b64 {sr(sD,2)}")
    A(f"s_add_u32 s{sD}, s{sD}, tab_inv@rel32@lo+4")
    A(f"s_addc_u32 s{sD+1}, s{sD+1}, tab_inv@rel32@hi+12")
    A(f"v_readfirstlane_b32 s{sW}, v{vT}")
    A(f"s_mov_b32 s{sD+2}, {TAB_INV_BYTES}")
    A(f"s_mov_b32 s{sD+3}, 0x20000")
    A(f"s_mov_b32 s{sWS+2}, {WS_BYTES}")
    A(f"s_mov_b32 s{sWS+3}, 0x20000")
    A(f"s_mov_b32 s{sWO+2}, 401408")
    A(f"s_mov_b32 s{sWO+3}, 0x20000")
    A(f"s_mov_b32 s{sOUT+2}, 1835008")
    A(f"s_mov_b32 s{sOUT+3}, 0x20000")
    A(f"s_lshr_b32 s{sJ}, s2, 3")
    A(f"s_and_b32 s{sT}, s{sJ}, 3")
    A(f"s_lshr_b32 s{sNT}, s{sJ}, 2")
    A(f"s_and_b32 s{sMT}, s2, 7")
    A(f"s_lshl_b32 s{sMT}, s{sMT}, 2")
    A(f"s_add_u32 s{sMT}, s{sMT}, s{sT}")
    A(f"s_lshl_b32 s{sT}, s{sT}, 1")
    A(f"s_add_u32 s{sC}, s{sT}, s{sNT}")
    A(f"s_cmp_ge_u32 s{sC}, 7")
    A(f"s_cselect_b32 s{sT}, 7, 0")
    A(f"s_sub_u32 s{sC}, s{sC}, s{sT}")
    A(f"s_and_b32 s{sB}, s{sW}, 1")
    A(f"s_lshl_b32 s{sT}, s{sMT}, 1")
    A(f"s_add_u32 s{sB}, s{sB}, s{sT}")
    A(f"s_lshr_b32 s{sROLE}, s{sW}, 1")
    A(f"s_lshl_b32 s{sT}, s{sC}, 2")
    A(f"s_add_u32 s{sT}, s{sT}, s{sW}")
    A(f"s_mul_i32 s{sZ}, s{sT}, {16*ZP}")
    A(f"s_lshl_b32 s{sT2}, s{sMT}, 7")
    A(f"s_add_u32 s{sZ}, s{sZ}, s{sT2}")
    A(f"s_add_u32 s{sZ}, s{sZ}, {WS_Z}")
    A(f"s_mul_i32 s{sWOo}, s{sT}, {16*896}")
    A(f"s_lshl_b32 s{sT2}, s{sNT}, 7")
    A(f"s_add_u32 s{sWOo}, s{sWOo}, s{sT2}")
    A(f"s_lshl_b32 s{sT}, s{sNT}, 1")
    A(f"s_add_u32 s{sT}, s{sT}, s{sW}")
    A(f"s_cmp_eq_u32 s{sROLE}, 0")
    A(f"s_cselect_b32 s{sT}, s{sT}, s{sB}")
    A(f"s_cselect_b32 s{sT2}, 0, {WS_O}")
    A(f"s_mul_i32 s{sF}, s{sT}, 28672")
    A(f"s_add_u32 s{sF}, s{sF}, s{sT2}")
    A(f"s_lshl_b32 s{sT}, s{sC}, 12")
    A(f"s_add_u32 s{sF}, s{sF}, s{sT}")
    A(f"s_lshl_b32 s{sLW}, s{sW}, 11")
    A(f"v_lshrrev_b32 v{vT}, 3, v{vL}")
    A(f"v_and_b32 v{vT+1}, 7, v{vL}")
    A(f"v_bfe_u32 v{vT+2}, v{vL}, 4, 1")
    A(f"v_lshlrev_b32 v{vT+2}, 2, v{vT+2}")
    A(f"v_xor_b32 v{vT+1}, v{vT+1}, v{vT+2}")
    A(f"v_lshlrev_b32 v{vT+1}, 4, v{vT+1}")
    A(f"v_mul_u32_u24 v{vZ}, {ZP}, v{vT}")
    A(f"v_add_u32 v{vZ}, v{vZ}, v{vT+1}")
    A(f"v_mul_u32_u24 v{vWO}, 896, v{vT}")
    A(f"v_add_u32 v{vWO}, v{vWO}, v{vT+1}")
    A(f"v_lshlrev_b32 v{vO16}, 4, v{vL}")
    A(f"v_and_b32 v{vT+3}, 31, v{vL}")
    A(f"v_lshlrev_b32 v{vT+4}, 2, v{vT+3}")
    A(f"s_lshl_b32 s{sT}, s{sB}, 7")
    A(f"s_add_u32 s{sT}, s{sT}, {WS_G}")
    A("s_waitcnt lgkmcnt(0)")
    A(f"s_cmp_eq_u32 s{sROLE}, 0")
    A(f"s_cselect_b32 s{sD}, s{sD}, s{sWS}")
    A(f"s_cselect_b32 s{sD+1}, s{sD+1}, s{sWS+1}")
    A(f"s_cselect_b32 s{sD+2}, s{sD+2}, {WS_BYTES}")
    ST.at(0)
    A(f"buffer_load_dword v{vG}, v{vT+4}, {sr(sWS,4)}, s{sT} offen")
    def issue(i):
        G = [[f"s_add_u32 m0, s{sLW}, {CH*i}", f"s_add_u32 s{sT}, s{sZ}, {8*ZP-1024}",
              f"buffer_load_dwordx4 v{vZ}, {sr(sWS,4)}, s{sZ} offen lds"],
             [f"buffer_load_dwordx4 v{vZ}, {sr(sWS,4)}, s{sT} offen offset:1024 lds"],
             [f"s_add_u32 m0, s{sLW}, {CH*i+8192}", f"s_add_u32 s{sT}, s{sWOo}, {8*896-1024}",
              f"buffer_load_dwordx4 v{vWO}, {sr(sWO,4)}, s{sWOo} offen lds"],
             [f"buffer_load_dwordx4 v{vWO}, {sr(sWO,4)}, s{sT} offen offset:1024 lds"]]
        for s in range(4): G.append([f"buffer_load_dwordx4 {vr(DF+16*i+4*s,4)}, v{vO16}, {sr(sD,4)}, s{sF} offen offset:{1024*s}"])
        if i < 6:
            G[4] += [f"s_add_u32 s{sC}, s{sC}, 1", f"s_cmp_eq_u32 s{sC}, 7", f"s_cselect_b32 s{sC}, 0, s{sC}", f"s_cselect_b32 s{sT}, -6, 1"]
            G[5] += [f"s_mul_i32 s{sT2}, s{sT}, {64*ZP}", f"s_add_u32 s{sZ}, s{sZ}, s{sT2}"]
            G[6] += [f"s_mul_i32 s{sT2}, s{sT}, {64*896}", f"s_add_u32 s{sWOo}, s{sWOo}, s{sT2}", f"s_lshl_b32 s{sT2}, s{sT}, 12"]
            G[7] += [f"s_add_u32 s{sF}, s{sF}, s{sT2}"]
        return G
    for i in range(2):
        for g in issue(i):
            for x in g: A(x)
    ST.at(1)
    A(f"v_lshrrev_b32 v{vT}, 5, v{vL}")
    A(f"v_bfe_u32 v{vT+1}, v{vL}, 2, 2")
    A(f"v_lshl_add_u32 v{vT}, v{vT}, 3, v{vT+1}")
    A(f"v_lshlrev_b32 v{vT}, 7, v{vT}")
    A(f"v_bfe_u32 v{vT+2}, v{vL}, 4, 1")
    A(f"v_lshl_add_u32 v{vT}, v{vT+2}, 5, v{vT}")
    A(f"v_and_b32 v{vT+2}, 3, v{vL}")
    A(f"v_lshl_add_u32 v{vT}, v{vT+2}, 3, v{vT}")
    A(f"v_lshrrev_b32 v{vT+1}, 1, v{vT+1}")
    A(f"v_lshl_add_u32 v{vT}, v{vT+1}, 6, v{vT}")
    A(f"s_xor_b32 s{sT}, s{sW}, s{sROLE}")
    A(f"s_and_b32 s{sT}, s{sT}, 1")
    A(f"s_lshl_b32 s{sT}, s{sT}, 6")
    A(f"s_lshl_b32 s{sT2}, s{sROLE}, 13")
    A(f"v_xor_b32 v{vR0}, s{sT}, v{vT}")
    A(f"v_add_u32 v{vR0}, s{sT2}, v{vR0}")
    A(f"v_xor_b32 v{vR1}, 64, v{vR0}")
    A(f"v_mul_u32_u24 v{vOA}, 57344, v{vT+3}")
    A(f"v_lshrrev_b32 v{vT+2}, 5, v{vL}")
    A(f"v_lshl_add_u32 v{vOA}, v{vT+2}, 4, v{vOA}")
    A(f"s_mul_i32 s{sOA}, s{sB}, 896")
    A(f"s_add_u32 s{sOA}, s{sOA}, s{sT}")
    A(f"s_lshl_b32 s{sT}, s{sNT}, 7")
    A(f"s_add_u32 s{sOA}, s{sOA}, s{sT}")
    A(f"s_lshl_b32 s{sT}, s{sW}, 12")
    A(f"s_add_u32 s{sT}, s{sT}, {XCH}")
    A(f"v_add_u32 v{vT+5}, s{sT}, v{vO16}")
    A(f"s_lshl_b32 s{sT}, s{sW}, 1")
    A(f"s_lshr_b32 s{sT}, 0x1e, s{sT}")
    A(f"s_and_b32 s{sT}, s{sT}, 3")
    A(f"s_lshl_b32 s{sT}, s{sT}, 12")
    A(f"s_add_u32 s{sT}, s{sT}, {XCH}")
    A(f"v_add_u32 v{vT+6}, s{sT}, v{vO16}")
    def body(role):
        def mm(i):
            f = FR + 32 * (i & 1); L = []
            for s in range(4):
                for k in range(2):
                    d, l = vr(DF+16*i+4*s,4), vr(f+8*s+4*k,4)
                    a, b = (d, l) if role == 0 else (l, d)
                    L.append(f"v_mfma_f32_32x32x16_bf16 {vr(ACC+16*k,16)}, {a}, {b}, {'0' if (i == 0 and s == 0) else vr(ACC+16*k,16)}")
            return L
        for i in range(7):
            if i == 4:
                for r in (vR0, vR1): A(f"v_add_u32 v{r}, {hex(4*CH)}, v{r}")
            base = CH * (i % 4)
            f = FR + 32 * (i & 1)
            A(f"s_waitcnt vmcnt({8 if i < 6 else 0})")
            A("s_barrier")
            ST.at(2 + i)
            G = issue(i + 2) if i + 2 <= 6 else [[]] * 8
            M = mm(i - 1) if i > 0 else [None] * 8
            for n in range(8):
                s, k = n >> 1, n & 1
                for x in G[n]: A(x)
                for x in range(2):
                    A(f"ds_read_b64_tr_b16 {vr(f+8*s+4*k+2*x,2)}, v{vR0+k} offset:{base+2048*s+512*x}")
                if M[n]: A(M[n])
            if i == 0:
                A(f"v_mul_f32 v{vG}, {hex(f2u(-math.log2(math.e) if role == 0 else math.log2(math.e)))}, v{vG}")
                A(f"v_exp_f32 v{vG}, v{vG}")
                A(f"v_add_f32 v{vG}, 1.0, v{vG}")
                A(f"v_rcp_f32 v{vG}, v{vG}")
            if i < 6: A("s_waitcnt lgkmcnt(0)")
        f = FR
        for s in range(4):
            A(f"s_waitcnt lgkmcnt({12-4*s})")
            for k in (1, 0):
                d, l = vr(DF+96+4*s,4), vr(f+8*s+4*k,4)
                a, b = (d, l) if role == 0 else (l, d)
                A(f"v_mfma_f32_32x32x16_bf16 {vr(ACC+16*k,16)}, {a}, {b}, {vr(ACC+16*k,16)}")
    A(f"s_cmp_lg_u32 s{sROLE}, 0")
    A("s_cbranch_scc1 k3_role1")
    body(0)
    A("s_branch k3_fin")
    A("k3_role1:")
    body(1)
    A("k3_fin:")
    ST.at(9)
    A("s_nop 10")
    for g in range(4): A(f"ds_write_b128 v{vT+5}, {vr(ACC+16+4*g,4)} offset:{1024*g}")
    A("s_waitcnt lgkmcnt(0)")
    A("s_barrier")
    for g in range(4): A(f"ds_read_b128 {vr(ACC+16+4*g,4)}, v{vT+6} offset:{1024*g}")
    P = FR
    for g in range(4):
        A(f"s_waitcnt lgkmcnt({3-g})")
        for r in range(4*g, 4*g+4): A(f"v_sub_f32 v{ACC+r}, v{ACC+r}, v{ACC+16+r}")
        for r in range(4*g, 4*g+4): A(f"v_fma_f32 v{ACC+r}, v{vG}, v{ACC+r}, v{ACC+16+r}")
        for r in range(2*g, 2*g+2): A(f"v_cvt_pk_bf16_f32 v{P+r}, v{ACC+2*r}, v{ACC+2*r+1}")
        if g & 1:
            t = g >> 1
            A(f"v_permlane32_swap_b32 v{P+4*t}, v{P+4*t+2}")
            A(f"v_permlane32_swap_b32 v{P+4*t+1}, v{P+4*t+3}")
            A(f"buffer_store_dwordx4 {vr(P+4*t,4)}, v{vOA}, {sr(sOUT,4)}, s{sOA} offen offset:{32*t}")
    ST.dump(sWS, sW, 4, vT)
    A("k3_end:")
    A("s_endpgm")
    return A.L, NV, 102 if DIAG else 64
```

```python
import sys, numpy as np
from asmlib import *
from k1 import gen_k1
from k2 import gen_k2, K2_LDS, TS_BYTES
from k3 import gen_k3, K3_LDS, TAB_INV_BYTES
NAME = "gated_mix__spectral_gfnet__softmax_full_mha__prompt"
def bf16(x):
    u = np.asarray(x, dtype=np.float32).view(np.uint32).astype(np.uint64)
    return ((u + 0x7fff + ((u >> 16) & 1)) >> 16).astype(np.uint16)
def perm(u, h, j): return 16 * u + 8 * (j >> 2) + 4 * h + (j & 3)
def cs(num, den):
    num = num % den
    a = 2 * np.pi * num / den
    c, s = np.cos(a), np.sin(a)
    c = np.where(np.abs(c) < 1e-12, 0.0, c); s = np.where(np.abs(s) < 1e-12, 0.0, s)
    return c, s
def small_tables():
    l = np.arange(64); m = l & 31; h = l >> 5
    out = []
    F = np.zeros((3, 2, 4, 64, 8))
    for mt in range(2):
        for u in range(4):
            for j in range(8):
                c, s = cs((32 * mt + m) * perm(u, h, j), 64)
                F[0, mt, u, :, j] = c; F[1, mt, u, :, j] = s; F[2, mt, u, :, j] = -s
    out.append(bf16(F).tobytes())
    G = np.zeros((3, 2, 64, 8))
    for t in range(2):
        for j in range(8):
            c, s = cs(m * perm(t, h, j), 32)
            G[0, t, :, j] = c; G[1, t, :, j] = s; G[2, t, :, j] = -s
    out.append(bf16(G).tobytes())
    T = np.zeros((2, 2, 4, 64, 4), np.float32)
    for nt in range(2):
        for g in range(4):
            for i in range(4):
                c, s = cs((32 * nt + m) * (8 * g + 4 * h + i), 2048)
                T[nt, 0, g, :, i] = c; T[nt, 1, g, :, i] = s
    out.append(T.tobytes())
    b = b"".join(out)
    assert len(b) == TS_BYTES
    q = np.frombuffer(b, dtype=np.uint64)
    return [".quad " + ",".join(hex(int(v)) for v in q[i:i+8]) for i in range(0, len(q), 8)]
def big_tables():
    L = []
    c448, _ = cs(np.arange(448), 448)
    for i, v in enumerate(bf16(c448)): L.append(f".set C{i},{int(v)}")
    SD = 2048 * 448
    for i, v in enumerate(bf16(2 * c448 / SD)): L.append(f".set D{i},{int(v)}")
    L.append(f".set D448,{int(bf16([1/SD])[0])}"); L.append(f".set D449,{int(bf16([-1/SD])[0])}")
    for kr in range(448):
        if kr <= 112: k2, ph = 2 * kr, 0
        elif kr < 224: k2, ph = 2 * (kr - 112), 112
        elif kr < 336: k2, ph = 2 * (kr - 224) + 1, 0
        else: k2, ph = 2 * (kr - 336) + 1, 112
        md, ad = 448, 0
        if kr == 0: ad = 448
        if kr == 112: k2, md, ad = 1, 2, 448
        L.append(f".set KA{kr},{k2}\n.set KB{kr},{ph}\n.set KC{kr},{md}\n.set KD{kr},{ad}")
    L.append(r""".altmacro
.macro FW4 a,b,c,d
.short C\a,C\b,C\c,C\d
.endm
.macro LK i
.short D\i
.endm
.macro IV1 d,r
LK %((KA\r*\d+KB\r)%KC\r+KD\r)
.endm
.p2align 8
tab_fwd:
.set td,0
.rept 448
.set tg,0
.rept 14
.set tk,(tg>>1)*32
.set tp,(tg&1)*112
.rept 8
FW4 %((tk*td+tp)%448),%(((tk+1)*td+tp)%448),%(((tk+2)*td+tp)%448),%(((tk+3)*td+tp)%448)
.set tk,tk+4
.endr
.set tg,tg+1
.endr
FW4 %((224*td)%448),112,112,112
.fill 60,2,0
.set td,td+1
.endr
.p2align 8
tab_inv:
.set tn,0
.rept 14
.set tc,0
.rept 28
.set tr,tc*16
.set tl,0
.rept 64
.set tj,0
.rept 8
IV1 %(tn*32+(tl&31)),%(tr+(tl>>5)*8+tj)
.set tj,tj+1
.endr
.set tl,tl+1
.endr
.set tc,tc+1
.endr
.set tn,tn+1
.endr
.noaltmacro""")
    return L
def desc(name, nv, ns):
    return f""".p2align 6
.amdhsa_kernel {name}
  .amdhsa_next_free_vgpr {nv}
  .amdhsa_next_free_sgpr {ns}
  .amdhsa_accum_offset {(nv+3)//4*4}
  .amdhsa_group_segment_fixed_size 0
  .amdhsa_kernarg_size 80
  .amdhsa_user_sgpr_count 2
  .amdhsa_user_sgpr_kernarg_segment_ptr 1
  .amdhsa_system_sgpr_workgroup_id_x 1
.end_amdhsa_kernel"""
import os
def main(path, which=tuple(int(c) for c in os.environ.get('WHICH', '123'))):
    ks = [("k1_kernel", gen_k1, 256, 512, 131072), ("k2_kernel", gen_k2, 256, 320, K2_LDS), ("k3_kernel", gen_k3, 224, 256, K3_LDS)]
    o = ["; gated mix of a GFNet spectral filter and 16-head softmax attention (3 launches; generated by gen/gen.py)"]
    for i, (n, g, grid, blk, lds) in enumerate(ks):
        if i + 1 in which: o.append(f"; @launch kernel={n} grid=({grid},1,1) block=({blk},1,1) lds={lds}")
    o.append('.amdgcn_target "amdgcn-amd-amdhsa--gfx950"')
    o.append(f".set TAB_INV_BYTES,{TAB_INV_BYTES}")
    o.append(".text")
    ds = []
    for n, g, grid, blk, lds in ks:
        L, nv, ns = g()
        rep = []
        x = os.environ.get("X1", "")
        if n == "k1_kernel":
            if x == "nost": L = [l for l in L if "buffer_store_dwordx4" not in l]
            if x == "nt": L = [l + " nt" if "buffer_store_dwordx4" in l else l for l in L]
            if x == "sc1": L = [l + " sc1" if "buffer_store_dwordx4" in l else l for l in L]
            if x == "sc01": L = [l + " sc0 sc1" if "buffer_store_dwordx4" in l else l for l in L]
            if x == "noW": L = [l for l in L if not ("buffer_store_dwordx4" in l and "s52" in l)]
            if x == "onlyW": L = [l for l in L if not ("buffer_store_dwordx4" in l and "s52" not in l)]
            if x == "noY": L = [l for l in L if not ("buffer_store_dwordx4" in l and any(f"v[{r}:" in l for r in range(76, 108)))]
            if x == "noWld": L = [l for l in L if "buffer_load_ushort" not in l]
            if x == "nopf": L = [l for l in L if "s[56:57]" not in l or "global_load" not in l]
        L = fix_hazards(L, rep)
        print(n, "lines", len(L), "nops inserted", len(rep), file=sys.stderr)
        if "-v" in sys.argv:
            for r in rep: print("   ", r, file=sys.stderr)
        o += [f".globl {n}", ".p2align 8", f".type {n},@function", f"{n}:"] + L
        ds.append(desc(n, nv, ns))
    o.append(".fill 2048,4,0xbf810000")
    o.append('.section .rodata,"a"')
    o += ds
    o.append(".p2align 8"); o.append("tab_small:"); o += small_tables()
    o.append(".fill 2048,1,0")
    o += big_tables()
    open(path, "w").write("\n".join(o) + "\n")
if __name__ == "__main__":
    main(sys.argv[1] if len(sys.argv) > 1 and not sys.argv[1].startswith("-") else f"cdna_kernels/{NAME}.s")
```

```python
from asmlib import *
import math, os
WS_Q, WS_K, WS_V, WS_Y, WS_W, WS_O, WS_Z, WS_G = 0x0, 0x200000, 0x400000, 0x600000, 0x840000, 0xA80000, 0xC80000, 0xE50000
WS_FO, WS_FZ = 0xE60000, 0xE90000
YB, WP, ZP = 32896, 16512, 4224
WS_BYTES = 0x1000000
import struct
def f2u(x): return struct.unpack("<I", struct.pack("<f", x))[0]
QSCALE = f2u(28 ** -0.5 * math.log2(math.e))

STF = os.environ.get('STF', 'sc1')
def gen_k1():
    A = Asm()
    sX, sB, sWS, sWR, sWI = 8, 12, 16, 20, 24
    sPC = 28
    sW, sMT, sNT, sC, sCA, sCB, sPITCH, sP4, sT, sT2, sBB = 30, 31, 32, 33, 34, 35, 36, 37, 38, 39, 40
    sGS, sLA, sLB, sP64, sP384, sJ = 41, 42, 43, 44, 45, 46
    sW0 = 48
    sWST = 52
    sW8 = 47
    sGW = 60
    sC0 = 53
    vGW, vGA = 76, 84
    ACC = 0
    vL, vA0, vA1, vB = 64, 65, 66, 67
    vRA, vRB = 68, 72
    FA, FB = 76, 84
    MC, MS, MN = 116, 124, 132
    WL = 140
    vT = 156
    vWO = 172
    vST = 173
    PK = 176
    NV = 209

    A("s_cmp_ge_u32 s2, 256")
    A("s_cbranch_scc1 k1_end")
    ST = Stamps(A, 0); ST.begin()
    A(f"s_load_dwordx2 {sr(sX,2)}, s[0:1], 0")
    A(f"s_load_dwordx2 {sr(sB,2)}, s[0:1], 32")
    A(f"s_load_dwordx2 {sr(sWS,2)}, s[0:1], 72")
    A(f"s_load_dwordx2 {sr(sWR,2)}, s[0:1], 8")
    A(f"s_load_dwordx2 {sr(sWI,2)}, s[0:1], 16")
    A(f"s_load_dwordx2 {sr(sGW,2)}, s[0:1], 48")
    A(f"s_getpc_b64 {sr(sPC,2)}")
    A("k1_pc:")
    A(f"v_and_b32 v{vL}, 63, v0")
    A(f"v_lshrrev_b32 v{vT}, 6, v0")
    A(f"v_mul_u32_u24 v{vT+1}, 14, v{vT}")
    A(f"v_add_lshl_u32 v{vT+1}, v{vT+1}, v{vL}, 7")
    A("s_mov_b64 exec, 0x3fff")
    A(f"global_load_dword v208, v{vT+1}, {sr(sPC,2)}")
    A("s_mov_b64 exec, -1")
    A(f"v_readfirstlane_b32 s{sW8}, v{vT}")
    A(f"s_lshr_b32 s{sJ}, s2, 3")
    A(f"s_and_b32 s{sT}, s{sJ}, 3")
    A(f"s_lshr_b32 s{sT2}, s{sJ}, 2")
    A(f"s_bfe_u32 s{sMT}, s2, 0x20001")
    A(f"s_lshl_b32 s{sMT}, s{sMT}, 2")
    A(f"s_add_u32 s{sMT}, s{sMT}, s{sT}")
    A(f"s_and_b32 s{sNT}, s2, 1")
    A(f"s_lshl_b32 s{sNT}, s{sNT}, 3")
    A(f"s_add_u32 s{sNT}, s{sNT}, s{sT2}")
    A(f"s_lshl_b32 s{sT}, s{sT}, 1")
    A(f"s_add_u32 s{sC}, s{sT}, s{sT2}")
    A(f"s_cmp_ge_u32 s{sC}, 7")
    A(f"s_cselect_b32 s{sT}, 7, 0")
    A(f"s_sub_u32 s{sC}, s{sC}, s{sT}")
    A(f"s_and_b32 s{sW}, s{sW8}, 3")
    A(f"s_lshl_b32 s{sBB}, s{sMT}, 2")
    A(f"s_add_u32 s{sBB}, s{sBB}, s{sW}")
    A(f"s_movk_i32 s{sPITCH}, 1024")
    A(f"s_cmp_ge_u32 s{sNT}, 12")
    A(f"s_cselect_b32 s{sPITCH}, s{sPITCH}, 2688")
    A(f"s_cselect_b32 s{sGS}, 64, 56")
    A(f"s_lshl_b32 s{sLA}, s{sW}, 12")
    A(f"s_cmp_lt_u32 s{sW8}, 4")
    A("s_cbranch_scc1 k1_comp")
    A(f"s_mul_i32 s{sT}, s{sNT}, 224")
    A(f"s_lshl_b32 s{sT2}, s{sNT}, 8")
    A(f"s_sub_u32 s{sT2}, s{sT2}, 3072")
    A(f"s_cmp_ge_u32 s{sNT}, 12")
    A(f"s_cselect_b32 s{sCB}, s{sT2}, s{sT}")
    A(f"s_lshl_b32 s{sP4}, s{sPITCH}, 2")
    A(f"s_sub_u32 s{sP4}, s{sP4}, 1024")
    A(f"s_lshl_b32 s{sP64}, s{sPITCH}, 6")
    A(f"s_mul_i32 s{sP384}, s{sP64}, 7")
    A(f"s_lshl_b32 s{sT}, s{sC}, 2")
    A(f"s_add_u32 s{sT}, s{sT}, s{sW}")
    A(f"s_lshl_b32 s{sT}, s{sT}, 4")
    A(f"s_mul_i32 s{sT}, s{sT}, s{sPITCH}")
    A(f"s_add_u32 s{sCB}, s{sCB}, s{sT}")
    A(f"s_mul_i32 s{sCA}, s{sBB}, 896")
    A(f"s_lshl_b32 s{sT}, s{sC}, 7")
    A(f"s_add_u32 s{sCA}, s{sCA}, s{sT}")
    A(f"s_add_u32 s{sLB}, s{sLA}, 16384")
    A(f"v_lshrrev_b32 v{vT}, 3, v{vL}")
    A(f"v_mul_u32_u24 v{vA0}, 57344, v{vT}")
    A(f"v_lshrrev_b32 v{vT+1}, 4, v{vL}")
    A(f"v_and_b32 v{vT+3}, 7, v{vL}")
    A(f"v_xor_b32 v{vT+3}, v{vT+3}, v{vT+1}")
    A(f"v_lshl_add_u32 v{vA0}, v{vT+3}, 4, v{vA0}")
    A(f"v_xor_b32 v{vA1}, 64, v{vA0}")
    A(f"v_mul_u32_u24 v{vB}, s{sPITCH}, v{vT+1}")
    A(f"v_bfe_u32 v{vT+3}, v{vL}, 2, 2")
    A(f"v_xor_b32 v{vT+3}, v{vT+3}, v{vT+1}")
    A(f"v_lshl_add_u32 v{vB}, v{vT+3}, 6, v{vB}")
    A(f"v_and_b32 v{vT+3}, 3, v{vL}")
    A(f"v_lshl_add_u32 v{vB}, v{vT+3}, 4, v{vB}")
    A(f"s_getpc_b64 {sr(56,2)}")
    A("s_add_u32 s56, s56, tab_fwd@rel32@lo+4")
    A("s_addc_u32 s57, s57, tab_fwd@rel32@hi+12")
    A(f"s_mov_b32 s{sX+2}, 1835008")
    A(f"s_mov_b32 s{sX+3}, 0x20000")
    A(f"s_mov_b32 s{sB+2}, 458752")
    A(f"s_mov_b32 s{sB+3}, 0x20000")
    A("s_waitcnt lgkmcnt(0)")
    A(f"s_cmp_ge_u32 s{sNT}, 12")
    A(f"s_cselect_b32 s{sB}, s56, s{sB}")
    A(f"s_cselect_b32 s{sB+1}, s57, s{sB+1}")
    A(f"s_cselect_b32 s{sB+2}, s{sB+2}, 1204224")

    def issue_chunk(slot):
        A(f"s_add_u32 m0, s{sLA}, {32768*slot}")
        for i in range(4):
            if i == 0: so = sCA
            else:
                A(f"s_add_u32 s{sT}, s{sCA}, {i*457728}"); so = sT
            if os.environ.get("X1") != "noA": A(f"buffer_load_dwordx4 v{vA0 if i%2==0 else vA1}, {sr(sX,4)}, s{so} offen offset:{1024*i} lds")
        A(f"s_add_u32 m0, s{sLB}, {32768*slot}")
        for i in range(4):
            if i == 0: so = sCB
            elif i == 1: A(f"s_add_u32 s{sT}, s{sCB}, s{sP4}"); so = sT
            else: A(f"s_add_u32 s{sT}, s{sT}, s{sP4}"); so = sT
            if os.environ.get("X1") != "noB": A(f"buffer_load_dwordx4 v{vB}, {sr(sB,4)}, s{so} offen offset:{1024*i} lds")
        A(f"s_add_u32 s{sCA}, s{sCA}, 128")
        A(f"s_add_u32 s{sCB}, s{sCB}, s{sP64}")
        A(f"s_add_u32 s{sC}, s{sC}, 1")
        A(f"s_cmp_eq_u32 s{sC}, 7")
        A(f"s_cselect_b32 s{sT}, 896, 0")
        A(f"s_cselect_b32 s{sT2}, s{sP384}, 0")
        A(f"s_cselect_b32 s{sC}, 0, s{sC}")
        A(f"s_sub_u32 s{sCA}, s{sCA}, s{sT}")
        A(f"s_sub_u32 s{sCB}, s{sCB}, s{sT2}")
    A(f"v_bfe_u32 v{vT+3}, v{vL}, 2, 2")
    A(f"v_xor_b32 v{vT+3}, v{vT+3}, v{vT+1}")
    A(f"v_lshlrev_b32 v{vT+3}, 2, v{vT+3}")
    A(f"v_and_or_b32 v{vT+3}, v{vL}, 3, v{vT+3}")
    A(f"s_cmp_ge_u32 s{sNT}, 12")
    A(f"s_cselect_b32 s{sT}, 16, 14")
    A(f"v_cmp_le_u32 vcc, s{sT}, v{vT+3}")
    A(f"v_mov_b32 v{vT+4}, 0x40000000")
    A(f"s_mov_b32 s{sGW+2}, 896")
    A(f"s_mov_b32 s{sGW+3}, 0x20000")
    A(f"v_cndmask_b32 v{vB}, v{vB}, v{vT+4}, vcc")
    A(f"s_cmp_lg_u32 s{sNT}, 15")
    A("s_cbranch_scc1 k1_nog")
    A(f"v_and_b32 v{vT+4}, 15, v{vL}")
    A(f"v_lshlrev_b32 v{vT+5}, 1, v{vT+4}")
    A(f"s_lshl_b32 s{sT}, s{sW}, 5")
    A(f"s_lshl_b32 s{sT2}, s{sC}, 7")
    A(f"s_add_u32 s{sT}, s{sT}, s{sT2}")
    for i in range(7):
        A(f"buffer_load_ushort v{vGW+i}, v{vT+5}, {sr(sGW,4)}, s{sT} offen")
        if i < 6:
            A(f"s_add_u32 s{sT}, s{sT}, 128")
            A(f"s_cmp_ge_u32 s{sT}, 896")
            A(f"s_cselect_b32 s{sT2}, 896, 0")
            A(f"s_sub_u32 s{sT}, s{sT}, s{sT2}")
    A(f"v_and_b32 v{vT+5}, 3, v{vL}")
    A(f"v_xor_b32 v{vT+5}, 3, v{vT+5}")
    A(f"v_lshlrev_b32 v{vT+5}, 6, v{vT+5}")
    A(f"v_lshl_add_u32 v{vGA}, v{vT+4}, 8, v{vT+5}")
    A(f"v_add_u32 v{vGA}, s{sLB}, v{vGA}")
    A(f"v_add_u32 v{vGA+1}, 0x10000, v{vGA}")
    A("k1_nog:")
    ST.at(0)
    issue_chunk(0); issue_chunk(1)
    ST.at(1)
    for r in (sWS, sWR, sWI):
        A(f"s_mov_b32 s{r+2}, {WS_BYTES if r == sWS else 921600}")
        A(f"s_mov_b32 s{r+3}, 0x20000")
    A(f"s_lshr_b32 s{sT}, s2, 4")
    A(f"s_bfe_u32 s{sT2}, s2, 0x20002")
    A(f"s_lshl_b32 s{sT2}, s{sT2}, 1")
    A(f"s_and_b32 s{sW0}, s{sW}, 1")
    A(f"s_add_u32 s{sT2}, s{sT2}, s{sW0}")
    A(f"s_lshl_b32 s{sWST}, s{sT}, 3")
    A(f"s_add_u32 s{sWST}, s{sWST}, s{sT2}")
    A(f"s_mul_i32 s{sWST}, s{sWST}, {WP}")
    A(f"s_lshl_b32 s{sW0}, s{sT}, 5")
    A(f"s_add_u32 s{sW0}, s{sW0}, s{sT2}")
    A(f"s_mul_i32 s{sW0}, s{sW0}, 1800")
    A(f"s_and_b32 s{sT}, s2, 3")
    A(f"s_lshl_b32 s{sT}, s{sT}, 1")
    A(f"s_lshr_b32 s{sT2}, s{sW}, 1")
    A(f"s_add_u32 s{sT}, s{sT}, s{sT2}")
    A(f"s_lshl_b32 s{sT2}, s{sT}, 6")
    A(f"s_add_u32 s{sW0}, s{sW0}, s{sT2}")
    for i in range(1, 4): A(f"s_add_u32 s{sW0+i}, s{sW0}, {14400*i}")
    A(f"s_lshl_b32 s{sT2}, s{sT}, 11")
    A(f"s_add_u32 s{sWST}, s{sWST}, s{sT2}")
    A(f"s_add_u32 s{sWST}, s{sWST}, {WS_W}")
    A(f"v_lshrrev_b32 v{vT}, 5, v{vL}")
    A(f"v_mul_u32_u24 v{vT}, 900, v{vT}")
    A(f"v_and_b32 v{vWO}, 31, v{vL}")
    A(f"v_lshl_add_u32 v{vWO}, v{vWO}, 1, v{vT}")
    A(f"v_lshlrev_b32 v{vST}, 4, v{vL}")
    A(f"s_lshl_b32 s{sT}, s{sW}, 11")
    A(f"s_add_u32 s{sT}, s{sT}, {3*32768}")
    A(f"v_and_b32 v{vT+6}, 31, v{vL}")
    A(f"v_lshlrev_b32 v{vT+6}, 6, v{vT+6}")
    A(f"v_and_or_b32 v{vT+6}, v{vL}, 32, v{vT+6}")
    A(f"v_add_u32 v{vT+6}, s{sT}, v{vT+6}")
    A(f"v_add_u32 v{vT+7}, s{sT}, v{vST}")
    def wloads(kk):
        for p, srd in enumerate((sWR, sWI)):
            for i in range(4):
                A(f"buffer_load_ushort v{WL+8*kk+4*p+i}, v{vWO}, {sr(srd,4)}, s{sW0+i} offen offset:{450*kk}")
    for i in range(7):
        A(f"s_waitcnt vmcnt({8 if i < 6 else 16})")
        A(f"s_cmp_lg_u32 s{sNT}, 15")
        A(f"s_cbranch_scc1 k1_ng{i}")
        A(f"ds_write_b16 v{vGA + ((i % 4) >> 1)}, v{vGW+i} offset:{32768*(i&1)}")
        A("s_waitcnt lgkmcnt(0)")
        A(f"k1_ng{i}:")
        A("s_barrier")
        ST.at(2 + i)
        if i + 2 <= 6: issue_chunk((i + 2) % 4)
        if i == 5: wloads(0); wloads(1)
    A("s_waitcnt vmcnt(0)")
    for kk in range(2):
        for p in range(4):
            A(f"v_lshl_or_b32 v{WL+8*kk+p}, v{WL+8*kk+2*p+1}, 16, v{WL+8*kk+2*p}")
    for kk in range(2): A(f"ds_write_b128 v{vT+6}, {vr(WL+8*kk,4)} offset:{16*kk}")
    A("s_waitcnt lgkmcnt(0)")
    for kk in range(2): A(f"ds_read_b128 {vr(WL+8*kk,4)}, v{vT+7} offset:{1024*kk}")
    A("s_waitcnt lgkmcnt(0)")
    for kk in range(2):
        A(f"buffer_store_dwordx4 {vr(WL+8*kk,4)}, v{vST}, {sr(sWS,4)}, s{sWST} offen offset:{1024*kk} {STF}")
    A(f"s_lshl_b32 s{sT}, s2, 2")
    A(f"s_add_u32 s{sT}, s{sT}, s{sW}")
    A(f"s_lshl_b32 s{sT}, s{sT}, 7")
    A(f"s_add_u32 s{sT}, s{sT}, {WS_FO}")
    A(f"v_mov_b32 v{vT}, 0")
    A("s_mov_b64 exec, 1")
    A(f"buffer_store_dword v{vT}, v{vT}, {sr(sWS,4)}, s{sT} offen")
    A(f"s_cmp_lg_u32 s{sW}, 0")
    A("s_cbranch_scc1 k1_nz")
    A(f"s_lshl_b32 s{sT}, s2, 7")
    A(f"s_add_u32 s{sT}, s{sT}, {WS_FZ}")
    A(f"buffer_store_dword v{vT}, v{vT}, {sr(sWS,4)}, s{sT} offen")
    A("k1_nz:")
    A("s_mov_b64 exec, -1")
    A(f"s_cmp_ge_u32 s{sW}, 2")
    A("s_cbranch_scc1 k1_pf")
    A(f"s_load_dwordx2 {sr(sX,2)}, s[0:1], 40")
    A(f"s_getpc_b64 {sr(56,2)}")
    A("s_add_u32 s56, s56, tab_inv@rel32@lo+4")
    A("s_addc_u32 s57, s57, tab_inv@rel32@hi+12")
    A(f"s_mov_b32 s{sX+2}, 401408")
    A(f"s_mul_i32 s{sT}, s2, {13*128}")
    A(f"v_lshl_add_u32 v{vT}, v{vL}, 7, s{sT}")
    A("s_waitcnt lgkmcnt(0)")
    A(f"s_cmp_eq_u32 s{sW}, 1")
    A(f"s_cselect_b32 s{sX}, s56, s{sX}")
    A(f"s_cselect_b32 s{sX+1}, s57, s{sX+1}")
    A("s_mov_b64 exec, 0x1fff")
    A(f"buffer_load_dword v{vT+2}, v{vT}, {sr(sX,4)}, 0 offen")
    A("s_mov_b64 exec, -1")
    A("s_branch k1_pf")
    A("k1_comp:")
    A(f"s_mov_b32 s{sWS+2}, {WS_BYTES}")
    A(f"s_mov_b32 s{sWS+3}, 0x20000")
    A(f"v_lshlrev_b32 v{vST}, 4, v{vL}")
    A(f"v_and_b32 v{vT}, 31, v{vL}")
    A(f"v_lshrrev_b32 v{vT+1}, 5, v{vL}")
    A(f"v_bfe_u32 v{vT+2}, v{vL}, 1, 3")
    A(f"v_xor_b32 v{vT+2}, v{vT+2}, v{vT+1}")
    A(f"v_lshlrev_b32 v{vT+2}, 4, v{vT+2}")
    A(f"v_lshl_add_u32 v{vT+2}, v{vT}, 7, v{vT+2}")
    A(f"v_add_u32 v{vRA}, s{sLA}, v{vT+2}")
    for u in range(1, 4): A(f"v_xor_b32 v{vRA+u}, {32*u}, v{vRA}")
    A(f"v_bfe_u32 v{vT+2}, v{vL}, 2, 2")
    A(f"v_lshl_add_u32 v{vT+3}, v{vT+1}, 3, v{vT+2}")
    A(f"v_lshlrev_b32 v{vT+3}, 8, v{vT+3}")
    A(f"v_add_u32 v{vT+3}, 16384, v{vT+3}")
    A(f"v_bfe_u32 v{vT+4}, v{vL}, 4, 1")
    A(f"v_lshlrev_b32 v{vT+4}, 5, v{vT+4}")
    A(f"v_and_b32 v{vT+5}, 3, v{vL}")
    A(f"v_lshl_add_u32 v{vT+4}, v{vT+5}, 3, v{vT+4}")
    A(f"v_lshlrev_b32 v{vT+2}, 6, v{vT+2}")
    for g in range(4):
        A(f"v_xor_b32 v{vT+5}, v{vT+4}, v{vT+2}")
        A(f"v_add_u32 v{vRB+g}, v{vT+5}, v{vT+3}")
        if g < 3: A(f"v_add_u32 v{vT+4}, s{sGS}, v{vT+4}")
    A(f"s_cmp_lt_u32 s{sNT}, 12")
    A("s_cbranch_scc1 k1_nom")
    A(f"v_lshl_add_u32 v{vT+2}, v{vT+1}, 8, s{sBB}")
    A(f"v_mul_u32_u24 v{vT+2}, v{vT+2}, v{vT}")
    A(f"v_cvt_f32_u32 v{vT+2}, v{vT+2}")
    A(f"v_mul_f32 v{vT+2}, {hex(f2u(1/2048))}, v{vT+2}")
    A(f"v_cvt_f32_u32 v{vT+3}, v{vT}")
    A(f"v_mul_f32 v{vT+3}, {hex(f2u(1/32))}, v{vT+3}")
    for t in range(2):
        for jp in range(4):
            for e in range(2):
                j = 2 * jp + e
                n = 16 * t + 8 * (j >> 2) + (j & 3)
                A(f"v_fmamk_f32 v{vT+4+e}, v{vT+3}, {hex(f2u(float(n)))}, v{vT+2}")
                A(f"v_fract_f32 v{vT+4+e}, v{vT+4+e}")
            A(f"v_cos_f32 v{vT+6}, v{vT+4}")
            A(f"v_cos_f32 v{vT+7}, v{vT+5}")
            A(f"v_sin_f32 v{vT+8}, v{vT+4}")
            A(f"v_sin_f32 v{vT+9}, v{vT+5}")
            A(f"v_cvt_pk_bf16_f32 v{MC+4*t+jp}, v{vT+6}, v{vT+7}")
            A(f"v_cvt_pk_bf16_f32 v{MS+4*t+jp}, v{vT+8}, v{vT+9}")
            A(f"v_cvt_pk_bf16_f32 v{MN+4*t+jp}, -v{vT+8}, -v{vT+9}")
    A("k1_nom:")

    def rdA(buf, slot, u):
        A(f"ds_read_b128 {vr(FA+4*buf,4)}, v{vRA+u} offset:{32768*(slot&1)}")
    def rdB(buf, slot, u, g):
        off = 32768 * (slot & 1) + 4096 * u
        A(f"ds_read_b64_tr_b16 {vr(FB+16*buf+4*g,2)}, v{vRB+g} offset:{off}")
        A(f"ds_read_b64_tr_b16 {vr(FB+16*buf+4*g+2,2)}, v{vRB+g} offset:{off+1024}")
    def mainloop(swap):
        A("s_waitcnt lgkmcnt(0)")
        A("s_barrier")
        ST.at(2)
        rdA(0, 0, 0)
        for g in range(4): rdB(0, 0, 0, g)
        for n in range(28):
            i, u = n // 4, n % 4
            buf = n & 1
            i2, u2 = (n + 1) // 4, (n + 1) % 4
            if u == 3 and i < 6:
                if i2 in (2, 4, 6):
                    d = 65536 if i2 != 4 else -65536
                    for r in list(range(vRA, vRA+4)) + list(range(vRB, vRB+4)):
                        A(f"v_add_u32 v{r}, {hex(d & 0xffffffff)}, v{r}")
                A("s_barrier")
                ST.at(2 + i2)
            for g in range(4):
                if n < 27: cnt = 6 if g == 0 else 7
                else: cnt = 6 - 2 * g
                A(f"s_waitcnt lgkmcnt({cnt})")
                a_, b_ = vr(FA+4*buf,4), vr(FB+16*buf+4*g,4)
                if swap: a_, b_ = b_, a_
                A(f"v_mfma_f32_32x32x16_bf16 {vr(ACC+16*g,16)}, {a_}, {b_}, {'0' if n == 0 else vr(ACC+16*g,16)}")
                if n < 27:
                    if g == 0: rdA(buf ^ 1, i2 % 4, u2)
                    rdB(buf ^ 1, i2 % 4, u2, g)
        ST.at(9)

    A(f"s_cmp_ge_u32 s{sNT}, 8")
    A("s_cbranch_scc1 k1_vd")
    mainloop(True)
    A(f"s_and_b32 s{sT}, s{sNT}, 3")
    A(f"s_lshl_b32 s{sT}, s{sT}, 8")
    A(f"s_add_u32 s{sT}, s{sT}, s{sBB}")
    A(f"s_lshl_b32 s{sT}, s{sT}, 11")
    A(f"s_cmp_ge_u32 s{sNT}, 4")
    A(f"s_cselect_b32 s{sT2}, {WS_K}, {WS_Q}")
    A(f"s_add_u32 s{sT}, s{sT}, s{sT2}")
    A(f"s_cmp_ge_u32 s{sNT}, 4")
    A(f"s_cselect_b32 s{sGS}, 1.0, {hex(QSCALE)}")
    A(f"s_cselect_b32 s{sLA}, 0x3f803f80, 0")
    A(f"s_cselect_b32 s{sLB}, 0x3f80, 0")
    A(f"s_cselect_b32 s{sC}, 12, 0")
    A(f"v_mov_b32 v{vT+6}, s{sLA}")
    A(f"v_mov_b32 v{vT+7}, s{sLB}")
    A(f"v_lshrrev_b32 v{vT}, 1, v{vL}")
    A(f"v_xor_b32 v{vT}, v{vT}, v{vL}")
    A(f"v_and_b32 v{vT}, 4, v{vT}")
    A(f"v_mul_u32_u24 v{vT}, 3, v{vT}")
    A(f"v_and_b32 v{vT}, s{sC}, v{vT}")
    A(f"v_xor_b32 v{vT}, v{vT}, v{vL}")
    A(f"v_lshlrev_b32 v{vST}, 4, v{vT}")
    A(f"v_cmp_lt_u32 vcc, 31, v{vL}")
    for g in range(4):
        for r in range(16): A(f"v_mul_f32 v{ACC+16*g+r}, s{sGS}, v{ACC+16*g+r}")
        for r in range(8): A(f"v_cvt_pk_bf16_f32 v{PK+8*g+r}, v{ACC+16*g+2*r}, v{ACC+16*g+2*r+1}")
        A(f"v_cndmask_b32 v{PK+8*g+6}, v{PK+8*g+6}, v{vT+6}, vcc")
        A(f"v_cndmask_b32 v{PK+8*g+7}, v{PK+8*g+7}, v{vT+7}, vcc")
        if g: A(f"s_add_u32 s{sT}, s{sT}, {64*2048}")
        A(f"buffer_store_dwordx4 {vr(PK+8*g,4)}, v{vST}, {sr(sWS,4)}, s{sT} offen {STF}")
        A(f"buffer_store_dwordx4 {vr(PK+8*g+4,4)}, v{vST}, {sr(sWS,4)}, s{sT} offen offset:1024 {STF}")
    A("s_branch k1_pf")
    A("k1_vd:")
    mainloop(False)
    A(f"s_cmp_ge_u32 s{sNT}, 12")
    A("s_cbranch_scc1 k1_dft")
    A(f"s_and_b32 s{sT}, s{sNT}, 3")
    A(f"s_lshl_b32 s{sT}, s{sT}, 8")
    A(f"s_add_u32 s{sT}, s{sT}, s{sBB}")
    A(f"s_lshl_b32 s{sT}, s{sT}, 11")
    A(f"s_add_u32 s{sT}, s{sT}, {WS_V}")
    A(f"v_and_b32 v{vT}, 31, v{vL}")
    A(f"v_cmp_eq_u32 vcc, 28, v{vT}")
    A(f"v_mov_b32 v{vT+1}, 0x3f803f80")
    A(f"v_cndmask_b32 v{vT+1}, 0, v{vT+1}, vcc")
    A(f"v_cmp_lt_u32 vcc, 27, v{vT}")
    for g in range(4):
        for r in range(8): A(f"v_cvt_pk_bf16_f32 v{PK+8*g+r}, v{ACC+16*g+2*r}, v{ACC+16*g+2*r+1}")
        for r in range(8): A(f"v_cndmask_b32 v{PK+8*g+r}, v{PK+8*g+r}, v{vT+1}, vcc")
        if g: A(f"s_add_u32 s{sT}, s{sT}, {64*2048}")
        A(f"buffer_store_dwordx4 {vr(PK+8*g,4)}, v{vST}, {sr(sWS,4)}, s{sT} offen {STF}")
        A(f"buffer_store_dwordx4 {vr(PK+8*g+4,4)}, v{vST}, {sr(sWS,4)}, s{sT} offen offset:1024 {STF}")
    A("s_branch k1_pf")
    A("k1_dft:")
    A(f"s_mul_i32 s{sT}, s{sBB}, {YB}")
    A(f"s_lshl_b32 s{sT2}, s{sNT}, 13")
    A(f"s_add_u32 s{sT}, s{sT}, s{sT2}")
    A(f"s_add_u32 s{sT}, s{sT}, {WS_Y - 12*8192}")
    A(f"s_cmp_lg_u32 s{sNT}, 15")
    A("s_cbranch_scc1 k1_nogs")
    A(f"s_lshl_b32 s{sT2}, s{sBB}, 7")
    A(f"s_add_u32 s{sT2}, s{sT2}, {WS_G}")
    A(f"v_lshrrev_b32 v{vT}, 1, v{vL}")
    A("s_mov_b32 exec_lo, 1")
    A("s_mov_b32 exec_hi, 1")
    A("s_nop 7")
    for g in range(4): A(f"buffer_store_dwordx4 {vr(ACC+48+4*g,4)}, v{vT}, {sr(sWS,4)}, s{sT2} offen offset:{32*g}")
    A("s_mov_b64 exec, -1")
    A("s_nop 1")
    for r in range(16): A(f"v_mov_b32 v{ACC+48+r}, 0")
    A("k1_nogs:")
    A(f"s_lshl_b32 s{sT2}, s{sW}, 13")
    A(f"v_and_b32 v{vT}, 31, v{vL}")
    A(f"v_lshlrev_b32 v{vT}, 6, v{vT}")
    A(f"v_lshrrev_b32 v{vT+1}, 5, v{vL}")
    A(f"v_lshl_add_u32 v{vT}, v{vT+1}, 4, v{vT}")
    A(f"v_add_u32 v{vT}, s{sT2}, v{vT}")
    A(f"v_add_u32 v{vT+1}, s{sT2}, v{vST}")
    for g in range(4):
        for r in range(8): A(f"v_cvt_pk_bf16_f32 v{PK+8*g+r}, v{ACC+16*g+2*r}, v{ACC+16*g+2*r+1}")
    for cg in range(2):
        xr, xi = PK + 16 * cg, PK + 16 * cg + 8
        yr, yi = ACC + 32 * cg, ACC + 32 * cg + 16
        for t in range(2):
            A(f"v_mfma_f32_32x32x16_bf16 {vr(yr,16)}, {vr(MC+4*t,4)}, {vr(xr+4*t,4)}, {'0' if t == 0 else vr(yr,16)}")
            A(f"v_mfma_f32_32x32x16_bf16 {vr(yi,16)}, {vr(MC+4*t,4)}, {vr(xi+4*t,4)}, {'0' if t == 0 else vr(yi,16)}")
        for t in range(2):
            A(f"v_mfma_f32_32x32x16_bf16 {vr(yr,16)}, {vr(MS+4*t,4)}, {vr(xi+4*t,4)}, {vr(yr,16)}")
            A(f"v_mfma_f32_32x32x16_bf16 {vr(yi,16)}, {vr(MN+4*t,4)}, {vr(xr+4*t,4)}, {vr(yi,16)}")
    for g in range(4):
        P = FA + 8 * g
        for r in range(8): A(f"v_cvt_pk_bf16_f32 v{P+r}, v{ACC+16*g+2*r}, v{ACC+16*g+2*r+1}")
        for t in range(2):
            A(f"v_permlane32_swap_b32 v{P+4*t}, v{P+4*t+2}")
            A(f"v_permlane32_swap_b32 v{P+4*t+1}, v{P+4*t+3}")
        for t in range(2): A(f"ds_write_b128 v{vT}, {vr(P+4*t,4)} offset:{2048*g+32*t}")
        if g & 1:
            A("s_waitcnt lgkmcnt(0)")
            for k in range(4): A(f"ds_read_b128 {vr(PK+16*(g>>1)+4*k,4)}, v{vT+1} offset:{4096*(g>>1)+1024*k}")
    for k in range(8):
        if k == 4: A(f"s_add_u32 s{sT}, s{sT}, 4096")
        A(f"s_waitcnt lgkmcnt({min(7-k, 3) if k >= 4 else 4})")
        A(f"buffer_store_dwordx4 {vr(PK+4*k,4)}, v{vST}, {sr(sWS,4)}, s{sT} offen offset:{1024*(k&3)} {STF}")
    A("k1_pf:")
    ST.at(10)
    ST.dump(sWS, sW8, 8, vT+10)
    if DIAG: A("s_mov_b64 exec, -1")
    A(f"s_cmp_lg_u32 s{sW8}, 4")
    A("s_cbranch_scc1 k1_end")
    A(f"s_cmp_ge_u32 s{sJ}, 8")
    A("s_cbranch_scc1 k1_end")
    A(f"s_getpc_b64 {sr(56,2)}")
    A("s_add_u32 s56, s56, tab_small@rel32@lo+4")
    A("s_addc_u32 s57, s57, tab_small@rel32@hi+12")
    A(f"s_getpc_b64 {sr(58,2)}")
    A("s_add_u32 s58, s58, k2_kernel@rel32@lo+4")
    A("s_addc_u32 s59, s59, k2_kernel@rel32@hi+12")
    A(f"s_cmp_ge_u32 s{sJ}, 6")
    A(f"s_cselect_b32 s56, s58, s56")
    A(f"s_cselect_b32 s57, s59, s57")
    A(f"s_cselect_b32 s{sT}, 6, 0")
    A(f"s_sub_u32 s{sT}, s{sJ}, s{sT}")
    A(f"s_lshl_b32 s{sT}, s{sT}, 13")
    A(f"v_lshl_add_u32 v{vT}, v{vL}, 7, s{sT}")
    A(f"global_load_dword v{vT+1}, v{vT}, s[56:57]")
    A("k1_end:")
    A("s_endpgm")
    return A.L, NV, 102 if DIAG else 64
```

```python
from asmlib import *
from k1 import WS_Q, WS_K, WS_V, WS_Y, WS_W, WS_O, WS_Z, WS_G, WS_BYTES, WS_FO, WS_FZ, f2u, YB, WP, ZP
import math, os
TS_F64, TS_F32, TS_TW, TS_BYTES = 0, 24576, 30720, 47104
LF, LZ, RED = 0, 57344, 114688
LW = RED - 8192
LDS_Y, LDS_Q = RED, RED + 8192
K2_LDS = 163840
TAB_INV_BYTES = 401408
SPIN = 20000
N0 = int(os.environ.get("N0", 13)); N1 = (64 - N0) // 3
assert N0 + 3 * N1 == 64
OST = os.environ.get("OST", "")

def merge(ms, vs, lead=0):
    out = []; n = len(ms); k = 0
    for i, m in enumerate(ms):
        out.append(m)
        k2 = (len(vs) * (i + 1)) // n
        out += vs[k:k2]; k = k2
    return out

def gen_k2():
    A = Asm()
    sWS, sX, sTB = 8, 12, 16
    sW, sJ, sXC, sHD, sQB, sT, sT2, sCNT, sI, sKO, sLO, sHI, sVO, sPASS = 20, 21, 22, 23, 24, 25, 26, 27, 28, 29, 30, 31, 32, 33
    sK0, sOK, sQ, sOUT = 34, 35, 40, 48
    sMT, sNT, sPUB, sLO2 = 52, 53, 57, 58
    O, S, Q, KV = 0, 64, 128, 160
    vL, vO16, vIDX, vT = 208, 209, 210, 212
    NV = 256
    A("s_cmp_ge_u32 s2, 256")
    A("s_cbranch_scc1 k2_end")
    ST = Stamps(A, 1); ST.begin()
    A(f"s_load_dwordx2 {sr(sWS,2)}, s[0:1], 72")
    A(f"s_load_dwordx2 {sr(sX,2)}, s[0:1], 40")
    A(f"s_load_dwordx2 {sr(sOUT,2)}, s[0:1], 56")
    A(f"v_lshrrev_b32 v{vT}, 6, v0")
    A(f"v_and_b32 v{vL}, 63, v0")
    A(f"s_mov_b32 s{sWS+2}, {WS_BYTES}")
    A(f"s_mov_b32 s{sWS+3}, 0x20000")
    A(f"v_readfirstlane_b32 s{sW}, v{vT}")
    A(f"v_lshlrev_b32 v{vO16}, 4, v{vL}")
    A(f"v_and_b32 v{vT+9}, 31, v{vL}")
    A(f"v_lshlrev_b32 v{vT+9}, 2, v{vT+9}")
    A(f"s_and_b32 s{sXC}, s2, 7")
    A(f"s_lshr_b32 s{sJ}, s2, 3")
    A(f"s_and_b32 s{sT}, s{sJ}, 3")
    A(f"s_lshl_b32 s{sMT}, s{sXC}, 2")
    A(f"s_add_u32 s{sMT}, s{sMT}, s{sT}")
    A(f"s_lshr_b32 s{sNT}, s{sJ}, 2")
    A(f"s_getpc_b64 {sr(sTB,2)}")
    A(f"s_add_u32 s{sTB}, s{sTB}, tab_inv@rel32@lo+4")
    A(f"s_addc_u32 s{sTB+1}, s{sTB+1}, tab_inv@rel32@hi+12")
    A(f"s_mov_b32 s{sTB+2}, {TAB_INV_BYTES}")
    A(f"s_mov_b32 s{sTB+3}, 0x20000")
    A(f"s_cmp_eq_u32 s{sW}, 4")
    A("s_cbranch_scc1 k2_aux")
    A(f"s_lshr_b32 s{sHD}, s{sJ}, 4")
    A(f"s_lshl_b32 s{sHD}, s{sHD}, 3")
    A(f"s_add_u32 s{sHD}, s{sHD}, s{sXC}")
    A(f"s_and_b32 s{sQB}, s{sJ}, 15")
    A(f"s_cmp_eq_u32 s{sW}, 0")
    A(f"s_cselect_b32 s{sCNT}, {N0}, {N1}")
    A(f"s_mul_i32 s{sT}, s{sW}, {N1}")
    A(f"s_sub_u32 s{sT}, s{sT}, {N1-N0}")
    A(f"s_max_i32 s{sT}, s{sT}, 0")
    A(f"s_lshl_b32 s{sT2}, s{sW}, 4")
    A(f"s_cmp_le_u32 s2, 224")
    A(f"s_cselect_b32 s{sCNT}, s{sCNT}, 16")
    A(f"s_cselect_b32 s{sT}, s{sT}, s{sT2}")
    A(f"s_lshl_b32 s{sT2}, s{sHD}, 6")
    A(f"s_add_u32 s{sT}, s{sT}, s{sT2}")
    A(f"s_lshl_b32 s{sLO}, s{sT}, 11")
    A(f"s_add_u32 s{sLO}, s{sLO}, {WS_K}")
    A(f"s_lshl_b32 s{sT}, s{sCNT}, 11")
    A(f"s_add_u32 s{sHI}, s{sLO}, s{sT}")
    if os.environ.get("ROT"):
        A(f"s_mul_i32 s{sT}, s{sQB}, s{sCNT}")
        A(f"s_lshr_b32 s{sT}, s{sT}, 4")
        A(f"s_lshl_b32 s{sT}, s{sT}, 11")
        A(f"s_add_u32 s{sK0}, s{sLO}, s{sT}")
    else:
        A(f"s_mov_b32 s{sK0}, s{sLO}")
    A(f"s_lshl_b32 s{sT}, s{sQB}, 2")
    A(f"s_add_u32 s{sT}, s{sT}, s{sT2}")
    for s in range(4):
        A(f"s_add_u32 s{sQ+s}, s{sW}, {s+1}")
        A(f"s_and_b32 s{sQ+s}, s{sQ+s}, 3")
        A(f"s_add_u32 s{sT2}, s{sQ+s}, s{sT}")
        A(f"s_lshl_b32 s{sQ+4+s}, s{sT2}, 11")
    A(f"s_mov_b32 s{sKO}, s{sK0}")
    A(f"s_add_u32 s{sVO}, s{sKO}, {WS_V - WS_K}")
    A("s_waitcnt lgkmcnt(0)")
    def ldk(st, t): return f"buffer_load_dwordx4 {vr(KV+16*st+4*t,4)}, v{vO16}, {sr(sWS,4)}, s{sKO} offen offset:{1024*t}"
    def ldv(st, t): return f"buffer_load_dwordx4 {vr(KV+16*st+8+4*t,4)}, v{vO16}, {sr(sWS,4)}, s{sVO} offen offset:{1024*t}"
    def ldq(s, t): return f"buffer_load_dwordx4 {vr(Q+8*s+4*t,4)}, v{vO16}, {sr(sWS,4)}, s{sQ+4+s} offen offset:{1024*t}"
    adv = [f"s_add_u32 s{sKO}, s{sKO}, 2048", f"s_cmp_ge_u32 s{sKO}, s{sHI}", f"s_cselect_b32 s{sKO}, s{sLO2}, s{sKO}"]
    setv = f"s_add_u32 s{sVO}, s{sKO}, {WS_V - WS_K}"
    A(f"s_lshl_b32 s{sT}, s{sW}, 11")
    A(f"s_add_u32 m0, s{sT}, {LDS_Q}")
    A(ldk(0, 0))
    A(f"buffer_load_dwordx4 v{vO16}, {sr(sWS,4)}, s{sQ+7} offen lds")
    A(f"buffer_load_dwordx4 v{vO16}, {sr(sWS,4)}, s{sQ+7} offen offset:1024 lds")
    for x in [ldk(0, 1), ldv(0, 0), ldv(0, 1)]: A(x)
    A(f"s_mov_b32 s{sPASS}, 0")
    A(f"s_mov_b32 s{sOK}, 0")
    A("s_branch k2_first")
    A("k2_pass:")
    A(f"s_mov_b32 s{sKO}, s{sK0}")
    A(setv)
    for x in [ldk(0, 0), ldk(0, 1), ldv(0, 0), ldv(0, 1)]: A(x)
    A("s_waitcnt vmcnt(0)")
    A("k2_first:")
    for x in adv[:1] + [setv, ldk(1, 0), ldk(1, 1), ldv(1, 0), ldv(1, 1)] + adv[:1] + [setv, ldk(2, 0), ldk(2, 1), ldv(2, 0), ldv(2, 1)]: A(x)
    A(f"s_add_u32 s{sLO2}, s{sLO}, {3*2048}")
    A(f"s_sub_u32 s{sT}, s{sCNT}, 3")
    A(f"s_mul_i32 s{sT}, s{sT}, s{sQB}")
    A(f"s_lshr_b32 s{sT}, s{sT}, 4")
    A(f"s_lshl_b32 s{sT}, s{sT}, 11")
    A(f"s_add_u32 s{sKO}, s{sLO2}, s{sT}")
    A(f"s_cmp_lg_u32 s{sPASS}, 0")
    A("s_cbranch_scc1 k2_nobar")
    for r in range(64): A(f"v_mov_b32 v{O+r}, 0")
    A(f"v_mov_b32 v{vIDX}, 0xdddddddd")
    for s_ in range(4):
        A(f"s_lshl_b32 s{sT}, s{sQ+s_}, 11")
        A(f"s_add_u32 s{sT}, s{sT}, {LDS_Q}")
        A(f"v_add_u32 v{vT+2+s_}, s{sT}, v{vO16}")
    A("s_waitcnt vmcnt(11)")
    A("s_barrier")
    for s_ in range(4):
        for t in range(2): A(f"ds_read_b128 {vr(Q+8*s_+4*t,4)}, v{vT+2+s_} offset:{1024*t}")
    A("s_branch k2_go")
    A("k2_nobar:")
    for r in range(64): A(f"v_mov_b32 v{O+r}, 0")
    A("k2_go:")
    A(f"s_mov_b32 s{sI}, s{sCNT}")
    def qk(q, st, half):
        c = "0" if half == 0 else vr(S+16*q,16)
        return f"v_mfma_f32_32x32x16_bf16 {vr(S+16*q,16)}, {vr(KV+16*st+4*half,4)}, {vr(Q+8*q+4*half,4)}, {c}"
    def pv(q, st, half):
        return f"v_smfmac_f32_32x32x32_bf16 {vr(O+16*q,16)}, {vr(KV+16*st+8+4*half,4)}, {vr(S+16*q+8*half,8)}, v{vIDX}"
    def tile(st, first):
        nxt, prv = (st + 1) % 3, (st + 2) % 3
        for q in range(4):
            e = [f"v_exp_f32 v{S+16*q+r}, v{S+16*q+r}" for r in range(16)]
            qn, stn = (q + 1, st) if q < 3 else (0, nxt)
            qp, stp = (q - 1, st) if q > 0 else (3, prv)
            aft = {0: [], 1: [], 2: [], 3: []}
            if q == 0: aft[2] = [ldk(prv, 0)]; aft[3] = [setv]
            if q == 1: aft[1] = ["s_waitcnt vmcnt(5)"]; aft[2] = [ldk(prv, 1)]; aft[3] = adv[0:2]
            if q == 2: aft[0] = [adv[2]]; aft[2] = [ldv(prv, 0)]; aft[3] = [f"s_sub_u32 s{sI}, s{sI}, 1", "s_waitcnt vmcnt(5)"]
            if q == 3: aft[2] = [ldv(prv, 1)]; aft[3] = [f"s_cmp_eq_u32 s{sI}, 0"]
            ms = [qk(qn, stn, 0), qk(qn, stn, 1), pv(qp, stp, 0), pv(qp, stp, 1)]
            if first and q == 0:
                A("s_waitcnt lgkmcnt(0)")
                ms[2] = ms[3] = None
            if first:
                aft = {0: [], 1: [], 2: [], 3: []}
                if q == 1: aft[1] = ["s_waitcnt vmcnt(8)"]
                if q == 2: aft[3] = [f"s_sub_u32 s{sI}, s{sI}, 1", "s_waitcnt vmcnt(6)"]
                if q == 3: aft[3] = [f"s_cmp_eq_u32 s{sI}, 0"]
            for k in range(4):
                if ms[k]: A(ms[k])
                for y in aft[k]: A(y)
                for x in e[4*k:4*k+4]: A(x)
    ST.at(0)
    A("s_waitcnt vmcnt(10) lgkmcnt(6)")
    ST.at(1)
    A(qk(0, 0, 0)); A(qk(0, 0, 1))
    A("s_nop 9")
    tile(0, True)
    A("s_cbranch_scc1 k2_x0")
    loop_start = A.mark()
    A("k2_loop:")
    if DIAG:
        A("s_waitcnt lgkmcnt(0)")
        for i in (13, 12, 11): A(f"s_mov_b32 s{70+2*i}, s{68+2*i}")
        ST.at(10)
    for st in (1, 2, 0):
        tile(st, False)
        A(f"s_cbranch_scc1 k2_x{st}" if st != 0 else "s_cbranch_scc0 k2_loop")
    loop_end = A.mark()
    for st in (0, 1, 2):
        A(f"k2_x{st}:")
        A("s_nop 1")
        A(pv(3, st, 0)); A(pv(3, st, 1))
        if st != 2: A("s_branch k2_red")
    A("k2_red:")
    ST.at(2)
    for s in range(3):
        A(f"s_mul_i32 s{sT}, s{sQ+s}, 12288")
        A(f"s_add_u32 s{sT}, s{sT}, {RED}")
        A(f"v_add_u32 v{vT+s}, s{sT}, v{vO16}")
    A(f"s_lshl_b32 s{sT2}, s{sQB}, 2")
    A(f"s_add_u32 s{sT2}, s{sT2}, s{sW}")
    A(f"s_lshl_b32 s{sT}, s{sT2}, 7")
    A(f"s_add_u32 s{sT}, s{sT}, {WS_G}")
    A(f"buffer_load_dword v{vT+8}, v{vT+9}, {sr(sWS,4)}, s{sT} offen")
    for s in range(3):
        for g in range(4):
            A(f"ds_write_b128 v{vT+s}, {vr(O+16*s+4*g,4)} offset:{4096*s+1024*g}")
    A(f"s_mul_i32 s{sT}, s{sW}, 12288")
    A(f"s_add_u32 s{sT}, s{sT}, {RED}")
    A(f"v_add_u32 v{vT+1}, s{sT}, v{vO16}")
    A(f"s_lshl_b32 s{sT2}, s{sT2}, 4")
    A(f"s_add_u32 s{sT2}, s{sT2}, s{sHD}")
    A(f"s_lshl_b32 s{sKO}, s{sT2}, 11")
    A(f"s_add_u32 s{sKO}, s{sKO}, {WS_O}")
    A(f"s_lshl_b32 s{sVO}, s{sT2}, 7")
    A(f"s_add_u32 s{sVO}, s{sVO}, {WS_FO}")
    A("s_waitcnt vmcnt(0) lgkmcnt(0)")
    ST.at(3)
    A("s_barrier")
    ST.at(4)
    for s in range(3):
        for g in range(4):
            A(f"ds_read_b128 {vr(S+16*s+4*g,4)}, v{vT+1} offset:{4096*s+1024*g}")
    A(f"v_mul_f32 v{vT+8}, {hex(f2u(math.log2(math.e)))}, v{vT+8}")
    A(f"v_exp_f32 v{vT+8}, v{vT+8}")
    A(f"v_cmp_lt_u32 s[38:39], 31, v{vL}")
    A(f"v_add_f32 v{vT+8}, 1.0, v{vT+8}")
    A(f"v_rcp_f32 v{vT+8}, v{vT+8}")
    R = O + 48
    for s in range(3):
        A(f"s_waitcnt lgkmcnt({8-4*s})")
        for r in list(range(12, 16)) + list(range(12)) if s == 2 else range(16): A(f"v_add_f32 v{R+r}, v{R+r}, v{S+16*s+r}")
    A(f"v_mov_b32 v{vT+4}, v{R+12}")
    A(f"v_mov_b32 v{vT+5}, v{R+12}")
    A(f"v_add_f32 v{vT+7}, abs(v{R}), abs(v{R+1})")
    A(f"v_add_f32 v{vT+7}, v{vT+7}, abs(v{R+2})")
    A(f"v_permlane32_swap_b32 v{vT+4}, v{vT+5}")
    A(f"v_rcp_f32 v{vT+6}, v{vT+5}")
    A(f"v_add_f32 v{vT+7}, v{vT+7}, abs(v{R+3})")
    A(f"v_mul_f32 v{vT+6}, v{vT+6}, v{vT+8}")
    A(f"s_cmp_lg_u32 s{sOK}, 0")
    A(f"s_mov_b32 s{sPUB}, 0")
    A("s_cbranch_scc1 k2_apart")
    for t in range(2):
        for r in range(8): A(f"v_mul_f32 v{S+8*t+r}, v{R+8*t+r}, v{vT+6}")
        for r in range(4): A(f"v_cvt_pk_bf16_f32 v{S+16+4*t+r}, v{S+8*t+2*r}, v{S+8*t+2*r+1}")
        if t == 1:
            A(f"v_cndmask_b32 v{S+22}, v{S+22}, 0, s[38:39]")
            A(f"v_cndmask_b32 v{S+23}, v{S+23}, 0, s[38:39]")
        A(f"buffer_store_dwordx4 {vr(S+16+4*t,4)}, v{vO16}, {sr(sWS,4)}, s{sKO} offen offset:{1024*t} sc1")
    for r in range(4, 16): A(f"v_add_f32 v{vT+7}, v{vT+7}, abs(v{R+r})")
    A(f"v_cmp_nle_f32 vcc, {hex(f2u(2.0**-60))}, v{vT+5}")
    A(f"s_mov_b64 s[36:37], vcc")
    A(f"v_cmp_nge_f32 vcc, {hex(f2u(2.0**60))}, v{vT+5}")
    A(f"s_or_b64 s[36:37], s[36:37], vcc")
    A(f"v_cmp_nge_f32 vcc, {hex(f2u(2.0**120))}, v{vT+7}")
    A(f"s_or_b64 s[36:37], s[36:37], vcc")
    A(f"s_cselect_b32 s{sOK}, 0, 1")
    A(f"s_or_b32 s{sOK}, s{sOK}, s{sPASS}")
    A(f"s_mov_b32 s{sPUB}, s{sOK}")
    A("k2_apart:")
    def publish(lab):
        A(f"s_cmp_eq_u32 s{sPUB}, 0")
        A(f"s_cbranch_scc1 {lab}")
        A(f"v_mov_b32 v{vT+4}, 0")
        A(f"v_mov_b32 v{vT+5}, 1")
        A("s_mov_b64 exec, 1")
        A("s_waitcnt vmcnt(0)")
        A(f"buffer_store_dword v{vT+5}, v{vT+4}, {sr(sWS,4)}, s{sVO} offen sc1")
        A("s_mov_b64 exec, -1")
        A(f"{lab}:")
    A("s_cmp_lt_u32 s2, 224")
    A("s_cbranch_scc1 k2_ap2")
    publish("k2_np0")
    A("s_branch k2_pub")
    A("k2_ap2:")
    AA, AB, OF, LB = 0, 96, 160, 32
    vG3, vZ3, vF3, vW3, vOA, vX = 228, 229, 230, 232, 234, 235
    sKH, sB3, sB = 54, 55, 56
    A(f"s_lshr_b32 s{sKH}, s{sW}, 1")
    A(f"s_and_b32 s{sB3}, s{sW}, 1")
    A(f"v_lshrrev_b32 v{vT+10}, 5, v{vL}")
    A(f"v_bfe_u32 v{vT+11}, v{vL}, 2, 2")
    A(f"v_bfe_u32 v{vT+12}, v{vL}, 4, 1")
    A(f"v_lshlrev_b32 v{vT+12}, 5, v{vT+12}")
    A(f"v_and_b32 v{vT+13}, 3, v{vL}")
    A(f"v_lshl_add_u32 v{vT+12}, v{vT+13}, 3, v{vT+12}")
    A(f"v_lshl_add_u32 v{vT+12}, v{vT+11}, 7, v{vT+12}")
    A(f"v_lshrrev_b32 v{vT+11}, 1, v{vT+11}")
    A(f"v_lshl_add_u32 v{vT+12}, v{vT+11}, 6, v{vT+12}")
    A(f"s_lshl_b32 s{sT}, s{sB3}, 6")
    A(f"v_xor_b32 v{vZ3}, s{sT}, v{vT+12}")
    A(f"v_lshl_add_u32 v{vZ3}, v{vT+10}, 10, v{vZ3}")
    A(f"s_mul_i32 s{sT2}, s{sKH}, {14*2048}")
    A(f"s_add_u32 s{sT}, s{sT2}, {LZ}")
    A(f"v_add_u32 v{vZ3}, s{sT}, v{vZ3}")
    A(f"s_lshl_b32 s{sT}, s{sKH}, 10")
    A(f"s_add_u32 s{sT}, s{sT}, s{sT2}")
    A(f"v_add_u32 v{vF3}, s{sT}, v{vO16}")
    A(f"v_xor_b32 v{vF3+1}, 1024, v{vF3}")
    steps = []
    OFr = lambda m: (OF + 4*m) if m < 12 else (128 + 4*(m-12))
    for n in range(30):
        buf = LB + 12 * (n % 3)
        if n < 14:
            rd = [f"ds_read_b64_tr_b16 {vr(buf+2*x,2)}, v{vZ3} offset:{2048*n+512*x}" for x in range(2)]
            rd += [f"ds_read_b128 {vr(buf+4+4*k,4)}, v{vF3+k} offset:{2048*n}" for k in range(2)]
            mm = [f"v_mfma_f32_32x32x16_bf16 {vr(AA+16*k,16)}, {vr(buf+4+4*k,4)}, {vr(buf,4)}, {'0' if n == 0 else vr(AA+16*k,16)}" for k in range(2)]
        else:
            m = n - 14; hd, t = m >> 1, m & 1
            rd = [f"ds_read_b64_tr_b16 {vr(buf+4+4*k+2*x,2)}, v{vW3+k} offset:{(28*hd+16*t)*128+1024*x}" for k in range(2) for x in range(2)]
            ks = (1, 0) if m == 15 else (0, 1)
            mm = [f"v_mfma_f32_32x32x16_bf16 {vr(AB+16*k,16)}, {vr(buf+4+4*k,4)}, {vr(OFr(m),4)}, {'0' if m == 0 else vr(AB+16*k,16)}" for k in ks]
        steps.append((rd, mm))
    NA = int(os.environ.get("NA", 12))
    for x in steps[0][0] + steps[1][0]: A(x)
    for n in range(14):
        if n == NA: publish("k2_np1")
        A(f"s_waitcnt lgkmcnt({4 if n < 13 else 0})")
        A(steps[n][1][0])
        if n + 2 < 14:
            for x in steps[n+2][0]: A(x)
        A(steps[n][1][1])
    A("k2_pub:")
    ST.at(5)
    A(f"v_mov_b32 v{vT+5}, s{sOK}")
    A(f"ds_write_b32 v{vT+1}, v{vT+5}")
    A("k2_chk:")
    A(f"v_mov_b32 v{vT+4}, {RED}")
    A("s_waitcnt lgkmcnt(0)")
    A("s_barrier")
    for w in range(4): A(f"ds_read_b32 v{vT+5+w}, v{vT+4} offset:{12288*w}")
    A("s_waitcnt lgkmcnt(0)")
    A(f"v_and_b32 v{vT+5}, v{vT+5}, v{vT+6}")
    A(f"v_and_b32 v{vT+7}, v{vT+7}, v{vT+8}")
    A(f"v_and_b32 v{vT+5}, v{vT+5}, v{vT+7}")
    A(f"v_readfirstlane_b32 s{sT}, v{vT+5}")
    A("s_barrier")
    A(f"s_cmp_lg_u32 s{sT}, 0")
    A("s_cbranch_scc1 k2_p3")
    A(f"s_cmp_eq_u32 s{sW}, 4")
    A("s_cbranch_scc1 k2_auxfb")
    A(f"s_mov_b32 s{sPASS}, 1")
    A("s_waitcnt vmcnt(0)")
    for q in range(4): A(f"v_mov_b32 v{O+q}, 0xff800000")
    A(f"s_mov_b32 s{sKO}, s{sLO}")
    A("k2_maxloop:")
    A(ldk(0, 0)); A(ldk(0, 1))
    A("s_waitcnt vmcnt(0)")
    for q in range(4): A(qk(q, 0, 0)); A(qk(q, 0, 1))
    A("s_nop 15")
    for q in range(4):
        for r in range(8): A(f"v_max3_f32 v{O+q}, v{O+q}, v{S+16*q+2*r}, v{S+16*q+2*r+1}")
    A(f"s_add_u32 s{sKO}, s{sKO}, 2048")
    A(f"s_cmp_lt_u32 s{sKO}, s{sHI}")
    A("s_cbranch_scc1 k2_maxloop")
    A(f"s_lshl_b32 s{sT}, s{sW}, 8")
    A(f"s_add_u32 s{sT}, s{sT}, {RED}")
    A(f"v_lshl_add_u32 v{vT}, v{vL}, 2, s{sT}")
    A(f"v_and_b32 v{vT+1}, 31, v{vL}")
    A(f"v_lshlrev_b32 v{vT+1}, 2, v{vT+1}")
    A(f"v_add_u32 v{vT+1}, {RED}, v{vT+1}")
    for s in range(4):
        A(f"s_lshl_b32 s{sT}, s{sQ+s}, 10")
        A(f"v_add_u32 v{vT+2}, s{sT}, v{vT}")
        A(f"v_add_u32 v{vT+4+s}, s{sT}, v{vT+1}")
        A(f"ds_write_b32 v{vT+2}, v{O+s}")
    A("s_waitcnt lgkmcnt(0)")
    A("s_barrier")
    for s in range(4):
        for k in range(8): A(f"ds_read_b32 v{S+8*s+k}, v{vT+4+s} offset:{128*k}")
        A("s_waitcnt lgkmcnt(0)")
    A("s_barrier")
    A(f"v_cmp_lt_u32 vcc, 31, v{vL}")
    for q in range(4):
        m = S + 8 * q
        A(f"v_max3_f32 v{m}, v{m}, v{m+1}, v{m+2}")
        A(f"v_max3_f32 v{m}, v{m}, v{m+3}, v{m+4}")
        A(f"v_max3_f32 v{m}, v{m}, v{m+5}, v{m+6}")
        A(f"v_max_f32 v{m}, v{m}, v{m+7}")
        A(f"v_xor_b32 v{m}, 0x80000000, v{m}")
        A(f"v_and_b32 v{m+1}, 0xffff0000, v{m}")
        A(f"v_sub_f32 v{m+2}, v{m}, v{m+1}")
        A(f"v_and_b32 v{m+3}, 0xffff0000, v{m+2}")
        A(f"v_sub_f32 v{m+4}, v{m+2}, v{m+3}")
        A(f"v_lshrrev_b32 v{m+1}, 16, v{m+1}")
        A(f"v_or_b32 v{m+1}, v{m+1}, v{m+3}")
        A(f"v_lshrrev_b32 v{m+4}, 16, v{m+4}")
        A(f"v_cndmask_b32 v{Q+8*q+6}, v{Q+8*q+6}, v{m+1}, vcc")
        A(f"v_cndmask_b32 v{Q+8*q+7}, v{Q+8*q+7}, v{m+4}, vcc")
    A("s_branch k2_pass")

    A("k2_p3:")
    A("s_cmp_ge_u32 s2, 224")
    A("s_cbranch_scc1 k2_dump" if DIAG else "s_cbranch_scc1 k2_end")
    A(f"s_cmp_eq_u32 s{sW}, 4")
    A("s_cbranch_scc1 k2_auxp3")
    A(f"v_lshrrev_b32 v{vT}, 3, v{vL}")
    A(f"v_and_b32 v{vT+1}, 7, v{vL}")
    A(f"v_bfe_u32 v{vT+2}, v{vL}, 4, 1")
    A(f"v_lshlrev_b32 v{vT+2}, 2, v{vT+2}")
    A(f"v_xor_b32 v{vT+1}, v{vT+1}, v{vT+2}")
    A(f"v_mul_u32_u24 v{vT}, 896, v{vT}")
    A(f"v_lshl_add_u32 v{vT}, v{vT+1}, 4, v{vT}")
    A(f"s_mov_b32 s{sX+2}, 401408")
    A(f"s_mov_b32 s{sX+3}, 0x20000")
    A(f"s_mul_i32 s{sT}, s{sW}, {112*896}")
    A(f"s_lshl_b32 s{sT2}, s{sNT}, 7")
    A(f"s_add_u32 s{sT}, s{sT}, s{sT2}")
    A(f"s_mul_i32 s{sI}, s{sW}, {112*128}")
    for i in range(14):
        if i % 4 == 0: A(f"s_add_u32 m0, s{sI}, {LW + 1024*i}")
        if i: A(f"s_add_u32 s{sT}, s{sT}, {8*896-1024 if i % 4 else 8*896+3072}")
        A(f"buffer_load_dwordx4 v{vT}, {sr(sX,4)}, s{sT} offen offset:{1024*(i%4)} lds")
    A(f"s_lshl_b32 s{sT}, s{sMT}, 1")
    A(f"s_add_u32 s{sB}, s{sT}, s{sB3}")
    A(f"s_lshl_b32 s{sT}, s{sB}, 7")
    A(f"s_add_u32 s{sT}, s{sT}, {WS_G}")
    A(f"buffer_load_dword v{vG3}, v{vT+9}, {sr(sWS,4)}, s{sT} offen")
    A(f"s_lshl_b32 s{sT}, s{sKH}, 6")
    A(f"v_xor_b32 v{vW3}, s{sT}, v{vT+12}")
    A(f"v_lshl_add_u32 v{vW3}, v{vT+10}, 9, v{vW3}")
    A(f"s_mul_i32 s{sT}, s{sKH}, {224*128}")
    A(f"s_add_u32 s{sT}, s{sT}, {LW}")
    A(f"v_add_u32 v{vW3}, s{sT}, v{vW3}")
    A(f"v_xor_b32 v{vW3+1}, 64, v{vW3}")
    A(f"s_lshl_b32 s{sT}, s{sW}, 12")
    A(f"v_add_u32 v{vX}, s{sT}, v{vO16}")
    A(f"v_xor_b32 v{vX+1}, 8192, v{vX}")
    A(f"s_lshl_b32 s{sT}, s{sB}, 1")
    A(f"s_add_u32 s{sT}, s{sT}, s{sKH}")
    A(f"s_lshl_b32 s{sT}, s{sT}, 14")
    A(f"s_add_u32 s{sKO}, s{sT}, {WS_O}")
    A(f"v_lshrrev_b32 v{vT+3}, 2, v{vT+9}")
    A(f"v_mul_u32_u24 v{vOA}, 57344, v{vT+3}")
    A(f"v_lshl_add_u32 v{vOA}, v{vT+10}, 4, v{vOA}")
    A(f"s_mul_i32 s{sVO}, s{sB}, 896")
    A(f"s_lshl_b32 s{sT}, s{sNT}, 7")
    A(f"s_add_u32 s{sVO}, s{sVO}, s{sT}")
    A(f"s_lshl_b32 s{sT}, s{sKH}, 6")
    A(f"s_add_u32 s{sVO}, s{sVO}, s{sT}")
    A(f"s_mov_b32 s{sOUT+2}, 1835008")
    A(f"s_mov_b32 s{sOUT+3}, 0x20000")
    ST.at(6)
    A("s_barrier")
    ST.at(7)
    def old(m):
        if m and m % 4 == 0: A(f"s_add_u32 s{sKO}, s{sKO}, 4096")
        A(f"buffer_load_dwordx4 {vr(OFr(m),4)}, v{vO16}, {sr(sWS,4)}, s{sKO} offen offset:{1024*(m%4)} sc1")
    NO = int(os.environ.get("NO", 8))
    for m in range(NO): old(m)
    A(f"s_waitcnt vmcnt({NO})")
    A("s_barrier")
    ST.at(8)
    for x in steps[14][0] + steps[15][0]: A(x)
    A(f"v_mul_f32 v{vG3}, {hex(f2u(-math.log2(math.e)))}, v{vG3}")
    A(f"v_exp_f32 v{vG3}, v{vG3}")
    A("s_nop 0")
    A(f"v_add_f32 v{vG3}, 1.0, v{vG3}")
    A(f"v_rcp_f32 v{vG3}, v{vG3}")
    for n in range(14, 30):
        m = n - 14
        if NO + m < 16: old(NO + m)
        A(f"s_waitcnt vmcnt({min(NO + m + 1, 16) - m - 1}) lgkmcnt({4 if n < 29 else 0})")
        A(steps[n][1][0])
        if n + 2 < 30:
            for x in steps[n+2][0]: A(x)
        A(steps[n][1][1])
    ST.at(9)
    A("s_nop 10")
    for r in range(16): A(f"v_fma_f32 v{AB+16+r}, v{vG3}, v{AA+16+r}, v{AB+16+r}")
    for g in range(4): A(f"ds_write_b128 v{vX}, {vr(AB+16+4*g,4)} offset:{1024*g}")
    for r in range(16): A(f"v_fma_f32 v{AB+r}, v{vG3}, v{AA+r}, v{AB+r}")
    A("s_waitcnt lgkmcnt(0)")
    A("s_barrier")
    for g in range(4): A(f"ds_read_b128 {vr(AA+4*g,4)}, v{vX+1} offset:{1024*g}")
    for g in range(4):
        A(f"s_waitcnt lgkmcnt({3-g})")
        for r in range(4*g, 4*g+4): A(f"v_add_f32 v{AB+r}, v{AB+r}, v{AA+r}")
        for r in range(2*g, 2*g+2): A(f"v_cvt_pk_bf16_f32 v{LB+r}, v{AB+2*r}, v{AB+2*r+1}")
        if g & 1:
            t = g >> 1
            A(f"v_permlane32_swap_b32 v{LB+4*t}, v{LB+4*t+2}")
            A(f"v_permlane32_swap_b32 v{LB+4*t+1}, v{LB+4*t+3}")
            A(f"buffer_store_dwordx4 {vr(LB+4*t,4)}, v{vOA}, {sr(sOUT,4)}, s{sVO} offen offset:{32*t} {os.environ.get('OUTF', '')}")
    A("s_branch k2_dump" if DIAG else "s_endpgm")

    A("k2_aux:")
    sCOL, sTS = 27, 40
    A(f"s_getpc_b64 {sr(sTS,2)}")
    A(f"s_add_u32 s{sTS}, s{sTS}, tab_small@rel32@lo+4")
    A(f"s_addc_u32 s{sTS+1}, s{sTS+1}, tab_small@rel32@hi+12")
    A(f"s_mov_b32 s{sTS+2}, {TS_BYTES}")
    A(f"s_mov_b32 s{sTS+3}, 0x20000")
    A(f"s_mov_b32 s{sX+2}, 401408")
    A(f"s_mov_b32 s{sX+3}, 0x20000")
    A(f"s_mul_i32 s{sCOL}, s{sXC}, 28")
    A(f"s_add_u32 s{sCOL}, s{sCOL}, s{sJ}")
    A(f"s_cmp_eq_u32 s2, 224")
    A(f"s_cselect_b32 s{sCOL}, 224, s{sCOL}")
    C_ = lambda kind, mt, u: 48 * mt + 16 * kind + 4 * u
    X = 96
    YF = 160
    U0 = 192
    WT = 212
    TM = 244
    vG = 210
    A(f"v_lshrrev_b32 v{TM}, 2, v{vL}")
    A(f"v_mul_u32_u24 v{vG+1}, {WP}, v{TM}")
    A(f"v_mul_u32_u24 v{TM}, {YB}, v{TM}")
    A(f"v_and_b32 v{TM+1}, 3, v{vL}")
    A(f"v_lshl_add_u32 v{vG}, v{TM+1}, 4, v{TM}")
    A(f"v_lshl_add_u32 v{vG+1}, v{TM+1}, 4, v{vG+1}")
    A(f"s_lshr_b32 s{sT}, s{sCOL}, 5")
    A(f"s_lshl_b32 s{sT}, s{sT}, 12")
    A(f"s_and_b32 s{sT2}, s{sCOL}, 31")
    A(f"s_lshl_b32 s{sT2}, s{sT2}, 6")
    A(f"s_add_u32 s{sT}, s{sT}, s{sT2}")
    A(f"s_lshl_b32 s{sKO}, s{sCOL}, 6")
    A(f"v_lshrrev_b32 v{TM}, 5, v{vL}")
    A(f"v_bfe_u32 v{TM+1}, v{vL}, 2, 2")
    A(f"v_lshl_add_u32 v{TM}, v{TM}, 2, v{TM+1}")
    A(f"v_lshlrev_b32 v{TM}, 6, v{TM}")
    A(f"v_bfe_u32 v{TM+1}, v{vL}, 4, 1")
    A(f"v_lshl_add_u32 v{TM}, v{TM+1}, 5, v{TM}")
    A(f"v_and_b32 v{TM+1}, 3, v{vL}")
    A(f"v_lshl_add_u32 v{TM}, v{TM+1}, 3, v{TM}")
    A(f"v_add_u32 v{TM}, {LDS_Y}, v{TM}")
    A("s_waitcnt lgkmcnt(0)")
    A("s_barrier")
    A("s_cmp_gt_u32 s2, 224")
    A("s_cbranch_scc1 k2_auxb1")
    A("s_setprio 3")
    def ydma(n):
        A(f"s_mov_b32 m0, {LDS_Y + 1024*n}")
        A(f"s_add_u32 s{sT2}, s{sT}, {WS_Y + (n>>2)*2048 + (n&3)*16*YB}")
        A(f"buffer_load_dwordx4 v{vG}, {sr(sWS,4)}, s{sT2} offen lds")
    def cld(dst, off):
        A(f"s_mov_b32 s{sT2}, {off}")
        for f in range(4): A(f"buffer_load_dwordx4 {vr(dst+4*f,4)}, v{vO16}, {sr(sTS,4)}, s{sT2} offen offset:{1024*f}")
    def wld(f):
        return [f"s_add_u32 s{sT2}, s{sKO}, {WS_W + f*16*WP}",
                f"buffer_load_dwordx4 {vr(WT+4*f,4)}, v{vG+1}, {sr(sWS,4)}, s{sT2} offen"]
    sFI = 44
    A(f"s_mul_i32 s{sFI}, s{sNT}, {2*28672}")
    def fimg(gr):
        for st_ in range(4*gr, 4*gr+4):
            A(f"s_mov_b32 m0, {LF + 2048*st_}")
            A(f"s_add_u32 s{sT2}, s{sFI}, {1024*st_}")
            A(f"buffer_load_dwordx4 v{vO16}, {sr(sTB,4)}, s{sT2} offen lds")
            A(f"s_add_u32 s{sT2}, s{sT2}, {28672-1024}")
            A(f"buffer_load_dwordx4 v{vO16}, {sr(sTB,4)}, s{sT2} offen offset:1024 lds")
    for n in range(8): ydma(n)
    for kind in range(3): cld(C_(kind, 0, 0), TS_F64 + kind * 8192)
    for f in range(0, 4):
        for x in wld(f): A(x)
    for kind in range(3): cld(C_(kind, 1, 0), TS_F64 + kind * 8192 + 4096)
    ST.at(0)
    A("s_waitcnt vmcnt(28)")
    ST.at(1)
    for p in range(2):
        for u in range(4):
            A(f"ds_read_b64_tr_b16 {vr(YF+16*p+4*u,2)}, v{TM} offset:{4096*p+1024*u}")
            A(f"ds_read_b64_tr_b16 {vr(YF+16*p+4*u+2,2)}, v{TM} offset:{4096*p+1024*u+512}")
    for f in range(4, 8):
        for x in wld(f): A(x)
    A("s_waitcnt vmcnt(20) lgkmcnt(0)")
    Yr = lambda u: vr(YF+4*u,4)
    Yi = lambda u: vr(YF+16+4*u,4)
    mf = lambda d, a, b, first=False: f"v_mfma_f32_32x32x16_bf16 {vr(d,16)}, {a}, {b}, {'0' if first else vr(d,16)}"
    cf = lambda kind, mt, u: vr(C_(kind, mt, u), 4)
    def p3(mt):
        L = []
        for u in range(4):
            L += [mf(X+32*mt, cf(0, mt, u), Yr(u), u == 0), mf(X+32*mt+16, cf(0, mt, u), Yi(u), u == 0)]
        for u in range(4):
            L += [mf(X+32*mt, cf(1, mt, u), Yi(u)), mf(X+32*mt+16, cf(2, mt, u), Yr(u))]
        return L
    Ur = lambda u: (U0 + 4*u) if u < 2 else (YF + 4*u)
    Ui = lambda u: (U0 + 8 + 4*u) if u < 2 else (YF + 16 + 4*u)
    def cmul_pack(xr0, xi0, cr, ci, dr, di):
        L = []
        for i in range(4):
            L += [f"v_mul_f32 v{TM+8+i}, v{xr0+i}, v{cr(i)}", f"v_mul_f32 v{xr0+i}, v{xr0+i}, v{ci(i)}"]
        for i in range(4):
            L += [f"v_fma_f32 v{TM+8+i}, -v{xi0+i}, v{ci(i)}, v{TM+8+i}", f"v_fma_f32 v{xr0+i}, v{xi0+i}, v{cr(i)}, v{xr0+i}"]
        L += [f"v_cvt_pk_bf16_f32 v{dr}, v{TM+8}, v{TM+9}", f"v_cvt_pk_bf16_f32 v{dr+1}, v{TM+10}, v{TM+11}",
              f"v_cvt_pk_bf16_f32 v{di}, v{xr0}, v{xr0+1}", f"v_cvt_pk_bf16_f32 v{di+1}, v{xr0+2}, v{xr0+3}"]
        return L
    def wmul(mt):
        L = []
        for g in range(4):
            w = WT + 4 * (4 * mt + g)
            for i in range(4):
                op = "v_and_b32 v{}, 0xffff0000, v{}" if i & 1 else "v_lshlrev_b32 v{}, 16, v{}"
                L += [op.format(TM + i, w + (i >> 1)), op.format(TM + 4 + i, w + 2 + (i >> 1))]
            u = 2 * mt + (g >> 1)
            L += cmul_pack(X+32*mt+4*g, X+32*mt+16+4*g, lambda i: TM + i, lambda i: TM + 4 + i, Ur(u) + 2*(g&1), Ui(u) + 2*(g&1))
        return L
    def p4(nt, us):
        L = []
        for u in us:
            L += [mf(X+32*nt, vr(Ur(u),4), cf(0, nt, u), u == 0), mf(X+32*nt+16, vr(Ui(u),4), cf(0, nt, u), u == 0)]
        for u in us:
            L += [mf(X+32*nt, vr(Ui(u),4), cf(2, nt, u)), mf(X+32*nt+16, vr(Ur(u),4), cf(1, nt, u))]
        return L
    Tr = lambda nt: YF if nt == 0 else U0
    Ti = lambda nt: YF + 16 if nt == 0 else U0 + 8
    TW = lambda nt: 48 * nt
    F32 = WT
    def twid(nt):
        L = []
        for g in range(4):
            L += cmul_pack(X+32*nt+4*g, X+32*nt+16+4*g, lambda i: TW(nt) + 4*g + i, lambda i: TW(nt) + 16 + 4*g + i, Tr(nt) + 2*g, Ti(nt) + 2*g)
        return L
    def p5(nt):
        L = []
        for t in range(2):
            L += [mf(X+32*nt, vr(F32+4*t,4), vr(Tr(nt)+4*t,4), t == 0), mf(X+32*nt+16, vr(F32+4*t,4), vr(Ti(nt)+4*t,4), t == 0)]
        for t in range(2):
            L += [mf(X+32*nt, vr(F32+16+4*t,4), vr(Ti(nt)+4*t,4)), mf(X+32*nt+16, vr(F32+8+4*t,4), vr(Tr(nt)+4*t,4))]
        return L
    sZR, sZI = 29, 30
    def outp(nt):
        L = []
        for p in range(2):
            z = X + 32*nt + 16*p; P = TW(nt) + 8*p
            for r in range(8): L.append(f"v_cvt_pk_bf16_f32 v{P+r}, v{z+2*r}, v{z+2*r+1}")
            L.append("s_nop 1")
            for t in range(2):
                L += [f"v_permlane32_swap_b32 v{P+4*t}, v{P+4*t+2}", f"v_permlane32_swap_b32 v{P+4*t+1}, v{P+4*t+3}"]
            for t in range(2):
                L.append(f"ds_write_b128 v{vG}, {vr(P+4*t,4)} offset:{4096*p+2048*nt+32*t}")
        return L
    def outst():
        A("s_waitcnt lgkmcnt(0)")
        for k in range(8): A(f"ds_read_b128 {vr(X+4*k,4)}, v{vG+1} offset:{1024*k}")
        for k in range(8):
            A(f"s_waitcnt lgkmcnt({7-k})")
            A(f"buffer_store_dwordx4 {vr(X+4*k,4)}, v{vO16}, {sr(sWS,4)}, s{sZR+(k>>2)} offen offset:{1024*(k&3)} sc1")
    for x in p3(0): A(x)
    ST.at(2)
    A("s_waitcnt vmcnt(4)")
    A("s_nop 7")
    for x in merge(p3(1), wmul(0)): A(x)
    A("s_waitcnt vmcnt(0)")
    A("s_nop 7")
    for x in merge(p4(0, (0, 1)), wmul(1)): A(x)
    for x in p4(0, (2, 3)): A(x)
    ST.at(3)
    cld(TW(0), TS_TW); cld(TW(0) + 16, TS_TW + 4096)
    A(f"s_mov_b32 s{sT2}, {TS_F32}")
    for f in range(4): A(f"buffer_load_dwordx4 {vr(F32+4*f,4)}, v{vO16}, {sr(sTS,4)}, s{sT2} offen offset:{1024*f}")
    A(f"s_mov_b32 s{sT2}, {TS_F32+4096}")
    for f in range(2): A(f"buffer_load_dwordx4 {vr(F32+16+4*f,4)}, v{vO16}, {sr(sTS,4)}, s{sT2} offen offset:{1024*f}")
    A(f"s_lshr_b32 s{sT}, s{sCOL}, 1")
    A(f"s_and_b32 s{sT2}, s{sCOL}, 1")
    A(f"s_mul_i32 s{sT2}, s{sT2}, 224")
    A(f"s_add_u32 s{sT}, s{sT}, s{sT2}")
    A(f"s_mul_i32 s{sT}, s{sT}, {ZP}")
    A(f"s_add_u32 s{sZR}, s{sT}, {WS_Z}")
    A(f"s_add_u32 s{sZI}, s{sZR}, {112*ZP}")
    A(f"s_cmp_eq_u32 s{sCOL}, 0")
    A(f"s_cselect_b32 s{sZI}, {WS_G + 0x4000}, s{sZI}")
    A(f"s_cmp_eq_u32 s{sCOL}, 224")
    A(f"s_cselect_b32 s{sZI}, {WS_G + 0x6000}, s{sZI}")
    A(f"v_and_b32 v{vG}, 31, v{vL}")
    A(f"v_lshlrev_b32 v{vG}, 6, v{vG}")
    A(f"v_lshrrev_b32 v{vG+1}, 5, v{vL}")
    A(f"v_lshl_add_u32 v{vG}, v{vG+1}, 4, v{vG}")
    A(f"v_add_u32 v{vG}, {LDS_Y}, v{vG}")
    A(f"v_add_u32 v{vG+1}, {LDS_Y}, v{vO16}")
    A("s_waitcnt vmcnt(6)")
    for x in merge(p4(1, (0, 1, 2, 3)), twid(0)): A(x)
    cld(TW(1), TS_TW + 8192); cld(TW(1) + 16, TS_TW + 12288)
    ST.at(4)
    A("s_waitcnt vmcnt(0)")
    for x in merge(p5(0), twid(1)): A(x)
    A("s_nop 1")
    for x in merge(p5(1), outp(0)): A(x)
    A("s_nop 7")
    for x in outp(1): A(x)
    outst()
    ST.at(5)
    A("s_setprio 0")
    fimg(0); fimg(1)
    A(f"s_lshl_b32 s{sT}, s{sCOL}, 7")
    A(f"s_add_u32 s{sT}, s{sT}, {WS_FZ}")
    A(f"v_mov_b32 v{TM+4}, 0")
    A(f"v_mov_b32 v{TM+5}, 1")
    A("s_mov_b64 exec, 1")
    A("s_waitcnt vmcnt(16)")
    ST.at(6)
    A(f"buffer_store_dword v{TM+5}, v{TM+4}, {sr(sWS,4)}, s{sT} offen sc1")
    A("s_mov_b64 exec, -1")
    A("s_cmp_ge_u32 s2, 224")
    A("s_cbranch_scc1 k2_auxw")
    A(f"v_lshrrev_b32 v{TM}, 3, v{vL}")
    A(f"v_and_b32 v{TM+1}, 7, v{vL}")
    A(f"v_bfe_u32 v{TM+2}, v{vL}, 4, 1")
    A(f"v_lshlrev_b32 v{TM+2}, 2, v{TM+2}")
    A(f"v_xor_b32 v{TM+1}, v{TM+1}, v{TM+2}")
    A(f"v_lshlrev_b32 v{TM+1}, 4, v{TM+1}")
    A(f"v_mul_u32_u24 v{TM+2}, {ZP}, v{TM}")
    A(f"v_add_u32 v{TM+2}, v{TM+2}, v{TM+1}")
    def image(name, lds, vaddr, srd, pitch, flag, depth):
        A(f"s_mov_b32 s{sI}, {lds}")
        A(f"{name}:")
        A(f"s_mov_b32 m0, s{sI}")
        for i in range(4):
            if i: A(f"s_add_u32 s{sT}, s{sT}, {8*pitch-1024}")
            else: A("s_nop 0")
            A(f"buffer_load_dwordx4 v{vaddr}, {srd}, s{sT} offen offset:{1024*i} {flag} lds")
        A(f"s_add_u32 s{sT}, s{sT}, {8*pitch+3072}")
        A(f"s_add_u32 s{sI}, s{sI}, 4096")
        A(f"s_waitcnt vmcnt({depth})")
        A(f"s_cmp_lt_u32 s{sI}, {lds+57344}")
        A(f"s_cbranch_scc1 {name}")
    def poll(name, lines, sl):
        A(f"s_mov_b32 s{sI}, {SPIN}")
        A(f"{name}:")
        for x in lines: A(x)
        A("s_cmp_eq_u64 vcc, -1")
        A(f"s_cbranch_scc1 {name}_done")
        A(f"s_sub_u32 s{sI}, s{sI}, 1")
        A(f"s_sleep {sl}")
        A(f"s_cmp_lg_u32 s{sI}, 0")
        A(f"s_cbranch_scc1 {name}")
        A(f"{name}_done:")
    for gr in range(2, 7):
        fimg(gr)
        A(f"s_waitcnt vmcnt({os.environ.get('DF', 16)})")
    A(f"s_and_b32 s{sT}, s{sJ}, 3")
    A(f"s_mul_i32 s{sT}, s{sT}, {112*896}")
    A(f"s_lshl_b32 s{sT2}, s{sNT}, 7")
    A(f"s_add_u32 s{sT}, s{sT}, s{sT2}")
    A(f"v_mul_u32_u24 v8, 896, v{vL}")
    A(f"buffer_load_dword v9, v8, {sr(sX,4)}, s{sT} offen")
    A(f"s_add_u32 s{sT}, s{sT}, {48*896}")
    A(f"buffer_load_dword v10, v8, {sr(sX,4)}, s{sT} offen")
    ST.at(7)
    A(f"v_lshlrev_b32 v4, 7, v{vL}")
    A(f"v_add_u32 v5, 0x6000, v4")
    A(f"v_min_u32 v5, {224*128}, v5")
    A(f"s_mov_b32 s{sI}, {SPIN}")
    A(f"s_mov_b32 s{sT}, {WS_FZ}")
    A(f"s_mov_b32 s{sT2}, {WS_FZ + 0x2000}")
    A(f"s_mov_b32 s{sKO}, {WS_FZ + 0x4000}")
    A("k2_pz:")
    A(f"buffer_load_dword v0, v4, {sr(sWS,4)}, s{sT} offen sc1")
    A(f"buffer_load_dword v1, v4, {sr(sWS,4)}, s{sT2} offen sc1")
    A(f"buffer_load_dword v2, v4, {sr(sWS,4)}, s{sKO} offen sc1")
    A(f"buffer_load_dword v3, v5, {sr(sWS,4)}, s{sT} offen sc1")
    A("s_waitcnt vmcnt(0)")
    A("v_and_b32 v0, v0, v1")
    A("v_and_b32 v2, v2, v3")
    A("v_and_b32 v0, v0, v2")
    A("v_cmp_eq_u32 vcc, 0, v0")
    A("s_nop 1")
    A("s_and_b64 exec, exec, vcc")
    A("s_cbranch_scc0 k2_pz_done")
    A(f"s_sub_u32 s{sI}, s{sI}, 1")
    A(f"s_sleep {os.environ.get('ZSL', 6)}")
    A(f"s_cmp_gt_i32 s{sI}, 0")
    A("s_cbranch_scc1 k2_pz")
    A("k2_pz_done:")
    A("s_mov_b64 exec, -1")
    ST.at(8)
    A(f"s_lshl_b32 s{sT}, s{sMT}, 7")
    A(f"s_add_u32 s{sT}, s{sT}, {WS_Z}")
    image("k2_imz", LZ, TM+2, sr(sWS,4), ZP, os.environ.get("ZF", "sc1"), int(os.environ.get("DZ", 24)))
    A("k2_auxw:")
    A("s_waitcnt vmcnt(0)")
    ST.at(9)
    A("k2_auxb1:")
    A("s_barrier")
    A("s_branch k2_chk")
    A("k2_auxfb:")
    A("s_barrier")
    A("s_barrier")
    A("s_branch k2_auxb1")
    A("k2_auxp3:")
    A(f"v_and_b32 v4, 31, v{vL}")
    A("v_lshlrev_b32 v4, 7, v4")
    A(f"s_lshl_b32 s{sT}, s{sMT}, 12")
    A(f"s_add_u32 s{sT}, s{sT}, {WS_FO}")
    ST.at(10)
    poll("k2_po", [f"buffer_load_dword v0, v4, {sr(sWS,4)}, s{sT} offen sc1", "s_waitcnt vmcnt(0)", "v_cmp_ne_u32 vcc, 0, v0", "s_nop 1"], int(os.environ.get("OSL", 2)))
    ST.at(11)
    A("s_barrier")
    if DIAG: A("k2_dump:")
    ST.dump(sWS, sW, 5, 250)
    A("k2_end:")
    A("s_endpgm")
    body = A.L[loop_start:loop_end]
    rep = check_seq(body + body)
    assert not rep, rep
    return A.L, NV, 102 if DIAG else 64
```

```python
import sys, numpy as np
from asmlib import *
from k1 import gen_k1
from k2 import gen_k2, K2_LDS, TS_BYTES, TAB_INV_BYTES
NAME = "gated_mix__spectral_gfnet__softmax_full_mha__prompt"
def bf16(x):
    u = np.asarray(x, dtype=np.float32).view(np.uint32).astype(np.uint64)
    return ((u + 0x7fff + ((u >> 16) & 1)) >> 16).astype(np.uint16)
def perm(u, h, j): return 16 * u + 8 * (j >> 2) + 4 * h + (j & 3)
def cs(num, den):
    num = num % den
    a = 2 * np.pi * num / den
    c, s = np.cos(a), np.sin(a)
    c = np.where(np.abs(c) < 1e-12, 0.0, c); s = np.where(np.abs(s) < 1e-12, 0.0, s)
    return c, s
def small_tables():
    l = np.arange(64); m = l & 31; h = l >> 5
    out = []
    F = np.zeros((3, 2, 4, 64, 8))
    for mt in range(2):
        for u in range(4):
            for j in range(8):
                c, s = cs((32 * mt + m) * perm(u, h, j), 64)
                F[0, mt, u, :, j] = c; F[1, mt, u, :, j] = s; F[2, mt, u, :, j] = -s
    out.append(bf16(F).tobytes())
    G = np.zeros((3, 2, 64, 8))
    for t in range(2):
        for j in range(8):
            c, s = cs(m * perm(t, h, j), 32)
            G[0, t, :, j] = c; G[1, t, :, j] = s; G[2, t, :, j] = -s
    out.append(bf16(G).tobytes())
    T = np.zeros((2, 2, 4, 64, 4), np.float32)
    for nt in range(2):
        for g in range(4):
            for i in range(4):
                c, s = cs((32 * nt + m) * (8 * g + 4 * h + i), 2048)
                T[nt, 0, g, :, i] = c; T[nt, 1, g, :, i] = s
    out.append(T.tobytes())
    b = b"".join(out)
    assert len(b) == TS_BYTES
    q = np.frombuffer(b, dtype=np.uint64)
    return [".quad " + ",".join(hex(int(v)) for v in q[i:i+8]) for i in range(0, len(q), 8)]
def big_tables():
    L = []
    c448, _ = cs(np.arange(448), 448)
    for i, v in enumerate(bf16(c448)): L.append(f".set C{i},{int(v)}")
    SD = 2048 * 448
    for i, v in enumerate(bf16(2 * c448 / SD)): L.append(f".set D{i},{int(v)}")
    L.append(f".set D448,{int(bf16([1/SD])[0])}"); L.append(f".set D449,{int(bf16([-1/SD])[0])}")
    for kr in range(448):
        if kr <= 112: k2, ph = 2 * kr, 0
        elif kr < 224: k2, ph = 2 * (kr - 112), 112
        elif kr < 336: k2, ph = 2 * (kr - 224) + 1, 0
        else: k2, ph = 2 * (kr - 336) + 1, 112
        md, ad = 448, 0
        if kr == 0: ad = 448
        if kr == 112: k2, md, ad = 1, 2, 448
        L.append(f".set KA{kr},{k2}\n.set KB{kr},{ph}\n.set KC{kr},{md}\n.set KD{kr},{ad}")
    L.append(r""".altmacro
.macro FW4 a,b,c,d
.short C\a,C\b,C\c,C\d
.endm
.macro LK i
.short D\i
.endm
.macro IV1 d,r
LK %((KA\r*\d+KB\r)%KC\r+KD\r)
.endm
.p2align 8
tab_fwd:
.set td,0
.rept 448
.set tg,0
.rept 14
.set tk,(tg>>1)*32
.set tp,(tg&1)*112
.rept 8
FW4 %((tk*td+tp)%448),%(((tk+1)*td+tp)%448),%(((tk+2)*td+tp)%448),%(((tk+3)*td+tp)%448)
.set tk,tk+4
.endr
.set tg,tg+1
.endr
FW4 %((224*td)%448),112,112,112
.fill 60,2,0
.set td,td+1
.endr
.p2align 8
tab_inv:
.set tn,0
.rept 14
.set tc,0
.rept 28
.set tr,tc*16
.set tl,0
.rept 64
.set tj,0
.rept 8
IV1 %(tn*32+(tl&31)),%(tr+(tl>>5)*8+tj)
.set tj,tj+1
.endr
.set tl,tl+1
.endr
.set tc,tc+1
.endr
.set tn,tn+1
.endr
.noaltmacro""")
    return L
def desc(name, nv, ns):
    return f""".p2align 6
.amdhsa_kernel {name}
  .amdhsa_next_free_vgpr {nv}
  .amdhsa_next_free_sgpr {ns}
  .amdhsa_accum_offset {(nv+3)//4*4}
  .amdhsa_group_segment_fixed_size 0
  .amdhsa_kernarg_size 80
  .amdhsa_user_sgpr_count 2
  .amdhsa_user_sgpr_kernarg_segment_ptr 1
  .amdhsa_system_sgpr_workgroup_id_x 1
.end_amdhsa_kernel"""
import os
def main(path, which=tuple(int(c) for c in os.environ.get('WHICH', '123'))):
    ks = [("k1_kernel", gen_k1, 256, 512, 131072), ("k2_kernel", gen_k2, 256, 320, K2_LDS)]
    o = ["; gated mix of a GFNet spectral filter and 16-head softmax attention (2 launches; generated by gen/gen.py)"]
    for i, (n, g, grid, blk, lds) in enumerate(ks):
        if i + 1 in which: o.append(f"; @launch kernel={n} grid=({grid},1,1) block=({blk},1,1) lds={lds}")
    o.append('.amdgcn_target "amdgcn-amd-amdhsa--gfx950"')
    o.append(f".set TAB_INV_BYTES,{TAB_INV_BYTES}")
    o.append(".text")
    ds = []
    for n, g, grid, blk, lds in ks:
        L, nv, ns = g()
        rep = []
        x = os.environ.get("X1", "")
        if n == "k1_kernel":
            if x == "nost": L = [l for l in L if "buffer_store_dwordx4" not in l]
            if x == "nt": L = [l + " nt" if "buffer_store_dwordx4" in l else l for l in L]
            if x == "sc1": L = [l + " sc1" if "buffer_store_dwordx4" in l else l for l in L]
            if x == "sc01": L = [l + " sc0 sc1" if "buffer_store_dwordx4" in l else l for l in L]
            if x == "noW": L = [l for l in L if not ("buffer_store_dwordx4" in l and "s52" in l)]
            if x == "onlyW": L = [l for l in L if not ("buffer_store_dwordx4" in l and "s52" not in l)]
            if x == "noY": L = [l for l in L if not ("buffer_store_dwordx4" in l and any(f"v[{r}:" in l for r in range(76, 108)))]
            if x == "noWld": L = [l for l in L if "buffer_load_ushort" not in l]
            if x == "nopf": L = [l for l in L if "s[56:57]" not in l or "global_load" not in l]
        L = fix_hazards(L, rep)
        print(n, "lines", len(L), "nops inserted", len(rep), file=sys.stderr)
        if "-v" in sys.argv:
            for r in rep: print("   ", r, file=sys.stderr)
        o += [f".globl {n}", ".p2align 8", f".type {n},@function", f"{n}:"] + L
        ds.append(desc(n, nv, ns))
    o.append(".fill 2048,4,0xbf810000")
    o.append('.section .rodata,"a"')
    o += ds
    o.append(".p2align 8"); o.append("tab_small:"); o += small_tables()
    o.append(".fill 2048,1,0")
    o += big_tables()
    open(path, "w").write("\n".join(o) + "\n")
if __name__ == "__main__":
    main(sys.argv[1] if len(sys.argv) > 1 and not sys.argv[1].startswith("-") else f"cdna_kernels/{NAME}.s")
```

```python
from asmlib import *
import math, os, struct
WS_Q, WS_K, WS_V, WS_Y, WS_W, WS_O, WS_Z, WS_G = 0x0, 0x200000, 0x400000, 0x600000, 0x840000, 0xA80000, 0xC80000, 0xE50000
WS_FO, WS_FZ = 0xE60000, 0xE90000
YB, WP, ZP = 32896, 16512, 4224
WS_BYTES = 0x1000000
def f2u(x): return struct.unpack("<I", struct.pack("<f", x))[0]
QSCALE = f2u(28 ** -0.5 * math.log2(math.e))
STF = os.environ.get('STF', 'sc1')
LA, LSTG = 114688, 155648
K1_LDS = 163840
WPOS = int(os.environ.get("WPOS", 6))

def gen_k1():
    A = Asm()
    sX, sB, sWS, sWR, sWI = 8, 12, 16, 20, 24
    sPC = 28
    sW, sMT, sNT, sC, sCA, sCB, sPITCH, sP4, sT, sT2, sBB = 30, 31, 32, 33, 34, 35, 36, 37, 38, 39, 40
    sGS, sLA, sLB, sP64, sP384, sJ, sW8 = 41, 42, 43, 44, 45, 46, 47
    sW0, sWST, sC0 = 48, 52, 53
    sGW, sPAR, sB2 = 60, 58, 59
    vL, vA0, vA1, vB = 64, 65, 66, 67
    vRA, vRB = 68, 72
    FR = 76
    MB = 112
    WL, vGW = 76, 100
    vT = 160
    vWO, vST = 176, 177
    PK = 180
    vPF = 212
    NV = 216

    A("s_cmp_ge_u32 s2, 256")
    A("s_cbranch_scc1 k1_end")
    ST = Stamps(A, 0); ST.begin()
    A(f"s_load_dwordx2 {sr(sX,2)}, s[0:1], 0")
    A(f"s_load_dwordx2 {sr(sB,2)}, s[0:1], 32")
    A(f"s_load_dwordx2 {sr(sWS,2)}, s[0:1], 72")
    A(f"s_load_dwordx2 {sr(sWR,2)}, s[0:1], 8")
    A(f"s_load_dwordx2 {sr(sWI,2)}, s[0:1], 16")
    A(f"s_load_dwordx2 {sr(sGW,2)}, s[0:1], 48")
    A(f"s_getpc_b64 {sr(sPC,2)}")
    A("k1_pc:")
    A(f"v_and_b32 v{vL}, 63, v0")
    A(f"v_lshrrev_b32 v{vT}, 6, v0")
    A(f"v_mul_u32_u24 v{vT+1}, 20, v{vT}")
    A(f"v_add_lshl_u32 v{vT+1}, v{vT+1}, v{vL}, 7")
    A("s_mov_b64 exec, 0xfffff")
    A(f"global_load_dword v{vPF}, v{vT+1}, {sr(sPC,2)}")
    A("s_mov_b64 exec, -1")
    A(f"v_readfirstlane_b32 s{sW8}, v{vT}")
    A(f"s_lshr_b32 s{sJ}, s2, 3")
    A(f"s_and_b32 s{sT}, s{sJ}, 3")
    A(f"s_lshr_b32 s{sT2}, s{sJ}, 2")
    A(f"s_bfe_u32 s{sMT}, s2, 0x20001")
    A(f"s_lshl_b32 s{sMT}, s{sMT}, 2")
    A(f"s_add_u32 s{sMT}, s{sMT}, s{sT}")
    A(f"s_and_b32 s{sNT}, s2, 1")
    A(f"s_lshl_b32 s{sNT}, s{sNT}, 3")
    A(f"s_add_u32 s{sNT}, s{sNT}, s{sT2}")
    A(f"s_and_b32 s{sPAR}, s{sT2}, 1")
    A(f"s_lshr_b32 s{sT2}, s{sT2}, 1")
    A(f"s_add_u32 s{sC}, s{sT}, s{sT2}")
    A(f"s_lshl_b32 s{sC}, s{sC}, 1")
    A(f"s_cmp_ge_u32 s{sC}, 7")
    A(f"s_cselect_b32 s{sT}, 7, 0")
    A(f"s_sub_u32 s{sC}, s{sC}, s{sT}")
    A(f"s_and_b32 s{sW}, s{sW8}, 3")
    A(f"s_lshl_b32 s{sBB}, s{sMT}, 1")
    A(f"s_add_u32 s{sBB}, s{sBB}, s{sPAR}")
    A(f"s_lshl_b32 s{sBB}, s{sBB}, 1")
    A(f"s_and_b32 s{sT}, s{sW}, 1")
    A(f"s_add_u32 s{sBB}, s{sBB}, s{sT}")
    A(f"s_xor_b32 s{sB2}, s{sBB}, 2")
    A(f"s_movk_i32 s{sPITCH}, 1024")
    A(f"s_cmp_ge_u32 s{sNT}, 12")
    A(f"s_cselect_b32 s{sPITCH}, s{sPITCH}, 2688")
    A(f"s_cselect_b32 s{sGS}, 64, 56")
    A(f"s_lshl_b32 s{sLA}, s{sT}, 12")
    A(f"s_add_u32 s{sLA}, s{sLA}, {LA}")
    A(f"s_cmp_lt_u32 s{sW8}, 4")
    A("s_cbranch_scc1 k1_comp")
    A(f"s_mul_i32 s{sT}, s{sNT}, 224")
    A(f"s_lshl_b32 s{sT2}, s{sNT}, 8")
    A(f"s_sub_u32 s{sT2}, s{sT2}, 3072")
    A(f"s_cmp_ge_u32 s{sNT}, 12")
    A(f"s_cselect_b32 s{sCB}, s{sT2}, s{sT}")
    A(f"s_lshl_b32 s{sP4}, s{sPITCH}, 2")
    A(f"s_sub_u32 s{sP4}, s{sP4}, 1024")
    A(f"s_lshl_b32 s{sP64}, s{sPITCH}, 6")
    A(f"s_mul_i32 s{sP384}, s{sP64}, 7")
    A(f"s_lshl_b32 s{sT}, s{sC}, 2")
    A(f"s_add_u32 s{sT}, s{sT}, s{sW}")
    A(f"s_lshl_b32 s{sT}, s{sT}, 4")
    A(f"s_mul_i32 s{sT}, s{sT}, s{sPITCH}")
    A(f"s_add_u32 s{sCB}, s{sCB}, s{sT}")
    A(f"s_mul_i32 s{sCA}, s{sBB}, 896")
    A(f"s_lshl_b32 s{sT}, s{sC}, 7")
    A(f"s_add_u32 s{sCA}, s{sCA}, s{sT}")
    A(f"s_lshr_b32 s{sT}, s{sW}, 1")
    A(f"s_mul_i32 s{sT2}, s{sT}, {2*458752}")
    A(f"s_add_u32 s{sCA}, s{sCA}, s{sT2}")
    A(f"s_lshl_b32 s{sT}, s{sT}, 11")
    A(f"s_add_u32 s{sLA}, s{sLA}, s{sT}")
    A(f"s_lshl_b32 s{sLB}, s{sW}, 12")
    A(f"v_lshrrev_b32 v{vT}, 3, v{vL}")
    A(f"v_mul_u32_u24 v{vA0}, 57344, v{vT}")
    A(f"v_lshrrev_b32 v{vT+1}, 4, v{vL}")
    A(f"v_and_b32 v{vT+3}, 7, v{vL}")
    A(f"v_xor_b32 v{vT+3}, v{vT+3}, v{vT+1}")
    A(f"v_lshl_add_u32 v{vA0}, v{vT+3}, 4, v{vA0}")
    A(f"v_xor_b32 v{vA1}, 64, v{vA0}")
    A(f"v_mul_u32_u24 v{vB}, s{sPITCH}, v{vT+1}")
    A(f"v_bfe_u32 v{vT+3}, v{vL}, 2, 2")
    A(f"v_xor_b32 v{vT+3}, v{vT+3}, v{vT+1}")
    A(f"v_lshlrev_b32 v{vT+3}, 2, v{vT+3}")
    A(f"v_and_or_b32 v{vT+3}, v{vL}, 3, v{vT+3}")
    A(f"v_lshl_add_u32 v{vB}, v{vT+3}, 4, v{vB}")
    A(f"s_getpc_b64 {sr(56,2)}")
    A("s_add_u32 s56, s56, tab_fwd@rel32@lo+4")
    A("s_addc_u32 s57, s57, tab_fwd@rel32@hi+12")
    A(f"s_mov_b32 s{sX+2}, 1835008")
    A(f"s_mov_b32 s{sX+3}, 0x20000")
    A(f"s_mov_b32 s{sB+2}, 458752")
    A(f"s_mov_b32 s{sB+3}, 0x20000")
    A(f"s_cmp_ge_u32 s{sNT}, 12")
    A(f"s_cselect_b32 s{sT}, 16, 14")
    A(f"s_cmp_eq_u32 s{sNT}, 15")
    A(f"s_cselect_b32 s{sT}, 12, s{sT}")
    A(f"v_cmp_gt_u32 s[54:55], s{sT}, v{vT+3}")
    A(f"s_mov_b32 s{sC0}, s{sC}")
    A("s_waitcnt lgkmcnt(0) ; WSB")
    A(f"s_cmp_ge_u32 s{sNT}, 12")
    A(f"s_cselect_b32 s{sB}, s56, s{sB}")
    A(f"s_cselect_b32 s{sB+1}, s57, s{sB+1}")
    A(f"s_cselect_b32 s{sB+2}, s{sB+2}, 1204224")
    Q = []
    def issue(n):
        A(f"s_add_u32 m0, s{sLA}, {8192*(n%5)}")
        A(f"s_add_u32 s{sT}, s{sCA}, 457728")
        A(f"buffer_load_dwordx4 v{vA0}, {sr(sX,4)}, s{sCA} offen lds")
        A(f"buffer_load_dwordx4 v{vA1}, {sr(sX,4)}, s{sT} offen offset:1024 lds")
        Q.extend([n, n])
        if n < 7:
            A(f"s_add_u32 m0, s{sLB}, {16384*n}")
            A("s_mov_b64 exec, s[54:55]")
            for i in range(4):
                if i == 0: so = sCB
                elif i == 1: A(f"s_add_u32 s{sT}, s{sCB}, s{sP4}"); so = sT
                else: A(f"s_add_u32 s{sT}, s{sT}, s{sP4}"); so = sT
                A(f"buffer_load_dwordx4 v{vB}, {sr(sB,4)}, s{so} offen offset:{1024*i} lds")
            A("s_mov_b64 exec, -1")
            Q.extend([n] * 4)
        if n == 13: return
        A(f"s_add_u32 s{sCA}, s{sCA}, 128")
        if n < 6: A(f"s_add_u32 s{sCB}, s{sCB}, s{sP64}")
        A(f"s_add_u32 s{sC}, s{sC}, 1")
        A(f"s_cmp_eq_u32 s{sC}, 7")
        A(f"s_cselect_b32 s{sT}, 896, 0")
        if n < 6: A(f"s_cselect_b32 s{sT2}, s{sP384}, 0")
        A(f"s_cselect_b32 s{sC}, 0, s{sC}")
        A(f"s_sub_u32 s{sCA}, s{sCA}, s{sT}")
        if n < 6: A(f"s_sub_u32 s{sCB}, s{sCB}, s{sT2}")
        if n == 6:
            A(f"s_mul_i32 s{sT}, s{sPAR}, {-4*896}")
            A(f"s_add_u32 s{sCA}, s{sCA}, s{sT}")
            A(f"s_add_u32 s{sCA}, s{sCA}, {2*896}")
    def wait_for(tag):
        if tag not in Q: return
        last = max(i for i, t in enumerate(Q) if t == tag)
        A(f"s_waitcnt vmcnt({len(Q) - 1 - last})")
        del Q[:last + 1]
    ST.at(0)
    issue(0)
    A(f"s_mov_b32 s{sGW+2}, 896")
    A(f"s_mov_b32 s{sGW+3}, 0x20000")
    A(f"s_cmp_lg_u32 s{sNT}, 15")
    A("s_cbranch_scc1 k1_nog")
    A(f"v_and_b32 v{vT+4}, 15, v{vL}")
    A(f"v_lshlrev_b32 v{vT+5}, 1, v{vT+4}")
    A(f"s_lshl_b32 s{sT}, s{sW}, 5")
    A(f"s_lshl_b32 s{sT2}, s{sC0}, 7")
    A(f"s_add_u32 s{sT}, s{sT}, s{sT2}")
    for i in range(7):
        A(f"buffer_load_ushort v{vGW+i}, v{vT+5}, {sr(sGW,4)}, s{sT} offen")
        if i < 6:
            A(f"s_add_u32 s{sT}, s{sT}, 128")
            A(f"s_cmp_ge_u32 s{sT}, 896")
            A(f"s_cselect_b32 s{sT2}, 896, 0")
            A(f"s_sub_u32 s{sT}, s{sT}, s{sT2}")
    A(f"v_and_b32 v{vT+5}, 3, v{vL}")
    A(f"v_xor_b32 v{vT+5}, 3, v{vT+5}")
    A(f"v_lshlrev_b32 v{vT+5}, 6, v{vT+5}")
    A(f"v_lshl_add_u32 v{vGW+8}, v{vT+4}, 8, v{vT+5}")
    A(f"v_add_u32 v{vGW+8}, s{sLB}, v{vGW+8}")
    A(f"v_add_u32 v{vGW+9}, 0x10000, v{vGW+8}")
    A("k1_nog:")
    issue(1)
    ST.at(1)
    for r in (sWS, sWR, sWI):
        A(f"s_mov_b32 s{r+2}, {WS_BYTES if r == sWS else 921600}")
        A(f"s_mov_b32 s{r+3}, 0x20000")
    A(f"s_lshl_b32 s{sT}, s2, 2")
    A(f"s_add_u32 s{sT}, s{sT}, s{sW}")
    A(f"s_lshl_b32 s{sT}, s{sT}, 7")
    A(f"s_add_u32 s{sT}, s{sT}, {WS_FO}")
    A(f"s_lshl_b32 s{sT2}, s2, 7")
    A(f"s_add_u32 s{sT2}, s{sT2}, {WS_FZ}")
    A(f"s_cmp_eq_u32 s{sW}, 0")
    A(f"s_cselect_b32 s{sT2}, s{sT2}, s{sT}")
    A(f"v_mov_b32 v{vT}, 0")
    A("s_mov_b64 exec, 1")
    A(f"buffer_store_dword v{vT}, v{vT}, {sr(sWS,4)}, s{sT} offen sc1")
    A(f"buffer_store_dword v{vT}, v{vT}, {sr(sWS,4)}, s{sT2} offen sc1")
    Q.extend(["f", "f"])
    A("s_mov_b64 exec, -1")
    A(f"s_lshr_b32 s{sT}, s2, 4")
    A(f"s_bfe_u32 s{sT2}, s2, 0x20002")
    A(f"s_lshl_b32 s{sT2}, s{sT2}, 1")
    A(f"s_and_b32 s{sW0}, s{sW}, 1")
    A(f"s_add_u32 s{sT2}, s{sT2}, s{sW0}")
    A(f"s_lshl_b32 s{sWST}, s{sT}, 3")
    A(f"s_add_u32 s{sWST}, s{sWST}, s{sT2}")
    A(f"s_mul_i32 s{sWST}, s{sWST}, {WP}")
    A(f"s_lshl_b32 s{sW0}, s{sT}, 5")
    A(f"s_add_u32 s{sW0}, s{sW0}, s{sT2}")
    A(f"s_mul_i32 s{sW0}, s{sW0}, 1800")
    A(f"s_and_b32 s{sT}, s2, 3")
    A(f"s_lshl_b32 s{sT}, s{sT}, 1")
    A(f"s_lshr_b32 s{sT2}, s{sW}, 1")
    A(f"s_add_u32 s{sGS}, s{sT}, s{sT2}")
    A(f"s_lshl_b32 s{sT2}, s{sGS}, 6")
    A(f"s_add_u32 s{sW0}, s{sW0}, s{sT2}")
    for i in range(1, 4): A(f"s_add_u32 s{sW0+i}, s{sW0}, {14400*i}")
    A(f"s_lshl_b32 s{sT2}, s{sGS}, 11")
    A(f"s_add_u32 s{sWST}, s{sWST}, s{sT2}")
    A(f"s_add_u32 s{sWST}, s{sWST}, {WS_W}")
    A(f"v_lshrrev_b32 v{vT}, 5, v{vL}")
    A(f"v_mul_u32_u24 v{vT}, 900, v{vT}")
    A(f"v_and_b32 v{vWO}, 31, v{vL}")
    A(f"v_lshl_add_u32 v{vWO}, v{vWO}, 1, v{vT}")
    A(f"v_lshlrev_b32 v{vST}, 4, v{vL}")
    A(f"v_and_b32 v{vT+6}, 3, v{vL}")
    A(f"v_lshlrev_b32 v{vT+6}, 6, v{vT+6}")
    A(f"v_and_or_b32 v{vT+6}, v{vL}, 60, v{vT+6}")
    def wloads():
        for kk in range(2):
            for p, srd in enumerate((sWR, sWI)):
                for i in range(4):
                    A(f"buffer_load_ushort v{WL+8*kk+4*p+i}, v{vWO}, {sr(srd,4)}, s{sW0+i} offen offset:{450*kk}")
        Q.extend(["w"] * 16)
    def wstore():
        wait_for("w")
        for kk in range(2):
            for p in range(4):
                A(f"v_lshl_or_b32 v{WL+8*kk+p}, v{WL+8*kk+2*p+1}, 16, v{WL+8*kk+2*p}")
        for p in range(4): A(f"v_permlane16_swap_b32 v{WL+p}, v{WL+8+p}")
        for kk in range(2):
            for p in range(4): A(f"ds_bpermute_b32 v{WL+8*kk+4+p}, v{vT+6}, v{WL+8*kk+p}")
        A(f"s_cmp_eq_u32 s{sGS}, 7")
        A("s_cselect_b64 s[54:55], 0xff, -1")
        A("s_cselect_b64 s[56:57], 1, -1")
        A("s_waitcnt lgkmcnt(0)")
        for kk in range(2):
            A(f"s_mov_b64 exec, s[{54+2*kk}:{55+2*kk}]")
            A(f"buffer_store_dwordx4 {vr(WL+8*kk+4,4)}, v{vST}, {sr(sWS,4)}, s{sWST} offen offset:{1024*kk} {STF}")
        A("s_mov_b64 exec, -1")
        Q.extend(["s", "s"])
    for n in range(14):
        wait_for(n)
        if n == 0:
            A(f"s_cmp_lg_u32 s{sNT}, 15")
            A("s_cbranch_scc1 k1_ng")
            for i in range(7): A(f"ds_write_b16 v{vGW+8+(i>>2)}, v{vGW+i} offset:{16384*(i&3)}")
            A("s_waitcnt lgkmcnt(0)")
            A("k1_ng:")
        A("s_barrier")
        if n < 12: ST.at(2 + n)
        if n <= 4: issue(n + 2)
        if 4 <= n <= 10: issue(n + 3)
        if n == WPOS: wloads()
        if n == 13: wstore()
    A(f"s_cmp_ge_u32 s{sW}, 2")
    A("s_cbranch_scc1 k1_pf")
    A(f"s_load_dwordx2 {sr(sX,2)}, s[0:1], 40")
    A(f"s_getpc_b64 {sr(56,2)}")
    A("s_add_u32 s56, s56, tab_inv@rel32@lo+4")
    A("s_addc_u32 s57, s57, tab_inv@rel32@hi+12")
    A(f"s_mov_b32 s{sX+2}, 401408")
    A(f"s_mul_i32 s{sT}, s2, {13*128}")
    A(f"v_lshl_add_u32 v{vT}, v{vL}, 7, s{sT}")
    A("s_waitcnt lgkmcnt(0)")
    A(f"s_cmp_eq_u32 s{sW}, 1")
    A(f"s_cselect_b32 s{sX}, s56, s{sX}")
    A(f"s_cselect_b32 s{sX+1}, s57, s{sX+1}")
    A("s_mov_b64 exec, 0x1fff")
    A(f"buffer_load_dword v{vT+2}, v{vT}, {sr(sX,4)}, 0 offen")
    A("s_mov_b64 exec, -1")
    A("s_branch k1_pf")

    A("k1_comp:")
    A(f"s_mov_b32 s{sWS+2}, {WS_BYTES}")
    A(f"s_mov_b32 s{sWS+3}, 0x20000")
    A(f"v_lshlrev_b32 v{vST}, 4, v{vL}")
    A(f"v_and_b32 v{vT}, 31, v{vL}")
    A(f"v_lshrrev_b32 v{vT+1}, 5, v{vL}")
    A(f"v_bfe_u32 v{vT+2}, v{vL}, 1, 3")
    A(f"v_xor_b32 v{vT+2}, v{vT+2}, v{vT+1}")
    A(f"v_lshlrev_b32 v{vT+2}, 4, v{vT+2}")
    A(f"v_lshl_add_u32 v{vT+2}, v{vT}, 7, v{vT+2}")
    A(f"v_add_u32 v{vRA}, s{sLA}, v{vT+2}")
    for u in range(1, 4): A(f"v_xor_b32 v{vRA+u}, {32*u}, v{vRA}")
    A(f"v_bfe_u32 v{vT+2}, v{vL}, 2, 2")
    A(f"v_lshl_add_u32 v{vT+3}, v{vT+1}, 3, v{vT+2}")
    A(f"v_lshlrev_b32 v{vT+3}, 8, v{vT+3}")
    A(f"v_bfe_u32 v{vT+4}, v{vL}, 4, 1")
    A(f"v_lshlrev_b32 v{vT+4}, 5, v{vT+4}")
    A(f"v_and_b32 v{vT+5}, 3, v{vL}")
    A(f"v_lshl_add_u32 v{vT+4}, v{vT+5}, 3, v{vT+4}")
    A(f"s_and_b32 s{sT}, s{sW}, 2")
    A(f"s_mul_i32 s{sT}, s{sT}, s{sGS}")
    A(f"v_add_u32 v{vT+4}, s{sT}, v{vT+4}")
    A(f"v_lshlrev_b32 v{vT+2}, 6, v{vT+2}")
    for g in range(2):
        A(f"v_xor_b32 v{vT+5}, v{vT+4}, v{vT+2}")
        A(f"v_add_u32 v{vRB+g}, v{vT+5}, v{vT+3}")
        A(f"v_add_u32 v{vRB+2+g}, 0x10000, v{vRB+g}")
        if g == 0: A(f"v_add_u32 v{vT+4}, s{sGS}, v{vT+4}")
    MC = lambda p: MB + 24 * p
    A(f"s_cmp_lt_u32 s{sNT}, 12")
    A("s_cbranch_scc1 k1_nom")
    A(f"v_cvt_f32_u32 v{vT+3}, v{vT}")
    A(f"v_mul_f32 v{vT+3}, {hex(f2u(1/32))}, v{vT+3}")
    for p in range(2):
        A(f"v_lshl_add_u32 v{vT+2}, v{vT+1}, 8, s{sBB if p == 0 else sB2}")
        A(f"v_mul_u32_u24 v{vT+2}, v{vT+2}, v{vT}")
        A(f"v_cvt_f32_u32 v{vT+2}, v{vT+2}")
        A(f"v_mul_f32 v{vT+2}, {hex(f2u(1/2048))}, v{vT+2}")
        for t in range(2):
            for jp in range(4):
                for e in range(2):
                    j = 2 * jp + e
                    n = 16 * t + 8 * (j >> 2) + (j & 3)
                    A(f"v_fmamk_f32 v{vT+4+e}, v{vT+3}, {hex(f2u(float(n)))}, v{vT+2}")
                    A(f"v_fract_f32 v{vT+4+e}, v{vT+4+e}")
                A(f"v_cos_f32 v{vT+6}, v{vT+4}")
                A(f"v_cos_f32 v{vT+7}, v{vT+5}")
                A(f"v_sin_f32 v{vT+8}, v{vT+4}")
                A(f"v_sin_f32 v{vT+9}, v{vT+5}")
                A(f"v_cvt_pk_bf16_f32 v{MC(p)+4*t+jp}, v{vT+6}, v{vT+7}")
                A(f"v_cvt_pk_bf16_f32 v{MC(p)+8+4*t+jp}, v{vT+8}, v{vT+9}")
                A(f"v_cvt_pk_bf16_f32 v{MC(p)+16+4*t+jp}, -v{vT+8}, -v{vT+9}")
    A("k1_nom:")
    A("s_waitcnt lgkmcnt(0) ; WSB")

    def reads(m):
        n, u = m // 4, m % 4; i = n % 7; buf = FR + 12 * (m % 3)
        L = [f"ds_read_b128 {vr(buf,4)}, v{vRA+u} offset:{8192*(n%5)}"]
        for g in range(2):
            off = 16384 * (i & 3) + 4096 * u
            L += [f"ds_read_b64_tr_b16 {vr(buf+4+4*g+2*x,2)}, v{vRB+2*(i>>2)+g} offset:{off+1024*x}" for x in range(2)]
        return L
    def steps(m0, m1, swap, fill):
        nm = 2 * (m1 - m0 - 2); k = 0; done = 0
        for m in range(m0, m1):
            n, u = m // 4, m % 4; acc = 32 * (m // 28); buf = FR + 12 * (m % 3)
            if u == 2 and n + 1 < 14:
                A("s_barrier")
                if n + 1 < 8: ST.at(2 + n + 1)
            A(f"s_waitcnt lgkmcnt({5 if m + 1 < 56 else 0})")
            for g in range(2):
                a_, b_ = vr(buf,4), vr(buf+4+4*g,4)
                if swap: a_, b_ = b_, a_
                A(f"v_mfma_f32_32x32x16_bf16 {vr(acc+16*g,16)}, {a_}, {b_}, {'0' if m % 28 == 0 else vr(acc+16*g,16)}")
                if m >= m0 + 2 and fill:
                    k += 1; k2 = min(len(fill), -(-len(fill) * k // (nm - 8)))
                    for x in fill[done:k2]: A(x)
                    done = k2
                if g == 0 and m + 2 < 56:
                    for x in reads(m + 2): A(x)
        assert done == len(fill)
    def pass0(swap):
        A("s_waitcnt lgkmcnt(0)")
        A("s_barrier")
        ST.at(2)
        for x in reads(0) + reads(1): A(x)
        steps(0, 28, swap, [])
        ST.at(10)
    st = lambda r, so, off: f"buffer_store_dwordx4 {vr(r,4)}, v{vST}, {sr(sWS,4)}, s{so} offen offset:{off} {STF}"
    sO = [sCA, sCB]
    def qkv_addr(base):
        A(f"s_and_b32 s{sT}, s{sNT}, 3")
        A(f"s_lshl_b32 s{sT}, s{sT}, 2")
        A(f"s_and_b32 s{sT2}, s{sW}, 2")
        A(f"s_add_u32 s{sT}, s{sT}, s{sT2}")
        A(f"s_lshl_b32 s{sT}, s{sT}, 6")
        for p in range(2):
            A(f"s_add_u32 s{sO[p]}, s{sT}, s{sBB if p == 0 else sB2}")
            A(f"s_lshl_b32 s{sO[p]}, s{sO[p]}, 11")
            A(f"s_add_u32 s{sO[p]}, s{sO[p]}, {base}")

    A(f"s_cmp_ge_u32 s{sNT}, 8")
    A("s_cbranch_scc1 k1_vd")
    A(f"s_cmp_ge_u32 s{sNT}, 4")
    A(f"s_cselect_b32 s{sP4}, {WS_K}, {WS_Q}")
    A(f"s_cselect_b32 s{sP64}, 1.0, {hex(QSCALE)}")
    A(f"s_cselect_b32 s{sLA}, 0x3f803f80, 0")
    A(f"s_cselect_b32 s{sLB}, 0x3f80, 0")
    A(f"s_cselect_b32 s{sC}, 12, 0")
    qkv_addr(f"s{sP4}")
    A(f"v_mov_b32 v{vT+6}, s{sLA}")
    A(f"v_mov_b32 v{vT+7}, s{sLB}")
    A(f"v_lshrrev_b32 v{vT}, 1, v{vL}")
    A(f"v_xor_b32 v{vT}, v{vT}, v{vL}")
    A(f"v_and_b32 v{vT}, 4, v{vT}")
    A(f"v_mul_u32_u24 v{vT}, 3, v{vT}")
    A(f"v_and_b32 v{vT}, s{sC}, v{vT}")
    A(f"v_xor_b32 v{vT}, v{vT}, v{vL}")
    A(f"v_lshlrev_b32 v{vST}, 4, v{vT}")
    A(f"v_cmp_lt_u32 vcc, 31, v{vL}")
    def epi_qk(p):
        L = []
        for g in range(2):
            acc = 32 * p + 16 * g; P = PK + 16 * p + 8 * g
            L += [f"v_mul_f32 v{acc+r}, s{sP64}, v{acc+r}" for r in range(16)]
            L += [f"v_cvt_pk_bf16_f32 v{P+r}, v{acc+2*r}, v{acc+2*r+1}" for r in range(8)]
            L += [f"v_cndmask_b32 v{P+6}, v{P+6}, v{vT+6}, vcc", f"v_cndmask_b32 v{P+7}, v{P+7}, v{vT+7}, vcc"]
            if g: L.append(f"s_add_u32 s{sO[p]}, s{sO[p]}, {64*2048}")
            L += [st(P, sO[p], 0), st(P + 4, sO[p], 1024)]
        return L
    pass0(True)
    steps(28, 56, True, epi_qk(0))
    ST.at(11)
    for x in epi_qk(1): A(x)
    A("s_branch k1_pf")
    A("k1_vd:")
    qkv_addr(WS_V)
    A(f"v_and_b32 v{vT}, 31, v{vL}")
    A(f"v_cmp_eq_u32 vcc, 28, v{vT}")
    A(f"v_mov_b32 v{vT+6}, 0x3f803f80")
    A(f"v_cndmask_b32 v{vT+6}, 0, v{vT+6}, vcc")
    A(f"v_cmp_lt_u32 vcc, 27, v{vT}")
    pass0(False)
    A(f"s_cmp_ge_u32 s{sNT}, 12")
    A("s_cbranch_scc1 k1_dft")
    def epi_v(p):
        L = []
        for g in range(2):
            acc = 32 * p + 16 * g; P = PK + 16 * p + 8 * g
            L += [f"v_cvt_pk_bf16_f32 v{P+r}, v{acc+2*r}, v{acc+2*r+1}" for r in range(8)]
            L += [f"v_cndmask_b32 v{P+r}, v{P+r}, v{vT+6}, vcc" for r in range(8)]
            if g: L.append(f"s_add_u32 s{sO[p]}, s{sO[p]}, {64*2048}")
            L += [st(P, sO[p], 0), st(P + 4, sO[p], 1024)]
        return L
    steps(28, 56, False, epi_v(0))
    ST.at(11)
    for x in epi_v(1): A(x)
    A("s_branch k1_pf")
    A("k1_dft:")
    A(f"s_lshl_b32 s{sT}, s{sNT}, 1")
    A(f"s_lshr_b32 s{sT2}, s{sW}, 1")
    A(f"s_add_u32 s{sC}, s{sT}, s{sT2}")
    A(f"s_lshl_b32 s{sT}, s{sC}, 12")
    for p in range(2):
        A(f"s_mul_i32 s{sO[p]}, s{sBB if p == 0 else sB2}, {YB}")
        A(f"s_add_u32 s{sO[p]}, s{sO[p]}, s{sT}")
        A(f"s_add_u32 s{sO[p]}, s{sO[p]}, {WS_Y - 24*4096}")
    A(f"s_cmp_eq_u32 s{sC}, 31")
    A("s_cselect_b64 s[54:55], 0xff, -1")
    A("s_cselect_b64 s[56:57], 1, -1")
    A(f"s_cselect_b32 s{sP4}, {WS_G}, {0}")
    A(f"s_cselect_b32 s{sLA}, 0, 0x40000000")
    A(f"s_lshl_b32 s{sT2}, s{sW}, 11")
    A(f"s_add_u32 s{sT2}, s{sT2}, {LSTG}")
    A(f"v_lshlrev_b32 v{vT}, 6, v{vT}")
    A(f"v_lshl_add_u32 v{vT}, v{vT+1}, 4, v{vT}")
    A(f"v_add_u32 v{vT}, s{sT2}, v{vT}")
    A(f"v_add_u32 v{vT+2}, s{sT2}, v{vST}")
    A(f"v_lshlrev_b32 v{vT+3}, 4, v{vT+1}")
    A(f"v_and_b32 v{vT+4}, 31, v{vL}")
    A(f"v_cmp_ne_u32 vcc, 0, v{vT+4}")
    A(f"v_mov_b32 v{vT+4}, 0x40000000")
    A(f"v_or_b32 v{vT+3}, s{sLA}, v{vT+3}")
    A(f"v_cndmask_b32 v{vT+3}, v{vT+3}, v{vT+4}, vcc")
    def epi_dft(p):
        xr, xi = PK + 16 * p, PK + 16 * p + 8; yr, yi = 32 * p, 32 * p + 16; M = MC(p)
        L = [f"s_lshl_b32 s{sT}, s{sBB if p == 0 else sB2}, 7", f"s_add_u32 s{sT}, s{sT}, s{sP4}"]
        L += [f"buffer_store_dwordx4 {vr(yi+4*g,4)}, v{vT+3}, {sr(sWS,4)}, s{sT} offen offset:{32*g}" for g in range(4)]
        L += [f"v_cvt_pk_bf16_f32 v{xr+r}, v{yr+2*r}, v{yr+2*r+1}" for r in range(8)]
        L += [f"v_cvt_pk_bf16_f32 v{xi+r}, v{yi+2*r}, v{yi+2*r+1}" for r in range(8)]
        L += [f"v_and_b32 v{xi+r}, s{sLB}, v{xi+r}" for r in range(8)]
        mf = lambda d, a, b, first=False: f"v_mfma_f32_32x32x16_bf16 {vr(d,16)}, {vr(a,4)}, {vr(b,4)}, {'0' if first else vr(d,16)}"
        for t in range(2): L += [mf(yr, M + 4*t, xr + 4*t, t == 0), mf(yi, M + 4*t, xi + 4*t, t == 0)]
        for t in range(2): L += [mf(yr, M + 8 + 4*t, xi + 4*t), mf(yi, M + 16 + 4*t, xr + 4*t)]
        L += ["s_nop 0"] * 4
        for part, (y, P) in enumerate(((yr, xr), (yi, xi))):
            L += [f"v_cvt_pk_bf16_f32 v{P+r}, v{y+2*r}, v{y+2*r+1}" for r in range(8)]
            L.append("s_nop 0")
            for t in range(2): L += [f"v_permlane32_swap_b32 v{P+4*t}, v{P+4*t+2}", f"v_permlane32_swap_b32 v{P+4*t+1}, v{P+4*t+3}"]
            L += [f"ds_write_b128 v{vT}, {vr(P+4*t,4)} offset:{32*t}" for t in range(2)]
            L.append("s_waitcnt lgkmcnt(0)")
            L += [f"ds_read_b128 {vr(P+4*k,4)}, v{vT+2} offset:{1024*k}" for k in range(2)]
            L.append("s_waitcnt lgkmcnt(0)")
            for k in range(2): L.append(f"s_mov_b64 exec, s[{54+2*k}:{55+2*k}]\n" + st(P + 4*k, sO[p], 2048*part + 1024*k) + "\ns_mov_b64 exec, -1")
        return L
    A(f"s_cmp_eq_u32 s{sC}, 31")
    A(f"s_cselect_b32 s{sLB}, 0, -1")
    steps(28, 56, False, epi_dft(0))
    ST.at(11)
    for x in epi_dft(1): A(x)
    A("k1_pf:")
    if DIAG: A("s_memtime s[96:97]")
    ST.dump(sWS, sW8, 8, vT+10)
    if DIAG: A("s_mov_b64 exec, -1")
    A(f"s_cmp_lg_u32 s{sW8}, 4")
    A("s_cbranch_scc1 k1_end")
    A(f"s_cmp_ge_u32 s{sJ}, 8")
    A("s_cbranch_scc1 k1_end")
    A(f"s_getpc_b64 {sr(56,2)}")
    A("s_add_u32 s56, s56, tab_small@rel32@lo+4")
    A("s_addc_u32 s57, s57, tab_small@rel32@hi+12")
    A(f"s_getpc_b64 {sr(58,2)}")
    A("s_add_u32 s58, s58, k2_kernel@rel32@lo+4")
    A("s_addc_u32 s59, s59, k2_kernel@rel32@hi+12")
    A(f"s_cmp_ge_u32 s{sJ}, 6")
    A(f"s_cselect_b32 s56, s58, s56")
    A(f"s_cselect_b32 s57, s59, s57")
    A(f"s_cselect_b32 s{sT}, 6, 0")
    A(f"s_sub_u32 s{sT}, s{sJ}, s{sT}")
    A(f"s_lshl_b32 s{sT}, s{sT}, 13")
    A(f"v_lshl_add_u32 v{vT}, v{vL}, 7, s{sT}")
    A(f"global_load_dword v{vT+1}, v{vT}, s[56:57]")
    A("k1_end:")
    A("s_endpgm")
    return A.L, NV, 102 if DIAG else 64
```

```python
from asmlib import *
from k1 import WS_Q, WS_K, WS_V, WS_Y, WS_W, WS_O, WS_Z, WS_G, WS_BYTES, WS_FO, WS_FZ, f2u, YB, WP, ZP
import math, os
TS_F64, TS_F32, TS_TW, TS_BYTES = 0, 24576, 30720, 47104
LF, LZ, RED = 0, 57344, 114688
LW = RED - 8192
LDS_Y, LDS_Q = RED, RED + 8192
K2_LDS = 163840
TAB_INV_BYTES = 401408
SPIN = 20000
N0 = int(os.environ.get("N0", 13)); N1 = (64 - N0) // 3
assert N0 + 3 * N1 == 64
OST = os.environ.get("OST", "")

def merge(ms, vs, lead=0):
    out = []; n = len(ms); k = 0
    for i, m in enumerate(ms):
        out.append(m)
        k2 = (len(vs) * (i + 1)) // n
        out += vs[k:k2]; k = k2
    return out

def gen_k2():
    A = Asm()
    sWS, sX, sTB = 8, 12, 16
    sW, sJ, sXC, sHD, sQB, sT, sT2, sCNT, sI, sKO, sLO, sHI, sVO, sPASS = 20, 21, 22, 23, 24, 25, 26, 27, 28, 29, 30, 31, 32, 33
    sK0, sOK, sQ, sOUT = 34, 35, 40, 48
    sMT, sNT, sPUB, sLO2 = 52, 53, 57, 58
    O, S, Q, KV = 0, 64, 128, 160
    vL, vO16, vIDX, vT = 208, 209, 210, 212
    NV = 256
    vWD, sWM, sWS_ = 237, 59, 60
    A("s_cmp_ge_u32 s2, 256")
    A("s_cbranch_scc1 k2_end")
    ST = Stamps(A, 1); ST.begin()
    A(f"s_load_dwordx2 {sr(sWS,2)}, s[0:1], 72")
    A(f"s_load_dwordx2 {sr(sX,2)}, s[0:1], 40")
    A(f"s_load_dwordx2 {sr(sOUT,2)}, s[0:1], 56")
    A(f"v_lshrrev_b32 v{vT}, 6, v0")
    A(f"v_and_b32 v{vL}, 63, v0")
    A(f"s_mov_b32 s{sWS+2}, {WS_BYTES}")
    A(f"s_mov_b32 s{sWS+3}, 0x20000")
    A(f"v_readfirstlane_b32 s{sW}, v{vT}")
    A(f"v_lshlrev_b32 v{vO16}, 4, v{vL}")
    A(f"v_and_b32 v{vT+9}, 31, v{vL}")
    A(f"v_lshlrev_b32 v{vT+9}, 2, v{vT+9}")
    A(f"s_and_b32 s{sXC}, s2, 7")
    A(f"s_lshr_b32 s{sJ}, s2, 3")
    A(f"s_and_b32 s{sT}, s{sJ}, 3")
    A(f"s_lshl_b32 s{sMT}, s{sXC}, 2")
    A(f"s_add_u32 s{sMT}, s{sMT}, s{sT}")
    A(f"s_lshr_b32 s{sNT}, s{sJ}, 2")
    A(f"s_getpc_b64 {sr(sTB,2)}")
    A(f"s_add_u32 s{sTB}, s{sTB}, tab_inv@rel32@lo+4")
    A(f"s_addc_u32 s{sTB+1}, s{sTB+1}, tab_inv@rel32@hi+12")
    A(f"s_mov_b32 s{sTB+2}, {TAB_INV_BYTES}")
    A(f"s_mov_b32 s{sTB+3}, 0x20000")
    A(f"s_cmp_eq_u32 s{sW}, 4")
    A("s_cbranch_scc1 k2_aux")
    A(f"s_lshr_b32 s{sHD}, s{sJ}, 4")
    A(f"s_lshl_b32 s{sHD}, s{sHD}, 3")
    A(f"s_add_u32 s{sHD}, s{sHD}, s{sXC}")
    A(f"s_and_b32 s{sQB}, s{sJ}, 15")
    A(f"s_cmp_eq_u32 s{sW}, 0")
    A(f"s_cselect_b32 s{sCNT}, {N0}, {N1}")
    A(f"s_mul_i32 s{sT}, s{sW}, {N1}")
    A(f"s_sub_u32 s{sT}, s{sT}, {N1-N0}")
    A(f"s_max_i32 s{sT}, s{sT}, 0")
    A(f"s_lshl_b32 s{sT2}, s{sW}, 4")
    A(f"s_cmp_le_u32 s2, 224")
    A(f"s_cselect_b32 s{sCNT}, s{sCNT}, 16")
    A(f"s_cselect_b32 s{sT}, s{sT}, s{sT2}")
    A(f"s_lshl_b32 s{sT2}, s{sHD}, 6")
    A(f"s_add_u32 s{sT}, s{sT}, s{sT2}")
    A(f"s_lshl_b32 s{sLO}, s{sT}, 11")
    A(f"s_add_u32 s{sLO}, s{sLO}, {WS_K}")
    A(f"s_lshl_b32 s{sT}, s{sCNT}, 11")
    A(f"s_add_u32 s{sHI}, s{sLO}, s{sT}")
    if os.environ.get("ROT"):
        A(f"s_mul_i32 s{sT}, s{sQB}, s{sCNT}")
        A(f"s_lshr_b32 s{sT}, s{sT}, 4")
        A(f"s_lshl_b32 s{sT}, s{sT}, 11")
        A(f"s_add_u32 s{sK0}, s{sLO}, s{sT}")
    else:
        A(f"s_mov_b32 s{sK0}, s{sLO}")
    A(f"s_lshl_b32 s{sT}, s{sQB}, 2")
    A(f"s_add_u32 s{sT}, s{sT}, s{sT2}")
    for s in range(4):
        A(f"s_add_u32 s{sQ+s}, s{sW}, {s+1}")
        A(f"s_and_b32 s{sQ+s}, s{sQ+s}, 3")
        A(f"s_add_u32 s{sT2}, s{sQ+s}, s{sT}")
        A(f"s_lshl_b32 s{sQ+4+s}, s{sT2}, 11")
    A(f"s_mov_b32 s{sKO}, s{sK0}")
    A(f"s_add_u32 s{sVO}, s{sKO}, {WS_V - WS_K}")
    A("s_waitcnt lgkmcnt(0) ; WSB")
    def ldk(st, t): return f"buffer_load_dwordx4 {vr(KV+16*st+4*t,4)}, v{vO16}, {sr(sWS,4)}, s{sKO} offen offset:{1024*t}"
    def ldv(st, t): return f"buffer_load_dwordx4 {vr(KV+16*st+8+4*t,4)}, v{vO16}, {sr(sWS,4)}, s{sVO} offen offset:{1024*t}"
    def ldq(s, t): return f"buffer_load_dwordx4 {vr(Q+8*s+4*t,4)}, v{vO16}, {sr(sWS,4)}, s{sQ+4+s} offen offset:{1024*t}"
    adv = [f"s_add_u32 s{sKO}, s{sKO}, 2048", f"s_cmp_ge_u32 s{sKO}, s{sHI}", f"s_cselect_b32 s{sKO}, s{sLO2}, s{sKO}"]
    setv = f"s_add_u32 s{sVO}, s{sKO}, {WS_V - WS_K}"
    A(f"s_lshl_b32 s{sT}, s{sW}, 11")
    A(f"s_add_u32 m0, s{sT}, {LDS_Q}")
    A(ldk(0, 0))
    A(f"buffer_load_dwordx4 v{vO16}, {sr(sWS,4)}, s{sQ+7} offen lds")
    A(f"buffer_load_dwordx4 v{vO16}, {sr(sWS,4)}, s{sQ+7} offen offset:1024 lds")
    for x in [ldk(0, 1), ldv(0, 0), ldv(0, 1)]: A(x)
    A(f"s_mov_b32 s{sPASS}, 0")
    A(f"s_mov_b32 s{sOK}, 0")
    A("s_branch k2_first")
    A("k2_pass:")
    A(f"s_mov_b32 s{sKO}, s{sK0}")
    A(setv)
    for x in [ldk(0, 0), ldk(0, 1), ldv(0, 0), ldv(0, 1)]: A(x)
    A("s_waitcnt vmcnt(0)")
    A("k2_first:")
    for x in adv[:1] + [setv, ldk(1, 0), ldk(1, 1), ldv(1, 0), ldv(1, 1)] + adv[:1] + [setv, ldk(2, 0), ldk(2, 1), ldv(2, 0), ldv(2, 1)]: A(x)
    A(f"s_add_u32 s{sLO2}, s{sLO}, {3*2048}")
    A(f"s_sub_u32 s{sT}, s{sCNT}, 3")
    A(f"s_mul_i32 s{sT}, s{sT}, s{sQB}")
    A(f"s_lshr_b32 s{sT}, s{sT}, 4")
    A(f"s_lshl_b32 s{sT}, s{sT}, 11")
    A(f"s_add_u32 s{sKO}, s{sLO2}, s{sT}")
    A(f"s_cmp_lg_u32 s{sPASS}, 0")
    A("s_cbranch_scc1 k2_nobar")
    for r in range(64): A(f"v_mov_b32 v{O+r}, 0")
    A(f"v_mov_b32 v{vIDX}, 0xdddddddd")
    for s_ in range(4):
        A(f"s_lshl_b32 s{sT}, s{sQ+s_}, 11")
        A(f"s_add_u32 s{sT}, s{sT}, {LDS_Q}")
        A(f"v_add_u32 v{vT+2+s_}, s{sT}, v{vO16}")
    A("s_waitcnt vmcnt(11)")
    A("s_barrier")
    for s_ in range(4):
        for t in range(2): A(f"ds_read_b128 {vr(Q+8*s_+4*t,4)}, v{vT+2+s_} offset:{1024*t}")
    A("s_branch k2_go")
    A("k2_nobar:")
    for r in range(64): A(f"v_mov_b32 v{O+r}, 0")
    A("k2_go:")
    A(f"s_mov_b32 s{sI}, s{sCNT}")
    def qk(q, st, half):
        c = "0" if half == 0 else vr(S+16*q,16)
        return f"v_mfma_f32_32x32x16_bf16 {vr(S+16*q,16)}, {vr(KV+16*st+4*half,4)}, {vr(Q+8*q+4*half,4)}, {c}"
    def pv(q, st, half):
        return f"v_smfmac_f32_32x32x32_bf16 {vr(O+16*q,16)}, {vr(KV+16*st+8+4*half,4)}, {vr(S+16*q+8*half,8)}, v{vIDX}"
    def tile(st, first):
        nxt, prv = (st + 1) % 3, (st + 2) % 3
        for q in range(4):
            e = [f"v_exp_f32 v{S+16*q+r}, v{S+16*q+r}" for r in range(16)]
            qn, stn = (q + 1, st) if q < 3 else (0, nxt)
            qp, stp = (q - 1, st) if q > 0 else (3, prv)
            aft = {0: [], 1: [], 2: [], 3: []}
            if q == 0: aft[2] = [ldk(prv, 0)]; aft[3] = [setv]
            if q == 1: aft[1] = ["s_waitcnt vmcnt(5)"]; aft[2] = [ldk(prv, 1)]; aft[3] = adv[0:2]
            if q == 2: aft[0] = [adv[2]]; aft[2] = [ldv(prv, 0)]; aft[3] = [f"s_sub_u32 s{sI}, s{sI}, 1", "s_waitcnt vmcnt(5)"]
            if q == 3: aft[2] = [ldv(prv, 1)]; aft[3] = [f"s_cmp_eq_u32 s{sI}, 0"]
            ms = [qk(qn, stn, 0), qk(qn, stn, 1), pv(qp, stp, 0), pv(qp, stp, 1)]
            if first and q == 0:
                A("s_waitcnt lgkmcnt(0)")
                ms[2] = ms[3] = None
            if first:
                aft = {0: [], 1: [], 2: [], 3: []}
                if q == 1: aft[1] = ["s_waitcnt vmcnt(8)"]
                if q == 2: aft[3] = [f"s_sub_u32 s{sI}, s{sI}, 1", "s_waitcnt vmcnt(6)"]
                if q == 3: aft[3] = [f"s_cmp_eq_u32 s{sI}, 0"]
            for k in range(4):
                if ms[k]: A(ms[k])
                for y in aft[k]: A(y)
                for x in e[4*k:4*k+4]: A(x)
    ST.at(0)
    A("s_waitcnt vmcnt(10) lgkmcnt(6)")
    ST.at(1)
    A(qk(0, 0, 0)); A(qk(0, 0, 1))
    A("s_nop 9")
    tile(0, True)
    A("s_cbranch_scc1 k2_x0")
    loop_start = A.mark()
    A("k2_loop:")
    if DIAG:
        A("s_waitcnt lgkmcnt(0)")
        for i in (13, 12, 11): A(f"s_mov_b32 s{70+2*i}, s{68+2*i}")
        ST.at(10)
    for st in (1, 2, 0):
        tile(st, False)
        A(f"s_cbranch_scc1 k2_x{st}" if st != 0 else "s_cbranch_scc0 k2_loop")
    loop_end = A.mark()
    for st in (0, 1, 2):
        A(f"k2_x{st}:")
        A("s_nop 1")
        A(pv(3, st, 0)); A(pv(3, st, 1))
        if st != 2: A("s_branch k2_red")
    A("k2_red:")
    ST.at(2)
    for s in range(3):
        A(f"s_mul_i32 s{sT}, s{sQ+s}, 12288")
        A(f"s_add_u32 s{sT}, s{sT}, {RED}")
        A(f"v_add_u32 v{vT+s}, s{sT}, v{vO16}")
    A(f"s_lshl_b32 s{sT2}, s{sQB}, 2")
    A(f"s_add_u32 s{sT2}, s{sT2}, s{sW}")
    A(f"s_lshl_b32 s{sT}, s{sT2}, 7")
    A(f"s_add_u32 s{sT}, s{sT}, {WS_G}")
    A(f"buffer_load_dword v{vT+8}, v{vT+9}, {sr(sWS,4)}, s{sT} offen")
    for s in range(3):
        for g in range(4):
            A(f"ds_write_b128 v{vT+s}, {vr(O+16*s+4*g,4)} offset:{4096*s+1024*g}")
    A(f"s_mul_i32 s{sT}, s{sW}, 12288")
    A(f"s_add_u32 s{sT}, s{sT}, {RED}")
    A(f"v_add_u32 v{vT+1}, s{sT}, v{vO16}")
    A(f"s_lshl_b32 s{sT}, s{sW}, 2")
    A(f"s_add_u32 s{sT}, s{sT}, {K2_LDS-128}")
    A(f"v_mov_b32 v{vT+14}, s{sT}")
    A(f"s_lshl_b32 s{sT2}, s{sT2}, 4")
    A(f"s_add_u32 s{sT2}, s{sT2}, s{sHD}")
    A(f"s_lshl_b32 s{sKO}, s{sT2}, 11")
    A(f"s_add_u32 s{sKO}, s{sKO}, {WS_O}")
    A(f"s_lshl_b32 s{sVO}, s{sT2}, 7")
    A(f"s_add_u32 s{sVO}, s{sVO}, {WS_FO}")
    A("s_waitcnt vmcnt(0) lgkmcnt(0)")
    ST.at(3)
    A("s_barrier")
    ST.at(4)
    for s in range(3):
        for g in range(4):
            A(f"ds_read_b128 {vr(S+16*s+4*g,4)}, v{vT+1} offset:{4096*s+1024*g}")
    A(f"v_mul_f32 v{vT+8}, {hex(f2u(math.log2(math.e)))}, v{vT+8}")
    A(f"v_exp_f32 v{vT+8}, v{vT+8}")
    A(f"v_cmp_lt_u32 s[38:39], 31, v{vL}")
    A(f"v_add_f32 v{vT+8}, 1.0, v{vT+8}")
    A(f"v_rcp_f32 v{vT+8}, v{vT+8}")
    R = O + 48
    for s in range(3):
        A(f"s_waitcnt lgkmcnt({8-4*s})")
        for r in list(range(12, 16)) + list(range(12)) if s == 2 else range(16): A(f"v_add_f32 v{R+r}, v{R+r}, v{S+16*s+r}")
    A(f"v_mov_b32 v{vT+4}, v{R+12}")
    A(f"v_mov_b32 v{vT+5}, v{R+12}")
    A(f"v_add_f32 v{vT+7}, abs(v{R}), abs(v{R+1})")
    A(f"v_add_f32 v{vT+7}, v{vT+7}, abs(v{R+2})")
    A(f"v_permlane32_swap_b32 v{vT+4}, v{vT+5}")
    A(f"v_rcp_f32 v{vT+6}, v{vT+5}")
    A(f"v_add_f32 v{vT+7}, v{vT+7}, abs(v{R+3})")
    A(f"v_mul_f32 v{vT+6}, v{vT+6}, v{vT+8}")
    A(f"s_cmp_lg_u32 s{sOK}, 0")
    A(f"s_mov_b32 s{sPUB}, 0")
    A("s_cbranch_scc1 k2_apart")
    for t in range(2):
        for r in range(8): A(f"v_mul_f32 v{S+8*t+r}, v{R+8*t+r}, v{vT+6}")
        for r in range(4): A(f"v_cvt_pk_bf16_f32 v{S+16+4*t+r}, v{S+8*t+2*r}, v{S+8*t+2*r+1}")
        if t == 1:
            A(f"v_cndmask_b32 v{S+22}, v{S+22}, 0, s[38:39]")
            A(f"v_cndmask_b32 v{S+23}, v{S+23}, 0, s[38:39]")
        A(f"buffer_store_dwordx4 {vr(S+16+4*t,4)}, v{vO16}, {sr(sWS,4)}, s{sKO} offen offset:{1024*t} sc1")
    for r in range(4, 16): A(f"v_add_f32 v{vT+7}, v{vT+7}, abs(v{R+r})")
    A(f"v_cmp_nle_f32 vcc, {hex(f2u(2.0**-60))}, v{vT+5}")
    A(f"s_mov_b64 s[36:37], vcc")
    A(f"v_cmp_nge_f32 vcc, {hex(f2u(2.0**60))}, v{vT+5}")
    A(f"s_or_b64 s[36:37], s[36:37], vcc")
    A(f"v_cmp_nge_f32 vcc, {hex(f2u(2.0**120))}, v{vT+7}")
    A(f"s_or_b64 s[36:37], s[36:37], vcc")
    A(f"s_cselect_b32 s{sOK}, 0, 1")
    A(f"s_or_b32 s{sOK}, s{sOK}, s{sPASS}")
    A(f"s_mov_b32 s{sPUB}, s{sOK}")
    A("k2_apart:")
    A("s_barrier")
    def publish(lab, younger=0):
        A(f"s_cmp_eq_u32 s{sPUB}, 0")
        A(f"s_cbranch_scc1 {lab}")
        A(f"v_mov_b32 v{vT+4}, 0")
        A(f"v_mov_b32 v{vT+5}, 1")
        A("s_mov_b64 exec, 1")
        A(f"s_waitcnt vmcnt({younger})")
        A(f"buffer_store_dword v{vT+5}, v{vT+4}, {sr(sWS,4)}, s{sVO} offen sc1")
        A("s_mov_b64 exec, -1")
        A(f"{lab}:")
    A("s_cmp_lt_u32 s2, 224")
    A("s_cbranch_scc1 k2_ap2")
    publish("k2_np0")
    A("s_branch k2_pub")
    A("k2_ap2:")
    AA, AB, OF, LB = 0, 96, 160, 32
    vG3, vZ3, vF3, vW3, vOA, vX = 228, 229, 230, 232, 234, 235
    sKH, sB3, sB = 54, 55, 56
    A(f"s_lshr_b32 s{sKH}, s{sW}, 1")
    A(f"s_and_b32 s{sB3}, s{sW}, 1")
    A(f"v_lshrrev_b32 v{vT+10}, 5, v{vL}")
    A(f"v_bfe_u32 v{vT+11}, v{vL}, 2, 2")
    A(f"v_bfe_u32 v{vT+12}, v{vL}, 4, 1")
    A(f"v_lshlrev_b32 v{vT+12}, 5, v{vT+12}")
    A(f"v_and_b32 v{vT+13}, 3, v{vL}")
    A(f"v_lshl_add_u32 v{vT+12}, v{vT+13}, 3, v{vT+12}")
    A(f"v_lshl_add_u32 v{vT+12}, v{vT+11}, 7, v{vT+12}")
    A(f"v_lshrrev_b32 v{vT+11}, 1, v{vT+11}")
    A(f"v_lshl_add_u32 v{vT+12}, v{vT+11}, 6, v{vT+12}")
    A(f"s_lshl_b32 s{sT}, s{sB3}, 6")
    A(f"v_xor_b32 v{vZ3}, s{sT}, v{vT+12}")
    A(f"v_lshl_add_u32 v{vZ3}, v{vT+10}, 10, v{vZ3}")
    A(f"s_mul_i32 s{sT2}, s{sKH}, {14*2048}")
    A(f"s_add_u32 s{sT}, s{sT2}, {LZ}")
    A(f"v_add_u32 v{vZ3}, s{sT}, v{vZ3}")
    A(f"s_lshl_b32 s{sT}, s{sKH}, 10")
    A(f"s_add_u32 s{sT}, s{sT}, s{sT2}")
    A(f"v_add_u32 v{vF3}, s{sT}, v{vO16}")
    A(f"v_xor_b32 v{vF3+1}, 1024, v{vF3}")
    steps = []
    OFr = lambda m: (OF + 4*m) if m < 12 else (128 + 4*(m-12))
    for n in range(30):
        buf = LB + 12 * (n % 3)
        if n < 14:
            rd = [f"ds_read_b64_tr_b16 {vr(buf+2*x,2)}, v{vZ3} offset:{2048*n+512*x}" for x in range(2)]
            rd += [f"ds_read_b128 {vr(buf+4+4*k,4)}, v{vF3+k} offset:{2048*n}" for k in range(2)]
            mm = [f"v_mfma_f32_32x32x16_bf16 {vr(AA+16*k,16)}, {vr(buf+4+4*k,4)}, {vr(buf,4)}, {'0' if n == 0 else vr(AA+16*k,16)}" for k in range(2)]
        else:
            m = n - 14; hd, t = m >> 1, m & 1
            rd = [f"ds_read_b64_tr_b16 {vr(buf+4+4*k+2*x,2)}, v{vW3+k} offset:{(28*hd+16*t)*128+1024*x}" for k in range(2) for x in range(2)]
            ks = (1, 0) if m == 15 else (0, 1)
            mm = [f"v_mfma_f32_32x32x16_bf16 {vr(AB+16*k,16)}, {vr(buf+4+4*k,4)}, {vr(OFr(m),4)}, {'0' if m == 0 else vr(AB+16*k,16)}" for k in ks]
        steps.append((rd, mm))
    NA = int(os.environ.get("NA", 8))
    for x in steps[0][0] + steps[1][0]: A(x)
    for n in range(14):
        if n == NA: publish("k2_np1")
        A(f"s_waitcnt lgkmcnt({4 if n < 13 else 0})")
        A(steps[n][1][0])
        if n + 2 < 14:
            for x in steps[n+2][0]: A(x)
        A(steps[n][1][1])
    A("k2_pub:")
    ST.at(5)
    A(f"v_mov_b32 v{vT+5}, s{sOK}")
    A(f"ds_write_b32 v{vT+14}, v{vT+5}")
    A("k2_chk:")
    A(f"v_mov_b32 v{vT+8}, {K2_LDS-128}")
    A("s_waitcnt lgkmcnt(0)")
    A("s_barrier")
    A(f"ds_read_b128 {vr(vT+4,4)}, v{vT+8}")
    A("s_waitcnt lgkmcnt(0)")
    A("s_barrier")
    A(f"v_and_b32 v{vT+4}, v{vT+4}, v{vT+5}")
    A(f"v_and_b32 v{vT+6}, v{vT+6}, v{vT+7}")
    A(f"v_and_b32 v{vT+4}, v{vT+4}, v{vT+6}")
    A(f"v_readfirstlane_b32 s{sT}, v{vT+4}")
    A(f"s_cmp_lg_u32 s{sT}, 0")
    A("s_cbranch_scc1 k2_p3")
    A(f"s_cmp_eq_u32 s{sW}, 4")
    A("s_cbranch_scc1 k2_auxfb")
    A(f"s_mov_b32 s{sPASS}, 1")
    A("s_waitcnt vmcnt(0)")
    for q in range(4): A(f"v_mov_b32 v{O+q}, 0xff800000")
    A(f"s_mov_b32 s{sKO}, s{sLO}")
    A("k2_maxloop:")
    A(ldk(0, 0)); A(ldk(0, 1))
    A("s_waitcnt vmcnt(0)")
    for q in range(4): A(qk(q, 0, 0)); A(qk(q, 0, 1))
    A("s_nop 15")
    for q in range(4):
        for r in range(8): A(f"v_max3_f32 v{O+q}, v{O+q}, v{S+16*q+2*r}, v{S+16*q+2*r+1}")
    A(f"s_add_u32 s{sKO}, s{sKO}, 2048")
    A(f"s_cmp_lt_u32 s{sKO}, s{sHI}")
    A("s_cbranch_scc1 k2_maxloop")
    A(f"s_lshl_b32 s{sT}, s{sW}, 8")
    A(f"s_add_u32 s{sT}, s{sT}, {RED}")
    A(f"v_lshl_add_u32 v{vT}, v{vL}, 2, s{sT}")
    A(f"v_and_b32 v{vT+1}, 31, v{vL}")
    A(f"v_lshlrev_b32 v{vT+1}, 2, v{vT+1}")
    A(f"v_add_u32 v{vT+1}, {RED}, v{vT+1}")
    for s in range(4):
        A(f"s_lshl_b32 s{sT}, s{sQ+s}, 10")
        A(f"v_add_u32 v{vT+2}, s{sT}, v{vT}")
        A(f"v_add_u32 v{vT+4+s}, s{sT}, v{vT+1}")
        A(f"ds_write_b32 v{vT+2}, v{O+s}")
    A("s_waitcnt lgkmcnt(0)")
    A("s_barrier")
    for s in range(4):
        for k in range(8): A(f"ds_read_b32 v{S+8*s+k}, v{vT+4+s} offset:{128*k}")
        A("s_waitcnt lgkmcnt(0)")
    A("s_barrier")
    A(f"v_cmp_lt_u32 vcc, 31, v{vL}")
    for q in range(4):
        m = S + 8 * q
        A(f"v_max3_f32 v{m}, v{m}, v{m+1}, v{m+2}")
        A(f"v_max3_f32 v{m}, v{m}, v{m+3}, v{m+4}")
        A(f"v_max3_f32 v{m}, v{m}, v{m+5}, v{m+6}")
        A(f"v_max_f32 v{m}, v{m}, v{m+7}")
        A(f"v_xor_b32 v{m}, 0x80000000, v{m}")
        A(f"v_and_b32 v{m+1}, 0xffff0000, v{m}")
        A(f"v_sub_f32 v{m+2}, v{m}, v{m+1}")
        A(f"v_and_b32 v{m+3}, 0xffff0000, v{m+2}")
        A(f"v_sub_f32 v{m+4}, v{m+2}, v{m+3}")
        A(f"v_lshrrev_b32 v{m+1}, 16, v{m+1}")
        A(f"v_or_b32 v{m+1}, v{m+1}, v{m+3}")
        A(f"v_lshrrev_b32 v{m+4}, 16, v{m+4}")
        A(f"v_cndmask_b32 v{Q+8*q+6}, v{Q+8*q+6}, v{m+1}, vcc")
        A(f"v_cndmask_b32 v{Q+8*q+7}, v{Q+8*q+7}, v{m+4}, vcc")
    A("s_branch k2_pass")

    A("k2_p3:")
    A("s_cmp_ge_u32 s2, 224")
    A("s_cbranch_scc1 k2_dump" if DIAG else "s_cbranch_scc1 k2_end")
    A(f"s_cmp_eq_u32 s{sW}, 4")
    A("s_cbranch_scc1 k2_auxp3")
    A(f"s_lshl_b32 s{sT}, s{sMT}, 1")
    A(f"s_add_u32 s{sB}, s{sT}, s{sB3}")
    A(f"s_lshl_b32 s{sT}, s{sB}, 7")
    A(f"s_add_u32 s{sT}, s{sT}, {WS_G}")
    A(f"buffer_load_dword v{vG3}, v{vT+9}, {sr(sWS,4)}, s{sT} offen")
    A(f"s_lshl_b32 s{sT}, s{sKH}, 6")
    A(f"v_xor_b32 v{vW3}, s{sT}, v{vT+12}")
    A(f"v_lshl_add_u32 v{vW3}, v{vT+10}, 9, v{vW3}")
    A(f"s_mul_i32 s{sT}, s{sKH}, {224*128}")
    A(f"s_add_u32 s{sT}, s{sT}, {LW}")
    A(f"v_add_u32 v{vW3}, s{sT}, v{vW3}")
    A(f"v_xor_b32 v{vW3+1}, 64, v{vW3}")
    A(f"s_lshl_b32 s{sT}, s{sW}, 12")
    A(f"v_add_u32 v{vX}, s{sT}, v{vO16}")
    A(f"v_xor_b32 v{vX+1}, 8192, v{vX}")
    A(f"s_lshl_b32 s{sT}, s{sB}, 1")
    A(f"s_add_u32 s{sT}, s{sT}, s{sKH}")
    A(f"s_lshl_b32 s{sT}, s{sT}, 14")
    A(f"s_add_u32 s{sKO}, s{sT}, {WS_O}")
    A(f"v_lshrrev_b32 v{vT+3}, 2, v{vT+9}")
    A(f"v_mul_u32_u24 v{vOA}, 57344, v{vT+3}")
    A(f"v_lshl_add_u32 v{vOA}, v{vT+10}, 4, v{vOA}")
    A(f"s_mul_i32 s{sVO}, s{sB}, 896")
    A(f"s_lshl_b32 s{sT}, s{sNT}, 7")
    A(f"s_add_u32 s{sVO}, s{sVO}, s{sT}")
    A(f"s_lshl_b32 s{sT}, s{sKH}, 6")
    A(f"s_add_u32 s{sVO}, s{sVO}, s{sT}")
    A(f"s_mov_b32 s{sOUT+2}, 1835008")
    A(f"s_mov_b32 s{sOUT+3}, 0x20000")
    ST.at(6)
    A("s_barrier")
    ST.at(7)
    def old(m):
        if m and m % 4 == 0: A(f"s_add_u32 s{sKO}, s{sKO}, 4096")
        A(f"buffer_load_dwordx4 {vr(OFr(m),4)}, v{vO16}, {sr(sWS,4)}, s{sKO} offen offset:{1024*(m%4)} sc1")
    NO = int(os.environ.get("NO", 10))
    for x in steps[14][0] + steps[15][0]: A(x)
    for m in range(NO): old(m)
    A(f"v_mul_f32 v{vG3}, {hex(f2u(-math.log2(math.e)))}, v{vG3}")
    A(f"v_exp_f32 v{vG3}, v{vG3}")
    A("s_nop 0")
    A(f"v_add_f32 v{vG3}, 1.0, v{vG3}")
    A(f"v_rcp_f32 v{vG3}, v{vG3}")
    for n in range(14, 30):
        m = n - 14
        if NO + m < 16: old(NO + m)
        A(f"s_waitcnt vmcnt({min(NO + m + 1, 16) - m - 1}) lgkmcnt({4 if n < 29 else 0})")
        if m == 0: ST.at(8)
        A(steps[n][1][0])
        if n + 2 < 30:
            for x in steps[n+2][0]: A(x)
        A(steps[n][1][1])
    ST.at(9)
    A("s_nop 10")
    for r in range(16): A(f"v_fma_f32 v{AB+16+r}, v{vG3}, v{AA+16+r}, v{AB+16+r}")
    for g in range(4): A(f"ds_write_b128 v{vX}, {vr(AB+16+4*g,4)} offset:{1024*g}")
    for r in range(16): A(f"v_fma_f32 v{AB+r}, v{vG3}, v{AA+r}, v{AB+r}")
    A("s_waitcnt lgkmcnt(0)")
    A("s_barrier")
    for g in range(4): A(f"ds_read_b128 {vr(AA+4*g,4)}, v{vX+1} offset:{1024*g}")
    for g in range(4):
        A(f"s_waitcnt lgkmcnt({3-g})")
        for r in range(4*g, 4*g+4): A(f"v_add_f32 v{AB+r}, v{AB+r}, v{AA+r}")
        for r in range(2*g, 2*g+2): A(f"v_cvt_pk_bf16_f32 v{LB+r}, v{AB+2*r}, v{AB+2*r+1}")
        if g & 1:
            t = g >> 1
            A(f"v_permlane32_swap_b32 v{LB+4*t}, v{LB+4*t+2}")
            A(f"v_permlane32_swap_b32 v{LB+4*t+1}, v{LB+4*t+3}")
            A(f"buffer_store_dwordx4 {vr(LB+4*t,4)}, v{vOA}, {sr(sOUT,4)}, s{sVO} offen offset:{32*t} {os.environ.get('OUTF', '')}")
    A("s_branch k2_dump" if DIAG else "s_endpgm")

    A("k2_aux:")
    sCOL, sTS = 27, 40
    A(f"s_getpc_b64 {sr(sTS,2)}")
    A(f"s_add_u32 s{sTS}, s{sTS}, tab_small@rel32@lo+4")
    A(f"s_addc_u32 s{sTS+1}, s{sTS+1}, tab_small@rel32@hi+12")
    A(f"s_mov_b32 s{sTS+2}, {TS_BYTES}")
    A(f"s_mov_b32 s{sTS+3}, 0x20000")
    A(f"s_mov_b32 s{sX+2}, 401408")
    A(f"s_mov_b32 s{sX+3}, 0x20000")
    A(f"s_mul_i32 s{sCOL}, s{sXC}, 28")
    A(f"s_add_u32 s{sCOL}, s{sCOL}, s{sJ}")
    A(f"s_cmp_eq_u32 s2, 224")
    A(f"s_cselect_b32 s{sCOL}, 224, s{sCOL}")
    C_ = lambda kind, mt, u: 48 * mt + 16 * kind + 4 * u
    X = 96
    YF = 160
    U0 = 192
    WT = 212
    TM = 244
    vG = 210
    A(f"v_lshrrev_b32 v{TM}, 2, v{vL}")
    A(f"v_mul_u32_u24 v{vG+1}, {WP}, v{TM}")
    A(f"v_mul_u32_u24 v{TM}, {YB}, v{TM}")
    A(f"v_and_b32 v{TM+1}, 3, v{vL}")
    A(f"v_lshl_add_u32 v{vG}, v{TM+1}, 4, v{TM}")
    A(f"v_lshl_add_u32 v{vG+1}, v{TM+1}, 4, v{vG+1}")
    A(f"s_lshr_b32 s{sT}, s{sCOL}, 5")
    A(f"s_lshl_b32 s{sT}, s{sT}, 12")
    A(f"s_and_b32 s{sT2}, s{sCOL}, 31")
    A(f"s_lshl_b32 s{sT2}, s{sT2}, 6")
    A(f"s_add_u32 s{sT}, s{sT}, s{sT2}")
    A(f"s_lshl_b32 s{sKO}, s{sCOL}, 6")
    A(f"v_lshrrev_b32 v{TM}, 5, v{vL}")
    A(f"v_bfe_u32 v{TM+1}, v{vL}, 2, 2")
    A(f"v_lshl_add_u32 v{TM}, v{TM}, 2, v{TM+1}")
    A(f"v_lshlrev_b32 v{TM}, 6, v{TM}")
    A(f"v_bfe_u32 v{TM+1}, v{vL}, 4, 1")
    A(f"v_lshl_add_u32 v{TM}, v{TM+1}, 5, v{TM}")
    A(f"v_and_b32 v{TM+1}, 3, v{vL}")
    A(f"v_lshl_add_u32 v{TM}, v{TM+1}, 3, v{TM}")
    A(f"v_add_u32 v{TM}, {LDS_Y}, v{TM}")
    A("s_waitcnt lgkmcnt(0) ; WSB")
    A("s_barrier")
    A("s_cmp_gt_u32 s2, 224")
    A("s_cbranch_scc1 k2_auxb1")
    A("s_setprio 3")
    def ydma(n):
        A(f"s_mov_b32 m0, {LDS_Y + 1024*n}")
        A(f"s_add_u32 s{sT2}, s{sT}, {WS_Y + (n>>2)*2048 + (n&3)*16*YB}")
        A(f"buffer_load_dwordx4 v{vG}, {sr(sWS,4)}, s{sT2} offen lds")
    def cld(dst, off):
        A(f"s_mov_b32 s{sT2}, {off}")
        for f in range(4): A(f"buffer_load_dwordx4 {vr(dst+4*f,4)}, v{vO16}, {sr(sTS,4)}, s{sT2} offen offset:{1024*f}")
    def wld(f):
        return [f"s_add_u32 s{sT2}, s{sKO}, {WS_W + f*16*WP}",
                f"buffer_load_dwordx4 {vr(WT+4*f,4)}, v{vG+1}, {sr(sWS,4)}, s{sT2} offen"]
    sFI = 44
    A(f"s_mul_i32 s{sFI}, s{sNT}, {2*28672}")
    def fimg(gr):
        for st_ in range(4*gr, 4*gr+4):
            A(f"s_mov_b32 m0, {LF + 2048*st_}")
            A(f"s_add_u32 s{sT2}, s{sFI}, {1024*st_}")
            A(f"buffer_load_dwordx4 v{vO16}, {sr(sTB,4)}, s{sT2} offen lds")
            A(f"s_add_u32 s{sT2}, s{sT2}, {28672-1024}")
            A(f"buffer_load_dwordx4 v{vO16}, {sr(sTB,4)}, s{sT2} offen offset:1024 lds")
    for n in range(8): ydma(n)
    for kind in range(3): cld(C_(kind, 0, 0), TS_F64 + kind * 8192)
    for f in range(0, 4):
        for x in wld(f): A(x)
    for kind in range(3): cld(C_(kind, 1, 0), TS_F64 + kind * 8192 + 4096)
    ST.at(0)
    A("s_waitcnt vmcnt(28)")
    ST.at(1)
    for p in range(2):
        for u in range(4):
            A(f"ds_read_b64_tr_b16 {vr(YF+16*p+4*u,2)}, v{TM} offset:{4096*p+1024*u}")
            A(f"ds_read_b64_tr_b16 {vr(YF+16*p+4*u+2,2)}, v{TM} offset:{4096*p+1024*u+512}")
    for f in range(4, 8):
        for x in wld(f): A(x)
    A("s_waitcnt vmcnt(20) lgkmcnt(0)")
    Yr = lambda u: vr(YF+4*u,4)
    Yi = lambda u: vr(YF+16+4*u,4)
    mf = lambda d, a, b, first=False: f"v_mfma_f32_32x32x16_bf16 {vr(d,16)}, {a}, {b}, {'0' if first else vr(d,16)}"
    cf = lambda kind, mt, u: vr(C_(kind, mt, u), 4)
    def p3(mt):
        L = []
        for u in range(4):
            L += [mf(X+32*mt, cf(0, mt, u), Yr(u), u == 0), mf(X+32*mt+16, cf(0, mt, u), Yi(u), u == 0)]
        for u in range(4):
            L += [mf(X+32*mt, cf(1, mt, u), Yi(u)), mf(X+32*mt+16, cf(2, mt, u), Yr(u))]
        return L
    Ur = lambda u: (U0 + 4*u) if u < 2 else (YF + 4*u)
    Ui = lambda u: (U0 + 8 + 4*u) if u < 2 else (YF + 16 + 4*u)
    def cmul_pack(xr0, xi0, cr, ci, dr, di):
        L = []
        for i in range(4):
            L += [f"v_mul_f32 v{TM+8+i}, v{xr0+i}, v{cr(i)}", f"v_mul_f32 v{xr0+i}, v{xr0+i}, v{ci(i)}"]
        for i in range(4):
            L += [f"v_fma_f32 v{TM+8+i}, -v{xi0+i}, v{ci(i)}, v{TM+8+i}", f"v_fma_f32 v{xr0+i}, v{xi0+i}, v{cr(i)}, v{xr0+i}"]
        L += [f"v_cvt_pk_bf16_f32 v{dr}, v{TM+8}, v{TM+9}", f"v_cvt_pk_bf16_f32 v{dr+1}, v{TM+10}, v{TM+11}",
              f"v_cvt_pk_bf16_f32 v{di}, v{xr0}, v{xr0+1}", f"v_cvt_pk_bf16_f32 v{di+1}, v{xr0+2}, v{xr0+3}"]
        return L
    def wmul(mt):
        L = []
        for g in range(4):
            w = WT + 4 * (4 * mt + g)
            for i in range(4):
                op = "v_and_b32 v{}, 0xffff0000, v{}" if i & 1 else "v_lshlrev_b32 v{}, 16, v{}"
                L += [op.format(TM + i, w + (i >> 1)), op.format(TM + 4 + i, w + 2 + (i >> 1))]
            u = 2 * mt + (g >> 1)
            L += cmul_pack(X+32*mt+4*g, X+32*mt+16+4*g, lambda i: TM + i, lambda i: TM + 4 + i, Ur(u) + 2*(g&1), Ui(u) + 2*(g&1))
        return L
    def p4(nt, us):
        L = []
        for u in us:
            L += [mf(X+32*nt, vr(Ur(u),4), cf(0, nt, u), u == 0), mf(X+32*nt+16, vr(Ui(u),4), cf(0, nt, u), u == 0)]
        for u in us:
            L += [mf(X+32*nt, vr(Ui(u),4), cf(2, nt, u)), mf(X+32*nt+16, vr(Ur(u),4), cf(1, nt, u))]
        return L
    Tr = lambda nt: YF if nt == 0 else U0
    Ti = lambda nt: YF + 16 if nt == 0 else U0 + 8
    TW = lambda nt: 48 * nt
    F32 = WT
    def twid(nt):
        L = []
        for g in range(4):
            L += cmul_pack(X+32*nt+4*g, X+32*nt+16+4*g, lambda i: TW(nt) + 4*g + i, lambda i: TW(nt) + 16 + 4*g + i, Tr(nt) + 2*g, Ti(nt) + 2*g)
        return L
    def p5(nt):
        L = []
        for t in range(2):
            L += [mf(X+32*nt, vr(F32+4*t,4), vr(Tr(nt)+4*t,4), t == 0), mf(X+32*nt+16, vr(F32+4*t,4), vr(Ti(nt)+4*t,4), t == 0)]
        for t in range(2):
            L += [mf(X+32*nt, vr(F32+16+4*t,4), vr(Ti(nt)+4*t,4)), mf(X+32*nt+16, vr(F32+8+4*t,4), vr(Tr(nt)+4*t,4))]
        return L
    sZR, sZI = 29, 30
    def outp(nt):
        L = []
        for p in range(2):
            z = X + 32*nt + 16*p; P = TW(nt) + 8*p
            for r in range(8): L.append(f"v_cvt_pk_bf16_f32 v{P+r}, v{z+2*r}, v{z+2*r+1}")
            L.append("s_nop 1")
            for t in range(2):
                L += [f"v_permlane32_swap_b32 v{P+4*t}, v{P+4*t+2}", f"v_permlane32_swap_b32 v{P+4*t+1}, v{P+4*t+3}"]
            for t in range(2):
                L.append(f"ds_write_b128 v{vG}, {vr(P+4*t,4)} offset:{4096*p+2048*nt+32*t}")
        return L
    def outst():
        A("s_waitcnt lgkmcnt(0)")
        for k in range(8): A(f"ds_read_b128 {vr(X+4*k,4)}, v{vG+1} offset:{1024*k}")
        for k in range(8):
            A(f"s_waitcnt lgkmcnt({7-k})")
            A(f"buffer_store_dwordx4 {vr(X+4*k,4)}, v{vO16}, {sr(sWS,4)}, s{sZR+(k>>2)} offen offset:{1024*(k&3)} sc1")
    for x in p3(0): A(x)
    ST.at(2)
    A("s_waitcnt vmcnt(4)")
    A("s_nop 7")
    for x in merge(p3(1), wmul(0)): A(x)
    A("s_waitcnt vmcnt(0)")
    A("s_nop 7")
    for x in merge(p4(0, (0, 1)), wmul(1)): A(x)
    for x in p4(0, (2, 3)): A(x)
    ST.at(3)
    cld(TW(0), TS_TW); cld(TW(0) + 16, TS_TW + 4096)
    A(f"s_mov_b32 s{sT2}, {TS_F32}")
    for f in range(4): A(f"buffer_load_dwordx4 {vr(F32+4*f,4)}, v{vO16}, {sr(sTS,4)}, s{sT2} offen offset:{1024*f}")
    A(f"s_mov_b32 s{sT2}, {TS_F32+4096}")
    for f in range(2): A(f"buffer_load_dwordx4 {vr(F32+16+4*f,4)}, v{vO16}, {sr(sTS,4)}, s{sT2} offen offset:{1024*f}")
    A(f"s_lshr_b32 s{sT}, s{sCOL}, 1")
    A(f"s_and_b32 s{sT2}, s{sCOL}, 1")
    A(f"s_mul_i32 s{sT2}, s{sT2}, 224")
    A(f"s_add_u32 s{sT}, s{sT}, s{sT2}")
    A(f"s_mul_i32 s{sT}, s{sT}, {ZP}")
    A(f"s_add_u32 s{sZR}, s{sT}, {WS_Z}")
    A(f"s_add_u32 s{sZI}, s{sZR}, {112*ZP}")
    A(f"s_cmp_eq_u32 s{sCOL}, 0")
    A(f"s_cselect_b32 s{sZI}, {WS_G + 0x4000}, s{sZI}")
    A(f"s_cmp_eq_u32 s{sCOL}, 224")
    A(f"s_cselect_b32 s{sZI}, {WS_G + 0x6000}, s{sZI}")
    A(f"v_and_b32 v{vG}, 31, v{vL}")
    A(f"v_lshlrev_b32 v{vG}, 6, v{vG}")
    A(f"v_lshrrev_b32 v{vG+1}, 5, v{vL}")
    A(f"v_lshl_add_u32 v{vG}, v{vG+1}, 4, v{vG}")
    A(f"v_add_u32 v{vG}, {LDS_Y}, v{vG}")
    A(f"v_add_u32 v{vG+1}, {LDS_Y}, v{vO16}")
    A("s_waitcnt vmcnt(6)")
    for x in merge(p4(1, (0, 1, 2, 3)), twid(0)): A(x)
    cld(TW(1), TS_TW + 8192); cld(TW(1) + 16, TS_TW + 12288)
    ST.at(4)
    A("s_waitcnt vmcnt(0)")
    for x in merge(p5(0), twid(1)): A(x)
    A("s_nop 1")
    for x in merge(p5(1), outp(0)): A(x)
    A("s_nop 7")
    for x in outp(1): A(x)
    outst()
    ST.at(5)
    A("s_setprio 0")
    fimg(0); fimg(1)
    A(f"s_lshl_b32 s{sT}, s{sCOL}, 7")
    A(f"s_add_u32 s{sT}, s{sT}, {WS_FZ}")
    A(f"v_mov_b32 v{TM+4}, 0")
    A(f"v_mov_b32 v{TM+5}, 1")
    A("s_mov_b64 exec, 1")
    A("s_waitcnt vmcnt(16)")
    ST.at(6)
    A(f"buffer_store_dword v{TM+5}, v{TM+4}, {sr(sWS,4)}, s{sT} offen sc1")
    A("s_mov_b64 exec, -1")
    A("s_cmp_ge_u32 s2, 224")
    A("s_cbranch_scc1 k2_auxw")
    A(f"v_lshrrev_b32 v{TM}, 3, v{vL}")
    A(f"v_and_b32 v{TM+1}, 7, v{vL}")
    A(f"v_bfe_u32 v{TM+2}, v{vL}, 4, 1")
    A(f"v_lshlrev_b32 v{TM+2}, 2, v{TM+2}")
    A(f"v_xor_b32 v{TM+1}, v{TM+1}, v{TM+2}")
    A(f"v_lshlrev_b32 v{TM+1}, 4, v{TM+1}")
    A(f"v_mul_u32_u24 v{TM+2}, {ZP}, v{TM}")
    A(f"v_add_u32 v{TM+2}, v{TM+2}, v{TM+1}")
    def image(name, lds, vaddr, srd, pitch, flag, depth):
        A(f"s_mov_b32 s{sI}, {lds}")
        A(f"{name}:")
        A(f"s_mov_b32 m0, s{sI}")
        for i in range(4):
            if i: A(f"s_add_u32 s{sT}, s{sT}, {8*pitch-1024}")
            else: A("s_nop 0")
            A(f"buffer_load_dwordx4 v{vaddr}, {srd}, s{sT} offen offset:{1024*i} {flag} lds")
        A(f"s_add_u32 s{sT}, s{sT}, {8*pitch+3072}")
        A(f"s_add_u32 s{sI}, s{sI}, 4096")
        A(f"s_waitcnt vmcnt({depth})")
        A(f"s_cmp_lt_u32 s{sI}, {lds+57344}")
        A(f"s_cbranch_scc1 {name}")
    def poll(name, lines, sl):
        A(f"s_mov_b32 s{sI}, {SPIN}")
        A(f"{name}:")
        for x in lines: A(x)
        A("s_cmp_eq_u64 vcc, -1")
        A(f"s_cbranch_scc1 {name}_done")
        A(f"s_sub_u32 s{sI}, s{sI}, 1")
        A(f"s_sleep {sl}")
        A(f"s_cmp_lg_u32 s{sI}, 0")
        A(f"s_cbranch_scc1 {name}")
        A(f"{name}_done:")
    for gr in range(2, 7):
        fimg(gr)
        A(f"s_waitcnt vmcnt({os.environ.get('DF', 16)})")
    A(f"s_and_b32 s{sT}, s{sJ}, 3")
    A(f"s_mul_i32 s{sT}, s{sT}, {112*896}")
    A(f"s_lshl_b32 s{sT2}, s{sNT}, 7")
    A(f"s_add_u32 s{sT}, s{sT}, s{sT2}")
    A(f"v_mul_u32_u24 v8, 896, v{vL}")
    A(f"buffer_load_dword v9, v8, {sr(sX,4)}, s{sT} offen")
    A(f"s_add_u32 s{sT}, s{sT}, {48*896}")
    A(f"buffer_load_dword v10, v8, {sr(sX,4)}, s{sT} offen")
    ST.at(7)
    A(f"v_lshlrev_b32 v4, 7, v{vL}")
    A(f"v_add_u32 v5, 0x6000, v4")
    A(f"v_min_u32 v5, {224*128}, v5")
    A(f"s_mov_b32 s{sI}, {SPIN}")
    A(f"s_mov_b32 s{sT}, {WS_FZ}")
    A(f"s_mov_b32 s{sT2}, {WS_FZ + 0x2000}")
    A(f"s_mov_b32 s{sKO}, {WS_FZ + 0x4000}")
    A("k2_pz:")
    A(f"buffer_load_dword v0, v4, {sr(sWS,4)}, s{sT} offen sc1")
    A(f"buffer_load_dword v1, v4, {sr(sWS,4)}, s{sT2} offen sc1")
    A(f"buffer_load_dword v2, v4, {sr(sWS,4)}, s{sKO} offen sc1")
    A(f"buffer_load_dword v3, v5, {sr(sWS,4)}, s{sT} offen sc1")
    A("s_waitcnt vmcnt(0)")
    A("v_and_b32 v0, v0, v1")
    A("v_and_b32 v2, v2, v3")
    A("v_and_b32 v0, v0, v2")
    A("v_cmp_eq_u32 vcc, 0, v0")
    A("s_nop 1")
    A("s_and_b64 exec, exec, vcc")
    A("s_cbranch_scc0 k2_pz_done")
    A(f"s_sub_u32 s{sI}, s{sI}, 1")
    A(f"s_sleep {os.environ.get('ZSL', 6)}")
    A(f"s_cmp_gt_i32 s{sI}, 0")
    A("s_cbranch_scc1 k2_pz")
    A("k2_pz_done:")
    A("s_mov_b64 exec, -1")
    ST.at(8)
    A(f"s_lshl_b32 s{sT}, s{sMT}, 7")
    A(f"s_add_u32 s{sT}, s{sT}, {WS_Z}")
    image("k2_imz", LZ, TM+2, sr(sWS,4), ZP, os.environ.get("ZF", "sc1"), int(os.environ.get("DZ", 24)))
    A("k2_auxw:")
    A("s_waitcnt vmcnt(0)")
    ST.at(9)
    A("k2_auxb1:")
    A(f"v_lshrrev_b32 v{vWD}, 3, v{vL}")
    A(f"v_and_b32 v{vT+6}, 7, v{vL}")
    A(f"v_bfe_u32 v{vT+7}, v{vL}, 4, 1")
    A(f"v_lshlrev_b32 v{vT+7}, 2, v{vT+7}")
    A(f"v_xor_b32 v{vT+6}, v{vT+6}, v{vT+7}")
    A(f"v_mul_u32_u24 v{vWD}, 896, v{vWD}")
    A(f"v_lshl_add_u32 v{vWD}, v{vT+6}, 4, v{vWD}")
    A("s_barrier")
    A("s_barrier")
    A("s_cmp_ge_u32 s2, 224")
    A("s_cbranch_scc1 k2_chk")
    A(f"s_lshl_b32 s{sT}, s{sNT}, 7")
    A(f"s_add_u32 s{sT}, s{sT}, {64*896}")
    for i in range(48):
        if i % 4 == 0: A(f"s_mov_b32 m0, {RED + 1024*i}")
        if i: A(f"s_add_u32 s{sT}, s{sT}, {8*896-1024 if i % 4 else 8*896+3072}")
        if i == 47: A("s_mov_b32 exec_hi, 0x00ffffff")
        A(f"buffer_load_dwordx4 v{vWD}, {sr(sX,4)}, s{sT} offen offset:{1024*(i%4)} lds")
    A("s_mov_b32 exec_hi, -1")
    A(f"s_mov_b32 s{sWS_}, s{sT}")
    A("s_branch k2_chk")
    A("k2_auxfb:")
    A("s_waitcnt vmcnt(0)")
    A("s_barrier")
    A("s_barrier")
    A("s_branch k2_auxb1")
    A("k2_auxp3:")
    A(f"v_and_b32 v4, 31, v{vL}")
    A("v_lshlrev_b32 v4, 7, v4")
    A(f"s_lshl_b32 s{sT}, s{sMT}, 12")
    A(f"s_add_u32 s{sT}, s{sT}, {WS_FO}")
    ST.at(10)
    A(f"s_mov_b32 s{sKO}, s{sT}")
    A(f"buffer_load_dword v0, v4, {sr(sWS,4)}, s{sKO} offen sc1")
    A(f"s_mov_b32 m0, {RED + 1024*44}")
    A("s_mov_b32 exec_lo, 0")
    A("s_mov_b32 exec_hi, 0xff000000")
    A(f"buffer_load_dwordx4 v{vWD}, {sr(sX,4)}, s{sWS_} offen offset:3072 lds")
    A("s_mov_b64 exec, -1")
    A(f"s_lshl_b32 s{sT}, s{sNT}, 7")
    for i in range(8):
        if i % 4 == 0: A(f"s_mov_b32 m0, {LW + 1024*i}")
        if i: A(f"s_add_u32 s{sT}, s{sT}, {8*896-1024 if i % 4 else 8*896+3072}")
        A(f"buffer_load_dwordx4 v{vWD}, {sr(sX,4)}, s{sT} offen offset:{1024*(i%4)} lds")
    A(f"s_mov_b32 s{sT}, s{sKO}")
    A("s_waitcnt vmcnt(0)")
    A("v_cmp_ne_u32 vcc, 0, v0")
    A("s_nop 1")
    A("s_cmp_eq_u64 vcc, -1")
    A("s_cbranch_scc1 k2_po_done")
    poll("k2_po", [f"buffer_load_dword v0, v4, {sr(sWS,4)}, s{sT} offen sc1", "s_waitcnt vmcnt(0)", "v_cmp_ne_u32 vcc, 0, v0", "s_nop 1"], int(os.environ.get("OSL", 2)))
    ST.at(11)
    A("s_barrier")
    if DIAG: A("k2_dump:")
    ST.dump(sWS, sW, 5, 250)
    A("k2_end:")
    A("s_endpgm")
    body = A.L[loop_start:loop_end]
    rep = check_seq(body + body)
    assert not rep, rep
    return A.L, NV, 102 if DIAG else 64
```

```python
import sys, numpy as np
from asmlib import *
from k1 import gen_k1
from k2 import gen_k2, K2_LDS, TS_BYTES, TAB_INV_BYTES
NAME = "gated_mix__spectral_gfnet__softmax_full_mha__prompt"
def bf16(x):
    u = np.asarray(x, dtype=np.float32).view(np.uint32).astype(np.uint64)
    return ((u + 0x7fff + ((u >> 16) & 1)) >> 16).astype(np.uint16)
def perm(u, h, j): return 16 * u + 8 * (j >> 2) + 4 * h + (j & 3)
def cs(num, den):
    num = num % den
    a = 2 * np.pi * num / den
    c, s = np.cos(a), np.sin(a)
    c = np.where(np.abs(c) < 1e-12, 0.0, c); s = np.where(np.abs(s) < 1e-12, 0.0, s)
    return c, s
def small_tables():
    l = np.arange(64); m = l & 31; h = l >> 5
    out = []
    F = np.zeros((3, 2, 4, 64, 8))
    for mt in range(2):
        for u in range(4):
            for j in range(8):
                c, s = cs((32 * mt + m) * perm(u, h, j), 64)
                F[0, mt, u, :, j] = c; F[1, mt, u, :, j] = s; F[2, mt, u, :, j] = -s
    out.append(bf16(F).tobytes())
    G = np.zeros((3, 2, 64, 8))
    for t in range(2):
        for j in range(8):
            c, s = cs(m * perm(t, h, j), 32)
            G[0, t, :, j] = c; G[1, t, :, j] = s; G[2, t, :, j] = -s
    out.append(bf16(G).tobytes())
    T = np.zeros((2, 2, 4, 64, 4), np.float32)
    for nt in range(2):
        for g in range(4):
            for i in range(4):
                c, s = cs((32 * nt + m) * (8 * g + 4 * h + i), 2048)
                T[nt, 0, g, :, i] = c; T[nt, 1, g, :, i] = s
    out.append(T.tobytes())
    b = b"".join(out)
    assert len(b) == TS_BYTES
    q = np.frombuffer(b, dtype=np.uint64)
    return [".quad " + ",".join(hex(int(v)) for v in q[i:i+8]) for i in range(0, len(q), 8)]
def big_tables():
    L = []
    c448, _ = cs(np.arange(448), 448)
    for i, v in enumerate(bf16(c448)): L.append(f".set C{i},{int(v)}")
    SD = 2048 * 448
    for i, v in enumerate(bf16(2 * c448 / SD)): L.append(f".set D{i},{int(v)}")
    L.append(f".set D448,{int(bf16([1/SD])[0])}"); L.append(f".set D449,{int(bf16([-1/SD])[0])}")
    for kr in range(448):
        if kr <= 112: k2, ph = 2 * kr, 0
        elif kr < 224: k2, ph = 2 * (kr - 112), 112
        elif kr < 336: k2, ph = 2 * (kr - 224) + 1, 0
        else: k2, ph = 2 * (kr - 336) + 1, 112
        md, ad = 448, 0
        if kr == 0: ad = 448
        if kr == 112: k2, md, ad = 1, 2, 448
        L.append(f".set KA{kr},{k2}\n.set KB{kr},{ph}\n.set KC{kr},{md}\n.set KD{kr},{ad}")
    L.append(r""".altmacro
.macro FW4 a,b,c,d
.short C\a,C\b,C\c,C\d
.endm
.macro LK i
.short D\i
.endm
.macro IV1 d,r
LK %((KA\r*\d+KB\r)%KC\r+KD\r)
.endm
.p2align 8
tab_fwd:
.set td,0
.rept 448
.set tg,0
.rept 14
.set tk,(tg>>1)*32
.set tp,(tg&1)*112
.rept 8
FW4 %((tk*td+tp)%448),%(((tk+1)*td+tp)%448),%(((tk+2)*td+tp)%448),%(((tk+3)*td+tp)%448)
.set tk,tk+4
.endr
.set tg,tg+1
.endr
FW4 %((224*td)%448),112,112,112
.fill 60,2,0
.set td,td+1
.endr
.p2align 8
tab_inv:
.set tn,0
.rept 14
.set tc,0
.rept 28
.set tr,tc*16
.set tl,0
.rept 64
.set tj,0
.rept 8
IV1 %(tn*32+(tl&31)),%(tr+(tl>>5)*8+tj)
.set tj,tj+1
.endr
.set tl,tl+1
.endr
.set tc,tc+1
.endr
.set tn,tn+1
.endr
.noaltmacro""")
    return L
def desc(name, nv, ns):
    return f""".p2align 6
.amdhsa_kernel {name}
  .amdhsa_next_free_vgpr {nv}
  .amdhsa_next_free_sgpr {ns}
  .amdhsa_accum_offset {(nv+3)//4*4}
  .amdhsa_group_segment_fixed_size 0
  .amdhsa_kernarg_size 80
  .amdhsa_user_sgpr_count 2
  .amdhsa_user_sgpr_kernarg_segment_ptr 1
  .amdhsa_system_sgpr_workgroup_id_x 1
.end_amdhsa_kernel"""
import os
def main(path, which=tuple(int(c) for c in os.environ.get('WHICH', '123'))):
    ks = [("k1_kernel", gen_k1, 256, 512, 163840), ("k2_kernel", gen_k2, 256, 320, K2_LDS)]
    o = ["; gated mix of a GFNet spectral filter and 16-head softmax attention (2 launches; generated by gen/gen.py)"]
    for i, (n, g, grid, blk, lds) in enumerate(ks):
        if i + 1 in which: o.append(f"; @launch kernel={n} grid=({grid},1,1) block=({blk},1,1) lds={lds}")
    o.append('.amdgcn_target "amdgcn-amd-amdhsa--gfx950"')
    o.append(f".set TAB_INV_BYTES,{TAB_INV_BYTES}")
    o.append(".text")
    ds = []
    for n, g, grid, blk, lds in ks:
        L, nv, ns = g()
        rep = []
        x = os.environ.get("X1", "")
        if n == "k1_kernel":
            if x == "nost": L = [l for l in L if "buffer_store_dwordx4" not in l]
            if x == "nt": L = [l + " nt" if "buffer_store_dwordx4" in l else l for l in L]
            if x == "sc1": L = [l + " sc1" if "buffer_store_dwordx4" in l else l for l in L]
            if x == "sc01": L = [l + " sc0 sc1" if "buffer_store_dwordx4" in l else l for l in L]
            if x == "noW": L = [l for l in L if not ("buffer_store_dwordx4" in l and "s52" in l)]
            if x == "onlyW": L = [l for l in L if not ("buffer_store_dwordx4" in l and "s52" not in l)]
            if x == "noY": L = [l for l in L if not ("buffer_store_dwordx4" in l and any(f"v[{r}:" in l for r in range(76, 108)))]
            if x == "noWld": L = [l for l in L if "buffer_load_ushort" not in l]
            if x == "nopf": L = [l for l in L if "s[56:57]" not in l or "global_load" not in l]
        wsb = int(os.environ.get("WSB", "0"), 0)
        if wsb:
            r = 16 if n == "k1_kernel" else 8
            out = []; seen = 0
            for l in L:
                out.append(l)
                if l.strip() == "s_waitcnt lgkmcnt(0)" and seen < 99 and l is not None and getattr(main, "mark", None) is None:
                    pass
            L2 = []
            for i, l in enumerate(L):
                L2.append(l)
                if l.strip().endswith("; WSB"):
                    L2 += [f"    s_add_u32 s{r}, s{r}, {wsb}", f"    s_addc_u32 s{r+1}, s{r+1}, 0"]
            L = L2
        L = fix_hazards(L, rep)
        print(n, "lines", len(L), "nops inserted", len(rep), file=sys.stderr)
        if "-v" in sys.argv:
            for r in rep: print("   ", r, file=sys.stderr)
        o += [f".globl {n}", ".p2align 8", f".type {n},@function", f"{n}:"] + L
        ds.append(desc(n, nv, ns))
    o.append(".fill 2048,4,0xbf810000")
    o.append('.section .rodata,"a"')
    o += ds
    o.append(".p2align 8"); o.append("tab_small:"); o += small_tables()
    o.append(".fill 2048,1,0")
    o += big_tables()
    open(path, "w").write("\n".join(o) + "\n")
if __name__ == "__main__":
    main(sys.argv[1] if len(sys.argv) > 1 and not sys.argv[1].startswith("-") else f"cdna_kernels/{NAME}.s")
```

```python
from asmlib import *
import math, os
WS_Q, WS_K, WS_V, WS_Y, WS_W, WS_O, WS_Z, WS_G = 0x0, 0x200000, 0x400000, 0x600000, 0x840000, 0xA80000, 0xC80000, 0xE50000
WS_FO, WS_FZ = 0xE60000, 0xE90000
YB, WP, ZP = 32896, 16512, 4224
WS_BYTES = 0x1000000
import struct
def f2u(x): return struct.unpack("<I", struct.pack("<f", x))[0]
QSCALE = f2u(28 ** -0.5 * math.log2(math.e))

STF = os.environ.get('STF', 'sc1')
def gen_k1():
    A = Asm()
    sX, sB, sWS, sWR, sWI = 8, 12, 16, 20, 24
    sPC = 28
    sW, sMT, sNT, sC, sCA, sCB, sPITCH, sP4, sT, sT2, sBB = 30, 31, 32, 33, 34, 35, 36, 37, 38, 39, 40
    sGS, sLA, sLB, sP64, sP384, sJ = 41, 42, 43, 44, 45, 46
    sW0 = 48
    sWST = 52
    sW8 = 47
    sGW = 60
    sC0 = 53
    vGW, vGA = 76, 84
    ACC = 0
    vL, vA0, vA1, vB = 64, 65, 66, 67
    vRA, vRB = 68, 72
    FA, FB = 76, 84
    MC, MS, MN = 116, 124, 132
    WL = 140
    vT = 156
    vWO = 172
    vST = 173
    PK = 176
    NV = 209

    A("s_cmp_ge_u32 s2, 256")
    A("s_cbranch_scc1 k1_end")
    ST = Stamps(A, 0); ST.begin()
    A(f"s_load_dwordx2 {sr(sX,2)}, s[0:1], 0")
    A(f"s_load_dwordx2 {sr(sB,2)}, s[0:1], 32")
    A(f"s_load_dwordx2 {sr(sWS,2)}, s[0:1], 72")
    A(f"s_load_dwordx2 {sr(sWR,2)}, s[0:1], 8")
    A(f"s_load_dwordx2 {sr(sWI,2)}, s[0:1], 16")
    A(f"s_load_dwordx2 {sr(sGW,2)}, s[0:1], 48")
    A(f"s_getpc_b64 {sr(sPC,2)}")
    A("k1_pc:")
    A(f"v_and_b32 v{vL}, 63, v0")
    A(f"v_lshrrev_b32 v{vT}, 6, v0")
    A(f"v_mul_u32_u24 v{vT+1}, 14, v{vT}")
    A(f"v_add_lshl_u32 v{vT+1}, v{vT+1}, v{vL}, 7")
    A("s_mov_b64 exec, 0x3fff")
    A(f"global_load_dword v208, v{vT+1}, {sr(sPC,2)}")
    A("s_mov_b64 exec, -1")
    A(f"v_readfirstlane_b32 s{sW8}, v{vT}")
    A(f"s_lshr_b32 s{sJ}, s2, 3")
    A(f"s_and_b32 s{sT}, s{sJ}, 3")
    A(f"s_lshr_b32 s{sT2}, s{sJ}, 2")
    A(f"s_bfe_u32 s{sMT}, s2, 0x20001")
    A(f"s_lshl_b32 s{sMT}, s{sMT}, 2")
    A(f"s_add_u32 s{sMT}, s{sMT}, s{sT}")
    A(f"s_and_b32 s{sNT}, s2, 1")
    A(f"s_lshl_b32 s{sNT}, s{sNT}, 3")
    A(f"s_add_u32 s{sNT}, s{sNT}, s{sT2}")
    A(f"s_lshl_b32 s{sT}, s{sT}, 1")
    A(f"s_add_u32 s{sC}, s{sT}, s{sT2}")
    A(f"s_cmp_ge_u32 s{sC}, 7")
    A(f"s_cselect_b32 s{sT}, 7, 0")
    A(f"s_sub_u32 s{sC}, s{sC}, s{sT}")
    A(f"s_and_b32 s{sW}, s{sW8}, 3")
    A(f"s_lshl_b32 s{sBB}, s{sMT}, 2")
    A(f"s_add_u32 s{sBB}, s{sBB}, s{sW}")
    A(f"s_movk_i32 s{sPITCH}, 1024")
    A(f"s_cmp_ge_u32 s{sNT}, 12")
    A(f"s_cselect_b32 s{sPITCH}, s{sPITCH}, 2688")
    A(f"s_cselect_b32 s{sGS}, 64, 56")
    A(f"s_lshl_b32 s{sLA}, s{sW}, 12")
    A(f"s_cmp_lt_u32 s{sW8}, 4")
    A("s_cbranch_scc1 k1_comp")
    A(f"s_mul_i32 s{sT}, s{sNT}, 224")
    A(f"s_lshl_b32 s{sT2}, s{sNT}, 8")
    A(f"s_sub_u32 s{sT2}, s{sT2}, 3072")
    A(f"s_cmp_ge_u32 s{sNT}, 12")
    A(f"s_cselect_b32 s{sCB}, s{sT2}, s{sT}")
    A(f"s_lshl_b32 s{sP4}, s{sPITCH}, 2")
    A(f"s_sub_u32 s{sP4}, s{sP4}, 1024")
    A(f"s_lshl_b32 s{sP64}, s{sPITCH}, 6")
    A(f"s_mul_i32 s{sP384}, s{sP64}, 7")
    A(f"s_lshl_b32 s{sT}, s{sC}, 2")
    A(f"s_add_u32 s{sT}, s{sT}, s{sW}")
    A(f"s_lshl_b32 s{sT}, s{sT}, 4")
    A(f"s_mul_i32 s{sT}, s{sT}, s{sPITCH}")
    A(f"s_add_u32 s{sCB}, s{sCB}, s{sT}")
    A(f"s_mul_i32 s{sCA}, s{sBB}, 896")
    A(f"s_lshl_b32 s{sT}, s{sC}, 7")
    A(f"s_add_u32 s{sCA}, s{sCA}, s{sT}")
    A(f"s_add_u32 s{sLB}, s{sLA}, 16384")
    A(f"v_lshrrev_b32 v{vT}, 3, v{vL}")
    A(f"v_mul_u32_u24 v{vA0}, 57344, v{vT}")
    A(f"v_lshrrev_b32 v{vT+1}, 4, v{vL}")
    A(f"v_and_b32 v{vT+3}, 7, v{vL}")
    A(f"v_xor_b32 v{vT+3}, v{vT+3}, v{vT+1}")
    A(f"v_lshl_add_u32 v{vA0}, v{vT+3}, 4, v{vA0}")
    A(f"v_xor_b32 v{vA1}, 64, v{vA0}")
    A(f"v_mul_u32_u24 v{vB}, s{sPITCH}, v{vT+1}")
    A(f"v_bfe_u32 v{vT+3}, v{vL}, 2, 2")
    A(f"v_xor_b32 v{vT+3}, v{vT+3}, v{vT+1}")
    A(f"v_lshl_add_u32 v{vB}, v{vT+3}, 6, v{vB}")
    A(f"v_and_b32 v{vT+3}, 3, v{vL}")
    A(f"v_lshl_add_u32 v{vB}, v{vT+3}, 4, v{vB}")
    A(f"s_getpc_b64 {sr(56,2)}")
    A("s_add_u32 s56, s56, tab_fwd@rel32@lo+4")
    A("s_addc_u32 s57, s57, tab_fwd@rel32@hi+12")
    A(f"s_mov_b32 s{sX+2}, 1835008")
    A(f"s_mov_b32 s{sX+3}, 0x20000")
    A(f"s_mov_b32 s{sB+2}, 458752")
    A(f"s_mov_b32 s{sB+3}, 0x20000")
    A("s_waitcnt lgkmcnt(0)")
    A(f"s_cmp_ge_u32 s{sNT}, 12")
    A(f"s_cselect_b32 s{sB}, s56, s{sB}")
    A(f"s_cselect_b32 s{sB+1}, s57, s{sB+1}")
    A(f"s_cselect_b32 s{sB+2}, s{sB+2}, 1204224")

    def issue_chunk(slot):
        A(f"s_add_u32 m0, s{sLA}, {32768*slot}")
        for i in range(4):
            if i == 0: so = sCA
            else:
                A(f"s_add_u32 s{sT}, s{sCA}, {i*457728}"); so = sT
            if os.environ.get("X1") != "noA": A(f"buffer_load_dwordx4 v{vA0 if i%2==0 else vA1}, {sr(sX,4)}, s{so} offen offset:{1024*i} lds")
        A(f"s_add_u32 m0, s{sLB}, {32768*slot}")
        A("s_mov_b64 exec, s[54:55]")
        for i in range(4):
            if i == 0: so = sCB
            elif i == 1: A(f"s_add_u32 s{sT}, s{sCB}, s{sP4}"); so = sT
            else: A(f"s_add_u32 s{sT}, s{sT}, s{sP4}"); so = sT
            if os.environ.get("X1") != "noB": A(f"buffer_load_dwordx4 v{vB}, {sr(sB,4)}, s{so} offen offset:{1024*i} lds")
        A("s_mov_b64 exec, -1")
        A(f"s_add_u32 s{sCA}, s{sCA}, 128")
        A(f"s_add_u32 s{sCB}, s{sCB}, s{sP64}")
        A(f"s_add_u32 s{sC}, s{sC}, 1")
        A(f"s_cmp_eq_u32 s{sC}, 7")
        A(f"s_cselect_b32 s{sT}, 896, 0")
        A(f"s_cselect_b32 s{sT2}, s{sP384}, 0")
        A(f"s_cselect_b32 s{sC}, 0, s{sC}")
        A(f"s_sub_u32 s{sCA}, s{sCA}, s{sT}")
        A(f"s_sub_u32 s{sCB}, s{sCB}, s{sT2}")
    A(f"v_bfe_u32 v{vT+3}, v{vL}, 2, 2")
    A(f"v_xor_b32 v{vT+3}, v{vT+3}, v{vT+1}")
    A(f"v_lshlrev_b32 v{vT+3}, 2, v{vT+3}")
    A(f"v_and_or_b32 v{vT+3}, v{vL}, 3, v{vT+3}")
    A(f"s_cmp_ge_u32 s{sNT}, 12")
    A(f"s_cselect_b32 s{sT}, 16, 14")
    A(f"s_cmp_eq_u32 s{sNT}, 15")
    A(f"s_cselect_b32 s{sT}, 12, s{sT}")
    A(f"v_cmp_gt_u32 s[54:55], s{sT}, v{vT+3}")
    ST.at(0)
    A(f"s_mov_b32 s{sC0}, s{sC}")
    issue_chunk(0)
    A(f"s_mov_b32 s{sGW+2}, 896")
    A(f"s_mov_b32 s{sGW+3}, 0x20000")
    A(f"s_cmp_lg_u32 s{sNT}, 15")
    A("s_cbranch_scc1 k1_nog")
    A(f"v_and_b32 v{vT+4}, 15, v{vL}")
    A(f"v_lshlrev_b32 v{vT+5}, 1, v{vT+4}")
    A(f"s_lshl_b32 s{sT}, s{sW}, 5")
    A(f"s_lshl_b32 s{sT2}, s{sC0}, 7")
    A(f"s_add_u32 s{sT}, s{sT}, s{sT2}")
    for i in range(7):
        A(f"buffer_load_ushort v{vGW+i}, v{vT+5}, {sr(sGW,4)}, s{sT} offen")
        if i < 6:
            A(f"s_add_u32 s{sT}, s{sT}, 128")
            A(f"s_cmp_ge_u32 s{sT}, 896")
            A(f"s_cselect_b32 s{sT2}, 896, 0")
            A(f"s_sub_u32 s{sT}, s{sT}, s{sT2}")
    A(f"v_and_b32 v{vT+5}, 3, v{vL}")
    A(f"v_xor_b32 v{vT+5}, 3, v{vT+5}")
    A(f"v_lshlrev_b32 v{vT+5}, 6, v{vT+5}")
    A(f"v_lshl_add_u32 v{vGA}, v{vT+4}, 8, v{vT+5}")
    A(f"v_add_u32 v{vGA}, s{sLB}, v{vGA}")
    A(f"v_add_u32 v{vGA+1}, 0x10000, v{vGA}")
    A("k1_nog:")
    issue_chunk(1)
    ST.at(1)
    for r in (sWS, sWR, sWI):
        A(f"s_mov_b32 s{r+2}, {WS_BYTES if r == sWS else 921600}")
        A(f"s_mov_b32 s{r+3}, 0x20000")
    A(f"s_lshl_b32 s{sT}, s2, 2")
    A(f"s_add_u32 s{sT}, s{sT}, s{sW}")
    A(f"s_lshl_b32 s{sT}, s{sT}, 7")
    A(f"s_add_u32 s{sT}, s{sT}, {WS_FO}")
    A(f"v_mov_b32 v{vT}, 0")
    A("s_mov_b64 exec, 1")
    A(f"buffer_store_dword v{vT}, v{vT}, {sr(sWS,4)}, s{sT} offen sc1")
    A(f"s_cmp_lg_u32 s{sW}, 0")
    A("s_cbranch_scc1 k1_nz")
    A(f"s_lshl_b32 s{sT}, s2, 7")
    A(f"s_add_u32 s{sT}, s{sT}, {WS_FZ}")
    A(f"buffer_store_dword v{vT}, v{vT}, {sr(sWS,4)}, s{sT} offen sc1")
    A("k1_nz:")
    A("s_mov_b64 exec, -1")
    A(f"s_lshr_b32 s{sT}, s2, 4")
    A(f"s_bfe_u32 s{sT2}, s2, 0x20002")
    A(f"s_lshl_b32 s{sT2}, s{sT2}, 1")
    A(f"s_and_b32 s{sW0}, s{sW}, 1")
    A(f"s_add_u32 s{sT2}, s{sT2}, s{sW0}")
    A(f"s_lshl_b32 s{sWST}, s{sT}, 3")
    A(f"s_add_u32 s{sWST}, s{sWST}, s{sT2}")
    A(f"s_mul_i32 s{sWST}, s{sWST}, {WP}")
    A(f"s_lshl_b32 s{sW0}, s{sT}, 5")
    A(f"s_add_u32 s{sW0}, s{sW0}, s{sT2}")
    A(f"s_mul_i32 s{sW0}, s{sW0}, 1800")
    A(f"s_and_b32 s{sT}, s2, 3")
    A(f"s_lshl_b32 s{sT}, s{sT}, 1")
    A(f"s_lshr_b32 s{sT2}, s{sW}, 1")
    A(f"s_add_u32 s{sT}, s{sT}, s{sT2}")
    A(f"s_lshl_b32 s{sT2}, s{sT}, 6")
    A(f"s_add_u32 s{sW0}, s{sW0}, s{sT2}")
    for i in range(1, 4): A(f"s_add_u32 s{sW0+i}, s{sW0}, {14400*i}")
    A(f"s_lshl_b32 s{sT2}, s{sT}, 11")
    A(f"s_add_u32 s{sWST}, s{sWST}, s{sT2}")
    A(f"s_add_u32 s{sWST}, s{sWST}, {WS_W}")
    A(f"v_lshrrev_b32 v{vT}, 5, v{vL}")
    A(f"v_mul_u32_u24 v{vT}, 900, v{vT}")
    A(f"v_and_b32 v{vWO}, 31, v{vL}")
    A(f"v_lshl_add_u32 v{vWO}, v{vWO}, 1, v{vT}")
    A(f"v_lshlrev_b32 v{vST}, 4, v{vL}")
    A(f"s_lshl_b32 s{sT}, s{sW}, 11")
    A(f"s_add_u32 s{sT}, s{sT}, {3*32768}")
    A(f"v_and_b32 v{vT+6}, 31, v{vL}")
    A(f"v_lshlrev_b32 v{vT+6}, 6, v{vT+6}")
    A(f"v_and_or_b32 v{vT+6}, v{vL}, 32, v{vT+6}")
    A(f"v_add_u32 v{vT+6}, s{sT}, v{vT+6}")
    A(f"v_add_u32 v{vT+7}, s{sT}, v{vST}")
    def wloads(kk):
        for p, srd in enumerate((sWR, sWI)):
            for i in range(4):
                A(f"buffer_load_ushort v{WL+8*kk+4*p+i}, v{vWO}, {sr(srd,4)}, s{sW0+i} offen offset:{450*kk}")
    def gate(i0, n=1):
        A(f"s_cmp_lg_u32 s{sNT}, 15")
        A(f"s_cbranch_scc1 k1_ng{i0}")
        for i in range(i0, i0 + n): A(f"ds_write_b16 v{vGA + ((i % 4) >> 1)}, v{vGW+i} offset:{32768*(i&1)}")
        A(f"k1_ng{i0}:")
    for i in range(7):
        A(f"s_waitcnt vmcnt({8 if i < 6 else 16})" if i else "s_waitcnt vmcnt(9)")
        if i == 0: gate(0, 2)
        A("s_waitcnt lgkmcnt(0)")
        A("s_barrier")
        ST.at(2 + i)
        if i + 2 <= 6: gate(i + 2)
        if i + 2 <= 6: issue_chunk((i + 2) % 4)
        if i == 5: wloads(0); wloads(1)
    A("s_waitcnt vmcnt(0)")
    for kk in range(2):
        for p in range(4):
            A(f"v_lshl_or_b32 v{WL+8*kk+p}, v{WL+8*kk+2*p+1}, 16, v{WL+8*kk+2*p}")
    for kk in range(2): A(f"ds_write_b128 v{vT+6}, {vr(WL+8*kk,4)} offset:{16*kk}")
    A("s_waitcnt lgkmcnt(0)")
    for kk in range(2): A(f"ds_read_b128 {vr(WL+8*kk,4)}, v{vT+7} offset:{1024*kk}")
    A("s_waitcnt lgkmcnt(0)")
    A(f"s_and_b32 s{sT}, s2, 3")
    A(f"s_lshl_b32 s{sT}, s{sT}, 1")
    A(f"s_lshr_b32 s{sT2}, s{sW}, 1")
    A(f"s_add_u32 s{sT}, s{sT}, s{sT2}")
    A(f"s_cmp_eq_u32 s{sT}, 7")
    A("s_cbranch_scc1 k1_w7")
    for kk in range(2):
        A(f"buffer_store_dwordx4 {vr(WL+8*kk,4)}, v{vST}, {sr(sWS,4)}, s{sWST} offen offset:{1024*kk} {STF}")
    A("s_branch k1_wd")
    A("k1_w7:")
    A("s_mov_b64 exec, 0xff")
    A(f"buffer_store_dwordx4 {vr(WL,4)}, v{vST}, {sr(sWS,4)}, s{sWST} offen {STF}")
    A("s_mov_b64 exec, -1")
    A("k1_wd:")
    A(f"s_cmp_ge_u32 s{sW}, 2")
    A("s_cbranch_scc1 k1_pf")
    A(f"s_load_dwordx2 {sr(sX,2)}, s[0:1], 40")
    A(f"s_getpc_b64 {sr(56,2)}")
    A("s_add_u32 s56, s56, tab_inv@rel32@lo+4")
    A("s_addc_u32 s57, s57, tab_inv@rel32@hi+12")
    A(f"s_mov_b32 s{sX+2}, 401408")
    A(f"s_mul_i32 s{sT}, s2, {13*128}")
    A(f"v_lshl_add_u32 v{vT}, v{vL}, 7, s{sT}")
    A("s_waitcnt lgkmcnt(0)")
    A(f"s_cmp_eq_u32 s{sW}, 1")
    A(f"s_cselect_b32 s{sX}, s56, s{sX}")
    A(f"s_cselect_b32 s{sX+1}, s57, s{sX+1}")
    A("s_mov_b64 exec, 0x1fff")
    A(f"buffer_load_dword v{vT+2}, v{vT}, {sr(sX,4)}, 0 offen")
    A("s_mov_b64 exec, -1")
    A("s_branch k1_pf")
    A("k1_comp:")
    A(f"s_mov_b32 s{sWS+2}, {WS_BYTES}")
    A(f"s_mov_b32 s{sWS+3}, 0x20000")
    A(f"v_lshlrev_b32 v{vST}, 4, v{vL}")
    A(f"v_and_b32 v{vT}, 31, v{vL}")
    A(f"v_lshrrev_b32 v{vT+1}, 5, v{vL}")
    A(f"v_bfe_u32 v{vT+2}, v{vL}, 1, 3")
    A(f"v_xor_b32 v{vT+2}, v{vT+2}, v{vT+1}")
    A(f"v_lshlrev_b32 v{vT+2}, 4, v{vT+2}")
    A(f"v_lshl_add_u32 v{vT+2}, v{vT}, 7, v{vT+2}")
    A(f"v_add_u32 v{vRA}, s{sLA}, v{vT+2}")
    for u in range(1, 4): A(f"v_xor_b32 v{vRA+u}, {32*u}, v{vRA}")
    A(f"v_bfe_u32 v{vT+2}, v{vL}, 2, 2")
    A(f"v_lshl_add_u32 v{vT+3}, v{vT+1}, 3, v{vT+2}")
    A(f"v_lshlrev_b32 v{vT+3}, 8, v{vT+3}")
    A(f"v_add_u32 v{vT+3}, 16384, v{vT+3}")
    A(f"v_bfe_u32 v{vT+4}, v{vL}, 4, 1")
    A(f"v_lshlrev_b32 v{vT+4}, 5, v{vT+4}")
    A(f"v_and_b32 v{vT+5}, 3, v{vL}")
    A(f"v_lshl_add_u32 v{vT+4}, v{vT+5}, 3, v{vT+4}")
    A(f"v_lshlrev_b32 v{vT+2}, 6, v{vT+2}")
    for g in range(4):
        A(f"v_xor_b32 v{vT+5}, v{vT+4}, v{vT+2}")
        A(f"v_add_u32 v{vRB+g}, v{vT+5}, v{vT+3}")
        if g < 3: A(f"v_add_u32 v{vT+4}, s{sGS}, v{vT+4}")
    A(f"s_cmp_lt_u32 s{sNT}, 12")
    A("s_cbranch_scc1 k1_nom")
    A(f"v_lshl_add_u32 v{vT+2}, v{vT+1}, 8, s{sBB}")
    A(f"v_mul_u32_u24 v{vT+2}, v{vT+2}, v{vT}")
    A(f"v_cvt_f32_u32 v{vT+2}, v{vT+2}")
    A(f"v_mul_f32 v{vT+2}, {hex(f2u(1/2048))}, v{vT+2}")
    A(f"v_cvt_f32_u32 v{vT+3}, v{vT}")
    A(f"v_mul_f32 v{vT+3}, {hex(f2u(1/32))}, v{vT+3}")
    for t in range(2):
        for jp in range(4):
            for e in range(2):
                j = 2 * jp + e
                n = 16 * t + 8 * (j >> 2) + (j & 3)
                A(f"v_fmamk_f32 v{vT+4+e}, v{vT+3}, {hex(f2u(float(n)))}, v{vT+2}")
                A(f"v_fract_f32 v{vT+4+e}, v{vT+4+e}")
            A(f"v_cos_f32 v{vT+6}, v{vT+4}")
            A(f"v_cos_f32 v{vT+7}, v{vT+5}")
            A(f"v_sin_f32 v{vT+8}, v{vT+4}")
            A(f"v_sin_f32 v{vT+9}, v{vT+5}")
            A(f"v_cvt_pk_bf16_f32 v{MC+4*t+jp}, v{vT+6}, v{vT+7}")
            A(f"v_cvt_pk_bf16_f32 v{MS+4*t+jp}, v{vT+8}, v{vT+9}")
            A(f"v_cvt_pk_bf16_f32 v{MN+4*t+jp}, -v{vT+8}, -v{vT+9}")
    A("k1_nom:")

    def rdA(buf, slot, u):
        A(f"ds_read_b128 {vr(FA+4*buf,4)}, v{vRA+u} offset:{32768*(slot&1)}")
    def rdB(buf, slot, u, g):
        off = 32768 * (slot & 1) + 4096 * u
        A(f"ds_read_b64_tr_b16 {vr(FB+16*buf+4*g,2)}, v{vRB+g} offset:{off}")
        A(f"ds_read_b64_tr_b16 {vr(FB+16*buf+4*g+2,2)}, v{vRB+g} offset:{off+1024}")
    def mainloop(swap):
        A("s_waitcnt lgkmcnt(0)")
        A("s_barrier")
        ST.at(2)
        rdA(0, 0, 0)
        for g in range(4): rdB(0, 0, 0, g)
        for n in range(28):
            i, u = n // 4, n % 4
            buf = n & 1
            i2, u2 = (n + 1) // 4, (n + 1) % 4
            if u == 3 and i < 6:
                if i2 in (2, 4, 6):
                    d = 65536 if i2 != 4 else -65536
                    for r in list(range(vRA, vRA+4)) + list(range(vRB, vRB+4)):
                        A(f"v_add_u32 v{r}, {hex(d & 0xffffffff)}, v{r}")
                A("s_barrier")
                ST.at(2 + i2)
            for g in range(4):
                if n < 27: cnt = 6 if g == 0 else 7
                else: cnt = 6 - 2 * g
                A(f"s_waitcnt lgkmcnt({cnt})")
                a_, b_ = vr(FA+4*buf,4), vr(FB+16*buf+4*g,4)
                if swap: a_, b_ = b_, a_
                A(f"v_mfma_f32_32x32x16_bf16 {vr(ACC+16*g,16)}, {a_}, {b_}, {'0' if n == 0 else vr(ACC+16*g,16)}")
                if n < 27:
                    if g == 0: rdA(buf ^ 1, i2 % 4, u2)
                    rdB(buf ^ 1, i2 % 4, u2, g)
        ST.at(9)

    A(f"s_cmp_ge_u32 s{sNT}, 8")
    A("s_cbranch_scc1 k1_vd")
    mainloop(True)
    A(f"s_and_b32 s{sT}, s{sNT}, 3")
    A(f"s_lshl_b32 s{sT}, s{sT}, 8")
    A(f"s_add_u32 s{sT}, s{sT}, s{sBB}")
    A(f"s_lshl_b32 s{sT}, s{sT}, 11")
    A(f"s_cmp_ge_u32 s{sNT}, 4")
    A(f"s_cselect_b32 s{sT2}, {WS_K}, {WS_Q}")
    A(f"s_add_u32 s{sT}, s{sT}, s{sT2}")
    A(f"s_cmp_ge_u32 s{sNT}, 4")
    A(f"s_cselect_b32 s{sGS}, 1.0, {hex(QSCALE)}")
    A(f"s_cselect_b32 s{sLA}, 0x3f803f80, 0")
    A(f"s_cselect_b32 s{sLB}, 0x3f80, 0")
    A(f"s_cselect_b32 s{sC}, 12, 0")
    A(f"v_mov_b32 v{vT+6}, s{sLA}")
    A(f"v_mov_b32 v{vT+7}, s{sLB}")
    A(f"v_lshrrev_b32 v{vT}, 1, v{vL}")
    A(f"v_xor_b32 v{vT}, v{vT}, v{vL}")
    A(f"v_and_b32 v{vT}, 4, v{vT}")
    A(f"v_mul_u32_u24 v{vT}, 3, v{vT}")
    A(f"v_and_b32 v{vT}, s{sC}, v{vT}")
    A(f"v_xor_b32 v{vT}, v{vT}, v{vL}")
    A(f"v_lshlrev_b32 v{vST}, 4, v{vT}")
    A(f"v_cmp_lt_u32 vcc, 31, v{vL}")
    for g in range(4):
        for r in range(16): A(f"v_mul_f32 v{ACC+16*g+r}, s{sGS}, v{ACC+16*g+r}")
        for r in range(8): A(f"v_cvt_pk_bf16_f32 v{PK+8*g+r}, v{ACC+16*g+2*r}, v{ACC+16*g+2*r+1}")
        A(f"v_cndmask_b32 v{PK+8*g+6}, v{PK+8*g+6}, v{vT+6}, vcc")
        A(f"v_cndmask_b32 v{PK+8*g+7}, v{PK+8*g+7}, v{vT+7}, vcc")
        if g: A(f"s_add_u32 s{sT}, s{sT}, {64*2048}")
        A(f"buffer_store_dwordx4 {vr(PK+8*g,4)}, v{vST}, {sr(sWS,4)}, s{sT} offen {STF}")
        A(f"buffer_store_dwordx4 {vr(PK+8*g+4,4)}, v{vST}, {sr(sWS,4)}, s{sT} offen offset:1024 {STF}")
    A("s_branch k1_pf")
    A("k1_vd:")
    mainloop(False)
    A(f"s_cmp_ge_u32 s{sNT}, 12")
    A("s_cbranch_scc1 k1_dft")
    A(f"s_and_b32 s{sT}, s{sNT}, 3")
    A(f"s_lshl_b32 s{sT}, s{sT}, 8")
    A(f"s_add_u32 s{sT}, s{sT}, s{sBB}")
    A(f"s_lshl_b32 s{sT}, s{sT}, 11")
    A(f"s_add_u32 s{sT}, s{sT}, {WS_V}")
    A(f"v_and_b32 v{vT}, 31, v{vL}")
    A(f"v_cmp_eq_u32 vcc, 28, v{vT}")
    A(f"v_mov_b32 v{vT+1}, 0x3f803f80")
    A(f"v_cndmask_b32 v{vT+1}, 0, v{vT+1}, vcc")
    A(f"v_cmp_lt_u32 vcc, 27, v{vT}")
    for g in range(4):
        for r in range(8): A(f"v_cvt_pk_bf16_f32 v{PK+8*g+r}, v{ACC+16*g+2*r}, v{ACC+16*g+2*r+1}")
        for r in range(8): A(f"v_cndmask_b32 v{PK+8*g+r}, v{PK+8*g+r}, v{vT+1}, vcc")
        if g: A(f"s_add_u32 s{sT}, s{sT}, {64*2048}")
        A(f"buffer_store_dwordx4 {vr(PK+8*g,4)}, v{vST}, {sr(sWS,4)}, s{sT} offen {STF}")
        A(f"buffer_store_dwordx4 {vr(PK+8*g+4,4)}, v{vST}, {sr(sWS,4)}, s{sT} offen offset:1024 {STF}")
    A("s_branch k1_pf")
    A("k1_dft:")
    A(f"s_mul_i32 s{sT}, s{sBB}, {YB}")
    A(f"s_lshl_b32 s{sT2}, s{sNT}, 13")
    A(f"s_add_u32 s{sT}, s{sT}, s{sT2}")
    A(f"s_add_u32 s{sT}, s{sT}, {WS_Y - 12*8192}")
    A(f"s_cmp_lg_u32 s{sNT}, 15")
    A("s_cbranch_scc1 k1_nogs")
    A(f"s_lshl_b32 s{sT2}, s{sBB}, 7")
    A(f"s_add_u32 s{sT2}, s{sT2}, {WS_G}")
    A(f"v_lshrrev_b32 v{vT}, 1, v{vL}")
    A("s_mov_b32 exec_lo, 1")
    A("s_mov_b32 exec_hi, 1")
    A("s_nop 7")
    for g in range(4): A(f"buffer_store_dwordx4 {vr(ACC+48+4*g,4)}, v{vT}, {sr(sWS,4)}, s{sT2} offen offset:{32*g}")
    A("s_mov_b64 exec, -1")
    A("s_nop 1")
    for r in range(16): A(f"v_mov_b32 v{ACC+48+r}, 0")
    A("k1_nogs:")
    A(f"s_lshl_b32 s{sT2}, s{sW}, 13")
    A(f"v_and_b32 v{vT}, 31, v{vL}")
    A(f"v_lshlrev_b32 v{vT}, 6, v{vT}")
    A(f"v_lshrrev_b32 v{vT+1}, 5, v{vL}")
    A(f"v_lshl_add_u32 v{vT}, v{vT+1}, 4, v{vT}")
    A(f"v_add_u32 v{vT}, s{sT2}, v{vT}")
    A(f"v_add_u32 v{vT+1}, s{sT2}, v{vST}")
    for g in range(4):
        for r in range(8): A(f"v_cvt_pk_bf16_f32 v{PK+8*g+r}, v{ACC+16*g+2*r}, v{ACC+16*g+2*r+1}")
    for cg in range(2):
        xr, xi = PK + 16 * cg, PK + 16 * cg + 8
        yr, yi = ACC + 32 * cg, ACC + 32 * cg + 16
        for t in range(2):
            A(f"v_mfma_f32_32x32x16_bf16 {vr(yr,16)}, {vr(MC+4*t,4)}, {vr(xr+4*t,4)}, {'0' if t == 0 else vr(yr,16)}")
            A(f"v_mfma_f32_32x32x16_bf16 {vr(yi,16)}, {vr(MC+4*t,4)}, {vr(xi+4*t,4)}, {'0' if t == 0 else vr(yi,16)}")
        for t in range(2):
            A(f"v_mfma_f32_32x32x16_bf16 {vr(yr,16)}, {vr(MS+4*t,4)}, {vr(xi+4*t,4)}, {vr(yr,16)}")
            A(f"v_mfma_f32_32x32x16_bf16 {vr(yi,16)}, {vr(MN+4*t,4)}, {vr(xr+4*t,4)}, {vr(yi,16)}")
    for g in range(4):
        P = FA + 8 * g
        for r in range(8): A(f"v_cvt_pk_bf16_f32 v{P+r}, v{ACC+16*g+2*r}, v{ACC+16*g+2*r+1}")
        for t in range(2):
            A(f"v_permlane32_swap_b32 v{P+4*t}, v{P+4*t+2}")
            A(f"v_permlane32_swap_b32 v{P+4*t+1}, v{P+4*t+3}")
        for t in range(2): A(f"ds_write_b128 v{vT}, {vr(P+4*t,4)} offset:{2048*g+32*t}")
        if g & 1:
            A("s_waitcnt lgkmcnt(0)")
            for k in range(4): A(f"ds_read_b128 {vr(PK+16*(g>>1)+4*k,4)}, v{vT+1} offset:{4096*(g>>1)+1024*k}")
    for k in range(8):
        if k == 4:
            A(f"s_add_u32 s{sT}, s{sT}, 4096")
            A(f"s_cmp_eq_u32 s{sNT}, 15")
            A(f"s_cselect_b64 s[54:55], 0xff, -1")
            A(f"s_cselect_b64 s[56:57], 0, -1")
        if k >= 4: A(f"s_mov_b64 exec, s[{54 if k % 2 == 0 else 56}:{55 if k % 2 == 0 else 57}]")
        if k >= 4 and k % 2: A(f"s_cbranch_execz k1_ys{k}")
        A(f"s_waitcnt lgkmcnt({min(7-k, 3) if k >= 4 else 4})")
        A(f"buffer_store_dwordx4 {vr(PK+4*k,4)}, v{vST}, {sr(sWS,4)}, s{sT} offen offset:{1024*(k&3)} {STF}")
        if k >= 4 and k % 2: A(f"k1_ys{k}:")
    A("s_mov_b64 exec, -1")
    A("k1_pf:")
    ST.at(10)
    ST.dump(sWS, sW8, 8, vT+10)
    if DIAG: A("s_mov_b64 exec, -1")
    A(f"s_cmp_lg_u32 s{sW8}, 4")
    A("s_cbranch_scc1 k1_end")
    A(f"s_cmp_ge_u32 s{sJ}, 8")
    A("s_cbranch_scc1 k1_end")
    A(f"s_getpc_b64 {sr(56,2)}")
    A("s_add_u32 s56, s56, tab_small@rel32@lo+4")
    A("s_addc_u32 s57, s57, tab_small@rel32@hi+12")
    A(f"s_getpc_b64 {sr(58,2)}")
    A("s_add_u32 s58, s58, k2_kernel@rel32@lo+4")
    A("s_addc_u32 s59, s59, k2_kernel@rel32@hi+12")
    A(f"s_cmp_ge_u32 s{sJ}, 6")
    A(f"s_cselect_b32 s56, s58, s56")
    A(f"s_cselect_b32 s57, s59, s57")
    A(f"s_cselect_b32 s{sT}, 6, 0")
    A(f"s_sub_u32 s{sT}, s{sJ}, s{sT}")
    A(f"s_lshl_b32 s{sT}, s{sT}, 13")
    A(f"v_lshl_add_u32 v{vT}, v{vL}, 7, s{sT}")
    A(f"global_load_dword v{vT+1}, v{vT}, s[56:57]")
    A("k1_end:")
    A("s_endpgm")
    return A.L, NV, 102 if DIAG else 64
```

```python
from asmlib import *
from k1 import WS_Q, WS_K, WS_V, WS_Y, WS_W, WS_O, WS_Z, WS_G, WS_BYTES, WS_FO, WS_FZ, f2u, YB, WP, ZP
import math, os
TS_F64, TS_F32, TS_TW, TS_BYTES = 0, 24576, 30720, 47104
LF, LZ, RED = 0, 57344, 114688
LW = RED - 8192
LDS_Y, LDS_Q = RED, RED + 8192
K2_LDS = 163840
TAB_INV_BYTES = 401408
SPIN = 20000
N0 = int(os.environ.get("N0", 13)); N1 = (64 - N0) // 3
assert N0 + 3 * N1 == 64
OST = os.environ.get("OST", "")

def merge(ms, vs, lead=0):
    out = []; n = len(ms); k = 0
    for i, m in enumerate(ms):
        out.append(m)
        k2 = (len(vs) * (i + 1)) // n
        out += vs[k:k2]; k = k2
    return out

def gen_k2():
    A = Asm()
    sWS, sX, sTB = 8, 12, 16
    sW, sJ, sXC, sHD, sQB, sT, sT2, sCNT, sI, sKO, sLO, sHI, sVO, sPASS = 20, 21, 22, 23, 24, 25, 26, 27, 28, 29, 30, 31, 32, 33
    sK0, sOK, sQ, sOUT = 34, 35, 40, 48
    sMT, sNT, sPUB, sLO2 = 52, 53, 57, 58
    O, S, Q, KV = 0, 64, 128, 160
    vL, vO16, vIDX, vT = 208, 209, 210, 212
    NV = 256
    vWD, sWM, sWS_ = 237, 59, 60
    A("s_cmp_ge_u32 s2, 256")
    A("s_cbranch_scc1 k2_end")
    ST = Stamps(A, 1); ST.begin()
    A(f"s_load_dwordx2 {sr(sWS,2)}, s[0:1], 72")
    A(f"s_load_dwordx2 {sr(sX,2)}, s[0:1], 40")
    A(f"s_load_dwordx2 {sr(sOUT,2)}, s[0:1], 56")
    A(f"v_lshrrev_b32 v{vT}, 6, v0")
    A(f"v_and_b32 v{vL}, 63, v0")
    A(f"s_mov_b32 s{sWS+2}, {WS_BYTES}")
    A(f"s_mov_b32 s{sWS+3}, 0x20000")
    A(f"v_readfirstlane_b32 s{sW}, v{vT}")
    A(f"v_lshlrev_b32 v{vO16}, 4, v{vL}")
    A(f"v_and_b32 v{vT+9}, 31, v{vL}")
    A(f"v_lshlrev_b32 v{vT+9}, 2, v{vT+9}")
    A(f"s_and_b32 s{sXC}, s2, 7")
    A(f"s_lshr_b32 s{sJ}, s2, 3")
    A(f"s_and_b32 s{sT}, s{sJ}, 3")
    A(f"s_lshl_b32 s{sMT}, s{sXC}, 2")
    A(f"s_add_u32 s{sMT}, s{sMT}, s{sT}")
    A(f"s_lshr_b32 s{sNT}, s{sJ}, 2")
    A(f"s_getpc_b64 {sr(sTB,2)}")
    A(f"s_add_u32 s{sTB}, s{sTB}, tab_inv@rel32@lo+4")
    A(f"s_addc_u32 s{sTB+1}, s{sTB+1}, tab_inv@rel32@hi+12")
    A(f"s_mov_b32 s{sTB+2}, {TAB_INV_BYTES}")
    A(f"s_mov_b32 s{sTB+3}, 0x20000")
    A(f"s_cmp_eq_u32 s{sW}, 4")
    A("s_cbranch_scc1 k2_aux")
    A(f"s_lshr_b32 s{sHD}, s{sJ}, 4")
    A(f"s_lshl_b32 s{sHD}, s{sHD}, 3")
    A(f"s_add_u32 s{sHD}, s{sHD}, s{sXC}")
    A(f"s_and_b32 s{sQB}, s{sJ}, 15")
    A(f"s_cmp_eq_u32 s{sW}, 0")
    A(f"s_cselect_b32 s{sCNT}, {N0}, {N1}")
    A(f"s_mul_i32 s{sT}, s{sW}, {N1}")
    A(f"s_sub_u32 s{sT}, s{sT}, {N1-N0}")
    A(f"s_max_i32 s{sT}, s{sT}, 0")
    A(f"s_lshl_b32 s{sT2}, s{sW}, 4")
    A(f"s_cmp_le_u32 s2, 224")
    A(f"s_cselect_b32 s{sCNT}, s{sCNT}, 16")
    A(f"s_cselect_b32 s{sT}, s{sT}, s{sT2}")
    A(f"s_lshl_b32 s{sT2}, s{sHD}, 6")
    A(f"s_add_u32 s{sT}, s{sT}, s{sT2}")
    A(f"s_lshl_b32 s{sLO}, s{sT}, 11")
    A(f"s_add_u32 s{sLO}, s{sLO}, {WS_K}")
    A(f"s_lshl_b32 s{sT}, s{sCNT}, 11")
    A(f"s_add_u32 s{sHI}, s{sLO}, s{sT}")
    if os.environ.get("ROT"):
        A(f"s_mul_i32 s{sT}, s{sQB}, s{sCNT}")
        A(f"s_lshr_b32 s{sT}, s{sT}, 4")
        A(f"s_lshl_b32 s{sT}, s{sT}, 11")
        A(f"s_add_u32 s{sK0}, s{sLO}, s{sT}")
    else:
        A(f"s_mov_b32 s{sK0}, s{sLO}")
    A(f"s_lshl_b32 s{sT}, s{sQB}, 2")
    A(f"s_add_u32 s{sT}, s{sT}, s{sT2}")
    for s in range(4):
        A(f"s_add_u32 s{sQ+s}, s{sW}, {s+1}")
        A(f"s_and_b32 s{sQ+s}, s{sQ+s}, 3")
        A(f"s_add_u32 s{sT2}, s{sQ+s}, s{sT}")
        A(f"s_lshl_b32 s{sQ+4+s}, s{sT2}, 11")
    A(f"s_mov_b32 s{sKO}, s{sK0}")
    A(f"s_add_u32 s{sVO}, s{sKO}, {WS_V - WS_K}")
    A("s_waitcnt lgkmcnt(0)")
    def ldk(st, t): return f"buffer_load_dwordx4 {vr(KV+16*st+4*t,4)}, v{vO16}, {sr(sWS,4)}, s{sKO} offen offset:{1024*t}"
    def ldv(st, t): return f"buffer_load_dwordx4 {vr(KV+16*st+8+4*t,4)}, v{vO16}, {sr(sWS,4)}, s{sVO} offen offset:{1024*t}"
    def ldq(s, t): return f"buffer_load_dwordx4 {vr(Q+8*s+4*t,4)}, v{vO16}, {sr(sWS,4)}, s{sQ+4+s} offen offset:{1024*t}"
    adv = [f"s_add_u32 s{sKO}, s{sKO}, 2048", f"s_cmp_ge_u32 s{sKO}, s{sHI}", f"s_cselect_b32 s{sKO}, s{sLO2}, s{sKO}"]
    setv = f"s_add_u32 s{sVO}, s{sKO}, {WS_V - WS_K}"
    A(f"s_lshl_b32 s{sT}, s{sW}, 11")
    A(f"s_add_u32 m0, s{sT}, {LDS_Q}")
    A(ldk(0, 0))
    A(f"buffer_load_dwordx4 v{vO16}, {sr(sWS,4)}, s{sQ+7} offen lds")
    A(f"buffer_load_dwordx4 v{vO16}, {sr(sWS,4)}, s{sQ+7} offen offset:1024 lds")
    for x in [ldk(0, 1), ldv(0, 0), ldv(0, 1)]: A(x)
    A(f"s_mov_b32 s{sPASS}, 0")
    A(f"s_mov_b32 s{sOK}, 0")
    A("s_branch k2_first")
    A("k2_pass:")
    A(f"s_mov_b32 s{sKO}, s{sK0}")
    A(setv)
    for x in [ldk(0, 0), ldk(0, 1), ldv(0, 0), ldv(0, 1)]: A(x)
    A("s_waitcnt vmcnt(0)")
    A("k2_first:")
    for x in adv[:1] + [setv, ldk(1, 0), ldk(1, 1), ldv(1, 0), ldv(1, 1)] + adv[:1] + [setv, ldk(2, 0), ldk(2, 1), ldv(2, 0), ldv(2, 1)]: A(x)
    A(f"s_add_u32 s{sLO2}, s{sLO}, {3*2048}")
    A(f"s_sub_u32 s{sT}, s{sCNT}, 3")
    A(f"s_mul_i32 s{sT}, s{sT}, s{sQB}")
    A(f"s_lshr_b32 s{sT}, s{sT}, 4")
    A(f"s_lshl_b32 s{sT}, s{sT}, 11")
    A(f"s_add_u32 s{sKO}, s{sLO2}, s{sT}")
    A(f"s_cmp_lg_u32 s{sPASS}, 0")
    A("s_cbranch_scc1 k2_nobar")
    for r in range(64): A(f"v_mov_b32 v{O+r}, 0")
    A(f"v_mov_b32 v{vIDX}, 0xdddddddd")
    for s_ in range(4):
        A(f"s_lshl_b32 s{sT}, s{sQ+s_}, 11")
        A(f"s_add_u32 s{sT}, s{sT}, {LDS_Q}")
        A(f"v_add_u32 v{vT+2+s_}, s{sT}, v{vO16}")
    A("s_waitcnt vmcnt(11)")
    A("s_barrier")
    for s_ in range(4):
        for t in range(2): A(f"ds_read_b128 {vr(Q+8*s_+4*t,4)}, v{vT+2+s_} offset:{1024*t}")
    A("s_branch k2_go")
    A("k2_nobar:")
    for r in range(64): A(f"v_mov_b32 v{O+r}, 0")
    A("k2_go:")
    A(f"s_mov_b32 s{sI}, s{sCNT}")
    def qk(q, st, half):
        c = "0" if half == 0 else vr(S+16*q,16)
        return f"v_mfma_f32_32x32x16_bf16 {vr(S+16*q,16)}, {vr(KV+16*st+4*half,4)}, {vr(Q+8*q+4*half,4)}, {c}"
    def pv(q, st, half):
        return f"v_smfmac_f32_32x32x32_bf16 {vr(O+16*q,16)}, {vr(KV+16*st+8+4*half,4)}, {vr(S+16*q+8*half,8)}, v{vIDX}"
    def tile(st, first):
        nxt, prv = (st + 1) % 3, (st + 2) % 3
        for q in range(4):
            e = [f"v_exp_f32 v{S+16*q+r}, v{S+16*q+r}" for r in range(16)]
            qn, stn = (q + 1, st) if q < 3 else (0, nxt)
            qp, stp = (q - 1, st) if q > 0 else (3, prv)
            aft = {0: [], 1: [], 2: [], 3: []}
            if q == 0: aft[2] = [ldk(prv, 0)]; aft[3] = [setv]
            if q == 1: aft[1] = ["s_waitcnt vmcnt(5)"]; aft[2] = [ldk(prv, 1)]; aft[3] = adv[0:2]
            if q == 2: aft[0] = [adv[2]]; aft[2] = [ldv(prv, 0)]; aft[3] = [f"s_sub_u32 s{sI}, s{sI}, 1", "s_waitcnt vmcnt(5)"]
            if q == 3: aft[2] = [ldv(prv, 1)]; aft[3] = [f"s_cmp_eq_u32 s{sI}, 0"]
            ms = [qk(qn, stn, 0), qk(qn, stn, 1), pv(qp, stp, 0), pv(qp, stp, 1)]
            if first and q == 0:
                A("s_waitcnt lgkmcnt(0)")
                ms[2] = ms[3] = None
            if first:
                aft = {0: [], 1: [], 2: [], 3: []}
                if q == 1: aft[1] = ["s_waitcnt vmcnt(8)"]
                if q == 2: aft[3] = [f"s_sub_u32 s{sI}, s{sI}, 1", "s_waitcnt vmcnt(6)"]
                if q == 3: aft[3] = [f"s_cmp_eq_u32 s{sI}, 0"]
            for k in range(4):
                if ms[k]: A(ms[k])
                for y in aft[k]: A(y)
                for x in e[4*k:4*k+4]: A(x)
    ST.at(0)
    A("s_waitcnt vmcnt(10) lgkmcnt(6)")
    ST.at(1)
    A(qk(0, 0, 0)); A(qk(0, 0, 1))
    A("s_nop 9")
    tile(0, True)
    A("s_cbranch_scc1 k2_x0")
    loop_start = A.mark()
    A("k2_loop:")
    if DIAG:
        A("s_waitcnt lgkmcnt(0)")
        for i in (13, 12, 11): A(f"s_mov_b32 s{70+2*i}, s{68+2*i}")
        ST.at(10)
    for st in (1, 2, 0):
        tile(st, False)
        A(f"s_cbranch_scc1 k2_x{st}" if st != 0 else "s_cbranch_scc0 k2_loop")
    loop_end = A.mark()
    for st in (0, 1, 2):
        A(f"k2_x{st}:")
        A("s_nop 1")
        A(pv(3, st, 0)); A(pv(3, st, 1))
        if st != 2: A("s_branch k2_red")
    A("k2_red:")
    ST.at(2)
    for s in range(3):
        A(f"s_mul_i32 s{sT}, s{sQ+s}, 12288")
        A(f"s_add_u32 s{sT}, s{sT}, {RED}")
        A(f"v_add_u32 v{vT+s}, s{sT}, v{vO16}")
    A(f"s_lshl_b32 s{sT2}, s{sQB}, 2")
    A(f"s_add_u32 s{sT2}, s{sT2}, s{sW}")
    A(f"s_lshl_b32 s{sT}, s{sT2}, 7")
    A(f"s_add_u32 s{sT}, s{sT}, {WS_G}")
    A(f"buffer_load_dword v{vT+8}, v{vT+9}, {sr(sWS,4)}, s{sT} offen")
    for s in range(3):
        for g in range(4):
            A(f"ds_write_b128 v{vT+s}, {vr(O+16*s+4*g,4)} offset:{4096*s+1024*g}")
    A(f"s_mul_i32 s{sT}, s{sW}, 12288")
    A(f"s_add_u32 s{sT}, s{sT}, {RED}")
    A(f"v_add_u32 v{vT+1}, s{sT}, v{vO16}")
    A(f"s_lshl_b32 s{sT}, s{sW}, 2")
    A(f"s_add_u32 s{sT}, s{sT}, {K2_LDS-128}")
    A(f"v_mov_b32 v{vT+14}, s{sT}")
    A(f"s_lshl_b32 s{sT2}, s{sT2}, 4")
    A(f"s_add_u32 s{sT2}, s{sT2}, s{sHD}")
    A(f"s_lshl_b32 s{sKO}, s{sT2}, 11")
    A(f"s_add_u32 s{sKO}, s{sKO}, {WS_O}")
    A(f"s_lshl_b32 s{sVO}, s{sT2}, 7")
    A(f"s_add_u32 s{sVO}, s{sVO}, {WS_FO}")
    A("s_waitcnt vmcnt(0) lgkmcnt(0)")
    ST.at(3)
    A("s_barrier")
    ST.at(4)
    for s in range(3):
        for g in range(4):
            A(f"ds_read_b128 {vr(S+16*s+4*g,4)}, v{vT+1} offset:{4096*s+1024*g}")
    A(f"v_mul_f32 v{vT+8}, {hex(f2u(math.log2(math.e)))}, v{vT+8}")
    A(f"v_exp_f32 v{vT+8}, v{vT+8}")
    A(f"v_cmp_lt_u32 s[38:39], 31, v{vL}")
    A(f"v_add_f32 v{vT+8}, 1.0, v{vT+8}")
    A(f"v_rcp_f32 v{vT+8}, v{vT+8}")
    R = O + 48
    for s in range(3):
        A(f"s_waitcnt lgkmcnt({8-4*s})")
        for r in list(range(12, 16)) + list(range(12)) if s == 2 else range(16): A(f"v_add_f32 v{R+r}, v{R+r}, v{S+16*s+r}")
    A(f"v_mov_b32 v{vT+4}, v{R+12}")
    A(f"v_mov_b32 v{vT+5}, v{R+12}")
    A(f"v_add_f32 v{vT+7}, abs(v{R}), abs(v{R+1})")
    A(f"v_add_f32 v{vT+7}, v{vT+7}, abs(v{R+2})")
    A(f"v_permlane32_swap_b32 v{vT+4}, v{vT+5}")
    A(f"v_rcp_f32 v{vT+6}, v{vT+5}")
    A(f"v_add_f32 v{vT+7}, v{vT+7}, abs(v{R+3})")
    A(f"v_mul_f32 v{vT+6}, v{vT+6}, v{vT+8}")
    A(f"s_cmp_lg_u32 s{sOK}, 0")
    A(f"s_mov_b32 s{sPUB}, 0")
    A("s_cbranch_scc1 k2_apart")
    for t in range(2):
        for r in range(8): A(f"v_mul_f32 v{S+8*t+r}, v{R+8*t+r}, v{vT+6}")
        for r in range(4): A(f"v_cvt_pk_bf16_f32 v{S+16+4*t+r}, v{S+8*t+2*r}, v{S+8*t+2*r+1}")
        if t == 1:
            A(f"v_cndmask_b32 v{S+22}, v{S+22}, 0, s[38:39]")
            A(f"v_cndmask_b32 v{S+23}, v{S+23}, 0, s[38:39]")
        A(f"buffer_store_dwordx4 {vr(S+16+4*t,4)}, v{vO16}, {sr(sWS,4)}, s{sKO} offen offset:{1024*t} sc1")
    for r in range(4, 16): A(f"v_add_f32 v{vT+7}, v{vT+7}, abs(v{R+r})")
    A(f"v_cmp_nle_f32 vcc, {hex(f2u(2.0**-60))}, v{vT+5}")
    A(f"s_mov_b64 s[36:37], vcc")
    A(f"v_cmp_nge_f32 vcc, {hex(f2u(2.0**60))}, v{vT+5}")
    A(f"s_or_b64 s[36:37], s[36:37], vcc")
    A(f"v_cmp_nge_f32 vcc, {hex(f2u(2.0**120))}, v{vT+7}")
    A(f"s_or_b64 s[36:37], s[36:37], vcc")
    A(f"s_cselect_b32 s{sOK}, 0, 1")
    A(f"s_or_b32 s{sOK}, s{sOK}, s{sPASS}")
    A(f"s_mov_b32 s{sPUB}, s{sOK}")
    A("k2_apart:")
    A("s_barrier")
    def publish(lab, younger=0):
        A(f"s_cmp_eq_u32 s{sPUB}, 0")
        A(f"s_cbranch_scc1 {lab}")
        A(f"v_mov_b32 v{vT+4}, 0")
        A(f"v_mov_b32 v{vT+5}, 1")
        A("s_mov_b64 exec, 1")
        A(f"s_waitcnt vmcnt({younger})")
        A(f"buffer_store_dword v{vT+5}, v{vT+4}, {sr(sWS,4)}, s{sVO} offen sc1")
        A("s_mov_b64 exec, -1")
        A(f"{lab}:")
    A("s_cmp_lt_u32 s2, 224")
    A("s_cbranch_scc1 k2_ap2")
    publish("k2_np0")
    A("s_branch k2_pub")
    A("k2_ap2:")
    AA, AB, OF, LB = 0, 96, 160, 32
    vG3, vZ3, vF3, vW3, vOA, vX = 228, 229, 230, 232, 234, 235
    sKH, sB3, sB = 54, 55, 56
    A(f"s_lshr_b32 s{sKH}, s{sW}, 1")
    A(f"s_and_b32 s{sB3}, s{sW}, 1")
    A(f"v_lshrrev_b32 v{vT+10}, 5, v{vL}")
    A(f"v_bfe_u32 v{vT+11}, v{vL}, 2, 2")
    A(f"v_bfe_u32 v{vT+12}, v{vL}, 4, 1")
    A(f"v_lshlrev_b32 v{vT+12}, 5, v{vT+12}")
    A(f"v_and_b32 v{vT+13}, 3, v{vL}")
    A(f"v_lshl_add_u32 v{vT+12}, v{vT+13}, 3, v{vT+12}")
    A(f"v_lshl_add_u32 v{vT+12}, v{vT+11}, 7, v{vT+12}")
    A(f"v_lshrrev_b32 v{vT+11}, 1, v{vT+11}")
    A(f"v_lshl_add_u32 v{vT+12}, v{vT+11}, 6, v{vT+12}")
    A(f"s_lshl_b32 s{sT}, s{sB3}, 6")
    A(f"v_xor_b32 v{vZ3}, s{sT}, v{vT+12}")
    A(f"v_lshl_add_u32 v{vZ3}, v{vT+10}, 10, v{vZ3}")
    A(f"s_mul_i32 s{sT2}, s{sKH}, {14*2048}")
    A(f"s_add_u32 s{sT}, s{sT2}, {LZ}")
    A(f"v_add_u32 v{vZ3}, s{sT}, v{vZ3}")
    A(f"s_lshl_b32 s{sT}, s{sKH}, 10")
    A(f"s_add_u32 s{sT}, s{sT}, s{sT2}")
    A(f"v_add_u32 v{vF3}, s{sT}, v{vO16}")
    A(f"v_xor_b32 v{vF3+1}, 1024, v{vF3}")
    steps = []
    OFr = lambda m: (OF + 4*m) if m < 12 else (128 + 4*(m-12))
    for n in range(30):
        buf = LB + 12 * (n % 3)
        if n < 14:
            rd = [f"ds_read_b64_tr_b16 {vr(buf+2*x,2)}, v{vZ3} offset:{2048*n+512*x}" for x in range(2)]
            rd += [f"ds_read_b128 {vr(buf+4+4*k,4)}, v{vF3+k} offset:{2048*n}" for k in range(2)]
            mm = [f"v_mfma_f32_32x32x16_bf16 {vr(AA+16*k,16)}, {vr(buf+4+4*k,4)}, {vr(buf,4)}, {'0' if n == 0 else vr(AA+16*k,16)}" for k in range(2)]
        else:
            m = n - 14; hd, t = m >> 1, m & 1
            rd = [f"ds_read_b64_tr_b16 {vr(buf+4+4*k+2*x,2)}, v{vW3+k} offset:{(28*hd+16*t)*128+1024*x}" for k in range(2) for x in range(2)]
            ks = (1, 0) if m == 15 else (0, 1)
            mm = [f"v_mfma_f32_32x32x16_bf16 {vr(AB+16*k,16)}, {vr(buf+4+4*k,4)}, {vr(OFr(m),4)}, {'0' if m == 0 else vr(AB+16*k,16)}" for k in ks]
        steps.append((rd, mm))
    NA = int(os.environ.get("NA", 10))
    for x in steps[0][0] + steps[1][0]: A(x)
    for n in range(14):
        if n == NA: publish("k2_np1")
        A(f"s_waitcnt lgkmcnt({4 if n < 13 else 0})")
        A(steps[n][1][0])
        if n + 2 < 14:
            for x in steps[n+2][0]: A(x)
        A(steps[n][1][1])
    A("k2_pub:")
    ST.at(5)
    A(f"v_mov_b32 v{vT+5}, s{sOK}")
    A(f"ds_write_b32 v{vT+14}, v{vT+5}")
    A("k2_chk:")
    A(f"v_mov_b32 v{vT+8}, {K2_LDS-128}")
    A("s_waitcnt lgkmcnt(0)")
    A("s_barrier")
    A(f"ds_read_b128 {vr(vT+4,4)}, v{vT+8}")
    A("s_waitcnt lgkmcnt(0)")
    A("s_barrier")
    A(f"v_and_b32 v{vT+4}, v{vT+4}, v{vT+5}")
    A(f"v_and_b32 v{vT+6}, v{vT+6}, v{vT+7}")
    A(f"v_and_b32 v{vT+4}, v{vT+4}, v{vT+6}")
    A(f"v_readfirstlane_b32 s{sT}, v{vT+4}")
    A(f"s_cmp_lg_u32 s{sT}, 0")
    A("s_cbranch_scc1 k2_p3")
    A(f"s_cmp_eq_u32 s{sW}, 4")
    A("s_cbranch_scc1 k2_auxfb")
    A(f"s_mov_b32 s{sPASS}, 1")
    A("s_waitcnt vmcnt(0)")
    for q in range(4): A(f"v_mov_b32 v{O+q}, 0xff800000")
    A(f"s_mov_b32 s{sKO}, s{sLO}")
    A("k2_maxloop:")
    A(ldk(0, 0)); A(ldk(0, 1))
    A("s_waitcnt vmcnt(0)")
    for q in range(4): A(qk(q, 0, 0)); A(qk(q, 0, 1))
    A("s_nop 15")
    for q in range(4):
        for r in range(8): A(f"v_max3_f32 v{O+q}, v{O+q}, v{S+16*q+2*r}, v{S+16*q+2*r+1}")
    A(f"s_add_u32 s{sKO}, s{sKO}, 2048")
    A(f"s_cmp_lt_u32 s{sKO}, s{sHI}")
    A("s_cbranch_scc1 k2_maxloop")
    A(f"s_lshl_b32 s{sT}, s{sW}, 8")
    A(f"s_add_u32 s{sT}, s{sT}, {RED}")
    A(f"v_lshl_add_u32 v{vT}, v{vL}, 2, s{sT}")
    A(f"v_and_b32 v{vT+1}, 31, v{vL}")
    A(f"v_lshlrev_b32 v{vT+1}, 2, v{vT+1}")
    A(f"v_add_u32 v{vT+1}, {RED}, v{vT+1}")
    for s in range(4):
        A(f"s_lshl_b32 s{sT}, s{sQ+s}, 10")
        A(f"v_add_u32 v{vT+2}, s{sT}, v{vT}")
        A(f"v_add_u32 v{vT+4+s}, s{sT}, v{vT+1}")
        A(f"ds_write_b32 v{vT+2}, v{O+s}")
    A("s_waitcnt lgkmcnt(0)")
    A("s_barrier")
    for s in range(4):
        for k in range(8): A(f"ds_read_b32 v{S+8*s+k}, v{vT+4+s} offset:{128*k}")
        A("s_waitcnt lgkmcnt(0)")
    A("s_barrier")
    A(f"v_cmp_lt_u32 vcc, 31, v{vL}")
    for q in range(4):
        m = S + 8 * q
        A(f"v_max3_f32 v{m}, v{m}, v{m+1}, v{m+2}")
        A(f"v_max3_f32 v{m}, v{m}, v{m+3}, v{m+4}")
        A(f"v_max3_f32 v{m}, v{m}, v{m+5}, v{m+6}")
        A(f"v_max_f32 v{m}, v{m}, v{m+7}")
        A(f"v_xor_b32 v{m}, 0x80000000, v{m}")
        A(f"v_and_b32 v{m+1}, 0xffff0000, v{m}")
        A(f"v_sub_f32 v{m+2}, v{m}, v{m+1}")
        A(f"v_and_b32 v{m+3}, 0xffff0000, v{m+2}")
        A(f"v_sub_f32 v{m+4}, v{m+2}, v{m+3}")
        A(f"v_lshrrev_b32 v{m+1}, 16, v{m+1}")
        A(f"v_or_b32 v{m+1}, v{m+1}, v{m+3}")
        A(f"v_lshrrev_b32 v{m+4}, 16, v{m+4}")
        A(f"v_cndmask_b32 v{Q+8*q+6}, v{Q+8*q+6}, v{m+1}, vcc")
        A(f"v_cndmask_b32 v{Q+8*q+7}, v{Q+8*q+7}, v{m+4}, vcc")
    A("s_branch k2_pass")

    A("k2_p3:")
    A("s_cmp_ge_u32 s2, 224")
    A("s_cbranch_scc1 k2_dump" if DIAG else "s_cbranch_scc1 k2_end")
    A(f"s_cmp_eq_u32 s{sW}, 4")
    A("s_cbranch_scc1 k2_auxp3")
    A(f"s_lshl_b32 s{sT}, s{sMT}, 1")
    A(f"s_add_u32 s{sB}, s{sT}, s{sB3}")
    A(f"s_lshl_b32 s{sT}, s{sB}, 7")
    A(f"s_add_u32 s{sT}, s{sT}, {WS_G}")
    A(f"buffer_load_dword v{vG3}, v{vT+9}, {sr(sWS,4)}, s{sT} offen")
    A(f"s_lshl_b32 s{sT}, s{sKH}, 6")
    A(f"v_xor_b32 v{vW3}, s{sT}, v{vT+12}")
    A(f"v_lshl_add_u32 v{vW3}, v{vT+10}, 9, v{vW3}")
    A(f"s_mul_i32 s{sT}, s{sKH}, {224*128}")
    A(f"s_add_u32 s{sT}, s{sT}, {LW}")
    A(f"v_add_u32 v{vW3}, s{sT}, v{vW3}")
    A(f"v_xor_b32 v{vW3+1}, 64, v{vW3}")
    A(f"s_lshl_b32 s{sT}, s{sW}, 12")
    A(f"v_add_u32 v{vX}, s{sT}, v{vO16}")
    A(f"v_xor_b32 v{vX+1}, 8192, v{vX}")
    A(f"s_lshl_b32 s{sT}, s{sB}, 1")
    A(f"s_add_u32 s{sT}, s{sT}, s{sKH}")
    A(f"s_lshl_b32 s{sT}, s{sT}, 14")
    A(f"s_add_u32 s{sKO}, s{sT}, {WS_O}")
    A(f"v_lshrrev_b32 v{vT+3}, 2, v{vT+9}")
    A(f"v_mul_u32_u24 v{vOA}, 57344, v{vT+3}")
    A(f"v_lshl_add_u32 v{vOA}, v{vT+10}, 4, v{vOA}")
    A(f"s_mul_i32 s{sVO}, s{sB}, 896")
    A(f"s_lshl_b32 s{sT}, s{sNT}, 7")
    A(f"s_add_u32 s{sVO}, s{sVO}, s{sT}")
    A(f"s_lshl_b32 s{sT}, s{sKH}, 6")
    A(f"s_add_u32 s{sVO}, s{sVO}, s{sT}")
    A(f"s_mov_b32 s{sOUT+2}, 1835008")
    A(f"s_mov_b32 s{sOUT+3}, 0x20000")
    ST.at(6)
    A("s_barrier")
    ST.at(7)
    def old(m):
        if m and m % 4 == 0: A(f"s_add_u32 s{sKO}, s{sKO}, 4096")
        A(f"buffer_load_dwordx4 {vr(OFr(m),4)}, v{vO16}, {sr(sWS,4)}, s{sKO} offen offset:{1024*(m%4)} sc1")
    NO = int(os.environ.get("NO", 10))
    for x in steps[14][0] + steps[15][0]: A(x)
    for m in range(NO): old(m)
    A(f"v_mul_f32 v{vG3}, {hex(f2u(-math.log2(math.e)))}, v{vG3}")
    A(f"v_exp_f32 v{vG3}, v{vG3}")
    A("s_nop 0")
    A(f"v_add_f32 v{vG3}, 1.0, v{vG3}")
    A(f"v_rcp_f32 v{vG3}, v{vG3}")
    for n in range(14, 30):
        m = n - 14
        if NO + m < 16: old(NO + m)
        A(f"s_waitcnt vmcnt({min(NO + m + 1, 16) - m - 1}) lgkmcnt({4 if n < 29 else 0})")
        if m == 0: ST.at(8)
        A(steps[n][1][0])
        if n + 2 < 30:
            for x in steps[n+2][0]: A(x)
        A(steps[n][1][1])
    ST.at(9)
    A("s_nop 10")
    for r in range(16): A(f"v_fma_f32 v{AB+16+r}, v{vG3}, v{AA+16+r}, v{AB+16+r}")
    for g in range(4): A(f"ds_write_b128 v{vX}, {vr(AB+16+4*g,4)} offset:{1024*g}")
    for r in range(16): A(f"v_fma_f32 v{AB+r}, v{vG3}, v{AA+r}, v{AB+r}")
    A("s_waitcnt lgkmcnt(0)")
    A("s_barrier")
    for g in range(4): A(f"ds_read_b128 {vr(AA+4*g,4)}, v{vX+1} offset:{1024*g}")
    for g in range(4):
        A(f"s_waitcnt lgkmcnt({3-g})")
        for r in range(4*g, 4*g+4): A(f"v_add_f32 v{AB+r}, v{AB+r}, v{AA+r}")
        for r in range(2*g, 2*g+2): A(f"v_cvt_pk_bf16_f32 v{LB+r}, v{AB+2*r}, v{AB+2*r+1}")
        if g & 1:
            t = g >> 1
            A(f"v_permlane32_swap_b32 v{LB+4*t}, v{LB+4*t+2}")
            A(f"v_permlane32_swap_b32 v{LB+4*t+1}, v{LB+4*t+3}")
            A(f"buffer_store_dwordx4 {vr(LB+4*t,4)}, v{vOA}, {sr(sOUT,4)}, s{sVO} offen offset:{32*t} {os.environ.get('OUTF', '')}")
    A("s_branch k2_dump" if DIAG else "s_endpgm")

    A("k2_aux:")
    sCOL, sTS = 27, 40
    A(f"s_getpc_b64 {sr(sTS,2)}")
    A(f"s_add_u32 s{sTS}, s{sTS}, tab_small@rel32@lo+4")
    A(f"s_addc_u32 s{sTS+1}, s{sTS+1}, tab_small@rel32@hi+12")
    A(f"s_mov_b32 s{sTS+2}, {TS_BYTES}")
    A(f"s_mov_b32 s{sTS+3}, 0x20000")
    A(f"s_mov_b32 s{sX+2}, 401408")
    A(f"s_mov_b32 s{sX+3}, 0x20000")
    A(f"s_mul_i32 s{sCOL}, s{sXC}, 28")
    A(f"s_add_u32 s{sCOL}, s{sCOL}, s{sJ}")
    A(f"s_cmp_eq_u32 s2, 224")
    A(f"s_cselect_b32 s{sCOL}, 224, s{sCOL}")
    C_ = lambda kind, mt, u: 48 * mt + 16 * kind + 4 * u
    X = 96
    YF = 160
    U0 = 192
    WT = 212
    TM = 244
    vG = 210
    A(f"v_lshrrev_b32 v{TM}, 2, v{vL}")
    A(f"v_mul_u32_u24 v{vG+1}, {WP}, v{TM}")
    A(f"v_mul_u32_u24 v{TM}, {YB}, v{TM}")
    A(f"v_and_b32 v{TM+1}, 3, v{vL}")
    A(f"v_lshl_add_u32 v{vG}, v{TM+1}, 4, v{TM}")
    A(f"v_lshl_add_u32 v{vG+1}, v{TM+1}, 4, v{vG+1}")
    A(f"s_lshr_b32 s{sT}, s{sCOL}, 5")
    A(f"s_lshl_b32 s{sT}, s{sT}, 12")
    A(f"s_and_b32 s{sT2}, s{sCOL}, 31")
    A(f"s_lshl_b32 s{sT2}, s{sT2}, 6")
    A(f"s_add_u32 s{sT}, s{sT}, s{sT2}")
    A(f"s_lshl_b32 s{sKO}, s{sCOL}, 6")
    A(f"v_lshrrev_b32 v{TM}, 5, v{vL}")
    A(f"v_bfe_u32 v{TM+1}, v{vL}, 2, 2")
    A(f"v_lshl_add_u32 v{TM}, v{TM}, 2, v{TM+1}")
    A(f"v_lshlrev_b32 v{TM}, 6, v{TM}")
    A(f"v_bfe_u32 v{TM+1}, v{vL}, 4, 1")
    A(f"v_lshl_add_u32 v{TM}, v{TM+1}, 5, v{TM}")
    A(f"v_and_b32 v{TM+1}, 3, v{vL}")
    A(f"v_lshl_add_u32 v{TM}, v{TM+1}, 3, v{TM}")
    A(f"v_add_u32 v{TM}, {LDS_Y}, v{TM}")
    A("s_waitcnt lgkmcnt(0)")
    A("s_barrier")
    A("s_cmp_gt_u32 s2, 224")
    A("s_cbranch_scc1 k2_auxb1")
    A("s_setprio 3")
    def ydma(n):
        A(f"s_mov_b32 m0, {LDS_Y + 1024*n}")
        A(f"s_add_u32 s{sT2}, s{sT}, {WS_Y + (n>>2)*2048 + (n&3)*16*YB}")
        A(f"buffer_load_dwordx4 v{vG}, {sr(sWS,4)}, s{sT2} offen lds")
    def cld(dst, off):
        A(f"s_mov_b32 s{sT2}, {off}")
        for f in range(4): A(f"buffer_load_dwordx4 {vr(dst+4*f,4)}, v{vO16}, {sr(sTS,4)}, s{sT2} offen offset:{1024*f}")
    def wld(f):
        return [f"s_add_u32 s{sT2}, s{sKO}, {WS_W + f*16*WP}",
                f"buffer_load_dwordx4 {vr(WT+4*f,4)}, v{vG+1}, {sr(sWS,4)}, s{sT2} offen"]
    sFI = 44
    A(f"s_mul_i32 s{sFI}, s{sNT}, {2*28672}")
    def fimg(gr):
        for st_ in range(4*gr, 4*gr+4):
            A(f"s_mov_b32 m0, {LF + 2048*st_}")
            A(f"s_add_u32 s{sT2}, s{sFI}, {1024*st_}")
            A(f"buffer_load_dwordx4 v{vO16}, {sr(sTB,4)}, s{sT2} offen lds")
            A(f"s_add_u32 s{sT2}, s{sT2}, {28672-1024}")
            A(f"buffer_load_dwordx4 v{vO16}, {sr(sTB,4)}, s{sT2} offen offset:1024 lds")
    for n in range(8): ydma(n)
    for kind in range(3): cld(C_(kind, 0, 0), TS_F64 + kind * 8192)
    for f in range(0, 4):
        for x in wld(f): A(x)
    for kind in range(3): cld(C_(kind, 1, 0), TS_F64 + kind * 8192 + 4096)
    ST.at(0)
    A("s_waitcnt vmcnt(28)")
    ST.at(1)
    for p in range(2):
        for u in range(4):
            A(f"ds_read_b64_tr_b16 {vr(YF+16*p+4*u,2)}, v{TM} offset:{4096*p+1024*u}")
            A(f"ds_read_b64_tr_b16 {vr(YF+16*p+4*u+2,2)}, v{TM} offset:{4096*p+1024*u+512}")
    for f in range(4, 8):
        for x in wld(f): A(x)
    A("s_waitcnt vmcnt(20) lgkmcnt(0)")
    Yr = lambda u: vr(YF+4*u,4)
    Yi = lambda u: vr(YF+16+4*u,4)
    mf = lambda d, a, b, first=False: f"v_mfma_f32_32x32x16_bf16 {vr(d,16)}, {a}, {b}, {'0' if first else vr(d,16)}"
    cf = lambda kind, mt, u: vr(C_(kind, mt, u), 4)
    def p3(mt):
        L = []
        for u in range(4):
            L += [mf(X+32*mt, cf(0, mt, u), Yr(u), u == 0), mf(X+32*mt+16, cf(0, mt, u), Yi(u), u == 0)]
        for u in range(4):
            L += [mf(X+32*mt, cf(1, mt, u), Yi(u)), mf(X+32*mt+16, cf(2, mt, u), Yr(u))]
        return L
    Ur = lambda u: (U0 + 4*u) if u < 2 else (YF + 4*u)
    Ui = lambda u: (U0 + 8 + 4*u) if u < 2 else (YF + 16 + 4*u)
    def cmul_pack(xr0, xi0, cr, ci, dr, di):
        L = []
        for i in range(4):
            L += [f"v_mul_f32 v{TM+8+i}, v{xr0+i}, v{cr(i)}", f"v_mul_f32 v{xr0+i}, v{xr0+i}, v{ci(i)}"]
        for i in range(4):
            L += [f"v_fma_f32 v{TM+8+i}, -v{xi0+i}, v{ci(i)}, v{TM+8+i}", f"v_fma_f32 v{xr0+i}, v{xi0+i}, v{cr(i)}, v{xr0+i}"]
        L += [f"v_cvt_pk_bf16_f32 v{dr}, v{TM+8}, v{TM+9}", f"v_cvt_pk_bf16_f32 v{dr+1}, v{TM+10}, v{TM+11}",
              f"v_cvt_pk_bf16_f32 v{di}, v{xr0}, v{xr0+1}", f"v_cvt_pk_bf16_f32 v{di+1}, v{xr0+2}, v{xr0+3}"]
        return L
    def wmul(mt):
        L = []
        for g in range(4):
            w = WT + 4 * (4 * mt + g)
            for i in range(4):
                op = "v_and_b32 v{}, 0xffff0000, v{}" if i & 1 else "v_lshlrev_b32 v{}, 16, v{}"
                L += [op.format(TM + i, w + (i >> 1)), op.format(TM + 4 + i, w + 2 + (i >> 1))]
            u = 2 * mt + (g >> 1)
            L += cmul_pack(X+32*mt+4*g, X+32*mt+16+4*g, lambda i: TM + i, lambda i: TM + 4 + i, Ur(u) + 2*(g&1), Ui(u) + 2*(g&1))
        return L
    def p4(nt, us):
        L = []
        for u in us:
            L += [mf(X+32*nt, vr(Ur(u),4), cf(0, nt, u), u == 0), mf(X+32*nt+16, vr(Ui(u),4), cf(0, nt, u), u == 0)]
        for u in us:
            L += [mf(X+32*nt, vr(Ui(u),4), cf(2, nt, u)), mf(X+32*nt+16, vr(Ur(u),4), cf(1, nt, u))]
        return L
    Tr = lambda nt: YF if nt == 0 else U0
    Ti = lambda nt: YF + 16 if nt == 0 else U0 + 8
    TW = lambda nt: 48 * nt
    F32 = WT
    def twid(nt):
        L = []
        for g in range(4):
            L += cmul_pack(X+32*nt+4*g, X+32*nt+16+4*g, lambda i: TW(nt) + 4*g + i, lambda i: TW(nt) + 16 + 4*g + i, Tr(nt) + 2*g, Ti(nt) + 2*g)
        return L
    def p5(nt):
        L = []
        for t in range(2):
            L += [mf(X+32*nt, vr(F32+4*t,4), vr(Tr(nt)+4*t,4), t == 0), mf(X+32*nt+16, vr(F32+4*t,4), vr(Ti(nt)+4*t,4), t == 0)]
        for t in range(2):
            L += [mf(X+32*nt, vr(F32+16+4*t,4), vr(Ti(nt)+4*t,4)), mf(X+32*nt+16, vr(F32+8+4*t,4), vr(Tr(nt)+4*t,4))]
        return L
    sZR, sZI = 29, 30
    def outp(nt):
        L = []
        for p in range(2):
            z = X + 32*nt + 16*p; P = TW(nt) + 8*p
            for r in range(8): L.append(f"v_cvt_pk_bf16_f32 v{P+r}, v{z+2*r}, v{z+2*r+1}")
            L.append("s_nop 1")
            for t in range(2):
                L += [f"v_permlane32_swap_b32 v{P+4*t}, v{P+4*t+2}", f"v_permlane32_swap_b32 v{P+4*t+1}, v{P+4*t+3}"]
            for t in range(2):
                L.append(f"ds_write_b128 v{vG}, {vr(P+4*t,4)} offset:{4096*p+2048*nt+32*t}")
        return L
    def outst():
        A("s_waitcnt lgkmcnt(0)")
        for k in range(8): A(f"ds_read_b128 {vr(X+4*k,4)}, v{vG+1} offset:{1024*k}")
        for k in range(8):
            A(f"s_waitcnt lgkmcnt({7-k})")
            A(f"buffer_store_dwordx4 {vr(X+4*k,4)}, v{vO16}, {sr(sWS,4)}, s{sZR+(k>>2)} offen offset:{1024*(k&3)} sc1")
    for x in p3(0): A(x)
    ST.at(2)
    A("s_waitcnt vmcnt(4)")
    A("s_nop 7")
    for x in merge(p3(1), wmul(0)): A(x)
    A("s_waitcnt vmcnt(0)")
    A("s_nop 7")
    for x in merge(p4(0, (0, 1)), wmul(1)): A(x)
    for x in p4(0, (2, 3)): A(x)
    ST.at(3)
    cld(TW(0), TS_TW); cld(TW(0) + 16, TS_TW + 4096)
    A(f"s_mov_b32 s{sT2}, {TS_F32}")
    for f in range(4): A(f"buffer_load_dwordx4 {vr(F32+4*f,4)}, v{vO16}, {sr(sTS,4)}, s{sT2} offen offset:{1024*f}")
    A(f"s_mov_b32 s{sT2}, {TS_F32+4096}")
    for f in range(2): A(f"buffer_load_dwordx4 {vr(F32+16+4*f,4)}, v{vO16}, {sr(sTS,4)}, s{sT2} offen offset:{1024*f}")
    A(f"s_lshr_b32 s{sT}, s{sCOL}, 1")
    A(f"s_and_b32 s{sT2}, s{sCOL}, 1")
    A(f"s_mul_i32 s{sT2}, s{sT2}, 224")
    A(f"s_add_u32 s{sT}, s{sT}, s{sT2}")
    A(f"s_mul_i32 s{sT}, s{sT}, {ZP}")
    A(f"s_add_u32 s{sZR}, s{sT}, {WS_Z}")
    A(f"s_add_u32 s{sZI}, s{sZR}, {112*ZP}")
    A(f"s_cmp_eq_u32 s{sCOL}, 0")
    A(f"s_cselect_b32 s{sZI}, {WS_G + 0x4000}, s{sZI}")
    A(f"s_cmp_eq_u32 s{sCOL}, 224")
    A(f"s_cselect_b32 s{sZI}, {WS_G + 0x6000}, s{sZI}")
    A(f"v_and_b32 v{vG}, 31, v{vL}")
    A(f"v_lshlrev_b32 v{vG}, 6, v{vG}")
    A(f"v_lshrrev_b32 v{vG+1}, 5, v{vL}")
    A(f"v_lshl_add_u32 v{vG}, v{vG+1}, 4, v{vG}")
    A(f"v_add_u32 v{vG}, {LDS_Y}, v{vG}")
    A(f"v_add_u32 v{vG+1}, {LDS_Y}, v{vO16}")
    A("s_waitcnt vmcnt(6)")
    for x in merge(p4(1, (0, 1, 2, 3)), twid(0)): A(x)
    cld(TW(1), TS_TW + 8192); cld(TW(1) + 16, TS_TW + 12288)
    ST.at(4)
    A("s_waitcnt vmcnt(0)")
    for x in merge(p5(0), twid(1)): A(x)
    A("s_nop 1")
    for x in merge(p5(1), outp(0)): A(x)
    A("s_nop 7")
    for x in outp(1): A(x)
    outst()
    ST.at(5)
    A("s_setprio 0")
    fimg(0); fimg(1)
    A(f"s_lshl_b32 s{sT}, s{sCOL}, 7")
    A(f"s_add_u32 s{sT}, s{sT}, {WS_FZ}")
    A(f"v_mov_b32 v{TM+4}, 0")
    A(f"v_mov_b32 v{TM+5}, 1")
    A("s_mov_b64 exec, 1")
    A("s_waitcnt vmcnt(16)")
    ST.at(6)
    A(f"buffer_store_dword v{TM+5}, v{TM+4}, {sr(sWS,4)}, s{sT} offen sc1")
    A("s_mov_b64 exec, -1")
    A("s_cmp_ge_u32 s2, 224")
    A("s_cbranch_scc1 k2_auxw")
    A(f"v_lshrrev_b32 v{TM}, 3, v{vL}")
    A(f"v_and_b32 v{TM+1}, 7, v{vL}")
    A(f"v_bfe_u32 v{TM+2}, v{vL}, 4, 1")
    A(f"v_lshlrev_b32 v{TM+2}, 2, v{TM+2}")
    A(f"v_xor_b32 v{TM+1}, v{TM+1}, v{TM+2}")
    A(f"v_lshlrev_b32 v{TM+1}, 4, v{TM+1}")
    A(f"v_mul_u32_u24 v{TM+2}, {ZP}, v{TM}")
    A(f"v_add_u32 v{TM+2}, v{TM+2}, v{TM+1}")
    def image(name, lds, vaddr, srd, pitch, flag, depth):
        A(f"s_mov_b32 s{sI}, {lds}")
        A(f"{name}:")
        A(f"s_mov_b32 m0, s{sI}")
        for i in range(4):
            if i: A(f"s_add_u32 s{sT}, s{sT}, {8*pitch-1024}")
            else: A("s_nop 0")
            A(f"buffer_load_dwordx4 v{vaddr}, {srd}, s{sT} offen offset:{1024*i} {flag} lds")
        A(f"s_add_u32 s{sT}, s{sT}, {8*pitch+3072}")
        A(f"s_add_u32 s{sI}, s{sI}, 4096")
        A(f"s_waitcnt vmcnt({depth})")
        A(f"s_cmp_lt_u32 s{sI}, {lds+57344}")
        A(f"s_cbranch_scc1 {name}")
    def poll(name, lines, sl):
        A(f"s_mov_b32 s{sI}, {SPIN}")
        A(f"{name}:")
        for x in lines: A(x)
        A("s_cmp_eq_u64 vcc, -1")
        A(f"s_cbranch_scc1 {name}_done")
        A(f"s_sub_u32 s{sI}, s{sI}, 1")
        A(f"s_sleep {sl}")
        A(f"s_cmp_lg_u32 s{sI}, 0")
        A(f"s_cbranch_scc1 {name}")
        A(f"{name}_done:")
    for gr in range(2, 7):
        fimg(gr)
        A(f"s_waitcnt vmcnt({os.environ.get('DF', 16)})")
    A(f"s_and_b32 s{sT}, s{sJ}, 3")
    A(f"s_mul_i32 s{sT}, s{sT}, {112*896}")
    A(f"s_lshl_b32 s{sT2}, s{sNT}, 7")
    A(f"s_add_u32 s{sT}, s{sT}, s{sT2}")
    A(f"v_mul_u32_u24 v8, 896, v{vL}")
    A(f"buffer_load_dword v9, v8, {sr(sX,4)}, s{sT} offen")
    A(f"s_add_u32 s{sT}, s{sT}, {48*896}")
    A(f"buffer_load_dword v10, v8, {sr(sX,4)}, s{sT} offen")
    ST.at(7)
    A(f"v_lshlrev_b32 v4, 7, v{vL}")
    A(f"v_add_u32 v5, 0x6000, v4")
    A(f"v_min_u32 v5, {224*128}, v5")
    A(f"s_mov_b32 s{sI}, {SPIN}")
    A(f"s_mov_b32 s{sT}, {WS_FZ}")
    A(f"s_mov_b32 s{sT2}, {WS_FZ + 0x2000}")
    A(f"s_mov_b32 s{sKO}, {WS_FZ + 0x4000}")
    A("k2_pz:")
    A(f"buffer_load_dword v0, v4, {sr(sWS,4)}, s{sT} offen sc1")
    A(f"buffer_load_dword v1, v4, {sr(sWS,4)}, s{sT2} offen sc1")
    A(f"buffer_load_dword v2, v4, {sr(sWS,4)}, s{sKO} offen sc1")
    A(f"buffer_load_dword v3, v5, {sr(sWS,4)}, s{sT} offen sc1")
    A("s_waitcnt vmcnt(0)")
    A("v_and_b32 v0, v0, v1")
    A("v_and_b32 v2, v2, v3")
    A("v_and_b32 v0, v0, v2")
    A("v_cmp_eq_u32 vcc, 0, v0")
    A("s_nop 1")
    A("s_and_b64 exec, exec, vcc")
    A("s_cbranch_scc0 k2_pz_done")
    A(f"s_sub_u32 s{sI}, s{sI}, 1")
    A(f"s_sleep {os.environ.get('ZSL', 6)}")
    A(f"s_cmp_gt_i32 s{sI}, 0")
    A("s_cbranch_scc1 k2_pz")
    A("k2_pz_done:")
    A("s_mov_b64 exec, -1")
    ST.at(8)
    A(f"s_lshl_b32 s{sT}, s{sMT}, 7")
    A(f"s_add_u32 s{sT}, s{sT}, {WS_Z}")
    image("k2_imz", LZ, TM+2, sr(sWS,4), ZP, os.environ.get("ZF", "sc1"), int(os.environ.get("DZ", 24)))
    A("k2_auxw:")
    A("s_waitcnt vmcnt(0)")
    ST.at(9)
    A("k2_auxb1:")
    A(f"v_lshrrev_b32 v{vWD}, 3, v{vL}")
    A(f"v_and_b32 v{vT+6}, 7, v{vL}")
    A(f"v_bfe_u32 v{vT+7}, v{vL}, 4, 1")
    A(f"v_lshlrev_b32 v{vT+7}, 2, v{vT+7}")
    A(f"v_xor_b32 v{vT+6}, v{vT+6}, v{vT+7}")
    A(f"v_mul_u32_u24 v{vWD}, 896, v{vWD}")
    A(f"v_lshl_add_u32 v{vWD}, v{vT+6}, 4, v{vWD}")
    A("s_barrier")
    A("s_barrier")
    A("s_cmp_ge_u32 s2, 224")
    A("s_cbranch_scc1 k2_chk")
    A(f"s_lshl_b32 s{sT}, s{sNT}, 7")
    A(f"s_add_u32 s{sT}, s{sT}, {64*896}")
    for i in range(48):
        if i % 4 == 0: A(f"s_mov_b32 m0, {RED + 1024*i}")
        if i: A(f"s_add_u32 s{sT}, s{sT}, {8*896-1024 if i % 4 else 8*896+3072}")
        if i == 47: A("s_mov_b32 exec_hi, 0x00ffffff")
        A(f"buffer_load_dwordx4 v{vWD}, {sr(sX,4)}, s{sT} offen offset:{1024*(i%4)} lds")
    A("s_mov_b32 exec_hi, -1")
    A(f"s_mov_b32 s{sWS_}, s{sT}")
    A("s_branch k2_chk")
    A("k2_auxfb:")
    A("s_waitcnt vmcnt(0)")
    A("s_barrier")
    A("s_barrier")
    A("s_branch k2_auxb1")
    A("k2_auxp3:")
    A(f"s_mov_b32 m0, {RED + 1024*44}")
    A("s_mov_b32 exec_lo, 0")
    A("s_mov_b32 exec_hi, 0xff000000")
    A(f"buffer_load_dwordx4 v{vWD}, {sr(sX,4)}, s{sWS_} offen offset:3072 lds")
    A("s_mov_b64 exec, -1")
    A(f"s_lshl_b32 s{sT}, s{sNT}, 7")
    for i in range(8):
        if i % 4 == 0: A(f"s_mov_b32 m0, {LW + 1024*i}")
        if i: A(f"s_add_u32 s{sT}, s{sT}, {8*896-1024 if i % 4 else 8*896+3072}")
        A(f"buffer_load_dwordx4 v{vWD}, {sr(sX,4)}, s{sT} offen offset:{1024*(i%4)} lds")
    A(f"v_and_b32 v4, 31, v{vL}")
    A("v_lshlrev_b32 v4, 7, v4")
    A(f"s_lshl_b32 s{sT}, s{sMT}, 12")
    A(f"s_add_u32 s{sT}, s{sT}, {WS_FO}")
    ST.at(10)
    poll("k2_po", [f"buffer_load_dword v0, v4, {sr(sWS,4)}, s{sT} offen sc1", "s_waitcnt vmcnt(0)", "v_cmp_ne_u32 vcc, 0, v0", "s_nop 1"], int(os.environ.get("OSL", 2)))
    ST.at(11)
    A("s_barrier")
    if DIAG: A("k2_dump:")
    ST.dump(sWS, sW, 5, 250)
    A("k2_end:")
    A("s_endpgm")
    body = A.L[loop_start:loop_end]
    rep = check_seq(body + body)
    assert not rep, rep
    return A.L, NV, 102 if DIAG else 64
```

```python
import re

TRANS = ("v_exp_f32", "v_log_f32", "v_rcp_f32", "v_rsq_f32", "v_sqrt_f32", "v_sin_f32", "v_cos_f32")

def regs_of(tok):
    tok = tok.strip()
    tok = re.sub(r"^-", "", tok)
    m = re.match(r"^abs\((.*)\)$", tok) or re.match(r"^\|(.*)\|$", tok)
    if m: tok = m.group(1)
    m = re.match(r"^([vsa])\[(\d+):(\d+)\]$", tok)
    if m: return {(m.group(1), i) for i in range(int(m.group(2)), int(m.group(3)) + 1)}
    m = re.match(r"^([vsa])(\d+)$", tok)
    if m: return {(m.group(1), int(m.group(2)))}
    if tok in ("vcc", "vcc_lo", "vcc_hi"): return {("vcc", 0)}
    if tok in ("exec", "exec_lo", "exec_hi"): return {("exec", 0)}
    if tok == "m0": return {("m0", 0)}
    return set()

class I:
    def __init__(self, text):
        self.text = text
        t = text.split(";")[0].strip()
        self.label = t.endswith(":")
        self.directive = t.startswith(".")
        self.mn = "" if (self.label or self.directive or not t) else t.split()[0]
        rest = t[len(self.mn):].strip() if self.mn else ""
        ops = []
        depth = 0; cur = ""
        for ch in rest:
            if ch == "[": depth += 1
            if ch == "]": depth -= 1
            if ch == "," and depth == 0: ops.append(cur.strip()); cur = ""
            else: cur += ch
        if cur.strip(): ops.append(cur.strip())
        if ops:
            parts = ops[-1].split()
            ops[-1] = parts[0]; self.mods = parts[1:]
        else: self.mods = []
        self.ops = ops
        mn = self.mn
        self.is_mfma = mn.startswith("v_mfma") or mn.startswith("v_smfmac")
        self.is_smf = mn.startswith("v_smfmac")
        self.is_valu = mn.startswith("v_") and not self.is_mfma
        self.is_trans = any(mn.startswith(x) for x in TRANS)
        self.is_vmem = mn.startswith(("buffer_", "global_", "flat_"))
        self.is_ds = mn.startswith("ds_")
        self.is_salu = mn.startswith("s_")
        self.is_perml = mn.startswith("v_permlane")
        self.is_rdl = mn.startswith(("v_readfirstlane", "v_readlane"))
        self.is_lds_dma = self.is_vmem and ("lds" in self.mods or "_lds_" in mn)
        self.is_store = self.is_vmem and ("store" in mn or "atomic" in mn)
        R = [regs_of(o) for o in ops]
        self.defs = set(); self.uses = set(); self.srcC = set(); self.srcAB = set(); self.sdata = set()
        if self.is_mfma:
            self.defs = R[0]; self.srcAB = R[1] | R[2]
            if self.is_smf: self.srcC = set(R[0]); self.srcAB |= R[3]
            else: self.srcC = R[3]
            self.uses = self.srcAB | self.srcC
            self.passes = 8 if "32x32" in mn else 4
        elif self.is_valu:
            if mn.startswith("v_cmp"):
                self.defs = R[0]; self.uses = set().union(*R[1:])
            elif self.is_perml:
                self.defs = R[0] | R[1]; self.uses = R[0] | R[1]
            else:
                self.defs = R[0]; self.uses = set().union(*R[1:]) if len(R) > 1 else set()
                if mn.startswith(("v_fmac", "v_mac", "v_dot2c", "v_writelane")) or "UNUSED_PRESERVE" in text: self.uses |= R[0]
                if mn.startswith(("v_add_co", "v_sub_co", "v_addc_co")): self.defs |= R[1]
                if mn.startswith("v_cndmask") and len(ops) == 3: self.uses |= {("vcc", 0)}
        elif self.is_vmem:
            if self.is_lds_dma:
                self.uses = set().union(*R) | {("m0", 0)}
            elif not ops:
                pass
            elif self.is_store:
                self.uses = set().union(*R)
                self.sdata = R[0] if mn.startswith("buffer_") else R[1]
            else:
                self.defs = R[0]; self.uses = set().union(*R[1:])
        elif self.is_ds:
            if mn.startswith(("ds_read", "ds_bpermute", "ds_permute", "ds_swizzle")) or "_rtn" in mn:
                self.defs = R[0]; self.uses = set().union(*R[1:])
            else:
                self.uses = set().union(*R)
        elif self.is_salu:
            if mn.startswith(("s_cmp", "s_waitcnt", "s_nop", "s_barrier", "s_branch", "s_cbranch", "s_endpgm", "s_setprio", "s_sleep")):
                self.uses = set().union(*R) if R else set()
            else:
                self.defs = R[0] if R else set(); self.uses = set().union(*R[1:]) if len(R) > 1 else set()
                if "saveexec" in mn: self.defs |= {("exec", 0)}
    def states(self):
        if self.label or self.directive or not self.mn: return 0
        if self.mn == "s_nop": return int(self.ops[0], 0) + 1
        return 1

def need(p, c):
    n = 0
    vp = {r for r in p.defs if r[0] in "va"}
    sp = {r for r in p.defs if r[0] in ("s", "vcc")}
    if p.is_valu:
        if c.is_mfma and vp & c.uses: n = max(n, 2)
        if c.is_perml and vp & c.uses: n = max(n, 2)
        if c.is_rdl and vp & c.uses: n = max(n, 1)
        if p.is_trans and c.is_valu and not c.is_trans and vp & c.uses: n = max(n, 1)
        if p.is_trans and (c.is_vmem or c.is_ds) and vp & c.uses: n = max(n, 1)
        if "dpp" in c.text and vp & c.uses: n = max(n, 2)
        if "sdwa" in p.text and c.is_valu and vp & (c.uses | c.defs): n = max(n, 1)
        if sp & c.uses:
            if c.is_vmem: n = max(n, 5)
            elif c.is_valu: n = max(n, 2)
            elif c.is_salu: n = max(n, 2)
        if ("exec", 0) in p.defs and c.is_mfma: n = max(n, 4)
    if p.is_mfma:
        big = {8: 12, 4: 8}[p.passes]
        if c.is_mfma:
            if vp & c.srcAB: n = max(n, big)
            if vp & c.srcC and not (c.srcC == vp and c.passes == p.passes): n = max(n, {8: 10, 4: 6}[p.passes])
            if vp & c.defs and not (c.srcC == vp) : n = max(n, 0)
        elif c.is_valu or c.is_vmem or c.is_ds:
            if vp & (c.uses | c.defs): n = max(n, big)
        if c.is_valu and (p.srcC & c.defs): n = max(n, {8: 7, 4: 3}[p.passes])
    if p.is_store and len(p.sdata) >= 3 and (p.sdata & c.defs):
        n = max(n, 2 if c.is_valu else 1)
    if p.is_salu and ("m0", 0) in p.defs and c.is_lds_dma: n = max(n, 1)
    if p.is_salu and ("exec", 0) in p.defs and (c.is_perml or "dpp" in c.text): n = max(n, 1)
    return n

WINDOW = 20
def fix_hazards(lines, report=None):
    out = []
    for t in lines:
        c = I(t)
        if c.mn:
            dist = 0; req = 0
            for p in reversed(out):
                if dist > WINDOW: break
                if p.mn:
                    n = need(p, c)
                    if n > dist: req = max(req, n - dist)
                dist += p.states()
            while req > 0:
                k = min(req, 16)
                out.append(I(f"    s_nop {k-1}"))
                if report is not None: report.append((k, t.strip()))
                req -= k
        out.append(c)
    return [o.text for o in out]

def check_seq(lines):
    rep = []
    fix_hazards(lines, rep)
    return rep

class Asm:
    def __init__(self): self.L = []
    def __call__(self, s):
        for l in s.split("\n"):
            if l.strip(): self.L.append("    " + l.strip() if not l.strip().endswith(":") else l.strip())
    def label(self, n): self.L.append(n + ":")
    def mark(self): return len(self.L)
def vr(a, n=1): return f"v{a}" if n == 1 else f"v[{a}:{a+n-1}]"
def sr(a, n=1): return f"s{a}" if n == 1 else f"s[{a}:{a+n-1}]"

import os
DIAG = bool(os.environ.get("DIAG"))
WS_DBG = 0xF00000
class Stamps:
    def __init__(self, A, kidx): self.A = A; self.k = kidx; self.n = 0
    def begin(self):
        if DIAG:
            self.A("s_memrealtime s[64:65]"); self.A("s_memtime s[66:67]")
    def at(self, i):
        if DIAG: self.A(f"s_memtime s[{70+2*i}:{71+2*i}]")
    def dump(self, srd, swave, nwaves, vtmp, wait=True):
        if not DIAG: return
        A = self.A
        if wait: A("s_waitcnt vmcnt(0)")
        A("s_memrealtime s[68:69]"); A("s_memtime s[98:99]")
        A(f"s_mul_i32 s100, s2, {nwaves}")
        A(f"s_add_u32 s100, s100, s{swave}")
        A("s_lshl_b32 s100, s100, 7")
        A(f"s_add_u32 s100, s100, {WS_DBG + self.k * 0x40000}")
        A("s_waitcnt lgkmcnt(0)")
        A(f"v_mov_b32 v{vtmp}, 0")
        A("s_mov_b64 exec, 1")
        for j, r in enumerate([64, 68, 66, 98] + [70 + 2 * i for i in range(14)]):
            A(f"v_mov_b32 v{vtmp+1}, s{r}")
            A(f"buffer_store_dword v{vtmp+1}, v{vtmp}, s[{srd}:{srd+3}], s100 offen offset:{4*j}")
        A("s_getreg_b32 s101, hwreg(HW_REG_HW_ID)")
        A(f"v_mov_b32 v{vtmp+1}, s101")
        A(f"buffer_store_dword v{vtmp+1}, v{vtmp}, s[{srd}:{srd+3}], s100 offen offset:{4*18}")
        A("s_getreg_b32 s101, hwreg(HW_REG_XCC_ID)")
        A(f"v_mov_b32 v{vtmp+1}, s101")
        A(f"buffer_store_dword v{vtmp+1}, v{vtmp}, s[{srd}:{srd+3}], s100 offen offset:{4*19}")
        A("s_mov_b64 exec, -1")
```

```python
from asmlib import *
import math, os, struct
WS_Q, WS_K, WS_V, WS_Y, WS_W, WS_O, WS_Z, WS_G = 0x0, 0x200000, 0x400000, 0x600000, 0x840000, 0xA80000, 0xC80000, 0xE50000
WS_FO, WS_FZ, WS_F1 = 0xE60000, 0xE90000, 0xEA0000
SPIN = 200000
YB, WP, ZP = 32896, 16512, 4224
WS_BYTES = 0x1000000
def f2u(x): return struct.unpack("<I", struct.pack("<f", x))[0]
QSCALE = f2u(28 ** -0.5 * math.log2(math.e))
STF = os.environ.get('STF', 'sc1')
STF0 = os.environ.get('STF0', STF)
STFW = os.environ.get('STFW', STF)
WB = int(os.environ.get('WB', -1))
LA = 114688
NB = 12
K1_LDS = 163840
WPOS = int(os.environ.get("WPOS", 5))

def get_tag(A, lab, stmp, vt):
    A("s_load_dwordx2 s[6:7], s[4:5], 0")
    A(f"s_mov_b32 s{stmp}, {SPIN}")
    A("s_waitcnt lgkmcnt(0)")
    A("s_cmp_lg_u32 s6, 0")
    A(f"s_cbranch_scc1 {lab}_done")
    A(f"v_mov_b32 v{vt}, 0")
    A(f"{lab}:")
    A(f"global_load_dwordx2 {vr(vt+2,2)}, v{vt}, s[4:5] sc1")
    A(f"s_sub_u32 s{stmp}, s{stmp}, 1")
    A("s_waitcnt vmcnt(0)")
    A(f"v_readfirstlane_b32 s6, v{vt+2}")
    A(f"v_readfirstlane_b32 s7, v{vt+3}")
    A("s_cmp_lg_u32 s6, 0")
    A(f"s_cbranch_scc1 {lab}_done")
    A("s_sleep 4")
    A(f"s_cmp_lg_u32 s{stmp}, 0")
    A(f"s_cbranch_scc1 {lab}")
    A(f"{lab}_done:")

def gen_k1():
    A = Asm()
    sX, sB, sWS, sWR, sWI = 8, 12, 16, 20, 24
    sPC = 28
    sW, sMT, sNT, sC, sCA, sCB, sPITCH, sP4, sT, sT2, sBB = 30, 31, 32, 33, 34, 35, 36, 37, 38, 39, 40
    sGS, sLA, sLB, sP64, sP384, sJ, sW8 = 41, 42, 43, 44, 45, 46, 47
    sW0, sWST, sC0 = 48, 52, 53
    sGW, sPAR, sB2 = 60, 58, 59
    sDB = 4
    vL, vA0, vA1, vB = 64, 65, 66, 67
    vRA, vRB = 68, 72
    FR = 76
    MB = 124
    WL, vGW = 76, 100
    vT = 172
    vWO, vST = 188, 189
    PK = 192
    vPF = 224
    NV = 228
    D = 3

    A("s_cmp_ge_u32 s2, 256")
    A("s_cbranch_scc1 k2_end")
    ST = Stamps(A, 0); ST.begin()
    A(f"s_load_dwordx2 {sr(sX,2)}, s[0:1], 0")
    A(f"s_load_dwordx2 {sr(sB,2)}, s[0:1], 32")
    A(f"s_load_dwordx2 {sr(sWS,2)}, s[0:1], 72")
    A(f"s_load_dwordx2 {sr(sWR,2)}, s[0:1], 8")
    A(f"s_load_dwordx2 {sr(sWI,2)}, s[0:1], 16")
    A(f"s_load_dwordx2 {sr(sGW,2)}, s[0:1], 48")
    A(f"s_load_dwordx2 {sr(sDB,2)}, s[0:1], 64")
    A(f"s_getpc_b64 {sr(sPC,2)}")
    A("k1_pc:")
    A(f"v_and_b32 v{vL}, 63, v0")
    A(f"v_lshrrev_b32 v{vT}, 6, v0")
    A(f"v_mul_u32_u24 v{vT+1}, 18, v{vT}")
    A(f"v_add_lshl_u32 v{vT+1}, v{vT+1}, v{vL}, 7")
    A("s_mov_b64 exec, 0x3ffff")
    A(f"global_load_dword v{vPF}, v{vT+1}, {sr(sPC,2)}")
    A("s_mov_b64 exec, -1")
    A(f"v_readfirstlane_b32 s{sW8}, v{vT}")
    A(f"s_lshr_b32 s{sJ}, s2, 3")
    A(f"s_and_b32 s{sT}, s{sJ}, 3")
    A(f"s_lshr_b32 s{sT2}, s{sJ}, 2")
    A(f"s_bfe_u32 s{sMT}, s2, 0x20001")
    A(f"s_lshl_b32 s{sMT}, s{sMT}, 2")
    A(f"s_add_u32 s{sMT}, s{sMT}, s{sT}")
    A(f"s_and_b32 s{sNT}, s2, 1")
    A(f"s_lshl_b32 s{sNT}, s{sNT}, 3")
    A(f"s_add_u32 s{sNT}, s{sNT}, s{sT2}")
    A(f"s_and_b32 s{sPAR}, s{sT2}, 1")
    A(f"s_lshr_b32 s{sT2}, s{sT2}, 1")
    A(f"s_add_u32 s{sC}, s{sT}, s{sT2}")
    A(f"s_lshl_b32 s{sC}, s{sC}, 1")
    A(f"s_cmp_ge_u32 s{sC}, 7")
    A(f"s_cselect_b32 s{sT}, 7, 0")
    A(f"s_sub_u32 s{sC}, s{sC}, s{sT}")
    A(f"s_and_b32 s{sW}, s{sW8}, 3")
    A(f"s_lshl_b32 s{sBB}, s{sMT}, 1")
    A(f"s_add_u32 s{sBB}, s{sBB}, s{sPAR}")
    A(f"s_lshl_b32 s{sBB}, s{sBB}, 1")
    A(f"s_and_b32 s{sT}, s{sW}, 1")
    A(f"s_add_u32 s{sBB}, s{sBB}, s{sT}")
    A(f"s_xor_b32 s{sB2}, s{sBB}, 2")
    A(f"s_movk_i32 s{sPITCH}, 1024")
    A(f"s_cmp_ge_u32 s{sNT}, 12")
    A(f"s_cselect_b32 s{sPITCH}, s{sPITCH}, 2688")
    A(f"s_cselect_b32 s{sGS}, 64, 56")
    A(f"s_lshl_b32 s{sLA}, s{sT}, 12")
    A(f"s_add_u32 s{sLA}, s{sLA}, {LA}")
    A(f"s_cmp_lt_u32 s{sW8}, 4")
    A("s_cbranch_scc1 k1_comp")
    A(f"s_mul_i32 s{sT}, s{sNT}, 224")
    A(f"s_lshl_b32 s{sT2}, s{sNT}, 8")
    A(f"s_sub_u32 s{sT2}, s{sT2}, 3072")
    A(f"s_cmp_ge_u32 s{sNT}, 12")
    A(f"s_cselect_b32 s{sCB}, s{sT2}, s{sT}")
    A(f"s_lshl_b32 s{sP4}, s{sPITCH}, 2")
    A(f"s_sub_u32 s{sP4}, s{sP4}, 1024")
    A(f"s_lshl_b32 s{sP64}, s{sPITCH}, 6")
    A(f"s_mul_i32 s{sP384}, s{sP64}, 7")
    A(f"s_lshl_b32 s{sT}, s{sC}, 2")
    A(f"s_add_u32 s{sT}, s{sT}, s{sW}")
    A(f"s_lshl_b32 s{sT}, s{sT}, 4")
    A(f"s_mul_i32 s{sT}, s{sT}, s{sPITCH}")
    A(f"s_add_u32 s{sCB}, s{sCB}, s{sT}")
    A(f"s_mul_i32 s{sCA}, s{sBB}, 896")
    A(f"s_lshl_b32 s{sT}, s{sC}, 7")
    A(f"s_add_u32 s{sCA}, s{sCA}, s{sT}")
    A(f"s_lshr_b32 s{sT}, s{sW}, 1")
    A(f"s_mul_i32 s{sT2}, s{sT}, {2*458752}")
    A(f"s_add_u32 s{sCA}, s{sCA}, s{sT2}")
    A(f"s_lshl_b32 s{sT}, s{sT}, 11")
    A(f"s_add_u32 s{sLA}, s{sLA}, s{sT}")
    A(f"s_lshl_b32 s{sLB}, s{sW}, 12")
    A(f"v_lshrrev_b32 v{vT}, 3, v{vL}")
    A(f"v_mul_u32_u24 v{vA0}, 57344, v{vT}")
    A(f"v_lshrrev_b32 v{vT+1}, 4, v{vL}")
    A(f"v_and_b32 v{vT+3}, 7, v{vL}")
    A(f"v_xor_b32 v{vT+3}, v{vT+3}, v{vT+1}")
    A(f"v_lshl_add_u32 v{vA0}, v{vT+3}, 4, v{vA0}")
    A(f"v_xor_b32 v{vA1}, 64, v{vA0}")
    A(f"v_mul_u32_u24 v{vB}, s{sPITCH}, v{vT+1}")
    A(f"v_bfe_u32 v{vT+3}, v{vL}, 2, 2")
    A(f"v_xor_b32 v{vT+3}, v{vT+3}, v{vT+1}")
    A(f"v_lshlrev_b32 v{vT+3}, 2, v{vT+3}")
    A(f"v_and_or_b32 v{vT+3}, v{vL}, 3, v{vT+3}")
    A(f"v_lshl_add_u32 v{vB}, v{vT+3}, 4, v{vB}")
    A(f"s_getpc_b64 {sr(56,2)}")
    A("s_add_u32 s56, s56, tab_fwd@rel32@lo+4")
    A("s_addc_u32 s57, s57, tab_fwd@rel32@hi+12")
    A(f"s_mov_b32 s{sX+2}, 1835008")
    A(f"s_mov_b32 s{sX+3}, 0x20000")
    A(f"s_mov_b32 s{sB+2}, 458752")
    A(f"s_mov_b32 s{sB+3}, 0x20000")
    A(f"s_cmp_ge_u32 s{sNT}, 12")
    A(f"s_cselect_b32 s{sT}, 16, 14")
    A(f"s_cmp_eq_u32 s{sNT}, 15")
    A(f"s_cselect_b32 s{sT}, 12, s{sT}")
    A(f"v_cmp_gt_u32 s[54:55], s{sT}, v{vT+3}")
    A(f"s_mov_b32 s{sC0}, s{sC}")
    A("s_waitcnt lgkmcnt(0) ; WSB")
    A(f"s_cmp_ge_u32 s{sNT}, 12")
    A(f"s_cselect_b32 s{sB}, s56, s{sB}")
    A(f"s_cselect_b32 s{sB+1}, s57, s{sB+1}")
    A(f"s_cselect_b32 s{sB+2}, s{sB+2}, 1204224")
    Q = []
    def issue(n):
        A(f"s_add_u32 m0, s{sLA}, {8192*(n%6)}")
        A(f"s_add_u32 s{sT}, s{sCA}, 457728")
        A(f"buffer_load_dwordx4 v{vA0}, {sr(sX,4)}, s{sCA} offen lds")
        A(f"buffer_load_dwordx4 v{vA1}, {sr(sX,4)}, s{sT} offen offset:1024 lds")
        Q.extend([n, n])
        if n < 7:
            A(f"s_add_u32 m0, s{sLB}, {16384*n}")
            A("s_mov_b64 exec, s[54:55]")
            for i in range(4):
                if i == 0: so = sCB
                elif i == 1: A(f"s_add_u32 s{sT}, s{sCB}, s{sP4}"); so = sT
                else: A(f"s_add_u32 s{sT}, s{sT}, s{sP4}"); so = sT
                A(f"buffer_load_dwordx4 v{vB}, {sr(sB,4)}, s{so} offen offset:{1024*i} lds")
            A("s_mov_b64 exec, -1")
            Q.extend([n] * 4)
        if n == 13: return
        A(f"s_add_u32 s{sCA}, s{sCA}, 128")
        if n < 6: A(f"s_add_u32 s{sCB}, s{sCB}, s{sP64}")
        A(f"s_add_u32 s{sC}, s{sC}, 1")
        A(f"s_cmp_eq_u32 s{sC}, 7")
        A(f"s_cselect_b32 s{sT}, 896, 0")
        if n < 6: A(f"s_cselect_b32 s{sT2}, s{sP384}, 0")
        A(f"s_cselect_b32 s{sC}, 0, s{sC}")
        A(f"s_sub_u32 s{sCA}, s{sCA}, s{sT}")
        if n < 6: A(f"s_sub_u32 s{sCB}, s{sCB}, s{sT2}")
        if n == 6:
            A(f"s_mul_i32 s{sT}, s{sPAR}, {-4*896}")
            A(f"s_add_u32 s{sCA}, s{sCA}, s{sT}")
            A(f"s_add_u32 s{sCA}, s{sCA}, {2*896}")
    def wait_for(tag):
        if tag not in Q: return
        last = max(i for i, t in enumerate(Q) if t == tag)
        A(f"s_waitcnt vmcnt({len(Q) - 1 - last})")
        del Q[:last + 1]
    ST.at(0)
    issue(0)
    A(f"s_mov_b32 s{sGW+2}, 896")
    A(f"s_mov_b32 s{sGW+3}, 0x20000")
    A(f"s_cmp_lg_u32 s{sNT}, 15")
    A("s_cbranch_scc1 k1_nog")
    A(f"v_and_b32 v{vT+4}, 15, v{vL}")
    A(f"v_lshlrev_b32 v{vT+5}, 1, v{vT+4}")
    A(f"s_lshl_b32 s{sT}, s{sW}, 5")
    A(f"s_lshl_b32 s{sT2}, s{sC0}, 7")
    A(f"s_add_u32 s{sT}, s{sT}, s{sT2}")
    for i in range(7):
        A(f"buffer_load_ushort v{vGW+i}, v{vT+5}, {sr(sGW,4)}, s{sT} offen")
        if i < 6:
            A(f"s_add_u32 s{sT}, s{sT}, 128")
            A(f"s_cmp_ge_u32 s{sT}, 896")
            A(f"s_cselect_b32 s{sT2}, 896, 0")
            A(f"s_sub_u32 s{sT}, s{sT}, s{sT2}")
    A(f"v_and_b32 v{vT+5}, 3, v{vL}")
    A(f"v_xor_b32 v{vT+5}, 3, v{vT+5}")
    A(f"v_lshlrev_b32 v{vT+5}, 6, v{vT+5}")
    A(f"v_lshl_add_u32 v{vGW+8}, v{vT+4}, 8, v{vT+5}")
    A(f"v_add_u32 v{vGW+8}, s{sLB}, v{vGW+8}")
    A(f"v_add_u32 v{vGW+9}, 0x10000, v{vGW+8}")
    A("k1_nog:")
    issue(1)
    ST.at(1)
    for r in (sWS, sWR, sWI):
        A(f"s_mov_b32 s{r+2}, {WS_BYTES if r == sWS else 921600}")
        A(f"s_mov_b32 s{r+3}, 0x20000")
    A(f"s_lshr_b32 s{sT}, s2, 4")
    A(f"s_bfe_u32 s{sT2}, s2, 0x20002")
    A(f"s_lshl_b32 s{sT2}, s{sT2}, 1")
    A(f"s_and_b32 s{sW0}, s{sW}, 1")
    A(f"s_add_u32 s{sT2}, s{sT2}, s{sW0}")
    A(f"s_lshl_b32 s{sWST}, s{sT}, 3")
    A(f"s_add_u32 s{sWST}, s{sWST}, s{sT2}")
    A(f"s_mul_i32 s{sWST}, s{sWST}, {WP}")
    A(f"s_lshl_b32 s{sW0}, s{sT}, 5")
    A(f"s_add_u32 s{sW0}, s{sW0}, s{sT2}")
    A(f"s_mul_i32 s{sW0}, s{sW0}, 1800")
    A(f"s_and_b32 s{sT}, s2, 3")
    A(f"s_lshl_b32 s{sT}, s{sT}, 1")
    A(f"s_lshr_b32 s{sT2}, s{sW}, 1")
    A(f"s_add_u32 s{sGS}, s{sT}, s{sT2}")
    A(f"s_lshl_b32 s{sT2}, s{sGS}, 6")
    A(f"s_add_u32 s{sW0}, s{sW0}, s{sT2}")
    for i in range(1, 4): A(f"s_add_u32 s{sW0+i}, s{sW0}, {14400*i}")
    A(f"s_lshl_b32 s{sT2}, s{sGS}, 11")
    A(f"s_add_u32 s{sWST}, s{sWST}, s{sT2}")
    A(f"s_add_u32 s{sWST}, s{sWST}, {WS_W}")
    A(f"v_lshrrev_b32 v{vT}, 5, v{vL}")
    A(f"v_mul_u32_u24 v{vT}, 900, v{vT}")
    A(f"v_and_b32 v{vWO}, 31, v{vL}")
    A(f"v_lshl_add_u32 v{vWO}, v{vWO}, 1, v{vT}")
    A(f"v_lshlrev_b32 v{vST}, 4, v{vL}")
    A(f"v_and_b32 v{vT+6}, 3, v{vL}")
    A(f"v_lshlrev_b32 v{vT+6}, 6, v{vT+6}")
    A(f"v_and_or_b32 v{vT+6}, v{vL}, 60, v{vT+6}")
    A(f"s_and_b32 s{sT}, s{sNT}, 3")
    A(f"s_lshl_b32 s{sT}, s{sT}, 2")
    A(f"s_and_b32 s{sT2}, s{sW}, 2")
    A(f"s_add_u32 s{sT}, s{sT}, s{sT2}")
    A(f"s_lshl_b32 s{sT}, s{sT}, 6")
    A(f"s_lshl_b32 s{sT2}, s{sMT}, 1")
    A(f"s_and_b32 s{sB2}, s{sW}, 1")
    A(f"s_add_u32 s{sT2}, s{sT2}, s{sB2}")
    A(f"s_cmp_ge_u32 s{sNT}, 4")
    A(f"s_cselect_b32 s{sT2}, s{sT2}, s{sBB}")
    A(f"s_add_u32 s{sT}, s{sT}, s{sT2}")
    A(f"s_lshl_b32 s{sT}, s{sT}, 11")
    A(f"s_lshr_b32 s{sT2}, s{sNT}, 2")
    A(f"s_lshl_b32 s{sT2}, s{sT2}, 21")
    A(f"s_add_u32 s{sB2}, s{sT}, s{sT2}")
    A(f"s_add_u32 s{sC0}, s{sB2}, {64*2048}")
    A(f"s_lshl_b32 s{sT}, s{sNT}, 1")
    A(f"s_lshr_b32 s{sT2}, s{sW}, 1")
    A(f"s_add_u32 s{sPC}, s{sT}, s{sT2}")
    A(f"s_lshl_b32 s{sT}, s{sPC}, 12")
    A(f"s_mul_i32 s{sT2}, s{sBB}, {YB}")
    A(f"s_add_u32 s{sT}, s{sT}, s{sT2}")
    A(f"s_add_u32 s{sT}, s{sT}, {WS_Y - 24*4096}")
    A(f"s_add_u32 s{sT2}, s{sT}, 2048")
    A(f"s_cmp_ge_u32 s{sNT}, 12")
    A(f"s_cselect_b32 s{sB2}, s{sT}, s{sB2}")
    A(f"s_cselect_b32 s{sC0}, s{sT2}, s{sC0}")
    A(f"s_lshl_b32 s{sT}, s{sW}, 12")
    A(f"v_add_u32 v{vT+7}, s{sT}, v{vST}")
    def prefetches():
        A(f"s_load_dwordx2 {sr(sGW,2)}, s[0:1], 40")
        A(f"s_getpc_b64 {sr(56,2)}")
        A("s_add_u32 s56, s56, tab_inv@rel32@lo+4")
        A("s_addc_u32 s57, s57, tab_inv@rel32@hi+12")
        A(f"s_mov_b32 s{sGW+2}, 401408")
        A(f"s_lshl_b32 s{sT}, s2, 1")
        A(f"s_lshr_b32 s{sT2}, s{sW}, 1")
        A(f"s_add_u32 s{sT}, s{sT}, s{sT2}")
        A(f"s_mul_i32 s{sT}, s{sT}, {7*128}")
        A(f"v_lshl_add_u32 v{vT}, v{vL}, 7, s{sT}")
        A("s_waitcnt lgkmcnt(0)")
        A(f"s_bitcmp1_b32 s{sW}, 0")
        A(f"s_cselect_b32 s{sGW}, s56, s{sGW}")
        A(f"s_cselect_b32 s{sGW+1}, s57, s{sGW+1}")
        A("s_mov_b64 exec, 0x7f")
        A(f"buffer_load_dword v{vPF+2}, v{vT}, {sr(sGW,4)}, 0 offen")
        A("s_mov_b64 exec, -1")
        Q.append("p")
        A(f"s_cmp_lg_u32 s{sW8}, 4")
        A("s_cbranch_scc1 k1_npf")
        A(f"s_cmp_ge_u32 s{sJ}, 8")
        A("s_cbranch_scc1 k1_npf")
        A(f"s_getpc_b64 {sr(56,2)}")
        A("s_add_u32 s56, s56, tab_small@rel32@lo+4")
        A("s_addc_u32 s57, s57, tab_small@rel32@hi+12")
        A(f"s_getpc_b64 {sr(62,2)}")
        A("s_add_u32 s62, s62, k2_start@rel32@lo+1028")
        A("s_addc_u32 s63, s63, k2_start@rel32@hi+1036")
        A(f"s_cmp_ge_u32 s{sJ}, 6")
        A(f"s_cselect_b32 s56, s62, s56")
        A(f"s_cselect_b32 s57, s63, s57")
        A(f"s_cselect_b32 s{sT}, 6, 0")
        A(f"s_sub_u32 s{sT}, s{sJ}, s{sT}")
        A(f"s_lshl_b32 s{sT}, s{sT}, 13")
        A(f"v_lshl_add_u32 v{vT}, v{vL}, 7, s{sT}")
        A(f"global_load_dword v{vPF+3}, v{vT}, s[56:57]")
        A("k1_npf:")
    PFP = int(os.environ.get('PFP', WPOS))
    if PFP < 0: prefetches()
    if os.environ.get("TOUCH", "0") == "1":
        A("s_mov_b64 exec, 1")
        A(f"buffer_load_dword v{vPF+1}, v{vST}, {sr(sWS,4)}, s{sWST} offen")
        A("s_mov_b64 exec, -1")
        Q.append("t")
    def wloads():
        for kk in range(2):
            for p, srd in enumerate((sWR, sWI)):
                for i in range(4):
                    A(f"buffer_load_ushort v{WL+8*kk+4*p+i}, v{vWO}, {sr(srd,4)}, s{sW0+i} offen offset:{450*kk}")
        Q.extend(["w"] * 16)
    def wstore():
        wait_for("w")
        for kk in range(2):
            for p in range(4):
                A(f"v_lshl_or_b32 v{WL+8*kk+p}, v{WL+8*kk+2*p+1}, 16, v{WL+8*kk+2*p}")
        for p in range(4): A(f"v_permlane16_swap_b32 v{WL+p}, v{WL+8+p}")
        for kk in range(2):
            for p in range(4): A(f"ds_bpermute_b32 v{WL+8*kk+4+p}, v{vT+6}, v{WL+8*kk+p}")
        A(f"s_cmp_eq_u32 s{sGS}, 7")
        A("s_cselect_b64 s[54:55], 0xff, -1")
        A("s_cselect_b64 s[56:57], 1, -1")
        A("s_waitcnt lgkmcnt(0)")
        for kk in range(2):
            A(f"s_mov_b64 exec, s[{54+2*kk}:{55+2*kk}]")
            A(f"buffer_store_dwordx4 {vr(WL+8*kk+4,4)}, v{vST}, {sr(sWS,4)}, s{sWST} offen offset:{1024*kk} {STFW}")
        A("s_mov_b64 exec, -1")
        Q.extend(["s", "s"])
    for n in range(NB):
        wait_for(n if n < NB - 1 else 13)
        if n == 0:
            A(f"s_cmp_lg_u32 s{sNT}, 15")
            A("s_cbranch_scc1 k1_ng")
            for i in range(7): A(f"ds_write_b16 v{vGW+8+(i>>2)}, v{vGW+i} offset:{16384*(i&3)}")
            A("s_waitcnt lgkmcnt(0)")
            A("k1_ng:")
        A("s_barrier")
        ST.at(2 + n)
        if n <= 4: issue(n + 2)
        if n == 4: issue(7); issue(8)
        if 5 <= n <= 9: issue(n + 4)
        if n == NB - 2: A(f"s_load_dwordx2 s[62:63], {sr(sDB,2)}, 0")
        if n == WPOS: wloads()
        if n == PFP: prefetches()
    for k in range(4): A(f"ds_read_b128 {vr(PK+4*k,4)}, v{vT+7} offset:{1024*k}")
    A(f"s_cmp_eq_u32 s{sPC}, 31")
    A("s_cselect_b64 s[54:55], 0xff, -1")
    A("s_cselect_b64 s[56:57], 1, -1")
    for k in range(4):
        A(f"s_waitcnt lgkmcnt({3-k})")
        A(f"s_mov_b64 exec, s[{54+2*(k&1)}:{55+2*(k&1)}]")
        A(f"buffer_store_dwordx4 {vr(PK+4*k,4)}, v{vST}, {sr(sWS,4)}, s{sB2 if k < 2 else sC0} offen offset:{1024*(k&1)} {STF0}")
    A("s_mov_b64 exec, -1")
    Q.extend(["s"] * 4)
    wstore()
    A("s_branch k1_pf")

    A("k1_comp:")
    A(f"s_mov_b32 s{sWS+2}, {WS_BYTES}")
    A(f"s_mov_b32 s{sWS+3}, 0x20000")
    A(f"s_or_b32 s{sT}, s2, s{sW}")
    A(f"s_cmp_lg_u32 s{sT}, 0")
    A("s_cbranch_scc1 k1_ntag")
    A("s_memrealtime s[62:63]")
    A(f"s_mov_b32 s{sDB+2}, 256")
    A(f"s_mov_b32 s{sDB+3}, 0x20000")
    A(f"v_mov_b32 v{vT}, 0")
    A("s_waitcnt lgkmcnt(0)")
    A("s_or_b32 s62, s62, 1")
    A(f"v_mov_b32 v{vT+2}, s62")
    A(f"v_mov_b32 v{vT+3}, s63")
    A("s_mov_b64 exec, 1")
    A(f"buffer_store_dwordx2 {vr(vT+2,2)}, v{vT}, {sr(sDB,4)}, 0 offen sc1")
    A("s_mov_b64 exec, -1")
    A("k1_ntag:")
    A(f"v_lshlrev_b32 v{vST}, 4, v{vL}")
    A(f"v_and_b32 v{vT}, 31, v{vL}")
    A(f"v_lshrrev_b32 v{vT+1}, 5, v{vL}")
    A(f"v_bfe_u32 v{vT+2}, v{vL}, 1, 3")
    A(f"v_xor_b32 v{vT+2}, v{vT+2}, v{vT+1}")
    A(f"v_lshlrev_b32 v{vT+2}, 4, v{vT+2}")
    A(f"v_lshl_add_u32 v{vT+2}, v{vT}, 7, v{vT+2}")
    A(f"v_add_u32 v{vRA}, s{sLA}, v{vT+2}")
    for u in range(1, 4): A(f"v_xor_b32 v{vRA+u}, {32*u}, v{vRA}")
    A(f"v_bfe_u32 v{vT+2}, v{vL}, 2, 2")
    A(f"v_lshl_add_u32 v{vT+3}, v{vT+1}, 3, v{vT+2}")
    A(f"v_lshlrev_b32 v{vT+3}, 8, v{vT+3}")
    A(f"v_bfe_u32 v{vT+4}, v{vL}, 4, 1")
    A(f"v_lshlrev_b32 v{vT+4}, 5, v{vT+4}")
    A(f"v_and_b32 v{vT+5}, 3, v{vL}")
    A(f"v_lshl_add_u32 v{vT+4}, v{vT+5}, 3, v{vT+4}")
    A(f"s_and_b32 s{sT}, s{sW}, 2")
    A(f"s_mul_i32 s{sT}, s{sT}, s{sGS}")
    A(f"v_add_u32 v{vT+4}, s{sT}, v{vT+4}")
    A(f"v_lshlrev_b32 v{vT+2}, 6, v{vT+2}")
    for g in range(2):
        A(f"v_xor_b32 v{vT+5}, v{vT+4}, v{vT+2}")
        A(f"v_add_u32 v{vRB+g}, v{vT+5}, v{vT+3}")
        A(f"v_add_u32 v{vRB+2+g}, 0x10000, v{vRB+g}")
        if g == 0: A(f"v_add_u32 v{vT+4}, s{sGS}, v{vT+4}")
    MC = lambda p: MB + 24 * p
    A(f"s_cmp_lt_u32 s{sNT}, 12")
    A("s_cbranch_scc1 k1_nom")
    A(f"v_cvt_f32_u32 v{vT+3}, v{vT}")
    A(f"v_mul_f32 v{vT+3}, {hex(f2u(1/32))}, v{vT+3}")
    for p in range(2):
        A(f"v_lshl_add_u32 v{vT+2}, v{vT+1}, 8, s{sBB if p == 0 else sB2}")
        A(f"v_mul_u32_u24 v{vT+2}, v{vT+2}, v{vT}")
        A(f"v_cvt_f32_u32 v{vT+2}, v{vT+2}")
        A(f"v_mul_f32 v{vT+2}, {hex(f2u(1/2048))}, v{vT+2}")
        for t in range(2):
            for jp in range(4):
                for e in range(2):
                    j = 2 * jp + e
                    n = 16 * t + 8 * (j >> 2) + (j & 3)
                    A(f"v_fmamk_f32 v{vT+4+e}, v{vT+3}, {hex(f2u(float(n)))}, v{vT+2}")
                    A(f"v_fract_f32 v{vT+4+e}, v{vT+4+e}")
                A(f"v_cos_f32 v{vT+6}, v{vT+4}")
                A(f"v_cos_f32 v{vT+7}, v{vT+5}")
                A(f"v_sin_f32 v{vT+8}, v{vT+4}")
                A(f"v_sin_f32 v{vT+9}, v{vT+5}")
                A(f"v_cvt_pk_bf16_f32 v{MC(p)+4*t+jp}, v{vT+6}, v{vT+7}")
                A(f"v_cvt_pk_bf16_f32 v{MC(p)+8+4*t+jp}, v{vT+8}, v{vT+9}")
                A(f"v_cvt_pk_bf16_f32 v{MC(p)+16+4*t+jp}, -v{vT+8}, -v{vT+9}")
    A("k1_nom:")
    A("s_waitcnt lgkmcnt(0) ; WSB")

    def reads(m):
        n, u = m // 4, m % 4; i = n % 7; buf = FR + 12 * (m % 4)
        L = [f"ds_read_b128 {vr(buf,4)}, v{vRA+u} offset:{8192*(n%6)}"]
        for g in range(2):
            off = 16384 * (i & 3) + 4096 * u
            L += [f"ds_read_b64_tr_b16 {vr(buf+4+4*g+2*x,2)}, v{vRB+2*(i>>2)+g} offset:{off+1024*x}" for x in range(2)]
        return L
    def steps(m0, m1, swap, fill):
        k = 0; done = 0; nm = 20
        for m in range(m0, m1):
            n, u = m // 4, m % 4; acc = 32 * (m // 28); buf = FR + 12 * (m % 4)
            A(f"s_waitcnt lgkmcnt({5 * min(D - 1, 55 - m)})")
            if u == 4 - D and n + 1 < NB:
                if n + 1 == NB - 1:
                    assert done == len(fill)
                    A("s_waitcnt lgkmcnt(5)")
                A("s_barrier")
                if n + 1 < 8: ST.at(2 + n + 1)
            rd = reads(m + D) if m + D < 56 else [None] * 5
            for g in range(2):
                a_, b_ = vr(buf,4), vr(buf+4+4*g,4)
                if swap: a_, b_ = b_, a_
                A(f"v_mfma_f32_32x32x16_bf16 {vr(acc+16*g,16)}, {a_}, {b_}, {'0' if m % 28 == 0 else vr(acc+16*g,16)}")
                if m >= m0 + 2 and fill:
                    k += 1; k2 = min(len(fill), -(-len(fill) * k // nm))
                    while done < k2 and not (fill[done].startswith("ds_write") and m < 34):
                        A(fill[done]); done += 1
                for x in (rd[:3] if g == 0 else rd[3:]):
                    if x: A(x)
        assert done == len(fill)
    def touch(step):
        if os.environ.get("TOUCH", "0") != "1": return
        A(f"s_sub_u32 s{sT}, s{sO[1]}, s{sO[0]}")
        A(f"v_and_b32 v{vT+10}, 1, v{vL}")
        A(f"v_mul_u32_u24 v{vT+10}, {step}, v{vT+10}")
        A(f"v_bfe_u32 v{vT+11}, v{vL}, 1, 1")
        A(f"v_mul_lo_u32 v{vT+11}, v{vT+11}, s{sT}")
        A(f"v_add3_u32 v{vT+10}, v{vT+10}, v{vT+11}, s{sO[0]}")
        A("s_mov_b64 exec, 15")
        A(f"buffer_load_dword v{vPF+1}, v{vT+10}, {sr(sWS,4)}, 0 offen")
        A("s_mov_b64 exec, -1")
    def pass0(swap):
        A("s_waitcnt lgkmcnt(0)")
        A("s_barrier")
        ST.at(2)
        for x in reads(0) + reads(1) + reads(2): A(x)
        steps(0, 28, swap, [])
        ST.at(10)
    st = lambda r, so, off: f"buffer_store_dwordx4 {vr(r,4)}, v{vST}, {sr(sWS,4)}, s{so} offen offset:{off} {STF0 if so == sCA else STF}"
    sO = [sCA, sCB]
    def out(p, g, P):
        if p == 0: return []
        return ([f"s_add_u32 s{sO[p]}, s{sO[p]}, {64*2048}"] if g else []) + [st(P, sO[p], 0), st(P + 4, sO[p], 1024)]
    def wr(p):
        return [f"ds_write_b128 v{vT+8}, {vr(PK+4*k,4)} offset:{1024*k}" for k in range(4)] if p == 0 else []
    def qkv_addr(base):
        A(f"s_and_b32 s{sT}, s{sNT}, 3")
        A(f"s_lshl_b32 s{sT}, s{sT}, 2")
        A(f"s_and_b32 s{sT2}, s{sW}, 2")
        A(f"s_add_u32 s{sT}, s{sT}, s{sT2}")
        A(f"s_lshl_b32 s{sT}, s{sT}, 6")
        A(f"s_lshl_b32 s{sT2}, s{sMT}, 1")
        A(f"s_and_b32 s{sO[1]}, s{sW}, 1")
        A(f"s_add_u32 s{sT2}, s{sT2}, s{sO[1]}")
        A(f"s_add_u32 s{sT2}, s{sT2}, 32")
        A(f"s_cmp_ge_u32 s{sNT}, 4")
        A(f"s_cselect_b32 s{sT2}, s{sT2}, s{sB2}")
        A(f"s_add_u32 s{sO[1]}, s{sT}, s{sT2}")
        A(f"s_lshl_b32 s{sO[1]}, s{sO[1]}, 11")
        A(f"s_add_u32 s{sO[1]}, s{sO[1]}, {base}")

    A(f"s_cmp_ge_u32 s{sNT}, 8")
    A("s_cbranch_scc1 k1_vd")
    A(f"s_cmp_ge_u32 s{sNT}, 4")
    A(f"s_cselect_b32 s{sP4}, {WS_K}, {WS_Q}")
    A(f"s_cselect_b32 s{sP64}, 1.0, {hex(QSCALE)}")
    A(f"s_cselect_b32 s{sLA}, 0x3f803f80, 0")
    A(f"s_cselect_b32 s{sLB}, 0x3f80, 0")
    A(f"s_cselect_b32 s{sC}, 12, 0")
    qkv_addr(f"s{sP4}")
    A(f"v_mov_b32 v{vT+6}, s{sLA}")
    A(f"v_mov_b32 v{vT+7}, s{sLB}")
    A(f"v_lshrrev_b32 v{vT}, 1, v{vL}")
    A(f"v_xor_b32 v{vT}, v{vT}, v{vL}")
    A(f"v_and_b32 v{vT}, 4, v{vT}")
    A(f"v_mul_u32_u24 v{vT}, 3, v{vT}")
    A(f"v_and_b32 v{vT}, s{sC}, v{vT}")
    A(f"v_xor_b32 v{vT}, v{vT}, v{vL}")
    A(f"v_lshlrev_b32 v{vST}, 4, v{vT}")
    A(f"v_cmp_lt_u32 vcc, 31, v{vL}")
    def epi_qk(p):
        L = []
        for g in range(2):
            acc = 32 * p + 16 * g; P = PK + 16 * p + 8 * g
            L += [f"v_mul_f32 v{acc+r}, s{sP64}, v{acc+r}" for r in range(16)]
            L += [f"v_cvt_pk_bf16_f32 v{P+r}, v{acc+2*r}, v{acc+2*r+1}" for r in range(8)]
            L += [f"v_cndmask_b32 v{P+6}, v{P+6}, v{vT+6}, vcc", f"v_cndmask_b32 v{P+7}, v{P+7}, v{vT+7}, vcc"]
            L += out(p, g, P)
        return L + wr(p)
    A(f"s_lshl_b32 s{sT}, s{sW}, 12")
    A(f"v_add_u32 v{vT+8}, s{sT}, v{vST}")
    pass0(True)
    steps(28, 56, True, epi_qk(0))
    ST.at(11)
    for x in epi_qk(1): A(x)
    A("s_branch k1_pf")
    A("k1_vd:")
    qkv_addr(WS_V)
    A(f"v_and_b32 v{vT}, 31, v{vL}")
    A(f"v_cmp_eq_u32 vcc, 28, v{vT}")
    A(f"v_mov_b32 v{vT+6}, 0x3f803f80")
    A(f"v_cndmask_b32 v{vT+6}, 0, v{vT+6}, vcc")
    A(f"v_cmp_lt_u32 vcc, 27, v{vT}")
    A(f"s_cmp_lt_u32 s{sNT}, 12")
    A("s_cbranch_scc1 k1_vt")
    A(f"s_lshl_b32 s{sT}, s{sNT}, 1")
    A(f"s_lshr_b32 s{sT2}, s{sW}, 1")
    A(f"s_add_u32 s{sC}, s{sT}, s{sT2}")
    A(f"s_lshl_b32 s{sT}, s{sC}, 12")
    for p in range(2):
        A(f"s_mul_i32 s{sO[p]}, s{sBB if p == 0 else sB2}, {YB}")
        A(f"s_add_u32 s{sO[p]}, s{sO[p]}, s{sT}")
        A(f"s_add_u32 s{sO[p]}, s{sO[p]}, {WS_Y - 24*4096}")
    A("k1_vt:")
    pass0(False)
    A(f"s_cmp_ge_u32 s{sNT}, 12")
    A("s_cbranch_scc1 k1_dft")
    def epi_v(p):
        L = []
        for g in range(2):
            acc = 32 * p + 16 * g; P = PK + 16 * p + 8 * g
            L += [f"v_cvt_pk_bf16_f32 v{P+r}, v{acc+2*r}, v{acc+2*r+1}" for r in range(8)]
            L += [f"v_cndmask_b32 v{P+r}, v{P+r}, v{vT+6}, vcc" for r in range(8)]
            L += out(p, g, P)
        return L + wr(p)
    A(f"s_lshl_b32 s{sT}, s{sW}, 12")
    A(f"v_add_u32 v{vT+8}, s{sT}, v{vST}")
    steps(28, 56, False, epi_v(0))
    ST.at(11)
    for x in epi_v(1): A(x)
    A("s_branch k1_pf")
    A("k1_dft:")
    A(f"s_cmp_eq_u32 s{sC}, 31")
    A("s_cselect_b64 s[54:55], 0xff, -1")
    A("s_cselect_b64 s[56:57], 1, -1")
    A(f"s_lshl_b32 s{sT2}, s{sW}, 12")
    A(f"v_lshlrev_b32 v{vT}, 6, v{vT}")
    A(f"v_lshl_add_u32 v{vT}, v{vT+1}, 4, v{vT}")
    A(f"v_add_u32 v{vT}, s{sT2}, v{vT}")
    A(f"v_add_u32 v{vT+2}, s{sT2}, v{vST}")
    A(f"v_lshlrev_b32 v{vT+3}, 4, v{vT+1}")
    def epi_dft(p):
        xr, xi = PK + 16 * p, PK + 16 * p + 8; yr, yi = 32 * p, 32 * p + 16; M = MC(p)
        L = [f"v_cvt_pk_bf16_f32 v{xr+r}, v{yr+2*r}, v{yr+2*r+1}" for r in range(8)]
        L += [f"v_cvt_pk_bf16_f32 v{xi+r}, v{yi+2*r}, v{yi+2*r+1}" for r in range(8)]
        G = [f"s_cmp_lg_u32 s{sC}, 31", f"s_cbranch_scc1 k1_ngs{p}", f"s_lshl_b32 s{sT}, s{sBB if p == 0 else sB2}, 7", f"s_add_u32 s{sT}, s{sT}, {WS_G}",
             "s_mov_b32 exec_lo, 1", "s_mov_b32 exec_hi, 1"]
        G += [f"buffer_store_dwordx4 {vr(yi+4*g,4)}, v{vT+3}, {sr(sWS,4)}, s{sT} offen offset:{32*g} sc1" for g in range(4)]
        G += ["s_mov_b64 exec, -1"] + [f"v_mov_b32 v{xi+r}, 0" for r in range(8)] + ["s_nop 1", f"k1_ngs{p}:"]
        L.append("\n".join(G))
        mf = lambda d, a, b, first=False: f"v_mfma_f32_32x32x16_bf16 {vr(d,16)}, {vr(a,4)}, {vr(b,4)}, {'0' if first else vr(d,16)}"
        L += [mf(yr, M + 4*t, xr + 4*t, t == 0) for t in range(2)] + [mf(yr, M + 8 + 4*t, xi + 4*t) for t in range(2)]
        L += [mf(yi, M + 4*t, xi + 4*t, t == 0) for t in range(2)] + [mf(yi, M + 16 + 4*t, xr + 4*t) for t in range(2)]
        L += ["s_nop 0"] * (6 if p == 0 else 0)
        for part, (y, P) in enumerate(((yr, PK + 16 - 16 * p), (yi, PK + 24 - 16 * p))):
            L += [f"v_cvt_pk_bf16_f32 v{P+r}, v{y+2*r}, v{y+2*r+1}" for r in range(8)]
            L.append("s_nop 0")
            for t in range(2): L += [f"v_permlane32_swap_b32 v{P+4*t}, v{P+4*t+2}", f"v_permlane32_swap_b32 v{P+4*t+1}, v{P+4*t+3}"]
            L += [f"ds_write_b128 v{vT}, {vr(P+4*t,4)} offset:{16384*p+2048*part+32*t}" for t in range(2)]
            if p == 1:
                L.append("s_waitcnt lgkmcnt(0)")
                L += [f"ds_read_b128 {vr(P+4*k,4)}, v{vT+2} offset:{16384+2048*part+1024*k}" for k in range(2)]
        if p == 1:
            for part, P in enumerate((PK + 16 - 16 * p, PK + 24 - 16 * p)):
                for k in range(2):
                    L += [f"s_waitcnt lgkmcnt({1 - k if part else 2})", f"s_mov_b64 exec, s[{54+2*k}:{55+2*k}]", st(P + 4*k, sO[p], 2048*part + 1024*k)]
        return L
    steps(28, 56, False, epi_dft(0))
    ST.at(11)
    for x in epi_dft(1): A(x)
    A("s_mov_b64 exec, -1")
    A("k1_pf:")
    if DIAG:
        A(f"s_cmp_lt_u32 s{sW8}, 4")
        A("s_cbranch_scc0 k1_nst")
        A("s_memtime s[96:97]")
        A("k1_nst:")
    A("s_barrier")
    ST.dump(sWS, sW8, 8, vT+10, False)
    get_tag(A, "k1_tag", sT, vT)
    A(f"s_cmp_lt_u32 s{sW8}, 5")
    A("s_cbranch_scc1 k2_start")
    A(f"s_lshl_b32 s{sT}, s2, 3")
    A(f"s_add_u32 s{sT}, s{sT}, s{sW8}")
    A(f"s_lshl_b32 s{sT}, s{sT}, 7")
    A(f"s_add_u32 s{sT}, s{sT}, {WS_F1}")
    A(f"v_mov_b32 v{vT}, 0")
    A(f"v_mov_b32 v{vT+2}, s6")
    A(f"v_mov_b32 v{vT+3}, s7")
    A("s_mov_b64 exec, 1")
    A("s_waitcnt vmcnt(0)")
    A(f"buffer_store_dwordx2 {vr(vT+2,2)}, v{vT}, {sr(sWS,4)}, s{sT} offen sc1")
    A("s_endpgm")
    return A.L, NV, 102 if DIAG else 64
```

```python
from asmlib import *
from k1 import WS_Q, WS_K, WS_V, WS_Y, WS_W, WS_O, WS_Z, WS_G, WS_BYTES, WS_FO, WS_FZ, WS_F1, f2u, YB, WP, ZP
import math, os
TS_F64, TS_F32, TS_TW, TS_BYTES = 0, 24576, 30720, 47104
LF, LZ, RED = 0, 57344, 114688
LW = RED - 8192
LDS_Y, LDS_Q = LZ, RED + 8192
K2_LDS = 163840
TAB_INV_BYTES = 401408
from k1 import SPIN
N0 = int(os.environ.get("N0", 13)); N1 = (64 - N0) // 3
assert N0 + 3 * N1 == 64
OST = os.environ.get("OST", "")

def merge(ms, vs, lead=0):
    out = []; n = len(ms); k = 0
    for i, m in enumerate(ms):
        out.append(m)
        k2 = (len(vs) * (i + 1)) // n
        out += vs[k:k2]; k = k2
    return out

def gen_k2():
    A = Asm()
    sWS, sX, sTB = 8, 12, 16
    sW, sJ, sXC, sHD, sQB, sT, sT2, sCNT, sI, sKO, sLO, sHI, sVO, sPASS = 20, 21, 22, 23, 24, 25, 26, 27, 28, 29, 30, 31, 32, 33
    sK0, sOK, sQ, sOUT = 34, 35, 40, 48
    sMT, sNT, sPUB, sLO2 = 52, 53, 57, 58
    O, S, Q, KV = 0, 64, 128, 160
    vL, vO16, vIDX, vT = 208, 209, 210, 212
    NV = 256
    vWD, sWM, sWS_ = 237, 59, 60
    vTAG = 240
    A("k2_start:")
    ST = Stamps(A, 1); ST.begin()
    A(f"s_load_dwordx2 {sr(sX,2)}, s[0:1], 40")
    A(f"s_load_dwordx2 {sr(sOUT,2)}, s[0:1], 56")
    A(f"s_mov_b32 s{sWS}, s16")
    A(f"s_mov_b32 s{sWS+1}, s17")
    A(f"s_mov_b32 s{sWS+2}, {WS_BYTES}")
    A(f"s_mov_b32 s{sWS+3}, 0x20000")
    A(f"s_mov_b32 s{sW}, s47")
    A(f"v_mov_b32 v{vL}, v64")
    A(f"v_mov_b32 v{vTAG}, s6")
    A(f"v_mov_b32 v{vTAG+1}, s7")
    A(f"v_lshlrev_b32 v{vO16}, 4, v{vL}")
    A(f"v_and_b32 v{vT+9}, 31, v{vL}")
    A(f"v_lshlrev_b32 v{vT+9}, 2, v{vT+9}")
    A(f"s_and_b32 s{sXC}, s2, 7")
    A(f"s_lshr_b32 s{sJ}, s2, 3")
    A(f"s_and_b32 s{sT}, s{sJ}, 3")
    A(f"s_lshl_b32 s{sMT}, s{sXC}, 2")
    A(f"s_add_u32 s{sMT}, s{sMT}, s{sT}")
    A(f"s_lshr_b32 s{sNT}, s{sJ}, 2")
    A(f"s_getpc_b64 {sr(sTB,2)}")
    A(f"s_add_u32 s{sTB}, s{sTB}, tab_inv@rel32@lo+4")
    A(f"s_addc_u32 s{sTB+1}, s{sTB+1}, tab_inv@rel32@hi+12")
    A(f"s_mov_b32 s{sTB+2}, {TAB_INV_BYTES}")
    A(f"s_mov_b32 s{sTB+3}, 0x20000")
    def own_flag():
        A(f"s_lshl_b32 s{sPUB}, s2, 3")
        A(f"s_add_u32 s{sPUB}, s{sPUB}, s{sW}")
        A(f"s_lshl_b32 s{sPUB}, s{sPUB}, 7")
        A(f"s_add_u32 s{sPUB}, s{sPUB}, {WS_F1}")
        A("v_mov_b32 v12, 0")
        A("s_mov_b64 exec, 1")
        A("s_waitcnt vmcnt(0)")
        A(f"buffer_store_dwordx2 {vr(vTAG,2)}, v12, {sr(sWS,4)}, s{sPUB} offen sc1")
        A("s_mov_b64 exec, -1")
    def flag_index(d, vpass, vmt, ve, vnt, shh):
        A(f"v_and_b32 v{d}, 7, v{vnt}")
        A(f"v_lshlrev_b32 v{d}, 2, v{d}")
        A(f"v_and_or_b32 v{d}, v{vmt}, 3, v{d}")
        A(f"v_lshrrev_b32 v{d+1}, 2, v{vmt}")
        A(f"v_lshl_add_u32 v{d}, v{d}, 2, v{d+1}")
        A(f"v_lshrrev_b32 v{d+1}, 3, v{vnt}")
        A(f"v_lshl_add_u32 v{d}, v{d}, 1, v{d+1}")
        A(f"v_xor_b32 v{d+1}, 1, v{vpass}")
        A(f"v_lshl_add_u32 v{d}, v{d}, 1, v{d+1}")
        A(f"v_lshl_add_u32 v{d}, v{d}, 1, {shh}")
        A(f"v_lshl_add_u32 v{d}, v{d}, 1, v{ve}")
        A(f"v_lshlrev_b32 v{d}, 7, v{d}")
    A(f"s_cmp_eq_u32 s{sW}, 4")
    A("s_cbranch_scc1 k2_aux")
    A(f"s_lshr_b32 s{sHD}, s{sJ}, 4")
    A(f"s_lshl_b32 s{sHD}, s{sHD}, 3")
    A(f"s_add_u32 s{sHD}, s{sHD}, s{sXC}")
    A(f"s_and_b32 s{sQB}, s{sJ}, 15")
    A(f"s_cmp_eq_u32 s{sW}, 0")
    A(f"s_cselect_b32 s{sCNT}, {N0}, {N1}")
    A(f"s_mul_i32 s{sT}, s{sW}, {N1}")
    A(f"s_sub_u32 s{sT}, s{sT}, {N1-N0}")
    A(f"s_max_i32 s{sT}, s{sT}, 0")
    A(f"s_lshl_b32 s{sT2}, s{sW}, 4")
    A(f"s_cmp_le_u32 s2, 224")
    A(f"s_cselect_b32 s{sCNT}, s{sCNT}, 16")
    A(f"s_cselect_b32 s{sT}, s{sT}, s{sT2}")
    A(f"s_mul_i32 s{sK0}, s{sW}, 3")
    A(f"s_sub_u32 s{sLO}, s{sT}, s{sK0}")
    A(f"s_add_u32 s{sLO}, s{sLO}, 9")
    A(f"v_lshrrev_b32 v2, 1, v{vL}")
    A(f"s_sub_u32 s{sT2}, s{sCNT}, 1")
    A(f"v_min_u32 v2, s{sT2}, v2")
    A(f"v_add_u32 v3, s{sK0}, v2")
    A(f"v_add_u32 v4, s{sLO}, v2")
    A("v_cmp_gt_u32 vcc, 3, v2")
    A(f"s_lshr_b32 s{sT2}, s{sHD}, 2")
    A(f"s_and_b32 s{sI}, s{sT2}, 1")
    A("v_cndmask_b32 v3, v4, v3, vcc")
    A("v_lshrrev_b32 v4, 5, v3")
    A("v_bfe_u32 v5, v3, 1, 4")
    A("v_and_b32 v6, 1, v3")
    A(f"v_and_b32 v7, 1, v{vL}")
    A(f"v_lshl_add_u32 v7, v7, 2, s{sT2}")
    A("v_add_u32 v7, 4, v7")
    A(f"v_cmp_lt_u32 vcc, 33, v{vL}")
    A(f"s_lshr_b32 s{sKO}, s{sW}, 1")
    A(f"s_xor_b32 s{sKO}, s{sKO}, s{sI}")
    A(f"s_and_b32 s{sVO}, s{sW}, 1")
    A(f"v_mov_b32 v8, s{sKO}")
    A(f"v_mov_b32 v9, s{sQB}")
    A(f"v_mov_b32 v10, s{sVO}")
    A(f"v_mov_b32 v11, s{sT2}")
    for k in range(4): A(f"v_cndmask_b32 v{4+k}, v{4+k}, v{8+k}, vcc")
    A(f"s_bfe_u32 s{sI}, s{sHD}, 0x10001")
    flag_index(2, 4, 5, 6, 7, f"s{sI}")
    A(f"s_lshl_b32 s{sT2}, s{sHD}, 6")
    A(f"s_add_u32 s{sK0}, s{sK0}, s{sT2}")
    A(f"s_lshl_b32 s{sK0}, s{sK0}, 11")
    A(f"s_add_u32 s{sK0}, s{sK0}, {WS_K}")
    A(f"s_add_u32 s{sLO2}, s{sLO}, s{sT2}")
    A(f"s_add_u32 s{sHI}, s{sLO2}, s{sCNT}")
    A(f"s_add_u32 s{sLO2}, s{sLO2}, 3")
    A(f"s_lshl_b32 s{sLO2}, s{sLO2}, 11")
    A(f"s_add_u32 s{sLO2}, s{sLO2}, {WS_K}")
    A(f"s_lshl_b32 s{sHI}, s{sHI}, 11")
    A(f"s_add_u32 s{sHI}, s{sHI}, {WS_K}")
    A(f"s_lshl_b32 s{sT}, s{sQB}, 2")
    A(f"s_add_u32 s{sT}, s{sT}, s{sT2}")
    for s in range(4):
        A(f"s_add_u32 s{sQ+s}, s{sW}, {s+1}")
        A(f"s_and_b32 s{sQ+s}, s{sQ+s}, 3")
        A(f"s_add_u32 s{sT2}, s{sQ+s}, s{sT}")
        A(f"s_lshl_b32 s{sQ+4+s}, s{sT2}, 11")
    A(f"s_mov_b32 s{sKO}, s{sK0}")
    A(f"s_add_u32 s{sVO}, s{sKO}, {WS_V - WS_K}")
    own_flag()
    ST.at(12)
    A(f"s_mov_b32 s{sI}, {SPIN}")
    A(f"s_mov_b32 s{sT}, {WS_F1}")
    A("s_mov_b32 exec_lo, 0x3f")
    A("s_mov_b32 exec_hi, 4")
    if int(os.environ.get("PD", 20)): A(f"s_sleep {os.environ.get('PD', 20)}")
    A("k2_pa:")
    A(f"buffer_load_dwordx2 v[4:5], v2, {sr(sWS,4)}, s{sT} offen sc1")
    A("s_waitcnt vmcnt(0)")
    A("v_cmp_ne_u64 vcc, s[6:7], v[4:5]")
    A("s_nop 1")
    A("s_and_b64 exec, exec, vcc")
    A("s_cbranch_scc0 k2_pa_done")
    A(f"s_sub_u32 s{sI}, s{sI}, 1")
    A(f"s_sleep {os.environ.get('PSL', 4)}")
    A(f"s_cmp_gt_i32 s{sI}, 0")
    A("s_cbranch_scc1 k2_pa")
    A("k2_pa_done:")
    A("s_mov_b64 exec, -1")
    ST.at(13)
    def ldk(st, t): return f"buffer_load_dwordx4 {vr(KV+16*st+4*t,4)}, v{vO16}, {sr(sWS,4)}, s{sKO} offen offset:{1024*t} sc1"
    def ldv(st, t): return f"buffer_load_dwordx4 {vr(KV+16*st+8+4*t,4)}, v{vO16}, {sr(sWS,4)}, s{sVO} offen offset:{1024*t} sc1"
    def ldq(s, t): return f"buffer_load_dwordx4 {vr(Q+8*s+4*t,4)}, v{vO16}, {sr(sWS,4)}, s{sQ+4+s} offen offset:{1024*t}"
    adv = [f"s_add_u32 s{sKO}, s{sKO}, 2048", f"s_cmp_ge_u32 s{sKO}, s{sHI}", f"s_cselect_b32 s{sKO}, s{sLO2}, s{sKO}"]
    setv = f"s_add_u32 s{sVO}, s{sKO}, {WS_V - WS_K}"
    A(f"s_lshl_b32 s{sT}, s{sW}, 11")
    A(f"s_add_u32 m0, s{sT}, {LDS_Q}")
    A(ldk(0, 0))
    A(f"buffer_load_dwordx4 v{vO16}, {sr(sWS,4)}, s{sQ+7} offen sc1 lds")
    A(f"buffer_load_dwordx4 v{vO16}, {sr(sWS,4)}, s{sQ+7} offen offset:1024 sc1 lds")
    for x in [ldk(0, 1), ldv(0, 0), ldv(0, 1)]: A(x)
    A(f"s_mov_b32 s{sPASS}, 0")
    A(f"s_mov_b32 s{sOK}, 0")
    A("s_branch k2_first")
    A("k2_pass:")
    A(f"s_mov_b32 s{sKO}, s{sK0}")
    A(setv)
    for x in [ldk(0, 0), ldk(0, 1), ldv(0, 0), ldv(0, 1)]: A(x)
    A("s_waitcnt vmcnt(0)")
    A("k2_first:")
    for x in adv[:1] + [setv, ldk(1, 0), ldk(1, 1), ldv(1, 0), ldv(1, 1)] + adv[:1] + [setv, ldk(2, 0), ldk(2, 1), ldv(2, 0), ldv(2, 1)]: A(x)
    A(f"s_sub_u32 s{sT}, s{sCNT}, 3")
    A(f"s_mul_i32 s{sT}, s{sT}, s{sQB}")
    A(f"s_lshr_b32 s{sT}, s{sT}, 4")
    A(f"s_lshl_b32 s{sT}, s{sT}, 11")
    A(f"s_add_u32 s{sKO}, s{sLO2}, s{sT}")
    A(f"s_cmp_lg_u32 s{sPASS}, 0")
    A("s_cbranch_scc1 k2_nobar")
    A(f"v_mov_b32 v{vT+12}, v2")
    A(f"s_mov_b32 s{sT}, {WS_F1}")
    A(f"buffer_load_dwordx2 {vr(vT+10,2)}, v2, {sr(sWS,4)}, s{sT} offen sc1")
    for r in range(64): A(f"v_mov_b32 v{O+r}, 0")
    A(f"v_mov_b32 v{vIDX}, 0xdddddddd")
    for s_ in range(4):
        A(f"s_lshl_b32 s{sT}, s{sQ+s_}, 11")
        A(f"s_add_u32 s{sT}, s{sT}, {LDS_Q}")
        A(f"v_add_u32 v{vT+2+s_}, s{sT}, v{vO16}")
    A("s_waitcnt vmcnt(12)")
    A("s_barrier")
    for s_ in range(4):
        for t in range(2): A(f"ds_read_b128 {vr(Q+8*s_+4*t,4)}, v{vT+2+s_} offset:{1024*t}")
    A("s_branch k2_go")
    A("k2_nobar:")
    A("s_waitcnt vmcnt(0)")
    A(f"v_mov_b32 v{vT+10}, s6")
    A(f"v_mov_b32 v{vT+11}, s7")
    for r in range(64): A(f"v_mov_b32 v{O+r}, 0")
    A("k2_go:")
    A(f"s_mov_b32 s{sI}, s{sCNT}")
    def qk(q, st, half):
        c = "0" if half == 0 else vr(S+16*q,16)
        return f"v_mfma_f32_32x32x16_bf16 {vr(S+16*q,16)}, {vr(KV+16*st+4*half,4)}, {vr(Q+8*q+4*half,4)}, {c}"
    def pv(q, st, half):
        return f"v_smfmac_f32_32x32x32_bf16 {vr(O+16*q,16)}, {vr(KV+16*st+8+4*half,4)}, {vr(S+16*q+8*half,8)}, v{vIDX}"
    def tile(st, first):
        nxt, prv = (st + 1) % 3, (st + 2) % 3
        for q in range(4):
            e = [f"v_exp_f32 v{S+16*q+r}, v{S+16*q+r}" for r in range(16)]
            qn, stn = (q + 1, st) if q < 3 else (0, nxt)
            qp, stp = (q - 1, st) if q > 0 else (3, prv)
            aft = {0: [], 1: [], 2: [], 3: []}
            if q == 0: aft[2] = [ldk(prv, 0)]; aft[3] = [setv]
            if q == 1: aft[1] = ["s_waitcnt vmcnt(5)"]; aft[2] = [ldk(prv, 1)]; aft[3] = adv[0:2]
            if q == 2: aft[0] = [adv[2]]; aft[2] = [ldv(prv, 0)]; aft[3] = [f"s_sub_u32 s{sI}, s{sI}, 1", "s_waitcnt vmcnt(5)"]
            if q == 3: aft[2] = [ldv(prv, 1)]; aft[3] = [f"s_cmp_eq_u32 s{sI}, 0"]
            ms = [qk(qn, stn, 0), qk(qn, stn, 1), pv(qp, stp, 0), pv(qp, stp, 1)]
            if first and q == 0:
                A("s_waitcnt lgkmcnt(0)")
                ms[2] = ms[3] = None
            if first:
                aft = {0: [], 1: [], 2: [], 3: []}
                if q == 1: aft[1] = ["s_waitcnt vmcnt(9)"]
                if q == 2: aft[3] = [f"s_sub_u32 s{sI}, s{sI}, 1", "s_waitcnt vmcnt(7)"]
                if q == 3: aft[2] = ["s_waitcnt vmcnt(0)"]; aft[3] = [f"v_cmp_eq_u64 vcc, s[6:7], {vr(vT+10,2)}"]
            for k in range(4):
                if ms[k]: A(ms[k])
                for y in aft[k]: A(y)
                for x in e[4*k:4*k+4]: A(x)
    ST.at(0)
    A("s_waitcnt vmcnt(11) lgkmcnt(6)")
    ST.at(1)
    A(qk(0, 0, 0)); A(qk(0, 0, 1))
    A("s_nop 9")
    tile(0, True)
    A("s_cmp_lg_u64 vcc, -1")
    A("s_cbranch_scc1 k2_pb0")
    loop_start = A.mark()
    A("k2_loop:")
    if DIAG:
        A("s_waitcnt lgkmcnt(0)")
        for i in (11,): A(f"s_mov_b32 s{70+2*i}, s{68+2*i}")
        ST.at(10)
    for st in (1, 2, 0):
        tile(st, False)
        A(f"s_cbranch_scc1 k2_x{st}" if st != 0 else "s_cbranch_scc0 k2_loop")
    loop_end = A.mark()
    for st in (0, 1, 2):
        A(f"k2_x{st}:")
        A("s_nop 1")
        A(pv(3, st, 0)); A(pv(3, st, 1))
        if st != 2: A("s_branch k2_red")
    A("k2_red:")
    ST.at(2)
    for s in range(3):
        A(f"s_mul_i32 s{sT}, s{sQ+s}, 12288")
        A(f"s_add_u32 s{sT}, s{sT}, {RED}")
        A(f"v_add_u32 v{vT+s}, s{sT}, v{vO16}")
    A(f"s_lshl_b32 s{sT2}, s{sQB}, 2")
    A(f"s_add_u32 s{sT2}, s{sT2}, s{sW}")
    for s in range(3):
        for g in range(4):
            A(f"ds_write_b128 v{vT+s}, {vr(O+16*s+4*g,4)} offset:{4096*s+1024*g}")
    A(f"s_mul_i32 s{sT}, s{sW}, 12288")
    A(f"s_add_u32 s{sT}, s{sT}, {RED}")
    A(f"v_add_u32 v{vT+1}, s{sT}, v{vO16}")
    A(f"s_lshl_b32 s{sT}, s{sW}, 2")
    A(f"s_add_u32 s{sT}, s{sT}, {K2_LDS-128}")
    A(f"v_mov_b32 v{vT+14}, s{sT}")
    A(f"s_lshl_b32 s{sT2}, s{sT2}, 4")
    A(f"s_add_u32 s{sT2}, s{sT2}, s{sHD}")
    A(f"s_lshl_b32 s{sKO}, s{sT2}, 11")
    A(f"s_add_u32 s{sKO}, s{sKO}, {WS_O}")
    A(f"s_lshl_b32 s{sVO}, s{sT2}, 7")
    A(f"s_add_u32 s{sVO}, s{sVO}, {WS_FO}")
    A("s_waitcnt vmcnt(0) lgkmcnt(0)")
    ST.at(3)
    A("s_barrier")
    ST.at(4)
    for s in range(3):
        for g in range(4):
            A(f"ds_read_b128 {vr(S+16*s+4*g,4)}, v{vT+1} offset:{4096*s+1024*g}")
    A(f"v_cmp_lt_u32 s[38:39], 31, v{vL}")
    R = O + 48
    for s in range(3):
        A(f"s_waitcnt lgkmcnt({8-4*s})")
        for r in list(range(12, 16)) + list(range(12)) if s == 2 else range(16): A(f"v_add_f32 v{R+r}, v{R+r}, v{S+16*s+r}")
    A(f"v_mov_b32 v{vT+4}, v{R+12}")
    A(f"v_mov_b32 v{vT+5}, v{R+12}")
    A(f"v_add_f32 v{vT+7}, abs(v{R}), abs(v{R+1})")
    A(f"v_add_f32 v{vT+7}, v{vT+7}, abs(v{R+2})")
    A(f"v_permlane32_swap_b32 v{vT+4}, v{vT+5}")
    A(f"v_rcp_f32 v{vT+6}, v{vT+5}")
    A(f"v_add_f32 v{vT+7}, v{vT+7}, abs(v{R+3})")
    A(f"s_cmp_lg_u32 s{sOK}, 0")
    A(f"s_mov_b32 s{sPUB}, 0")
    A("s_cbranch_scc1 k2_apart")
    for t in range(2):
        for r in range(8): A(f"v_mul_f32 v{S+8*t+r}, v{R+8*t+r}, v{vT+6}")
        for r in range(4): A(f"v_cvt_pk_bf16_f32 v{S+16+4*t+r}, v{S+8*t+2*r}, v{S+8*t+2*r+1}")
        if t == 1:
            A(f"v_cndmask_b32 v{S+22}, v{S+22}, 0, s[38:39]")
            A(f"v_cndmask_b32 v{S+23}, v{S+23}, 0, s[38:39]")
        A(f"buffer_store_dwordx4 {vr(S+16+4*t,4)}, v{vO16}, {sr(sWS,4)}, s{sKO} offen offset:{1024*t} sc1")
    for r in range(4, 16): A(f"v_add_f32 v{vT+7}, v{vT+7}, abs(v{R+r})")
    A(f"v_cmp_nle_f32 vcc, {hex(f2u(2.0**-60))}, v{vT+5}")
    A(f"s_mov_b64 s[36:37], vcc")
    A(f"v_cmp_nge_f32 vcc, {hex(f2u(2.0**60))}, v{vT+5}")
    A(f"s_or_b64 s[36:37], s[36:37], vcc")
    A(f"v_cmp_nge_f32 vcc, {hex(f2u(2.0**120))}, v{vT+7}")
    A(f"s_or_b64 s[36:37], s[36:37], vcc")
    A(f"s_cselect_b32 s{sOK}, 0, 1")
    A(f"s_or_b32 s{sOK}, s{sOK}, s{sPASS}")
    A(f"s_mov_b32 s{sPUB}, s{sOK}")
    A("k2_apart:")
    A("s_barrier")
    def publish(lab, younger=0):
        A(f"s_cmp_eq_u32 s{sPUB}, 0")
        A(f"v_mov_b32 v{vT+4}, 0")
        A(f"s_waitcnt vmcnt({younger})")
        A(f"s_cbranch_scc1 {lab}")
        A("s_mov_b64 exec, 1")
        A(f"buffer_store_dwordx2 {vr(vTAG,2)}, v{vT+4}, {sr(sWS,4)}, s{sVO} offen sc1")
        A("s_mov_b64 exec, -1")
        A(f"{lab}:")
    AA, AB, OF, LB = 0, 96, 160, 32
    vG3, vZ3, vF3, vW3, vOA, vX = 228, 229, 230, 232, 234, 235
    sKH, sB3, sB, sOB, sOA = 54, 55, 56, 61, 62
    A(f"s_lshr_b32 s{sKH}, s{sW}, 1")
    A(f"s_and_b32 s{sB3}, s{sW}, 1")
    A(f"v_lshrrev_b32 v{vT+10}, 5, v{vL}")
    A(f"v_bfe_u32 v{vT+11}, v{vL}, 2, 2")
    A(f"v_bfe_u32 v{vT+12}, v{vL}, 4, 1")
    A(f"v_lshlrev_b32 v{vT+12}, 5, v{vT+12}")
    A(f"v_and_b32 v{vT+13}, 3, v{vL}")
    A(f"v_lshl_add_u32 v{vT+12}, v{vT+13}, 3, v{vT+12}")
    A(f"v_lshl_add_u32 v{vT+12}, v{vT+11}, 7, v{vT+12}")
    A(f"v_lshrrev_b32 v{vT+11}, 1, v{vT+11}")
    A(f"v_lshl_add_u32 v{vT+12}, v{vT+11}, 6, v{vT+12}")
    A(f"s_lshl_b32 s{sT}, s{sB3}, 6")
    A(f"v_xor_b32 v{vZ3}, s{sT}, v{vT+12}")
    A(f"v_lshl_add_u32 v{vZ3}, v{vT+10}, 10, v{vZ3}")
    A(f"s_mul_i32 s{sT2}, s{sKH}, {14*2048}")
    A(f"s_add_u32 s{sT}, s{sT2}, {LZ}")
    A(f"v_add_u32 v{vZ3}, s{sT}, v{vZ3}")
    A(f"s_lshl_b32 s{sT}, s{sKH}, 10")
    A(f"s_add_u32 s{sT}, s{sT}, s{sT2}")
    A(f"v_add_u32 v{vF3}, s{sT}, v{vO16}")
    A(f"v_xor_b32 v{vF3+1}, 1024, v{vF3}")
    A(f"s_lshl_b32 s{sT}, s{sMT}, 1")
    A(f"s_add_u32 s{sB}, s{sT}, s{sB3}")
    A(f"s_lshl_b32 s{sT}, s{sB}, 7")
    A(f"s_add_u32 s{sT}, s{sT}, {WS_G}")
    A(f"buffer_load_dword v{vG3}, v{vT+9}, {sr(sWS,4)}, s{sT} offen sc1")
    A(f"s_lshl_b32 s{sT}, s{sKH}, 6")
    A(f"v_xor_b32 v{vW3}, s{sT}, v{vT+12}")
    A(f"v_lshl_add_u32 v{vW3}, v{vT+10}, 9, v{vW3}")
    A(f"s_mul_i32 s{sT}, s{sKH}, {224*128}")
    A(f"s_add_u32 s{sT}, s{sT}, {LW}")
    A(f"v_add_u32 v{vW3}, s{sT}, v{vW3}")
    A(f"v_xor_b32 v{vW3+1}, 64, v{vW3}")
    A(f"s_lshl_b32 s{sT}, s{sW}, 12")
    A(f"v_add_u32 v{vX}, s{sT}, v{vO16}")
    A(f"v_xor_b32 v{vX+1}, 8192, v{vX}")
    A(f"s_lshl_b32 s{sT}, s{sB}, 1")
    A(f"s_add_u32 s{sT}, s{sT}, s{sKH}")
    A(f"s_lshl_b32 s{sT}, s{sT}, 14")
    A(f"s_add_u32 s{sOB}, s{sT}, {WS_O}")
    A(f"v_lshrrev_b32 v{vT+3}, 2, v{vT+9}")
    A(f"v_mul_u32_u24 v{vOA}, 57344, v{vT+3}")
    A(f"v_lshl_add_u32 v{vOA}, v{vT+10}, 4, v{vOA}")
    A(f"s_mul_i32 s{sOA}, s{sB}, 896")
    A(f"s_lshl_b32 s{sT}, s{sNT}, 7")
    A(f"s_add_u32 s{sOA}, s{sOA}, s{sT}")
    A(f"s_lshl_b32 s{sT}, s{sKH}, 6")
    A(f"s_add_u32 s{sOA}, s{sOA}, s{sT}")
    A(f"s_mov_b32 s{sOUT+2}, 1835008")
    A(f"s_mov_b32 s{sOUT+3}, 0x20000")
    publish("k2_np0")
    A("k2_pub:")
    ST.at(5)
    A(f"v_mov_b32 v{vT+5}, s{sOK}")
    A(f"ds_write_b32 v{vT+14}, v{vT+5}")
    A("k2_chk:")
    A(f"v_mov_b32 v{vT+8}, {K2_LDS-128}")
    A("s_waitcnt lgkmcnt(0)")
    A("s_barrier")
    A(f"ds_read_b128 {vr(vT+4,4)}, v{vT+8}")
    A("s_waitcnt lgkmcnt(0)")
    A("s_barrier")
    A(f"v_and_b32 v{vT+4}, v{vT+4}, v{vT+5}")
    A(f"v_and_b32 v{vT+6}, v{vT+6}, v{vT+7}")
    A(f"v_and_b32 v{vT+4}, v{vT+4}, v{vT+6}")
    A(f"v_readfirstlane_b32 s{sT}, v{vT+4}")
    A(f"s_cmp_lg_u32 s{sT}, 0")
    A("s_cbranch_scc1 k2_p3")
    A(f"s_cmp_eq_u32 s{sW}, 4")
    A("s_cbranch_scc1 k2_auxfb")
    A("s_branch k2_fb")
    A("k2_pb0:")
    A(f"s_mov_b32 s{sT2}, {SPIN}")
    A(f"s_mov_b32 s{sT}, {WS_F1}")
    A("k2_pb:")
    A(f"buffer_load_dwordx2 {vr(vT+10,2)}, v{vT+12}, {sr(sWS,4)}, s{sT} offen sc1")
    A("s_waitcnt vmcnt(0)")
    A(f"v_cmp_eq_u64 vcc, s[6:7], {vr(vT+10,2)}")
    A("s_nop 1")
    A("s_cmp_eq_u64 vcc, -1")
    A("s_cbranch_scc1 k2_loop")
    A(f"s_sub_u32 s{sT2}, s{sT2}, 1")
    A("s_sleep 2")
    A(f"s_cmp_lg_u32 s{sT2}, 0")
    A("s_cbranch_scc1 k2_pb")
    A("s_branch k2_loop")
    A("k2_fb:")
    A(f"s_mov_b32 s{sPASS}, 1")
    A("s_waitcnt vmcnt(0)")
    for q in range(4): A(f"v_mov_b32 v{O+q}, 0xff800000")
    A(f"s_mov_b32 s{sKO}, s{sK0}")
    A(f"s_add_u32 s{sT2}, s{sK0}, {3*2048}")
    A(f"s_mov_b32 s{sI}, s{sCNT}")
    A("k2_maxloop:")
    A(ldk(0, 0)); A(ldk(0, 1))
    A("s_waitcnt vmcnt(0)")
    for q in range(4): A(qk(q, 0, 0)); A(qk(q, 0, 1))
    A("s_nop 15")
    for q in range(4):
        for r in range(8): A(f"v_max3_f32 v{O+q}, v{O+q}, v{S+16*q+2*r}, v{S+16*q+2*r+1}")
    A(f"s_add_u32 s{sKO}, s{sKO}, 2048")
    A(f"s_cmp_eq_u32 s{sKO}, s{sT2}")
    A(f"s_cselect_b32 s{sKO}, s{sLO2}, s{sKO}")
    A(f"s_cselect_b32 s{sT2}, 0, s{sT2}")
    A(f"s_sub_u32 s{sI}, s{sI}, 1")
    A(f"s_cmp_lg_u32 s{sI}, 0")
    A("s_cbranch_scc1 k2_maxloop")
    A(f"s_lshl_b32 s{sT}, s{sW}, 8")
    A(f"s_add_u32 s{sT}, s{sT}, {RED}")
    A(f"v_lshl_add_u32 v{vT}, v{vL}, 2, s{sT}")
    A(f"v_and_b32 v{vT+1}, 31, v{vL}")
    A(f"v_lshlrev_b32 v{vT+1}, 2, v{vT+1}")
    A(f"v_add_u32 v{vT+1}, {RED}, v{vT+1}")
    for s in range(4):
        A(f"s_lshl_b32 s{sT}, s{sQ+s}, 10")
        A(f"v_add_u32 v{vT+2}, s{sT}, v{vT}")
        A(f"v_add_u32 v{vT+4+s}, s{sT}, v{vT+1}")
        A(f"ds_write_b32 v{vT+2}, v{O+s}")
    A("s_waitcnt lgkmcnt(0)")
    A("s_barrier")
    for s in range(4):
        for k in range(8): A(f"ds_read_b32 v{S+8*s+k}, v{vT+4+s} offset:{128*k}")
        A("s_waitcnt lgkmcnt(0)")
    A("s_barrier")
    A(f"v_cmp_lt_u32 vcc, 31, v{vL}")
    for q in range(4):
        m = S + 8 * q
        A(f"v_max3_f32 v{m}, v{m}, v{m+1}, v{m+2}")
        A(f"v_max3_f32 v{m}, v{m}, v{m+3}, v{m+4}")
        A(f"v_max3_f32 v{m}, v{m}, v{m+5}, v{m+6}")
        A(f"v_max_f32 v{m}, v{m}, v{m+7}")
        A(f"v_xor_b32 v{m}, 0x80000000, v{m}")
        A(f"v_and_b32 v{m+1}, 0xffff0000, v{m}")
        A(f"v_sub_f32 v{m+2}, v{m}, v{m+1}")
        A(f"v_and_b32 v{m+3}, 0xffff0000, v{m+2}")
        A(f"v_sub_f32 v{m+4}, v{m+2}, v{m+3}")
        A(f"v_lshrrev_b32 v{m+1}, 16, v{m+1}")
        A(f"v_or_b32 v{m+1}, v{m+1}, v{m+3}")
        A(f"v_lshrrev_b32 v{m+4}, 16, v{m+4}")
        A(f"v_cndmask_b32 v{Q+8*q+6}, v{Q+8*q+6}, v{m+1}, vcc")
        A(f"v_cndmask_b32 v{Q+8*q+7}, v{Q+8*q+7}, v{m+4}, vcc")
    A("s_branch k2_pass")

    A("k2_p3:")
    A("s_cmp_ge_u32 s2, 224")
    A("s_cbranch_scc1 k2_dump" if DIAG else "s_cbranch_scc1 k2_end")
    A(f"s_cmp_eq_u32 s{sW}, 4")
    A("s_cbranch_scc1 k2_auxp3")
    steps = []
    HO = [3, 4, 5, 6, 7, 0, 1, 2]
    OFr = lambda m: (OF + 4*m) if m < 12 else (128 + 4*(m-12))
    for n in range(30):
        buf = LB + 12 * (n % 4)
        if n < 14:
            rd = [f"ds_read_b64_tr_b16 {vr(buf+2*x,2)}, v{vZ3} offset:{2048*n+512*x}" for x in range(2)]
            rd += [f"ds_read_b128 {vr(buf+4+4*k,4)}, v{vF3+k} offset:{2048*n}" for k in range(2)]
            mm = [f"v_mfma_f32_32x32x16_bf16 {vr(AA+16*k,16)}, {vr(buf+4+4*k,4)}, {vr(buf,4)}, {'0' if n == 0 else vr(AA+16*k,16)}" for k in range(2)]
        else:
            m = n - 14; hd, t = HO[m >> 1], m & 1
            rd = [f"ds_read_b64_tr_b16 {vr(buf+4+4*k+2*x,2)}, v{vW3+k} offset:{(28*hd+16*t)*128+1024*x}" for k in range(2) for x in range(2)]
            ks = (1, 0) if m == 15 else (0, 1)
            mm = [f"v_mfma_f32_32x32x16_bf16 {vr(AB+16*k,16)}, {vr(buf+4+4*k,4)}, {vr(OFr(m),4)}, {'0' if m == 0 else vr(AB+16*k,16)}" for k in ks]
        steps.append((rd, mm))
    for x in steps[0][0] + steps[1][0] + steps[2][0]: A(x)
    A(f"v_mul_f32 v{vG3}, {hex(f2u(-math.log2(math.e)))}, v{vG3}")
    A(f"v_exp_f32 v{vG3}, v{vG3}")
    A("s_nop 0")
    A(f"v_add_f32 v{vG3}, 1.0, v{vG3}")
    A(f"v_rcp_f32 v{vG3}, v{vG3}")
    A("s_nop 0")
    A(f"v_sub_f32 v{vG3+10}, 1.0, v{vG3}")
    for n in range(14):
        if n == 0: ST.at(10)
        if n == 7: ST.at(11)
        A(f"s_waitcnt lgkmcnt({4 * min(2, 13 - n)})")
        rd = steps[n+3][0] if n + 3 < 14 else [None] * 4
        for k in range(2):
            A(steps[n][1][k])
            for x in rd[2*k:2*k+2]:
                if x: A(x)
    ST.at(6)
    A("s_barrier")
    ST.at(7)
    def old(m):
        hd = HO[m >> 1]
        if m % 2 == 0 and (m == 0 or hd % 2 == 0 or hd == 0): A(f"s_add_u32 s{sI}, s{sOB}, {4096*(hd>>1)}")
        A(f"buffer_load_dwordx4 {vr(OFr(m),4)}, v{vO16}, {sr(sWS,4)}, s{sI} offen offset:{2048*(hd&1)+1024*(m&1)} sc1")
    NO = int(os.environ.get("NO", 10))
    for m in range(NO): old(m)
    for x in steps[14][0] + steps[15][0] + steps[16][0]: A(x)
    for r in range(32): A(f"v_mul_f32 v{AA+r}, v{vG3}, v{AA+r}")
    for n in range(14, 30):
        m = n - 14
        if NO + m < 16: old(NO + m)
        if m == 7: A("s_barrier")
        A(f"s_waitcnt vmcnt({min(NO + m + 1, 16) - m - 1}) lgkmcnt({4 * min(2, 29 - n)})")
        if m == 0: ST.at(8)
        rd = steps[n+3][0] if n + 3 < 30 else [None] * 4
        for k in range(2):
            A(steps[n][1][k])
            for x in rd[2*k:2*k+2]:
                if x: A(x)
    ST.at(9)
    A("s_nop 10")
    for g in range(4):
        for r in range(4*g, 4*g+4): A(f"v_fma_f32 v{AB+16+r}, v{vG3+10}, v{AB+16+r}, v{AA+16+r}")
        A(f"ds_write_b128 v{vX}, {vr(AB+16+4*g,4)} offset:{1024*g}")
    for r in range(16): A(f"v_fma_f32 v{AB+r}, v{vG3+10}, v{AB+r}, v{AA+r}")
    A("s_waitcnt lgkmcnt(0)")
    A("s_barrier")
    for g in range(4): A(f"ds_read_b128 {vr(AA+4*g,4)}, v{vX+1} offset:{1024*g}")
    for g in range(4):
        A(f"s_waitcnt lgkmcnt({3-g})")
        for r in range(4*g, 4*g+4): A(f"v_add_f32 v{AB+r}, v{AB+r}, v{AA+r}")
        for r in range(2*g, 2*g+2): A(f"v_cvt_pk_bf16_f32 v{LB+r}, v{AB+2*r}, v{AB+2*r+1}")
        if g & 1:
            t = g >> 1
            A(f"v_permlane32_swap_b32 v{LB+4*t}, v{LB+4*t+2}")
            A(f"v_permlane32_swap_b32 v{LB+4*t+1}, v{LB+4*t+3}")
            A(f"buffer_store_dwordx4 {vr(LB+4*t,4)}, v{vOA}, {sr(sOUT,4)}, s{sOA} offen offset:{32*t} {os.environ.get('OUTF', '')}")
    A("s_branch k2_dump" if DIAG else "s_endpgm")

    A("k2_aux:")
    sCOL, sTS = 27, 40
    A(f"s_getpc_b64 {sr(sTS,2)}")
    A(f"s_add_u32 s{sTS}, s{sTS}, tab_small@rel32@lo+4")
    A(f"s_addc_u32 s{sTS+1}, s{sTS+1}, tab_small@rel32@hi+12")
    A(f"s_mov_b32 s{sTS+2}, {TS_BYTES}")
    A(f"s_mov_b32 s{sTS+3}, 0x20000")
    A(f"s_mov_b32 s{sX+2}, 401408")
    A(f"s_mov_b32 s{sX+3}, 0x20000")
    A(f"s_mul_i32 s{sCOL}, s{sXC}, 28")
    A(f"s_add_u32 s{sCOL}, s{sCOL}, s{sJ}")
    A(f"s_cmp_eq_u32 s2, 224")
    A(f"s_cselect_b32 s{sCOL}, 224, s{sCOL}")
    C_ = lambda kind, mt, u: 48 * mt + 16 * kind + 4 * u
    X = 96
    YF = 160
    U0 = 192
    WT = 212
    TM = 244
    vG = 210
    A(f"v_lshrrev_b32 v{TM}, 2, v{vL}")
    A(f"v_mul_u32_u24 v{vG+1}, {WP}, v{TM}")
    A(f"v_mul_u32_u24 v{TM}, {YB}, v{TM}")
    A(f"v_and_b32 v{TM+1}, 3, v{vL}")
    A(f"v_lshl_add_u32 v{vG}, v{TM+1}, 4, v{TM}")
    A(f"v_lshl_add_u32 v{vG+1}, v{TM+1}, 4, v{vG+1}")
    A(f"s_lshr_b32 s{sT}, s{sCOL}, 5")
    A(f"s_lshl_b32 s{sT}, s{sT}, 12")
    A(f"s_and_b32 s{sT2}, s{sCOL}, 31")
    A(f"s_lshl_b32 s{sT2}, s{sT2}, 6")
    A(f"s_add_u32 s{sT}, s{sT}, s{sT2}")
    A(f"s_lshl_b32 s{sKO}, s{sCOL}, 6")
    A(f"v_lshrrev_b32 v{TM}, 5, v{vL}")
    A(f"v_bfe_u32 v{TM+1}, v{vL}, 2, 2")
    A(f"v_lshl_add_u32 v{TM}, v{TM}, 2, v{TM+1}")
    A(f"v_lshlrev_b32 v{TM}, 6, v{TM}")
    A(f"v_bfe_u32 v{TM+1}, v{vL}, 4, 1")
    A(f"v_lshl_add_u32 v{TM}, v{TM+1}, 5, v{TM}")
    A(f"v_and_b32 v{TM+1}, 3, v{vL}")
    A(f"v_lshl_add_u32 v{TM}, v{TM+1}, 3, v{TM}")
    A(f"v_add_u32 v{TM}, {LDS_Y}, v{TM}")
    own_flag()
    A(f"s_lshr_b32 s{sI}, s{sCOL}, 6")
    A(f"s_add_u32 s{sI}, s{sI}, 12")
    A(f"s_and_b32 s{sVO}, s{sI}, 1")
    A(f"v_bfe_u32 v4, v{vL}, 1, 1")
    A(f"v_xor_b32 v4, s{sVO}, v4")
    A(f"v_lshrrev_b32 v5, 2, v{vL}")
    A(f"v_and_b32 v6, 1, v{vL}")
    A(f"v_mov_b32 v7, s{sI}")
    A(f"s_bfe_u32 s{sI}, s{sCOL}, 0x10005")
    flag_index(2, 4, 5, 6, 7, f"s{sI}")
    A(f"s_lshr_b32 s{sVO}, s{sCOL}, 6")
    A(f"s_lshl_b32 s{sVO}, s{sVO}, 2")
    A(f"s_add_u32 s{sVO}, s{sVO}, s{sI}")
    A(f"s_lshl_b32 s{sVO}, s{sVO}, 8")
    A(f"s_add_u32 s{sVO}, s{sVO}, {WS_F1 + 512}")
    A(f"v_lshlrev_b32 v4, 12, v{vL}")
    A("s_waitcnt lgkmcnt(0)")
    A("s_barrier")
    A("s_cmp_gt_u32 s2, 224")
    A("s_cbranch_scc1 k2_auxb1")
    A(f"s_mov_b32 s{sI}, {SPIN}")
    A(f"s_mov_b32 s{sT2}, {WS_F1}")
    A("k2_py:")
    A(f"buffer_load_dwordx2 v[6:7], v2, {sr(sWS,4)}, s{sT2} offen sc1")
    A(f"buffer_load_dwordx2 v[8:9], v4, {sr(sWS,4)}, s{sVO} offen sc1")
    A(f"buffer_load_dwordx2 v[10:11], v4, {sr(sWS,4)}, s{sVO} offen offset:128 sc1")
    A("s_waitcnt vmcnt(0)")
    A("v_cmp_ne_u64 vcc, s[6:7], v[6:7]")
    A("v_cmp_ne_u64 s[36:37], s[6:7], v[8:9]")
    A("v_cmp_ne_u64 s[38:39], s[6:7], v[10:11]")
    A("s_nop 1")
    A("s_or_b64 vcc, vcc, s[36:37]")
    A("s_or_b64 vcc, vcc, s[38:39]")
    A("s_and_b64 exec, exec, vcc")
    A("s_cbranch_scc0 k2_py_done")
    A(f"s_sub_u32 s{sI}, s{sI}, 1")
    A("s_sleep 4")
    A(f"s_cmp_gt_i32 s{sI}, 0")
    A("s_cbranch_scc1 k2_py")
    A("k2_py_done:")
    A("s_mov_b64 exec, -1")
    ST.at(12)
    A("s_setprio 3")
    def ydma(n):
        A(f"s_mov_b32 m0, {LDS_Y + 1024*n}")
        A(f"s_add_u32 s{sT2}, s{sT}, {WS_Y + (n>>2)*2048 + (n&3)*16*YB}")
        A(f"buffer_load_dwordx4 v{vG}, {sr(sWS,4)}, s{sT2} offen sc1 lds")
    def cld(dst, off):
        A(f"s_mov_b32 s{sT2}, {off}")
        for f in range(4): A(f"buffer_load_dwordx4 {vr(dst+4*f,4)}, v{vO16}, {sr(sTS,4)}, s{sT2} offen offset:{1024*f}")
    def wld(f):
        return [f"s_add_u32 s{sT2}, s{sKO}, {WS_W + f*16*WP}",
                f"buffer_load_dwordx4 {vr(WT+4*f,4)}, v{vG+1}, {sr(sWS,4)}, s{sT2} offen sc1"]
    sFI = 44
    A(f"s_mul_i32 s{sFI}, s{sNT}, {2*28672}")
    def fimg(gr):
        for st_ in range(4*gr, 4*gr+4):
            A(f"s_mov_b32 m0, {LF + 2048*st_}")
            A(f"s_add_u32 s{sT2}, s{sFI}, {1024*st_}")
            A(f"buffer_load_dwordx4 v{vO16}, {sr(sTB,4)}, s{sT2} offen lds")
            A(f"s_add_u32 s{sT2}, s{sT2}, {28672-1024}")
            A(f"buffer_load_dwordx4 v{vO16}, {sr(sTB,4)}, s{sT2} offen offset:1024 lds")
    for n in range(8): ydma(n)
    for kind in range(3): cld(C_(kind, 0, 0), TS_F64 + kind * 8192)
    for f in range(0, 4):
        for x in wld(f): A(x)
    for kind in range(3): cld(C_(kind, 1, 0), TS_F64 + kind * 8192 + 4096)
    ST.at(0)
    A("s_waitcnt vmcnt(28)")
    ST.at(1)
    for p in range(2):
        for u in range(4):
            A(f"ds_read_b64_tr_b16 {vr(YF+16*p+4*u,2)}, v{TM} offset:{4096*p+1024*u}")
            A(f"ds_read_b64_tr_b16 {vr(YF+16*p+4*u+2,2)}, v{TM} offset:{4096*p+1024*u+512}")
    for f in range(4, 8):
        for x in wld(f): A(x)
    A("s_waitcnt vmcnt(20) lgkmcnt(0)")
    Yr = lambda u: vr(YF+4*u,4)
    Yi = lambda u: vr(YF+16+4*u,4)
    mf = lambda d, a, b, first=False: f"v_mfma_f32_32x32x16_bf16 {vr(d,16)}, {a}, {b}, {'0' if first else vr(d,16)}"
    cf = lambda kind, mt, u: vr(C_(kind, mt, u), 4)
    def p3(mt):
        L = []
        for u in range(4):
            L += [mf(X+32*mt, cf(0, mt, u), Yr(u), u == 0), mf(X+32*mt+16, cf(0, mt, u), Yi(u), u == 0)]
        for u in range(4):
            L += [mf(X+32*mt, cf(1, mt, u), Yi(u)), mf(X+32*mt+16, cf(2, mt, u), Yr(u))]
        return L
    Ur = lambda u: (U0 + 4*u) if u < 2 else (YF + 4*u)
    Ui = lambda u: (U0 + 8 + 4*u) if u < 2 else (YF + 16 + 4*u)
    def cmul_pack(xr0, xi0, cr, ci, dr, di):
        L = []
        for i in range(4):
            L += [f"v_mul_f32 v{TM+8+i}, v{xr0+i}, v{cr(i)}", f"v_mul_f32 v{xr0+i}, v{xr0+i}, v{ci(i)}"]
        for i in range(4):
            L += [f"v_fma_f32 v{TM+8+i}, -v{xi0+i}, v{ci(i)}, v{TM+8+i}", f"v_fma_f32 v{xr0+i}, v{xi0+i}, v{cr(i)}, v{xr0+i}"]
        L += [f"v_cvt_pk_bf16_f32 v{dr}, v{TM+8}, v{TM+9}", f"v_cvt_pk_bf16_f32 v{dr+1}, v{TM+10}, v{TM+11}",
              f"v_cvt_pk_bf16_f32 v{di}, v{xr0}, v{xr0+1}", f"v_cvt_pk_bf16_f32 v{di+1}, v{xr0+2}, v{xr0+3}"]
        return L
    def wmul(mt):
        L = []
        for g in range(4):
            w = WT + 4 * (4 * mt + g)
            for i in range(4):
                op = "v_and_b32 v{}, 0xffff0000, v{}" if i & 1 else "v_lshlrev_b32 v{}, 16, v{}"
                L += [op.format(TM + i, w + (i >> 1)), op.format(TM + 4 + i, w + 2 + (i >> 1))]
            u = 2 * mt + (g >> 1)
            L += cmul_pack(X+32*mt+4*g, X+32*mt+16+4*g, lambda i: TM + i, lambda i: TM + 4 + i, Ur(u) + 2*(g&1), Ui(u) + 2*(g&1))
        return L
    def p4(nt, us):
        L = []
        for u in us:
            L += [mf(X+32*nt, vr(Ur(u),4), cf(0, nt, u), u == 0), mf(X+32*nt+16, vr(Ui(u),4), cf(0, nt, u), u == 0)]
        for u in us:
            L += [mf(X+32*nt, vr(Ui(u),4), cf(2, nt, u)), mf(X+32*nt+16, vr(Ur(u),4), cf(1, nt, u))]
        return L
    Tr = lambda nt: YF if nt == 0 else U0
    Ti = lambda nt: YF + 16 if nt == 0 else U0 + 8
    TW = lambda nt: 48 * nt
    F32 = WT
    def twid(nt):
        L = []
        for g in range(4):
            L += cmul_pack(X+32*nt+4*g, X+32*nt+16+4*g, lambda i: TW(nt) + 4*g + i, lambda i: TW(nt) + 16 + 4*g + i, Tr(nt) + 2*g, Ti(nt) + 2*g)
        return L
    def p5(nt):
        L = []
        for t in range(2):
            L += [mf(X+32*nt, vr(F32+4*t,4), vr(Tr(nt)+4*t,4), t == 0), mf(X+32*nt+16, vr(F32+4*t,4), vr(Ti(nt)+4*t,4), t == 0)]
        for t in range(2):
            L += [mf(X+32*nt, vr(F32+16+4*t,4), vr(Ti(nt)+4*t,4)), mf(X+32*nt+16, vr(F32+8+4*t,4), vr(Tr(nt)+4*t,4))]
        return L
    sZR, sZI = 29, 30
    def outp(nt):
        L = []
        for p in range(2):
            z = X + 32*nt + 16*p; P = TW(nt) + 8*p
            for r in range(8): L.append(f"v_cvt_pk_bf16_f32 v{P+r}, v{z+2*r}, v{z+2*r+1}")
            L.append("s_nop 1")
            for t in range(2):
                L += [f"v_permlane32_swap_b32 v{P+4*t}, v{P+4*t+2}", f"v_permlane32_swap_b32 v{P+4*t+1}, v{P+4*t+3}"]
            for t in range(2):
                L.append(f"ds_write_b128 v{vG}, {vr(P+4*t,4)} offset:{4096*p+2048*nt+32*t}")
        return L
    def outst():
        A("s_waitcnt lgkmcnt(0)")
        for k in range(8): A(f"ds_read_b128 {vr(X+4*k,4)}, v{vG+1} offset:{1024*k}")
        for k in range(8):
            A(f"s_waitcnt lgkmcnt({7-k})")
            A(f"buffer_store_dwordx4 {vr(X+4*k,4)}, v{vO16}, {sr(sWS,4)}, s{sZR+(k>>2)} offen offset:{1024*(k&3)} sc1")
    for x in p3(0): A(x)
    ST.at(2)
    A("s_waitcnt vmcnt(4)")
    A("s_nop 7")
    for x in merge(p3(1), wmul(0)): A(x)
    A("s_waitcnt vmcnt(0)")
    A("s_nop 7")
    for x in merge(p4(0, (0, 1)), wmul(1)): A(x)
    for x in p4(0, (2, 3)): A(x)
    ST.at(3)
    cld(TW(0), TS_TW); cld(TW(0) + 16, TS_TW + 4096)
    A(f"s_mov_b32 s{sT2}, {TS_F32}")
    for f in range(4): A(f"buffer_load_dwordx4 {vr(F32+4*f,4)}, v{vO16}, {sr(sTS,4)}, s{sT2} offen offset:{1024*f}")
    A(f"s_mov_b32 s{sT2}, {TS_F32+4096}")
    for f in range(2): A(f"buffer_load_dwordx4 {vr(F32+16+4*f,4)}, v{vO16}, {sr(sTS,4)}, s{sT2} offen offset:{1024*f}")
    A(f"s_lshr_b32 s{sT}, s{sCOL}, 1")
    A(f"s_and_b32 s{sT2}, s{sCOL}, 1")
    A(f"s_mul_i32 s{sT2}, s{sT2}, 224")
    A(f"s_add_u32 s{sT}, s{sT}, s{sT2}")
    A(f"s_mul_i32 s{sT}, s{sT}, {ZP}")
    A(f"s_add_u32 s{sZR}, s{sT}, {WS_Z}")
    A(f"s_add_u32 s{sZI}, s{sZR}, {112*ZP}")
    A(f"s_cmp_eq_u32 s{sCOL}, 0")
    A(f"s_cselect_b32 s{sZI}, {WS_G + 0x4000}, s{sZI}")
    A(f"s_cmp_eq_u32 s{sCOL}, 224")
    A(f"s_cselect_b32 s{sZI}, {WS_G + 0x6000}, s{sZI}")
    A(f"v_and_b32 v{vG}, 31, v{vL}")
    A(f"v_lshlrev_b32 v{vG}, 6, v{vG}")
    A(f"v_lshrrev_b32 v{vG+1}, 5, v{vL}")
    A(f"v_lshl_add_u32 v{vG}, v{vG+1}, 4, v{vG}")
    A(f"v_add_u32 v{vG}, {LDS_Y}, v{vG}")
    A(f"v_add_u32 v{vG+1}, {LDS_Y}, v{vO16}")
    A("s_waitcnt vmcnt(6)")
    for x in merge(p4(1, (0, 1, 2, 3)), twid(0)): A(x)
    cld(TW(1), TS_TW + 8192); cld(TW(1) + 16, TS_TW + 12288)
    ST.at(4)
    A("s_waitcnt vmcnt(0)")
    for x in merge(p5(0), twid(1)): A(x)
    A("s_nop 1")
    for x in merge(p5(1), outp(0)): A(x)
    A("s_nop 7")
    for x in outp(1): A(x)
    outst()
    ST.at(5)
    A("s_setprio 0")
    fimg(0); fimg(1)
    A(f"s_lshl_b32 s{sT}, s{sCOL}, 7")
    A(f"s_add_u32 s{sT}, s{sT}, {WS_FZ}")
    A(f"v_mov_b32 v{TM+4}, 0")
    A(f"v_mov_b32 v{TM+6}, s6")
    A(f"v_mov_b32 v{TM+7}, s7")
    A("s_mov_b64 exec, 1")
    A("s_waitcnt vmcnt(0)")
    ST.at(6)
    A(f"buffer_store_dwordx2 {vr(TM+6,2)}, v{TM+4}, {sr(sWS,4)}, s{sT} offen sc1")
    A("s_mov_b64 exec, -1")
    A("s_cmp_ge_u32 s2, 224")
    A("s_cbranch_scc1 k2_auxw")
    A(f"v_lshrrev_b32 v{TM}, 3, v{vL}")
    A(f"v_and_b32 v{TM+1}, 7, v{vL}")
    A(f"v_bfe_u32 v{TM+2}, v{vL}, 4, 1")
    A(f"v_lshlrev_b32 v{TM+2}, 2, v{TM+2}")
    A(f"v_xor_b32 v{TM+1}, v{TM+1}, v{TM+2}")
    A(f"v_lshlrev_b32 v{TM+1}, 4, v{TM+1}")
    A(f"v_mul_u32_u24 v{TM+2}, {ZP}, v{TM}")
    A(f"v_add_u32 v{TM+2}, v{TM+2}, v{TM+1}")
    def image(name, lds, vaddr, srd, pitch, flag, depth):
        A(f"s_mov_b32 s{sI}, {lds}")
        A(f"{name}:")
        A(f"s_mov_b32 m0, s{sI}")
        for i in range(4):
            if i: A(f"s_add_u32 s{sT}, s{sT}, {8*pitch-1024}")
            else: A("s_nop 0")
            A(f"buffer_load_dwordx4 v{vaddr}, {srd}, s{sT} offen offset:{1024*i} {flag} lds")
        A(f"s_add_u32 s{sT}, s{sT}, {8*pitch+3072}")
        A(f"s_add_u32 s{sI}, s{sI}, 4096")
        A(f"s_waitcnt vmcnt({depth})")
        A(f"s_cmp_lt_u32 s{sI}, {lds+57344}")
        A(f"s_cbranch_scc1 {name}")
    def poll(name, lines, sl):
        A(f"s_mov_b32 s{sI}, {SPIN}")
        A(f"{name}:")
        for x in lines: A(x)
        A("s_cmp_eq_u64 vcc, -1")
        A(f"s_cbranch_scc1 {name}_done")
        A(f"s_sub_u32 s{sI}, s{sI}, 1")
        A(f"s_sleep {sl}")
        A(f"s_cmp_lg_u32 s{sI}, 0")
        A(f"s_cbranch_scc1 {name}")
        A(f"{name}_done:")
    for gr in range(2, 7):
        fimg(gr)
        A(f"s_waitcnt vmcnt({os.environ.get('DF', 16)})")
    A(f"s_and_b32 s{sT}, s{sJ}, 3")
    A(f"s_mul_i32 s{sT}, s{sT}, {112*896}")
    A(f"s_lshl_b32 s{sT2}, s{sNT}, 7")
    A(f"s_add_u32 s{sT}, s{sT}, s{sT2}")
    A(f"v_mul_u32_u24 v8, 896, v{vL}")
    A(f"buffer_load_dword v9, v8, {sr(sX,4)}, s{sT} offen")
    A(f"s_add_u32 s{sT}, s{sT}, {48*896}")
    A(f"buffer_load_dword v10, v8, {sr(sX,4)}, s{sT} offen")
    ST.at(7)
    A(f"v_lshlrev_b32 v4, 7, v{vL}")
    A(f"v_add_u32 v5, 0x6000, v4")
    A(f"v_min_u32 v5, {224*128}, v5")
    A(f"s_lshr_b32 s{sT}, s{sMT}, 1")
    A(f"s_and_b32 s{sT2}, s{sT}, 3")
    A(f"s_add_u32 s{sT2}, s{sT2}, 28")
    A(f"s_lshl_b32 s{sT2}, s{sT2}, 2")
    A(f"s_lshr_b32 s{sT}, s{sT}, 2")
    A(f"s_add_u32 s{sT2}, s{sT2}, s{sT}")
    A(f"s_lshl_b32 s{sT2}, s{sT2}, 11")
    A(f"s_add_u32 s{sT2}, s{sT2}, {WS_F1 - WS_FZ + 1024 + 256}")
    A(f"v_writelane_b32 v5, s{sT2}, 62")
    A(f"s_add_u32 s{sT2}, s{sT2}, 128")
    A(f"v_writelane_b32 v5, s{sT2}, 63")
    A(f"s_mov_b32 s{sI}, {SPIN}")
    A(f"s_mov_b32 s{sT}, {WS_FZ}")
    A(f"s_mov_b32 s{sT2}, {WS_FZ + 0x2000}")
    A(f"s_mov_b32 s{sKO}, {WS_FZ + 0x4000}")
    A("k2_pz:")
    A(f"buffer_load_dwordx2 v[12:13], v4, {sr(sWS,4)}, s{sT} offen sc1")
    A(f"buffer_load_dwordx2 v[14:15], v4, {sr(sWS,4)}, s{sT2} offen sc1")
    A(f"buffer_load_dwordx2 v[16:17], v4, {sr(sWS,4)}, s{sKO} offen sc1")
    A(f"buffer_load_dwordx2 v[18:19], v5, {sr(sWS,4)}, s{sT} offen sc1")
    A("s_waitcnt vmcnt(0)")
    A("v_cmp_ne_u64 vcc, s[6:7], v[12:13]")
    A("v_cmp_ne_u64 s[36:37], s[6:7], v[14:15]")
    A("v_cmp_ne_u64 s[38:39], s[6:7], v[16:17]")
    A("v_cmp_ne_u64 s[62:63], s[6:7], v[18:19]")
    A("s_nop 1")
    A("s_or_b64 vcc, vcc, s[36:37]")
    A("s_or_b64 vcc, vcc, s[38:39]")
    A("s_or_b64 vcc, vcc, s[62:63]")
    A("s_and_b64 exec, exec, vcc")
    A("s_cbranch_scc0 k2_pz_done")
    A(f"s_sub_u32 s{sI}, s{sI}, 1")
    A(f"s_sleep {os.environ.get('ZSL', 6)}")
    A(f"s_cmp_gt_i32 s{sI}, 0")
    A("s_cbranch_scc1 k2_pz")
    A("k2_pz_done:")
    A("s_mov_b64 exec, -1")
    ST.at(8)
    A(f"s_lshl_b32 s{sT}, s{sMT}, 7")
    A(f"s_add_u32 s{sT}, s{sT}, {WS_Z}")
    image("k2_imz", LZ, TM+2, sr(sWS,4), ZP, os.environ.get("ZF", "sc1"), int(os.environ.get("DZ", 32)))
    A("k2_auxw:")
    ST.at(9)
    A("k2_auxb1:")
    A(f"v_lshrrev_b32 v{vWD}, 3, v{vL}")
    A(f"v_and_b32 v{vT+6}, 7, v{vL}")
    A(f"v_bfe_u32 v{vT+7}, v{vL}, 4, 1")
    A(f"v_lshlrev_b32 v{vT+7}, 2, v{vT+7}")
    A(f"v_xor_b32 v{vT+6}, v{vT+6}, v{vT+7}")
    A(f"v_mul_u32_u24 v{vWD}, 896, v{vWD}")
    A(f"v_lshl_add_u32 v{vWD}, v{vT+6}, 4, v{vWD}")
    A("s_barrier")
    A("s_barrier")
    A("s_cmp_ge_u32 s2, 224")
    A("s_cbranch_scc1 k2_chk")
    A(f"s_lshl_b32 s{sT}, s{sNT}, 7")
    A(f"s_add_u32 s{sT}, s{sT}, {64*896}")
    for i in range(48):
        if i % 4 == 0: A(f"s_mov_b32 m0, {RED + 1024*i}")
        if i: A(f"s_add_u32 s{sT}, s{sT}, {8*896-1024 if i % 4 else 8*896+3072}")
        if i == 47: A("s_mov_b32 exec_hi, 0x00ffffff")
        A(f"buffer_load_dwordx4 v{vWD}, {sr(sX,4)}, s{sT} offen offset:{1024*(i%4)} lds")
    A("s_mov_b32 exec_hi, -1")
    A(f"s_mov_b32 s{sWS_}, s{sT}")
    A("s_waitcnt vmcnt(48)")
    A("s_branch k2_chk")
    A("k2_auxfb:")
    A("s_waitcnt vmcnt(0)")
    A("s_barrier")
    A("s_barrier")
    A("s_branch k2_auxb1")
    A("k2_auxp3:")
    A(f"v_and_b32 v4, 31, v{vL}")
    A("v_lshlrev_b32 v4, 7, v4")
    A(f"s_lshl_b32 s{sT}, s{sMT}, 12")
    A(f"s_add_u32 s{sT}, s{sT}, {WS_FO}")
    ST.at(10)
    A(f"s_mov_b32 s{sKO}, s{sT}")
    if int(os.environ.get("OD", 0)): A(f"s_sleep {os.environ.get('OD')}")
    A(f"buffer_load_dwordx2 v[0:1], v4, {sr(sWS,4)}, s{sKO} offen sc1")
    A(f"s_mov_b32 m0, {RED + 1024*44}")
    A("s_mov_b32 exec_lo, 0")
    A("s_mov_b32 exec_hi, 0xff000000")
    A(f"buffer_load_dwordx4 v{vWD}, {sr(sX,4)}, s{sWS_} offen offset:3072 lds")
    A("s_mov_b64 exec, -1")
    A(f"s_mov_b32 s{sT}, s{sKO}")
    A("s_waitcnt vmcnt(0)")
    A("v_cmp_eq_u64 vcc, s[6:7], v[0:1]")
    A("s_nop 1")
    A("s_cmp_eq_u64 vcc, -1")
    A("s_cbranch_scc1 k2_po_done")
    poll("k2_po", [f"buffer_load_dwordx2 v[0:1], v4, {sr(sWS,4)}, s{sT} offen sc1", "s_waitcnt vmcnt(0)", "v_cmp_eq_u64 vcc, s[6:7], v[0:1]", "s_nop 1"], int(os.environ.get("OSL", 2)))
    ST.at(11)
    A("s_barrier")
    A(f"s_lshl_b32 s{sT}, s{sNT}, 7")
    for i in range(8):
        if i % 4 == 0: A(f"s_mov_b32 m0, {LW + 1024*i}")
        if i: A(f"s_add_u32 s{sT}, s{sT}, {8*896-1024 if i % 4 else 8*896+3072}")
        A(f"buffer_load_dwordx4 v{vWD}, {sr(sX,4)}, s{sT} offen offset:{1024*(i%4)} lds")
    A("s_waitcnt vmcnt(0)")
    A("s_barrier")
    if DIAG: A("k2_dump:")
    ST.dump(sWS, sW, 5, 250)
    A("k2_end:")
    A("s_endpgm")
    body = A.L[loop_start:loop_end]
    rep = check_seq(body + body)
    assert not rep, rep
    return A.L, NV, 102 if DIAG else 64
```

```python
import sys, numpy as np
from asmlib import *
import os, importlib
gen_k1 = importlib.import_module(os.environ.get('K1', 'k1')).gen_k1
from k2 import gen_k2, K2_LDS, TS_BYTES, TAB_INV_BYTES
NAME = "gated_mix__spectral_gfnet__softmax_full_mha__prompt"
def bf16(x):
    u = np.asarray(x, dtype=np.float32).view(np.uint32).astype(np.uint64)
    return ((u + 0x7fff + ((u >> 16) & 1)) >> 16).astype(np.uint16)
def perm(u, h, j): return 16 * u + 8 * (j >> 2) + 4 * h + (j & 3)
def cs(num, den):
    num = num % den
    a = 2 * np.pi * num / den
    c, s = np.cos(a), np.sin(a)
    c = np.where(np.abs(c) < 1e-12, 0.0, c); s = np.where(np.abs(s) < 1e-12, 0.0, s)
    return c, s
def small_tables():
    l = np.arange(64); m = l & 31; h = l >> 5
    out = []
    F = np.zeros((3, 2, 4, 64, 8))
    for mt in range(2):
        for u in range(4):
            for j in range(8):
                c, s = cs((32 * mt + m) * perm(u, h, j), 64)
                F[0, mt, u, :, j] = c; F[1, mt, u, :, j] = s; F[2, mt, u, :, j] = -s
    out.append(bf16(F).tobytes())
    G = np.zeros((3, 2, 64, 8))
    for t in range(2):
        for j in range(8):
            c, s = cs(m * perm(t, h, j), 32)
            G[0, t, :, j] = c; G[1, t, :, j] = s; G[2, t, :, j] = -s
    out.append(bf16(G).tobytes())
    T = np.zeros((2, 2, 4, 64, 4), np.float32)
    for nt in range(2):
        for g in range(4):
            for i in range(4):
                c, s = cs((32 * nt + m) * (8 * g + 4 * h + i), 2048)
                T[nt, 0, g, :, i] = c; T[nt, 1, g, :, i] = s
    out.append(T.tobytes())
    b = b"".join(out)
    assert len(b) == TS_BYTES
    q = np.frombuffer(b, dtype=np.uint64)
    return [".quad " + ",".join(hex(int(v)) for v in q[i:i+8]) for i in range(0, len(q), 8)]
def big_tables():
    L = []
    c448, _ = cs(np.arange(448), 448)
    for i, v in enumerate(bf16(c448)): L.append(f".set C{i},{int(v)}")
    SD = 2048 * 448
    for i, v in enumerate(bf16(2 * c448 / SD)): L.append(f".set D{i},{int(v)}")
    L.append(f".set D448,{int(bf16([1/SD])[0])}"); L.append(f".set D449,{int(bf16([-1/SD])[0])}")
    for kr in range(448):
        if kr <= 112: k2, ph = 2 * kr, 0
        elif kr < 224: k2, ph = 2 * (kr - 112), 112
        elif kr < 336: k2, ph = 2 * (kr - 224) + 1, 0
        else: k2, ph = 2 * (kr - 336) + 1, 112
        md, ad = 448, 0
        if kr == 0: ad = 448
        if kr == 112: k2, md, ad = 1, 2, 448
        L.append(f".set KA{kr},{k2}\n.set KB{kr},{ph}\n.set KC{kr},{md}\n.set KD{kr},{ad}")
    L.append(r""".altmacro
.macro FW4 a,b,c,d
.short C\a,C\b,C\c,C\d
.endm
.macro LK i
.short D\i
.endm
.macro IV1 d,r
LK %((KA\r*\d+KB\r)%KC\r+KD\r)
.endm
.p2align 8
tab_fwd:
.set td,0
.rept 448
.set tg,0
.rept 14
.set tk,(tg>>1)*32
.set tp,(tg&1)*112
.rept 8
FW4 %((tk*td+tp)%448),%(((tk+1)*td+tp)%448),%(((tk+2)*td+tp)%448),%(((tk+3)*td+tp)%448)
.set tk,tk+4
.endr
.set tg,tg+1
.endr
FW4 %((224*td)%448),112,112,112
.fill 60,2,0
.set td,td+1
.endr
.p2align 8
tab_inv:
.set tn,0
.rept 14
.set tc,0
.rept 28
.set tr,tc*16
.set tl,0
.rept 64
.set tj,0
.rept 8
IV1 %(tn*32+(tl&31)),%(tr+(tl>>5)*8+tj)
.set tj,tj+1
.endr
.set tl,tl+1
.endr
.set tc,tc+1
.endr
.set tn,tn+1
.endr
.noaltmacro""")
    return L
def desc(name, nv, ns):
    return f""".p2align 6
.amdhsa_kernel {name}
  .amdhsa_next_free_vgpr {nv}
  .amdhsa_next_free_sgpr {ns}
  .amdhsa_accum_offset {(nv+3)//4*4}
  .amdhsa_group_segment_fixed_size 0
  .amdhsa_kernarg_size 80
  .amdhsa_user_sgpr_count 2
  .amdhsa_user_sgpr_kernarg_segment_ptr 1
  .amdhsa_system_sgpr_workgroup_id_x 1
.end_amdhsa_kernel"""
import os
def main(path, which=tuple(int(c) for c in os.environ.get('WHICH', '123'))):
    n = NAME + "_kernel"
    o = ["; gated mix of a GFNet spectral filter and 16-head softmax attention (one persistent launch; generated by gen/gen.py)",
         "; @launch grid=(256,1,1) block=(512,1,1) lds=163840",
         '.amdgcn_target "amdgcn-amd-amdhsa--gfx950"', f".set TAB_INV_BYTES,{TAB_INV_BYTES}", ".text"]
    L1, _, ns = gen_k1(); L2, nv, _ = gen_k2()
    nt = os.environ.get("NT", "W")
    def f(l):
        if "A" in nt and "s[8:11]" in l and l.endswith("lds"): return l[:-3] + "nt lds"
        if "B" in nt and "s[12:15]" in l and l.endswith("lds"): return l[:-3] + "nt lds"
        if "W" in nt and "buffer_load_ushort" in l: return l + " nt"
        return l
    L = [f(l) for l in L1] + [".p2align 6"] + L2
    rep = []
    L = fix_hazards(L, rep)
    print("lines", len(L), "nops inserted", len(rep), file=sys.stderr)
    if "-v" in sys.argv:
        for r in rep: print("   ", r, file=sys.stderr)
    o += [f".globl {n}", ".p2align 8", f".type {n},@function", f"{n}:"] + L
    ds = [desc(n, nv, ns)]
    o.append(".fill 2048,4,0xbf810000")
    o.append('.section .rodata,"a"')
    o += ds
    o.append(".p2align 8"); o.append("tab_small:"); o += small_tables()
    o.append(".fill 2048,1,0")
    o += big_tables()
    open(path, "w").write("\n".join(o) + "\n")
if __name__ == "__main__":
    main(sys.argv[1] if len(sys.argv) > 1 and not sys.argv[1].startswith("-") else f"cdna_kernels/{NAME}.s")
```

```python
from asmlib import *
from k1 import WS_Q, WS_K, WS_V, WS_Y, WS_W, WS_O, WS_Z, WS_G, WS_BYTES, WS_FO, WS_FZ, WS_F1, f2u, YB, WP, ZP
import math, os
TS_F64, TS_F32, TS_TW, TS_BYTES = 0, 24576, 30720, 47104
LF, LZ, RED = 0, 57344, 114688
LW = RED - 8192
LDS_Y, LDS_Q = LZ, RED + 8192
K2_LDS = 163840
TAB_INV_BYTES = 401408
from k1 import SPIN
N0 = int(os.environ.get("N0", 13)); N1 = (64 - N0) // 3
assert N0 + 3 * N1 == 64
OST = os.environ.get("OST", "")

def merge(ms, vs, lead=0):
    out = []; n = len(ms); k = 0
    for i, m in enumerate(ms):
        out.append(m)
        k2 = (len(vs) * (i + 1)) // n
        out += vs[k:k2]; k = k2
    return out

def gen_k2():
    A = Asm()
    sWS, sX, sTB = 8, 12, 16
    sW, sJ, sXC, sHD, sQB, sT, sT2, sCNT, sI, sKO, sLO, sHI, sVO, sPASS = 20, 21, 22, 23, 24, 25, 26, 27, 28, 29, 30, 31, 32, 33
    sK0, sOK, sQ, sOUT = 34, 35, 40, 48
    sMT, sNT, sPUB, sLO2 = 52, 53, 57, 58
    O, S, Q, KV = 0, 64, 128, 160
    vL, vO16, vIDX, vT = 208, 209, 210, 212
    NV = 256
    vWD, sWM, sWS_ = 237, 59, 60
    vTAG = 240
    A("k2_start:")
    ST = Stamps(A, 1); ST.begin()
    A(f"s_load_dwordx2 {sr(sX,2)}, s[0:1], 40")
    A(f"s_load_dwordx2 {sr(sOUT,2)}, s[0:1], 56")
    A(f"s_mov_b32 s{sWS}, s16")
    A(f"s_mov_b32 s{sWS+1}, s17")
    A(f"s_mov_b32 s{sWS+2}, {WS_BYTES}")
    A(f"s_mov_b32 s{sWS+3}, 0x20000")
    A(f"s_mov_b32 s{sW}, s47")
    A(f"v_mov_b32 v{vL}, v64")
    A(f"v_mov_b32 v{vTAG}, s6")
    A(f"v_mov_b32 v{vTAG+1}, s7")
    A(f"v_lshlrev_b32 v{vO16}, 4, v{vL}")
    A(f"v_and_b32 v{vT+9}, 31, v{vL}")
    A(f"v_lshlrev_b32 v{vT+9}, 2, v{vT+9}")
    A(f"s_and_b32 s{sXC}, s2, 7")
    A(f"s_lshr_b32 s{sJ}, s2, 3")
    A(f"s_and_b32 s{sT}, s{sJ}, 3")
    A(f"s_lshl_b32 s{sMT}, s{sXC}, 2")
    A(f"s_add_u32 s{sMT}, s{sMT}, s{sT}")
    A(f"s_lshr_b32 s{sNT}, s{sJ}, 2")
    A(f"s_getpc_b64 {sr(sTB,2)}")
    A(f"s_add_u32 s{sTB}, s{sTB}, tab_inv@rel32@lo+4")
    A(f"s_addc_u32 s{sTB+1}, s{sTB+1}, tab_inv@rel32@hi+12")
    A(f"s_mov_b32 s{sTB+2}, {TAB_INV_BYTES}")
    A(f"s_mov_b32 s{sTB+3}, 0x20000")
    def own_flag():
        A(f"s_lshl_b32 s{sPUB}, s2, 3")
        A(f"s_add_u32 s{sPUB}, s{sPUB}, s{sW}")
        A(f"s_lshl_b32 s{sPUB}, s{sPUB}, 7")
        A(f"s_add_u32 s{sPUB}, s{sPUB}, {WS_F1}")
        A("v_mov_b32 v12, 0")
        A("s_mov_b64 exec, 1")
        A("s_waitcnt vmcnt(0)")
        A(f"buffer_store_dwordx2 {vr(vTAG,2)}, v12, {sr(sWS,4)}, s{sPUB} offen sc1")
        A("s_mov_b64 exec, -1")
    def flag_index(d, vpass, vmt, ve, vnt, shh):
        A(f"v_and_b32 v{d}, 7, v{vnt}")
        A(f"v_lshlrev_b32 v{d}, 2, v{d}")
        A(f"v_and_or_b32 v{d}, v{vmt}, 3, v{d}")
        A(f"v_lshrrev_b32 v{d+1}, 2, v{vmt}")
        A(f"v_lshl_add_u32 v{d}, v{d}, 2, v{d+1}")
        A(f"v_lshrrev_b32 v{d+1}, 3, v{vnt}")
        A(f"v_lshl_add_u32 v{d}, v{d}, 1, v{d+1}")
        A(f"v_xor_b32 v{d+1}, 1, v{vpass}")
        A(f"v_lshl_add_u32 v{d}, v{d}, 1, v{d+1}")
        A(f"v_lshl_add_u32 v{d}, v{d}, 1, {shh}")
        A(f"v_lshl_add_u32 v{d}, v{d}, 1, v{ve}")
        A(f"v_lshlrev_b32 v{d}, 7, v{d}")
    A(f"s_cmp_eq_u32 s{sW}, 4")
    A("s_cbranch_scc1 k2_aux")
    A(f"s_lshr_b32 s{sHD}, s{sJ}, 4")
    A(f"s_lshl_b32 s{sHD}, s{sHD}, 3")
    A(f"s_add_u32 s{sHD}, s{sHD}, s{sXC}")
    A(f"s_and_b32 s{sQB}, s{sJ}, 15")
    A(f"s_cmp_eq_u32 s{sW}, 0")
    A(f"s_cselect_b32 s{sCNT}, {N0}, {N1}")
    A(f"s_mul_i32 s{sT}, s{sW}, {N1}")
    A(f"s_sub_u32 s{sT}, s{sT}, {N1-N0}")
    A(f"s_max_i32 s{sT}, s{sT}, 0")
    A(f"s_lshl_b32 s{sT2}, s{sW}, 4")
    A(f"s_cmp_le_u32 s2, 224")
    A(f"s_cselect_b32 s{sCNT}, s{sCNT}, 16")
    A(f"s_cselect_b32 s{sT}, s{sT}, s{sT2}")
    A(f"s_mul_i32 s{sK0}, s{sW}, 3")
    A(f"s_sub_u32 s{sLO}, s{sT}, s{sK0}")
    A(f"s_add_u32 s{sLO}, s{sLO}, 9")
    A(f"v_lshrrev_b32 v2, 1, v{vL}")
    A(f"s_sub_u32 s{sT2}, s{sCNT}, 1")
    A(f"v_min_u32 v2, s{sT2}, v2")
    A(f"v_add_u32 v3, s{sK0}, v2")
    A(f"v_add_u32 v4, s{sLO}, v2")
    A("v_cmp_gt_u32 vcc, 3, v2")
    A(f"s_lshr_b32 s{sT2}, s{sHD}, 2")
    A(f"s_and_b32 s{sI}, s{sT2}, 1")
    A("v_cndmask_b32 v3, v4, v3, vcc")
    A("v_lshrrev_b32 v4, 5, v3")
    A("v_bfe_u32 v5, v3, 1, 4")
    A("v_and_b32 v6, 1, v3")
    A(f"v_and_b32 v7, 1, v{vL}")
    A(f"v_lshl_add_u32 v7, v7, 2, s{sT2}")
    A("v_add_u32 v7, 4, v7")
    A(f"v_cmp_lt_u32 vcc, 33, v{vL}")
    A(f"s_lshr_b32 s{sKO}, s{sW}, 1")
    A(f"s_xor_b32 s{sKO}, s{sKO}, s{sI}")
    A(f"s_and_b32 s{sVO}, s{sW}, 1")
    A(f"v_mov_b32 v8, s{sKO}")
    A(f"v_mov_b32 v9, s{sQB}")
    A(f"v_mov_b32 v10, s{sVO}")
    A(f"v_mov_b32 v11, s{sT2}")
    for k in range(4): A(f"v_cndmask_b32 v{4+k}, v{4+k}, v{8+k}, vcc")
    A(f"s_bfe_u32 s{sI}, s{sHD}, 0x10001")
    flag_index(2, 4, 5, 6, 7, f"s{sI}")
    A(f"s_lshl_b32 s{sT2}, s{sHD}, 6")
    A(f"s_add_u32 s{sK0}, s{sK0}, s{sT2}")
    A(f"s_lshl_b32 s{sK0}, s{sK0}, 11")
    A(f"s_add_u32 s{sK0}, s{sK0}, {WS_K}")
    A(f"s_add_u32 s{sLO2}, s{sLO}, s{sT2}")
    A(f"s_add_u32 s{sHI}, s{sLO2}, s{sCNT}")
    A(f"s_add_u32 s{sLO2}, s{sLO2}, 3")
    A(f"s_lshl_b32 s{sLO2}, s{sLO2}, 11")
    A(f"s_add_u32 s{sLO2}, s{sLO2}, {WS_K}")
    A(f"s_lshl_b32 s{sHI}, s{sHI}, 11")
    A(f"s_add_u32 s{sHI}, s{sHI}, {WS_K}")
    A(f"s_lshl_b32 s{sT}, s{sQB}, 2")
    A(f"s_add_u32 s{sT}, s{sT}, s{sT2}")
    for s in range(4):
        A(f"s_add_u32 s{sQ+s}, s{sW}, {s+1}")
        A(f"s_and_b32 s{sQ+s}, s{sQ+s}, 3")
        A(f"s_add_u32 s{sT2}, s{sQ+s}, s{sT}")
        A(f"s_lshl_b32 s{sQ+4+s}, s{sT2}, 11")
    A(f"s_mov_b32 s{sKO}, s{sK0}")
    A(f"s_add_u32 s{sVO}, s{sKO}, {WS_V - WS_K}")
    own_flag()
    ST.at(12)
    A(f"s_mov_b32 s{sI}, {SPIN}")
    A(f"s_mov_b32 s{sT}, {WS_F1}")
    A("s_mov_b32 exec_lo, 0x3f")
    A("s_mov_b32 exec_hi, 4")
    if int(os.environ.get("PD", 20)): A(f"s_sleep {os.environ.get('PD', 20)}")
    A("k2_pa:")
    A(f"buffer_load_dwordx2 v[4:5], v2, {sr(sWS,4)}, s{sT} offen sc1")
    A("s_waitcnt vmcnt(0)")
    A("v_cmp_ne_u64 vcc, s[6:7], v[4:5]")
    A("s_nop 1")
    A("s_and_b64 exec, exec, vcc")
    A("s_cbranch_scc0 k2_pa_done")
    A(f"s_sub_u32 s{sI}, s{sI}, 1")
    A(f"s_sleep {os.environ.get('PSL', 4)}")
    A(f"s_cmp_gt_i32 s{sI}, 0")
    A("s_cbranch_scc1 k2_pa")
    A("k2_pa_done:")
    A("s_mov_b64 exec, -1")
    ST.at(13)
    def ldk(st, t): return f"buffer_load_dwordx4 {vr(KV+16*st+4*t,4)}, v{vO16}, {sr(sWS,4)}, s{sKO} offen offset:{1024*t} sc1"
    def ldv(st, t): return f"buffer_load_dwordx4 {vr(KV+16*st+8+4*t,4)}, v{vO16}, {sr(sWS,4)}, s{sVO} offen offset:{1024*t} sc1"
    def ldq(s, t): return f"buffer_load_dwordx4 {vr(Q+8*s+4*t,4)}, v{vO16}, {sr(sWS,4)}, s{sQ+4+s} offen offset:{1024*t}"
    adv = [f"s_add_u32 s{sKO}, s{sKO}, 2048", f"s_cmp_ge_u32 s{sKO}, s{sHI}", f"s_cselect_b32 s{sKO}, s{sLO2}, s{sKO}"]
    setv = f"s_add_u32 s{sVO}, s{sKO}, {WS_V - WS_K}"
    A(f"s_lshl_b32 s{sT}, s{sW}, 11")
    A(f"s_add_u32 m0, s{sT}, {LDS_Q}")
    A(ldk(0, 0))
    A(f"buffer_load_dwordx4 v{vO16}, {sr(sWS,4)}, s{sQ+7} offen sc1 lds")
    A(f"buffer_load_dwordx4 v{vO16}, {sr(sWS,4)}, s{sQ+7} offen offset:1024 sc1 lds")
    A(ldk(0, 1))
    for r in range(64): A(f"v_mov_b32 v{O+r}, 0") if r not in (2,) else None
    for x in [ldv(0, 0), ldv(0, 1)]: A(x)
    A(f"s_mov_b32 s{sPASS}, 0")
    A(f"s_mov_b32 s{sOK}, 0")
    A("s_branch k2_first")
    A("k2_pass:")
    A(f"s_mov_b32 s{sKO}, s{sK0}")
    A(setv)
    for x in [ldk(0, 0), ldk(0, 1), ldv(0, 0), ldv(0, 1)]: A(x)
    A("s_waitcnt vmcnt(0)")
    A("k2_first:")
    for x in adv[:1] + [setv, ldk(1, 0), ldk(1, 1), ldv(1, 0), ldv(1, 1)] + adv[:1] + [setv, ldk(2, 0), ldk(2, 1), ldv(2, 0), ldv(2, 1)]: A(x)
    A(f"s_sub_u32 s{sT}, s{sCNT}, 3")
    A(f"s_mul_i32 s{sT}, s{sT}, s{sQB}")
    A(f"s_lshr_b32 s{sT}, s{sT}, 4")
    A(f"s_lshl_b32 s{sT}, s{sT}, 11")
    A(f"s_add_u32 s{sKO}, s{sLO2}, s{sT}")
    A(f"s_cmp_lg_u32 s{sPASS}, 0")
    A("s_cbranch_scc1 k2_nobar")
    A(f"v_mov_b32 v{vT+12}, v2")
    A(f"s_mov_b32 s{sT}, {WS_F1}")
    A(f"buffer_load_dwordx2 {vr(vT+10,2)}, v2, {sr(sWS,4)}, s{sT} offen sc1")
    A("v_mov_b32 v2, 0")
    A(f"v_mov_b32 v{vIDX}, 0xdddddddd")
    for s_ in range(4):
        A(f"s_lshl_b32 s{sT}, s{sQ+s_}, 11")
        A(f"s_add_u32 s{sT}, s{sT}, {LDS_Q}")
        A(f"v_add_u32 v{vT+2+s_}, s{sT}, v{vO16}")
    A("s_waitcnt vmcnt(12)")
    A("s_barrier")
    for s_ in range(4):
        for t in range(2): A(f"ds_read_b128 {vr(Q+8*s_+4*t,4)}, v{vT+2+s_} offset:{1024*t}")
    A("s_branch k2_go")
    A("k2_nobar:")
    A("s_waitcnt vmcnt(0)")
    A(f"v_mov_b32 v{vT+10}, s6")
    A(f"v_mov_b32 v{vT+11}, s7")
    for r in range(64): A(f"v_mov_b32 v{O+r}, 0")
    A("k2_go:")
    A(f"s_mov_b32 s{sI}, s{sCNT}")
    def qk(q, st, half):
        c = "0" if half == 0 else vr(S+16*q,16)
        return f"v_mfma_f32_32x32x16_bf16 {vr(S+16*q,16)}, {vr(KV+16*st+4*half,4)}, {vr(Q+8*q+4*half,4)}, {c}"
    def pv(q, st, half):
        return f"v_smfmac_f32_32x32x32_bf16 {vr(O+16*q,16)}, {vr(KV+16*st+8+4*half,4)}, {vr(S+16*q+8*half,8)}, v{vIDX}"
    def tile(st, first):
        nxt, prv = (st + 1) % 3, (st + 2) % 3
        for q in range(4):
            e = [f"v_exp_f32 v{S+16*q+r}, v{S+16*q+r}" for r in range(16)]
            qn, stn = (q + 1, st) if q < 3 else (0, nxt)
            qp, stp = (q - 1, st) if q > 0 else (3, prv)
            aft = {0: [], 1: [], 2: [], 3: []}
            if q == 0: aft[2] = [ldk(prv, 0)]; aft[3] = [setv]
            if q == 1: aft[1] = ["s_waitcnt vmcnt(5)"]; aft[2] = [ldk(prv, 1)]; aft[3] = adv[0:2]
            if q == 2: aft[0] = [adv[2]]; aft[2] = [ldv(prv, 0)]; aft[3] = [f"s_sub_u32 s{sI}, s{sI}, 1", "s_waitcnt vmcnt(5)"]
            if q == 3: aft[2] = [ldv(prv, 1)]; aft[3] = [f"s_cmp_eq_u32 s{sI}, 0"]
            ms = [qk(qn, stn, 0), qk(qn, stn, 1), pv(qp, stp, 0), pv(qp, stp, 1)]
            if first and q == 0:
                A("s_waitcnt lgkmcnt(0)")
                ms[2] = ms[3] = None
            if first:
                aft = {0: [], 1: [], 2: [], 3: []}
                if q == 1: aft[1] = ["s_waitcnt vmcnt(9)"]
                if q == 2: aft[3] = [f"s_sub_u32 s{sI}, s{sI}, 1", "s_waitcnt vmcnt(7)"]
                if q == 3: aft[2] = ["s_waitcnt vmcnt(0)"]; aft[3] = [f"v_cmp_eq_u64 vcc, s[6:7], {vr(vT+10,2)}"]
            for k in range(4):
                if ms[k]: A(ms[k])
                for y in aft[k]: A(y)
                for x in e[4*k:4*k+4]: A(x)
    ST.at(0)
    A("s_waitcnt vmcnt(11) lgkmcnt(6)")
    ST.at(1)
    A(qk(0, 0, 0)); A(qk(0, 0, 1))
    A("s_nop 9")
    tile(0, True)
    A("s_cmp_lg_u64 vcc, -1")
    A("s_cbranch_scc1 k2_pb0")
    loop_start = A.mark()
    A("k2_loop:")
    if DIAG:
        A("s_waitcnt lgkmcnt(0)")
        for i in (11,): A(f"s_mov_b32 s{70+2*i}, s{68+2*i}")
        ST.at(10)
    for st in (1, 2, 0):
        tile(st, False)
        A(f"s_cbranch_scc1 k2_x{st}" if st != 0 else "s_cbranch_scc0 k2_loop")
    loop_end = A.mark()
    for st in (0, 1, 2):
        A(f"k2_x{st}:")
        A("s_nop 1")
        A(pv(3, st, 0)); A(pv(3, st, 1))
        if st != 2: A("s_branch k2_red")
    A("k2_red:")
    ST.at(2)
    for s in range(3):
        A(f"s_mul_i32 s{sT}, s{sQ+s}, 12288")
        A(f"s_add_u32 s{sT}, s{sT}, {RED}")
        A(f"v_add_u32 v{vT+s}, s{sT}, v{vO16}")
    A(f"s_lshl_b32 s{sT2}, s{sQB}, 2")
    A(f"s_add_u32 s{sT2}, s{sT2}, s{sW}")
    for s in range(3):
        for g in range(4):
            A(f"ds_write_b128 v{vT+s}, {vr(O+16*s+4*g,4)} offset:{4096*s+1024*g}")
    A(f"s_mul_i32 s{sT}, s{sW}, 12288")
    A(f"s_add_u32 s{sT}, s{sT}, {RED}")
    A(f"v_add_u32 v{vT+1}, s{sT}, v{vO16}")
    A(f"s_lshl_b32 s{sT}, s{sW}, 2")
    A(f"s_add_u32 s{sT}, s{sT}, {K2_LDS-128}")
    A(f"v_mov_b32 v{vT+14}, s{sT}")
    A(f"s_lshl_b32 s{sT2}, s{sT2}, 4")
    A(f"s_add_u32 s{sT2}, s{sT2}, s{sHD}")
    A(f"s_lshl_b32 s{sKO}, s{sT2}, 11")
    A(f"s_add_u32 s{sKO}, s{sKO}, {WS_O}")
    A(f"s_lshl_b32 s{sVO}, s{sT2}, 7")
    A(f"s_add_u32 s{sVO}, s{sVO}, {WS_FO}")
    A("s_waitcnt vmcnt(0) lgkmcnt(0)")
    ST.at(3)
    A("s_barrier")
    ST.at(4)
    for s in range(3):
        for g in range(4):
            A(f"ds_read_b128 {vr(S+16*s+4*g,4)}, v{vT+1} offset:{4096*s+1024*g}")
    A(f"v_cmp_lt_u32 s[38:39], 31, v{vL}")
    R = O + 48
    for s in range(3):
        A(f"s_waitcnt lgkmcnt({8-4*s})")
        for r in list(range(12, 16)) + list(range(12)) if s == 2 else range(16): A(f"v_add_f32 v{R+r}, v{R+r}, v{S+16*s+r}")
    A(f"v_mov_b32 v{vT+4}, v{R+12}")
    A(f"v_mov_b32 v{vT+5}, v{R+12}")
    A(f"v_add_f32 v{vT+7}, abs(v{R}), abs(v{R+1})")
    A(f"v_add_f32 v{vT+7}, v{vT+7}, abs(v{R+2})")
    A(f"v_permlane32_swap_b32 v{vT+4}, v{vT+5}")
    A(f"v_rcp_f32 v{vT+6}, v{vT+5}")
    A(f"v_add_f32 v{vT+7}, v{vT+7}, abs(v{R+3})")
    A(f"s_cmp_lg_u32 s{sOK}, 0")
    A(f"s_mov_b32 s{sPUB}, 0")
    A("s_cbranch_scc1 k2_apart")
    for t in range(2):
        for r in range(8): A(f"v_mul_f32 v{S+8*t+r}, v{R+8*t+r}, v{vT+6}")
        for r in range(4): A(f"v_cvt_pk_bf16_f32 v{S+16+4*t+r}, v{S+8*t+2*r}, v{S+8*t+2*r+1}")
        if t == 1:
            A(f"v_cndmask_b32 v{S+22}, v{S+22}, 0, s[38:39]")
            A(f"v_cndmask_b32 v{S+23}, v{S+23}, 0, s[38:39]")
        A(f"buffer_store_dwordx4 {vr(S+16+4*t,4)}, v{vO16}, {sr(sWS,4)}, s{sKO} offen offset:{1024*t} sc1")
    for r in range(4, 16): A(f"v_add_f32 v{vT+7}, v{vT+7}, abs(v{R+r})")
    A(f"v_cmp_nle_f32 vcc, {hex(f2u(2.0**-60))}, v{vT+5}")
    A(f"s_mov_b64 s[36:37], vcc")
    A(f"v_cmp_nge_f32 vcc, {hex(f2u(2.0**60))}, v{vT+5}")
    A(f"s_or_b64 s[36:37], s[36:37], vcc")
    A(f"v_cmp_nge_f32 vcc, {hex(f2u(2.0**120))}, v{vT+7}")
    A(f"s_or_b64 s[36:37], s[36:37], vcc")
    A(f"s_cselect_b32 s{sOK}, 0, 1")
    A(f"s_or_b32 s{sOK}, s{sOK}, s{sPASS}")
    A(f"s_mov_b32 s{sPUB}, s{sOK}")
    A("k2_apart:")
    A("s_barrier")
    def publish(lab, younger=0):
        A(f"s_cmp_eq_u32 s{sPUB}, 0")
        A(f"v_mov_b32 v{vT+4}, 0")
        A(f"s_waitcnt vmcnt({younger})")
        A(f"s_cbranch_scc1 {lab}")
        A("s_mov_b64 exec, 1")
        A(f"buffer_store_dwordx2 {vr(vTAG,2)}, v{vT+4}, {sr(sWS,4)}, s{sVO} offen sc1")
        A("s_mov_b64 exec, -1")
        A(f"{lab}:")
    AA, AB, OF, LB = 0, 96, 160, 32
    vG3, vZ3, vF3, vW3, vOA, vX = 228, 229, 230, 232, 234, 235
    sKH, sB3, sB, sOB, sOA = 54, 55, 56, 61, 62
    A(f"s_lshr_b32 s{sKH}, s{sW}, 1")
    A(f"s_and_b32 s{sB3}, s{sW}, 1")
    A(f"v_lshrrev_b32 v{vT+10}, 5, v{vL}")
    A(f"v_bfe_u32 v{vT+11}, v{vL}, 2, 2")
    A(f"v_bfe_u32 v{vT+12}, v{vL}, 4, 1")
    A(f"v_lshlrev_b32 v{vT+12}, 5, v{vT+12}")
    A(f"v_and_b32 v{vT+13}, 3, v{vL}")
    A(f"v_lshl_add_u32 v{vT+12}, v{vT+13}, 3, v{vT+12}")
    A(f"v_lshl_add_u32 v{vT+12}, v{vT+11}, 7, v{vT+12}")
    A(f"v_lshrrev_b32 v{vT+11}, 1, v{vT+11}")
    A(f"v_lshl_add_u32 v{vT+12}, v{vT+11}, 6, v{vT+12}")
    A(f"s_lshl_b32 s{sT}, s{sB3}, 6")
    A(f"v_xor_b32 v{vZ3}, s{sT}, v{vT+12}")
    A(f"v_lshl_add_u32 v{vZ3}, v{vT+10}, 10, v{vZ3}")
    A(f"s_mul_i32 s{sT2}, s{sKH}, {14*2048}")
    A(f"s_add_u32 s{sT}, s{sT2}, {LZ}")
    A(f"v_add_u32 v{vZ3}, s{sT}, v{vZ3}")
    A(f"s_lshl_b32 s{sT}, s{sKH}, 10")
    A(f"s_add_u32 s{sT}, s{sT}, s{sT2}")
    A(f"v_add_u32 v{vF3}, s{sT}, v{vO16}")
    A(f"v_xor_b32 v{vF3+1}, 1024, v{vF3}")
    A(f"s_lshl_b32 s{sT}, s{sMT}, 1")
    A(f"s_add_u32 s{sB}, s{sT}, s{sB3}")
    A(f"s_lshl_b32 s{sT}, s{sB}, 7")
    A(f"s_add_u32 s{sT}, s{sT}, {WS_G}")
    A(f"buffer_load_dword v{vG3}, v{vT+9}, {sr(sWS,4)}, s{sT} offen sc1")
    A(f"s_lshl_b32 s{sT}, s{sKH}, 6")
    A(f"v_xor_b32 v{vW3}, s{sT}, v{vT+12}")
    A(f"v_lshl_add_u32 v{vW3}, v{vT+10}, 9, v{vW3}")
    A(f"s_mul_i32 s{sT}, s{sKH}, {224*128}")
    A(f"s_add_u32 s{sT}, s{sT}, {LW}")
    A(f"v_add_u32 v{vW3}, s{sT}, v{vW3}")
    A(f"v_xor_b32 v{vW3+1}, 64, v{vW3}")
    A(f"s_lshl_b32 s{sT}, s{sW}, 12")
    A(f"v_add_u32 v{vX}, s{sT}, v{vO16}")
    A(f"v_xor_b32 v{vX+1}, 8192, v{vX}")
    A(f"s_lshl_b32 s{sT}, s{sB}, 1")
    A(f"s_add_u32 s{sT}, s{sT}, s{sKH}")
    A(f"s_lshl_b32 s{sT}, s{sT}, 14")
    A(f"s_add_u32 s{sOB}, s{sT}, {WS_O}")
    A(f"v_lshrrev_b32 v{vT+3}, 2, v{vT+9}")
    A(f"v_mul_u32_u24 v{vOA}, 57344, v{vT+3}")
    A(f"v_lshl_add_u32 v{vOA}, v{vT+10}, 4, v{vOA}")
    A(f"s_mul_i32 s{sOA}, s{sB}, 896")
    A(f"s_lshl_b32 s{sT}, s{sNT}, 7")
    A(f"s_add_u32 s{sOA}, s{sOA}, s{sT}")
    A(f"s_lshl_b32 s{sT}, s{sKH}, 6")
    A(f"s_add_u32 s{sOA}, s{sOA}, s{sT}")
    A(f"s_mov_b32 s{sOUT+2}, 1835008")
    A(f"s_mov_b32 s{sOUT+3}, 0x20000")
    publish("k2_np0")
    A("k2_pub:")
    ST.at(5)
    A(f"v_mov_b32 v{vT+5}, s{sOK}")
    A(f"ds_write_b32 v{vT+14}, v{vT+5}")
    A("k2_chk:")
    A(f"v_mov_b32 v{vT+8}, {K2_LDS-128}")
    A("s_waitcnt lgkmcnt(0)")
    A("s_barrier")
    A(f"ds_read_b128 {vr(vT+4,4)}, v{vT+8}")
    A("s_waitcnt lgkmcnt(0)")
    A("s_barrier")
    A(f"v_and_b32 v{vT+4}, v{vT+4}, v{vT+5}")
    A(f"v_and_b32 v{vT+6}, v{vT+6}, v{vT+7}")
    A(f"v_and_b32 v{vT+4}, v{vT+4}, v{vT+6}")
    A(f"v_readfirstlane_b32 s{sT}, v{vT+4}")
    A(f"s_cmp_eq_u32 s{sT}, 0")
    A("s_cbranch_scc1 k2_fail")
    A("k2_p3:")
    A("s_cmp_ge_u32 s2, 224")
    A("s_cbranch_scc1 k2_dump" if DIAG else "s_cbranch_scc1 k2_end")
    A(f"s_cmp_eq_u32 s{sW}, 4")
    A("s_cbranch_scc1 k2_auxp3")
    steps = []
    HO = [3, 4, 5, 6, 7, 0, 1, 2]
    OFr = lambda m: (OF + 4*m) if m < 12 else (128 + 4*(m-12))
    for n in range(30):
        buf = LB + 12 * (n % 4)
        if n < 14:
            rd = [f"ds_read_b64_tr_b16 {vr(buf+2*x,2)}, v{vZ3} offset:{2048*n+512*x}" for x in range(2)]
            rd += [f"ds_read_b128 {vr(buf+4+4*k,4)}, v{vF3+k} offset:{2048*n}" for k in range(2)]
            mm = [f"v_mfma_f32_32x32x16_bf16 {vr(AA+16*k,16)}, {vr(buf+4+4*k,4)}, {vr(buf,4)}, {'0' if n == 0 else vr(AA+16*k,16)}" for k in range(2)]
        else:
            m = n - 14; hd, t = HO[m >> 1], m & 1
            rd = [f"ds_read_b64_tr_b16 {vr(buf+4+4*k+2*x,2)}, v{vW3+k} offset:{(28*hd+16*t)*128+1024*x}" for k in range(2) for x in range(2)]
            ks = (1, 0) if m == 15 else (0, 1)
            mm = [f"v_mfma_f32_32x32x16_bf16 {vr(AB+16*k,16)}, {vr(buf+4+4*k,4)}, {vr(OFr(m),4)}, {'0' if m == 0 else vr(AB+16*k,16)}" for k in ks]
        steps.append((rd, mm))
    for x in steps[0][0] + steps[1][0] + steps[2][0]: A(x)
    A(f"v_mul_f32 v{vG3}, {hex(f2u(-math.log2(math.e)))}, v{vG3}")
    A(f"v_exp_f32 v{vG3}, v{vG3}")
    A("s_nop 0")
    A(f"v_add_f32 v{vG3}, 1.0, v{vG3}")
    A(f"v_rcp_f32 v{vG3}, v{vG3}")
    A("s_nop 0")
    A(f"v_sub_f32 v{vG3+10}, 1.0, v{vG3}")
    for n in range(14):
        if n == 0: ST.at(10)
        if n == 7: ST.at(11)
        A(f"s_waitcnt lgkmcnt({4 * min(2, 13 - n)})")
        rd = steps[n+3][0] if n + 3 < 14 else [None] * 4
        for k in range(2):
            A(steps[n][1][k])
            for x in rd[2*k:2*k+2]:
                if x: A(x)
    ST.at(6)
    A("s_barrier")
    ST.at(7)
    def old(m):
        hd = HO[m >> 1]
        if m % 2 == 0 and (m == 0 or hd % 2 == 0 or hd == 0): A(f"s_add_u32 s{sI}, s{sOB}, {4096*(hd>>1)}")
        A(f"buffer_load_dwordx4 {vr(OFr(m),4)}, v{vO16}, {sr(sWS,4)}, s{sI} offen offset:{2048*(hd&1)+1024*(m&1)} sc1")
    NO = int(os.environ.get("NO", 10))
    for m in range(NO): old(m)
    for x in steps[14][0] + steps[15][0] + steps[16][0]: A(x)
    for r in range(32): A(f"v_mul_f32 v{AA+r}, v{vG3}, v{AA+r}")
    for n in range(14, 30):
        m = n - 14
        if NO + m < 16: old(NO + m)
        if m == 7: A("s_barrier")
        A(f"s_waitcnt vmcnt({min(NO + m + 1, 16) - m - 1}) lgkmcnt({4 * min(2, 29 - n)})")
        if m == 0: ST.at(8)
        rd = steps[n+3][0] if n + 3 < 30 else [None] * 4
        for k in range(2):
            A(steps[n][1][k])
            for x in rd[2*k:2*k+2]:
                if x: A(x)
    ST.at(9)
    A("s_nop 10")
    for g in range(4):
        for r in range(4*g, 4*g+4): A(f"v_fma_f32 v{AB+16+r}, v{vG3+10}, v{AB+16+r}, v{AA+16+r}")
        A(f"ds_write_b128 v{vX}, {vr(AB+16+4*g,4)} offset:{1024*g}")
    for r in range(16): A(f"v_fma_f32 v{AB+r}, v{vG3+10}, v{AB+r}, v{AA+r}")
    A("s_waitcnt lgkmcnt(0)")
    A("s_barrier")
    for g in range(4): A(f"ds_read_b128 {vr(AA+4*g,4)}, v{vX+1} offset:{1024*g}")
    for g in range(4):
        A(f"s_waitcnt lgkmcnt({3-g})")
        for r in range(4*g, 4*g+4): A(f"v_add_f32 v{AB+r}, v{AB+r}, v{AA+r}")
        for r in range(2*g, 2*g+2): A(f"v_cvt_pk_bf16_f32 v{LB+r}, v{AB+2*r}, v{AB+2*r+1}")
        if g & 1:
            t = g >> 1
            A(f"v_permlane32_swap_b32 v{LB+4*t}, v{LB+4*t+2}")
            A(f"v_permlane32_swap_b32 v{LB+4*t+1}, v{LB+4*t+3}")
            A(f"buffer_store_dwordx4 {vr(LB+4*t,4)}, v{vOA}, {sr(sOUT,4)}, s{sOA} offen offset:{32*t} {os.environ.get('OUTF', '')}")
    A("s_branch k2_dump" if DIAG else "s_endpgm")

    A("k2_fail:")
    A(f"s_cmp_eq_u32 s{sW}, 4")
    A("s_cbranch_scc1 k2_auxfb")
    A("s_branch k2_fb")
    A("k2_pb0:")
    A(f"s_mov_b32 s{sT2}, {SPIN}")
    A(f"s_mov_b32 s{sT}, {WS_F1}")
    A("k2_pb:")
    A(f"buffer_load_dwordx2 {vr(vT+10,2)}, v{vT+12}, {sr(sWS,4)}, s{sT} offen sc1")
    A("s_waitcnt vmcnt(0)")
    A(f"v_cmp_eq_u64 vcc, s[6:7], {vr(vT+10,2)}")
    A("s_nop 1")
    A("s_cmp_eq_u64 vcc, -1")
    A("s_cbranch_scc1 k2_loop")
    A(f"s_sub_u32 s{sT2}, s{sT2}, 1")
    A("s_sleep 2")
    A(f"s_cmp_lg_u32 s{sT2}, 0")
    A("s_cbranch_scc1 k2_pb")
    A("s_branch k2_loop")
    A("k2_fb:")
    A(f"s_mov_b32 s{sPASS}, 1")
    A("s_waitcnt vmcnt(0)")
    for q in range(4): A(f"v_mov_b32 v{O+q}, 0xff800000")
    A(f"s_mov_b32 s{sKO}, s{sK0}")
    A(f"s_add_u32 s{sT2}, s{sK0}, {3*2048}")
    A(f"s_mov_b32 s{sI}, s{sCNT}")
    A("k2_maxloop:")
    A(ldk(0, 0)); A(ldk(0, 1))
    A("s_waitcnt vmcnt(0)")
    for q in range(4): A(qk(q, 0, 0)); A(qk(q, 0, 1))
    A("s_nop 15")
    for q in range(4):
        for r in range(8): A(f"v_max3_f32 v{O+q}, v{O+q}, v{S+16*q+2*r}, v{S+16*q+2*r+1}")
    A(f"s_add_u32 s{sKO}, s{sKO}, 2048")
    A(f"s_cmp_eq_u32 s{sKO}, s{sT2}")
    A(f"s_cselect_b32 s{sKO}, s{sLO2}, s{sKO}")
    A(f"s_cselect_b32 s{sT2}, 0, s{sT2}")
    A(f"s_sub_u32 s{sI}, s{sI}, 1")
    A(f"s_cmp_lg_u32 s{sI}, 0")
    A("s_cbranch_scc1 k2_maxloop")
    A(f"s_lshl_b32 s{sT}, s{sW}, 8")
    A(f"s_add_u32 s{sT}, s{sT}, {RED}")
    A(f"v_lshl_add_u32 v{vT}, v{vL}, 2, s{sT}")
    A(f"v_and_b32 v{vT+1}, 31, v{vL}")
    A(f"v_lshlrev_b32 v{vT+1}, 2, v{vT+1}")
    A(f"v_add_u32 v{vT+1}, {RED}, v{vT+1}")
    for s in range(4):
        A(f"s_lshl_b32 s{sT}, s{sQ+s}, 10")
        A(f"v_add_u32 v{vT+2}, s{sT}, v{vT}")
        A(f"v_add_u32 v{vT+4+s}, s{sT}, v{vT+1}")
        A(f"ds_write_b32 v{vT+2}, v{O+s}")
    A("s_waitcnt lgkmcnt(0)")
    A("s_barrier")
    for s in range(4):
        for k in range(8): A(f"ds_read_b32 v{S+8*s+k}, v{vT+4+s} offset:{128*k}")
        A("s_waitcnt lgkmcnt(0)")
    A("s_barrier")
    A(f"v_cmp_lt_u32 vcc, 31, v{vL}")
    for q in range(4):
        m = S + 8 * q
        A(f"v_max3_f32 v{m}, v{m}, v{m+1}, v{m+2}")
        A(f"v_max3_f32 v{m}, v{m}, v{m+3}, v{m+4}")
        A(f"v_max3_f32 v{m}, v{m}, v{m+5}, v{m+6}")
        A(f"v_max_f32 v{m}, v{m}, v{m+7}")
        A(f"v_xor_b32 v{m}, 0x80000000, v{m}")
        A(f"v_and_b32 v{m+1}, 0xffff0000, v{m}")
        A(f"v_sub_f32 v{m+2}, v{m}, v{m+1}")
        A(f"v_and_b32 v{m+3}, 0xffff0000, v{m+2}")
        A(f"v_sub_f32 v{m+4}, v{m+2}, v{m+3}")
        A(f"v_lshrrev_b32 v{m+1}, 16, v{m+1}")
        A(f"v_or_b32 v{m+1}, v{m+1}, v{m+3}")
        A(f"v_lshrrev_b32 v{m+4}, 16, v{m+4}")
        A(f"v_cndmask_b32 v{Q+8*q+6}, v{Q+8*q+6}, v{m+1}, vcc")
        A(f"v_cndmask_b32 v{Q+8*q+7}, v{Q+8*q+7}, v{m+4}, vcc")
    A("s_branch k2_pass")


    A("k2_aux:")
    sCOL, sTS = 27, 40
    A(f"s_getpc_b64 {sr(sTS,2)}")
    A(f"s_add_u32 s{sTS}, s{sTS}, tab_small@rel32@lo+4")
    A(f"s_addc_u32 s{sTS+1}, s{sTS+1}, tab_small@rel32@hi+12")
    A(f"s_mov_b32 s{sTS+2}, {TS_BYTES}")
    A(f"s_mov_b32 s{sTS+3}, 0x20000")
    A(f"s_mov_b32 s{sX+2}, 401408")
    A(f"s_mov_b32 s{sX+3}, 0x20000")
    A(f"s_mul_i32 s{sCOL}, s{sXC}, 28")
    A(f"s_add_u32 s{sCOL}, s{sCOL}, s{sJ}")
    A(f"s_cmp_eq_u32 s2, 224")
    A(f"s_cselect_b32 s{sCOL}, 224, s{sCOL}")
    C_ = lambda kind, mt, u: 48 * mt + 16 * kind + 4 * u
    X = 96
    YF = 160
    U0 = 192
    WT = 212
    TM = 244
    vG = 210
    A(f"v_lshrrev_b32 v{TM}, 2, v{vL}")
    A(f"v_mul_u32_u24 v{vG+1}, {WP}, v{TM}")
    A(f"v_mul_u32_u24 v{TM}, {YB}, v{TM}")
    A(f"v_and_b32 v{TM+1}, 3, v{vL}")
    A(f"v_lshl_add_u32 v{vG}, v{TM+1}, 4, v{TM}")
    A(f"v_lshl_add_u32 v{vG+1}, v{TM+1}, 4, v{vG+1}")
    A(f"s_lshr_b32 s{sT}, s{sCOL}, 5")
    A(f"s_lshl_b32 s{sT}, s{sT}, 12")
    A(f"s_and_b32 s{sT2}, s{sCOL}, 31")
    A(f"s_lshl_b32 s{sT2}, s{sT2}, 6")
    A(f"s_add_u32 s{sT}, s{sT}, s{sT2}")
    A(f"s_lshl_b32 s{sKO}, s{sCOL}, 6")
    A(f"v_lshrrev_b32 v{TM}, 5, v{vL}")
    A(f"v_bfe_u32 v{TM+1}, v{vL}, 2, 2")
    A(f"v_lshl_add_u32 v{TM}, v{TM}, 2, v{TM+1}")
    A(f"v_lshlrev_b32 v{TM}, 6, v{TM}")
    A(f"v_bfe_u32 v{TM+1}, v{vL}, 4, 1")
    A(f"v_lshl_add_u32 v{TM}, v{TM+1}, 5, v{TM}")
    A(f"v_and_b32 v{TM+1}, 3, v{vL}")
    A(f"v_lshl_add_u32 v{TM}, v{TM+1}, 3, v{TM}")
    A(f"v_add_u32 v{TM}, {LDS_Y}, v{TM}")
    own_flag()
    A(f"s_lshr_b32 s{sI}, s{sCOL}, 6")
    A(f"s_add_u32 s{sI}, s{sI}, 12")
    A(f"s_and_b32 s{sVO}, s{sI}, 1")
    A(f"v_bfe_u32 v4, v{vL}, 1, 1")
    A(f"v_xor_b32 v4, s{sVO}, v4")
    A(f"v_lshrrev_b32 v5, 2, v{vL}")
    A(f"v_and_b32 v6, 1, v{vL}")
    A(f"v_mov_b32 v7, s{sI}")
    A(f"s_bfe_u32 s{sI}, s{sCOL}, 0x10005")
    flag_index(2, 4, 5, 6, 7, f"s{sI}")
    A(f"s_lshr_b32 s{sVO}, s{sCOL}, 6")
    A(f"s_lshl_b32 s{sVO}, s{sVO}, 2")
    A(f"s_add_u32 s{sVO}, s{sVO}, s{sI}")
    A(f"s_lshl_b32 s{sVO}, s{sVO}, 8")
    A(f"s_add_u32 s{sVO}, s{sVO}, {WS_F1 + 512}")
    A(f"v_lshlrev_b32 v4, 12, v{vL}")
    A("s_waitcnt lgkmcnt(0)")
    A("s_barrier")
    A("s_cmp_gt_u32 s2, 224")
    A("s_cbranch_scc1 k2_auxb1")
    A(f"s_mov_b32 s{sI}, {SPIN}")
    A(f"s_mov_b32 s{sT2}, {WS_F1}")
    A("k2_py:")
    A(f"buffer_load_dwordx2 v[6:7], v2, {sr(sWS,4)}, s{sT2} offen sc1")
    A(f"buffer_load_dwordx2 v[8:9], v4, {sr(sWS,4)}, s{sVO} offen sc1")
    A(f"buffer_load_dwordx2 v[10:11], v4, {sr(sWS,4)}, s{sVO} offen offset:128 sc1")
    A("s_waitcnt vmcnt(0)")
    A("v_cmp_ne_u64 vcc, s[6:7], v[6:7]")
    A("v_cmp_ne_u64 s[36:37], s[6:7], v[8:9]")
    A("v_cmp_ne_u64 s[38:39], s[6:7], v[10:11]")
    A("s_nop 1")
    A("s_or_b64 vcc, vcc, s[36:37]")
    A("s_or_b64 vcc, vcc, s[38:39]")
    A("s_and_b64 exec, exec, vcc")
    A("s_cbranch_scc0 k2_py_done")
    A(f"s_sub_u32 s{sI}, s{sI}, 1")
    A("s_sleep 4")
    A(f"s_cmp_gt_i32 s{sI}, 0")
    A("s_cbranch_scc1 k2_py")
    A("k2_py_done:")
    A("s_mov_b64 exec, -1")
    ST.at(12)
    A("s_setprio 3")
    def ydma(n):
        A(f"s_mov_b32 m0, {LDS_Y + 1024*n}")
        A(f"s_add_u32 s{sT2}, s{sT}, {WS_Y + (n>>2)*2048 + (n&3)*16*YB}")
        A(f"buffer_load_dwordx4 v{vG}, {sr(sWS,4)}, s{sT2} offen sc1 lds")
    def cld(dst, off):
        A(f"s_mov_b32 s{sT2}, {off}")
        for f in range(4): A(f"buffer_load_dwordx4 {vr(dst+4*f,4)}, v{vO16}, {sr(sTS,4)}, s{sT2} offen offset:{1024*f}")
    def wld(f):
        return [f"s_add_u32 s{sT2}, s{sKO}, {WS_W + f*16*WP}",
                f"buffer_load_dwordx4 {vr(WT+4*f,4)}, v{vG+1}, {sr(sWS,4)}, s{sT2} offen sc1"]
    sFI = 44
    A(f"s_mul_i32 s{sFI}, s{sNT}, {2*28672}")
    def fimg(gr):
        for st_ in range(4*gr, 4*gr+4):
            A(f"s_mov_b32 m0, {LF + 2048*st_}")
            A(f"s_add_u32 s{sT2}, s{sFI}, {1024*st_}")
            A(f"buffer_load_dwordx4 v{vO16}, {sr(sTB,4)}, s{sT2} offen lds")
            A(f"s_add_u32 s{sT2}, s{sT2}, {28672-1024}")
            A(f"buffer_load_dwordx4 v{vO16}, {sr(sTB,4)}, s{sT2} offen offset:1024 lds")
    for n in range(8): ydma(n)
    for kind in range(3): cld(C_(kind, 0, 0), TS_F64 + kind * 8192)
    for f in range(0, 4):
        for x in wld(f): A(x)
    for kind in range(3): cld(C_(kind, 1, 0), TS_F64 + kind * 8192 + 4096)
    ST.at(0)
    A("s_waitcnt vmcnt(28)")
    ST.at(1)
    for p in range(2):
        for u in range(4):
            A(f"ds_read_b64_tr_b16 {vr(YF+16*p+4*u,2)}, v{TM} offset:{4096*p+1024*u}")
            A(f"ds_read_b64_tr_b16 {vr(YF+16*p+4*u+2,2)}, v{TM} offset:{4096*p+1024*u+512}")
    for f in range(4, 8):
        for x in wld(f): A(x)
    A("s_waitcnt vmcnt(20) lgkmcnt(0)")
    Yr = lambda u: vr(YF+4*u,4)
    Yi = lambda u: vr(YF+16+4*u,4)
    mf = lambda d, a, b, first=False: f"v_mfma_f32_32x32x16_bf16 {vr(d,16)}, {a}, {b}, {'0' if first else vr(d,16)}"
    cf = lambda kind, mt, u: vr(C_(kind, mt, u), 4)
    def p3(mt):
        L = []
        for u in range(4):
            L += [mf(X+32*mt, cf(0, mt, u), Yr(u), u == 0), mf(X+32*mt+16, cf(0, mt, u), Yi(u), u == 0)]
        for u in range(4):
            L += [mf(X+32*mt, cf(1, mt, u), Yi(u)), mf(X+32*mt+16, cf(2, mt, u), Yr(u))]
        return L
    Ur = lambda u: (U0 + 4*u) if u < 2 else (YF + 4*u)
    Ui = lambda u: (U0 + 8 + 4*u) if u < 2 else (YF + 16 + 4*u)
    def cmul_pack(xr0, xi0, cr, ci, dr, di):
        L = []
        for i in range(4):
            L += [f"v_mul_f32 v{TM+8+i}, v{xr0+i}, v{cr(i)}", f"v_mul_f32 v{xr0+i}, v{xr0+i}, v{ci(i)}"]
        for i in range(4):
            L += [f"v_fma_f32 v{TM+8+i}, -v{xi0+i}, v{ci(i)}, v{TM+8+i}", f"v_fma_f32 v{xr0+i}, v{xi0+i}, v{cr(i)}, v{xr0+i}"]
        L += [f"v_cvt_pk_bf16_f32 v{dr}, v{TM+8}, v{TM+9}", f"v_cvt_pk_bf16_f32 v{dr+1}, v{TM+10}, v{TM+11}",
              f"v_cvt_pk_bf16_f32 v{di}, v{xr0}, v{xr0+1}", f"v_cvt_pk_bf16_f32 v{di+1}, v{xr0+2}, v{xr0+3}"]
        return L
    def wmul(mt):
        L = []
        for g in range(4):
            w = WT + 4 * (4 * mt + g)
            for i in range(4):
                op = "v_and_b32 v{}, 0xffff0000, v{}" if i & 1 else "v_lshlrev_b32 v{}, 16, v{}"
                L += [op.format(TM + i, w + (i >> 1)), op.format(TM + 4 + i, w + 2 + (i >> 1))]
            u = 2 * mt + (g >> 1)
            L += cmul_pack(X+32*mt+4*g, X+32*mt+16+4*g, lambda i: TM + i, lambda i: TM + 4 + i, Ur(u) + 2*(g&1), Ui(u) + 2*(g&1))
        return L
    def p4(nt, us):
        L = []
        for u in us:
            L += [mf(X+32*nt, vr(Ur(u),4), cf(0, nt, u), u == 0), mf(X+32*nt+16, vr(Ui(u),4), cf(0, nt, u), u == 0)]
        for u in us:
            L += [mf(X+32*nt, vr(Ui(u),4), cf(2, nt, u)), mf(X+32*nt+16, vr(Ur(u),4), cf(1, nt, u))]
        return L
    Tr = lambda nt: YF if nt == 0 else U0
    Ti = lambda nt: YF + 16 if nt == 0 else U0 + 8
    TW = lambda nt: 48 * nt
    F32 = WT
    def twid(nt):
        L = []
        for g in range(4):
            L += cmul_pack(X+32*nt+4*g, X+32*nt+16+4*g, lambda i: TW(nt) + 4*g + i, lambda i: TW(nt) + 16 + 4*g + i, Tr(nt) + 2*g, Ti(nt) + 2*g)
        return L
    def p5(nt):
        L = []
        for t in range(2):
            L += [mf(X+32*nt, vr(F32+4*t,4), vr(Tr(nt)+4*t,4), t == 0), mf(X+32*nt+16, vr(F32+4*t,4), vr(Ti(nt)+4*t,4), t == 0)]
        for t in range(2):
            L += [mf(X+32*nt, vr(F32+16+4*t,4), vr(Ti(nt)+4*t,4)), mf(X+32*nt+16, vr(F32+8+4*t,4), vr(Tr(nt)+4*t,4))]
        return L
    sZR, sZI = 29, 30
    def outp(nt):
        L = []
        for p in range(2):
            z = X + 32*nt + 16*p; P = TW(nt) + 8*p
            for r in range(8): L.append(f"v_cvt_pk_bf16_f32 v{P+r}, v{z+2*r}, v{z+2*r+1}")
            L.append("s_nop 1")
            for t in range(2):
                L += [f"v_permlane32_swap_b32 v{P+4*t}, v{P+4*t+2}", f"v_permlane32_swap_b32 v{P+4*t+1}, v{P+4*t+3}"]
            for t in range(2):
                L.append(f"ds_write_b128 v{vG}, {vr(P+4*t,4)} offset:{4096*p+2048*nt+32*t}")
        return L
    def outst():
        A("s_waitcnt lgkmcnt(0)")
        for k in range(8): A(f"ds_read_b128 {vr(X+4*k,4)}, v{vG+1} offset:{1024*k}")
        for k in range(8):
            A(f"s_waitcnt lgkmcnt({7-k})")
            A(f"buffer_store_dwordx4 {vr(X+4*k,4)}, v{vO16}, {sr(sWS,4)}, s{sZR+(k>>2)} offen offset:{1024*(k&3)} sc1")
    for x in p3(0): A(x)
    ST.at(2)
    A("s_waitcnt vmcnt(4)")
    A("s_nop 7")
    for x in merge(p3(1), wmul(0)): A(x)
    A("s_waitcnt vmcnt(0)")
    A("s_nop 7")
    for x in merge(p4(0, (0, 1)), wmul(1)): A(x)
    for x in p4(0, (2, 3)): A(x)
    ST.at(3)
    cld(TW(0), TS_TW); cld(TW(0) + 16, TS_TW + 4096)
    A(f"s_mov_b32 s{sT2}, {TS_F32}")
    for f in range(4): A(f"buffer_load_dwordx4 {vr(F32+4*f,4)}, v{vO16}, {sr(sTS,4)}, s{sT2} offen offset:{1024*f}")
    A(f"s_mov_b32 s{sT2}, {TS_F32+4096}")
    for f in range(2): A(f"buffer_load_dwordx4 {vr(F32+16+4*f,4)}, v{vO16}, {sr(sTS,4)}, s{sT2} offen offset:{1024*f}")
    A(f"s_lshr_b32 s{sT}, s{sCOL}, 1")
    A(f"s_and_b32 s{sT2}, s{sCOL}, 1")
    A(f"s_mul_i32 s{sT2}, s{sT2}, 224")
    A(f"s_add_u32 s{sT}, s{sT}, s{sT2}")
    A(f"s_mul_i32 s{sT}, s{sT}, {ZP}")
    A(f"s_add_u32 s{sZR}, s{sT}, {WS_Z}")
    A(f"s_add_u32 s{sZI}, s{sZR}, {112*ZP}")
    A(f"s_cmp_eq_u32 s{sCOL}, 0")
    A(f"s_cselect_b32 s{sZI}, {WS_G + 0x4000}, s{sZI}")
    A(f"s_cmp_eq_u32 s{sCOL}, 224")
    A(f"s_cselect_b32 s{sZI}, {WS_G + 0x6000}, s{sZI}")
    A(f"v_and_b32 v{vG}, 31, v{vL}")
    A(f"v_lshlrev_b32 v{vG}, 6, v{vG}")
    A(f"v_lshrrev_b32 v{vG+1}, 5, v{vL}")
    A(f"v_lshl_add_u32 v{vG}, v{vG+1}, 4, v{vG}")
    A(f"v_add_u32 v{vG}, {LDS_Y}, v{vG}")
    A(f"v_add_u32 v{vG+1}, {LDS_Y}, v{vO16}")
    A("s_waitcnt vmcnt(6)")
    for x in merge(p4(1, (0, 1, 2, 3)), twid(0)): A(x)
    cld(TW(1), TS_TW + 8192); cld(TW(1) + 16, TS_TW + 12288)
    ST.at(4)
    A("s_waitcnt vmcnt(0)")
    for x in merge(p5(0), twid(1)): A(x)
    A("s_nop 1")
    for x in merge(p5(1), outp(0)): A(x)
    A("s_nop 7")
    for x in outp(1): A(x)
    outst()
    ST.at(5)
    A("s_setprio 0")
    fimg(0); fimg(1)
    A(f"s_lshl_b32 s{sT}, s{sCOL}, 7")
    A(f"s_add_u32 s{sT}, s{sT}, {WS_FZ}")
    A(f"v_mov_b32 v{TM+4}, 0")
    A(f"v_mov_b32 v{TM+6}, s6")
    A(f"v_mov_b32 v{TM+7}, s7")
    A("s_mov_b64 exec, 1")
    A("s_waitcnt vmcnt(0)")
    ST.at(6)
    A(f"buffer_store_dwordx2 {vr(TM+6,2)}, v{TM+4}, {sr(sWS,4)}, s{sT} offen sc1")
    A("s_mov_b64 exec, -1")
    A("s_cmp_ge_u32 s2, 224")
    A("s_cbranch_scc1 k2_auxw")
    A(f"v_lshrrev_b32 v{TM}, 3, v{vL}")
    A(f"v_and_b32 v{TM+1}, 7, v{vL}")
    A(f"v_bfe_u32 v{TM+2}, v{vL}, 4, 1")
    A(f"v_lshlrev_b32 v{TM+2}, 2, v{TM+2}")
    A(f"v_xor_b32 v{TM+1}, v{TM+1}, v{TM+2}")
    A(f"v_lshlrev_b32 v{TM+1}, 4, v{TM+1}")
    A(f"v_mul_u32_u24 v{TM+2}, {ZP}, v{TM}")
    A(f"v_add_u32 v{TM+2}, v{TM+2}, v{TM+1}")
    def image(name, lds, vaddr, srd, pitch, flag, depth):
        A(f"s_mov_b32 s{sI}, {lds}")
        A(f"{name}:")
        A(f"s_mov_b32 m0, s{sI}")
        for i in range(4):
            if i: A(f"s_add_u32 s{sT}, s{sT}, {8*pitch-1024}")
            else: A("s_nop 0")
            A(f"buffer_load_dwordx4 v{vaddr}, {srd}, s{sT} offen offset:{1024*i} {flag} lds")
        A(f"s_add_u32 s{sT}, s{sT}, {8*pitch+3072}")
        A(f"s_add_u32 s{sI}, s{sI}, 4096")
        A(f"s_waitcnt vmcnt({depth})")
        A(f"s_cmp_lt_u32 s{sI}, {lds+57344}")
        A(f"s_cbranch_scc1 {name}")
    def poll(name, lines, sl):
        A(f"s_mov_b32 s{sI}, {SPIN}")
        A(f"{name}:")
        for x in lines: A(x)
        A("s_cmp_eq_u64 vcc, -1")
        A(f"s_cbranch_scc1 {name}_done")
        A(f"s_sub_u32 s{sI}, s{sI}, 1")
        A(f"s_sleep {sl}")
        A(f"s_cmp_lg_u32 s{sI}, 0")
        A(f"s_cbranch_scc1 {name}")
        A(f"{name}_done:")
    for gr in range(2, 7):
        fimg(gr)
        A(f"s_waitcnt vmcnt({os.environ.get('DF', 16)})")
    A(f"s_and_b32 s{sT}, s{sJ}, 3")
    A(f"s_mul_i32 s{sT}, s{sT}, {112*896}")
    A(f"s_lshl_b32 s{sT2}, s{sNT}, 7")
    A(f"s_add_u32 s{sT}, s{sT}, s{sT2}")
    A(f"v_mul_u32_u24 v8, 896, v{vL}")
    A(f"buffer_load_dword v9, v8, {sr(sX,4)}, s{sT} offen")
    A(f"s_add_u32 s{sT}, s{sT}, {48*896}")
    A(f"buffer_load_dword v10, v8, {sr(sX,4)}, s{sT} offen")
    ST.at(7)
    A(f"v_lshlrev_b32 v4, 7, v{vL}")
    A(f"v_add_u32 v5, 0x6000, v4")
    A(f"v_min_u32 v5, {224*128}, v5")
    A(f"s_lshr_b32 s{sT}, s{sMT}, 1")
    A(f"s_and_b32 s{sT2}, s{sT}, 3")
    A(f"s_add_u32 s{sT2}, s{sT2}, 28")
    A(f"s_lshl_b32 s{sT2}, s{sT2}, 2")
    A(f"s_lshr_b32 s{sT}, s{sT}, 2")
    A(f"s_add_u32 s{sT2}, s{sT2}, s{sT}")
    A(f"s_lshl_b32 s{sT2}, s{sT2}, 11")
    A(f"s_add_u32 s{sT2}, s{sT2}, {WS_F1 - WS_FZ + 1024 + 256}")
    A(f"v_writelane_b32 v5, s{sT2}, 62")
    A(f"s_add_u32 s{sT2}, s{sT2}, 128")
    A(f"v_writelane_b32 v5, s{sT2}, 63")
    A(f"s_mov_b32 s{sI}, {SPIN}")
    A(f"s_mov_b32 s{sT}, {WS_FZ}")
    A(f"s_mov_b32 s{sT2}, {WS_FZ + 0x2000}")
    A(f"s_mov_b32 s{sKO}, {WS_FZ + 0x4000}")
    A("k2_pz:")
    A(f"buffer_load_dwordx2 v[12:13], v4, {sr(sWS,4)}, s{sT} offen sc1")
    A(f"buffer_load_dwordx2 v[14:15], v4, {sr(sWS,4)}, s{sT2} offen sc1")
    A(f"buffer_load_dwordx2 v[16:17], v4, {sr(sWS,4)}, s{sKO} offen sc1")
    A(f"buffer_load_dwordx2 v[18:19], v5, {sr(sWS,4)}, s{sT} offen sc1")
    A("s_waitcnt vmcnt(0)")
    A("v_cmp_ne_u64 vcc, s[6:7], v[12:13]")
    A("v_cmp_ne_u64 s[36:37], s[6:7], v[14:15]")
    A("v_cmp_ne_u64 s[38:39], s[6:7], v[16:17]")
    A("v_cmp_ne_u64 s[62:63], s[6:7], v[18:19]")
    A("s_nop 1")
    A("s_or_b64 vcc, vcc, s[36:37]")
    A("s_or_b64 vcc, vcc, s[38:39]")
    A("s_or_b64 vcc, vcc, s[62:63]")
    A("s_and_b64 exec, exec, vcc")
    A("s_cbranch_scc0 k2_pz_done")
    A(f"s_sub_u32 s{sI}, s{sI}, 1")
    A(f"s_sleep {os.environ.get('ZSL', 6)}")
    A(f"s_cmp_gt_i32 s{sI}, 0")
    A("s_cbranch_scc1 k2_pz")
    A("k2_pz_done:")
    A("s_mov_b64 exec, -1")
    ST.at(8)
    A(f"s_lshl_b32 s{sT}, s{sMT}, 7")
    A(f"s_add_u32 s{sT}, s{sT}, {WS_Z}")
    image("k2_imz", LZ, TM+2, sr(sWS,4), ZP, os.environ.get("ZF", "sc1"), int(os.environ.get("DZ", 32)))
    A("k2_auxw:")
    ST.at(9)
    A("k2_auxb1:")
    A(f"v_lshrrev_b32 v{vWD}, 3, v{vL}")
    A(f"v_and_b32 v{vT+6}, 7, v{vL}")
    A(f"v_bfe_u32 v{vT+7}, v{vL}, 4, 1")
    A(f"v_lshlrev_b32 v{vT+7}, 2, v{vT+7}")
    A(f"v_xor_b32 v{vT+6}, v{vT+6}, v{vT+7}")
    A(f"v_mul_u32_u24 v{vWD}, 896, v{vWD}")
    A(f"v_lshl_add_u32 v{vWD}, v{vT+6}, 4, v{vWD}")
    A("s_barrier")
    A("s_barrier")
    A("s_cmp_ge_u32 s2, 224")
    A("s_cbranch_scc1 k2_chk")
    A(f"s_lshl_b32 s{sT}, s{sNT}, 7")
    A(f"s_add_u32 s{sT}, s{sT}, {64*896}")
    for i in range(48):
        if i % 4 == 0: A(f"s_mov_b32 m0, {RED + 1024*i}")
        if i: A(f"s_add_u32 s{sT}, s{sT}, {8*896-1024 if i % 4 else 8*896+3072}")
        if i == 47: A("s_mov_b32 exec_hi, 0x00ffffff")
        A(f"buffer_load_dwordx4 v{vWD}, {sr(sX,4)}, s{sT} offen offset:{1024*(i%4)} lds")
    A("s_mov_b32 exec_hi, -1")
    A(f"s_mov_b32 s{sWS_}, s{sT}")
    A("s_waitcnt vmcnt(48)")
    A("s_branch k2_chk")
    A("k2_auxfb:")
    A("s_waitcnt vmcnt(0)")
    A("s_barrier")
    A("s_barrier")
    A("s_branch k2_auxb1")
    A("k2_auxp3:")
    A(f"v_and_b32 v4, 31, v{vL}")
    A("v_lshlrev_b32 v4, 7, v4")
    A(f"s_lshl_b32 s{sT}, s{sMT}, 12")
    A(f"s_add_u32 s{sT}, s{sT}, {WS_FO}")
    ST.at(10)
    A(f"s_mov_b32 s{sKO}, s{sT}")
    if int(os.environ.get("OD", 0)): A(f"s_sleep {os.environ.get('OD')}")
    A(f"buffer_load_dwordx2 v[0:1], v4, {sr(sWS,4)}, s{sKO} offen sc1")
    A(f"s_mov_b32 m0, {RED + 1024*44}")
    A("s_mov_b32 exec_lo, 0")
    A("s_mov_b32 exec_hi, 0xff000000")
    A(f"buffer_load_dwordx4 v{vWD}, {sr(sX,4)}, s{sWS_} offen offset:3072 lds")
    A("s_mov_b64 exec, -1")
    A(f"s_mov_b32 s{sT}, s{sKO}")
    A("s_waitcnt vmcnt(0)")
    A("v_cmp_eq_u64 vcc, s[6:7], v[0:1]")
    A("s_nop 1")
    A("s_cmp_eq_u64 vcc, -1")
    A("s_cbranch_scc1 k2_po_done")
    poll("k2_po", [f"buffer_load_dwordx2 v[0:1], v4, {sr(sWS,4)}, s{sT} offen sc1", "s_waitcnt vmcnt(0)", "v_cmp_eq_u64 vcc, s[6:7], v[0:1]", "s_nop 1"], int(os.environ.get("OSL", 2)))
    ST.at(11)
    A("s_barrier")
    A(f"s_lshl_b32 s{sT}, s{sNT}, 7")
    for i in range(8):
        if i % 4 == 0: A(f"s_mov_b32 m0, {LW + 1024*i}")
        if i: A(f"s_add_u32 s{sT}, s{sT}, {8*896-1024 if i % 4 else 8*896+3072}")
        A(f"buffer_load_dwordx4 v{vWD}, {sr(sX,4)}, s{sT} offen offset:{1024*(i%4)} lds")
    A("s_waitcnt vmcnt(0)")
    A("s_barrier")
    if DIAG: A("k2_dump:")
    ST.dump(sWS, sW, 5, 250)
    A("k2_end:")
    A("s_endpgm")
    body = A.L[loop_start:loop_end]
    rep = check_seq(body + body)
    assert not rep, rep
    return A.L, NV, 102 if DIAG else 64
```

```python
import sys, numpy as np
from asmlib import *
import os, importlib
gen_k1 = importlib.import_module(os.environ.get('K1', 'k1')).gen_k1
from k2 import gen_k2, K2_LDS, TS_BYTES, TAB_INV_BYTES
NAME = "gated_mix__spectral_gfnet__softmax_full_mha__prompt"
def bf16(x):
    u = np.asarray(x, dtype=np.float32).view(np.uint32).astype(np.uint64)
    return ((u + 0x7fff + ((u >> 16) & 1)) >> 16).astype(np.uint16)
def perm(u, h, j): return 16 * u + 8 * (j >> 2) + 4 * h + (j & 3)
def cs(num, den):
    num = num % den
    a = 2 * np.pi * num / den
    c, s = np.cos(a), np.sin(a)
    c = np.where(np.abs(c) < 1e-12, 0.0, c); s = np.where(np.abs(s) < 1e-12, 0.0, s)
    return c, s
def small_tables():
    l = np.arange(64); m = l & 31; h = l >> 5
    out = []
    F = np.zeros((3, 2, 4, 64, 8))
    for mt in range(2):
        for u in range(4):
            for j in range(8):
                c, s = cs((32 * mt + m) * perm(u, h, j), 64)
                F[0, mt, u, :, j] = c; F[1, mt, u, :, j] = s; F[2, mt, u, :, j] = -s
    out.append(bf16(F).tobytes())
    G = np.zeros((3, 2, 64, 8))
    for t in range(2):
        for j in range(8):
            c, s = cs(m * perm(t, h, j), 32)
            G[0, t, :, j] = c; G[1, t, :, j] = s; G[2, t, :, j] = -s
    out.append(bf16(G).tobytes())
    T = np.zeros((2, 2, 4, 64, 4), np.float32)
    for nt in range(2):
        for g in range(4):
            for i in range(4):
                c, s = cs((32 * nt + m) * (8 * g + 4 * h + i), 2048)
                T[nt, 0, g, :, i] = c; T[nt, 1, g, :, i] = s
    out.append(T.tobytes())
    b = b"".join(out)
    assert len(b) == TS_BYTES
    q = np.frombuffer(b, dtype=np.uint64)
    return [".quad " + ",".join(hex(int(v)) for v in q[i:i+8]) for i in range(0, len(q), 8)]
def big_tables():
    L = []
    c448, _ = cs(np.arange(448), 448)
    for i, v in enumerate(bf16(c448)): L.append(f".set C{i},{int(v)}")
    SD = 2048 * 448
    for i, v in enumerate(bf16(2 * c448 / SD)): L.append(f".set D{i},{int(v)}")
    L.append(f".set D448,{int(bf16([1/SD])[0])}"); L.append(f".set D449,{int(bf16([-1/SD])[0])}")
    for kr in range(448):
        if kr <= 112: k2, ph = 2 * kr, 0
        elif kr < 224: k2, ph = 2 * (kr - 112), 112
        elif kr < 336: k2, ph = 2 * (kr - 224) + 1, 0
        else: k2, ph = 2 * (kr - 336) + 1, 112
        md, ad = 448, 0
        if kr == 0: ad = 448
        if kr == 112: k2, md, ad = 1, 2, 448
        L.append(f".set KA{kr},{k2}\n.set KB{kr},{ph}\n.set KC{kr},{md}\n.set KD{kr},{ad}")
    L.append(r""".altmacro
.macro FW4 a,b,c,d
.short C\a,C\b,C\c,C\d
.endm
.macro LK i
.short D\i
.endm
.macro IV1 d,r
LK %((KA\r*\d+KB\r)%KC\r+KD\r)
.endm
.p2align 8
tab_fwd:
.set td,0
.rept 448
.set tg,0
.rept 14
.set tk,(tg>>1)*32
.set tp,(tg&1)*112
.rept 8
FW4 %((tk*td+tp)%448),%(((tk+1)*td+tp)%448),%(((tk+2)*td+tp)%448),%(((tk+3)*td+tp)%448)
.set tk,tk+4
.endr
.set tg,tg+1
.endr
FW4 %((224*td)%448),112,112,112
.fill 60,2,0
.set td,td+1
.endr
.p2align 8
tab_inv:
.set tn,0
.rept 14
.set tc,0
.rept 28
.set tr,tc*16
.set tl,0
.rept 64
.set tj,0
.rept 8
IV1 %(tn*32+(tl&31)),%(tr+(tl>>5)*8+tj)
.set tj,tj+1
.endr
.set tl,tl+1
.endr
.set tc,tc+1
.endr
.set tn,tn+1
.endr
.noaltmacro""")
    return L
def desc(name, nv, ns):
    return f""".p2align 6
.amdhsa_kernel {name}
  .amdhsa_next_free_vgpr {nv}
  .amdhsa_next_free_sgpr {ns}
  .amdhsa_accum_offset {(nv+3)//4*4}
  .amdhsa_group_segment_fixed_size 0
  .amdhsa_kernarg_size 80
  .amdhsa_user_sgpr_count 2
  .amdhsa_user_sgpr_kernarg_segment_ptr 1
  .amdhsa_system_sgpr_workgroup_id_x 1
.end_amdhsa_kernel"""
import os
def main(path, which=tuple(int(c) for c in os.environ.get('WHICH', '123'))):
    n = NAME + "_kernel"
    o = ["; gated mix of a GFNet spectral filter and 16-head softmax attention (one persistent launch; generated by gen/gen.py)",
         "; @launch grid=(256,1,1) block=(512,1,1) lds=163840",
         '.amdgcn_target "amdgcn-amd-amdhsa--gfx950"', f".set TAB_INV_BYTES,{TAB_INV_BYTES}", ".text"]
    L1, _, ns = gen_k1(); L2, nv, _ = gen_k2()
    nt = os.environ.get("NT", "W")
    def f(l):
        if "A" in nt and "s[8:11]" in l and l.endswith("lds"): return l[:-3] + "nt lds"
        if "B" in nt and "s[12:15]" in l and l.endswith("lds"): return l[:-3] + "nt lds"
        if "W" in nt and "buffer_load_ushort" in l: return l + " nt"
        return l
    pl = os.environ.get("PLAIN", "0") == "1"
    def f2(l):
        if pl and ("buffer_load_dwordx4" in l or "buffer_load_dword v" in l): return l.replace(" sc1", "")
        return l
    L = [f(l) for l in L1] + [".p2align 6"] + [f2(l) for l in L2]
    rep = []
    L = fix_hazards(L, rep)
    print("lines", len(L), "nops inserted", len(rep), file=sys.stderr)
    if "-v" in sys.argv:
        for r in rep: print("   ", r, file=sys.stderr)
    o += [f".globl {n}", ".p2align 8", f".type {n},@function", f"{n}:"] + L
    ds = [desc(n, nv, ns)]
    o.append(".fill 2048,4,0xbf810000")
    o.append('.section .rodata,"a"')
    o += ds
    o.append(".p2align 8"); o.append("tab_small:"); o += small_tables()
    o.append(".fill 2048,1,0")
    o += big_tables()
    open(path, "w").write("\n".join(o) + "\n")
if __name__ == "__main__":
    main(sys.argv[1] if len(sys.argv) > 1 and not sys.argv[1].startswith("-") else f"cdna_kernels/{NAME}.s")
```

```python
from asmlib import *
import math, os, struct
WS_Q, WS_K, WS_V, WS_Y, WS_W, WS_O, WS_Z, WS_G = 0x0, 0x200000, 0x400000, 0x600000, 0x840000, 0xA80000, 0xC80000, 0xE50000
WS_FO, WS_FZ, WS_F1 = 0xE60000, 0xE90000, 0xEA0000
SPIN = 200000
YB, WP, ZP = 32896, 16512, 4224
WS_BYTES = 0x1000000
def f2u(x): return struct.unpack("<I", struct.pack("<f", x))[0]
QSCALE = f2u(28 ** -0.5 * math.log2(math.e))
STF = os.environ.get('STF', 'sc1')
STF0 = os.environ.get('STF0', STF)
STFW = os.environ.get('STFW', STF)
WB = int(os.environ.get('WB', -1))
LA = 114688
NB = 12
K1_LDS = 163840
WPOS = int(os.environ.get("WPOS", 5))

def get_tag(A, lab, stmp, vt):
    A("s_load_dwordx2 s[6:7], s[4:5], 0")
    A(f"s_mov_b32 s{stmp}, {SPIN}")
    A("s_waitcnt lgkmcnt(0)")
    A("s_cmp_lg_u32 s6, 0")
    A(f"s_cbranch_scc1 {lab}_done")
    A(f"v_mov_b32 v{vt}, 0")
    A(f"{lab}:")
    A(f"global_load_dwordx2 {vr(vt+2,2)}, v{vt}, s[4:5] sc1")
    A(f"s_sub_u32 s{stmp}, s{stmp}, 1")
    A("s_waitcnt vmcnt(0)")
    A(f"v_readfirstlane_b32 s6, v{vt+2}")
    A(f"v_readfirstlane_b32 s7, v{vt+3}")
    A("s_cmp_lg_u32 s6, 0")
    A(f"s_cbranch_scc1 {lab}_done")
    A("s_sleep 4")
    A(f"s_cmp_lg_u32 s{stmp}, 0")
    A(f"s_cbranch_scc1 {lab}")
    A(f"{lab}_done:")

def gen_k1():
    A = Asm()
    sX, sB, sWS, sWR, sWI = 8, 12, 16, 20, 24
    sPC = 28
    sW, sMT, sNT, sC, sCA, sCB, sPITCH, sP4, sT, sT2, sBB = 30, 31, 32, 33, 34, 35, 36, 37, 38, 39, 40
    sGS, sLA, sLB, sP64, sP384, sJ, sW8 = 41, 42, 43, 44, 45, 46, 47
    sW0, sWST, sC0 = 48, 52, 53
    sGW, sPAR, sB2 = 60, 58, 59
    sDB = 4
    vL, vA0, vA1, vB = 64, 65, 66, 67
    vRA, vRB = 68, 72
    FR = 76
    MB = 124
    WL, vGW = 76, 100
    vT = 172
    vWO, vST = 188, 189
    PK = 192
    vPF = 224
    NV = 228
    D = 3

    A("s_cmp_ge_u32 s2, 256")
    A("s_cbranch_scc1 k2_end")
    ST = Stamps(A, 0); ST.begin()
    A(f"s_load_dwordx2 {sr(sX,2)}, s[0:1], 0")
    A(f"s_load_dwordx2 {sr(sB,2)}, s[0:1], 32")
    A(f"s_load_dwordx2 {sr(sWS,2)}, s[0:1], 72")
    A(f"s_load_dwordx2 {sr(sWR,2)}, s[0:1], 8")
    A(f"s_load_dwordx2 {sr(sWI,2)}, s[0:1], 16")
    A(f"s_load_dwordx2 {sr(sGW,2)}, s[0:1], 48")
    A(f"s_load_dwordx2 {sr(sDB,2)}, s[0:1], 64")
    A(f"s_getpc_b64 {sr(sPC,2)}")
    A("k1_pc:")
    A(f"v_and_b32 v{vL}, 63, v0")
    A(f"v_lshrrev_b32 v{vT}, 6, v0")
    A(f"v_mul_u32_u24 v{vT+1}, 18, v{vT}")
    A(f"v_add_lshl_u32 v{vT+1}, v{vT+1}, v{vL}, 7")
    A("s_mov_b64 exec, 0x3ffff")
    A(f"global_load_dword v{vPF}, v{vT+1}, {sr(sPC,2)}")
    A("s_mov_b64 exec, -1")
    A(f"v_readfirstlane_b32 s{sW8}, v{vT}")
    A(f"s_lshr_b32 s{sJ}, s2, 3")
    A(f"s_and_b32 s{sT}, s{sJ}, 3")
    A(f"s_lshr_b32 s{sT2}, s{sJ}, 2")
    A(f"s_bfe_u32 s{sMT}, s2, 0x20001")
    A(f"s_lshl_b32 s{sMT}, s{sMT}, 2")
    A(f"s_add_u32 s{sMT}, s{sMT}, s{sT}")
    A(f"s_and_b32 s{sNT}, s2, 1")
    A(f"s_lshl_b32 s{sNT}, s{sNT}, 3")
    A(f"s_add_u32 s{sNT}, s{sNT}, s{sT2}")
    A(f"s_and_b32 s{sPAR}, s{sT2}, 1")
    A(f"s_lshr_b32 s{sT2}, s{sT2}, 1")
    A(f"s_add_u32 s{sC}, s{sT}, s{sT2}")
    A(f"s_lshl_b32 s{sC}, s{sC}, 1")
    A(f"s_cmp_ge_u32 s{sC}, 7")
    A(f"s_cselect_b32 s{sT}, 7, 0")
    A(f"s_sub_u32 s{sC}, s{sC}, s{sT}")
    R1 = os.environ.get("R1", "full")
    if R1 == "none": A(f"s_mov_b32 s{sC}, 0")
    if R1 == "two":
        A(f"s_and_b32 s{sC}, s{sJ}, 1")
        A(f"s_mul_i32 s{sC}, s{sC}, 3")
    if R1 == "one":
        A(f"s_and_b32 s{sC}, s{sJ}, 1")
    if R1 == "xcd":
        A(f"s_and_b32 s{sC}, s2, 7")
        A(f"s_min_u32 s{sC}, s{sC}, 6")
    A(f"s_and_b32 s{sW}, s{sW8}, 3")
    A(f"s_lshl_b32 s{sBB}, s{sMT}, 1")
    A(f"s_add_u32 s{sBB}, s{sBB}, s{sPAR}")
    A(f"s_lshl_b32 s{sBB}, s{sBB}, 1")
    A(f"s_and_b32 s{sT}, s{sW}, 1")
    A(f"s_add_u32 s{sBB}, s{sBB}, s{sT}")
    A(f"s_xor_b32 s{sB2}, s{sBB}, 2")
    A(f"s_movk_i32 s{sPITCH}, 1024")
    A(f"s_cmp_ge_u32 s{sNT}, 12")
    A(f"s_cselect_b32 s{sPITCH}, s{sPITCH}, 2688")
    A(f"s_cselect_b32 s{sGS}, 64, 56")
    A(f"s_lshl_b32 s{sLA}, s{sT}, 12")
    A(f"s_add_u32 s{sLA}, s{sLA}, {LA}")
    A(f"s_cmp_lt_u32 s{sW8}, 4")
    A("s_cbranch_scc1 k1_comp")
    A(f"s_mul_i32 s{sT}, s{sNT}, 224")
    A(f"s_lshl_b32 s{sT2}, s{sNT}, 8")
    A(f"s_sub_u32 s{sT2}, s{sT2}, 3072")
    A(f"s_cmp_ge_u32 s{sNT}, 12")
    A(f"s_cselect_b32 s{sCB}, s{sT2}, s{sT}")
    A(f"s_lshl_b32 s{sP4}, s{sPITCH}, 2")
    A(f"s_sub_u32 s{sP4}, s{sP4}, 1024")
    A(f"s_lshl_b32 s{sP64}, s{sPITCH}, 6")
    A(f"s_mul_i32 s{sP384}, s{sP64}, 7")
    A(f"s_lshl_b32 s{sT}, s{sC}, 2")
    A(f"s_add_u32 s{sT}, s{sT}, s{sW}")
    A(f"s_lshl_b32 s{sT}, s{sT}, 4")
    A(f"s_mul_i32 s{sT}, s{sT}, s{sPITCH}")
    A(f"s_add_u32 s{sCB}, s{sCB}, s{sT}")
    A(f"s_mul_i32 s{sCA}, s{sBB}, 896")
    A(f"s_lshl_b32 s{sT}, s{sC}, 7")
    A(f"s_add_u32 s{sCA}, s{sCA}, s{sT}")
    A(f"s_lshr_b32 s{sT}, s{sW}, 1")
    A(f"s_mul_i32 s{sT2}, s{sT}, {2*458752}")
    A(f"s_add_u32 s{sCA}, s{sCA}, s{sT2}")
    A(f"s_lshl_b32 s{sT}, s{sT}, 11")
    A(f"s_add_u32 s{sLA}, s{sLA}, s{sT}")
    A(f"s_lshl_b32 s{sLB}, s{sW}, 12")
    A(f"v_lshrrev_b32 v{vT}, 3, v{vL}")
    A(f"v_mul_u32_u24 v{vA0}, 57344, v{vT}")
    A(f"v_lshrrev_b32 v{vT+1}, 4, v{vL}")
    A(f"v_and_b32 v{vT+3}, 7, v{vL}")
    A(f"v_xor_b32 v{vT+3}, v{vT+3}, v{vT+1}")
    A(f"v_lshl_add_u32 v{vA0}, v{vT+3}, 4, v{vA0}")
    A(f"v_xor_b32 v{vA1}, 64, v{vA0}")
    A(f"v_mul_u32_u24 v{vB}, s{sPITCH}, v{vT+1}")
    A(f"v_bfe_u32 v{vT+3}, v{vL}, 2, 2")
    A(f"v_xor_b32 v{vT+3}, v{vT+3}, v{vT+1}")
    A(f"v_lshlrev_b32 v{vT+3}, 2, v{vT+3}")
    A(f"v_and_or_b32 v{vT+3}, v{vL}, 3, v{vT+3}")
    A(f"v_lshl_add_u32 v{vB}, v{vT+3}, 4, v{vB}")
    A(f"s_getpc_b64 {sr(56,2)}")
    A("s_add_u32 s56, s56, tab_fwd@rel32@lo+4")
    A("s_addc_u32 s57, s57, tab_fwd@rel32@hi+12")
    A(f"s_mov_b32 s{sX+2}, 1835008")
    A(f"s_mov_b32 s{sX+3}, 0x20000")
    A(f"s_mov_b32 s{sB+2}, 458752")
    A(f"s_mov_b32 s{sB+3}, 0x20000")
    A(f"s_cmp_ge_u32 s{sNT}, 12")
    A(f"s_cselect_b32 s{sT}, 16, 14")
    A(f"s_cmp_eq_u32 s{sNT}, 15")
    A(f"s_cselect_b32 s{sT}, 12, s{sT}")
    A(f"v_cmp_gt_u32 s[54:55], s{sT}, v{vT+3}")
    A(f"s_mov_b32 s{sC0}, s{sC}")
    A("s_waitcnt lgkmcnt(0) ; WSB")
    A(f"s_cmp_ge_u32 s{sNT}, 12")
    A(f"s_cselect_b32 s{sB}, s56, s{sB}")
    A(f"s_cselect_b32 s{sB+1}, s57, s{sB+1}")
    A(f"s_cselect_b32 s{sB+2}, s{sB+2}, 1204224")
    Q = []
    def issue(n):
        A(f"s_add_u32 m0, s{sLA}, {8192*(n%6)}")
        A(f"s_add_u32 s{sT}, s{sCA}, 457728")
        A(f"buffer_load_dwordx4 v{vA0}, {sr(sX,4)}, s{sCA} offen lds")
        A(f"buffer_load_dwordx4 v{vA1}, {sr(sX,4)}, s{sT} offen offset:1024 lds")
        Q.extend([n, n])
        if n < 7:
            A(f"s_add_u32 m0, s{sLB}, {16384*n}")
            A("s_mov_b64 exec, s[54:55]")
            for i in range(4):
                if i == 0: so = sCB
                elif i == 1: A(f"s_add_u32 s{sT}, s{sCB}, s{sP4}"); so = sT
                else: A(f"s_add_u32 s{sT}, s{sT}, s{sP4}"); so = sT
                A(f"buffer_load_dwordx4 v{vB}, {sr(sB,4)}, s{so} offen offset:{1024*i} lds")
            A("s_mov_b64 exec, -1")
            Q.extend([n] * 4)
        if n == 13: return
        A(f"s_add_u32 s{sCA}, s{sCA}, 128")
        if n < 6: A(f"s_add_u32 s{sCB}, s{sCB}, s{sP64}")
        A(f"s_add_u32 s{sC}, s{sC}, 1")
        A(f"s_cmp_eq_u32 s{sC}, 7")
        A(f"s_cselect_b32 s{sT}, 896, 0")
        if n < 6: A(f"s_cselect_b32 s{sT2}, s{sP384}, 0")
        A(f"s_cselect_b32 s{sC}, 0, s{sC}")
        A(f"s_sub_u32 s{sCA}, s{sCA}, s{sT}")
        if n < 6: A(f"s_sub_u32 s{sCB}, s{sCB}, s{sT2}")
        if n == 6:
            A(f"s_mul_i32 s{sT}, s{sPAR}, {-4*896}")
            A(f"s_add_u32 s{sCA}, s{sCA}, s{sT}")
            A(f"s_add_u32 s{sCA}, s{sCA}, {2*896}")
    def wait_for(tag):
        if tag not in Q: return
        last = max(i for i, t in enumerate(Q) if t == tag)
        A(f"s_waitcnt vmcnt({len(Q) - 1 - last})")
        del Q[:last + 1]
    ST.at(0)
    issue(0)
    A(f"s_mov_b32 s{sGW+2}, 896")
    A(f"s_mov_b32 s{sGW+3}, 0x20000")
    A(f"s_cmp_lg_u32 s{sNT}, 15")
    A("s_cbranch_scc1 k1_nog")
    A(f"v_and_b32 v{vT+4}, 15, v{vL}")
    A(f"v_lshlrev_b32 v{vT+5}, 1, v{vT+4}")
    A(f"s_lshl_b32 s{sT}, s{sW}, 5")
    A(f"s_lshl_b32 s{sT2}, s{sC0}, 7")
    A(f"s_add_u32 s{sT}, s{sT}, s{sT2}")
    for i in range(7):
        A(f"buffer_load_ushort v{vGW+i}, v{vT+5}, {sr(sGW,4)}, s{sT} offen")
        if i < 6:
            A(f"s_add_u32 s{sT}, s{sT}, 128")
            A(f"s_cmp_ge_u32 s{sT}, 896")
            A(f"s_cselect_b32 s{sT2}, 896, 0")
            A(f"s_sub_u32 s{sT}, s{sT}, s{sT2}")
    A(f"v_and_b32 v{vT+5}, 3, v{vL}")
    A(f"v_xor_b32 v{vT+5}, 3, v{vT+5}")
    A(f"v_lshlrev_b32 v{vT+5}, 6, v{vT+5}")
    A(f"v_lshl_add_u32 v{vGW+8}, v{vT+4}, 8, v{vT+5}")
    A(f"v_add_u32 v{vGW+8}, s{sLB}, v{vGW+8}")
    A(f"v_add_u32 v{vGW+9}, 0x10000, v{vGW+8}")
    A("k1_nog:")
    issue(1)
    ST.at(1)
    for r in (sWS, sWR, sWI):
        A(f"s_mov_b32 s{r+2}, {WS_BYTES if r == sWS else 921600}")
        A(f"s_mov_b32 s{r+3}, 0x20000")
    A(f"s_lshr_b32 s{sT}, s2, 4")
    A(f"s_bfe_u32 s{sT2}, s2, 0x20002")
    A(f"s_lshl_b32 s{sT2}, s{sT2}, 1")
    A(f"s_and_b32 s{sW0}, s{sW}, 1")
    A(f"s_add_u32 s{sT2}, s{sT2}, s{sW0}")
    A(f"s_lshl_b32 s{sWST}, s{sT}, 3")
    A(f"s_add_u32 s{sWST}, s{sWST}, s{sT2}")
    A(f"s_mul_i32 s{sWST}, s{sWST}, {WP}")
    A(f"s_lshl_b32 s{sW0}, s{sT}, 5")
    A(f"s_add_u32 s{sW0}, s{sW0}, s{sT2}")
    A(f"s_mul_i32 s{sW0}, s{sW0}, 1800")
    A(f"s_and_b32 s{sT}, s2, 3")
    A(f"s_lshl_b32 s{sT}, s{sT}, 1")
    A(f"s_lshr_b32 s{sT2}, s{sW}, 1")
    A(f"s_add_u32 s{sGS}, s{sT}, s{sT2}")
    A(f"s_lshl_b32 s{sT2}, s{sGS}, 6")
    A(f"s_add_u32 s{sW0}, s{sW0}, s{sT2}")
    for i in range(1, 4): A(f"s_add_u32 s{sW0+i}, s{sW0}, {14400*i}")
    A(f"s_lshl_b32 s{sT2}, s{sGS}, 11")
    A(f"s_add_u32 s{sWST}, s{sWST}, s{sT2}")
    A(f"s_add_u32 s{sWST}, s{sWST}, {WS_W}")
    A(f"v_lshrrev_b32 v{vT}, 5, v{vL}")
    A(f"v_mul_u32_u24 v{vT}, 900, v{vT}")
    A(f"v_and_b32 v{vWO}, 31, v{vL}")
    A(f"v_lshl_add_u32 v{vWO}, v{vWO}, 1, v{vT}")
    A(f"v_lshlrev_b32 v{vST}, 4, v{vL}")
    A(f"v_and_b32 v{vT+6}, 3, v{vL}")
    A(f"v_lshlrev_b32 v{vT+6}, 6, v{vT+6}")
    A(f"v_and_or_b32 v{vT+6}, v{vL}, 60, v{vT+6}")
    A(f"s_and_b32 s{sT}, s{sNT}, 3")
    A(f"s_lshl_b32 s{sT}, s{sT}, 2")
    A(f"s_and_b32 s{sT2}, s{sW}, 2")
    A(f"s_add_u32 s{sT}, s{sT}, s{sT2}")
    A(f"s_lshl_b32 s{sT}, s{sT}, 6")
    A(f"s_lshl_b32 s{sT2}, s{sMT}, 1")
    A(f"s_and_b32 s{sB2}, s{sW}, 1")
    A(f"s_add_u32 s{sT2}, s{sT2}, s{sB2}")
    A(f"s_cmp_ge_u32 s{sNT}, 4")
    A(f"s_cselect_b32 s{sT2}, s{sT2}, s{sBB}")
    A(f"s_add_u32 s{sT}, s{sT}, s{sT2}")
    A(f"s_lshl_b32 s{sT}, s{sT}, 11")
    A(f"s_lshr_b32 s{sT2}, s{sNT}, 2")
    A(f"s_lshl_b32 s{sT2}, s{sT2}, 21")
    A(f"s_add_u32 s{sB2}, s{sT}, s{sT2}")
    A(f"s_add_u32 s{sC0}, s{sB2}, {64*2048}")
    A(f"s_lshl_b32 s{sT}, s{sNT}, 1")
    A(f"s_lshr_b32 s{sT2}, s{sW}, 1")
    A(f"s_add_u32 s{sPC}, s{sT}, s{sT2}")
    A(f"s_lshl_b32 s{sT}, s{sPC}, 12")
    A(f"s_mul_i32 s{sT2}, s{sBB}, {YB}")
    A(f"s_add_u32 s{sT}, s{sT}, s{sT2}")
    A(f"s_add_u32 s{sT}, s{sT}, {WS_Y - 24*4096}")
    A(f"s_add_u32 s{sT2}, s{sT}, 2048")
    A(f"s_cmp_ge_u32 s{sNT}, 12")
    A(f"s_cselect_b32 s{sB2}, s{sT}, s{sB2}")
    A(f"s_cselect_b32 s{sC0}, s{sT2}, s{sC0}")
    A(f"s_lshl_b32 s{sT}, s{sW}, 12")
    A(f"v_add_u32 v{vT+7}, s{sT}, v{vST}")
    def prefetches():
        A(f"s_load_dwordx2 {sr(sGW,2)}, s[0:1], 40")
        A(f"s_getpc_b64 {sr(56,2)}")
        A("s_add_u32 s56, s56, tab_inv@rel32@lo+4")
        A("s_addc_u32 s57, s57, tab_inv@rel32@hi+12")
        A(f"s_mov_b32 s{sGW+2}, 401408")
        A(f"s_lshl_b32 s{sT}, s2, 1")
        A(f"s_lshr_b32 s{sT2}, s{sW}, 1")
        A(f"s_add_u32 s{sT}, s{sT}, s{sT2}")
        A(f"s_mul_i32 s{sT}, s{sT}, {7*128}")
        A(f"v_lshl_add_u32 v{vT}, v{vL}, 7, s{sT}")
        A("s_waitcnt lgkmcnt(0)")
        A(f"s_bitcmp1_b32 s{sW}, 0")
        A(f"s_cselect_b32 s{sGW}, s56, s{sGW}")
        A(f"s_cselect_b32 s{sGW+1}, s57, s{sGW+1}")
        A("s_mov_b64 exec, 0x7f")
        A(f"buffer_load_dword v{vPF+2}, v{vT}, {sr(sGW,4)}, 0 offen")
        A("s_mov_b64 exec, -1")
        Q.append("p")
        A(f"s_cmp_lg_u32 s{sW8}, 4")
        A("s_cbranch_scc1 k1_npf")
        A(f"s_cmp_ge_u32 s{sJ}, 8")
        A("s_cbranch_scc1 k1_npf")
        A(f"s_getpc_b64 {sr(56,2)}")
        A("s_add_u32 s56, s56, tab_small@rel32@lo+4")
        A("s_addc_u32 s57, s57, tab_small@rel32@hi+12")
        A(f"s_getpc_b64 {sr(62,2)}")
        A("s_add_u32 s62, s62, k2_start@rel32@lo+1028")
        A("s_addc_u32 s63, s63, k2_start@rel32@hi+1036")
        A(f"s_cmp_ge_u32 s{sJ}, 6")
        A(f"s_cselect_b32 s56, s62, s56")
        A(f"s_cselect_b32 s57, s63, s57")
        A(f"s_cselect_b32 s{sT}, 6, 0")
        A(f"s_sub_u32 s{sT}, s{sJ}, s{sT}")
        A(f"s_lshl_b32 s{sT}, s{sT}, 13")
        A(f"v_lshl_add_u32 v{vT}, v{vL}, 7, s{sT}")
        A(f"global_load_dword v{vPF+3}, v{vT}, s[56:57]")
        A("k1_npf:")
    PFP = int(os.environ.get('PFP', WPOS))
    if PFP < 0: prefetches()
    if os.environ.get("TOUCH", "0") == "1":
        A("s_mov_b64 exec, 1")
        A(f"buffer_load_dword v{vPF+1}, v{vST}, {sr(sWS,4)}, s{sWST} offen")
        A("s_mov_b64 exec, -1")
        Q.append("t")
    def wloads():
        for kk in range(2):
            for p, srd in enumerate((sWR, sWI)):
                for i in range(4):
                    A(f"buffer_load_ushort v{WL+8*kk+4*p+i}, v{vWO}, {sr(srd,4)}, s{sW0+i} offen offset:{450*kk}")
        Q.extend(["w"] * 16)
    def wstore():
        wait_for("w")
        for kk in range(2):
            for p in range(4):
                A(f"v_lshl_or_b32 v{WL+8*kk+p}, v{WL+8*kk+2*p+1}, 16, v{WL+8*kk+2*p}")
        for p in range(4): A(f"v_permlane16_swap_b32 v{WL+p}, v{WL+8+p}")
        for kk in range(2):
            for p in range(4): A(f"ds_bpermute_b32 v{WL+8*kk+4+p}, v{vT+6}, v{WL+8*kk+p}")
        A(f"s_cmp_eq_u32 s{sGS}, 7")
        A("s_cselect_b64 s[54:55], 0xff, -1")
        A("s_cselect_b64 s[56:57], 1, -1")
        A("s_waitcnt lgkmcnt(0)")
        for kk in range(2):
            A(f"s_mov_b64 exec, s[{54+2*kk}:{55+2*kk}]")
            A(f"buffer_store_dwordx4 {vr(WL+8*kk+4,4)}, v{vST}, {sr(sWS,4)}, s{sWST} offen offset:{1024*kk} {STFW}")
        A("s_mov_b64 exec, -1")
        Q.extend(["s", "s"])
    for n in range(NB):
        wait_for(n if n < NB - 1 else 13)
        if n == 0:
            A(f"s_cmp_lg_u32 s{sNT}, 15")
            A("s_cbranch_scc1 k1_ng")
            for i in range(7): A(f"ds_write_b16 v{vGW+8+(i>>2)}, v{vGW+i} offset:{16384*(i&3)}")
            A("s_waitcnt lgkmcnt(0)")
            A("k1_ng:")
        A("s_barrier")
        ST.at(2 + n)
        if n <= 4: issue(n + 2)
        if n == 4: issue(7); issue(8)
        if 5 <= n <= 9: issue(n + 4)
        if n == NB - 2: A(f"s_load_dwordx2 s[62:63], {sr(sDB,2)}, 0")
        if n == WPOS: wloads()
        if n == PFP: prefetches()
    for k in range(4): A(f"ds_read_b128 {vr(PK+4*k,4)}, v{vT+7} offset:{1024*k}")
    A(f"s_cmp_eq_u32 s{sPC}, 31")
    A("s_cselect_b64 s[54:55], 0xff, -1")
    A("s_cselect_b64 s[56:57], 1, -1")
    for k in range(4):
        A(f"s_waitcnt lgkmcnt({3-k})")
        A(f"s_mov_b64 exec, s[{54+2*(k&1)}:{55+2*(k&1)}]")
        A(f"buffer_store_dwordx4 {vr(PK+4*k,4)}, v{vST}, {sr(sWS,4)}, s{sB2 if k < 2 else sC0} offen offset:{1024*(k&1)} {STF0}")
    A("s_mov_b64 exec, -1")
    Q.extend(["s"] * 4)
    wstore()
    A("s_branch k1_pf")

    A("k1_comp:")
    A(f"s_mov_b32 s{sWS+2}, {WS_BYTES}")
    A(f"s_mov_b32 s{sWS+3}, 0x20000")
    A(f"s_or_b32 s{sT}, s2, s{sW}")
    A(f"s_cmp_lg_u32 s{sT}, 0")
    A("s_cbranch_scc1 k1_ntag")
    A("s_memrealtime s[62:63]")
    A(f"s_mov_b32 s{sDB+2}, 256")
    A(f"s_mov_b32 s{sDB+3}, 0x20000")
    A(f"v_mov_b32 v{vT}, 0")
    A("s_waitcnt lgkmcnt(0)")
    A("s_or_b32 s62, s62, 1")
    A(f"v_mov_b32 v{vT+2}, s62")
    A(f"v_mov_b32 v{vT+3}, s63")
    A("s_mov_b64 exec, 1")
    A(f"buffer_store_dwordx2 {vr(vT+2,2)}, v{vT}, {sr(sDB,4)}, 0 offen sc1")
    A("s_mov_b64 exec, -1")
    A("k1_ntag:")
    A(f"v_lshlrev_b32 v{vST}, 4, v{vL}")
    A(f"v_and_b32 v{vT}, 31, v{vL}")
    A(f"v_lshrrev_b32 v{vT+1}, 5, v{vL}")
    A(f"v_bfe_u32 v{vT+2}, v{vL}, 1, 3")
    A(f"v_xor_b32 v{vT+2}, v{vT+2}, v{vT+1}")
    A(f"v_lshlrev_b32 v{vT+2}, 4, v{vT+2}")
    A(f"v_lshl_add_u32 v{vT+2}, v{vT}, 7, v{vT+2}")
    A(f"v_add_u32 v{vRA}, s{sLA}, v{vT+2}")
    for u in range(1, 4): A(f"v_xor_b32 v{vRA+u}, {32*u}, v{vRA}")
    A(f"v_bfe_u32 v{vT+2}, v{vL}, 2, 2")
    A(f"v_lshl_add_u32 v{vT+3}, v{vT+1}, 3, v{vT+2}")
    A(f"v_lshlrev_b32 v{vT+3}, 8, v{vT+3}")
    A(f"v_bfe_u32 v{vT+4}, v{vL}, 4, 1")
    A(f"v_lshlrev_b32 v{vT+4}, 5, v{vT+4}")
    A(f"v_and_b32 v{vT+5}, 3, v{vL}")
    A(f"v_lshl_add_u32 v{vT+4}, v{vT+5}, 3, v{vT+4}")
    A(f"s_and_b32 s{sT}, s{sW}, 2")
    A(f"s_mul_i32 s{sT}, s{sT}, s{sGS}")
    A(f"v_add_u32 v{vT+4}, s{sT}, v{vT+4}")
    A(f"v_lshlrev_b32 v{vT+2}, 6, v{vT+2}")
    for g in range(2):
        A(f"v_xor_b32 v{vT+5}, v{vT+4}, v{vT+2}")
        A(f"v_add_u32 v{vRB+g}, v{vT+5}, v{vT+3}")
        A(f"v_add_u32 v{vRB+2+g}, 0x10000, v{vRB+g}")
        if g == 0: A(f"v_add_u32 v{vT+4}, s{sGS}, v{vT+4}")
    MC = lambda p: MB + 24 * p
    A(f"s_cmp_lt_u32 s{sNT}, 12")
    A("s_cbranch_scc1 k1_nom")
    A(f"v_cvt_f32_u32 v{vT+3}, v{vT}")
    A(f"v_mul_f32 v{vT+3}, {hex(f2u(1/32))}, v{vT+3}")
    for p in range(2):
        A(f"v_lshl_add_u32 v{vT+2}, v{vT+1}, 8, s{sBB if p == 0 else sB2}")
        A(f"v_mul_u32_u24 v{vT+2}, v{vT+2}, v{vT}")
        A(f"v_cvt_f32_u32 v{vT+2}, v{vT+2}")
        A(f"v_mul_f32 v{vT+2}, {hex(f2u(1/2048))}, v{vT+2}")
        for t in range(2):
            for jp in range(4):
                for e in range(2):
                    j = 2 * jp + e
                    n = 16 * t + 8 * (j >> 2) + (j & 3)
                    A(f"v_fmamk_f32 v{vT+4+e}, v{vT+3}, {hex(f2u(float(n)))}, v{vT+2}")
                    A(f"v_fract_f32 v{vT+4+e}, v{vT+4+e}")
                A(f"v_cos_f32 v{vT+6}, v{vT+4}")
                A(f"v_cos_f32 v{vT+7}, v{vT+5}")
                A(f"v_sin_f32 v{vT+8}, v{vT+4}")
                A(f"v_sin_f32 v{vT+9}, v{vT+5}")
                A(f"v_cvt_pk_bf16_f32 v{MC(p)+4*t+jp}, v{vT+6}, v{vT+7}")
                A(f"v_cvt_pk_bf16_f32 v{MC(p)+8+4*t+jp}, v{vT+8}, v{vT+9}")
                A(f"v_cvt_pk_bf16_f32 v{MC(p)+16+4*t+jp}, -v{vT+8}, -v{vT+9}")
    A("k1_nom:")
    A("s_waitcnt lgkmcnt(0) ; WSB")

    def reads(m):
        n, u = m // 4, m % 4; i = n % 7; buf = FR + 12 * (m % 4)
        L = [f"ds_read_b128 {vr(buf,4)}, v{vRA+u} offset:{8192*(n%6)}"]
        for g in range(2):
            off = 16384 * (i & 3) + 4096 * u
            L += [f"ds_read_b64_tr_b16 {vr(buf+4+4*g+2*x,2)}, v{vRB+2*(i>>2)+g} offset:{off+1024*x}" for x in range(2)]
        return L
    def steps(m0, m1, swap, fill):
        k = 0; done = 0; nm = 20
        for m in range(m0, m1):
            n, u = m // 4, m % 4; acc = 32 * (m // 28); buf = FR + 12 * (m % 4)
            A(f"s_waitcnt lgkmcnt({5 * min(D - 1, 55 - m)})")
            if u == 4 - D and n + 1 < NB:
                if n + 1 == NB - 1:
                    assert done == len(fill)
                    A("s_waitcnt lgkmcnt(5)")
                A("s_barrier")
                if n + 1 < 8: ST.at(2 + n + 1)
            rd = reads(m + D) if m + D < 56 else [None] * 5
            for g in range(2):
                a_, b_ = vr(buf,4), vr(buf+4+4*g,4)
                if swap: a_, b_ = b_, a_
                A(f"v_mfma_f32_32x32x16_bf16 {vr(acc+16*g,16)}, {a_}, {b_}, {'0' if m % 28 == 0 else vr(acc+16*g,16)}")
                if m >= m0 + 2 and fill:
                    k += 1; k2 = min(len(fill), -(-len(fill) * k // nm))
                    while done < k2 and not (fill[done].startswith("ds_write") and m < 34):
                        A(fill[done]); done += 1
                for x in (rd[:3] if g == 0 else rd[3:]):
                    if x: A(x)
        assert done == len(fill)
    def touch(step):
        if os.environ.get("TOUCH", "0") != "1": return
        A(f"s_sub_u32 s{sT}, s{sO[1]}, s{sO[0]}")
        A(f"v_and_b32 v{vT+10}, 1, v{vL}")
        A(f"v_mul_u32_u24 v{vT+10}, {step}, v{vT+10}")
        A(f"v_bfe_u32 v{vT+11}, v{vL}, 1, 1")
        A(f"v_mul_lo_u32 v{vT+11}, v{vT+11}, s{sT}")
        A(f"v_add3_u32 v{vT+10}, v{vT+10}, v{vT+11}, s{sO[0]}")
        A("s_mov_b64 exec, 15")
        A(f"buffer_load_dword v{vPF+1}, v{vT+10}, {sr(sWS,4)}, 0 offen")
        A("s_mov_b64 exec, -1")
    def pass0(swap):
        A("s_waitcnt lgkmcnt(0)")
        A("s_barrier")
        ST.at(2)
        for x in reads(0) + reads(1) + reads(2): A(x)
        steps(0, 28, swap, [])
        ST.at(10)
    st = lambda r, so, off: f"buffer_store_dwordx4 {vr(r,4)}, v{vST}, {sr(sWS,4)}, s{so} offen offset:{off} {STF0 if so == sCA else STF}"
    sO = [sCA, sCB]
    def out(p, g, P):
        if p == 0: return []
        return ([f"s_add_u32 s{sO[p]}, s{sO[p]}, {64*2048}"] if g else []) + [st(P, sO[p], 0), st(P + 4, sO[p], 1024)]
    def wr(p):
        return [f"ds_write_b128 v{vT+8}, {vr(PK+4*k,4)} offset:{1024*k}" for k in range(4)] if p == 0 else []
    def qkv_addr(base):
        A(f"s_and_b32 s{sT}, s{sNT}, 3")
        A(f"s_lshl_b32 s{sT}, s{sT}, 2")
        A(f"s_and_b32 s{sT2}, s{sW}, 2")
        A(f"s_add_u32 s{sT}, s{sT}, s{sT2}")
        A(f"s_lshl_b32 s{sT}, s{sT}, 6")
        A(f"s_lshl_b32 s{sT2}, s{sMT}, 1")
        A(f"s_and_b32 s{sO[1]}, s{sW}, 1")
        A(f"s_add_u32 s{sT2}, s{sT2}, s{sO[1]}")
        A(f"s_add_u32 s{sT2}, s{sT2}, 32")
        A(f"s_cmp_ge_u32 s{sNT}, 4")
        A(f"s_cselect_b32 s{sT2}, s{sT2}, s{sB2}")
        A(f"s_add_u32 s{sO[1]}, s{sT}, s{sT2}")
        A(f"s_lshl_b32 s{sO[1]}, s{sO[1]}, 11")
        A(f"s_add_u32 s{sO[1]}, s{sO[1]}, {base}")

    A(f"s_cmp_ge_u32 s{sNT}, 8")
    A("s_cbranch_scc1 k1_vd")
    A(f"s_cmp_ge_u32 s{sNT}, 4")
    A(f"s_cselect_b32 s{sP4}, {WS_K}, {WS_Q}")
    A(f"s_cselect_b32 s{sP64}, 1.0, {hex(QSCALE)}")
    A(f"s_cselect_b32 s{sLA}, 0x3f803f80, 0")
    A(f"s_cselect_b32 s{sLB}, 0x3f80, 0")
    A(f"s_cselect_b32 s{sC}, 12, 0")
    qkv_addr(f"s{sP4}")
    A(f"v_mov_b32 v{vT+6}, s{sLA}")
    A(f"v_mov_b32 v{vT+7}, s{sLB}")
    A(f"v_lshrrev_b32 v{vT}, 1, v{vL}")
    A(f"v_xor_b32 v{vT}, v{vT}, v{vL}")
    A(f"v_and_b32 v{vT}, 4, v{vT}")
    A(f"v_mul_u32_u24 v{vT}, 3, v{vT}")
    A(f"v_and_b32 v{vT}, s{sC}, v{vT}")
    A(f"v_xor_b32 v{vT}, v{vT}, v{vL}")
    A(f"v_lshlrev_b32 v{vST}, 4, v{vT}")
    A(f"v_cmp_lt_u32 vcc, 31, v{vL}")
    def epi_qk(p):
        L = []
        for g in range(2):
            acc = 32 * p + 16 * g; P = PK + 16 * p + 8 * g
            L += [f"v_mul_f32 v{acc+r}, s{sP64}, v{acc+r}" for r in range(16)]
            L += [f"v_cvt_pk_bf16_f32 v{P+r}, v{acc+2*r}, v{acc+2*r+1}" for r in range(8)]
            L += [f"v_cndmask_b32 v{P+6}, v{P+6}, v{vT+6}, vcc", f"v_cndmask_b32 v{P+7}, v{P+7}, v{vT+7}, vcc"]
            L += out(p, g, P)
        return L + wr(p)
    A(f"s_lshl_b32 s{sT}, s{sW}, 12")
    A(f"v_add_u32 v{vT+8}, s{sT}, v{vST}")
    pass0(True)
    steps(28, 56, True, epi_qk(0))
    ST.at(11)
    for x in epi_qk(1): A(x)
    A("s_branch k1_pf")
    A("k1_vd:")
    qkv_addr(WS_V)
    A(f"v_and_b32 v{vT}, 31, v{vL}")
    A(f"v_cmp_eq_u32 vcc, 28, v{vT}")
    A(f"v_mov_b32 v{vT+6}, 0x3f803f80")
    A(f"v_cndmask_b32 v{vT+6}, 0, v{vT+6}, vcc")
    A(f"v_cmp_lt_u32 vcc, 27, v{vT}")
    A(f"s_cmp_lt_u32 s{sNT}, 12")
    A("s_cbranch_scc1 k1_vt")
    A(f"s_lshl_b32 s{sT}, s{sNT}, 1")
    A(f"s_lshr_b32 s{sT2}, s{sW}, 1")
    A(f"s_add_u32 s{sC}, s{sT}, s{sT2}")
    A(f"s_lshl_b32 s{sT}, s{sC}, 12")
    for p in range(2):
        A(f"s_mul_i32 s{sO[p]}, s{sBB if p == 0 else sB2}, {YB}")
        A(f"s_add_u32 s{sO[p]}, s{sO[p]}, s{sT}")
        A(f"s_add_u32 s{sO[p]}, s{sO[p]}, {WS_Y - 24*4096}")
    A("k1_vt:")
    pass0(False)
    A(f"s_cmp_ge_u32 s{sNT}, 12")
    A("s_cbranch_scc1 k1_dft")
    def epi_v(p):
        L = []
        for g in range(2):
            acc = 32 * p + 16 * g; P = PK + 16 * p + 8 * g
            L += [f"v_cvt_pk_bf16_f32 v{P+r}, v{acc+2*r}, v{acc+2*r+1}" for r in range(8)]
            L += [f"v_cndmask_b32 v{P+r}, v{P+r}, v{vT+6}, vcc" for r in range(8)]
            L += out(p, g, P)
        return L + wr(p)
    A(f"s_lshl_b32 s{sT}, s{sW}, 12")
    A(f"v_add_u32 v{vT+8}, s{sT}, v{vST}")
    steps(28, 56, False, epi_v(0))
    ST.at(11)
    for x in epi_v(1): A(x)
    A("s_branch k1_pf")
    A("k1_dft:")
    A(f"s_cmp_eq_u32 s{sC}, 31")
    A("s_cselect_b64 s[54:55], 0xff, -1")
    A("s_cselect_b64 s[56:57], 1, -1")
    A(f"s_lshl_b32 s{sT2}, s{sW}, 12")
    A(f"v_lshlrev_b32 v{vT}, 6, v{vT}")
    A(f"v_lshl_add_u32 v{vT}, v{vT+1}, 4, v{vT}")
    A(f"v_add_u32 v{vT}, s{sT2}, v{vT}")
    A(f"v_add_u32 v{vT+2}, s{sT2}, v{vST}")
    A(f"v_lshlrev_b32 v{vT+3}, 4, v{vT+1}")
    def epi_dft(p):
        xr, xi = PK + 16 * p, PK + 16 * p + 8; yr, yi = 32 * p, 32 * p + 16; M = MC(p)
        L = [f"v_cvt_pk_bf16_f32 v{xr+r}, v{yr+2*r}, v{yr+2*r+1}" for r in range(8)]
        L += [f"v_cvt_pk_bf16_f32 v{xi+r}, v{yi+2*r}, v{yi+2*r+1}" for r in range(8)]
        G = [f"s_cmp_lg_u32 s{sC}, 31", f"s_cbranch_scc1 k1_ngs{p}", f"s_lshl_b32 s{sT}, s{sBB if p == 0 else sB2}, 7", f"s_add_u32 s{sT}, s{sT}, {WS_G}",
             "s_mov_b32 exec_lo, 1", "s_mov_b32 exec_hi, 1"]
        G += [f"buffer_store_dwordx4 {vr(yi+4*g,4)}, v{vT+3}, {sr(sWS,4)}, s{sT} offen offset:{32*g} sc1" for g in range(4)]
        G += ["s_mov_b64 exec, -1"] + [f"v_mov_b32 v{xi+r}, 0" for r in range(8)] + ["s_nop 1", f"k1_ngs{p}:"]
        L.append("\n".join(G))
        mf = lambda d, a, b, first=False: f"v_mfma_f32_32x32x16_bf16 {vr(d,16)}, {vr(a,4)}, {vr(b,4)}, {'0' if first else vr(d,16)}"
        L += [mf(yr, M + 4*t, xr + 4*t, t == 0) for t in range(2)] + [mf(yr, M + 8 + 4*t, xi + 4*t) for t in range(2)]
        L += [mf(yi, M + 4*t, xi + 4*t, t == 0) for t in range(2)] + [mf(yi, M + 16 + 4*t, xr + 4*t) for t in range(2)]
        L += ["s_nop 0"] * (6 if p == 0 else 0)
        for part, (y, P) in enumerate(((yr, PK + 16 - 16 * p), (yi, PK + 24 - 16 * p))):
            L += [f"v_cvt_pk_bf16_f32 v{P+r}, v{y+2*r}, v{y+2*r+1}" for r in range(8)]
            L.append("s_nop 0")
            for t in range(2): L += [f"v_permlane32_swap_b32 v{P+4*t}, v{P+4*t+2}", f"v_permlane32_swap_b32 v{P+4*t+1}, v{P+4*t+3}"]
            L += [f"ds_write_b128 v{vT}, {vr(P+4*t,4)} offset:{16384*p+2048*part+32*t}" for t in range(2)]
            if p == 1:
                L.append("s_waitcnt lgkmcnt(0)")
                L += [f"ds_read_b128 {vr(P+4*k,4)}, v{vT+2} offset:{16384+2048*part+1024*k}" for k in range(2)]
        if p == 1:
            for part, P in enumerate((PK + 16 - 16 * p, PK + 24 - 16 * p)):
                for k in range(2):
                    L += [f"s_waitcnt lgkmcnt({1 - k if part else 2})", f"s_mov_b64 exec, s[{54+2*k}:{55+2*k}]", st(P + 4*k, sO[p], 2048*part + 1024*k)]
        return L
    steps(28, 56, False, epi_dft(0))
    ST.at(11)
    for x in epi_dft(1): A(x)
    A("s_mov_b64 exec, -1")
    A("k1_pf:")
    if DIAG:
        A(f"s_cmp_lt_u32 s{sW8}, 4")
        A("s_cbranch_scc0 k1_nst")
        A("s_memtime s[96:97]")
        A("k1_nst:")
    A("s_barrier")
    ST.dump(sWS, sW8, 8, vT+10, False)
    get_tag(A, "k1_tag", sT, vT)
    A(f"s_cmp_lt_u32 s{sW8}, 5")
    A("s_cbranch_scc1 k2_start")
    A(f"s_lshl_b32 s{sT}, s2, 3")
    A(f"s_add_u32 s{sT}, s{sT}, s{sW8}")
    A(f"s_lshl_b32 s{sT}, s{sT}, 7")
    A(f"s_add_u32 s{sT}, s{sT}, {WS_F1}")
    A(f"v_mov_b32 v{vT}, 0")
    A(f"v_mov_b32 v{vT+2}, s6")
    A(f"v_mov_b32 v{vT+3}, s7")
    A("s_mov_b64 exec, 1")
    A("s_waitcnt vmcnt(0)")
    A(f"buffer_store_dwordx2 {vr(vT+2,2)}, v{vT}, {sr(sWS,4)}, s{sT} offen sc1")
    A("s_endpgm")
    return A.L, NV, 102 if DIAG else 64
```

```python
from asmlib import *
from k1 import WS_Q, WS_K, WS_V, WS_Y, WS_W, WS_O, WS_Z, WS_G, WS_BYTES, WS_FO, WS_FZ, WS_F1, f2u, YB, WP, ZP
import math, os
TS_F64, TS_F32, TS_TW, TS_BYTES = 0, 24576, 30720, 47104
LF, LZ, RED = 0, 57344, 114688
LW = RED - 8192
LDS_Y, LDS_Q = LZ, RED + 8192
K2_LDS = 163840
TAB_INV_BYTES = 401408
from k1 import SPIN
N0 = int(os.environ.get("N0", 13)); N1 = (64 - N0) // 3
assert N0 + 3 * N1 == 64
OST = os.environ.get("OST", "")

def merge(ms, vs, lead=0):
    out = []; n = len(ms); k = 0
    for i, m in enumerate(ms):
        out.append(m)
        k2 = (len(vs) * (i + 1)) // n
        out += vs[k:k2]; k = k2
    return out

def gen_k2():
    A = Asm()
    sWS, sX, sTB = 8, 12, 16
    sW, sJ, sXC, sHD, sQB, sT, sT2, sCNT, sI, sKO, sLO, sHI, sVO, sPASS = 20, 21, 22, 23, 24, 25, 26, 27, 28, 29, 30, 31, 32, 33
    sK0, sOK, sQ, sOUT = 34, 35, 40, 48
    sMT, sNT, sPUB, sLO2 = 52, 53, 57, 58
    O, S, Q, KV = 0, 64, 128, 160
    vL, vO16, vIDX, vT = 208, 209, 210, 212
    NV = 256
    vWD, sWM, sWS_ = 237, 59, 60
    vTAG = 240
    A("k2_start:")
    ST = Stamps(A, 1); ST.begin()
    A(f"s_load_dwordx2 {sr(sX,2)}, s[0:1], 40")
    A(f"s_load_dwordx2 {sr(sOUT,2)}, s[0:1], 56")
    A(f"s_mov_b32 s{sWS}, s16")
    A(f"s_mov_b32 s{sWS+1}, s17")
    A(f"s_mov_b32 s{sWS+2}, {WS_BYTES}")
    A(f"s_mov_b32 s{sWS+3}, 0x20000")
    A(f"s_mov_b32 s{sW}, s47")
    A(f"v_mov_b32 v{vL}, v64")
    A(f"v_mov_b32 v{vTAG}, s6")
    A(f"v_mov_b32 v{vTAG+1}, s7")
    A(f"v_lshlrev_b32 v{vO16}, 4, v{vL}")
    A(f"v_and_b32 v{vT+9}, 31, v{vL}")
    A(f"v_lshlrev_b32 v{vT+9}, 2, v{vT+9}")
    A(f"s_and_b32 s{sXC}, s2, 7")
    A(f"s_lshr_b32 s{sJ}, s2, 3")
    A(f"s_and_b32 s{sT}, s{sJ}, 3")
    A(f"s_lshl_b32 s{sMT}, s{sXC}, 2")
    A(f"s_add_u32 s{sMT}, s{sMT}, s{sT}")
    A(f"s_lshr_b32 s{sNT}, s{sJ}, 2")
    A(f"s_getpc_b64 {sr(sTB,2)}")
    A(f"s_add_u32 s{sTB}, s{sTB}, tab_inv@rel32@lo+4")
    A(f"s_addc_u32 s{sTB+1}, s{sTB+1}, tab_inv@rel32@hi+12")
    A(f"s_mov_b32 s{sTB+2}, {TAB_INV_BYTES}")
    A(f"s_mov_b32 s{sTB+3}, 0x20000")
    def own_flag():
        A(f"s_lshl_b32 s{sPUB}, s2, 3")
        A(f"s_add_u32 s{sPUB}, s{sPUB}, s{sW}")
        A(f"s_lshl_b32 s{sPUB}, s{sPUB}, 7")
        A(f"s_add_u32 s{sPUB}, s{sPUB}, {WS_F1}")
        A("v_mov_b32 v12, 0")
        A("s_mov_b64 exec, 1")
        A("s_waitcnt vmcnt(0)")
        A(f"buffer_store_dwordx2 {vr(vTAG,2)}, v12, {sr(sWS,4)}, s{sPUB} offen sc1")
        A("s_mov_b64 exec, -1")
    def flag_index(d, vpass, vmt, ve, vnt, shh):
        A(f"v_and_b32 v{d}, 7, v{vnt}")
        A(f"v_lshlrev_b32 v{d}, 2, v{d}")
        A(f"v_and_or_b32 v{d}, v{vmt}, 3, v{d}")
        A(f"v_lshrrev_b32 v{d+1}, 2, v{vmt}")
        A(f"v_lshl_add_u32 v{d}, v{d}, 2, v{d+1}")
        A(f"v_lshrrev_b32 v{d+1}, 3, v{vnt}")
        A(f"v_lshl_add_u32 v{d}, v{d}, 1, v{d+1}")
        A(f"v_xor_b32 v{d+1}, 1, v{vpass}")
        A(f"v_lshl_add_u32 v{d}, v{d}, 1, v{d+1}")
        A(f"v_lshl_add_u32 v{d}, v{d}, 1, {shh}")
        A(f"v_lshl_add_u32 v{d}, v{d}, 1, v{ve}")
        A(f"v_lshlrev_b32 v{d}, 7, v{d}")
    A(f"s_cmp_eq_u32 s{sW}, 4")
    A("s_cbranch_scc1 k2_aux")
    A(f"s_lshr_b32 s{sHD}, s{sJ}, 4")
    A(f"s_lshl_b32 s{sHD}, s{sHD}, 3")
    A(f"s_add_u32 s{sHD}, s{sHD}, s{sXC}")
    A(f"s_and_b32 s{sQB}, s{sJ}, 15")
    A(f"s_cmp_eq_u32 s{sW}, 0")
    A(f"s_cselect_b32 s{sCNT}, {N0}, {N1}")
    A(f"s_mul_i32 s{sT}, s{sW}, {N1}")
    A(f"s_sub_u32 s{sT}, s{sT}, {N1-N0}")
    A(f"s_max_i32 s{sT}, s{sT}, 0")
    A(f"s_lshl_b32 s{sT2}, s{sW}, 4")
    A(f"s_cmp_le_u32 s2, 224")
    A(f"s_cselect_b32 s{sCNT}, s{sCNT}, 16")
    A(f"s_cselect_b32 s{sT}, s{sT}, s{sT2}")
    A(f"s_mul_i32 s{sK0}, s{sW}, 3")
    A(f"s_sub_u32 s{sLO}, s{sT}, s{sK0}")
    A(f"s_add_u32 s{sLO}, s{sLO}, 9")
    A(f"v_lshrrev_b32 v2, 1, v{vL}")
    A(f"s_sub_u32 s{sT2}, s{sCNT}, 1")
    A(f"v_min_u32 v2, s{sT2}, v2")
    A(f"v_add_u32 v3, s{sK0}, v2")
    A(f"v_add_u32 v4, s{sLO}, v2")
    A("v_cmp_gt_u32 vcc, 3, v2")
    A(f"s_lshr_b32 s{sT2}, s{sHD}, 2")
    A(f"s_and_b32 s{sI}, s{sT2}, 1")
    A("v_cndmask_b32 v3, v4, v3, vcc")
    A("v_lshrrev_b32 v4, 5, v3")
    A("v_bfe_u32 v5, v3, 1, 4")
    A("v_and_b32 v6, 1, v3")
    A(f"v_and_b32 v7, 1, v{vL}")
    A(f"v_lshl_add_u32 v7, v7, 2, s{sT2}")
    A("v_add_u32 v7, 4, v7")
    A(f"v_cmp_lt_u32 vcc, 33, v{vL}")
    A(f"s_lshr_b32 s{sKO}, s{sW}, 1")
    A(f"s_xor_b32 s{sKO}, s{sKO}, s{sI}")
    A(f"s_and_b32 s{sVO}, s{sW}, 1")
    A(f"v_mov_b32 v8, s{sKO}")
    A(f"v_mov_b32 v9, s{sQB}")
    A(f"v_mov_b32 v10, s{sVO}")
    A(f"v_mov_b32 v11, s{sT2}")
    for k in range(4): A(f"v_cndmask_b32 v{4+k}, v{4+k}, v{8+k}, vcc")
    A(f"s_bfe_u32 s{sI}, s{sHD}, 0x10001")
    flag_index(2, 4, 5, 6, 7, f"s{sI}")
    A(f"s_lshl_b32 s{sT2}, s{sHD}, 6")
    A(f"s_add_u32 s{sK0}, s{sK0}, s{sT2}")
    A(f"s_lshl_b32 s{sK0}, s{sK0}, 11")
    A(f"s_add_u32 s{sK0}, s{sK0}, {WS_K}")
    A(f"s_add_u32 s{sLO2}, s{sLO}, s{sT2}")
    A(f"s_add_u32 s{sHI}, s{sLO2}, s{sCNT}")
    A(f"s_add_u32 s{sLO2}, s{sLO2}, 3")
    A(f"s_lshl_b32 s{sLO2}, s{sLO2}, 11")
    A(f"s_add_u32 s{sLO2}, s{sLO2}, {WS_K}")
    A(f"s_lshl_b32 s{sHI}, s{sHI}, 11")
    A(f"s_add_u32 s{sHI}, s{sHI}, {WS_K}")
    A(f"s_lshl_b32 s{sT}, s{sQB}, 2")
    A(f"s_add_u32 s{sT}, s{sT}, s{sT2}")
    for s in range(4):
        A(f"s_add_u32 s{sQ+s}, s{sW}, {s+1}")
        A(f"s_and_b32 s{sQ+s}, s{sQ+s}, 3")
        A(f"s_add_u32 s{sT2}, s{sQ+s}, s{sT}")
        A(f"s_lshl_b32 s{sQ+4+s}, s{sT2}, 11")
    A(f"s_mov_b32 s{sKO}, s{sK0}")
    A(f"s_add_u32 s{sVO}, s{sKO}, {WS_V - WS_K}")
    own_flag()
    ST.at(12)
    A(f"s_mov_b32 s{sI}, {SPIN}")
    A(f"s_mov_b32 s{sT}, {WS_F1}")
    A("s_mov_b32 exec_lo, 0x3f")
    A("s_mov_b32 exec_hi, 4")
    if int(os.environ.get("PD", 20)): A(f"s_sleep {os.environ.get('PD', 20)}")
    A("k2_pa:")
    A(f"buffer_load_dwordx2 v[4:5], v2, {sr(sWS,4)}, s{sT} offen sc1")
    A("s_waitcnt vmcnt(0)")
    A("v_cmp_ne_u64 vcc, s[6:7], v[4:5]")
    A("s_nop 1")
    A("s_and_b64 exec, exec, vcc")
    A("s_cbranch_scc0 k2_pa_done")
    A(f"s_sub_u32 s{sI}, s{sI}, 1")
    A(f"s_sleep {os.environ.get('PSL', 4)}")
    A(f"s_cmp_gt_i32 s{sI}, 0")
    A("s_cbranch_scc1 k2_pa")
    A("k2_pa_done:")
    A("s_mov_b64 exec, -1")
    ST.at(13)
    def ldk(st, t): return f"buffer_load_dwordx4 {vr(KV+16*st+4*t,4)}, v{vO16}, {sr(sWS,4)}, s{sKO} offen offset:{1024*t} sc1"
    def ldv(st, t): return f"buffer_load_dwordx4 {vr(KV+16*st+8+4*t,4)}, v{vO16}, {sr(sWS,4)}, s{sVO} offen offset:{1024*t} sc1"
    def ldq(s, t): return f"buffer_load_dwordx4 {vr(Q+8*s+4*t,4)}, v{vO16}, {sr(sWS,4)}, s{sQ+4+s} offen offset:{1024*t}"
    adv = [f"s_add_u32 s{sKO}, s{sKO}, 2048", f"s_cmp_ge_u32 s{sKO}, s{sHI}", f"s_cselect_b32 s{sKO}, s{sLO2}, s{sKO}"]
    setv = f"s_add_u32 s{sVO}, s{sKO}, {WS_V - WS_K}"
    A(f"s_lshl_b32 s{sT}, s{sW}, 11")
    A(f"s_add_u32 m0, s{sT}, {LDS_Q}")
    A(ldk(0, 0))
    A(f"buffer_load_dwordx4 v{vO16}, {sr(sWS,4)}, s{sQ+7} offen sc1 lds")
    A(f"buffer_load_dwordx4 v{vO16}, {sr(sWS,4)}, s{sQ+7} offen offset:1024 sc1 lds")
    A(ldk(0, 1))
    for r in range(64): A(f"v_mov_b32 v{O+r}, 0") if r not in (2,) else None
    for x in [ldv(0, 0), ldv(0, 1)]: A(x)
    A(f"s_mov_b32 s{sPASS}, 0")
    A(f"s_mov_b32 s{sOK}, 0")
    A("s_branch k2_first")
    A("k2_pass:")
    A(f"s_mov_b32 s{sKO}, s{sK0}")
    A(setv)
    for x in [ldk(0, 0), ldk(0, 1), ldv(0, 0), ldv(0, 1)]: A(x)
    A("s_waitcnt vmcnt(0)")
    A("k2_first:")
    for x in adv[:1] + [setv, ldk(1, 0), ldk(1, 1), ldv(1, 0), ldv(1, 1)] + adv[:1] + [setv, ldk(2, 0), ldk(2, 1), ldv(2, 0), ldv(2, 1)]: A(x)
    A(f"s_sub_u32 s{sT}, s{sCNT}, 3")
    A(f"s_mul_i32 s{sT}, s{sT}, s{sQB}")
    A(f"s_lshr_b32 s{sT}, s{sT}, 4")
    A(f"s_lshl_b32 s{sT}, s{sT}, 11")
    A(f"s_add_u32 s{sKO}, s{sLO2}, s{sT}")
    A(f"s_cmp_lg_u32 s{sPASS}, 0")
    A("s_cbranch_scc1 k2_nobar")
    A(f"v_mov_b32 v{vT+12}, v2")
    A(f"s_mov_b32 s{sT}, {WS_F1}")
    A(f"buffer_load_dwordx2 {vr(vT+10,2)}, v2, {sr(sWS,4)}, s{sT} offen sc1")
    A("v_mov_b32 v2, 0")
    A(f"v_mov_b32 v{vIDX}, 0xdddddddd")
    for s_ in range(4):
        A(f"s_lshl_b32 s{sT}, s{sQ+s_}, 11")
        A(f"s_add_u32 s{sT}, s{sT}, {LDS_Q}")
        A(f"v_add_u32 v{vT+2+s_}, s{sT}, v{vO16}")
    A("s_waitcnt vmcnt(12)")
    A("s_barrier")
    for s_ in range(4):
        for t in range(2): A(f"ds_read_b128 {vr(Q+8*s_+4*t,4)}, v{vT+2+s_} offset:{1024*t}")
    A("s_branch k2_go")
    A("k2_nobar:")
    A("s_waitcnt vmcnt(0)")
    A(f"v_mov_b32 v{vT+10}, s6")
    A(f"v_mov_b32 v{vT+11}, s7")
    for r in range(64): A(f"v_mov_b32 v{O+r}, 0")
    A("k2_go:")
    for s in range(3):
        A(f"s_mul_i32 s{sT}, s{sQ+s}, 12288")
        A(f"s_add_u32 s{sT}, s{sT}, {RED}")
        A(f"v_add_u32 v{vT+s}, s{sT}, v{vO16}")
    A(f"s_mov_b32 s{sI}, s{sCNT}")
    def qk(q, st, half):
        c = "0" if half == 0 else vr(S+16*q,16)
        return f"v_mfma_f32_32x32x16_bf16 {vr(S+16*q,16)}, {vr(KV+16*st+4*half,4)}, {vr(Q+8*q+4*half,4)}, {c}"
    def pv(q, st, half):
        return f"v_smfmac_f32_32x32x32_bf16 {vr(O+16*q,16)}, {vr(KV+16*st+8+4*half,4)}, {vr(S+16*q+8*half,8)}, v{vIDX}"
    def tile(st, first, last=False):
        nxt, prv = (st + 1) % 3, (st + 2) % 3
        for q in range(4):
            e = [f"v_exp_f32 v{S+16*q+r}, v{S+16*q+r}" for r in range(16)]
            qn, stn = (q + 1, st) if q < 3 else (0, nxt)
            qp, stp = (q - 1, st) if q > 0 else (3, prv)
            aft = {0: [], 1: [], 2: [], 3: []}
            if q == 0: aft[2] = [ldk(prv, 0)]; aft[3] = [setv]
            if q == 1: aft[1] = ["s_waitcnt vmcnt(5)"]; aft[2] = [ldk(prv, 1)]; aft[3] = adv[0:2]
            if q == 2: aft[0] = [adv[2]]; aft[2] = [ldv(prv, 0)]; aft[3] = [f"s_sub_u32 s{sI}, s{sI}, 1", "s_waitcnt vmcnt(5)"]
            if q == 3: aft[2] = [ldv(prv, 1)]; aft[3] = [f"s_cmp_eq_u32 s{sI}, 1"]
            ms = [qk(qn, stn, 0), qk(qn, stn, 1), pv(qp, stp, 0), pv(qp, stp, 1)]
            if first and q == 0:
                A("s_waitcnt lgkmcnt(0)")
                ms[2] = ms[3] = None
            if first:
                aft = {0: [], 1: [], 2: [], 3: []}
                if q == 1: aft[1] = ["s_waitcnt vmcnt(9)"]
                if q == 2: aft[3] = [f"s_sub_u32 s{sI}, s{sI}, 1", "s_waitcnt vmcnt(7)"]
                if q == 3: aft[2] = ["s_waitcnt vmcnt(0)"]; aft[3] = [f"v_cmp_eq_u64 vcc, s[6:7], {vr(vT+10,2)}"]
            if last:
                wr = lambda s_, g: f"ds_write_b128 v{vT+s_}, {vr(O+16*s_+4*g,4)} offset:{4096*s_+1024*g}"
                aft = {0: [], 1: [], 2: [], 3: []}
                if q == 1: aft[1] = ["s_waitcnt vmcnt(4)"]
                if q == 2: aft[2] = [wr(0, 0)]; aft[3] = [wr(0, 1)]
                if q == 3:
                    ms[0] = ms[1] = None
                    aft[0] = [wr(0, 2)]; aft[1] = [wr(0, 3)]; aft[2] = [wr(1, 0)]; aft[3] = [wr(1, 1)]
            for k in range(4):
                if ms[k]: A(ms[k])
                for y in aft[k]: A(y)
                for x in e[4*k:4*k+4]: A(x)
    ST.at(0)
    A("s_waitcnt vmcnt(11) lgkmcnt(6)")
    ST.at(1)
    A(qk(0, 0, 0)); A(qk(0, 0, 1))
    A("s_nop 9")
    tile(0, True)
    A("s_cmp_lg_u64 vcc, -1")
    A("s_cbranch_scc1 k2_pb0")
    loop_start = A.mark()
    A("k2_loop:")
    if DIAG:
        A("s_waitcnt lgkmcnt(0)")
        for i in (11,): A(f"s_mov_b32 s{70+2*i}, s{68+2*i}")
        ST.at(10)
    for st in (1, 2, 0):
        tile(st, False)
        A(f"s_cbranch_scc1 k2_x{(st + 1) % 3}" if st != 0 else "s_cbranch_scc0 k2_loop")
    loop_end = A.mark()
    for st in (1, 2, 0):
        A(f"k2_x{st}:")
        tile(st, False, True)
        A(f"ds_write_b128 v{vT+1}, {vr(O+16+8,4)} offset:{4096+2048}")
        A(pv(3, st, 0))
        A(f"ds_write_b128 v{vT+1}, {vr(O+16+12,4)} offset:{4096+3072}")
        A(pv(3, st, 1))
        if st != 0: A("s_branch k2_red")
    A("k2_red:")
    ST.at(2)
    A(f"s_lshl_b32 s{sT2}, s{sQB}, 2")
    A(f"s_add_u32 s{sT2}, s{sT2}, s{sW}")
    for g in range(4): A(f"ds_write_b128 v{vT+2}, {vr(O+32+4*g,4)} offset:{8192+1024*g}")
    A(f"s_mul_i32 s{sT}, s{sW}, 12288")
    A(f"s_add_u32 s{sT}, s{sT}, {RED}")
    A(f"v_add_u32 v{vT+1}, s{sT}, v{vO16}")
    A(f"s_lshl_b32 s{sT}, s{sW}, 2")
    A(f"s_add_u32 s{sT}, s{sT}, {K2_LDS-128}")
    A(f"v_mov_b32 v{vT+14}, s{sT}")
    A(f"s_lshl_b32 s{sT2}, s{sT2}, 4")
    A(f"s_add_u32 s{sT2}, s{sT2}, s{sHD}")
    A(f"s_lshl_b32 s{sKO}, s{sT2}, 11")
    A(f"s_add_u32 s{sKO}, s{sKO}, {WS_O}")
    A(f"s_lshl_b32 s{sVO}, s{sT2}, 7")
    A(f"s_add_u32 s{sVO}, s{sVO}, {WS_FO}")
    A("s_waitcnt vmcnt(0) lgkmcnt(0)")
    ST.at(3)
    A("s_barrier")
    ST.at(4)
    for s in range(3):
        for g in range(4):
            A(f"ds_read_b128 {vr(S+16*s+4*g,4)}, v{vT+1} offset:{4096*s+1024*g}")
    A(f"v_cmp_lt_u32 s[38:39], 31, v{vL}")
    R = O + 48
    for s in range(3):
        A(f"s_waitcnt lgkmcnt({8-4*s})")
        for r in list(range(12, 16)) + list(range(12)) if s == 2 else range(16): A(f"v_add_f32 v{R+r}, v{R+r}, v{S+16*s+r}")
    A(f"v_mov_b32 v{vT+4}, v{R+12}")
    A(f"v_mov_b32 v{vT+5}, v{R+12}")
    A(f"v_add_f32 v{vT+7}, abs(v{R}), abs(v{R+1})")
    A(f"v_add_f32 v{vT+7}, v{vT+7}, abs(v{R+2})")
    A(f"v_permlane32_swap_b32 v{vT+4}, v{vT+5}")
    A(f"v_rcp_f32 v{vT+6}, v{vT+5}")
    A(f"v_add_f32 v{vT+7}, v{vT+7}, abs(v{R+3})")
    A(f"s_cmp_lg_u32 s{sOK}, 0")
    A(f"s_mov_b32 s{sPUB}, 0")
    A("s_cbranch_scc1 k2_apart")
    for t in range(2):
        for r in range(8): A(f"v_mul_f32 v{S+8*t+r}, v{R+8*t+r}, v{vT+6}")
        for r in range(4): A(f"v_cvt_pk_bf16_f32 v{S+16+4*t+r}, v{S+8*t+2*r}, v{S+8*t+2*r+1}")
        if t == 1:
            A(f"v_cndmask_b32 v{S+22}, v{S+22}, 0, s[38:39]")
            A(f"v_cndmask_b32 v{S+23}, v{S+23}, 0, s[38:39]")
        A(f"buffer_store_dwordx4 {vr(S+16+4*t,4)}, v{vO16}, {sr(sWS,4)}, s{sKO} offen offset:{1024*t} sc1")
    for r in range(4, 16): A(f"v_add_f32 v{vT+7}, v{vT+7}, abs(v{R+r})")
    A(f"v_cmp_nle_f32 vcc, {hex(f2u(2.0**-60))}, v{vT+5}")
    A(f"s_mov_b64 s[36:37], vcc")
    A(f"v_cmp_nge_f32 vcc, {hex(f2u(2.0**60))}, v{vT+5}")
    A(f"s_or_b64 s[36:37], s[36:37], vcc")
    A(f"v_cmp_nge_f32 vcc, {hex(f2u(2.0**120))}, v{vT+7}")
    A(f"s_or_b64 s[36:37], s[36:37], vcc")
    A(f"s_cselect_b32 s{sOK}, 0, 1")
    A(f"s_or_b32 s{sOK}, s{sOK}, s{sPASS}")
    A(f"s_mov_b32 s{sPUB}, s{sOK}")
    A("k2_apart:")
    A("s_barrier")
    def publish(lab, younger=0):
        A(f"s_cmp_eq_u32 s{sPUB}, 0")
        A(f"v_mov_b32 v{vT+4}, 0")
        A(f"s_waitcnt vmcnt({younger})")
        A(f"s_cbranch_scc1 {lab}")
        A("s_mov_b64 exec, 1")
        A(f"buffer_store_dwordx2 {vr(vTAG,2)}, v{vT+4}, {sr(sWS,4)}, s{sVO} offen sc1")
        A("s_mov_b64 exec, -1")
        A(f"{lab}:")
    AA, AB, OF, LB = 0, 96, 160, 32
    vG3, vZ3, vF3, vW3, vOA, vX = 228, 229, 230, 232, 234, 235
    sKH, sB3, sB, sOB, sOA = 54, 55, 56, 61, 62
    A(f"s_lshr_b32 s{sKH}, s{sW}, 1")
    A(f"s_and_b32 s{sB3}, s{sW}, 1")
    A(f"v_lshrrev_b32 v{vT+10}, 5, v{vL}")
    A(f"v_bfe_u32 v{vT+11}, v{vL}, 2, 2")
    A(f"v_bfe_u32 v{vT+12}, v{vL}, 4, 1")
    A(f"v_lshlrev_b32 v{vT+12}, 5, v{vT+12}")
    A(f"v_and_b32 v{vT+13}, 3, v{vL}")
    A(f"v_lshl_add_u32 v{vT+12}, v{vT+13}, 3, v{vT+12}")
    A(f"v_lshl_add_u32 v{vT+12}, v{vT+11}, 7, v{vT+12}")
    A(f"v_lshrrev_b32 v{vT+11}, 1, v{vT+11}")
    A(f"v_lshl_add_u32 v{vT+12}, v{vT+11}, 6, v{vT+12}")
    A(f"s_lshl_b32 s{sT}, s{sB3}, 6")
    A(f"v_xor_b32 v{vZ3}, s{sT}, v{vT+12}")
    A(f"v_lshl_add_u32 v{vZ3}, v{vT+10}, 10, v{vZ3}")
    A(f"s_mul_i32 s{sT2}, s{sKH}, {14*2048}")
    A(f"s_add_u32 s{sT}, s{sT2}, {LZ}")
    A(f"v_add_u32 v{vZ3}, s{sT}, v{vZ3}")
    A(f"s_lshl_b32 s{sT}, s{sKH}, 10")
    A(f"s_add_u32 s{sT}, s{sT}, s{sT2}")
    A(f"v_add_u32 v{vF3}, s{sT}, v{vO16}")
    A(f"v_xor_b32 v{vF3+1}, 1024, v{vF3}")
    A(f"s_lshl_b32 s{sT}, s{sMT}, 1")
    A(f"s_add_u32 s{sB}, s{sT}, s{sB3}")
    A(f"s_lshl_b32 s{sT}, s{sB}, 7")
    A(f"s_add_u32 s{sT}, s{sT}, {WS_G}")
    A(f"buffer_load_dword v{vG3}, v{vT+9}, {sr(sWS,4)}, s{sT} offen sc1")
    A(f"s_lshl_b32 s{sT}, s{sKH}, 6")
    A(f"v_xor_b32 v{vW3}, s{sT}, v{vT+12}")
    A(f"v_lshl_add_u32 v{vW3}, v{vT+10}, 9, v{vW3}")
    A(f"s_mul_i32 s{sT}, s{sKH}, {224*128}")
    A(f"s_add_u32 s{sT}, s{sT}, {LW}")
    A(f"v_add_u32 v{vW3}, s{sT}, v{vW3}")
    A(f"v_xor_b32 v{vW3+1}, 64, v{vW3}")
    A(f"s_lshl_b32 s{sT}, s{sW}, 12")
    A(f"v_add_u32 v{vX}, s{sT}, v{vO16}")
    A(f"v_xor_b32 v{vX+1}, 8192, v{vX}")
    A(f"s_lshl_b32 s{sT}, s{sB}, 1")
    A(f"s_add_u32 s{sT}, s{sT}, s{sKH}")
    A(f"s_lshl_b32 s{sT}, s{sT}, 14")
    A(f"s_add_u32 s{sOB}, s{sT}, {WS_O}")
    A(f"v_lshrrev_b32 v{vT+3}, 2, v{vT+9}")
    A(f"v_mul_u32_u24 v{vOA}, 57344, v{vT+3}")
    A(f"v_lshl_add_u32 v{vOA}, v{vT+10}, 4, v{vOA}")
    A(f"s_mul_i32 s{sOA}, s{sB}, 896")
    A(f"s_lshl_b32 s{sT}, s{sNT}, 7")
    A(f"s_add_u32 s{sOA}, s{sOA}, s{sT}")
    A(f"s_lshl_b32 s{sT}, s{sKH}, 6")
    A(f"s_add_u32 s{sOA}, s{sOA}, s{sT}")
    A(f"s_mov_b32 s{sOUT+2}, 1835008")
    A(f"s_mov_b32 s{sOUT+3}, 0x20000")
    publish("k2_np0")
    A("k2_pub:")
    ST.at(5)
    A(f"v_mov_b32 v{vT+5}, s{sOK}")
    A(f"ds_write_b32 v{vT+14}, v{vT+5}")
    A("k2_chk:")
    A(f"v_mov_b32 v{vT+8}, {K2_LDS-128}")
    A("s_waitcnt lgkmcnt(0)")
    A("s_barrier")
    A(f"ds_read_b128 {vr(vT+4,4)}, v{vT+8}")
    A("s_waitcnt lgkmcnt(0)")
    A("s_barrier")
    A(f"v_and_b32 v{vT+4}, v{vT+4}, v{vT+5}")
    A(f"v_and_b32 v{vT+6}, v{vT+6}, v{vT+7}")
    A(f"v_and_b32 v{vT+4}, v{vT+4}, v{vT+6}")
    A(f"v_readfirstlane_b32 s{sT}, v{vT+4}")
    A(f"s_cmp_eq_u32 s{sT}, 0")
    A("s_cbranch_scc1 k2_fail")
    A("k2_p3:")
    A("s_cmp_ge_u32 s2, 224")
    A("s_cbranch_scc1 k2_dump" if DIAG else "s_cbranch_scc1 k2_end")
    A(f"s_cmp_eq_u32 s{sW}, 4")
    A("s_cbranch_scc1 k2_auxp3")
    steps = []
    HO = [3, 4, 5, 6, 7, 0, 1, 2]
    OFr = lambda m: (OF + 4*m) if m < 12 else (128 + 4*(m-12))
    for n in range(30):
        buf = LB + 12 * (n % 4)
        if n < 14:
            rd = [f"ds_read_b64_tr_b16 {vr(buf+2*x,2)}, v{vZ3} offset:{2048*n+512*x}" for x in range(2)]
            rd += [f"ds_read_b128 {vr(buf+4+4*k,4)}, v{vF3+k} offset:{2048*n}" for k in range(2)]
            mm = [f"v_mfma_f32_32x32x16_bf16 {vr(AA+16*k,16)}, {vr(buf+4+4*k,4)}, {vr(buf,4)}, {'0' if n == 0 else vr(AA+16*k,16)}" for k in range(2)]
        else:
            m = n - 14; hd, t = HO[m >> 1], m & 1
            rd = [f"ds_read_b64_tr_b16 {vr(buf+4+4*k+2*x,2)}, v{vW3+k} offset:{(28*hd+16*t)*128+1024*x}" for k in range(2) for x in range(2)]
            ks = (1, 0) if m == 15 else (0, 1)
            mm = [f"v_mfma_f32_32x32x16_bf16 {vr(AB+16*k,16)}, {vr(buf+4+4*k,4)}, {vr(OFr(m),4)}, {'0' if m == 0 else vr(AB+16*k,16)}" for k in ks]
        steps.append((rd, mm))
    for x in steps[0][0] + steps[1][0] + steps[2][0]: A(x)
    A(f"v_mul_f32 v{vG3}, {hex(f2u(-math.log2(math.e)))}, v{vG3}")
    A(f"v_exp_f32 v{vG3}, v{vG3}")
    A("s_nop 0")
    A(f"v_add_f32 v{vG3}, 1.0, v{vG3}")
    A(f"v_rcp_f32 v{vG3}, v{vG3}")
    A("s_nop 0")
    A(f"v_sub_f32 v{vG3+10}, 1.0, v{vG3}")
    for n in range(14):
        if n == 0: ST.at(10)
        if n == 7: ST.at(11)
        A(f"s_waitcnt lgkmcnt({4 * min(2, 13 - n)})")
        rd = steps[n+3][0] if n + 3 < 14 else [None] * 4
        for k in range(2):
            A(steps[n][1][k])
            for x in rd[2*k:2*k+2]:
                if x: A(x)
    ST.at(6)
    A("s_barrier")
    ST.at(7)
    def old(m):
        hd = HO[m >> 1]
        if m % 2 == 0 and (m == 0 or hd % 2 == 0 or hd == 0): A(f"s_add_u32 s{sI}, s{sOB}, {4096*(hd>>1)}")
        A(f"buffer_load_dwordx4 {vr(OFr(m),4)}, v{vO16}, {sr(sWS,4)}, s{sI} offen offset:{2048*(hd&1)+1024*(m&1)} sc1")
    NO = int(os.environ.get("NO", 10))
    for m in range(NO): old(m)
    for x in steps[14][0] + steps[15][0] + steps[16][0]: A(x)
    for r in range(32): A(f"v_mul_f32 v{AA+r}, v{vG3}, v{AA+r}")
    for n in range(14, 30):
        m = n - 14
        if NO + m < 16: old(NO + m)
        if m == 7: A("s_barrier")
        A(f"s_waitcnt vmcnt({min(NO + m + 1, 16) - m - 1}) lgkmcnt({4 * min(2, 29 - n)})")
        if m == 0: ST.at(8)
        rd = steps[n+3][0] if n + 3 < 30 else [None] * 4
        for k in range(2):
            A(steps[n][1][k])
            for x in rd[2*k:2*k+2]:
                if x: A(x)
    ST.at(9)
    A("s_nop 10")
    for g in range(4):
        for r in range(4*g, 4*g+4): A(f"v_fma_f32 v{AB+16+r}, v{vG3+10}, v{AB+16+r}, v{AA+16+r}")
        A(f"ds_write_b128 v{vX}, {vr(AB+16+4*g,4)} offset:{1024*g}")
    for r in range(16): A(f"v_fma_f32 v{AB+r}, v{vG3+10}, v{AB+r}, v{AA+r}")
    A("s_waitcnt lgkmcnt(0)")
    A("s_barrier")
    for g in range(4): A(f"ds_read_b128 {vr(AA+4*g,4)}, v{vX+1} offset:{1024*g}")
    for g in range(4):
        A(f"s_waitcnt lgkmcnt({3-g})")
        for r in range(4*g, 4*g+4): A(f"v_add_f32 v{AB+r}, v{AB+r}, v{AA+r}")
        for r in range(2*g, 2*g+2): A(f"v_cvt_pk_bf16_f32 v{LB+r}, v{AB+2*r}, v{AB+2*r+1}")
        if g & 1:
            t = g >> 1
            A(f"v_permlane32_swap_b32 v{LB+4*t}, v{LB+4*t+2}")
            A(f"v_permlane32_swap_b32 v{LB+4*t+1}, v{LB+4*t+3}")
            A(f"buffer_store_dwordx4 {vr(LB+4*t,4)}, v{vOA}, {sr(sOUT,4)}, s{sOA} offen offset:{32*t} {os.environ.get('OUTF', '')}")
    A("s_branch k2_dump" if DIAG else "s_endpgm")

    A("k2_fail:")
    A(f"s_cmp_eq_u32 s{sW}, 4")
    A("s_cbranch_scc1 k2_auxfb")
    A("s_branch k2_fb")
    A("k2_pb0:")
    A(f"s_mov_b32 s{sT2}, {SPIN}")
    A(f"s_mov_b32 s{sT}, {WS_F1}")
    A("k2_pb:")
    A(f"buffer_load_dwordx2 {vr(vT+10,2)}, v{vT+12}, {sr(sWS,4)}, s{sT} offen sc1")
    A("s_waitcnt vmcnt(0)")
    A(f"v_cmp_eq_u64 vcc, s[6:7], {vr(vT+10,2)}")
    A("s_nop 1")
    A("s_cmp_eq_u64 vcc, -1")
    A("s_cbranch_scc1 k2_loop")
    A(f"s_sub_u32 s{sT2}, s{sT2}, 1")
    A("s_sleep 2")
    A(f"s_cmp_lg_u32 s{sT2}, 0")
    A("s_cbranch_scc1 k2_pb")
    A("s_branch k2_loop")
    A("k2_fb:")
    A(f"s_mov_b32 s{sPASS}, 1")
    A("s_waitcnt vmcnt(0)")
    for q in range(4): A(f"v_mov_b32 v{O+q}, 0xff800000")
    A(f"s_mov_b32 s{sKO}, s{sK0}")
    A(f"s_add_u32 s{sT2}, s{sK0}, {3*2048}")
    A(f"s_mov_b32 s{sI}, s{sCNT}")
    A("k2_maxloop:")
    A(ldk(0, 0)); A(ldk(0, 1))
    A("s_waitcnt vmcnt(0)")
    for q in range(4): A(qk(q, 0, 0)); A(qk(q, 0, 1))
    A("s_nop 15")
    for q in range(4):
        for r in range(8): A(f"v_max3_f32 v{O+q}, v{O+q}, v{S+16*q+2*r}, v{S+16*q+2*r+1}")
    A(f"s_add_u32 s{sKO}, s{sKO}, 2048")
    A(f"s_cmp_eq_u32 s{sKO}, s{sT2}")
    A(f"s_cselect_b32 s{sKO}, s{sLO2}, s{sKO}")
    A(f"s_cselect_b32 s{sT2}, 0, s{sT2}")
    A(f"s_sub_u32 s{sI}, s{sI}, 1")
    A(f"s_cmp_lg_u32 s{sI}, 0")
    A("s_cbranch_scc1 k2_maxloop")
    A(f"s_lshl_b32 s{sT}, s{sW}, 8")
    A(f"s_add_u32 s{sT}, s{sT}, {RED}")
    A(f"v_lshl_add_u32 v{vT}, v{vL}, 2, s{sT}")
    A(f"v_and_b32 v{vT+1}, 31, v{vL}")
    A(f"v_lshlrev_b32 v{vT+1}, 2, v{vT+1}")
    A(f"v_add_u32 v{vT+1}, {RED}, v{vT+1}")
    for s in range(4):
        A(f"s_lshl_b32 s{sT}, s{sQ+s}, 10")
        A(f"v_add_u32 v{vT+2}, s{sT}, v{vT}")
        A(f"v_add_u32 v{vT+4+s}, s{sT}, v{vT+1}")
        A(f"ds_write_b32 v{vT+2}, v{O+s}")
    A("s_waitcnt lgkmcnt(0)")
    A("s_barrier")
    for s in range(4):
        for k in range(8): A(f"ds_read_b32 v{S+8*s+k}, v{vT+4+s} offset:{128*k}")
        A("s_waitcnt lgkmcnt(0)")
    A("s_barrier")
    A(f"v_cmp_lt_u32 vcc, 31, v{vL}")
    for q in range(4):
        m = S + 8 * q
        A(f"v_max3_f32 v{m}, v{m}, v{m+1}, v{m+2}")
        A(f"v_max3_f32 v{m}, v{m}, v{m+3}, v{m+4}")
        A(f"v_max3_f32 v{m}, v{m}, v{m+5}, v{m+6}")
        A(f"v_max_f32 v{m}, v{m}, v{m+7}")
        A(f"v_xor_b32 v{m}, 0x80000000, v{m}")
        A(f"v_and_b32 v{m+1}, 0xffff0000, v{m}")
        A(f"v_sub_f32 v{m+2}, v{m}, v{m+1}")
        A(f"v_and_b32 v{m+3}, 0xffff0000, v{m+2}")
        A(f"v_sub_f32 v{m+4}, v{m+2}, v{m+3}")
        A(f"v_lshrrev_b32 v{m+1}, 16, v{m+1}")
        A(f"v_or_b32 v{m+1}, v{m+1}, v{m+3}")
        A(f"v_lshrrev_b32 v{m+4}, 16, v{m+4}")
        A(f"v_cndmask_b32 v{Q+8*q+6}, v{Q+8*q+6}, v{m+1}, vcc")
        A(f"v_cndmask_b32 v{Q+8*q+7}, v{Q+8*q+7}, v{m+4}, vcc")
    A("s_branch k2_pass")


    A("k2_aux:")
    sCOL, sTS = 27, 40
    A(f"s_getpc_b64 {sr(sTS,2)}")
    A(f"s_add_u32 s{sTS}, s{sTS}, tab_small@rel32@lo+4")
    A(f"s_addc_u32 s{sTS+1}, s{sTS+1}, tab_small@rel32@hi+12")
    A(f"s_mov_b32 s{sTS+2}, {TS_BYTES}")
    A(f"s_mov_b32 s{sTS+3}, 0x20000")
    A(f"s_mov_b32 s{sX+2}, 401408")
    A(f"s_mov_b32 s{sX+3}, 0x20000")
    A(f"s_mul_i32 s{sCOL}, s{sXC}, 28")
    A(f"s_add_u32 s{sCOL}, s{sCOL}, s{sJ}")
    A(f"s_cmp_eq_u32 s2, 224")
    A(f"s_cselect_b32 s{sCOL}, 224, s{sCOL}")
    C_ = lambda kind, mt, u: 48 * mt + 16 * kind + 4 * u
    X = 96
    YF = 160
    U0 = 192
    WT = 212
    TM = 244
    vG = 210
    A(f"v_lshrrev_b32 v{TM}, 2, v{vL}")
    A(f"v_mul_u32_u24 v{vG+1}, {WP}, v{TM}")
    A(f"v_mul_u32_u24 v{TM}, {YB}, v{TM}")
    A(f"v_and_b32 v{TM+1}, 3, v{vL}")
    A(f"v_lshl_add_u32 v{vG}, v{TM+1}, 4, v{TM}")
    A(f"v_lshl_add_u32 v{vG+1}, v{TM+1}, 4, v{vG+1}")
    A(f"s_lshr_b32 s{sT}, s{sCOL}, 5")
    A(f"s_lshl_b32 s{sT}, s{sT}, 12")
    A(f"s_and_b32 s{sT2}, s{sCOL}, 31")
    A(f"s_lshl_b32 s{sT2}, s{sT2}, 6")
    A(f"s_add_u32 s{sT}, s{sT}, s{sT2}")
    A(f"s_lshl_b32 s{sKO}, s{sCOL}, 6")
    A(f"v_lshrrev_b32 v{TM}, 5, v{vL}")
    A(f"v_bfe_u32 v{TM+1}, v{vL}, 2, 2")
    A(f"v_lshl_add_u32 v{TM}, v{TM}, 2, v{TM+1}")
    A(f"v_lshlrev_b32 v{TM}, 6, v{TM}")
    A(f"v_bfe_u32 v{TM+1}, v{vL}, 4, 1")
    A(f"v_lshl_add_u32 v{TM}, v{TM+1}, 5, v{TM}")
    A(f"v_and_b32 v{TM+1}, 3, v{vL}")
    A(f"v_lshl_add_u32 v{TM}, v{TM+1}, 3, v{TM}")
    A(f"v_add_u32 v{TM}, {LDS_Y}, v{TM}")
    own_flag()
    sFI = 44
    FE = os.environ.get("FE", "0")
    def fimg():
        A(f"s_mul_i32 s{sFI}, s{sNT}, {2*28672}")
        A(f"s_mov_b32 s{sFI+1}, 0")
        A("k2_fi:")
        A(f"s_lshl_b32 m0, s{sFI+1}, 1")
        A(f"s_add_u32 s{sT2}, s{sFI}, s{sFI+1}")
        A(f"buffer_load_dwordx4 v{vO16}, {sr(sTB,4)}, s{sT2} offen lds")
        A(f"s_add_u32 s{sT2}, s{sT2}, {28672-1024}")
        A(f"buffer_load_dwordx4 v{vO16}, {sr(sTB,4)}, s{sT2} offen offset:1024 lds")
        A(f"s_add_u32 s{sFI+1}, s{sFI+1}, 1024")
        A(f"s_cmp_lt_u32 s{sFI+1}, 28672")
        A("s_cbranch_scc1 k2_fi")
    if FE == "1":
        A("s_cmp_ge_u32 s2, 224")
        A("s_cbranch_scc1 k2_nfi")
        fimg()
        A("k2_nfi:")
    A(f"s_lshr_b32 s{sI}, s{sCOL}, 6")
    A(f"s_add_u32 s{sI}, s{sI}, 12")
    A(f"s_and_b32 s{sVO}, s{sI}, 1")
    A(f"v_bfe_u32 v4, v{vL}, 1, 1")
    A(f"v_xor_b32 v4, s{sVO}, v4")
    A(f"v_lshrrev_b32 v5, 2, v{vL}")
    A(f"v_and_b32 v6, 1, v{vL}")
    A(f"v_mov_b32 v7, s{sI}")
    A(f"s_bfe_u32 s{sI}, s{sCOL}, 0x10005")
    flag_index(2, 4, 5, 6, 7, f"s{sI}")
    A(f"s_lshr_b32 s{sVO}, s{sCOL}, 6")
    A(f"s_lshl_b32 s{sVO}, s{sVO}, 2")
    A(f"s_add_u32 s{sVO}, s{sVO}, s{sI}")
    A(f"s_lshl_b32 s{sVO}, s{sVO}, 8")
    A(f"s_add_u32 s{sVO}, s{sVO}, {WS_F1 + 512}")
    A(f"v_lshlrev_b32 v4, 12, v{vL}")
    A("s_waitcnt lgkmcnt(0)")
    A("s_barrier")
    A("s_cmp_gt_u32 s2, 224")
    A("s_cbranch_scc1 k2_auxb1")
    A(f"s_mov_b32 s{sI}, {SPIN}")
    A(f"s_mov_b32 s{sT2}, {WS_F1}")
    A("k2_py:")
    A(f"buffer_load_dwordx2 v[6:7], v2, {sr(sWS,4)}, s{sT2} offen sc1")
    A(f"buffer_load_dwordx2 v[8:9], v4, {sr(sWS,4)}, s{sVO} offen sc1")
    A(f"buffer_load_dwordx2 v[10:11], v4, {sr(sWS,4)}, s{sVO} offen offset:128 sc1")
    A("s_waitcnt vmcnt(0)")
    A("v_cmp_ne_u64 vcc, s[6:7], v[6:7]")
    A("v_cmp_ne_u64 s[36:37], s[6:7], v[8:9]")
    A("v_cmp_ne_u64 s[38:39], s[6:7], v[10:11]")
    A("s_nop 1")
    A("s_or_b64 vcc, vcc, s[36:37]")
    A("s_or_b64 vcc, vcc, s[38:39]")
    A("s_and_b64 exec, exec, vcc")
    A("s_cbranch_scc0 k2_py_done")
    A(f"s_sub_u32 s{sI}, s{sI}, 1")
    A("s_sleep 4")
    A(f"s_cmp_gt_i32 s{sI}, 0")
    A("s_cbranch_scc1 k2_py")
    A("k2_py_done:")
    A("s_mov_b64 exec, -1")
    ST.at(12)
    A("s_setprio 3")
    def ydma(n):
        A(f"s_mov_b32 m0, {LDS_Y + 1024*n}")
        A(f"s_add_u32 s{sT2}, s{sT}, {WS_Y + (n>>2)*2048 + (n&3)*16*YB}")
        A(f"buffer_load_dwordx4 v{vG}, {sr(sWS,4)}, s{sT2} offen sc1 lds")
    def cld(dst, off):
        A(f"s_mov_b32 s{sT2}, {off}")
        for f in range(4): A(f"buffer_load_dwordx4 {vr(dst+4*f,4)}, v{vO16}, {sr(sTS,4)}, s{sT2} offen offset:{1024*f}")
    def wld(f):
        return [f"s_add_u32 s{sT2}, s{sKO}, {WS_W + f*16*WP}",
                f"buffer_load_dwordx4 {vr(WT+4*f,4)}, v{vG+1}, {sr(sWS,4)}, s{sT2} offen sc1"]
    for n in range(8): ydma(n)
    for kind in range(3): cld(C_(kind, 0, 0), TS_F64 + kind * 8192)
    for f in range(0, 4):
        for x in wld(f): A(x)
    for kind in range(3): cld(C_(kind, 1, 0), TS_F64 + kind * 8192 + 4096)
    ST.at(0)
    A("s_waitcnt vmcnt(28)")
    ST.at(1)
    for p in range(2):
        for u in range(4):
            A(f"ds_read_b64_tr_b16 {vr(YF+16*p+4*u,2)}, v{TM} offset:{4096*p+1024*u}")
            A(f"ds_read_b64_tr_b16 {vr(YF+16*p+4*u+2,2)}, v{TM} offset:{4096*p+1024*u+512}")
    for f in range(4, 8):
        for x in wld(f): A(x)
    A("s_waitcnt vmcnt(20) lgkmcnt(0)")
    Yr = lambda u: vr(YF+4*u,4)
    Yi = lambda u: vr(YF+16+4*u,4)
    mf = lambda d, a, b, first=False: f"v_mfma_f32_32x32x16_bf16 {vr(d,16)}, {a}, {b}, {'0' if first else vr(d,16)}"
    cf = lambda kind, mt, u: vr(C_(kind, mt, u), 4)
    def p3(mt):
        L = []
        for u in range(4):
            L += [mf(X+32*mt, cf(0, mt, u), Yr(u), u == 0), mf(X+32*mt+16, cf(0, mt, u), Yi(u), u == 0)]
        for u in range(4):
            L += [mf(X+32*mt, cf(1, mt, u), Yi(u)), mf(X+32*mt+16, cf(2, mt, u), Yr(u))]
        return L
    Ur = lambda u: (U0 + 4*u) if u < 2 else (YF + 4*u)
    Ui = lambda u: (U0 + 8 + 4*u) if u < 2 else (YF + 16 + 4*u)
    def cmul_pack(xr0, xi0, cr, ci, dr, di):
        L = []
        for i in range(4):
            L += [f"v_mul_f32 v{TM+8+i}, v{xr0+i}, v{cr(i)}", f"v_mul_f32 v{xr0+i}, v{xr0+i}, v{ci(i)}"]
        for i in range(4):
            L += [f"v_fma_f32 v{TM+8+i}, -v{xi0+i}, v{ci(i)}, v{TM+8+i}", f"v_fma_f32 v{xr0+i}, v{xi0+i}, v{cr(i)}, v{xr0+i}"]
        L += [f"v_cvt_pk_bf16_f32 v{dr}, v{TM+8}, v{TM+9}", f"v_cvt_pk_bf16_f32 v{dr+1}, v{TM+10}, v{TM+11}",
              f"v_cvt_pk_bf16_f32 v{di}, v{xr0}, v{xr0+1}", f"v_cvt_pk_bf16_f32 v{di+1}, v{xr0+2}, v{xr0+3}"]
        return L
    def wmul(mt):
        L = []
        for g in range(4):
            w = WT + 4 * (4 * mt + g)
            for i in range(4):
                op = "v_and_b32 v{}, 0xffff0000, v{}" if i & 1 else "v_lshlrev_b32 v{}, 16, v{}"
                L += [op.format(TM + i, w + (i >> 1)), op.format(TM + 4 + i, w + 2 + (i >> 1))]
            u = 2 * mt + (g >> 1)
            L += cmul_pack(X+32*mt+4*g, X+32*mt+16+4*g, lambda i: TM + i, lambda i: TM + 4 + i, Ur(u) + 2*(g&1), Ui(u) + 2*(g&1))
        return L
    def p4(nt, us):
        L = []
        for u in us:
            L += [mf(X+32*nt, vr(Ur(u),4), cf(0, nt, u), u == 0), mf(X+32*nt+16, vr(Ui(u),4), cf(0, nt, u), u == 0)]
        for u in us:
            L += [mf(X+32*nt, vr(Ui(u),4), cf(2, nt, u)), mf(X+32*nt+16, vr(Ur(u),4), cf(1, nt, u))]
        return L
    Tr = lambda nt: YF if nt == 0 else U0
    Ti = lambda nt: YF + 16 if nt == 0 else U0 + 8
    TW = lambda nt: 48 * nt
    F32 = WT
    def twid(nt):
        L = []
        for g in range(4):
            L += cmul_pack(X+32*nt+4*g, X+32*nt+16+4*g, lambda i: TW(nt) + 4*g + i, lambda i: TW(nt) + 16 + 4*g + i, Tr(nt) + 2*g, Ti(nt) + 2*g)
        return L
    def p5(nt):
        L = []
        for t in range(2):
            L += [mf(X+32*nt, vr(F32+4*t,4), vr(Tr(nt)+4*t,4), t == 0), mf(X+32*nt+16, vr(F32+4*t,4), vr(Ti(nt)+4*t,4), t == 0)]
        for t in range(2):
            L += [mf(X+32*nt, vr(F32+16+4*t,4), vr(Ti(nt)+4*t,4)), mf(X+32*nt+16, vr(F32+8+4*t,4), vr(Tr(nt)+4*t,4))]
        return L
    sZR, sZI = 29, 30
    def outp(nt):
        L = []
        for p in range(2):
            z = X + 32*nt + 16*p; P = TW(nt) + 8*p
            for r in range(8): L.append(f"v_cvt_pk_bf16_f32 v{P+r}, v{z+2*r}, v{z+2*r+1}")
            L.append("s_nop 1")
            for t in range(2):
                L += [f"v_permlane32_swap_b32 v{P+4*t}, v{P+4*t+2}", f"v_permlane32_swap_b32 v{P+4*t+1}, v{P+4*t+3}"]
            for t in range(2):
                L.append(f"ds_write_b128 v{vG}, {vr(P+4*t,4)} offset:{4096*p+2048*nt+32*t}")
        return L
    def outst():
        A("s_waitcnt lgkmcnt(0)")
        for k in range(8): A(f"ds_read_b128 {vr(X+4*k,4)}, v{vG+1} offset:{1024*k}")
        for k in range(8):
            A(f"s_waitcnt lgkmcnt({7-k})")
            A(f"buffer_store_dwordx4 {vr(X+4*k,4)}, v{vO16}, {sr(sWS,4)}, s{sZR+(k>>2)} offen offset:{1024*(k&3)} sc1")
    for x in p3(0): A(x)
    ST.at(2)
    A("s_waitcnt vmcnt(4)")
    A("s_nop 7")
    for x in merge(p3(1), wmul(0)): A(x)
    A("s_waitcnt vmcnt(0)")
    A("s_nop 7")
    for x in merge(p4(0, (0, 1)), wmul(1)): A(x)
    for x in p4(0, (2, 3)): A(x)
    ST.at(3)
    cld(TW(0), TS_TW); cld(TW(0) + 16, TS_TW + 4096)
    A(f"s_mov_b32 s{sT2}, {TS_F32}")
    for f in range(4): A(f"buffer_load_dwordx4 {vr(F32+4*f,4)}, v{vO16}, {sr(sTS,4)}, s{sT2} offen offset:{1024*f}")
    A(f"s_mov_b32 s{sT2}, {TS_F32+4096}")
    for f in range(2): A(f"buffer_load_dwordx4 {vr(F32+16+4*f,4)}, v{vO16}, {sr(sTS,4)}, s{sT2} offen offset:{1024*f}")
    A(f"s_lshr_b32 s{sT}, s{sCOL}, 1")
    A(f"s_and_b32 s{sT2}, s{sCOL}, 1")
    A(f"s_mul_i32 s{sT2}, s{sT2}, 224")
    A(f"s_add_u32 s{sT}, s{sT}, s{sT2}")
    A(f"s_mul_i32 s{sT}, s{sT}, {ZP}")
    A(f"s_add_u32 s{sZR}, s{sT}, {WS_Z}")
    A(f"s_add_u32 s{sZI}, s{sZR}, {112*ZP}")
    A(f"s_cmp_eq_u32 s{sCOL}, 0")
    A(f"s_cselect_b32 s{sZI}, {WS_G + 0x4000}, s{sZI}")
    A(f"s_cmp_eq_u32 s{sCOL}, 224")
    A(f"s_cselect_b32 s{sZI}, {WS_G + 0x6000}, s{sZI}")
    A(f"v_and_b32 v{vG}, 31, v{vL}")
    A(f"v_lshlrev_b32 v{vG}, 6, v{vG}")
    A(f"v_lshrrev_b32 v{vG+1}, 5, v{vL}")
    A(f"v_lshl_add_u32 v{vG}, v{vG+1}, 4, v{vG}")
    A(f"v_add_u32 v{vG}, {LDS_Y}, v{vG}")
    A(f"v_add_u32 v{vG+1}, {LDS_Y}, v{vO16}")
    A("s_waitcnt vmcnt(6)")
    for x in merge(p4(1, (0, 1, 2, 3)), twid(0)): A(x)
    cld(TW(1), TS_TW + 8192); cld(TW(1) + 16, TS_TW + 12288)
    ST.at(4)
    A("s_waitcnt vmcnt(0)")
    for x in merge(p5(0), twid(1)): A(x)
    A("s_nop 1")
    for x in merge(p5(1), outp(0)): A(x)
    A("s_nop 7")
    for x in outp(1): A(x)
    outst()
    ST.at(5)
    A("s_setprio 0")
    A(f"s_lshl_b32 s{sT}, s{sCOL}, 7")
    A(f"s_add_u32 s{sT}, s{sT}, {WS_FZ}")
    A(f"v_mov_b32 v{TM+4}, 0")
    A(f"v_mov_b32 v{TM+6}, s6")
    A(f"v_mov_b32 v{TM+7}, s7")
    A("s_mov_b64 exec, 1")
    A("s_waitcnt vmcnt(0)")
    ST.at(6)
    A(f"buffer_store_dwordx2 {vr(TM+6,2)}, v{TM+4}, {sr(sWS,4)}, s{sT} offen sc1")
    A("s_mov_b64 exec, -1")
    A("s_cmp_ge_u32 s2, 224")
    A("s_cbranch_scc1 k2_auxw")
    A(f"v_lshrrev_b32 v{TM}, 3, v{vL}")
    A(f"v_and_b32 v{TM+1}, 7, v{vL}")
    A(f"v_bfe_u32 v{TM+2}, v{vL}, 4, 1")
    A(f"v_lshlrev_b32 v{TM+2}, 2, v{TM+2}")
    A(f"v_xor_b32 v{TM+1}, v{TM+1}, v{TM+2}")
    A(f"v_lshlrev_b32 v{TM+1}, 4, v{TM+1}")
    A(f"v_mul_u32_u24 v{TM+2}, {ZP}, v{TM}")
    A(f"v_add_u32 v{TM+2}, v{TM+2}, v{TM+1}")
    def image(name, lds, vaddr, srd, pitch, flag, depth):
        A(f"s_mov_b32 s{sI}, {lds}")
        A(f"{name}:")
        A(f"s_mov_b32 m0, s{sI}")
        for i in range(4):
            if i: A(f"s_add_u32 s{sT}, s{sT}, {8*pitch-1024}")
            else: A("s_nop 0")
            A(f"buffer_load_dwordx4 v{vaddr}, {srd}, s{sT} offen offset:{1024*i} {flag} lds")
        A(f"s_add_u32 s{sT}, s{sT}, {8*pitch+3072}")
        A(f"s_add_u32 s{sI}, s{sI}, 4096")
        A(f"s_waitcnt vmcnt({depth})")
        A(f"s_cmp_lt_u32 s{sI}, {lds+57344}")
        A(f"s_cbranch_scc1 {name}")
    def poll(name, lines, sl):
        A(f"s_mov_b32 s{sI}, {SPIN}")
        A(f"{name}:")
        for x in lines: A(x)
        A("s_cmp_eq_u64 vcc, -1")
        A(f"s_cbranch_scc1 {name}_done")
        A(f"s_sub_u32 s{sI}, s{sI}, 1")
        A(f"s_sleep {sl}")
        A(f"s_cmp_lg_u32 s{sI}, 0")
        A(f"s_cbranch_scc1 {name}")
        A(f"{name}_done:")
    if FE == "0": fimg()
    A(f"s_and_b32 s{sT}, s{sJ}, 3")
    A(f"s_mul_i32 s{sT}, s{sT}, {112*896}")
    A(f"s_lshl_b32 s{sT2}, s{sNT}, 7")
    A(f"s_add_u32 s{sT}, s{sT}, s{sT2}")
    A(f"v_mul_u32_u24 v8, 896, v{vL}")
    A(f"buffer_load_dword v9, v8, {sr(sX,4)}, s{sT} offen")
    A(f"s_add_u32 s{sT}, s{sT}, {48*896}")
    A(f"buffer_load_dword v10, v8, {sr(sX,4)}, s{sT} offen")
    ST.at(7)
    if FE == "1": A(f"s_sleep {os.environ.get('ZD', 12)}")
    A(f"v_lshlrev_b32 v4, 7, v{vL}")
    A(f"v_add_u32 v5, 0x6000, v4")
    A(f"v_min_u32 v5, {224*128}, v5")
    A(f"s_lshr_b32 s{sT}, s{sMT}, 1")
    A(f"s_and_b32 s{sT2}, s{sT}, 3")
    A(f"s_add_u32 s{sT2}, s{sT2}, 28")
    A(f"s_lshl_b32 s{sT2}, s{sT2}, 2")
    A(f"s_lshr_b32 s{sT}, s{sT}, 2")
    A(f"s_add_u32 s{sT2}, s{sT2}, s{sT}")
    A(f"s_lshl_b32 s{sT2}, s{sT2}, 11")
    A(f"s_add_u32 s{sT2}, s{sT2}, {WS_F1 - WS_FZ + 1024 + 256}")
    A(f"v_writelane_b32 v5, s{sT2}, 62")
    A(f"s_add_u32 s{sT2}, s{sT2}, 128")
    A(f"v_writelane_b32 v5, s{sT2}, 63")
    A(f"s_mov_b32 s{sI}, {SPIN}")
    A(f"s_mov_b32 s{sT}, {WS_FZ}")
    A(f"s_mov_b32 s{sT2}, {WS_FZ + 0x2000}")
    A(f"s_mov_b32 s{sKO}, {WS_FZ + 0x4000}")
    A("k2_pz:")
    A(f"buffer_load_dwordx2 v[12:13], v4, {sr(sWS,4)}, s{sT} offen sc1")
    A(f"buffer_load_dwordx2 v[14:15], v4, {sr(sWS,4)}, s{sT2} offen sc1")
    A(f"buffer_load_dwordx2 v[16:17], v4, {sr(sWS,4)}, s{sKO} offen sc1")
    A(f"buffer_load_dwordx2 v[18:19], v5, {sr(sWS,4)}, s{sT} offen sc1")
    A("s_waitcnt vmcnt(0)")
    A("v_cmp_ne_u64 vcc, s[6:7], v[12:13]")
    A("v_cmp_ne_u64 s[36:37], s[6:7], v[14:15]")
    A("v_cmp_ne_u64 s[38:39], s[6:7], v[16:17]")
    A("v_cmp_ne_u64 s[62:63], s[6:7], v[18:19]")
    A("s_nop 1")
    A("s_or_b64 vcc, vcc, s[36:37]")
    A("s_or_b64 vcc, vcc, s[38:39]")
    A("s_or_b64 vcc, vcc, s[62:63]")
    A("s_and_b64 exec, exec, vcc")
    A("s_cbranch_scc0 k2_pz_done")
    A(f"s_sub_u32 s{sI}, s{sI}, 1")
    A(f"s_sleep {os.environ.get('ZSL', 6)}")
    A(f"s_cmp_gt_i32 s{sI}, 0")
    A("s_cbranch_scc1 k2_pz")
    A("k2_pz_done:")
    A("s_mov_b64 exec, -1")
    ST.at(8)
    A(f"s_lshl_b32 s{sT}, s{sMT}, 7")
    A(f"s_add_u32 s{sT}, s{sT}, {WS_Z}")
    image("k2_imz", LZ, TM+2, sr(sWS,4), ZP, os.environ.get("ZF", "sc1"), int(os.environ.get("DZ", 48)))
    A("k2_auxw:")
    ST.at(9)
    A("k2_auxb1:")
    A(f"v_lshrrev_b32 v{vWD}, 3, v{vL}")
    A(f"v_and_b32 v{vT+6}, 7, v{vL}")
    A(f"v_bfe_u32 v{vT+7}, v{vL}, 4, 1")
    A(f"v_lshlrev_b32 v{vT+7}, 2, v{vT+7}")
    A(f"v_xor_b32 v{vT+6}, v{vT+6}, v{vT+7}")
    A(f"v_mul_u32_u24 v{vWD}, 896, v{vWD}")
    A(f"v_lshl_add_u32 v{vWD}, v{vT+6}, 4, v{vWD}")
    A("s_barrier")
    A("s_barrier")
    A("s_cmp_ge_u32 s2, 224")
    A("s_cbranch_scc1 k2_chk")
    A(f"s_lshl_b32 s{sT}, s{sNT}, 7")
    A(f"s_add_u32 s{sT}, s{sT}, {64*896}")
    for i in range(48):
        if i % 4 == 0: A(f"s_mov_b32 m0, {RED + 1024*i}")
        if i: A(f"s_add_u32 s{sT}, s{sT}, {8*896-1024 if i % 4 else 8*896+3072}")
        if i == 47: A("s_mov_b32 exec_hi, 0x00ffffff")
        A(f"buffer_load_dwordx4 v{vWD}, {sr(sX,4)}, s{sT} offen offset:{1024*(i%4)} lds")
    A("s_mov_b32 exec_hi, -1")
    A(f"s_mov_b32 s{sWS_}, s{sT}")
    A("s_waitcnt vmcnt(48)")
    A("s_branch k2_chk")
    A("k2_auxfb:")
    A("s_waitcnt vmcnt(0)")
    A("s_barrier")
    A("s_barrier")
    A("s_branch k2_auxb1")
    A("k2_auxp3:")
    A(f"v_and_b32 v4, 31, v{vL}")
    A("v_lshlrev_b32 v4, 7, v4")
    A(f"s_lshl_b32 s{sT}, s{sMT}, 12")
    A(f"s_add_u32 s{sT}, s{sT}, {WS_FO}")
    ST.at(10)
    A(f"s_mov_b32 s{sKO}, s{sT}")
    if int(os.environ.get("OD", 0)): A(f"s_sleep {os.environ.get('OD')}")
    A(f"buffer_load_dwordx2 v[0:1], v4, {sr(sWS,4)}, s{sKO} offen sc1")
    A(f"s_mov_b32 m0, {RED + 1024*44}")
    A("s_mov_b32 exec_lo, 0")
    A("s_mov_b32 exec_hi, 0xff000000")
    A(f"buffer_load_dwordx4 v{vWD}, {sr(sX,4)}, s{sWS_} offen offset:3072 lds")
    A("s_mov_b64 exec, -1")
    A(f"s_mov_b32 s{sT}, s{sKO}")
    A("s_waitcnt vmcnt(0)")
    A("v_cmp_eq_u64 vcc, s[6:7], v[0:1]")
    A("s_nop 1")
    A("s_cmp_eq_u64 vcc, -1")
    A("s_cbranch_scc1 k2_po_done")
    poll("k2_po", [f"buffer_load_dwordx2 v[0:1], v4, {sr(sWS,4)}, s{sT} offen sc1", "s_waitcnt vmcnt(0)", "v_cmp_eq_u64 vcc, s[6:7], v[0:1]", "s_nop 1"], int(os.environ.get("OSL", 2)))
    ST.at(11)
    A("s_barrier")
    A(f"s_lshl_b32 s{sT}, s{sNT}, 7")
    for i in range(8):
        if i % 4 == 0: A(f"s_mov_b32 m0, {LW + 1024*i}")
        if i: A(f"s_add_u32 s{sT}, s{sT}, {8*896-1024 if i % 4 else 8*896+3072}")
        A(f"buffer_load_dwordx4 v{vWD}, {sr(sX,4)}, s{sT} offen offset:{1024*(i%4)} lds")
    A("s_waitcnt vmcnt(0)")
    A("s_barrier")
    if DIAG: A("k2_dump:")
    ST.dump(sWS, sW, 5, 250)
    A("k2_end:")
    A("s_endpgm")
    body = A.L[loop_start:loop_end]
    rep = check_seq(body + body)
    assert not rep, rep
    return A.L, NV, 102 if DIAG else 64
```

```python
import sys
NAME = "gated_mix__spectral_gfnet__softmax_full_mha__prompt"
src = sys.argv[1]
s = open(src).read()
s = s.replace("; @launch grid=", f"; @launch kernel={NAME}_kernel grid=")
def variant(name, offa, stra, offb, strb, mul, shr, op="mean"):
    red = "".join(f"    v_readlane_b32 s7, v2, {i}\n    s_nop 1\n    " + ("s_add_u32 s6, s6, s7" if op == "mean" else "s_max_u32 s6, s6, s7") + "\n" for i in range(56))
    k = f""".globl m_kernel
.p2align 8
.type m_kernel,@function
m_kernel:
    s_cmp_lg_u32 s2, 0
    s_cbranch_scc1 m_end
    s_load_dwordx2 s[8:9], s[0:1], 72
    s_mov_b32 s10, 0x1000000
    s_mov_b32 s11, 0x20000
    s_waitcnt lgkmcnt(0)
    s_mov_b32 s4, {offa}
    s_mov_b32 s5, {offb}
    v_mul_u32_u24 v4, {stra}, v0
    v_mul_u32_u24 v5, {strb}, v0
    buffer_load_dword v2, v4, s[8:11], s4 offen
    buffer_load_dword v3, v5, s[8:11], s5 offen
    s_waitcnt vmcnt(0)
    v_sub_u32 v2, v3, v2
    v_add_u32 v2, {300 if op == 'max' else 0}, v2
    s_mov_b32 s6, 0
    s_nop 1
{red}    s_mul_i32 s6, s6, {mul}
    s_lshr_b32 s6, s6, {shr}
    s_min_u32 s6, s6, 30000
    s_memrealtime s[12:13]
    s_waitcnt lgkmcnt(0)
m_spin:
    s_memrealtime s[14:15]
    s_waitcnt lgkmcnt(0)
    s_sub_u32 s7, s14, s12
    s_cmp_lt_u32 s7, s6
    s_cbranch_scc1 m_spin
m_end:
    s_endpgm
"""
    d = """.p2align 6
.amdhsa_kernel m_kernel
  .amdhsa_next_free_vgpr 8
  .amdhsa_next_free_sgpr 32
  .amdhsa_accum_offset 8
  .amdhsa_group_segment_fixed_size 0
  .amdhsa_kernarg_size 80
  .amdhsa_user_sgpr_count 2
  .amdhsa_user_sgpr_kernarg_segment_ptr 1
  .amdhsa_system_sgpr_workgroup_id_x 1
.end_amdhsa_kernel
"""
    s2 = s.replace(".fill 2048,4,0xbf810000\n", k + ".fill 2048,4,0xbf810000\n").replace('.section .rodata,"a"\n', '.section .rodata,"a"\n' + d)
    i = s2.index(".amdgcn_target")
    s2 = s2[:i] + "; @launch kernel=m_kernel grid=(1,1,1) block=(64,1,1) lds=0\n" + s2[i:]
    open(f"exp/{name}.s", "w").write(s2)
B1, B2 = 0xF00000, 0xF40000
S1, S2 = 4 * 8 * 128, 4 * 5 * 128
RT = (73, 9); CY = (73, 13)
w1 = B2 + 128; ax = B2 + 4 * 128
st = lambda base, i: base + 16 + 4 * i
variant("m_zero", B1, S1, B1, S1, *RT)
variant("m_p1", B1, S1, w1, S2, *RT)
variant("m_all", B1, S1, w1 + 4, S2, *RT)
variant("m_st1", w1 + 8, S2, st(w1, 13), S2, *CY)
variant("m_qk", st(w1, 13), S2, st(w1, 1), S2, *CY)
variant("m_loop", st(w1, 1), S2, st(w1, 2), S2, *CY)
variant("m_b1", st(w1, 2), S2, st(w1, 4), S2, *CY)
variant("m_b4", st(w1, 4), S2, st(w1, 7), S2, *CY)
variant("m_end", st(w1, 7), S2, w1 + 12, S2, *CY)
variant("m_p0", B1 + 8, S1, st(B1, 10), S1, *CY)
variant("m_p1c", st(B1, 10), S1, st(B1, 13), S1, *CY)
variant("m_skew", B1, 0, B1, S1, 8, 0, "max")
variant("m_skew2", B1, S1, B1, 0, 8, 0, "max")
variant("m_p2max", B1, 0, w1, S2, 8, 0, "max")
variant("m_odd", B1 + 1024, S1, w1 + 640, S2, *RT)
```

```python
import sys
NAME = "gated_mix__spectral_gfnet__softmax_full_mha__prompt"
def wrap(body, waves_per_simd, iters=200, nvgpr=128, pre=""):
    thr = 256 * waves_per_simd
    return f"""; @launch grid=(256,1,1) block=({thr},1,1) lds=0
.amdgcn_target "amdgcn-amd-amdhsa--gfx950"
.text
.globl {NAME}_kernel
.p2align 8
.type {NAME}_kernel,@function
{NAME}_kernel:
    s_load_dwordx2 s[6:7], s[0:1], 72
    s_waitcnt lgkmcnt(0)
    s_mov_b32 s12, s6
    s_mov_b32 s13, s7
    s_mov_b32 s14, 0x100000
    s_mov_b32 s15, 0x00020000
    v_lshrrev_b32 v1, 6, v0
    s_nop 1
    v_readfirstlane_b32 s20, v1
    s_mul_i32 s21, s2, {4*waves_per_simd}
    s_add_u32 s21, s21, s20
    s_lshl_b32 s21, s21, 2
""" + "".join(f"    v_mov_b32 v{i}, 0.5\n" for i in range(2, nvgpr)) + pre + f"""
    s_mov_b32 s22, {iters}
    s_barrier
    s_memtime s[24:25]
    s_waitcnt lgkmcnt(0)
.p2align 6
L_loop:
{body}
    s_sub_u32 s22, s22, 1
    s_cmp_lg_u32 s22, 0
    s_cbranch_scc1 L_loop
    s_nop 15
    s_nop 15
    s_memtime s[26:27]
    s_waitcnt lgkmcnt(0)
    s_sub_u32 s26, s26, s24
    v_mov_b32 v2, s26
    v_mov_b32 v3, s21
    v_cmp_eq_u32 vcc, 0, v0
    buffer_store_dword v2, v3, s[12:15], 0 offen
    s_waitcnt vmcnt(0)
s_endpgm
.section .rodata,"a"
.p2align 6
.amdhsa_kernel {NAME}_kernel
  .amdhsa_next_free_vgpr {nvgpr}
  .amdhsa_next_free_sgpr 64
  .amdhsa_accum_offset {nvgpr}
  .amdhsa_group_segment_fixed_size 0
  .amdhsa_kernarg_size 80
  .amdhsa_user_sgpr_count 2
  .amdhsa_user_sgpr_kernarg_segment_ptr 1
  .amdhsa_system_sgpr_workgroup_id_x 1
.end_amdhsa_kernel
"""
bodies = {}
bodies["exp"] = "".join(f"    v_exp_f32 v{32+i}, v{8+i}\n" for i in range(16))
bodies["fma"] = "".join(f"    v_fma_f32 v{32+i}, v{8+i}, v{9+i}, v{10+i}\n" for i in range(16))
bodies["add"] = "".join(f"    v_add_f32 v{32+i}, v{8+i}, v{9+i}\n" for i in range(16))
bodies["pkfma"] = "".join(f"    v_pk_fma_f32 v[{32+2*i}:{33+2*i}], v[{8+2*(i%4)}:{9+2*(i%4)}], v[{16}:{17}], v[{18}:{19}]\n" for i in range(16))
bodies["cvt"] = "".join(f"    v_cvt_pk_bf16_f32 v{32+i}, v{8+i}, v{9+i}\n" for i in range(16))
bodies["expcvt"] = "".join(f"    v_exp_f32 v{32+2*i}, v{8+i}\n    v_exp_f32 v{33+2*i}, v{8+i}\n    v_cvt_pk_bf16_f32 v{64+i}, v{8+i}, v{9+i}\n" for i in range(8))
bodies["expfma"] = "".join(f"    v_exp_f32 v{32+i}, v{8+i}\n    v_fma_f32 v{64+i}, v{8+i}, v{9+i}, v{10+i}\n" for i in range(16))
bodies["mfma"] = "".join(f"    v_mfma_f32_32x32x16_bf16 v[{32+16*i}:{47+16*i}], v[8:11], v[12:15], v[{32+16*i}:{47+16*i}]\n" for i in range(4))
def att():
    s = ""
    for half in range(2):
        S = 32 + 16 * half; Sn = 32 + 16 * (1 - half); P = 64 + 8 * half; Pp = 64 + 8 * (1 - half); O = 80 + 16*half
        ops = []
        for i in range(8):
            ops.append(f"    v_exp_f32 v{S+2*i}, v{S+2*i}\n    v_exp_f32 v{S+2*i+1}, v{S+2*i+1}\n")
        cv = [f"    v_cvt_pk_bf16_f32 v{P+i}, v{S+2*i}, v{S+2*i+1}\n" for i in range(8)]
        m = [f"    v_mfma_f32_32x32x16_bf16 v[{Sn}:{Sn+15}], v[8:11], v[12:15], 0\n",
             f"    v_mfma_f32_32x32x16_bf16 v[{Sn}:{Sn+15}], v[16:19], v[20:23], v[{Sn}:{Sn+15}]\n",
             f"    v_mfma_f32_32x32x16_bf16 v[{O}:{O+15}], v[24:27], v[{Pp}:{Pp+3}], v[{O}:{O+15}]\n",
             f"    v_mfma_f32_32x32x16_bf16 v[{O}:{O+15}], v[28:31], v[{Pp+4}:{Pp+7}], v[{O}:{O+15}]\n"]
        seq = [m[2], ops[0], ops[1], cv[0], m[3], ops[2], ops[3], cv[1], cv[2], m[0], ops[4], ops[5], cv[3], cv[4], m[1], ops[6], ops[7], cv[5], cv[6], "    s_nop 0\n", cv[7]]
        s += "".join(seq)
    return s
bodies["att"] = att()
if __name__ == "__main__":
    for name, b in bodies.items():
        for w in (1, 2, 3, 4):
            open(f"mb_{name}_{w}.s", "w").write(wrap(b * 10, w, iters=20))
```

```python
from gen_mb1 import wrap
import glob, os
for f in glob.glob("mb_*.s"): os.remove(f)
pre = """    v_mov_b32 v2, 0xdddddddd
    s_load_dwordx2 s[40:41], s[0:1], 0
    s_mov_b32 s42, 0x800000
    s_mov_b32 s43, 0x20000
    v_and_b32 v3, 63, v0
    v_lshlrev_b32 v3, 4, v3
    s_lshl_b32 s44, s20, 12
    s_mov_b32 m0, s44
    s_waitcnt lgkmcnt(0)
    s_mov_b32 s48, s40
    s_or_b32 s49, s41, 0x100000
    s_mov_b32 s50, 0x80000
    s_mov_b32 s51, 0x800000
"""
def body(kind, pos):
    s = ""
    for q in range(4):
        S = 32 + 16 * q; Sn = 32 + 16 * ((q + 1) % 4); Sp = 32 + 16 * ((q + 3) % 4); O = 96 + 16 * (q % 2)
        e = [f"    v_exp_f32 v{S+j}, v{S+j}\n" for j in range(16)]
        m = [f"    v_mfma_f32_32x32x16_bf16 v[{Sn}:{Sn+15}], v[8:11], v[12:15], 0\n",
             f"    v_mfma_f32_32x32x16_bf16 v[{Sn}:{Sn+15}], v[16:19], v[20:23], v[{Sn}:{Sn+15}]\n",
             f"    v_smfmac_f32_32x32x32_bf16 v[{O}:{O+15}], v[24:27], v[{Sp}:{Sp+7}], v2\n",
             f"    v_smfmac_f32_32x32x32_bf16 v[{O}:{O+15}], v[28:31], v[{Sp+8}:{Sp+15}], v2\n"]
        d = 128 + 4 * q
        ld = {"none": "", "reg": f"    buffer_load_dwordx4 v[{d}:{d+3}], v3, s[40:43], s44 offen offset:{1024*(q%4)}\n",
              "dma": f"    buffer_load_dwordx4 v3, s[40:43], s44 offen offset:{1024*(q%4)} lds\n",
              "glob": f"    global_load_dwordx4 v[{d}:{d+3}], v3, s[40:41] offset:{1024*(q%4)}\n",
              "ds": f"    ds_read_b128 v[{d}:{d+3}], v3 offset:{1024*q}\n",
              "salu": "    s_add_u32 s45, s44, 77\n    s_cmp_ge_u32 s45, s44\n",
              "wait": "    s_waitcnt vmcnt(5)\n",
              "agpr": f"    buffer_load_dwordx4 a[{4*q}:{4*q+3}], v3, s[40:43], s44 offen offset:{1024*(q%4)}\n",
              "tid": f"    buffer_load_dwordx4 v[{d}:{d+3}], off, s[48:51], s44 offset:{1024*(q%4)}\n",
              "x2": f"    buffer_load_dwordx2 v[{d}:{d+1}], v3, s[40:43], s44 offen offset:{1024*(q%4)}\n",
              }[kind]
        seq = [m[0]] + e[0:4] + [m[1]] + e[4:8] + [m[2]] + e[8:12] + [m[3]] + e[12:16]
        seq.insert(pos, ld)
        s += "".join(seq)
    return s
for kind in ("none", "reg", "tid"):
    for pos, pn in ((1, "aftermfma"), (3, "afterexp"), (11, "aftersm")):
        if kind == "none" and pos != 1: continue
        s = wrap(body(kind, pos) * 3, 1, iters=50, nvgpr=144, pre=pre)
        s = s.replace("next_free_vgpr 144", "next_free_vgpr 160").replace("lds=0", "lds=98304")
        open(f"mb_{kind}_{pn}.s", "w").write(s)
```

```python
from asmlib import *
import math, os, struct
WS_Q, WS_K, WS_V, WS_Y, WS_W, WS_O, WS_Z, WS_G = 0x0, 0x200000, 0x400000, 0x600000, 0x840000, 0xA80000, 0xC80000, 0xE50000
WS_FO, WS_FZ, WS_F1 = 0xE60000, 0xE90000, 0xEA0000
SPIN = 200000
YB, WP, ZP = 32896, 16512, 4224
WS_BYTES = 0x1000000
def f2u(x): return struct.unpack("<I", struct.pack("<f", x))[0]
QSCALE = f2u(28 ** -0.5 * math.log2(math.e))
STF = os.environ.get('STF', 'sc1')
STF0 = os.environ.get('STF0', STF)
STFW = os.environ.get('STFW', STF)
WB = int(os.environ.get('WB', -1))
LA = 114688
NB = int(os.environ.get('NB', 12))
K1_LDS = 163840
WPOS = int(os.environ.get("WPOS", 5))

def get_tag(A, lab, stmp, vt):
    A("s_load_dwordx2 s[6:7], s[4:5], 0")
    A(f"s_mov_b32 s{stmp}, {SPIN}")
    A("s_waitcnt lgkmcnt(0)")
    A("s_cmp_lg_u32 s6, 0")
    A(f"s_cbranch_scc1 {lab}_done")
    A(f"v_mov_b32 v{vt}, 0")
    A(f"{lab}:")
    A(f"global_load_dwordx2 {vr(vt+2,2)}, v{vt}, s[4:5] sc1")
    A(f"s_sub_u32 s{stmp}, s{stmp}, 1")
    A("s_waitcnt vmcnt(0)")
    A(f"v_readfirstlane_b32 s6, v{vt+2}")
    A(f"v_readfirstlane_b32 s7, v{vt+3}")
    A("s_cmp_lg_u32 s6, 0")
    A(f"s_cbranch_scc1 {lab}_done")
    A("s_sleep 4")
    A(f"s_cmp_lg_u32 s{stmp}, 0")
    A(f"s_cbranch_scc1 {lab}")
    A(f"{lab}_done:")

def gen_k1():
    A = Asm()
    sX, sB, sWS, sWR, sWI = 8, 12, 16, 20, 24
    sPC = 28
    sW, sMT, sNT, sC, sCA, sCB, sPITCH, sP4, sT, sT2, sBB = 30, 31, 32, 33, 34, 35, 36, 37, 38, 39, 40
    sGS, sLA, sLB, sP64, sP384, sJ, sW8 = 41, 42, 43, 44, 45, 46, 47
    sW0, sWST, sC0 = 48, 52, 53
    sGW, sPAR, sB2 = 60, 58, 59
    sDB = 4
    vL, vA0, vA1, vB = 64, 65, 66, 67
    vRA, vRB = 68, 72
    FR = 76
    MB = 124
    WL, vGW = 76, 112
    vT = 172
    vWO, vST = 188, 189
    PK = 192
    vPF = 224
    NV = 228
    D = 3

    A("s_cmp_ge_u32 s2, 256")
    A("s_cbranch_scc1 k2_end")
    ST = Stamps(A, 0); ST.begin()
    A(f"s_load_dwordx2 {sr(sX,2)}, s[0:1], 0")
    A(f"s_load_dwordx2 {sr(sB,2)}, s[0:1], 32")
    A(f"s_load_dwordx2 {sr(sWS,2)}, s[0:1], 72")
    A(f"s_load_dwordx2 {sr(sWR,2)}, s[0:1], 8")
    A(f"s_load_dwordx2 {sr(sWI,2)}, s[0:1], 16")
    A(f"s_load_dwordx2 {sr(sGW,2)}, s[0:1], 48")
    A(f"s_load_dwordx2 {sr(sDB,2)}, s[0:1], 64")
    A(f"s_getpc_b64 {sr(sPC,2)}")
    A("k1_pc:")
    A(f"v_and_b32 v{vL}, 63, v0")
    A(f"v_lshrrev_b32 v{vT}, 6, v0")
    A(f"v_mul_u32_u24 v{vT+1}, 24, v{vT}")
    A(f"v_add_lshl_u32 v{vT+1}, v{vT+1}, v{vL}, 7")
    A("s_mov_b64 exec, 0xffffff")
    A(f"global_load_dword v{vPF}, v{vT+1}, {sr(sPC,2)}")
    A("s_mov_b64 exec, -1")
    A(f"v_readfirstlane_b32 s{sW8}, v{vT}")
    A(f"s_lshr_b32 s{sJ}, s2, 3")
    A(f"s_and_b32 s{sT}, s{sJ}, 3")
    A(f"s_lshr_b32 s{sT2}, s{sJ}, 2")
    A(f"s_bfe_u32 s{sMT}, s2, 0x20001")
    A(f"s_lshl_b32 s{sMT}, s{sMT}, 2")
    A(f"s_add_u32 s{sMT}, s{sMT}, s{sT}")
    A(f"s_and_b32 s{sNT}, s2, 1")
    A(f"s_lshl_b32 s{sNT}, s{sNT}, 3")
    A(f"s_add_u32 s{sNT}, s{sNT}, s{sT2}")
    A(f"s_and_b32 s{sPAR}, s{sT2}, 1")
    A(f"s_lshr_b32 s{sT2}, s{sT2}, 1")
    A(f"s_add_u32 s{sC}, s{sT}, s{sT2}")
    A(f"s_lshl_b32 s{sC}, s{sC}, 1")
    A(f"s_cmp_ge_u32 s{sC}, 7")
    A(f"s_cselect_b32 s{sT}, 7, 0")
    A(f"s_sub_u32 s{sC}, s{sC}, s{sT}")
    R1 = os.environ.get("R1", "full")
    if R1 == "none": A(f"s_mov_b32 s{sC}, 0")
    if R1 == "two":
        A(f"s_and_b32 s{sC}, s{sJ}, 1")
        A(f"s_mul_i32 s{sC}, s{sC}, 3")
    if R1 == "one":
        A(f"s_and_b32 s{sC}, s{sJ}, 1")
    if R1 == "xcd":
        A(f"s_and_b32 s{sC}, s2, 7")
        A(f"s_min_u32 s{sC}, s{sC}, 6")
    A(f"s_and_b32 s{sW}, s{sW8}, 3")
    A(f"s_lshl_b32 s{sBB}, s{sMT}, 1")
    A(f"s_add_u32 s{sBB}, s{sBB}, s{sPAR}")
    A(f"s_lshl_b32 s{sBB}, s{sBB}, 1")
    A(f"s_and_b32 s{sT}, s{sW}, 1")
    A(f"s_add_u32 s{sBB}, s{sBB}, s{sT}")
    A(f"s_xor_b32 s{sB2}, s{sBB}, 2")
    A(f"s_movk_i32 s{sPITCH}, 1024")
    A(f"s_cmp_ge_u32 s{sNT}, 12")
    A(f"s_cselect_b32 s{sPITCH}, s{sPITCH}, 2688")
    A(f"s_cselect_b32 s{sGS}, 64, 56")
    A(f"s_lshl_b32 s{sLA}, s{sT}, 12")
    A(f"s_add_u32 s{sLA}, s{sLA}, {LA}")
    A(f"s_cmp_lt_u32 s{sW8}, 4")
    A("s_cbranch_scc1 k1_comp")
    A(f"s_mul_i32 s{sCA}, s{sBB}, 896")
    A(f"s_lshl_b32 s{sT}, s{sC}, 7")
    A(f"s_add_u32 s{sCA}, s{sCA}, s{sT}")
    A(f"v_lshrrev_b32 v{vT}, 3, v{vL}")
    A(f"v_mul_u32_u24 v{vA0}, 57344, v{vT}")
    A(f"v_lshrrev_b32 v{vT+1}, 4, v{vL}")
    A(f"v_and_b32 v{vT+3}, 7, v{vL}")
    A(f"v_xor_b32 v{vT+3}, v{vT+3}, v{vT+1}")
    A(f"v_lshl_add_u32 v{vA0}, v{vT+3}, 4, v{vA0}")
    A(f"v_xor_b32 v{vA1}, 64, v{vA0}")
    A(f"s_mov_b32 s{sX+2}, 1835008")
    A(f"s_mov_b32 s{sX+3}, 0x20000")
    A(f"s_mul_i32 s{sT}, s{sNT}, 224")
    A(f"s_lshl_b32 s{sT2}, s{sNT}, 8")
    A(f"s_sub_u32 s{sT2}, s{sT2}, 3072")
    A(f"s_cmp_ge_u32 s{sNT}, 12")
    A(f"s_cselect_b32 s{sCB}, s{sT2}, s{sT}")
    A(f"s_lshl_b32 s{sP4}, s{sPITCH}, 2")
    A(f"s_sub_u32 s{sP4}, s{sP4}, 1024")
    A(f"s_lshl_b32 s{sT}, s{sC}, 1")
    A(f"s_add_u32 s{sT}, s{sT}, s{sW}")
    A(f"s_lshl_b32 s{sT}, s{sT}, 5")
    A(f"s_mul_i32 s{sT}, s{sT}, s{sPITCH}")
    A(f"s_add_u32 s{sCB}, s{sCB}, s{sT}")
    A(f"s_lshl_b32 s{sLB}, s{sW}, 13")
    A(f"v_mul_u32_u24 v{vB}, s{sPITCH}, v{vT+1}")
    A(f"v_bfe_u32 v{vT+3}, v{vL}, 2, 2")
    A(f"v_xor_b32 v{vT+3}, v{vT+3}, v{vT+1}")
    A(f"v_lshlrev_b32 v{vT+3}, 2, v{vT+3}")
    A(f"v_and_or_b32 v{vT+3}, v{vL}, 3, v{vT+3}")
    A(f"v_lshl_add_u32 v{vB}, v{vT+3}, 4, v{vB}")
    A(f"s_getpc_b64 {sr(56,2)}")
    A("s_add_u32 s56, s56, tab_fwd@rel32@lo+4")
    A("s_addc_u32 s57, s57, tab_fwd@rel32@hi+12")
    A(f"s_mov_b32 s{sB+2}, 458752")
    A(f"s_mov_b32 s{sB+3}, 0x20000")
    A(f"s_cmp_ge_u32 s{sNT}, 12")
    A(f"s_cselect_b32 s{sT}, 16, 14")
    A(f"s_cmp_eq_u32 s{sNT}, 15")
    A(f"s_cselect_b32 s{sT}, 12, s{sT}")
    A(f"v_cmp_gt_u32 s[54:55], s{sT}, v{vT+3}")
    A(f"s_mov_b32 s{sC0}, s{sC}")
    A(f"s_lshl_b32 s{sP64}, s{sPITCH}, 6")
    A(f"s_mul_i32 s{sP384}, s{sP64}, 7")
    A("s_waitcnt lgkmcnt(0) ; WSB")
    A(f"s_cmp_ge_u32 s{sNT}, 12")
    A(f"s_cselect_b32 s{sB}, s56, s{sB}")
    A(f"s_cselect_b32 s{sB+1}, s57, s{sB+1}")
    A(f"s_cselect_b32 s{sB+2}, s{sB+2}, 1204224")
    Q = []
    def issue(n):
        A(f"s_add_u32 m0, s{sLA}, {8192*(n%6)}")
        for i in range(4):
            A(f"s_add_u32 s{sT}, s{sCA}, {457728*i}")
            A(f"buffer_load_dwordx4 v{vA0 + (i&1)}, {sr(sX,4)}, s{sT} offen offset:{1024*i} lds")
        Q.extend([n] * 4)
        if n < 7:
            A("s_mov_b64 exec, s[54:55]")
            for i in range(8):
                if i % 4 == 0: A(f"s_add_u32 m0, s{sLB}, {16384*n + 1024*i}")
                if i == 0: A(f"s_mov_b32 s{sT}, s{sCB}")
                else: A(f"s_add_u32 s{sT}, s{sT}, s{sP4}")
                if i == 4: A(f"s_add_u32 s{sT}, s{sT}, 4096")
                A(f"buffer_load_dwordx4 v{vB}, {sr(sB,4)}, s{sT} offen offset:{1024*(i%4)} lds")
            A("s_mov_b64 exec, -1")
            Q.extend([n] * 8)
        if n == 13: return
        A(f"s_add_u32 s{sCA}, s{sCA}, 128")
        if n < 6: A(f"s_add_u32 s{sCB}, s{sCB}, s{sP64}")
        A(f"s_add_u32 s{sC}, s{sC}, 1")
        A(f"s_cmp_eq_u32 s{sC}, 7")
        A(f"s_cselect_b32 s{sT}, 896, 0")
        if n < 6: A(f"s_cselect_b32 s{sT2}, s{sP384}, 0")
        A(f"s_cselect_b32 s{sC}, 0, s{sC}")
        A(f"s_sub_u32 s{sCA}, s{sCA}, s{sT}")
        if n < 6: A(f"s_sub_u32 s{sCB}, s{sCB}, s{sT2}")
        if n == 6:
            A(f"s_mul_i32 s{sT}, s{sPAR}, {-4*896}")
            A(f"s_add_u32 s{sCA}, s{sCA}, s{sT}")
            A(f"s_add_u32 s{sCA}, s{sCA}, {2*896}")
    def wait_for(tag):
        if tag not in Q: return
        last = max(i for i, t in enumerate(Q) if t == tag)
        A(f"s_waitcnt vmcnt({len(Q) - 1 - last})")
        del Q[:last + 1]
    ST.at(0)
    issue(0)
    A(f"s_mov_b32 s{sGW+2}, 896")
    A(f"s_mov_b32 s{sGW+3}, 0x20000")
    A(f"s_cmp_lg_u32 s{sNT}, 15")
    A("s_cbranch_scc1 k1_nog")
    A(f"v_and_b32 v{vT+4}, 31, v{vL}")
    A(f"v_lshlrev_b32 v{vT+5}, 1, v{vT+4}")
    A(f"s_lshl_b32 s{sT}, s{sW}, 6")
    A(f"s_lshl_b32 s{sT2}, s{sC0}, 7")
    A(f"s_add_u32 s{sT}, s{sT}, s{sT2}")
    for i in range(7):
        A(f"buffer_load_ushort v{vGW+i}, v{vT+5}, {sr(sGW,4)}, s{sT} offen")
        if i < 6:
            A(f"s_add_u32 s{sT}, s{sT}, 128")
            A(f"s_cmp_ge_u32 s{sT}, 896")
            A(f"s_cselect_b32 s{sT2}, 896, 0")
            A(f"s_sub_u32 s{sT}, s{sT}, s{sT2}")
    A(f"v_and_b32 v{vT+5}, 3, v{vL}")
    A(f"v_xor_b32 v{vT+5}, 3, v{vT+5}")
    A(f"v_lshlrev_b32 v{vT+5}, 6, v{vT+5}")
    A(f"v_lshl_add_u32 v{vGW+8}, v{vT+4}, 8, v{vT+5}")
    A(f"v_add_u32 v{vGW+8}, s{sLB}, v{vGW+8}")
    A(f"v_add_u32 v{vGW+9}, 0x10000, v{vGW+8}")
    A("k1_nog:")
    issue(1)
    ST.at(1)
    for r in (sWS, sWR, sWI):
        A(f"s_mov_b32 s{r+2}, {WS_BYTES if r == sWS else 921600}")
        A(f"s_mov_b32 s{r+3}, 0x20000")
    A(f"s_lshr_b32 s{sT}, s2, 4")
    A(f"s_bfe_u32 s{sT2}, s2, 0x20002")
    A(f"s_lshl_b32 s{sT2}, s{sT2}, 1")
    A(f"s_and_b32 s{sW0}, s{sW}, 1")
    A(f"s_add_u32 s{sT2}, s{sT2}, s{sW0}")
    A(f"s_lshl_b32 s{sWST}, s{sT}, 3")
    A(f"s_add_u32 s{sWST}, s{sWST}, s{sT2}")
    A(f"s_mul_i32 s{sWST}, s{sWST}, {WP}")
    A(f"s_lshl_b32 s{sW0}, s{sT}, 5")
    A(f"s_add_u32 s{sW0}, s{sW0}, s{sT2}")
    A(f"s_mul_i32 s{sW0}, s{sW0}, 1800")
    A(f"s_and_b32 s{sT}, s2, 3")
    A(f"s_lshl_b32 s{sGS}, s{sT}, 1")
    A(f"s_lshl_b32 s{sT2}, s{sGS}, 6")
    A(f"s_add_u32 s{sW0}, s{sW0}, s{sT2}")
    for i in range(1, 4): A(f"s_add_u32 s{sW0+i}, s{sW0}, {14400*i}")
    A(f"s_lshl_b32 s{sT2}, s{sGS}, 11")
    A(f"s_add_u32 s{sWST}, s{sWST}, s{sT2}")
    A(f"s_add_u32 s{sWST}, s{sWST}, {WS_W}")
    A(f"v_lshrrev_b32 v{vT}, 5, v{vL}")
    A(f"v_mul_u32_u24 v{vT}, 900, v{vT}")
    A(f"v_and_b32 v{vWO}, 31, v{vL}")
    A(f"v_lshl_add_u32 v{vWO}, v{vWO}, 1, v{vT}")
    A(f"v_lshlrev_b32 v{vST}, 4, v{vL}")
    A(f"v_and_b32 v{vT+6}, 3, v{vL}")
    A(f"v_lshlrev_b32 v{vT+6}, 6, v{vT+6}")
    A(f"v_and_or_b32 v{vT+6}, v{vL}, 60, v{vT+6}")
    A(f"s_and_b32 s{sT}, s{sNT}, 3")
    A(f"s_lshl_b32 s{sT}, s{sT}, 8")
    A(f"s_lshl_b32 s{sT2}, s{sMT}, 1")
    A(f"s_add_u32 s{sT2}, s{sT2}, s{sW}")
    A(f"s_cmp_ge_u32 s{sNT}, 4")
    A(f"s_cselect_b32 s{sT2}, s{sT2}, s{sBB}")
    A(f"s_add_u32 s{sT}, s{sT}, s{sT2}")
    A(f"s_lshl_b32 s{sT}, s{sT}, 11")
    A(f"s_lshr_b32 s{sT2}, s{sNT}, 2")
    A(f"s_lshl_b32 s{sT2}, s{sT2}, 21")
    A(f"s_add_u32 s{sB2}, s{sT}, s{sT2}")
    A(f"s_lshl_b32 s{sT}, s{sNT}, 13")
    A(f"s_mul_i32 s{sT2}, s{sBB}, {YB}")
    A(f"s_add_u32 s{sT}, s{sT}, s{sT2}")
    A(f"s_add_u32 s{sT}, s{sT}, {WS_Y - 12*8192}")
    A(f"s_movk_i32 s{sC0}, 2048")
    A(f"s_cmp_ge_u32 s{sNT}, 12")
    A(f"s_cselect_b32 s{sB2}, s{sT}, s{sB2}")
    A(f"s_cselect_b32 s{sC0}, s{sC0}, {64*2048}")
    A(f"s_lshl_b32 s{sT}, s{sW}, 12")
    A(f"v_add_u32 v{vT+7}, s{sT}, v{vST}")
    def prefetches():
        A(f"s_load_dwordx2 {sr(sGW,2)}, s[0:1], 40")
        A(f"s_getpc_b64 {sr(56,2)}")
        A("s_add_u32 s56, s56, tab_inv@rel32@lo+4")
        A("s_addc_u32 s57, s57, tab_inv@rel32@hi+12")
        A(f"s_mov_b32 s{sGW+2}, 401408")
        A(f"s_mul_i32 s{sT}, s2, {13*128}")
        A(f"v_lshl_add_u32 v{vT}, v{vL}, 7, s{sT}")
        A("s_waitcnt lgkmcnt(0)")
        A(f"s_bitcmp1_b32 s{sW}, 0")
        A(f"s_cselect_b32 s{sGW}, s56, s{sGW}")
        A(f"s_cselect_b32 s{sGW+1}, s57, s{sGW+1}")
        A("s_mov_b64 exec, 0x1fff")
        A(f"buffer_load_dword v{vPF+2}, v{vT}, {sr(sGW,4)}, 0 offen")
        A("s_mov_b64 exec, -1")
        Q.append("p")
        A(f"s_cmp_lg_u32 s{sW8}, 4")
        A("s_cbranch_scc1 k1_npf")
        A(f"s_cmp_ge_u32 s{sJ}, 8")
        A("s_cbranch_scc1 k1_npf")
        A(f"s_getpc_b64 {sr(56,2)}")
        A("s_add_u32 s56, s56, tab_small@rel32@lo+4")
        A("s_addc_u32 s57, s57, tab_small@rel32@hi+12")
        A(f"s_getpc_b64 {sr(62,2)}")
        A("s_add_u32 s62, s62, k2_start@rel32@lo+1028")
        A("s_addc_u32 s63, s63, k2_start@rel32@hi+1036")
        A(f"s_cmp_ge_u32 s{sJ}, 6")
        A(f"s_cselect_b32 s56, s62, s56")
        A(f"s_cselect_b32 s57, s63, s57")
        A(f"s_cselect_b32 s{sT}, 6, 0")
        A(f"s_sub_u32 s{sT}, s{sJ}, s{sT}")
        A(f"s_lshl_b32 s{sT}, s{sT}, 13")
        A(f"v_lshl_add_u32 v{vT}, v{vL}, 7, s{sT}")
        A(f"global_load_dword v{vPF+3}, v{vT}, s[56:57]")
        A("k1_npf:")
    PFP = int(os.environ.get('PFP', WPOS))
    if PFP < 0: prefetches()
    if os.environ.get("TOUCH", "0") == "1":
        A("s_mov_b64 exec, 1")
        A(f"buffer_load_dword v{vPF+1}, v{vST}, {sr(sWS,4)}, s{sWST} offen")
        A("s_mov_b64 exec, -1")
        Q.append("t")
    def wloads():
        for r in range(2):
            for kk in range(2):
                for p, srd in enumerate((sWR, sWI)):
                    for i in range(4):
                        A(f"buffer_load_ushort v{WL+16*r+8*kk+4*p+i}, v{vWO}, {sr(srd,4)}, s{sW0+i} offen offset:{450*kk+64*r}")
        Q.extend(["w"] * 32)
    def wstore():
        if "w" in Q: A("s_waitcnt vmcnt(0)")
        for r in range(2):
            W_ = WL + 16 * r
            for kk in range(2):
                for p in range(4):
                    A(f"v_lshl_or_b32 v{W_+8*kk+p}, v{W_+8*kk+2*p+1}, 16, v{W_+8*kk+2*p}")
            for p in range(4): A(f"v_permlane16_swap_b32 v{W_+p}, v{W_+8+p}")
            for kk in range(2):
                for p in range(4): A(f"ds_bpermute_b32 v{W_+8*kk+4+p}, v{vT+6}, v{W_+8*kk+p}")
        A(f"s_cmp_eq_u32 s{sGS}, 6")
        A("s_cselect_b64 s[54:55], 0xff, -1")
        A("s_cselect_b64 s[56:57], 1, -1")
        A("s_waitcnt lgkmcnt(0)")
        for k in range(4):
            if k >= 2: A(f"s_mov_b64 exec, s[{54+2*(k&1)}:{55+2*(k&1)}]")
            A(f"buffer_store_dwordx4 {vr(WL+8*k+4,4)}, v{vST}, {sr(sWS,4)}, s{sWST} offen offset:{1024*k} {STFW}")
        A("s_mov_b64 exec, -1")
    for n in range(NB):
        wait_for(n if n < 11 else 13)
        if n == 0:
            A(f"s_cmp_lg_u32 s{sNT}, 15")
            A("s_cbranch_scc1 k1_ng")
            for i in range(7): A(f"ds_write_b16 v{vGW+8+(i>>2)}, v{vGW+i} offset:{16384*(i&3)}")
            A("s_waitcnt lgkmcnt(0)")
            A("k1_ng:")
        A("s_barrier")
        if n < 12: ST.at(2 + n)
        if n <= 4: issue(n + 2)
        if n == 4: issue(7); issue(8)
        if 5 <= n <= 9: issue(n + 4)
        if n == NB - 2: A(f"s_load_dwordx2 s[28:29], {sr(sDB,2)}, 0")
        if n == WPOS: wloads()
        if n == PFP: prefetches()
    for k in range(8): A(f"ds_read_b128 {vr(PK+4*k,4)}, v{vT+7} offset:{8192*(k>>2)+1024*(k&3)}")
    A(f"s_cmp_eq_u32 s{sNT}, 15")
    A("s_cselect_b64 s[54:55], 0xff, -1")
    A("s_cselect_b64 s[56:57], 1, -1")
    for k in range(8):
        A(f"s_waitcnt lgkmcnt({7-k})")
        if k >= 4: A(f"s_mov_b64 exec, s[{54+2*(k&1)}:{55+2*(k&1)}]")
        if k and k % 2 == 0: A(f"s_add_u32 s{sB2}, s{sB2}, s{sC0}")
        A(f"buffer_store_dwordx4 {vr(PK+4*k,4)}, v{vST}, {sr(sWS,4)}, s{sB2} offen offset:{1024*(k&1)} {STF0}")
    A("s_mov_b64 exec, -1")
    wstore()
    A("s_branch k1_pf")

    A("k1_comp:")
    A(f"s_mov_b32 s{sWS+2}, {WS_BYTES}")
    A(f"s_mov_b32 s{sWS+3}, 0x20000")
    A(f"s_or_b32 s{sT}, s2, s{sW}")
    A(f"s_cmp_lg_u32 s{sT}, 0")
    A("s_cbranch_scc1 k1_ntag")
    A("s_memrealtime s[62:63]")
    A(f"s_mov_b32 s{sDB+2}, 256")
    A(f"s_mov_b32 s{sDB+3}, 0x20000")
    A(f"v_mov_b32 v{vT}, 0")
    A("s_waitcnt lgkmcnt(0)")
    A("s_or_b32 s62, s62, 1")
    A(f"v_mov_b32 v{vT+2}, s62")
    A(f"v_mov_b32 v{vT+3}, s63")
    A("s_mov_b64 exec, 1")
    A(f"buffer_store_dwordx2 {vr(vT+2,2)}, v{vT}, {sr(sDB,4)}, 0 offen sc1")
    A("s_mov_b64 exec, -1")
    A("k1_ntag:")
    A(f"v_lshlrev_b32 v{vST}, 4, v{vL}")
    A(f"v_and_b32 v{vT}, 31, v{vL}")
    A(f"v_lshrrev_b32 v{vT+1}, 5, v{vL}")
    A(f"v_bfe_u32 v{vT+2}, v{vL}, 1, 3")
    A(f"v_xor_b32 v{vT+2}, v{vT+2}, v{vT+1}")
    A(f"v_lshlrev_b32 v{vT+2}, 4, v{vT+2}")
    A(f"v_lshl_add_u32 v{vT+2}, v{vT}, 7, v{vT+2}")
    A(f"v_add_u32 v{vRA}, s{sLA}, v{vT+2}")
    for u in range(1, 4): A(f"v_xor_b32 v{vRA+u}, {32*u}, v{vRA}")
    A(f"v_bfe_u32 v{vT+2}, v{vL}, 2, 2")
    A(f"v_lshl_add_u32 v{vT+3}, v{vT+1}, 3, v{vT+2}")
    A(f"v_lshlrev_b32 v{vT+3}, 8, v{vT+3}")
    A(f"v_bfe_u32 v{vT+4}, v{vL}, 4, 1")
    A(f"v_lshlrev_b32 v{vT+4}, 5, v{vT+4}")
    A(f"v_and_b32 v{vT+5}, 3, v{vL}")
    A(f"v_lshl_add_u32 v{vT+4}, v{vT+5}, 3, v{vT+4}")
    A(f"s_and_b32 s{sT}, s{sW}, 2")
    A(f"s_mul_i32 s{sT}, s{sT}, s{sGS}")
    A(f"v_add_u32 v{vT+4}, s{sT}, v{vT+4}")
    A(f"v_lshlrev_b32 v{vT+2}, 6, v{vT+2}")
    for g in range(2):
        A(f"v_xor_b32 v{vT+5}, v{vT+4}, v{vT+2}")
        A(f"v_add_u32 v{vRB+g}, v{vT+5}, v{vT+3}")
        A(f"v_add_u32 v{vRB+2+g}, 0x10000, v{vRB+g}")
        if g == 0: A(f"v_add_u32 v{vT+4}, s{sGS}, v{vT+4}")
    MC = lambda p: MB + 24 * p
    A(f"s_cmp_lt_u32 s{sNT}, 12")
    A("s_cbranch_scc1 k1_nom")
    A(f"v_cvt_f32_u32 v{vT+3}, v{vT}")
    A(f"v_mul_f32 v{vT+3}, {hex(f2u(1/32))}, v{vT+3}")
    for p in range(2):
        A(f"v_lshl_add_u32 v{vT+2}, v{vT+1}, 8, s{sBB if p == 0 else sB2}")
        A(f"v_mul_u32_u24 v{vT+2}, v{vT+2}, v{vT}")
        A(f"v_cvt_f32_u32 v{vT+2}, v{vT+2}")
        A(f"v_mul_f32 v{vT+2}, {hex(f2u(1/2048))}, v{vT+2}")
        for t in range(2):
            for jp in range(4):
                for e in range(2):
                    j = 2 * jp + e
                    n = 16 * t + 8 * (j >> 2) + (j & 3)
                    A(f"v_fmamk_f32 v{vT+4+e}, v{vT+3}, {hex(f2u(float(n)))}, v{vT+2}")
                    A(f"v_fract_f32 v{vT+4+e}, v{vT+4+e}")
                A(f"v_cos_f32 v{vT+6}, v{vT+4}")
                A(f"v_cos_f32 v{vT+7}, v{vT+5}")
                A(f"v_sin_f32 v{vT+8}, v{vT+4}")
                A(f"v_sin_f32 v{vT+9}, v{vT+5}")
                A(f"v_cvt_pk_bf16_f32 v{MC(p)+4*t+jp}, v{vT+6}, v{vT+7}")
                A(f"v_cvt_pk_bf16_f32 v{MC(p)+8+4*t+jp}, v{vT+8}, v{vT+9}")
                A(f"v_cvt_pk_bf16_f32 v{MC(p)+16+4*t+jp}, -v{vT+8}, -v{vT+9}")
    A("k1_nom:")
    if int(os.environ.get("CP", 0)): A(f"s_setprio {os.environ.get('CP')}")
    A("s_waitcnt lgkmcnt(0) ; WSB")

    def reads(m):
        n, u = m // 4, m % 4; i = n % 7; buf = FR + 12 * (m % 4)
        L = [f"ds_read_b128 {vr(buf,4)}, v{vRA+u} offset:{8192*(n%6)}"]
        for g in range(2):
            off = 16384 * (i & 3) + 4096 * u
            L += [f"ds_read_b64_tr_b16 {vr(buf+4+4*g+2*x,2)}, v{vRB+2*(i>>2)+g} offset:{off+1024*x}" for x in range(2)]
        return L
    def steps(m0, m1, swap, fill):
        k = 0; done = 0; nm = 20 + 8 * (NB - 12)
        for m in range(m0, m1):
            n, u = m // 4, m % 4; acc = 32 * (m // 28); buf = FR + 12 * (m % 4)
            A(f"s_waitcnt lgkmcnt({5 * min(D - 1, 55 - m)})")
            if u == 4 - D and n + 1 < NB:
                if n + 1 == NB - 1:
                    assert done == len(fill)
                    A("s_waitcnt lgkmcnt(5)")
                A("s_barrier")
                if n + 1 < 8: ST.at(2 + n + 1)
            rd = reads(m + D) if m + D < 56 else [None] * 5
            for g in range(2):
                a_, b_ = vr(buf,4), vr(buf+4+4*g,4)
                if swap: a_, b_ = b_, a_
                A(f"v_mfma_f32_32x32x16_bf16 {vr(acc+16*g,16)}, {a_}, {b_}, {'0' if m % 28 == 0 else vr(acc+16*g,16)}")
                if m >= m0 + 2 and fill:
                    k += 1; k2 = min(len(fill), -(-len(fill) * k // nm))
                    while done < k2 and not (fill[done].startswith("ds_write") and m < 34):
                        A(fill[done]); done += 1
                for x in (rd[:3] if g == 0 else rd[3:]):
                    if x: A(x)
        assert done == len(fill)
    def touch(step):
        if os.environ.get("TOUCH", "0") != "1": return
        A(f"s_sub_u32 s{sT}, s{sO[1]}, s{sO[0]}")
        A(f"v_and_b32 v{vT+10}, 1, v{vL}")
        A(f"v_mul_u32_u24 v{vT+10}, {step}, v{vT+10}")
        A(f"v_bfe_u32 v{vT+11}, v{vL}, 1, 1")
        A(f"v_mul_lo_u32 v{vT+11}, v{vT+11}, s{sT}")
        A(f"v_add3_u32 v{vT+10}, v{vT+10}, v{vT+11}, s{sO[0]}")
        A("s_mov_b64 exec, 15")
        A(f"buffer_load_dword v{vPF+1}, v{vT+10}, {sr(sWS,4)}, 0 offen")
        A("s_mov_b64 exec, -1")
    def pass0(swap):
        A("s_waitcnt lgkmcnt(0)")
        A("s_barrier")
        ST.at(2)
        for x in reads(0) + reads(1) + reads(2): A(x)
        steps(0, 28, swap, [])
        ST.at(10)
    st = lambda r, so, off: f"buffer_store_dwordx4 {vr(r,4)}, v{vST}, {sr(sWS,4)}, s{so} offen offset:{off} {STF0 if so == sCA else STF}"
    sO = [sCA, sCB]
    def out(p, g, P):
        if p == 0: return []
        return ([f"s_add_u32 s{sO[p]}, s{sO[p]}, {64*2048}"] if g else []) + [st(P, sO[p], 0), st(P + 4, sO[p], 1024)]
    def wr(p):
        return [f"ds_write_b128 v{vT+8}, {vr(PK+4*k,4)} offset:{1024*k}" for k in range(4)] if p == 0 else []
    def qkv_addr(base):
        A(f"s_and_b32 s{sT}, s{sNT}, 3")
        A(f"s_lshl_b32 s{sT}, s{sT}, 2")
        A(f"s_and_b32 s{sT2}, s{sW}, 2")
        A(f"s_add_u32 s{sT}, s{sT}, s{sT2}")
        A(f"s_lshl_b32 s{sT}, s{sT}, 6")
        A(f"s_lshl_b32 s{sT2}, s{sMT}, 1")
        A(f"s_and_b32 s{sO[1]}, s{sW}, 1")
        A(f"s_add_u32 s{sT2}, s{sT2}, s{sO[1]}")
        A(f"s_add_u32 s{sT2}, s{sT2}, 32")
        A(f"s_cmp_ge_u32 s{sNT}, 4")
        A(f"s_cselect_b32 s{sT2}, s{sT2}, s{sB2}")
        A(f"s_add_u32 s{sO[1]}, s{sT}, s{sT2}")
        A(f"s_lshl_b32 s{sO[1]}, s{sO[1]}, 11")
        A(f"s_add_u32 s{sO[1]}, s{sO[1]}, {base}")

    A(f"s_cmp_ge_u32 s{sNT}, 8")
    A("s_cbranch_scc1 k1_vd")
    A(f"s_cmp_ge_u32 s{sNT}, 4")
    A(f"s_cselect_b32 s{sP4}, {WS_K}, {WS_Q}")
    A(f"s_cselect_b32 s{sP64}, {hex(QSCALE)}, 1.0")
    A(f"s_cselect_b32 s{sLA}, 0x3f803f80, 0")
    A(f"s_cselect_b32 s{sLB}, 0x3f80, 0")
    A(f"s_cselect_b32 s{sC}, 12, 0")
    qkv_addr(f"s{sP4}")
    A(f"v_mov_b32 v{vT+6}, s{sLA}")
    A(f"v_mov_b32 v{vT+7}, s{sLB}")
    A(f"v_lshrrev_b32 v{vT}, 1, v{vL}")
    A(f"v_xor_b32 v{vT}, v{vT}, v{vL}")
    A(f"v_and_b32 v{vT}, 4, v{vT}")
    A(f"v_mul_u32_u24 v{vT}, 3, v{vT}")
    A(f"v_and_b32 v{vT}, s{sC}, v{vT}")
    A(f"v_xor_b32 v{vT}, v{vT}, v{vL}")
    A(f"v_lshlrev_b32 v{vST}, 4, v{vT}")
    A(f"v_cmp_lt_u32 vcc, 31, v{vL}")
    def epi_qk(p):
        L = []
        for g in range(2):
            acc = 32 * p + 16 * g; P = PK + 16 * p + 8 * g
            M = [f"v_mul_f32 v{acc+r}, s{sP64}, v{acc+r}" for r in range(16)]
            if p == 1: M = ["s_nop 10" if g == 0 else "s_nop 0", f"s_cmp_lt_u32 s{sNT}, 4", f"s_cbranch_scc1 k1_nm{g}"] + M + [f"k1_nm{g}:"]
            L += M
            L += [f"v_cvt_pk_bf16_f32 v{P+r}, v{acc+2*r}, v{acc+2*r+1}" for r in range(8)]
            L += [f"v_cndmask_b32 v{P+6}, v{P+6}, v{vT+6}, vcc", f"v_cndmask_b32 v{P+7}, v{P+7}, v{vT+7}, vcc"]
            L += out(p, g, P)
        return L + wr(p)
    A(f"s_lshl_b32 s{sT}, s{sW}, 12")
    A(f"v_add_u32 v{vT+8}, s{sT}, v{vST}")
    pass0(True)
    steps(28, 56, True, epi_qk(0))
    ST.at(11)
    for x in epi_qk(1): A(x)
    A("s_branch k1_pf")
    A("k1_vd:")
    qkv_addr(WS_V)
    A(f"v_and_b32 v{vT}, 31, v{vL}")
    A(f"v_cmp_eq_u32 vcc, 28, v{vT}")
    A(f"v_mov_b32 v{vT+6}, 0x3f803f80")
    A(f"v_cndmask_b32 v{vT+6}, 0, v{vT+6}, vcc")
    A(f"v_cmp_lt_u32 vcc, 27, v{vT}")
    A(f"s_cmp_lt_u32 s{sNT}, 12")
    A("s_cbranch_scc1 k1_vt")
    A(f"s_lshl_b32 s{sT}, s{sNT}, 1")
    A(f"s_lshr_b32 s{sT2}, s{sW}, 1")
    A(f"s_add_u32 s{sC}, s{sT}, s{sT2}")
    A(f"s_lshl_b32 s{sT}, s{sC}, 12")
    for p in range(2):
        A(f"s_mul_i32 s{sO[p]}, s{sBB if p == 0 else sB2}, {YB}")
        A(f"s_add_u32 s{sO[p]}, s{sO[p]}, s{sT}")
        A(f"s_add_u32 s{sO[p]}, s{sO[p]}, {WS_Y - 24*4096}")
    A("k1_vt:")
    pass0(False)
    A(f"s_cmp_ge_u32 s{sNT}, 12")
    A("s_cbranch_scc1 k1_dft")
    def epi_v(p):
        L = []
        for g in range(2):
            acc = 32 * p + 16 * g; P = PK + 16 * p + 8 * g
            L += [f"v_cvt_pk_bf16_f32 v{P+r}, v{acc+2*r}, v{acc+2*r+1}" for r in range(8)]
            L += [f"v_cndmask_b32 v{P+r}, v{P+r}, v{vT+6}, vcc" for r in range(8)]
            L += out(p, g, P)
        return L + wr(p)
    A(f"s_lshl_b32 s{sT}, s{sW}, 12")
    A(f"v_add_u32 v{vT+8}, s{sT}, v{vST}")
    steps(28, 56, False, epi_v(0))
    ST.at(11)
    for x in epi_v(1): A(x)
    A("s_branch k1_pf")
    A("k1_dft:")
    A(f"s_cmp_eq_u32 s{sC}, 31")
    A("s_cselect_b64 s[54:55], 0xff, -1")
    A("s_cselect_b64 s[56:57], 1, -1")
    A(f"s_lshl_b32 s{sT2}, s{sW}, 12")
    A(f"v_lshlrev_b32 v{vT}, 6, v{vT}")
    A(f"v_lshl_add_u32 v{vT}, v{vT+1}, 4, v{vT}")
    A(f"v_add_u32 v{vT}, s{sT2}, v{vT}")
    A(f"v_add_u32 v{vT+2}, s{sT2}, v{vST}")
    A(f"v_lshlrev_b32 v{vT+3}, 4, v{vT+1}")
    def epi_dft(p):
        xr, xi = PK + 16 * p, PK + 16 * p + 8; yr, yi = 32 * p, 32 * p + 16; M = MC(p)
        L = [f"v_cvt_pk_bf16_f32 v{xr+r}, v{yr+2*r}, v{yr+2*r+1}" for r in range(8)]
        L += [f"v_cvt_pk_bf16_f32 v{xi+r}, v{yi+2*r}, v{yi+2*r+1}" for r in range(8)]
        G = [f"s_cmp_lg_u32 s{sC}, 31", f"s_cbranch_scc1 k1_ngs{p}", f"s_lshl_b32 s{sT}, s{sBB if p == 0 else sB2}, 7", f"s_add_u32 s{sT}, s{sT}, {WS_G}",
             "s_mov_b32 exec_lo, 1", "s_mov_b32 exec_hi, 1"]
        G += [f"buffer_store_dwordx4 {vr(yi+4*g,4)}, v{vT+3}, {sr(sWS,4)}, s{sT} offen offset:{32*g} sc1" for g in range(4)]
        G += ["s_mov_b64 exec, -1"] + [f"v_mov_b32 v{xi+r}, 0" for r in range(8)] + ["s_nop 1", f"k1_ngs{p}:"]
        L.append("\n".join(G))
        mf = lambda d, a, b, first=False: f"v_mfma_f32_32x32x16_bf16 {vr(d,16)}, {vr(a,4)}, {vr(b,4)}, {'0' if first else vr(d,16)}"
        L += [mf(yr, M + 4*t, xr + 4*t, t == 0) for t in range(2)] + [mf(yr, M + 8 + 4*t, xi + 4*t) for t in range(2)]
        L += [mf(yi, M + 4*t, xi + 4*t, t == 0) for t in range(2)] + [mf(yi, M + 16 + 4*t, xr + 4*t) for t in range(2)]
        L += ["s_nop 0"] * (6 if p == 0 else 0)
        for part, (y, P) in enumerate(((yr, PK + 16 - 16 * p), (yi, PK + 24 - 16 * p))):
            L += [f"v_cvt_pk_bf16_f32 v{P+r}, v{y+2*r}, v{y+2*r+1}" for r in range(8)]
            L.append("s_nop 0")
            for t in range(2): L += [f"v_permlane32_swap_b32 v{P+4*t}, v{P+4*t+2}", f"v_permlane32_swap_b32 v{P+4*t+1}, v{P+4*t+3}"]
            L += [f"ds_write_b128 v{vT}, {vr(P+4*t,4)} offset:{16384*p+2048*part+32*t}" for t in range(2)]
            if p == 1:
                L.append("s_waitcnt lgkmcnt(0)")
                L += [f"ds_read_b128 {vr(P+4*k,4)}, v{vT+2} offset:{16384+2048*part+1024*k}" for k in range(2)]
        if p == 1:
            for part, P in enumerate((PK + 16 - 16 * p, PK + 24 - 16 * p)):
                for k in range(2):
                    L += [f"s_waitcnt lgkmcnt({1 - k if part else 2})", f"s_mov_b64 exec, s[{54+2*k}:{55+2*k}]", st(P + 4*k, sO[p], 2048*part + 1024*k)]
        return L
    steps(28, 56, False, epi_dft(0))
    ST.at(11)
    for x in epi_dft(1): A(x)
    A("s_mov_b64 exec, -1")
    A("k1_pf:")
    if DIAG:
        A(f"s_cmp_lt_u32 s{sW8}, 4")
        A("s_cbranch_scc0 k1_nst")
        A("s_memtime s[96:97]")
        A("k1_nst:")
    if int(os.environ.get("CP", 0)): A("s_setprio 0")
    A("s_barrier")
    ST.dump(sWS, sW8, 8, vT+10, False)
    get_tag(A, "k1_tag", sT, vT)
    return A.L, NV, 102 if DIAG else 64
```

```python
from asmlib import *
from k1 import WS_Q, WS_K, WS_V, WS_Y, WS_W, WS_O, WS_Z, WS_G, WS_BYTES, WS_FO, WS_FZ, WS_F1, f2u, YB, WP, ZP
import math, os
TS_F64, TS_F32, TS_TW, TS_BYTES = 0, 24576, 30720, 47104
LF, LZ, RED = 0, 57344, 114688
LW = RED - 8192
LDS_Y, LDS_Q = LZ, RED + 8192
K2_LDS = 163840
TAB_INV_BYTES = 401408
from k1 import SPIN
N0 = int(os.environ.get("N0", 13)); N1 = (64 - N0) // 3
assert N0 + 3 * N1 == 64
OST = os.environ.get("OST", "")

def merge(ms, vs, lead=0):
    out = []; n = len(ms); k = 0
    for i, m in enumerate(ms):
        out.append(m)
        k2 = (len(vs) * (i + 1)) // n
        out += vs[k:k2]; k = k2
    return out

def gen_k2():
    A = Asm()
    sWS, sX, sTB = 8, 12, 16
    sW, sJ, sXC, sHD, sQB, sT, sT2, sCNT, sI, sKO, sLO, sHI, sVO, sPASS = 20, 21, 22, 23, 24, 25, 26, 27, 28, 29, 30, 31, 32, 33
    sK0, sOK, sQ, sOUT = 34, 35, 40, 48
    sMT, sNT, sPUB, sLO2 = 52, 53, 57, 58
    O, S, Q, KV = 0, 64, 128, 160
    vL, vO16, vIDX, vT = 208, 209, 210, 212
    NV = 256
    vWD, sWM, sWS_ = 237, 59, 60
    vTAG = 240
    A("k2_start:")
    ST = Stamps(A, 1); ST.begin()
    A(f"s_load_dwordx2 {sr(sX,2)}, s[0:1], 40")
    A(f"s_load_dwordx2 {sr(sOUT,2)}, s[0:1], 56")
    A(f"s_mov_b32 s{sWS}, s16")
    A(f"s_mov_b32 s{sWS+1}, s17")
    A(f"s_mov_b32 s{sWS+2}, {WS_BYTES}")
    A(f"s_mov_b32 s{sWS+3}, 0x20000")
    A(f"s_mov_b32 s{sW}, s47")
    A(f"v_mov_b32 v{vL}, v64")
    A(f"v_mov_b32 v{vTAG}, s6")
    A(f"v_mov_b32 v{vTAG+1}, s7")
    A(f"v_lshlrev_b32 v{vO16}, 4, v{vL}")
    A(f"v_and_b32 v{vT+9}, 31, v{vL}")
    A(f"v_lshlrev_b32 v{vT+9}, 2, v{vT+9}")
    A(f"s_and_b32 s{sXC}, s2, 7")
    A(f"s_lshr_b32 s{sJ}, s2, 3")
    A(f"s_and_b32 s{sT}, s{sJ}, 3")
    A(f"s_lshl_b32 s{sMT}, s{sXC}, 2")
    A(f"s_add_u32 s{sMT}, s{sMT}, s{sT}")
    A(f"s_lshr_b32 s{sNT}, s{sJ}, 2")
    A(f"s_getpc_b64 {sr(sTB,2)}")
    A(f"s_add_u32 s{sTB}, s{sTB}, tab_inv@rel32@lo+4")
    A(f"s_addc_u32 s{sTB+1}, s{sTB+1}, tab_inv@rel32@hi+12")
    A(f"s_mov_b32 s{sTB+2}, {TAB_INV_BYTES}")
    A(f"s_mov_b32 s{sTB+3}, 0x20000")
    def own_flag():
        A(f"s_lshl_b32 s{sPUB}, s2, 3")
        A(f"s_add_u32 s{sPUB}, s{sPUB}, s{sW}")
        A(f"s_lshl_b32 s{sPUB}, s{sPUB}, 7")
        A(f"s_add_u32 s{sPUB}, s{sPUB}, {WS_F1}")
        A("v_mov_b32 v12, 0")
        A("s_mov_b64 exec, 1")
        A("s_waitcnt vmcnt(0)")
        A(f"buffer_store_dwordx2 {vr(vTAG,2)}, v12, {sr(sWS,4)}, s{sPUB} offen sc1")
        A("s_mov_b64 exec, -1")
    def flag_index(d, vpass, vmt, ve, vnt, shh):
        A(f"v_and_b32 v{d}, 7, v{vnt}")
        A(f"v_lshlrev_b32 v{d}, 2, v{d}")
        A(f"v_and_or_b32 v{d}, v{vmt}, 3, v{d}")
        A(f"v_lshrrev_b32 v{d+1}, 2, v{vmt}")
        A(f"v_lshl_add_u32 v{d}, v{d}, 2, v{d+1}")
        A(f"v_lshrrev_b32 v{d+1}, 3, v{vnt}")
        A(f"v_lshl_add_u32 v{d}, v{d}, 1, v{d+1}")
        A(f"v_xor_b32 v{d+1}, 1, v{vpass}")
        A(f"v_lshl_add_u32 v{d}, v{d}, 1, v{d+1}")
        A(f"v_and_b32 v{d+1}, {shh}, v{vpass}")
        A(f"v_lshl_add_u32 v{d}, v{d}, 1, v{d+1}")
        A(f"v_lshl_add_u32 v{d}, v{d}, 1, v{ve}")
        A(f"v_lshlrev_b32 v{d}, 7, v{d}")
    A(f"s_cmp_ge_u32 s{sW}, 4")
    A("s_cbranch_scc1 k2_aux")
    A(f"s_lshr_b32 s{sHD}, s{sJ}, 4")
    A(f"s_lshl_b32 s{sHD}, s{sHD}, 3")
    A(f"s_add_u32 s{sHD}, s{sHD}, s{sXC}")
    A(f"s_and_b32 s{sQB}, s{sJ}, 15")
    A(f"s_cmp_eq_u32 s{sW}, 0")
    A(f"s_cselect_b32 s{sCNT}, {N0}, {N1}")
    A(f"s_mul_i32 s{sT}, s{sW}, {N1}")
    A(f"s_sub_u32 s{sT}, s{sT}, {N1-N0}")
    A(f"s_max_i32 s{sT}, s{sT}, 0")
    A(f"s_lshl_b32 s{sT2}, s{sW}, 4")
    A(f"s_cmp_le_u32 s2, 224")
    A(f"s_cselect_b32 s{sCNT}, s{sCNT}, 16")
    A(f"s_cselect_b32 s{sT}, s{sT}, s{sT2}")
    A(f"s_mul_i32 s{sK0}, s{sW}, 3")
    A(f"s_sub_u32 s{sLO}, s{sT}, s{sK0}")
    A(f"s_add_u32 s{sLO}, s{sLO}, 9")
    A(f"v_lshrrev_b32 v2, 1, v{vL}")
    A(f"s_sub_u32 s{sT2}, s{sCNT}, 1")
    A(f"v_min_u32 v2, s{sT2}, v2")
    A(f"v_add_u32 v3, s{sK0}, v2")
    A(f"v_add_u32 v4, s{sLO}, v2")
    A("v_cmp_gt_u32 vcc, 3, v2")
    A(f"s_lshr_b32 s{sT2}, s{sHD}, 2")
    A(f"s_and_b32 s{sI}, s{sT2}, 1")
    A("v_cndmask_b32 v3, v4, v3, vcc")
    A("v_lshrrev_b32 v4, 5, v3")
    A("v_bfe_u32 v5, v3, 1, 4")
    A("v_and_b32 v6, 1, v3")
    A(f"v_and_b32 v7, 1, v{vL}")
    A(f"v_lshl_add_u32 v7, v7, 2, s{sT2}")
    A("v_add_u32 v7, 4, v7")
    A(f"v_cmp_lt_u32 vcc, 33, v{vL}")
    A(f"s_lshr_b32 s{sKO}, s{sW}, 1")
    A(f"s_xor_b32 s{sKO}, s{sKO}, s{sI}")
    A(f"s_and_b32 s{sVO}, s{sW}, 1")
    A(f"v_mov_b32 v8, s{sKO}")
    A(f"v_mov_b32 v9, s{sQB}")
    A(f"v_mov_b32 v10, s{sVO}")
    A(f"v_mov_b32 v11, s{sT2}")
    for k in range(4): A(f"v_cndmask_b32 v{4+k}, v{4+k}, v{8+k}, vcc")
    A(f"s_bfe_u32 s{sI}, s{sHD}, 0x10001")
    flag_index(2, 4, 5, 6, 7, f"s{sI}")
    A(f"s_lshl_b32 s{sT2}, s{sHD}, 6")
    A(f"s_add_u32 s{sK0}, s{sK0}, s{sT2}")
    A(f"s_lshl_b32 s{sK0}, s{sK0}, 11")
    A(f"s_add_u32 s{sK0}, s{sK0}, {WS_K}")
    A(f"s_add_u32 s{sLO2}, s{sLO}, s{sT2}")
    A(f"s_add_u32 s{sHI}, s{sLO2}, s{sCNT}")
    A(f"s_add_u32 s{sLO2}, s{sLO2}, 3")
    A(f"s_lshl_b32 s{sLO2}, s{sLO2}, 11")
    A(f"s_add_u32 s{sLO2}, s{sLO2}, {WS_K}")
    A(f"s_lshl_b32 s{sHI}, s{sHI}, 11")
    A(f"s_add_u32 s{sHI}, s{sHI}, {WS_K}")
    A(f"s_lshl_b32 s{sT}, s{sQB}, 2")
    A(f"s_add_u32 s{sT}, s{sT}, s{sT2}")
    for s in range(4):
        A(f"s_add_u32 s{sQ+s}, s{sW}, {s+1}")
        A(f"s_and_b32 s{sQ+s}, s{sQ+s}, 3")
        A(f"s_add_u32 s{sT2}, s{sQ+s}, s{sT}")
        A(f"s_lshl_b32 s{sQ+4+s}, s{sT2}, 11")
    A(f"s_mov_b32 s{sKO}, s{sK0}")
    A(f"s_add_u32 s{sVO}, s{sKO}, {WS_V - WS_K}")
    own_flag()
    ST.at(12)
    A(f"s_mov_b32 s{sI}, {SPIN}")
    A(f"s_mov_b32 s{sT}, {WS_F1}")
    A("s_mov_b32 exec_lo, 0x3f")
    A("s_mov_b32 exec_hi, 4")
    if os.environ.get("NOPOLL"): A("s_branch k2_pa_done")
    if int(os.environ.get("PD", 22)): A(f"s_sleep {os.environ.get('PD', 22)}")
    A("k2_pa:")
    A(f"buffer_load_dwordx2 v[4:5], v2, {sr(sWS,4)}, s{sT} offen sc1")
    A("s_waitcnt vmcnt(0)")
    A("v_cmp_ne_u64 vcc, s[6:7], v[4:5]")
    A("s_nop 1")
    A("s_and_b64 exec, exec, vcc")
    A("s_cbranch_scc0 k2_pa_done")
    A(f"s_sub_u32 s{sI}, s{sI}, 1")
    A(f"s_sleep {os.environ.get('PSL', 1)}")
    A(f"s_cmp_gt_i32 s{sI}, 0")
    A("s_cbranch_scc1 k2_pa")
    A("k2_pa_done:")
    A("s_mov_b64 exec, -1")
    ST.at(13)
    def ldk(st, t): return f"buffer_load_dwordx4 {vr(KV+16*st+4*t,4)}, v{vO16}, {sr(sWS,4)}, s{sKO} offen offset:{1024*t} sc1"
    def ldv(st, t): return f"buffer_load_dwordx4 {vr(KV+16*st+8+4*t,4)}, v{vO16}, {sr(sWS,4)}, s{sVO} offen offset:{1024*t} sc1"
    def ldq(s, t): return f"buffer_load_dwordx4 {vr(Q+8*s+4*t,4)}, v{vO16}, {sr(sWS,4)}, s{sQ+4+s} offen offset:{1024*t}"
    adv = [f"s_add_u32 s{sKO}, s{sKO}, 2048", f"s_cmp_ge_u32 s{sKO}, s{sHI}", f"s_cselect_b32 s{sKO}, s{sLO2}, s{sKO}"]
    setv = f"s_add_u32 s{sVO}, s{sKO}, {WS_V - WS_K}"
    A(f"s_lshl_b32 s{sT}, s{sW}, 11")
    A(f"s_add_u32 m0, s{sT}, {LDS_Q}")
    A(ldk(0, 0))
    A(f"buffer_load_dwordx4 v{vO16}, {sr(sWS,4)}, s{sQ+7} offen sc1 lds")
    A(f"buffer_load_dwordx4 v{vO16}, {sr(sWS,4)}, s{sQ+7} offen offset:1024 sc1 lds")
    A(ldk(0, 1))
    for r in range(64): A(f"v_mov_b32 v{O+r}, 0") if r not in (2,) else None
    for x in [ldv(0, 0), ldv(0, 1)]: A(x)
    A(f"s_mov_b32 s{sPASS}, 0")
    A(f"s_mov_b32 s{sOK}, 0")
    A("s_branch k2_first")
    A("k2_pass:")
    A(f"s_mov_b32 s{sKO}, s{sK0}")
    A(setv)
    for x in [ldk(0, 0), ldk(0, 1), ldv(0, 0), ldv(0, 1)]: A(x)
    A("s_waitcnt vmcnt(0)")
    A("k2_first:")
    for x in adv[:1] + [setv, ldk(1, 0), ldk(1, 1), ldv(1, 0), ldv(1, 1)] + adv[:1] + [setv, ldk(2, 0), ldk(2, 1), ldv(2, 0), ldv(2, 1)]: A(x)
    A(f"s_sub_u32 s{sT}, s{sCNT}, 3")
    A(f"s_mul_i32 s{sT}, s{sT}, s{sQB}")
    A(f"s_lshr_b32 s{sT}, s{sT}, 4")
    A(f"s_lshl_b32 s{sT}, s{sT}, 11")
    A(f"s_add_u32 s{sKO}, s{sLO2}, s{sT}")
    A(f"s_cmp_lg_u32 s{sPASS}, 0")
    A("s_cbranch_scc1 k2_nobar")
    A(f"v_mov_b32 v{vT+12}, v2")
    A(f"s_mov_b32 s{sT}, {WS_F1}")
    A(f"buffer_load_dwordx2 {vr(vT+10,2)}, v2, {sr(sWS,4)}, s{sT} offen sc1")
    A("v_mov_b32 v2, 0")
    A(f"v_mov_b32 v{vIDX}, 0xdddddddd")
    for s_ in range(4):
        A(f"s_lshl_b32 s{sT}, s{sQ+s_}, 11")
        A(f"s_add_u32 s{sT}, s{sT}, {LDS_Q}")
        A(f"v_add_u32 v{vT+2+s_}, s{sT}, v{vO16}")
    A("s_waitcnt vmcnt(12)")
    A("s_barrier")
    for s_ in range(4):
        for t in range(2): A(f"ds_read_b128 {vr(Q+8*s_+4*t,4)}, v{vT+2+s_} offset:{1024*t}")
    A("s_branch k2_go")
    A("k2_nobar:")
    A("s_waitcnt vmcnt(0)")
    A(f"v_mov_b32 v{vT+10}, s6")
    A(f"v_mov_b32 v{vT+11}, s7")
    for r in range(64): A(f"v_mov_b32 v{O+r}, 0")
    A("k2_go:")
    for s in range(3):
        A(f"s_mul_i32 s{sT}, s{sQ+s}, 12288")
        A(f"s_add_u32 s{sT}, s{sT}, {RED}")
        A(f"v_add_u32 v{vT+s}, s{sT}, v{vO16}")
    A(f"s_mov_b32 s{sI}, s{sCNT}")
    def qk(q, st, half):
        c = "0" if half == 0 else vr(S+16*q,16)
        return f"v_mfma_f32_32x32x16_bf16 {vr(S+16*q,16)}, {vr(KV+16*st+4*half,4)}, {vr(Q+8*q+4*half,4)}, {c}"
    def pv(q, st, half):
        return f"v_smfmac_f32_32x32x32_bf16 {vr(O+16*q,16)}, {vr(KV+16*st+8+4*half,4)}, {vr(S+16*q+8*half,8)}, v{vIDX}"
    def tile(st, first, last=False):
        nxt, prv = (st + 1) % 3, (st + 2) % 3
        for q in range(4):
            e = [f"v_exp_f32 v{S+16*q+r}, v{S+16*q+r}" for r in range(16)]
            qn, stn = (q + 1, st) if q < 3 else (0, nxt)
            qp, stp = (q - 1, st) if q > 0 else (3, prv)
            aft = {0: [], 1: [], 2: [], 3: []}
            if q == 0: aft[2] = [ldk(prv, 0)]; aft[3] = [setv]
            if q == 1: aft[1] = ["s_waitcnt vmcnt(5)"]; aft[2] = [ldk(prv, 1)]; aft[3] = adv[0:2]
            if q == 2: aft[0] = [adv[2]]; aft[2] = [ldv(prv, 0)]; aft[3] = [f"s_sub_u32 s{sI}, s{sI}, 1", "s_waitcnt vmcnt(5)"]
            if q == 3: aft[2] = [ldv(prv, 1)]; aft[3] = [f"s_cmp_eq_u32 s{sI}, 1"]
            ms = [qk(qn, stn, 0), qk(qn, stn, 1), pv(qp, stp, 0), pv(qp, stp, 1)]
            if first and q == 0:
                A("s_waitcnt lgkmcnt(0)")
                ms[2] = ms[3] = None
            if first:
                aft = {0: [], 1: [], 2: [], 3: []}
                if q == 1: aft[1] = ["s_waitcnt vmcnt(9)"]
                if q == 2: aft[3] = [f"s_sub_u32 s{sI}, s{sI}, 1", "s_waitcnt vmcnt(7)"]
                if q == 3: aft[2] = ["s_waitcnt vmcnt(0)"]; aft[3] = [f"v_cmp_eq_u64 vcc, s[6:7], {vr(vT+10,2)}"]
            if last:
                wr = lambda s_, g: f"ds_write_b128 v{vT+s_}, {vr(O+16*s_+4*g,4)} offset:{4096*s_+1024*g}"
                aft = {0: [], 1: [], 2: [], 3: []}
                if q == 1: aft[1] = ["s_waitcnt vmcnt(4)"]
                if q == 2: aft[2] = [wr(0, 0)]; aft[3] = [wr(0, 1)]
                if q == 3:
                    ms[0] = ms[1] = None
                    aft[0] = [wr(0, 2)]; aft[1] = [wr(0, 3)]; aft[2] = [wr(1, 0)]; aft[3] = [wr(1, 1)]
            for k in range(4):
                if ms[k]: A(ms[k])
                for y in aft[k]: A(y)
                for x in e[4*k:4*k+4]: A(x)
    ST.at(0)
    A("s_waitcnt vmcnt(11) lgkmcnt(6)")
    ST.at(1)
    A(qk(0, 0, 0)); A(qk(0, 0, 1))
    A("s_nop 9")
    tile(0, True)
    A("s_cmp_lg_u64 vcc, -1")
    if not os.environ.get("NOPOLL"): A("s_cbranch_scc1 k2_pb0")
    loop_start = A.mark()
    A("k2_loop:")
    if DIAG:
        A("s_waitcnt lgkmcnt(0)")
        for i in (11,): A(f"s_mov_b32 s{70+2*i}, s{68+2*i}")
        ST.at(10)
    for st in (1, 2, 0):
        tile(st, False)
        A(f"s_cbranch_scc1 k2_x{(st + 1) % 3}" if st != 0 else "s_cbranch_scc0 k2_loop")
    loop_end = A.mark()
    for st in (1, 2, 0):
        A(f"k2_x{st}:")
        tile(st, False, True)
        A(f"ds_write_b128 v{vT+1}, {vr(O+16+8,4)} offset:{4096+2048}")
        A(pv(3, st, 0))
        A(f"ds_write_b128 v{vT+1}, {vr(O+16+12,4)} offset:{4096+3072}")
        A(pv(3, st, 1))
        if st != 0: A("s_branch k2_red")
    A("k2_red:")
    ST.at(2)
    A(f"s_lshl_b32 s{sT2}, s{sQB}, 2")
    A(f"s_add_u32 s{sT2}, s{sT2}, s{sW}")
    for g in range(4): A(f"ds_write_b128 v{vT+2}, {vr(O+32+4*g,4)} offset:{8192+1024*g}")
    A(f"s_mul_i32 s{sT}, s{sW}, 12288")
    A(f"s_add_u32 s{sT}, s{sT}, {RED}")
    A(f"v_add_u32 v{vT+1}, s{sT}, v{vO16}")
    A(f"s_lshl_b32 s{sT}, s{sW}, 2")
    A(f"s_add_u32 s{sT}, s{sT}, {K2_LDS-128}")
    A(f"v_mov_b32 v{vT+14}, s{sT}")
    A(f"s_lshl_b32 s{sT2}, s{sT2}, 4")
    A(f"s_add_u32 s{sT2}, s{sT2}, s{sHD}")
    A(f"s_lshl_b32 s{sKO}, s{sT2}, 11")
    A(f"s_add_u32 s{sKO}, s{sKO}, {WS_O}")
    A(f"s_lshl_b32 s{sVO}, s{sT2}, 7")
    A(f"s_add_u32 s{sVO}, s{sVO}, {WS_FO}")
    A("s_waitcnt vmcnt(0) lgkmcnt(0)")
    ST.at(3)
    A("s_barrier")
    ST.at(4)
    for g in (3, 0, 1, 2):
        for s in range(3):
            A(f"ds_read_b128 {vr(S+16*s+4*g,4)}, v{vT+1} offset:{4096*s+1024*g}")
    A(f"v_cmp_lt_u32 s[38:39], 31, v{vL}")
    R = O + 48
    def addg(g):
        for r in range(4*g, 4*g+4): A(f"v_add_f32 v{S+r}, v{S+r}, v{S+16+r}")
        for r in range(4*g, 4*g+4): A(f"v_add_f32 v{R+r}, v{R+r}, v{S+32+r}")
        for r in range(4*g, 4*g+4): A(f"v_add_f32 v{R+r}, v{R+r}, v{S+r}")
    A("s_waitcnt lgkmcnt(9)")
    addg(3)
    A(f"v_mov_b32 v{vT+4}, v{R+12}")
    A(f"v_mov_b32 v{vT+5}, v{R+12}")
    A("s_waitcnt lgkmcnt(6)")
    A(f"v_permlane32_swap_b32 v{vT+4}, v{vT+5}")
    A(f"v_rcp_f32 v{vT+6}, v{vT+5}")
    addg(0)
    A("s_waitcnt lgkmcnt(3)")
    addg(1)
    A("s_waitcnt lgkmcnt(0)")
    addg(2)
    A(f"s_cmp_lg_u32 s{sOK}, 0")
    A(f"s_mov_b32 s{sPUB}, 0")
    A("s_cbranch_scc1 k2_apart")
    for t in range(2):
        for r in range(8): A(f"v_mul_f32 v{S+8*t+r}, v{R+8*t+r}, v{vT+6}")
        for r in range(4): A(f"v_cvt_pk_bf16_f32 v{S+16+4*t+r}, v{S+8*t+2*r}, v{S+8*t+2*r+1}")
        if t == 1:
            A(f"v_cndmask_b32 v{S+22}, v{S+22}, 0, s[38:39]")
            A(f"v_cndmask_b32 v{S+23}, v{S+23}, 0, s[38:39]")
        A(f"buffer_store_dwordx4 {vr(S+16+4*t,4)}, v{vO16}, {sr(sWS,4)}, s{sKO} offen offset:{1024*t} sc1")
    A(f"v_add_f32 v{vT+7}, abs(v{R}), abs(v{R+1})")
    for r in range(2, 16): A(f"v_add_f32 v{vT+7}, v{vT+7}, abs(v{R+r})")
    A(f"v_cmp_nle_f32 vcc, {hex(f2u(2.0**-60))}, v{vT+5}")
    A(f"s_mov_b64 s[36:37], vcc")
    A(f"v_cmp_nge_f32 vcc, {hex(f2u(2.0**60))}, v{vT+5}")
    A(f"s_or_b64 s[36:37], s[36:37], vcc")
    A(f"v_cmp_nge_f32 vcc, {hex(f2u(2.0**120))}, v{vT+7}")
    A(f"s_or_b64 s[36:37], s[36:37], vcc")
    A(f"s_cselect_b32 s{sOK}, 0, 1")
    A(f"s_or_b32 s{sOK}, s{sOK}, s{sPASS}")
    A(f"s_mov_b32 s{sPUB}, s{sOK}" if not os.environ.get("NOPOLL") else f"s_mov_b32 s{sPUB}, 1")
    A("k2_apart:")
    A("s_barrier")
    def publish(lab, younger=0):
        A(f"s_cmp_eq_u32 s{sPUB}, 0")
        A(f"v_mov_b32 v{vT+4}, 0")
        A(f"s_waitcnt vmcnt({younger})")
        A(f"s_cbranch_scc1 {lab}")
        A("s_mov_b64 exec, 1")
        A(f"buffer_store_dwordx2 {vr(vTAG,2)}, v{vT+4}, {sr(sWS,4)}, s{sVO} offen sc1")
        A("s_mov_b64 exec, -1")
        A(f"{lab}:")
    AA, AB, OF, LB = 0, 96, 160, 32
    vG3, vZ3, vF3, vW3, vOA, vX = 228, 229, 230, 232, 234, 235
    sKH, sB3, sB, sOB, sOA = 54, 55, 56, 61, 62
    A(f"s_lshr_b32 s{sKH}, s{sW}, 1")
    A(f"s_and_b32 s{sB3}, s{sW}, 1")
    A(f"v_lshrrev_b32 v{vT+10}, 5, v{vL}")
    A(f"v_bfe_u32 v{vT+11}, v{vL}, 2, 2")
    A(f"v_bfe_u32 v{vT+12}, v{vL}, 4, 1")
    A(f"v_lshlrev_b32 v{vT+12}, 5, v{vT+12}")
    A(f"v_and_b32 v{vT+13}, 3, v{vL}")
    A(f"v_lshl_add_u32 v{vT+12}, v{vT+13}, 3, v{vT+12}")
    A(f"v_lshl_add_u32 v{vT+12}, v{vT+11}, 7, v{vT+12}")
    A(f"v_lshrrev_b32 v{vT+11}, 1, v{vT+11}")
    A(f"v_lshl_add_u32 v{vT+12}, v{vT+11}, 6, v{vT+12}")
    A(f"s_lshl_b32 s{sT}, s{sB3}, 6")
    A(f"v_xor_b32 v{vZ3}, s{sT}, v{vT+12}")
    A(f"v_lshl_add_u32 v{vZ3}, v{vT+10}, 10, v{vZ3}")
    A(f"s_mul_i32 s{sT2}, s{sKH}, {14*2048}")
    A(f"s_add_u32 s{sT}, s{sT2}, {LZ}")
    A(f"v_add_u32 v{vZ3}, s{sT}, v{vZ3}")
    A(f"s_lshl_b32 s{sT}, s{sKH}, 10")
    A(f"s_add_u32 s{sT}, s{sT}, s{sT2}")
    A(f"v_add_u32 v{vF3}, s{sT}, v{vO16}")
    A(f"v_xor_b32 v{vF3+1}, 1024, v{vF3}")
    A(f"s_lshl_b32 s{sT}, s{sMT}, 1")
    A(f"s_add_u32 s{sB}, s{sT}, s{sB3}")
    A(f"s_lshl_b32 s{sT}, s{sB}, 7")
    A(f"s_add_u32 s{sT}, s{sT}, {WS_G}")
    A(f"buffer_load_dword v{vG3}, v{vT+9}, {sr(sWS,4)}, s{sT} offen sc1")
    A(f"s_lshl_b32 s{sT}, s{sKH}, 6")
    A(f"v_xor_b32 v{vW3}, s{sT}, v{vT+12}")
    A(f"v_lshl_add_u32 v{vW3}, v{vT+10}, 9, v{vW3}")
    A(f"s_mul_i32 s{sT}, s{sKH}, {224*128}")
    A(f"s_add_u32 s{sT}, s{sT}, {LW}")
    A(f"v_add_u32 v{vW3}, s{sT}, v{vW3}")
    A(f"v_xor_b32 v{vW3+1}, 64, v{vW3}")
    A(f"s_lshl_b32 s{sT}, s{sW}, 12")
    A(f"v_add_u32 v{vX}, s{sT}, v{vO16}")
    A(f"v_xor_b32 v{vX+1}, 8192, v{vX}")
    A(f"s_lshl_b32 s{sT}, s{sB}, 1")
    A(f"s_add_u32 s{sT}, s{sT}, s{sKH}")
    A(f"s_lshl_b32 s{sT}, s{sT}, 14")
    A(f"s_add_u32 s{sOB}, s{sT}, {WS_O}")
    A(f"v_lshrrev_b32 v{vT+3}, 2, v{vT+9}")
    A(f"v_mul_u32_u24 v{vOA}, 57344, v{vT+3}")
    A(f"v_lshl_add_u32 v{vOA}, v{vT+10}, 4, v{vOA}")
    A(f"s_mul_i32 s{sOA}, s{sB}, 896")
    A(f"s_lshl_b32 s{sT}, s{sNT}, 7")
    A(f"s_add_u32 s{sOA}, s{sOA}, s{sT}")
    A(f"s_lshl_b32 s{sT}, s{sKH}, 6")
    A(f"s_add_u32 s{sOA}, s{sOA}, s{sT}")
    A(f"s_mov_b32 s{sOUT+2}, 1835008")
    A(f"s_mov_b32 s{sOUT+3}, 0x20000")
    publish("k2_np0")
    A("k2_pub:")
    ST.at(5)
    A(f"v_mov_b32 v{vT+5}, s{sOK}")
    A(f"ds_write_b32 v{vT+14}, v{vT+5}")
    A("k2_chk:")
    A(f"v_mov_b32 v{vT+8}, {K2_LDS-128}")
    A("s_waitcnt lgkmcnt(0)")
    A("s_barrier")
    A(f"ds_read_b128 {vr(vT+4,4)}, v{vT+8}")
    A("s_waitcnt lgkmcnt(0)")
    A("s_barrier")
    A(f"v_and_b32 v{vT+4}, v{vT+4}, v{vT+5}")
    A(f"v_and_b32 v{vT+6}, v{vT+6}, v{vT+7}")
    A(f"v_and_b32 v{vT+4}, v{vT+4}, v{vT+6}")
    A(f"v_readfirstlane_b32 s{sT}, v{vT+4}")
    A(f"s_cmp_eq_u32 s{sT}, 0")
    if not os.environ.get("NOPOLL"): A("s_cbranch_scc1 k2_fail")
    A("k2_p3:")
    A("s_cmp_ge_u32 s2, 224")
    A("s_cbranch_scc1 k2_dump" if DIAG else "s_cbranch_scc1 k2_end")
    A(f"s_cmp_ge_u32 s{sW}, 4")
    A("s_cbranch_scc1 k2_auxp3")
    steps = []
    HO = [3, 4, 5, 6, 7, 0, 1, 2]
    OFr = lambda m: (OF + 4*m) if m < 12 else (128 + 4*(m-12))
    for n in range(30):
        buf = LB + 12 * (n % 4)
        if n < 14:
            rd = [f"ds_read_b64_tr_b16 {vr(buf+2*x,2)}, v{vZ3} offset:{2048*n+512*x}" for x in range(2)]
            rd += [f"ds_read_b128 {vr(buf+4+4*k,4)}, v{vF3+k} offset:{2048*n}" for k in range(2)]
            mm = [f"v_mfma_f32_32x32x16_bf16 {vr(AA+16*k,16)}, {vr(buf+4+4*k,4)}, {vr(buf,4)}, {'0' if n == 0 else vr(AA+16*k,16)}" for k in range(2)]
        else:
            m = n - 14; hd, t = HO[m >> 1], m & 1
            rd = [f"ds_read_b64_tr_b16 {vr(buf+4+4*k+2*x,2)}, v{vW3+k} offset:{(28*hd+16*t)*128+1024*x}" for k in range(2) for x in range(2)]
            ks = (1, 0)
            mm = [f"v_mfma_f32_32x32x16_bf16 {vr(AB+16*k,16)}, {vr(buf+4+4*k,4)}, {vr(OFr(m),4)}, {'0' if m == 0 else vr(AB+16*k,16)}" for k in ks]
        steps.append((rd, mm))
    for x in steps[0][0] + steps[1][0] + steps[2][0]: A(x)
    A(f"v_mul_f32 v{vG3}, {hex(f2u(-math.log2(math.e)))}, v{vG3}")
    A(f"v_exp_f32 v{vG3}, v{vG3}")
    A("s_nop 0")
    A(f"v_add_f32 v{vG3}, 1.0, v{vG3}")
    A(f"v_rcp_f32 v{vG3}, v{vG3}")
    A("s_nop 0")
    A(f"v_sub_f32 v{vG3+10}, 1.0, v{vG3}")
    for n in range(14):
        if n == 0: ST.at(10)
        if n == 7: ST.at(11)
        A(f"s_waitcnt lgkmcnt({4 * min(2, 13 - n)})")
        rd = steps[n+3][0] if n + 3 < 14 else [None] * 4
        for k in range(2):
            A(steps[n][1][k])
            for x in rd[2*k:2*k+2]:
                if x: A(x)
    ST.at(6)
    A("s_barrier")
    ST.at(7)
    def old(m):
        hd = HO[m >> 1]
        if m % 2 == 0 and (m == 0 or hd % 2 == 0 or hd == 0): A(f"s_add_u32 s{sI}, s{sOB}, {4096*(hd>>1)}")
        A(f"buffer_load_dwordx4 {vr(OFr(m),4)}, v{vO16}, {sr(sWS,4)}, s{sI} offen offset:{2048*(hd&1)+1024*(m&1)} sc1")
    NO = int(os.environ.get("NO", 10))
    for m in range(NO): old(m)
    for x in steps[14][0] + steps[15][0] + steps[16][0]: A(x)
    for r in range(32): A(f"v_mul_f32 v{AA+r}, v{vG3}, v{AA+r}")
    for n in range(14, 30):
        m = n - 14
        if NO + m < 16: old(NO + m)
        if m == 7: A("s_barrier")
        A(f"s_waitcnt vmcnt({min(NO + m + 1, 16) - m - 1}) lgkmcnt({4 * min(2, 29 - n)})")
        if m == 0: ST.at(8)
        rd = steps[n+3][0] if n + 3 < 30 else [None] * 4
        for k in range(2):
            if m < 12 or k == 0: A(steps[n][1][k])
            for x in rd[2*k:2*k+2]:
                if x: A(x)
    ST.at(9)
    A(steps[26][1][1]); A(steps[27][1][1])
    A("s_nop 8")
    for g in range(4):
        for r in range(4*g, 4*g+4): A(f"v_fma_f32 v{AB+16+r}, v{vG3+10}, v{AB+16+r}, v{AA+16+r}")
        if g < 2: A(steps[28 + g][1][1])
        A(f"ds_write_b128 v{vX}, {vr(AB+16+4*g,4)} offset:{1024*g}")
    A("s_waitcnt lgkmcnt(0)")
    A("s_barrier")
    for g in range(4): A(f"ds_read_b128 {vr(AA+16+4*g,4)}, v{vX+1} offset:{1024*g}")
    for r in range(16): A(f"v_fma_f32 v{AB+r}, v{vG3+10}, v{AB+r}, v{AA+r}")
    for g in range(4):
        A(f"s_waitcnt lgkmcnt({3-g})")
        for r in range(4*g, 4*g+4): A(f"v_add_f32 v{AB+r}, v{AB+r}, v{AA+16+r}")
        for r in range(2*g, 2*g+2): A(f"v_cvt_pk_bf16_f32 v{LB+r}, v{AB+2*r}, v{AB+2*r+1}")
        if g & 1:
            t = g >> 1
            A(f"v_permlane32_swap_b32 v{LB+4*t}, v{LB+4*t+2}")
            A(f"v_permlane32_swap_b32 v{LB+4*t+1}, v{LB+4*t+3}")
            A(f"buffer_store_dwordx4 {vr(LB+4*t,4)}, v{vOA}, {sr(sOUT,4)}, s{sOA} offen offset:{32*t} {os.environ.get('OUTF', '')}")
    A("s_branch k2_dump" if DIAG else "s_endpgm")

    A("k2_fail:")
    A(f"s_cmp_ge_u32 s{sW}, 4")
    A("s_cbranch_scc1 k2_auxfb")
    A("s_branch k2_fb")
    A("k2_pb0:")
    A(f"s_mov_b32 s{sT2}, {SPIN}")
    A(f"s_mov_b32 s{sT}, {WS_F1}")
    A("k2_pb:")
    A(f"buffer_load_dwordx2 {vr(vT+10,2)}, v{vT+12}, {sr(sWS,4)}, s{sT} offen sc1")
    A("s_waitcnt vmcnt(0)")
    A(f"v_cmp_eq_u64 vcc, s[6:7], {vr(vT+10,2)}")
    A("s_nop 1")
    A("s_cmp_eq_u64 vcc, -1")
    A("s_cbranch_scc1 k2_loop")
    A(f"s_sub_u32 s{sT2}, s{sT2}, 1")
    A("s_sleep 2")
    A(f"s_cmp_lg_u32 s{sT2}, 0")
    A("s_cbranch_scc1 k2_pb")
    A("s_branch k2_loop")
    A("k2_fb:")
    A(f"s_mov_b32 s{sPASS}, 1")
    A("s_waitcnt vmcnt(0)")
    A("s_barrier")
    for q in range(4): A(f"v_mov_b32 v{O+q}, 0xff800000")
    A(f"s_mov_b32 s{sKO}, s{sK0}")
    A(f"s_add_u32 s{sT2}, s{sK0}, {3*2048}")
    A(f"s_mov_b32 s{sI}, s{sCNT}")
    A("k2_maxloop:")
    A(ldk(0, 0)); A(ldk(0, 1))
    A("s_waitcnt vmcnt(0)")
    for q in range(4): A(qk(q, 0, 0)); A(qk(q, 0, 1))
    A("s_nop 15")
    for q in range(4):
        for r in range(8): A(f"v_max3_f32 v{O+q}, v{O+q}, v{S+16*q+2*r}, v{S+16*q+2*r+1}")
    A(f"s_add_u32 s{sKO}, s{sKO}, 2048")
    A(f"s_cmp_eq_u32 s{sKO}, s{sT2}")
    A(f"s_cselect_b32 s{sKO}, s{sLO2}, s{sKO}")
    A(f"s_cselect_b32 s{sT2}, 0, s{sT2}")
    A(f"s_sub_u32 s{sI}, s{sI}, 1")
    A(f"s_cmp_lg_u32 s{sI}, 0")
    A("s_cbranch_scc1 k2_maxloop")
    A(f"s_lshl_b32 s{sT}, s{sW}, 8")
    A(f"s_add_u32 s{sT}, s{sT}, {RED}")
    A(f"v_lshl_add_u32 v{vT}, v{vL}, 2, s{sT}")
    A(f"v_and_b32 v{vT+1}, 31, v{vL}")
    A(f"v_lshlrev_b32 v{vT+1}, 2, v{vT+1}")
    A(f"v_add_u32 v{vT+1}, {RED}, v{vT+1}")
    for s in range(4):
        A(f"s_lshl_b32 s{sT}, s{sQ+s}, 10")
        A(f"v_add_u32 v{vT+2}, s{sT}, v{vT}")
        A(f"v_add_u32 v{vT+4+s}, s{sT}, v{vT+1}")
        A(f"ds_write_b32 v{vT+2}, v{O+s}")
    A("s_waitcnt lgkmcnt(0)")
    A("s_barrier")
    for s in range(4):
        for k in range(8): A(f"ds_read_b32 v{S+8*s+k}, v{vT+4+s} offset:{128*k}")
        A("s_waitcnt lgkmcnt(0)")
    A("s_barrier")
    A(f"v_cmp_lt_u32 vcc, 31, v{vL}")
    for q in range(4):
        m = S + 8 * q
        A(f"v_max3_f32 v{m}, v{m}, v{m+1}, v{m+2}")
        A(f"v_max3_f32 v{m}, v{m}, v{m+3}, v{m+4}")
        A(f"v_max3_f32 v{m}, v{m}, v{m+5}, v{m+6}")
        A(f"v_max_f32 v{m}, v{m}, v{m+7}")
        A(f"v_xor_b32 v{m}, 0x80000000, v{m}")
        A(f"v_and_b32 v{m+1}, 0xffff0000, v{m}")
        A(f"v_sub_f32 v{m+2}, v{m}, v{m+1}")
        A(f"v_and_b32 v{m+3}, 0xffff0000, v{m+2}")
        A(f"v_sub_f32 v{m+4}, v{m+2}, v{m+3}")
        A(f"v_lshrrev_b32 v{m+1}, 16, v{m+1}")
        A(f"v_or_b32 v{m+1}, v{m+1}, v{m+3}")
        A(f"v_lshrrev_b32 v{m+4}, 16, v{m+4}")
        A(f"v_cndmask_b32 v{Q+8*q+6}, v{Q+8*q+6}, v{m+1}, vcc")
        A(f"v_cndmask_b32 v{Q+8*q+7}, v{Q+8*q+7}, v{m+4}, vcc")
    A("s_branch k2_pass")


    A("k2_aux:")
    sCOL, sTS = 27, 40
    A(f"s_getpc_b64 {sr(sTS,2)}")
    A(f"s_add_u32 s{sTS}, s{sTS}, tab_small@rel32@lo+4")
    A(f"s_addc_u32 s{sTS+1}, s{sTS+1}, tab_small@rel32@hi+12")
    A(f"s_mov_b32 s{sTS+2}, {TS_BYTES}")
    A(f"s_mov_b32 s{sTS+3}, 0x20000")
    A(f"s_mov_b32 s{sX+2}, 401408")
    A(f"s_mov_b32 s{sX+3}, 0x20000")
    A(f"s_mul_i32 s{sCOL}, s{sXC}, 28")
    A(f"s_add_u32 s{sCOL}, s{sCOL}, s{sJ}")
    A(f"s_cmp_eq_u32 s2, 224")
    A(f"s_cselect_b32 s{sCOL}, 224, s{sCOL}")
    C_ = lambda kind, mt, u: 48 * mt + 16 * kind + 4 * u
    X = 96
    YF = 160
    U0 = 192
    WT = 212
    TM = 244
    vG = 210
    A(f"v_lshrrev_b32 v{TM}, 2, v{vL}")
    A(f"v_mul_u32_u24 v{vG+1}, {WP}, v{TM}")
    A(f"v_mul_u32_u24 v{TM}, {YB}, v{TM}")
    A(f"v_and_b32 v{TM+1}, 3, v{vL}")
    A(f"v_lshl_add_u32 v{vG}, v{TM+1}, 4, v{TM}")
    A(f"v_lshl_add_u32 v{vG+1}, v{TM+1}, 4, v{vG+1}")
    A(f"s_lshr_b32 s{sT}, s{sCOL}, 5")
    A(f"s_lshl_b32 s{sT}, s{sT}, 12")
    A(f"s_and_b32 s{sT2}, s{sCOL}, 31")
    A(f"s_lshl_b32 s{sT2}, s{sT2}, 6")
    A(f"s_add_u32 s{sT}, s{sT}, s{sT2}")
    A(f"s_lshl_b32 s{sKO}, s{sCOL}, 6")
    A(f"v_lshrrev_b32 v{TM}, 5, v{vL}")
    A(f"v_bfe_u32 v{TM+1}, v{vL}, 2, 2")
    A(f"v_lshl_add_u32 v{TM}, v{TM}, 2, v{TM+1}")
    A(f"v_lshlrev_b32 v{TM}, 6, v{TM}")
    A(f"v_bfe_u32 v{TM+1}, v{vL}, 4, 1")
    A(f"v_lshl_add_u32 v{TM}, v{TM+1}, 5, v{TM}")
    A(f"v_and_b32 v{TM+1}, 3, v{vL}")
    A(f"v_lshl_add_u32 v{TM}, v{TM+1}, 3, v{TM}")
    A(f"v_add_u32 v{TM}, {LDS_Y}, v{TM}")
    own_flag()
    A(f"s_cmp_eq_u32 s{sW}, 5")
    A("s_cbranch_scc1 k2_help")
    def cld(dst, off):
        A(f"s_mov_b32 s{sT2}, {off}")
        for f in range(4): A(f"buffer_load_dwordx4 {vr(dst+4*f,4)}, v{vO16}, {sr(sTS,4)}, s{sT2} offen offset:{1024*f}")
    LC = LDS_Y + 8192
    for mt in range(2):
        for kind in range(3): cld(C_(kind, mt, 0), TS_F64 + kind * 8192 + 4096 * mt)
    for f in range(22):
        if f % 4 == 0:
            A(f"s_mov_b32 m0, {LC + 1024*f}")
            A(f"s_mov_b32 s{sT2}, {TS_F32 + 1024*f}")
        A(f"buffer_load_dwordx4 v{vO16}, {sr(sTS,4)}, s{sT2} offen offset:{1024*(f%4)} lds")
    sFI = 44
    FE = os.environ.get("FE", "0")
    def fimg():
        A(f"s_mul_i32 s{sFI}, s{sNT}, {2*28672}")
        A(f"s_mov_b32 s{sFI+1}, 0")
        A("k2_fi:")
        A(f"s_lshl_b32 m0, s{sFI+1}, 1")
        A(f"s_add_u32 s{sT2}, s{sFI}, s{sFI+1}")
        A(f"buffer_load_dwordx4 v{vO16}, {sr(sTB,4)}, s{sT2} offen lds")
        A(f"s_add_u32 s{sT2}, s{sT2}, {28672-1024}")
        A(f"buffer_load_dwordx4 v{vO16}, {sr(sTB,4)}, s{sT2} offen offset:1024 lds")
        A(f"s_add_u32 s{sFI+1}, s{sFI+1}, 1024")
        A(f"s_waitcnt vmcnt({os.environ.get('DF', 12)})")
        A(f"s_cmp_lt_u32 s{sFI+1}, 28672")
        A("s_cbranch_scc1 k2_fi")
    if FE == "1":
        A("s_cmp_ge_u32 s2, 224")
        A("s_cbranch_scc1 k2_nfi")
        fimg()
        A("k2_nfi:")
    A(f"s_lshr_b32 s{sI}, s{sCOL}, 6")
    A(f"s_add_u32 s{sI}, s{sI}, 12")
    A(f"s_and_b32 s{sVO}, s{sI}, 1")
    A(f"v_bfe_u32 v100, v{vL}, 1, 1")
    A(f"v_xor_b32 v100, s{sVO}, v100")
    A(f"v_lshrrev_b32 v101, 2, v{vL}")
    A(f"v_and_b32 v102, 1, v{vL}")
    A(f"v_mov_b32 v103, s{sI}")
    A(f"s_bfe_u32 s{sI}, s{sCOL}, 0x10005")
    flag_index(98, 100, 101, 102, 103, f"s{sI}")
    A(f"s_lshr_b32 s{sVO}, s{sCOL}, 6")
    A(f"s_lshl_b32 s{sVO}, s{sVO}, 10")
    A(f"s_add_u32 s{sVO}, s{sVO}, {WS_F1 + 512}")
    A(f"v_lshlrev_b32 v100, 12, v{vL}")
    A("s_waitcnt lgkmcnt(0)")
    A("s_barrier")
    A("s_cmp_gt_u32 s2, 224")
    A("s_cbranch_scc1 k2_auxb1")
    A(f"s_mov_b32 s{sI}, {SPIN}")
    A(f"s_mov_b32 s{sT2}, {WS_F1}")
    A("k2_py:")
    A(f"buffer_load_dwordx2 v[104:105], v98, {sr(sWS,4)}, s{sT2} offen sc1")
    A(f"buffer_load_dwordx2 v[106:107], v100, {sr(sWS,4)}, s{sVO} offen sc1")
    A(f"buffer_load_dwordx2 v[108:109], v100, {sr(sWS,4)}, s{sVO} offen offset:128 sc1")
    A("s_waitcnt vmcnt(0)")
    A("v_cmp_ne_u64 vcc, s[6:7], v[104:105]")
    A("v_cmp_ne_u64 s[36:37], s[6:7], v[106:107]")
    A("v_cmp_ne_u64 s[38:39], s[6:7], v[108:109]")
    A("s_nop 1")
    A("s_or_b64 vcc, vcc, s[36:37]")
    A("s_or_b64 vcc, vcc, s[38:39]")
    A("s_and_b64 exec, exec, vcc")
    A("s_cbranch_scc0 k2_py_done")
    A(f"s_sub_u32 s{sI}, s{sI}, 1")
    A("s_sleep 4")
    A(f"s_cmp_gt_i32 s{sI}, 0")
    A("s_cbranch_scc1 k2_py")
    A("k2_py_done:")
    A("s_mov_b64 exec, -1")
    ST.at(12)
    A("s_setprio 3")
    def ydma(n):
        A(f"s_mov_b32 m0, {LDS_Y + 1024*n}")
        A(f"s_add_u32 s{sT2}, s{sT}, {WS_Y + (n>>2)*2048 + (n&3)*16*YB}")
        A(f"buffer_load_dwordx4 v{vG}, {sr(sWS,4)}, s{sT2} offen sc1 lds")
    def wld(f):
        return [f"s_add_u32 s{sT2}, s{sKO}, {WS_W + f*16*WP}",
                f"buffer_load_dwordx4 {vr(WT+4*f,4)}, v{vG+1}, {sr(sWS,4)}, s{sT2} offen sc1"]
    for n in range(8): ydma(n)
    for f in range(8):
        for x in wld(f): A(x)
    ST.at(0)
    A("s_waitcnt vmcnt(8)")
    ST.at(1)
    for p in range(2):
        for u in range(4):
            A(f"ds_read_b64_tr_b16 {vr(YF+16*p+4*u,2)}, v{TM} offset:{4096*p+1024*u}")
            A(f"ds_read_b64_tr_b16 {vr(YF+16*p+4*u+2,2)}, v{TM} offset:{4096*p+1024*u+512}")
    A("s_waitcnt lgkmcnt(0)")
    Yr = lambda u: vr(YF+4*u,4)
    Yi = lambda u: vr(YF+16+4*u,4)
    mf = lambda d, a, b, first=False: f"v_mfma_f32_32x32x16_bf16 {vr(d,16)}, {a}, {b}, {'0' if first else vr(d,16)}"
    cf = lambda kind, mt, u: vr(C_(kind, mt, u), 4)
    def p3(mt):
        L = []
        for u in range(4):
            L += [mf(X+32*mt, cf(0, mt, u), Yr(u), u == 0), mf(X+32*mt+16, cf(0, mt, u), Yi(u), u == 0)]
        for u in range(4):
            L += [mf(X+32*mt, cf(1, mt, u), Yi(u)), mf(X+32*mt+16, cf(2, mt, u), Yr(u))]
        return L
    Ur = lambda u: (U0 + 4*u) if u < 2 else (YF + 4*u)
    Ui = lambda u: (U0 + 8 + 4*u) if u < 2 else (YF + 16 + 4*u)
    def cmul_pack(xr0, xi0, cr, ci, dr, di):
        L = []
        for i in range(4):
            L += [f"v_mul_f32 v{TM+8+i}, v{xr0+i}, v{cr(i)}", f"v_mul_f32 v{xr0+i}, v{xr0+i}, v{ci(i)}"]
        for i in range(4):
            L += [f"v_fma_f32 v{TM+8+i}, -v{xi0+i}, v{ci(i)}, v{TM+8+i}", f"v_fma_f32 v{xr0+i}, v{xi0+i}, v{cr(i)}, v{xr0+i}"]
        L += [f"v_cvt_pk_bf16_f32 v{dr}, v{TM+8}, v{TM+9}", f"v_cvt_pk_bf16_f32 v{dr+1}, v{TM+10}, v{TM+11}",
              f"v_cvt_pk_bf16_f32 v{di}, v{xr0}, v{xr0+1}", f"v_cvt_pk_bf16_f32 v{di+1}, v{xr0+2}, v{xr0+3}"]
        return L
    def wmul(mt):
        L = []
        for g in range(4):
            w = WT + 4 * (4 * mt + g)
            for i in range(4):
                op = "v_and_b32 v{}, 0xffff0000, v{}" if i & 1 else "v_lshlrev_b32 v{}, 16, v{}"
                L += [op.format(TM + i, w + (i >> 1)), op.format(TM + 4 + i, w + 2 + (i >> 1))]
            u = 2 * mt + (g >> 1)
            L += cmul_pack(X+32*mt+4*g, X+32*mt+16+4*g, lambda i: TM + i, lambda i: TM + 4 + i, Ur(u) + 2*(g&1), Ui(u) + 2*(g&1))
        return L
    def p4(nt, us):
        L = []
        for u in us:
            L += [mf(X+32*nt, vr(Ur(u),4), cf(0, nt, u), u == 0), mf(X+32*nt+16, vr(Ui(u),4), cf(0, nt, u), u == 0)]
        for u in us:
            L += [mf(X+32*nt, vr(Ui(u),4), cf(2, nt, u)), mf(X+32*nt+16, vr(Ur(u),4), cf(1, nt, u))]
        return L
    Tr = lambda nt: YF if nt == 0 else U0
    Ti = lambda nt: YF + 16 if nt == 0 else U0 + 8
    TW = lambda nt: 48 * nt
    F32 = WT
    def twid(nt):
        L = []
        for g in range(4):
            L += cmul_pack(X+32*nt+4*g, X+32*nt+16+4*g, lambda i: TW(nt) + 4*g + i, lambda i: TW(nt) + 16 + 4*g + i, Tr(nt) + 2*g, Ti(nt) + 2*g)
        return L
    def p5(nt):
        L = []
        for t in range(2):
            L += [mf(X+32*nt, vr(F32+4*t,4), vr(Tr(nt)+4*t,4), t == 0), mf(X+32*nt+16, vr(F32+4*t,4), vr(Ti(nt)+4*t,4), t == 0)]
        for t in range(2):
            L += [mf(X+32*nt, vr(F32+16+4*t,4), vr(Ti(nt)+4*t,4)), mf(X+32*nt+16, vr(F32+8+4*t,4), vr(Tr(nt)+4*t,4))]
        return L
    sZR, sZI = 29, 30
    def outp(nt):
        L = []
        for p in range(2):
            z = X + 32*nt + 16*p; P = TW(nt) + 8*p
            for r in range(8): L.append(f"v_cvt_pk_bf16_f32 v{P+r}, v{z+2*r}, v{z+2*r+1}")
            L.append("s_nop 1")
            for t in range(2):
                L += [f"v_permlane32_swap_b32 v{P+4*t}, v{P+4*t+2}", f"v_permlane32_swap_b32 v{P+4*t+1}, v{P+4*t+3}"]
            for t in range(2):
                L.append(f"ds_write_b128 v{vG}, {vr(P+4*t,4)} offset:{4096*p+2048*nt+32*t}")
        return L
    def outst():
        A("s_waitcnt lgkmcnt(0)")
        for k in range(8): A(f"ds_read_b128 {vr(X+4*k,4)}, v{vG+1} offset:{1024*k}")
        for k in range(8):
            A(f"s_waitcnt lgkmcnt({7-k})")
            A(f"buffer_store_dwordx4 {vr(X+4*k,4)}, v{vO16}, {sr(sWS,4)}, s{sZR+(k>>2)} offen offset:{1024*(k&3)} sc1")
    for x in p3(0): A(x)
    ST.at(2)
    A("s_waitcnt vmcnt(4)")
    A("s_nop 7")
    for x in merge(p3(1), wmul(0)): A(x)
    A("s_waitcnt vmcnt(0)")
    A("s_nop 7")
    for x in merge(p4(0, (0, 1)), wmul(1)): A(x)
    for x in p4(0, (2, 3)): A(x)
    ST.at(3)
    A(f"v_add_u32 v{vG+1}, {LDS_Y}, v{vO16}")
    def lcd(dst, off, n):
        for f in range(n): A(f"ds_read_b128 {vr(dst+4*f,4)}, v{vG+1} offset:{8192 + off - TS_F32 + 1024*f}")
    lcd(TW(0), TS_TW, 8); lcd(F32, TS_F32, 6)
    A(f"s_lshr_b32 s{sT}, s{sCOL}, 1")
    A(f"s_and_b32 s{sT2}, s{sCOL}, 1")
    A(f"s_mul_i32 s{sT2}, s{sT2}, 224")
    A(f"s_add_u32 s{sT}, s{sT}, s{sT2}")
    A(f"s_mul_i32 s{sT}, s{sT}, {ZP}")
    A(f"s_add_u32 s{sZR}, s{sT}, {WS_Z}")
    A(f"s_add_u32 s{sZI}, s{sZR}, {112*ZP}")
    A(f"s_cmp_eq_u32 s{sCOL}, 0")
    A(f"s_cselect_b32 s{sZI}, {WS_G + 0x4000}, s{sZI}")
    A(f"s_cmp_eq_u32 s{sCOL}, 224")
    A(f"s_cselect_b32 s{sZI}, {WS_G + 0x6000}, s{sZI}")
    A(f"v_and_b32 v{vG}, 31, v{vL}")
    A(f"v_lshlrev_b32 v{vG}, 6, v{vG}")
    A(f"v_lshrrev_b32 v{TM}, 5, v{vL}")
    A(f"v_lshl_add_u32 v{vG}, v{TM}, 4, v{vG}")
    A(f"v_add_u32 v{vG}, {LDS_Y}, v{vG}")
    A("s_waitcnt lgkmcnt(6)")
    for x in merge(p4(1, (0, 1, 2, 3)), twid(0)): A(x)
    lcd(TW(1), TS_TW + 8192, 8)
    ST.at(4)
    A("s_waitcnt lgkmcnt(0)")
    for x in merge(p5(0), twid(1)): A(x)
    A("s_nop 1")
    for x in merge(p5(1), outp(0)): A(x)
    A("s_nop 7")
    for x in outp(1): A(x)
    outst()
    ST.at(5)
    A("s_setprio 0")
    A(f"s_lshl_b32 s{sT}, s{sCOL}, 7")
    A(f"s_add_u32 s{sT}, s{sT}, {WS_FZ}")
    A(f"v_mov_b32 v{TM+4}, 0")
    A(f"v_mov_b32 v{TM+6}, s6")
    A(f"v_mov_b32 v{TM+7}, s7")
    A("s_mov_b64 exec, 1")
    A("s_waitcnt vmcnt(0)")
    ST.at(6)
    A(f"buffer_store_dwordx2 {vr(TM+6,2)}, v{TM+4}, {sr(sWS,4)}, s{sT} offen sc1")
    A("s_mov_b64 exec, -1")
    A("s_cmp_ge_u32 s2, 224")
    A("s_cbranch_scc1 k2_auxw")
    A(f"v_lshrrev_b32 v{TM}, 3, v{vL}")
    A(f"v_and_b32 v{TM+1}, 7, v{vL}")
    A(f"v_bfe_u32 v{TM+2}, v{vL}, 4, 1")
    A(f"v_lshlrev_b32 v{TM+2}, 2, v{TM+2}")
    A(f"v_xor_b32 v{TM+1}, v{TM+1}, v{TM+2}")
    A(f"v_lshlrev_b32 v{TM+1}, 4, v{TM+1}")
    A(f"v_mul_u32_u24 v{TM+2}, {ZP}, v{TM}")
    A(f"v_add_u32 v{TM+2}, v{TM+2}, v{TM+1}")
    def image(name, lds, vaddr, srd, pitch, flag, depth):
        A(f"s_mov_b32 s{sI}, {lds}")
        A(f"{name}:")
        A(f"s_mov_b32 m0, s{sI}")
        for i in range(4):
            if i: A(f"s_add_u32 s{sT}, s{sT}, {8*pitch-1024}")
            else: A("s_nop 0")
            A(f"buffer_load_dwordx4 v{vaddr}, {srd}, s{sT} offen offset:{1024*i} {flag} lds")
        A(f"s_add_u32 s{sT}, s{sT}, {8*pitch+3072}")
        A(f"s_add_u32 s{sI}, s{sI}, 4096")
        A(f"s_waitcnt vmcnt({depth})")
        A(f"s_cmp_lt_u32 s{sI}, {lds+57344}")
        A(f"s_cbranch_scc1 {name}")
    def poll(name, lines, sl):
        A(f"s_mov_b32 s{sI}, {SPIN}")
        A(f"{name}:")
        for x in lines: A(x)
        A("s_cmp_eq_u64 vcc, -1")
        A(f"s_cbranch_scc1 {name}_done")
        A(f"s_sub_u32 s{sI}, s{sI}, 1")
        A(f"s_sleep {sl}")
        A(f"s_cmp_lg_u32 s{sI}, 0")
        A(f"s_cbranch_scc1 {name}")
        A(f"{name}_done:")
    ST.at(7)
    A(f"s_sleep {os.environ.get('ZD', 6)}")
    A(f"v_lshlrev_b32 v4, 7, v{vL}")
    A(f"v_add_u32 v5, 0x6000, v4")
    A(f"v_min_u32 v5, {224*128}, v5")
    A(f"s_lshr_b32 s{sT}, s{sMT}, 1")
    A(f"s_and_b32 s{sT2}, s{sT}, 3")
    A(f"s_add_u32 s{sT2}, s{sT2}, 28")
    A(f"s_lshl_b32 s{sT2}, s{sT2}, 2")
    A(f"s_lshr_b32 s{sT}, s{sT}, 2")
    A(f"s_add_u32 s{sT2}, s{sT2}, s{sT}")
    A(f"s_lshl_b32 s{sT2}, s{sT2}, 11")
    A(f"s_add_u32 s{sT2}, s{sT2}, {WS_F1 - WS_FZ + 1024 + 256}")
    A(f"v_writelane_b32 v5, s{sT2}, 62")
    A(f"s_add_u32 s{sT2}, s{sT2}, 128")
    A(f"v_writelane_b32 v5, s{sT2}, 63")
    A(f"s_mov_b32 s{sI}, {SPIN}")
    A(f"s_mov_b32 s{sT}, {WS_FZ}")
    A(f"s_mov_b32 s{sT2}, {WS_FZ + 0x2000}")
    A(f"s_mov_b32 s{sKO}, {WS_FZ + 0x4000}")
    A("k2_pz:")
    A(f"buffer_load_dwordx2 v[12:13], v4, {sr(sWS,4)}, s{sT} offen sc1")
    A(f"buffer_load_dwordx2 v[14:15], v4, {sr(sWS,4)}, s{sT2} offen sc1")
    A(f"buffer_load_dwordx2 v[16:17], v4, {sr(sWS,4)}, s{sKO} offen sc1")
    A(f"buffer_load_dwordx2 v[18:19], v5, {sr(sWS,4)}, s{sT} offen sc1")
    A("s_waitcnt vmcnt(0)")
    A("v_cmp_ne_u64 vcc, s[6:7], v[12:13]")
    A("v_cmp_ne_u64 s[36:37], s[6:7], v[14:15]")
    A("v_cmp_ne_u64 s[38:39], s[6:7], v[16:17]")
    A("v_cmp_ne_u64 s[62:63], s[6:7], v[18:19]")
    A("s_nop 1")
    A("s_or_b64 vcc, vcc, s[36:37]")
    A("s_or_b64 vcc, vcc, s[38:39]")
    A("s_or_b64 vcc, vcc, s[62:63]")
    A("s_and_b64 exec, exec, vcc")
    A("s_cbranch_scc0 k2_pz_done")
    A(f"s_sub_u32 s{sI}, s{sI}, 1")
    A(f"s_sleep {os.environ.get('ZSL', 6)}")
    A(f"s_cmp_gt_i32 s{sI}, 0")
    A("s_cbranch_scc1 k2_pz")
    A("k2_pz_done:")
    A("s_mov_b64 exec, -1")
    ST.at(8)
    A(f"s_lshl_b32 s{sT}, s{sMT}, 7")
    A(f"s_add_u32 s{sT}, s{sT}, {WS_Z}")
    image("k2_imz", LZ, TM+2, sr(sWS,4), ZP, os.environ.get("ZF", "sc1"), int(os.environ.get("DZ", 56)))
    A("k2_auxw:")
    ST.at(9)
    A("k2_auxb1:")
    A(f"v_lshrrev_b32 v{vWD}, 3, v{vL}")
    A(f"v_and_b32 v{vT+6}, 7, v{vL}")
    A(f"v_bfe_u32 v{vT+7}, v{vL}, 4, 1")
    A(f"v_lshlrev_b32 v{vT+7}, 2, v{vT+7}")
    A(f"v_xor_b32 v{vT+6}, v{vT+6}, v{vT+7}")
    A(f"v_mul_u32_u24 v{vWD}, 896, v{vWD}")
    A(f"v_lshl_add_u32 v{vWD}, v{vT+6}, 4, v{vWD}")
    A("s_barrier")
    A("s_barrier")
    A("s_cmp_ge_u32 s2, 224")
    A("s_cbranch_scc1 k2_chk")
    A(f"s_lshl_b32 s{sT}, s{sNT}, 7")
    A(f"s_add_u32 s{sT}, s{sT}, {64*896}")
    for i in range(48):
        if i % 4 == 0: A(f"s_mov_b32 m0, {RED + 1024*i}")
        if i: A(f"s_add_u32 s{sT}, s{sT}, {8*896-1024 if i % 4 else 8*896+3072}")
        if i == 47: A("s_mov_b32 exec_hi, 0x00ffffff")
        A(f"buffer_load_dwordx4 v{vWD}, {sr(sX,4)}, s{sT} offen offset:{1024*(i%4)} lds")
    A("s_mov_b32 exec_hi, -1")
    A(f"s_mov_b32 s{sWS_}, s{sT}")
    A("s_waitcnt vmcnt(48)")
    A("s_branch k2_chk")
    A("k2_auxfb:")
    A("s_waitcnt vmcnt(0)")
    A("s_barrier")
    A("s_barrier")
    A("s_barrier")
    A("s_branch k2_auxb1")
    A("k2_auxp3:")
    A(f"v_and_b32 v4, 31, v{vL}")
    A("v_lshlrev_b32 v4, 7, v4")
    A(f"s_lshl_b32 s{sT}, s{sMT}, 12")
    A(f"s_add_u32 s{sT}, s{sT}, {WS_FO}")
    ST.at(10)
    A(f"s_mov_b32 s{sKO}, s{sT}")
    if int(os.environ.get("OD", 0)): A(f"s_sleep {os.environ.get('OD')}")
    A(f"buffer_load_dwordx2 v[0:1], v4, {sr(sWS,4)}, s{sKO} offen sc1")
    A(f"s_mov_b32 m0, {RED + 1024*44}")
    A("s_mov_b32 exec_lo, 0")
    A("s_mov_b32 exec_hi, 0xff000000")
    A(f"buffer_load_dwordx4 v{vWD}, {sr(sX,4)}, s{sWS_} offen offset:3072 lds")
    A("s_mov_b64 exec, -1")
    A(f"s_mov_b32 s{sT}, s{sKO}")
    A("s_waitcnt vmcnt(0)")
    A("v_cmp_eq_u64 vcc, s[6:7], v[0:1]")
    A("s_nop 1")
    A("s_cmp_eq_u64 vcc, -1")
    A("s_cbranch_scc1 k2_po_done")
    poll("k2_po", [f"buffer_load_dwordx2 v[0:1], v4, {sr(sWS,4)}, s{sT} offen sc1", "s_waitcnt vmcnt(0)", "v_cmp_eq_u64 vcc, s[6:7], v[0:1]", "s_nop 1"], int(os.environ.get("OSL", 2)))
    ST.at(11)
    A("s_barrier")
    A(f"s_lshl_b32 s{sT}, s{sNT}, 7")
    for i in range(8):
        if i % 4 == 0: A(f"s_mov_b32 m0, {LW + 1024*i}")
        if i: A(f"s_add_u32 s{sT}, s{sT}, {8*896-1024 if i % 4 else 8*896+3072}")
        A(f"buffer_load_dwordx4 v{vWD}, {sr(sX,4)}, s{sT} offen offset:{1024*(i%4)} lds")
    A("s_waitcnt vmcnt(0)")
    A("s_barrier")
    A("s_branch k2_dump" if DIAG else "s_endpgm")
    A("k2_help:")
    A("s_waitcnt lgkmcnt(0)")
    A("s_barrier")
    A("s_cmp_ge_u32 s2, 224")
    A("s_cbranch_scc1 k2_end")
    A(f"s_sleep {os.environ.get('HD', 40)}")
    fimg()
    A(f"s_and_b32 s{sT}, s{sJ}, 3")
    A(f"s_mul_i32 s{sT}, s{sT}, {112*896}")
    A(f"s_lshl_b32 s{sT2}, s{sNT}, 7")
    A(f"s_add_u32 s{sT}, s{sT}, s{sT2}")
    A(f"v_mul_u32_u24 v8, 896, v{vL}")
    A(f"buffer_load_dword v9, v8, {sr(sX,4)}, s{sT} offen")
    A(f"s_add_u32 s{sT}, s{sT}, {48*896}")
    A(f"buffer_load_dword v10, v8, {sr(sX,4)}, s{sT} offen")
    A("s_waitcnt vmcnt(0)")
    A("s_endpgm")
    if DIAG: A("k2_dump:")
    ST.dump(sWS, sW, 5, 250)
    A("k2_end:")
    A("s_endpgm")
    body = A.L[loop_start:loop_end]
    rep = check_seq(body + body)
    assert not rep, rep
    return A.L, NV, 102 if DIAG else 64
```

```python
import sys, numpy as np
from asmlib import *
import os, importlib
gen_k1 = importlib.import_module(os.environ.get('K1', 'k1')).gen_k1
from k2 import gen_k2, K2_LDS, TS_BYTES, TAB_INV_BYTES
NAME = "gated_mix__spectral_gfnet__softmax_full_mha__prompt"
def bf16(x):
    u = np.asarray(x, dtype=np.float32).view(np.uint32).astype(np.uint64)
    return ((u + 0x7fff + ((u >> 16) & 1)) >> 16).astype(np.uint16)
def perm(u, h, j): return 16 * u + 8 * (j >> 2) + 4 * h + (j & 3)
def cs(num, den):
    num = num % den
    a = 2 * np.pi * num / den
    c, s = np.cos(a), np.sin(a)
    c = np.where(np.abs(c) < 1e-12, 0.0, c); s = np.where(np.abs(s) < 1e-12, 0.0, s)
    return c, s
def small_tables():
    l = np.arange(64); m = l & 31; h = l >> 5
    out = []
    F = np.zeros((3, 2, 4, 64, 8))
    for mt in range(2):
        for u in range(4):
            for j in range(8):
                c, s = cs((32 * mt + m) * perm(u, h, j), 64)
                F[0, mt, u, :, j] = c; F[1, mt, u, :, j] = s; F[2, mt, u, :, j] = -s
    out.append(bf16(F).tobytes())
    G = np.zeros((3, 2, 64, 8))
    for t in range(2):
        for j in range(8):
            c, s = cs(m * perm(t, h, j), 32)
            G[0, t, :, j] = c; G[1, t, :, j] = s; G[2, t, :, j] = -s
    out.append(bf16(G).tobytes())
    T = np.zeros((2, 2, 4, 64, 4), np.float32)
    for nt in range(2):
        for g in range(4):
            for i in range(4):
                c, s = cs((32 * nt + m) * (8 * g + 4 * h + i), 2048)
                T[nt, 0, g, :, i] = c; T[nt, 1, g, :, i] = s
    out.append(T.tobytes())
    b = b"".join(out)
    assert len(b) == TS_BYTES
    q = np.frombuffer(b, dtype=np.uint64)
    return [".quad " + ",".join(hex(int(v)) for v in q[i:i+8]) for i in range(0, len(q), 8)]
def big_tables():
    L = []
    c448, _ = cs(np.arange(448), 448)
    for i, v in enumerate(bf16(c448)): L.append(f".set C{i},{int(v)}")
    SD = 2048 * 448
    for i, v in enumerate(bf16(2 * c448 / SD)): L.append(f".set D{i},{int(v)}")
    L.append(f".set D448,{int(bf16([1/SD])[0])}"); L.append(f".set D449,{int(bf16([-1/SD])[0])}")
    for kr in range(448):
        if kr <= 112: k2, ph = 2 * kr, 0
        elif kr < 224: k2, ph = 2 * (kr - 112), 112
        elif kr < 336: k2, ph = 2 * (kr - 224) + 1, 0
        else: k2, ph = 2 * (kr - 336) + 1, 112
        md, ad = 448, 0
        if kr == 0: ad = 448
        if kr == 112: k2, md, ad = 1, 2, 448
        L.append(f".set KA{kr},{k2}\n.set KB{kr},{ph}\n.set KC{kr},{md}\n.set KD{kr},{ad}")
    L.append(r""".altmacro
.macro FW4 a,b,c,d
.short C\a,C\b,C\c,C\d
.endm
.macro LK i
.short D\i
.endm
.macro IV1 d,r
LK %((KA\r*\d+KB\r)%KC\r+KD\r)
.endm
.p2align 8
tab_fwd:
.set td,0
.rept 448
.set tg,0
.rept 14
.set tk,(tg>>1)*32
.set tp,(tg&1)*112
.rept 8
FW4 %((tk*td+tp)%448),%(((tk+1)*td+tp)%448),%(((tk+2)*td+tp)%448),%(((tk+3)*td+tp)%448)
.set tk,tk+4
.endr
.set tg,tg+1
.endr
FW4 %((224*td)%448),112,112,112
.fill 60,2,0
.set td,td+1
.endr
.p2align 8
tab_inv:
.set tn,0
.rept 14
.set tc,0
.rept 28
.set tr,tc*16
.set tl,0
.rept 64
.set tj,0
.rept 8
IV1 %(tn*32+(tl&31)),%(tr+(tl>>5)*8+tj)
.set tj,tj+1
.endr
.set tl,tl+1
.endr
.set tc,tc+1
.endr
.set tn,tn+1
.endr
.noaltmacro""")
    return L
def desc(name, nv, ns):
    return f""".p2align 6
.amdhsa_kernel {name}
  .amdhsa_next_free_vgpr {nv}
  .amdhsa_next_free_sgpr {ns}
  .amdhsa_accum_offset {(nv+3)//4*4}
  .amdhsa_group_segment_fixed_size 0
  .amdhsa_kernarg_size 80
  .amdhsa_user_sgpr_count 2
  .amdhsa_user_sgpr_kernarg_segment_ptr 1
  .amdhsa_system_sgpr_workgroup_id_x 1
.end_amdhsa_kernel"""
import os
def main(path, which=tuple(int(c) for c in os.environ.get('WHICH', '123'))):
    n = NAME + "_kernel"
    o = ["; out = g * irfft2(rfft2(x) * W) + (1 - g) * MHA(x) @ wo,  g = sigmoid(x . gate_w);  S = 2048, D = 448, 16 heads x 28",
         "; @launch grid=(256,1,1) block=(384,1,1) lds=163840",
         "; One launch, one workgroup per CU (160 KB LDS), 6 waves.  Rows are grouped in 64 tiles b = {b + 64 a, a < 32}.",
         "; phase 1 (k1_*): [Q K V | DFT over d] = x @ [wqkv | cos/sin table], 128 x 128 tile per workgroup, waves 0-3 MFMA,",
         ";   waves 4,5 LDS-DMA loaders; DFT tiles also apply the 32-point step over a (twiddle folded in), the gate logit rides",
         ";   in a free table column; the loaders transpose W.  Results are written in MFMA fragment order.",
         "; phase 2 (k2_*): waves 0-3 attention for (head, 128 queries), keys split over the waves; S^T = K Q^T, P = exp2(S) feeds",
         ";   a sparse MFMA directly (upper halves selected), row sums come from a ones column of V.  Softmax shift 0 is checked",
         ";   at run time (2^-60 <= sum <= 2^60, O finite); otherwise the workgroup recomputes with the true row maximum.",
         ";   wave 4: one spectral column (64-point DFT, x W, inverse 64- and 32-point steps); wave 5: table image for phase 3.",
         "; phase 3 (k2_p3): 64 x 64 output tile = g * Z @ Finv + (1 - g) * O @ wo.",
         "; Hand-offs between workgroups: write-through (sc1) stores, vmcnt(0), then a flag line holding this launch's 64-bit tag",
         ";   (published by workgroup 0 through d_debug); consumers poll with sc1 loads.  s_sleep is only back-off of these polls",
         ";   (reading a flag line that is about to be written slows its writer) and of background DMA; every spin is bounded.",
         '.amdgcn_target "amdgcn-amd-amdhsa--gfx950"', f".set TAB_INV_BYTES,{TAB_INV_BYTES}", ".text"]
    L1, _, ns = gen_k1(); L2, nv, _ = gen_k2()
    nt = os.environ.get("NT", "")
    def f(l):
        if "A" in nt and "s[8:11]" in l and l.endswith("lds"): return l[:-3] + "nt lds"
        if "B" in nt and "s[12:15]" in l and l.endswith("lds"): return l[:-3] + "nt lds"
        if "W" in nt and "buffer_load_ushort" in l: return l + " nt"
        return l
    X = os.environ.get("X", "")
    ic = L1.index("k1_comp:")
    if "s" in X: L1 = [l for i, l in enumerate(L1) if not (i < ic and "buffer_store_dwordx4" in l)]
    if "w" in X: L1 = [l for l in L1 if "buffer_load_ushort" not in l and "ds_bpermute" not in l]
    if "f" in X: L1 = [l for i, l in enumerate(L1) if not (i > ic and ("v_mul_f32" in l or "v_cvt_pk" in l or "v_cndmask" in l or "ds_write_b128" in l))]
    if "d" in X: L1 = [l for i, l in enumerate(L1) if not (i > ic and "ds_write_b128" in l)]
    pl = os.environ.get("PLAIN", "0") == "1"
    def f2(l):
        if pl and ("buffer_load_dwordx4" in l or "buffer_load_dword v" in l): return l.replace(" sc1", "")
        return l
    L = [f(l) for l in L1] + [f2(l) for l in L2]
    notes = {"k1_comp:": "phase 1, MFMA waves", "k1_vd:": "V and DFT tiles (lane = column)", "k1_dft:": "DFT tiles: second row pair + 32-point step",
             "k1_pf:": "end of phase 1", "k2_start:": "phase 2", "k2_pa:": "wait for the q-tile and the first key tiles",
             "k2_loop:": "key loop, 3 tiles per trip", "k2_x1:": "last key tile (3 register-set variants), partial sums go to LDS",
             "k2_red:": "cross-wave reduction, normalisation, range check, publication of O", "k2_p3:": "phase 3",
             "k2_fail:": "softmax range check failed: true maximum, then a second pass", "k2_aux:": "wave 4: spectral column (wave 5 leaves at k2_help)",
             "k2_pz:": "wait for all columns of Z", "k2_auxp3:": "wait for the O rows of this tile", "k2_help:": "wave 5"}
    L = [x for l in L for x in (["; ---- " + notes[l], l] if l in notes else [l])]
    L = [l + "    ; poll / DMA back-off" if l.strip().startswith("s_sleep") else l for l in L]
    rep = []
    L = fix_hazards(L, rep)
    print("lines", len(L), "nops inserted", len(rep), file=sys.stderr)
    if "-v" in sys.argv:
        for r in rep: print("   ", r, file=sys.stderr)
    o += [f".globl {n}", ".p2align 8", f".type {n},@function", f"{n}:"] + L
    ds = [desc(n, nv, ns)]
    o.append(".fill 2048,4,0xbf810000")
    o.append('.section .rodata,"a"')
    o += ds
    o.append(".p2align 8"); o.append("tab_small:"); o += small_tables()
    o.append(".fill 2048,1,0")
    o += big_tables()
    open(path, "w").write("\n".join(o) + "\n")
if __name__ == "__main__":
    main(sys.argv[1] if len(sys.argv) > 1 and not sys.argv[1].startswith("-") else f"cdna_kernels/{NAME}.s")
```

```python
from asmlib import *
import math, os, struct
WS_Q, WS_K, WS_V, WS_Y, WS_W, WS_O, WS_Z, WS_G = 0x0, 0x200000, 0x400000, 0x600000, 0x840000, 0xA80000, 0xC80000, 0xE50000
WS_FO, WS_FZ, WS_F1 = 0xE60000, 0xE90000, 0xEA0000
SPIN = 200000
YB, WP, ZP = 32896, 16512, 4224
WS_BYTES = 0x1000000
def f2u(x): return struct.unpack("<I", struct.pack("<f", x))[0]
QSCALE = f2u(28 ** -0.5 * math.log2(math.e))
STF = os.environ.get('STF', 'sc1')
STF0 = os.environ.get('STF0', STF)
STFW = os.environ.get('STFW', STF)
WB = int(os.environ.get('WB', -1))
LA = 114688
NB = int(os.environ.get('NB', 12))
K1_LDS = 163840
WPOS = int(os.environ.get("WPOS", 5))

def get_tag(A, lab, stmp, vt):
    A("s_load_dwordx2 s[6:7], s[4:5], 0")
    A(f"s_mov_b32 s{stmp}, {SPIN}")
    A("s_waitcnt lgkmcnt(0)")
    A("s_cmp_lg_u32 s6, 0")
    A(f"s_cbranch_scc1 {lab}_done")
    A(f"v_mov_b32 v{vt}, 0")
    A(f"{lab}:")
    A(f"global_load_dwordx2 {vr(vt+2,2)}, v{vt}, s[4:5] sc1")
    A(f"s_sub_u32 s{stmp}, s{stmp}, 1")
    A("s_waitcnt vmcnt(0)")
    A(f"v_readfirstlane_b32 s6, v{vt+2}")
    A(f"v_readfirstlane_b32 s7, v{vt+3}")
    A("s_cmp_lg_u32 s6, 0")
    A(f"s_cbranch_scc1 {lab}_done")
    A("s_sleep 4")
    A(f"s_cmp_lg_u32 s{stmp}, 0")
    A(f"s_cbranch_scc1 {lab}")
    A(f"{lab}_done:")

def gen_k1():
    A = Asm()
    sX, sB, sWS, sWR, sWI = 8, 12, 16, 20, 24
    sPC = 28
    sW, sMT, sNT, sC, sCA, sCB, sPITCH, sP4, sT, sT2, sBB = 30, 31, 32, 33, 34, 35, 36, 37, 38, 39, 40
    sGS, sLA, sLB, sP64, sP384, sJ, sW8 = 41, 42, 43, 44, 45, 46, 47
    sW0, sWST, sC0 = 48, 52, 53
    sGW, sPAR, sB2 = 60, 58, 59
    sDB = 4
    vL, vA0, vA1, vB = 64, 65, 66, 67
    vRA, vRB = 68, 72
    FR = 76
    MB = 124
    WL, vGW = 76, 112
    vT = 172
    vWO, vST = 188, 189
    PK = 192
    vPF = 224
    NV = 228
    D = 3

    A("s_cmp_ge_u32 s2, 256")
    A("s_cbranch_scc1 k2_end")
    ST = Stamps(A, 0); ST.begin()
    A(f"s_load_dwordx2 {sr(sX,2)}, s[0:1], 0")
    A(f"s_load_dwordx2 {sr(sB,2)}, s[0:1], 32")
    A(f"s_load_dwordx2 {sr(sWS,2)}, s[0:1], 72")
    A(f"s_load_dwordx2 {sr(sWR,2)}, s[0:1], 8")
    A(f"s_load_dwordx2 {sr(sWI,2)}, s[0:1], 16")
    A(f"s_load_dwordx2 {sr(sGW,2)}, s[0:1], 48")
    A(f"s_load_dwordx2 {sr(sDB,2)}, s[0:1], 64")
    A(f"s_getpc_b64 {sr(sPC,2)}")
    A("k1_pc:")
    A(f"v_and_b32 v{vL}, 63, v0")
    A(f"v_lshrrev_b32 v{vT}, 6, v0")
    A(f"v_mul_u32_u24 v{vT+1}, 24, v{vT}")
    A(f"v_add_lshl_u32 v{vT+1}, v{vT+1}, v{vL}, 7")
    A("s_mov_b64 exec, 0xffffff")
    A(f"global_load_dword v{vPF}, v{vT+1}, {sr(sPC,2)}")
    A("s_mov_b64 exec, -1")
    A(f"v_readfirstlane_b32 s{sW8}, v{vT}")
    A(f"s_lshr_b32 s{sJ}, s2, 3")
    A(f"s_and_b32 s{sT}, s{sJ}, 3")
    A(f"s_lshr_b32 s{sT2}, s{sJ}, 2")
    A(f"s_bfe_u32 s{sMT}, s2, 0x20001")
    A(f"s_lshl_b32 s{sMT}, s{sMT}, 2")
    A(f"s_add_u32 s{sMT}, s{sMT}, s{sT}")
    A(f"s_and_b32 s{sNT}, s2, 1")
    A(f"s_lshl_b32 s{sNT}, s{sNT}, 3")
    A(f"s_add_u32 s{sNT}, s{sNT}, s{sT2}")
    A(f"s_and_b32 s{sPAR}, s{sT2}, 1")
    A(f"s_lshr_b32 s{sT2}, s{sT2}, 1")
    A(f"s_add_u32 s{sC}, s{sT}, s{sT2}")
    A(f"s_lshl_b32 s{sC}, s{sC}, 1")
    A(f"s_cmp_ge_u32 s{sC}, 7")
    A(f"s_cselect_b32 s{sT}, 7, 0")
    A(f"s_sub_u32 s{sC}, s{sC}, s{sT}")
    R1 = os.environ.get("R1", "full")
    if R1 == "none": A(f"s_mov_b32 s{sC}, 0")
    if R1 == "two":
        A(f"s_and_b32 s{sC}, s{sJ}, 1")
        A(f"s_mul_i32 s{sC}, s{sC}, 3")
    if R1 == "one":
        A(f"s_and_b32 s{sC}, s{sJ}, 1")
    if R1 == "xcd":
        A(f"s_and_b32 s{sC}, s2, 7")
        A(f"s_min_u32 s{sC}, s{sC}, 6")
    A(f"s_and_b32 s{sW}, s{sW8}, 3")
    A(f"s_lshl_b32 s{sBB}, s{sMT}, 1")
    A(f"s_add_u32 s{sBB}, s{sBB}, s{sPAR}")
    A(f"s_lshl_b32 s{sBB}, s{sBB}, 1")
    A(f"s_and_b32 s{sT}, s{sW}, 1")
    A(f"s_add_u32 s{sBB}, s{sBB}, s{sT}")
    A(f"s_xor_b32 s{sB2}, s{sBB}, 2")
    A(f"s_movk_i32 s{sPITCH}, 1024")
    A(f"s_cmp_ge_u32 s{sNT}, 12")
    A(f"s_cselect_b32 s{sPITCH}, s{sPITCH}, 2688")
    A(f"s_cselect_b32 s{sGS}, 64, 56")
    A(f"s_lshl_b32 s{sLA}, s{sT}, 12")
    A(f"s_add_u32 s{sLA}, s{sLA}, {LA}")
    A(f"s_cmp_lt_u32 s{sW8}, 4")
    A("s_cbranch_scc1 k1_comp")
    A(f"s_mul_i32 s{sCA}, s{sBB}, 896")
    A(f"s_lshl_b32 s{sT}, s{sC}, 7")
    A(f"s_add_u32 s{sCA}, s{sCA}, s{sT}")
    A(f"v_lshrrev_b32 v{vT}, 3, v{vL}")
    A(f"v_mul_u32_u24 v{vA0}, 57344, v{vT}")
    A(f"v_lshrrev_b32 v{vT+1}, 4, v{vL}")
    A(f"v_and_b32 v{vT+3}, 7, v{vL}")
    A(f"v_xor_b32 v{vT+3}, v{vT+3}, v{vT+1}")
    A(f"v_lshl_add_u32 v{vA0}, v{vT+3}, 4, v{vA0}")
    A(f"v_xor_b32 v{vA1}, 64, v{vA0}")
    A(f"s_mov_b32 s{sX+2}, 1835008")
    A(f"s_mov_b32 s{sX+3}, 0x20000")
    A(f"s_mul_i32 s{sT}, s{sNT}, 224")
    A(f"s_lshl_b32 s{sT2}, s{sNT}, 8")
    A(f"s_sub_u32 s{sT2}, s{sT2}, 3072")
    A(f"s_cmp_ge_u32 s{sNT}, 12")
    A(f"s_cselect_b32 s{sCB}, s{sT2}, s{sT}")
    A(f"s_lshl_b32 s{sP4}, s{sPITCH}, 2")
    A(f"s_sub_u32 s{sP4}, s{sP4}, 1024")
    A(f"s_lshl_b32 s{sT}, s{sC}, 1")
    A(f"s_add_u32 s{sT}, s{sT}, s{sW}")
    A(f"s_lshl_b32 s{sT}, s{sT}, 5")
    A(f"s_mul_i32 s{sT}, s{sT}, s{sPITCH}")
    A(f"s_add_u32 s{sCB}, s{sCB}, s{sT}")
    A(f"s_lshl_b32 s{sLB}, s{sW}, 13")
    A(f"v_mul_u32_u24 v{vB}, s{sPITCH}, v{vT+1}")
    A(f"v_bfe_u32 v{vT+3}, v{vL}, 2, 2")
    A(f"v_xor_b32 v{vT+3}, v{vT+3}, v{vT+1}")
    A(f"v_lshlrev_b32 v{vT+3}, 2, v{vT+3}")
    A(f"v_and_or_b32 v{vT+3}, v{vL}, 3, v{vT+3}")
    A(f"v_lshl_add_u32 v{vB}, v{vT+3}, 4, v{vB}")
    A(f"s_getpc_b64 {sr(56,2)}")
    A("s_add_u32 s56, s56, tab_fwd@rel32@lo+4")
    A("s_addc_u32 s57, s57, tab_fwd@rel32@hi+12")
    A(f"s_mov_b32 s{sB+2}, 458752")
    A(f"s_mov_b32 s{sB+3}, 0x20000")
    A(f"s_cmp_ge_u32 s{sNT}, 12")
    A(f"s_cselect_b32 s{sT}, 16, 14")
    A(f"s_cmp_eq_u32 s{sNT}, 15")
    A(f"s_cselect_b32 s{sT}, 12, s{sT}")
    A(f"v_cmp_gt_u32 s[54:55], s{sT}, v{vT+3}")
    A(f"s_mov_b32 s{sC0}, s{sC}")
    A(f"s_lshl_b32 s{sP64}, s{sPITCH}, 6")
    A(f"s_mul_i32 s{sP384}, s{sP64}, 7")
    A("s_waitcnt lgkmcnt(0) ; WSB")
    A(f"s_cmp_ge_u32 s{sNT}, 12")
    A(f"s_cselect_b32 s{sB}, s56, s{sB}")
    A(f"s_cselect_b32 s{sB+1}, s57, s{sB+1}")
    A(f"s_cselect_b32 s{sB+2}, s{sB+2}, 1204224")
    Q = []
    def issue(n):
        A(f"s_add_u32 m0, s{sLA}, {8192*(n%6)}")
        for i in range(4):
            A(f"s_add_u32 s{sT}, s{sCA}, {457728*i}")
            A(f"buffer_load_dwordx4 v{vA0 + (i&1)}, {sr(sX,4)}, s{sT} offen offset:{1024*i} lds")
        Q.extend([n] * 4)
        if n < 7:
            A("s_mov_b64 exec, s[54:55]")
            for i in range(8):
                if i % 4 == 0: A(f"s_add_u32 m0, s{sLB}, {16384*n + 1024*i}")
                if i == 0: A(f"s_mov_b32 s{sT}, s{sCB}")
                else: A(f"s_add_u32 s{sT}, s{sT}, s{sP4}")
                if i == 4: A(f"s_add_u32 s{sT}, s{sT}, 4096")
                A(f"buffer_load_dwordx4 v{vB}, {sr(sB,4)}, s{sT} offen offset:{1024*(i%4)} lds")
            A("s_mov_b64 exec, -1")
            Q.extend([n] * 8)
        if n == 13: return
        A(f"s_add_u32 s{sCA}, s{sCA}, 128")
        if n < 6: A(f"s_add_u32 s{sCB}, s{sCB}, s{sP64}")
        A(f"s_add_u32 s{sC}, s{sC}, 1")
        A(f"s_cmp_eq_u32 s{sC}, 7")
        A(f"s_cselect_b32 s{sT}, 896, 0")
        if n < 6: A(f"s_cselect_b32 s{sT2}, s{sP384}, 0")
        A(f"s_cselect_b32 s{sC}, 0, s{sC}")
        A(f"s_sub_u32 s{sCA}, s{sCA}, s{sT}")
        if n < 6: A(f"s_sub_u32 s{sCB}, s{sCB}, s{sT2}")
        if n == 6:
            A(f"s_mul_i32 s{sT}, s{sPAR}, {-4*896}")
            A(f"s_add_u32 s{sCA}, s{sCA}, s{sT}")
            A(f"s_add_u32 s{sCA}, s{sCA}, {2*896}")
    def wait_for(tag):
        if tag not in Q: return
        last = max(i for i, t in enumerate(Q) if t == tag)
        A(f"s_waitcnt vmcnt({len(Q) - 1 - last})")
        del Q[:last + 1]
    ST.at(0)
    issue(0)
    A(f"s_mov_b32 s{sGW+2}, 896")
    A(f"s_mov_b32 s{sGW+3}, 0x20000")
    A(f"s_cmp_lg_u32 s{sNT}, 15")
    A("s_cbranch_scc1 k1_nog")
    A(f"v_and_b32 v{vT+4}, 31, v{vL}")
    A(f"v_lshlrev_b32 v{vT+5}, 1, v{vT+4}")
    A(f"s_lshl_b32 s{sT}, s{sW}, 6")
    A(f"s_lshl_b32 s{sT2}, s{sC0}, 7")
    A(f"s_add_u32 s{sT}, s{sT}, s{sT2}")
    for i in range(7):
        A(f"buffer_load_ushort v{vGW+i}, v{vT+5}, {sr(sGW,4)}, s{sT} offen")
        if i < 6:
            A(f"s_add_u32 s{sT}, s{sT}, 128")
            A(f"s_cmp_ge_u32 s{sT}, 896")
            A(f"s_cselect_b32 s{sT2}, 896, 0")
            A(f"s_sub_u32 s{sT}, s{sT}, s{sT2}")
    A(f"v_and_b32 v{vT+5}, 3, v{vL}")
    A(f"v_xor_b32 v{vT+5}, 3, v{vT+5}")
    A(f"v_lshlrev_b32 v{vT+5}, 6, v{vT+5}")
    A(f"v_lshl_add_u32 v{vGW+8}, v{vT+4}, 8, v{vT+5}")
    A(f"v_add_u32 v{vGW+8}, s{sLB}, v{vGW+8}")
    A(f"v_add_u32 v{vGW+9}, 0x10000, v{vGW+8}")
    A("k1_nog:")
    issue(1)
    ST.at(1)
    for r in (sWS, sWR, sWI):
        A(f"s_mov_b32 s{r+2}, {WS_BYTES if r == sWS else 921600}")
        A(f"s_mov_b32 s{r+3}, 0x20000")
    A(f"s_lshr_b32 s{sT}, s2, 4")
    A(f"s_bfe_u32 s{sT2}, s2, 0x20002")
    A(f"s_lshl_b32 s{sT2}, s{sT2}, 1")
    A(f"s_and_b32 s{sW0}, s{sW}, 1")
    A(f"s_add_u32 s{sT2}, s{sT2}, s{sW0}")
    A(f"s_lshl_b32 s{sWST}, s{sT}, 3")
    A(f"s_add_u32 s{sWST}, s{sWST}, s{sT2}")
    A(f"s_mul_i32 s{sWST}, s{sWST}, {WP}")
    A(f"s_lshl_b32 s{sW0}, s{sT}, 5")
    A(f"s_add_u32 s{sW0}, s{sW0}, s{sT2}")
    A(f"s_mul_i32 s{sW0}, s{sW0}, 1800")
    A(f"s_and_b32 s{sT}, s2, 3")
    A(f"s_lshl_b32 s{sGS}, s{sT}, 1")
    A(f"s_lshl_b32 s{sT2}, s{sGS}, 6")
    A(f"s_add_u32 s{sW0}, s{sW0}, s{sT2}")
    for i in range(1, 4): A(f"s_add_u32 s{sW0+i}, s{sW0}, {14400*i}")
    A(f"s_lshl_b32 s{sT2}, s{sGS}, 11")
    A(f"s_add_u32 s{sWST}, s{sWST}, s{sT2}")
    A(f"s_add_u32 s{sWST}, s{sWST}, {WS_W}")
    A(f"v_lshrrev_b32 v{vT}, 5, v{vL}")
    A(f"v_mul_u32_u24 v{vT}, 900, v{vT}")
    A(f"v_and_b32 v{vWO}, 31, v{vL}")
    A(f"v_lshl_add_u32 v{vWO}, v{vWO}, 1, v{vT}")
    A(f"v_lshlrev_b32 v{vST}, 4, v{vL}")
    A(f"v_and_b32 v{vT+6}, 3, v{vL}")
    A(f"v_lshlrev_b32 v{vT+6}, 6, v{vT+6}")
    A(f"v_and_or_b32 v{vT+6}, v{vL}, 60, v{vT+6}")
    A(f"s_and_b32 s{sT}, s{sNT}, 3")
    A(f"s_lshl_b32 s{sT}, s{sT}, 8")
    A(f"s_lshl_b32 s{sT2}, s{sMT}, 1")
    A(f"s_add_u32 s{sT2}, s{sT2}, s{sW}")
    A(f"s_cmp_ge_u32 s{sNT}, 4")
    A(f"s_cselect_b32 s{sT2}, s{sT2}, s{sBB}")
    A(f"s_add_u32 s{sT}, s{sT}, s{sT2}")
    A(f"s_lshl_b32 s{sT}, s{sT}, 11")
    A(f"s_lshr_b32 s{sT2}, s{sNT}, 2")
    A(f"s_lshl_b32 s{sT2}, s{sT2}, 21")
    A(f"s_add_u32 s{sB2}, s{sT}, s{sT2}")
    A(f"s_lshl_b32 s{sT}, s{sNT}, 13")
    A(f"s_mul_i32 s{sT2}, s{sBB}, {YB}")
    A(f"s_add_u32 s{sT}, s{sT}, s{sT2}")
    A(f"s_add_u32 s{sT}, s{sT}, {WS_Y - 12*8192}")
    A(f"s_movk_i32 s{sC0}, 2048")
    A(f"s_cmp_ge_u32 s{sNT}, 12")
    A(f"s_cselect_b32 s{sB2}, s{sT}, s{sB2}")
    A(f"s_cselect_b32 s{sC0}, s{sC0}, {64*2048}")
    A(f"s_lshl_b32 s{sT}, s{sW}, 12")
    A(f"v_add_u32 v{vT+7}, s{sT}, v{vST}")
    def prefetches():
        A(f"s_load_dwordx2 {sr(sGW,2)}, s[0:1], 40")
        A(f"s_getpc_b64 {sr(56,2)}")
        A("s_add_u32 s56, s56, tab_inv@rel32@lo+4")
        A("s_addc_u32 s57, s57, tab_inv@rel32@hi+12")
        A(f"s_mov_b32 s{sGW+2}, 401408")
        A(f"s_mul_i32 s{sT}, s2, {13*128}")
        A(f"v_lshl_add_u32 v{vT}, v{vL}, 7, s{sT}")
        A("s_waitcnt lgkmcnt(0)")
        A(f"s_bitcmp1_b32 s{sW}, 0")
        A(f"s_cselect_b32 s{sGW}, s56, s{sGW}")
        A(f"s_cselect_b32 s{sGW+1}, s57, s{sGW+1}")
        A("s_mov_b64 exec, 0x1fff")
        A(f"buffer_load_dword v{vPF+2}, v{vT}, {sr(sGW,4)}, 0 offen")
        A("s_mov_b64 exec, -1")
        Q.append("p")
        A(f"s_cmp_lg_u32 s{sW8}, 4")
        A("s_cbranch_scc1 k1_npf")
        A(f"s_cmp_ge_u32 s{sJ}, 8")
        A("s_cbranch_scc1 k1_npf")
        A(f"s_getpc_b64 {sr(56,2)}")
        A("s_add_u32 s56, s56, tab_small@rel32@lo+4")
        A("s_addc_u32 s57, s57, tab_small@rel32@hi+12")
        A(f"s_getpc_b64 {sr(62,2)}")
        A("s_add_u32 s62, s62, k2_start@rel32@lo+1028")
        A("s_addc_u32 s63, s63, k2_start@rel32@hi+1036")
        A(f"s_cmp_ge_u32 s{sJ}, 6")
        A(f"s_cselect_b32 s56, s62, s56")
        A(f"s_cselect_b32 s57, s63, s57")
        A(f"s_cselect_b32 s{sT}, 6, 0")
        A(f"s_sub_u32 s{sT}, s{sJ}, s{sT}")
        A(f"s_lshl_b32 s{sT}, s{sT}, 13")
        A(f"v_lshl_add_u32 v{vT}, v{vL}, 7, s{sT}")
        A(f"global_load_dword v{vPF+3}, v{vT}, s[56:57]")
        A("k1_npf:")
    PFP = int(os.environ.get('PFP', WPOS))
    if PFP < 0: prefetches()
    if os.environ.get("TOUCH", "0") == "1":
        A("s_mov_b64 exec, 1")
        A(f"buffer_load_dword v{vPF+1}, v{vST}, {sr(sWS,4)}, s{sWST} offen")
        A("s_mov_b64 exec, -1")
        Q.append("t")
    def wloads():
        for r in range(2):
            for kk in range(2):
                for p, srd in enumerate((sWR, sWI)):
                    for i in range(4):
                        A(f"buffer_load_ushort v{WL+16*r+8*kk+4*p+i}, v{vWO}, {sr(srd,4)}, s{sW0+i} offen offset:{450*kk+64*r}")
        Q.extend(["w"] * 32)
    def wstore():
        if "w" in Q: A("s_waitcnt vmcnt(0)")
        for r in range(2):
            W_ = WL + 16 * r
            for kk in range(2):
                for p in range(4):
                    A(f"v_lshl_or_b32 v{W_+8*kk+p}, v{W_+8*kk+2*p+1}, 16, v{W_+8*kk+2*p}")
            for p in range(4): A(f"v_permlane16_swap_b32 v{W_+p}, v{W_+8+p}")
            for kk in range(2):
                for p in range(4): A(f"ds_bpermute_b32 v{W_+8*kk+4+p}, v{vT+6}, v{W_+8*kk+p}")
        A(f"s_cmp_eq_u32 s{sGS}, 6")
        A("s_cselect_b64 s[54:55], 0xff, -1")
        A("s_cselect_b64 s[56:57], 1, -1")
        A("s_waitcnt lgkmcnt(0)")
        for k in range(4):
            if k >= 2: A(f"s_mov_b64 exec, s[{54+2*(k&1)}:{55+2*(k&1)}]")
            A(f"buffer_store_dwordx4 {vr(WL+8*k+4,4)}, v{vST}, {sr(sWS,4)}, s{sWST} offen offset:{1024*k} {STFW}")
        A("s_mov_b64 exec, -1")
    for n in range(NB):
        wait_for(n if n < NB - 1 else 13)
        if n == 0:
            A(f"s_cmp_lg_u32 s{sNT}, 15")
            A("s_cbranch_scc1 k1_ng")
            for i in range(7): A(f"ds_write_b16 v{vGW+8+(i>>2)}, v{vGW+i} offset:{16384*(i&3)}")
            A("s_waitcnt lgkmcnt(0)")
            A("k1_ng:")
        A("s_barrier")
        if n < 12: ST.at(2 + n)
        if n <= 4: issue(n + 2)
        if n == 4: issue(7); issue(8)
        if 5 <= n <= 9: issue(n + 4)
        if n == NB - 2: A(f"s_load_dwordx2 s[28:29], {sr(sDB,2)}, 0")
        if n == WPOS: wloads()
        if n == PFP: prefetches()
    for k in range(8): A(f"ds_read_b128 {vr(PK+4*k,4)}, v{vT+7} offset:{8192*(k>>2)+1024*(k&3)}")
    A(f"s_cmp_eq_u32 s{sNT}, 15")
    A("s_cselect_b64 s[54:55], 0xff, -1")
    A("s_cselect_b64 s[56:57], 1, -1")
    for k in range(8):
        A(f"s_waitcnt lgkmcnt({7-k})")
        if k >= 4: A(f"s_mov_b64 exec, s[{54+2*(k&1)}:{55+2*(k&1)}]")
        if k and k % 2 == 0: A(f"s_add_u32 s{sB2}, s{sB2}, s{sC0}")
        A(f"buffer_store_dwordx4 {vr(PK+4*k,4)}, v{vST}, {sr(sWS,4)}, s{sB2} offen offset:{1024*(k&1)} {STF0}")
    A("s_mov_b64 exec, -1")
    wstore()
    A("s_branch k1_pf")

    A("k1_comp:")
    A(f"s_mov_b32 s{sWS+2}, {WS_BYTES}")
    A(f"s_mov_b32 s{sWS+3}, 0x20000")
    A(f"s_or_b32 s{sT}, s2, s{sW}")
    A(f"s_cmp_lg_u32 s{sT}, 0")
    A("s_cbranch_scc1 k1_ntag")
    A("s_memrealtime s[62:63]")
    A(f"s_mov_b32 s{sDB+2}, 256")
    A(f"s_mov_b32 s{sDB+3}, 0x20000")
    A(f"v_mov_b32 v{vT}, 0")
    A("s_waitcnt lgkmcnt(0)")
    A("s_or_b32 s62, s62, 1")
    A(f"v_mov_b32 v{vT+2}, s62")
    A(f"v_mov_b32 v{vT+3}, s63")
    A("s_mov_b64 exec, 1")
    A(f"buffer_store_dwordx2 {vr(vT+2,2)}, v{vT}, {sr(sDB,4)}, 0 offen sc1")
    A("s_mov_b64 exec, -1")
    A("k1_ntag:")
    A(f"v_lshlrev_b32 v{vST}, 4, v{vL}")
    A(f"v_and_b32 v{vT}, 31, v{vL}")
    A(f"v_lshrrev_b32 v{vT+1}, 5, v{vL}")
    A(f"v_bfe_u32 v{vT+2}, v{vL}, 1, 3")
    A(f"v_xor_b32 v{vT+2}, v{vT+2}, v{vT+1}")
    A(f"v_lshlrev_b32 v{vT+2}, 4, v{vT+2}")
    A(f"v_lshl_add_u32 v{vT+2}, v{vT}, 7, v{vT+2}")
    A(f"v_add_u32 v{vRA}, s{sLA}, v{vT+2}")
    for u in range(1, 4): A(f"v_xor_b32 v{vRA+u}, {32*u}, v{vRA}")
    A(f"v_bfe_u32 v{vT+2}, v{vL}, 2, 2")
    A(f"v_lshl_add_u32 v{vT+3}, v{vT+1}, 3, v{vT+2}")
    A(f"v_lshlrev_b32 v{vT+3}, 8, v{vT+3}")
    A(f"v_bfe_u32 v{vT+4}, v{vL}, 4, 1")
    A(f"v_lshlrev_b32 v{vT+4}, 5, v{vT+4}")
    A(f"v_and_b32 v{vT+5}, 3, v{vL}")
    A(f"v_lshl_add_u32 v{vT+4}, v{vT+5}, 3, v{vT+4}")
    A(f"s_and_b32 s{sT}, s{sW}, 2")
    A(f"s_mul_i32 s{sT}, s{sT}, s{sGS}")
    A(f"v_add_u32 v{vT+4}, s{sT}, v{vT+4}")
    A(f"v_lshlrev_b32 v{vT+2}, 6, v{vT+2}")
    for g in range(2):
        A(f"v_xor_b32 v{vT+5}, v{vT+4}, v{vT+2}")
        A(f"v_add_u32 v{vRB+g}, v{vT+5}, v{vT+3}")
        A(f"v_add_u32 v{vRB+2+g}, 0x10000, v{vRB+g}")
        if g == 0: A(f"v_add_u32 v{vT+4}, s{sGS}, v{vT+4}")
    MC = lambda p: MB + 24 * p
    A(f"s_cmp_lt_u32 s{sNT}, 12")
    A("s_cbranch_scc1 k1_nom")
    A(f"v_cvt_f32_u32 v{vT+3}, v{vT}")
    A(f"v_mul_f32 v{vT+3}, {hex(f2u(1/32))}, v{vT+3}")
    for p in range(2):
        A(f"v_lshl_add_u32 v{vT+2}, v{vT+1}, 8, s{sBB if p == 0 else sB2}")
        A(f"v_mul_u32_u24 v{vT+2}, v{vT+2}, v{vT}")
        A(f"v_cvt_f32_u32 v{vT+2}, v{vT+2}")
        A(f"v_mul_f32 v{vT+2}, {hex(f2u(1/2048))}, v{vT+2}")
        for t in range(2):
            for jp in range(4):
                for e in range(2):
                    j = 2 * jp + e
                    n = 16 * t + 8 * (j >> 2) + (j & 3)
                    A(f"v_fmamk_f32 v{vT+4+e}, v{vT+3}, {hex(f2u(float(n)))}, v{vT+2}")
                    A(f"v_fract_f32 v{vT+4+e}, v{vT+4+e}")
                A(f"v_cos_f32 v{vT+6}, v{vT+4}")
                A(f"v_cos_f32 v{vT+7}, v{vT+5}")
                A(f"v_sin_f32 v{vT+8}, v{vT+4}")
                A(f"v_sin_f32 v{vT+9}, v{vT+5}")
                A(f"v_cvt_pk_bf16_f32 v{MC(p)+4*t+jp}, v{vT+6}, v{vT+7}")
                A(f"v_cvt_pk_bf16_f32 v{MC(p)+8+4*t+jp}, v{vT+8}, v{vT+9}")
                A(f"v_cvt_pk_bf16_f32 v{MC(p)+16+4*t+jp}, -v{vT+8}, -v{vT+9}")
    A("k1_nom:")
    if int(os.environ.get("CP", 0)): A(f"s_setprio {os.environ.get('CP')}")
    A("s_waitcnt lgkmcnt(0) ; WSB")

    def reads(m):
        n, u = m // 4, m % 4; i = n % 7; buf = FR + 12 * (m % 4)
        L = [f"ds_read_b128 {vr(buf,4)}, v{vRA+u} offset:{8192*(n%6)}"]
        for g in range(2):
            off = 16384 * (i & 3) + 4096 * u
            L += [f"ds_read_b64_tr_b16 {vr(buf+4+4*g+2*x,2)}, v{vRB+2*(i>>2)+g} offset:{off+1024*x}" for x in range(2)]
        return L
    def steps(m0, m1, swap, fill):
        k = 0; done = 0; nm = 20 + 8 * (NB - 12)
        for m in range(m0, m1):
            n, u = m // 4, m % 4; acc = 32 * (m // 28); buf = FR + 12 * (m % 4)
            A(f"s_waitcnt lgkmcnt({5 * min(D - 1, 55 - m)})")
            if u == 4 - D and n + 1 < NB:
                if n + 1 == NB - 1:
                    assert done == len(fill)
                    A("s_waitcnt lgkmcnt(5)")
                A("s_barrier")
                if n + 1 < 8: ST.at(2 + n + 1)
            rd = reads(m + D) if m + D < 56 else [None] * 5
            for g in range(2):
                a_, b_ = vr(buf,4), vr(buf+4+4*g,4)
                if swap: a_, b_ = b_, a_
                A(f"v_mfma_f32_32x32x16_bf16 {vr(acc+16*g,16)}, {a_}, {b_}, {'0' if m % 28 == 0 else vr(acc+16*g,16)}")
                if m >= m0 + 2 and fill:
                    k += 1; k2 = min(len(fill), -(-len(fill) * k // nm))
                    while done < k2 and not (fill[done].startswith("ds_write") and m < 34):
                        A(fill[done]); done += 1
                for x in (rd[:3] if g == 0 else rd[3:]):
                    if x: A(x)
        assert done == len(fill)
    def touch(step):
        if os.environ.get("TOUCH", "0") != "1": return
        A(f"s_sub_u32 s{sT}, s{sO[1]}, s{sO[0]}")
        A(f"v_and_b32 v{vT+10}, 1, v{vL}")
        A(f"v_mul_u32_u24 v{vT+10}, {step}, v{vT+10}")
        A(f"v_bfe_u32 v{vT+11}, v{vL}, 1, 1")
        A(f"v_mul_lo_u32 v{vT+11}, v{vT+11}, s{sT}")
        A(f"v_add3_u32 v{vT+10}, v{vT+10}, v{vT+11}, s{sO[0]}")
        A("s_mov_b64 exec, 15")
        A(f"buffer_load_dword v{vPF+1}, v{vT+10}, {sr(sWS,4)}, 0 offen")
        A("s_mov_b64 exec, -1")
    def pass0(swap):
        A("s_waitcnt lgkmcnt(0)")
        A("s_barrier")
        ST.at(2)
        for x in reads(0) + reads(1) + reads(2): A(x)
        steps(0, 28, swap, [])
        ST.at(10)
    st = lambda r, so, off: f"buffer_store_dwordx4 {vr(r,4)}, v{vST}, {sr(sWS,4)}, s{so} offen offset:{off} {STF0 if so == sCA else STF}"
    sO = [sCA, sCB]
    def out(p, g, P):
        if p == 0: return []
        return ([f"s_add_u32 s{sO[p]}, s{sO[p]}, {64*2048}"] if g else []) + [st(P, sO[p], 0), st(P + 4, sO[p], 1024)]
    def wr(p):
        return [f"ds_write_b128 v{vT+8}, {vr(PK+4*k,4)} offset:{1024*k}" for k in range(4)] if p == 0 else []
    def qkv_addr(base):
        A(f"s_and_b32 s{sT}, s{sNT}, 3")
        A(f"s_lshl_b32 s{sT}, s{sT}, 2")
        A(f"s_and_b32 s{sT2}, s{sW}, 2")
        A(f"s_add_u32 s{sT}, s{sT}, s{sT2}")
        A(f"s_lshl_b32 s{sT}, s{sT}, 6")
        A(f"s_lshl_b32 s{sT2}, s{sMT}, 1")
        A(f"s_and_b32 s{sO[1]}, s{sW}, 1")
        A(f"s_add_u32 s{sT2}, s{sT2}, s{sO[1]}")
        A(f"s_add_u32 s{sT2}, s{sT2}, 32")
        A(f"s_cmp_ge_u32 s{sNT}, 4")
        A(f"s_cselect_b32 s{sT2}, s{sT2}, s{sB2}")
        A(f"s_add_u32 s{sO[1]}, s{sT}, s{sT2}")
        A(f"s_lshl_b32 s{sO[1]}, s{sO[1]}, 11")
        A(f"s_add_u32 s{sO[1]}, s{sO[1]}, {base}")

    A(f"s_cmp_ge_u32 s{sNT}, 8")
    A("s_cbranch_scc1 k1_vd")
    A(f"s_cmp_ge_u32 s{sNT}, 4")
    A(f"s_cselect_b32 s{sP4}, {WS_K}, {WS_Q}")
    A(f"s_cselect_b32 s{sP64}, {hex(QSCALE)}, 1.0")
    A(f"s_cselect_b32 s{sLA}, 0x3f803f80, 0")
    A(f"s_cselect_b32 s{sLB}, 0x3f80, 0")
    A(f"s_cselect_b32 s{sC}, 12, 0")
    qkv_addr(f"s{sP4}")
    A(f"v_mov_b32 v{vT+6}, s{sLA}")
    A(f"v_mov_b32 v{vT+7}, s{sLB}")
    A(f"v_lshrrev_b32 v{vT}, 1, v{vL}")
    A(f"v_xor_b32 v{vT}, v{vT}, v{vL}")
    A(f"v_and_b32 v{vT}, 4, v{vT}")
    A(f"v_mul_u32_u24 v{vT}, 3, v{vT}")
    A(f"v_and_b32 v{vT}, s{sC}, v{vT}")
    A(f"v_xor_b32 v{vT}, v{vT}, v{vL}")
    A(f"v_lshlrev_b32 v{vST}, 4, v{vT}")
    A(f"v_cmp_lt_u32 vcc, 31, v{vL}")
    def epi_qk(p):
        L = []
        for g in range(2):
            acc = 32 * p + 16 * g; P = PK + 16 * p + 8 * g
            M = [f"v_mul_f32 v{acc+r}, s{sP64}, v{acc+r}" for r in range(16)]
            if p == 1: M = ["s_nop 10" if g == 0 else "s_nop 0", f"s_cmp_lt_u32 s{sNT}, 4", f"s_cbranch_scc1 k1_nm{g}"] + M + [f"k1_nm{g}:"]
            L += M
            L += [f"v_cvt_pk_bf16_f32 v{P+r}, v{acc+2*r}, v{acc+2*r+1}" for r in range(8)]
            L += [f"v_cndmask_b32 v{P+6}, v{P+6}, v{vT+6}, vcc", f"v_cndmask_b32 v{P+7}, v{P+7}, v{vT+7}, vcc"]
            L += out(p, g, P)
        return L + wr(p)
    A(f"s_lshl_b32 s{sT}, s{sW}, 12")
    A(f"v_add_u32 v{vT+8}, s{sT}, v{vST}")
    pass0(True)
    steps(28, 56, True, epi_qk(0))
    ST.at(11)
    for x in epi_qk(1): A(x)
    A("s_branch k1_pf")
    A("k1_vd:")
    qkv_addr(WS_V)
    A(f"v_and_b32 v{vT}, 31, v{vL}")
    A(f"v_cmp_eq_u32 vcc, 28, v{vT}")
    A(f"v_mov_b32 v{vT+6}, 0x3f803f80")
    A(f"v_cndmask_b32 v{vT+6}, 0, v{vT+6}, vcc")
    A(f"v_cmp_lt_u32 vcc, 27, v{vT}")
    A(f"s_cmp_lt_u32 s{sNT}, 12")
    A("s_cbranch_scc1 k1_vt")
    A(f"s_lshl_b32 s{sT}, s{sNT}, 1")
    A(f"s_lshr_b32 s{sT2}, s{sW}, 1")
    A(f"s_add_u32 s{sC}, s{sT}, s{sT2}")
    A(f"s_lshl_b32 s{sT}, s{sC}, 12")
    for p in range(2):
        A(f"s_mul_i32 s{sO[p]}, s{sBB if p == 0 else sB2}, {YB}")
        A(f"s_add_u32 s{sO[p]}, s{sO[p]}, s{sT}")
        A(f"s_add_u32 s{sO[p]}, s{sO[p]}, {WS_Y - 24*4096}")
    A("k1_vt:")
    pass0(False)
    A(f"s_cmp_ge_u32 s{sNT}, 12")
    A("s_cbranch_scc1 k1_dft")
    def epi_v(p):
        L = []
        for g in range(2):
            acc = 32 * p + 16 * g; P = PK + 16 * p + 8 * g
            L += [f"v_cvt_pk_bf16_f32 v{P+r}, v{acc+2*r}, v{acc+2*r+1}" for r in range(8)]
            L += [f"v_cndmask_b32 v{P+r}, v{P+r}, v{vT+6}, vcc" for r in range(8)]
            L += out(p, g, P)
        return L + wr(p)
    A(f"s_lshl_b32 s{sT}, s{sW}, 12")
    A(f"v_add_u32 v{vT+8}, s{sT}, v{vST}")
    steps(28, 56, False, epi_v(0))
    ST.at(11)
    for x in epi_v(1): A(x)
    A("s_branch k1_pf")
    A("k1_dft:")
    A(f"s_cmp_eq_u32 s{sC}, 31")
    A("s_cselect_b64 s[54:55], 0xff, -1")
    A("s_cselect_b64 s[56:57], 1, -1")
    A(f"s_lshl_b32 s{sT2}, s{sW}, 12")
    A(f"v_lshlrev_b32 v{vT}, 6, v{vT}")
    A(f"v_lshl_add_u32 v{vT}, v{vT+1}, 4, v{vT}")
    A(f"v_add_u32 v{vT}, s{sT2}, v{vT}")
    A(f"v_add_u32 v{vT+2}, s{sT2}, v{vST}")
    A(f"v_lshlrev_b32 v{vT+3}, 4, v{vT+1}")
    def epi_dft(p):
        xr, xi = PK + 16 * p, PK + 16 * p + 8; yr, yi = 32 * p, 32 * p + 16; M = MC(p)
        L = [f"v_cvt_pk_bf16_f32 v{xr+r}, v{yr+2*r}, v{yr+2*r+1}" for r in range(8)]
        L += [f"v_cvt_pk_bf16_f32 v{xi+r}, v{yi+2*r}, v{yi+2*r+1}" for r in range(8)]
        G = [f"s_cmp_lg_u32 s{sC}, 31", f"s_cbranch_scc1 k1_ngs{p}", f"s_lshl_b32 s{sT}, s{sBB if p == 0 else sB2}, 7", f"s_add_u32 s{sT}, s{sT}, {WS_G}",
             "s_mov_b32 exec_lo, 1", "s_mov_b32 exec_hi, 1"]
        G += [f"buffer_store_dwordx4 {vr(yi+4*g,4)}, v{vT+3}, {sr(sWS,4)}, s{sT} offen offset:{32*g} sc1" for g in range(4)]
        G += ["s_mov_b64 exec, -1"] + [f"v_mov_b32 v{xi+r}, 0" for r in range(8)] + ["s_nop 1", f"k1_ngs{p}:"]
        L.append("\n".join(G))
        mf = lambda d, a, b, first=False: f"v_mfma_f32_32x32x16_bf16 {vr(d,16)}, {vr(a,4)}, {vr(b,4)}, {'0' if first else vr(d,16)}"
        L += [mf(yr, M + 4*t, xr + 4*t, t == 0) for t in range(2)] + [mf(yr, M + 8 + 4*t, xi + 4*t) for t in range(2)]
        L += [mf(yi, M + 4*t, xi + 4*t, t == 0) for t in range(2)] + [mf(yi, M + 16 + 4*t, xr + 4*t) for t in range(2)]
        L += ["s_nop 0"] * (6 if p == 0 else 0)
        for part, (y, P) in enumerate(((yr, PK + 16 - 16 * p), (yi, PK + 24 - 16 * p))):
            L += [f"v_cvt_pk_bf16_f32 v{P+r}, v{y+2*r}, v{y+2*r+1}" for r in range(8)]
            L.append("s_nop 0")
            for t in range(2): L += [f"v_permlane32_swap_b32 v{P+4*t}, v{P+4*t+2}", f"v_permlane32_swap_b32 v{P+4*t+1}, v{P+4*t+3}"]
            L += [f"ds_write_b128 v{vT}, {vr(P+4*t,4)} offset:{16384*p+2048*part+32*t}" for t in range(2)]
            if p == 1:
                L.append("s_waitcnt lgkmcnt(0)")
                L += [f"ds_read_b128 {vr(P+4*k,4)}, v{vT+2} offset:{16384+2048*part+1024*k}" for k in range(2)]
        if p == 1:
            for part, P in enumerate((PK + 16 - 16 * p, PK + 24 - 16 * p)):
                for k in range(2):
                    L += [f"s_waitcnt lgkmcnt({1 - k if part else 2})", f"s_mov_b64 exec, s[{54+2*k}:{55+2*k}]", st(P + 4*k, sO[p], 2048*part + 1024*k)]
        return L
    steps(28, 56, False, epi_dft(0))
    ST.at(11)
    for x in epi_dft(1): A(x)
    A("s_mov_b64 exec, -1")
    A("k1_pf:")
    if DIAG:
        A(f"s_cmp_lt_u32 s{sW8}, 4")
        A("s_cbranch_scc0 k1_nst")
        A("s_memtime s[96:97]")
        A("k1_nst:")
    get_tag(A, "k1_tagl", sT, vT)
    A(f"s_lshl_b32 s{sT}, s2, 3")
    A(f"s_add_u32 s{sT}, s{sT}, s{sW8}")
    A(f"s_lshl_b32 s{sT}, s{sT}, 7")
    A(f"s_add_u32 s{sT}, s{sT}, {WS_F1}")
    A(f"v_mov_b32 v{vT}, 0")
    A(f"v_mov_b32 v{vT+2}, s6")
    A(f"v_mov_b32 v{vT+3}, s7")
    A("s_mov_b64 exec, 1")
    A("s_waitcnt vmcnt(0)")
    A(f"buffer_store_dwordx2 {vr(vT+2,2)}, v{vT}, {sr(sWS,4)}, s{sT} offen sc1")
    A("s_mov_b64 exec, -1")
    A("s_barrier")
    ST.dump(sWS, sW8, 8, vT+10, False)
    return A.L, NV, 102 if DIAG else 64
```

```python
from asmlib import *
from k1 import WS_Q, WS_K, WS_V, WS_Y, WS_W, WS_O, WS_Z, WS_G, WS_BYTES, WS_FO, WS_FZ, WS_F1, f2u, YB, WP, ZP
import math, os
TS_F64, TS_F32, TS_TW, TS_BYTES = 0, 24576, 30720, 47104
LF, LZ, RED = 0, 57344, 114688
LW = RED - 8192
LDS_Y, LDS_Q = LZ, RED + 8192
K2_LDS = 163840
TAB_INV_BYTES = 401408
from k1 import SPIN
N0 = int(os.environ.get("N0", 13)); N1 = (64 - N0) // 3
assert N0 + 3 * N1 == 64
OST = os.environ.get("OST", "")

def merge(ms, vs, lead=0):
    out = []; n = len(ms); k = 0
    for i, m in enumerate(ms):
        out.append(m)
        k2 = (len(vs) * (i + 1)) // n
        out += vs[k:k2]; k = k2
    return out

def gen_k2():
    A = Asm()
    sWS, sX, sTB = 8, 12, 16
    sW, sJ, sXC, sHD, sQB, sT, sT2, sCNT, sI, sKO, sLO, sHI, sVO, sPASS = 20, 21, 22, 23, 24, 25, 26, 27, 28, 29, 30, 31, 32, 33
    sK0, sOK, sQ, sOUT = 34, 35, 40, 48
    sMT, sNT, sPUB, sLO2 = 52, 53, 57, 58
    O, S, Q, KV = 0, 64, 128, 160
    vL, vO16, vIDX, vT = 208, 209, 210, 212
    NV = 256
    vWD, sWM, sWS_ = 237, 59, 60
    vTAG = 240
    A("k2_start:")
    ST = Stamps(A, 1); ST.begin()
    A(f"s_load_dwordx2 {sr(sX,2)}, s[0:1], 40")
    A(f"s_load_dwordx2 {sr(sOUT,2)}, s[0:1], 56")
    A(f"s_mov_b32 s{sWS}, s16")
    A(f"s_mov_b32 s{sWS+1}, s17")
    A(f"s_mov_b32 s{sWS+2}, {WS_BYTES}")
    A(f"s_mov_b32 s{sWS+3}, 0x20000")
    A(f"s_mov_b32 s{sW}, s47")
    A(f"v_mov_b32 v{vL}, v64")
    A(f"v_mov_b32 v{vTAG}, s6")
    A(f"v_mov_b32 v{vTAG+1}, s7")
    A(f"v_lshlrev_b32 v{vO16}, 4, v{vL}")
    A(f"v_and_b32 v{vT+9}, 31, v{vL}")
    A(f"v_lshlrev_b32 v{vT+9}, 2, v{vT+9}")
    A(f"s_and_b32 s{sXC}, s2, 7")
    A(f"s_lshr_b32 s{sJ}, s2, 3")
    A(f"s_and_b32 s{sT}, s{sJ}, 3")
    A(f"s_lshl_b32 s{sMT}, s{sXC}, 2")
    A(f"s_add_u32 s{sMT}, s{sMT}, s{sT}")
    A(f"s_lshr_b32 s{sNT}, s{sJ}, 2")
    A(f"s_getpc_b64 {sr(sTB,2)}")
    A(f"s_add_u32 s{sTB}, s{sTB}, tab_inv@rel32@lo+4")
    A(f"s_addc_u32 s{sTB+1}, s{sTB+1}, tab_inv@rel32@hi+12")
    A(f"s_mov_b32 s{sTB+2}, {TAB_INV_BYTES}")
    A(f"s_mov_b32 s{sTB+3}, 0x20000")
    def flag_index(d, vpass, vmt, ve, vnt, shh):
        A(f"v_and_b32 v{d}, 7, v{vnt}")
        A(f"v_lshlrev_b32 v{d}, 2, v{d}")
        A(f"v_and_or_b32 v{d}, v{vmt}, 3, v{d}")
        A(f"v_lshrrev_b32 v{d+1}, 2, v{vmt}")
        A(f"v_lshl_add_u32 v{d}, v{d}, 2, v{d+1}")
        A(f"v_lshrrev_b32 v{d+1}, 3, v{vnt}")
        A(f"v_lshl_add_u32 v{d}, v{d}, 1, v{d+1}")
        A(f"v_xor_b32 v{d+1}, 1, v{vpass}")
        A(f"v_lshl_add_u32 v{d}, v{d}, 1, v{d+1}")
        A(f"v_and_b32 v{d+1}, {shh}, v{vpass}")
        A(f"v_lshl_add_u32 v{d}, v{d}, 1, v{d+1}")
        A(f"v_lshl_add_u32 v{d}, v{d}, 1, v{ve}")
        A(f"v_lshlrev_b32 v{d}, 7, v{d}")
    A(f"s_cmp_ge_u32 s{sW}, 4")
    A("s_cbranch_scc1 k2_aux")
    A(f"s_lshr_b32 s{sHD}, s{sJ}, 4")
    A(f"s_lshl_b32 s{sHD}, s{sHD}, 3")
    A(f"s_add_u32 s{sHD}, s{sHD}, s{sXC}")
    A(f"s_and_b32 s{sQB}, s{sJ}, 15")
    A(f"s_cmp_eq_u32 s{sW}, 0")
    A(f"s_cselect_b32 s{sCNT}, {N0}, {N1}")
    A(f"s_mul_i32 s{sT}, s{sW}, {N1}")
    A(f"s_sub_u32 s{sT}, s{sT}, {N1-N0}")
    A(f"s_max_i32 s{sT}, s{sT}, 0")
    A(f"s_lshl_b32 s{sT2}, s{sW}, 4")
    A(f"s_cmp_le_u32 s2, 224")
    A(f"s_cselect_b32 s{sCNT}, s{sCNT}, 16")
    A(f"s_cselect_b32 s{sT}, s{sT}, s{sT2}")
    A(f"s_mul_i32 s{sK0}, s{sW}, 3")
    A(f"s_sub_u32 s{sLO}, s{sT}, s{sK0}")
    A(f"s_add_u32 s{sLO}, s{sLO}, 9")
    A(f"v_lshrrev_b32 v2, 1, v{vL}")
    A(f"s_sub_u32 s{sT2}, s{sCNT}, 1")
    A(f"v_min_u32 v2, s{sT2}, v2")
    A(f"v_add_u32 v3, s{sK0}, v2")
    A(f"v_add_u32 v4, s{sLO}, v2")
    A("v_cmp_gt_u32 vcc, 3, v2")
    A(f"s_lshr_b32 s{sT2}, s{sHD}, 2")
    A(f"s_and_b32 s{sI}, s{sT2}, 1")
    A("v_cndmask_b32 v3, v4, v3, vcc")
    A("v_lshrrev_b32 v4, 5, v3")
    A("v_bfe_u32 v5, v3, 1, 4")
    A("v_and_b32 v6, 1, v3")
    A(f"v_and_b32 v7, 1, v{vL}")
    A(f"v_lshl_add_u32 v7, v7, 2, s{sT2}")
    A("v_add_u32 v7, 4, v7")
    A(f"v_cmp_lt_u32 vcc, 33, v{vL}")
    A(f"s_lshr_b32 s{sKO}, s{sW}, 1")
    A(f"s_xor_b32 s{sKO}, s{sKO}, s{sI}")
    A(f"s_and_b32 s{sVO}, s{sW}, 1")
    A(f"v_mov_b32 v8, s{sKO}")
    A(f"v_mov_b32 v9, s{sQB}")
    A(f"v_mov_b32 v10, s{sVO}")
    A(f"v_mov_b32 v11, s{sT2}")
    for k in range(4): A(f"v_cndmask_b32 v{4+k}, v{4+k}, v{8+k}, vcc")
    A(f"s_bfe_u32 s{sI}, s{sHD}, 0x10001")
    flag_index(2, 4, 5, 6, 7, f"s{sI}")
    A(f"s_lshl_b32 s{sT2}, s{sHD}, 6")
    A(f"s_add_u32 s{sK0}, s{sK0}, s{sT2}")
    A(f"s_lshl_b32 s{sK0}, s{sK0}, 11")
    A(f"s_add_u32 s{sK0}, s{sK0}, {WS_K}")
    A(f"s_add_u32 s{sLO2}, s{sLO}, s{sT2}")
    A(f"s_add_u32 s{sHI}, s{sLO2}, s{sCNT}")
    A(f"s_add_u32 s{sLO2}, s{sLO2}, 3")
    A(f"s_lshl_b32 s{sLO2}, s{sLO2}, 11")
    A(f"s_add_u32 s{sLO2}, s{sLO2}, {WS_K}")
    A(f"s_lshl_b32 s{sHI}, s{sHI}, 11")
    A(f"s_add_u32 s{sHI}, s{sHI}, {WS_K}")
    A(f"s_lshl_b32 s{sT}, s{sQB}, 2")
    A(f"s_add_u32 s{sT}, s{sT}, s{sT2}")
    for s in range(4):
        A(f"s_add_u32 s{sQ+s}, s{sW}, {s+1}")
        A(f"s_and_b32 s{sQ+s}, s{sQ+s}, 3")
        A(f"s_add_u32 s{sT2}, s{sQ+s}, s{sT}")
        A(f"s_lshl_b32 s{sQ+4+s}, s{sT2}, 11")
    A(f"s_mov_b32 s{sKO}, s{sK0}")
    A(f"s_add_u32 s{sVO}, s{sKO}, {WS_V - WS_K}")
    ST.at(12)
    A(f"s_mov_b32 s{sI}, {SPIN}")
    A(f"s_mov_b32 s{sT}, {WS_F1}")
    A("s_mov_b32 exec_lo, 0x3f")
    A("s_mov_b32 exec_hi, 4")
    if os.environ.get("NOPOLL"): A("s_branch k2_pa_done")
    if int(os.environ.get("PD", 10)): A(f"s_sleep {os.environ.get('PD', 10)}")
    A("k2_pa:")
    A(f"buffer_load_dwordx2 v[4:5], v2, {sr(sWS,4)}, s{sT} offen sc1")
    A("s_waitcnt vmcnt(0)")
    A("v_cmp_ne_u64 vcc, s[6:7], v[4:5]")
    A("s_nop 1")
    A("s_and_b64 exec, exec, vcc")
    A("s_cbranch_scc0 k2_pa_done")
    A(f"s_sub_u32 s{sI}, s{sI}, 1")
    A(f"s_sleep {os.environ.get('PSL', 1)}")
    A(f"s_cmp_gt_i32 s{sI}, 0")
    A("s_cbranch_scc1 k2_pa")
    A("k2_pa_done:")
    A("s_mov_b64 exec, -1")
    ST.at(13)
    def ldk(st, t): return f"buffer_load_dwordx4 {vr(KV+16*st+4*t,4)}, v{vO16}, {sr(sWS,4)}, s{sKO} offen offset:{1024*t} sc1"
    def ldv(st, t): return f"buffer_load_dwordx4 {vr(KV+16*st+8+4*t,4)}, v{vO16}, {sr(sWS,4)}, s{sVO} offen offset:{1024*t} sc1"
    def ldq(s, t): return f"buffer_load_dwordx4 {vr(Q+8*s+4*t,4)}, v{vO16}, {sr(sWS,4)}, s{sQ+4+s} offen offset:{1024*t}"
    adv = [f"s_add_u32 s{sKO}, s{sKO}, 2048", f"s_cmp_ge_u32 s{sKO}, s{sHI}", f"s_cselect_b32 s{sKO}, s{sLO2}, s{sKO}"]
    setv = f"s_add_u32 s{sVO}, s{sKO}, {WS_V - WS_K}"
    A(f"s_lshl_b32 s{sT}, s{sW}, 11")
    A(f"s_add_u32 m0, s{sT}, {LDS_Q}")
    A(ldk(0, 0))
    A(f"buffer_load_dwordx4 v{vO16}, {sr(sWS,4)}, s{sQ+7} offen sc1 lds")
    A(f"buffer_load_dwordx4 v{vO16}, {sr(sWS,4)}, s{sQ+7} offen offset:1024 sc1 lds")
    A(ldk(0, 1))
    for r in range(64): A(f"v_mov_b32 v{O+r}, 0") if r not in (2,) else None
    for x in [ldv(0, 0), ldv(0, 1)]: A(x)
    A(f"s_mov_b32 s{sPASS}, 0")
    A(f"s_mov_b32 s{sOK}, 0")
    A("s_branch k2_first")
    A("k2_pass:")
    A(f"s_mov_b32 s{sKO}, s{sK0}")
    A(setv)
    for x in [ldk(0, 0), ldk(0, 1), ldv(0, 0), ldv(0, 1)]: A(x)
    A("s_waitcnt vmcnt(0)")
    A("k2_first:")
    for x in adv[:1] + [setv, ldk(1, 0), ldk(1, 1), ldv(1, 0), ldv(1, 1)] + adv[:1] + [setv, ldk(2, 0), ldk(2, 1), ldv(2, 0), ldv(2, 1)]: A(x)
    A(f"s_sub_u32 s{sT}, s{sCNT}, 3")
    A(f"s_mul_i32 s{sT}, s{sT}, s{sQB}")
    A(f"s_lshr_b32 s{sT}, s{sT}, 4")
    A(f"s_lshl_b32 s{sT}, s{sT}, 11")
    A(f"s_add_u32 s{sKO}, s{sLO2}, s{sT}")
    A(f"s_cmp_lg_u32 s{sPASS}, 0")
    A("s_cbranch_scc1 k2_nobar")
    A(f"v_mov_b32 v{vT+12}, v2")
    A(f"s_mov_b32 s{sT}, {WS_F1}")
    A(f"buffer_load_dwordx2 {vr(vT+10,2)}, v2, {sr(sWS,4)}, s{sT} offen sc1")
    A("v_mov_b32 v2, 0")
    A(f"v_mov_b32 v{vIDX}, 0xdddddddd")
    for s_ in range(4):
        A(f"s_lshl_b32 s{sT}, s{sQ+s_}, 11")
        A(f"s_add_u32 s{sT}, s{sT}, {LDS_Q}")
        A(f"v_add_u32 v{vT+2+s_}, s{sT}, v{vO16}")
    A("s_waitcnt vmcnt(12)")
    A("s_barrier")
    for s_ in range(4):
        for t in range(2): A(f"ds_read_b128 {vr(Q+8*s_+4*t,4)}, v{vT+2+s_} offset:{1024*t}")
    A("s_branch k2_go")
    A("k2_nobar:")
    A("s_waitcnt vmcnt(0)")
    A(f"v_mov_b32 v{vT+10}, s6")
    A(f"v_mov_b32 v{vT+11}, s7")
    for r in range(64): A(f"v_mov_b32 v{O+r}, 0")
    A("k2_go:")
    for s in range(3):
        A(f"s_mul_i32 s{sT}, s{sQ+s}, 12288")
        A(f"s_add_u32 s{sT}, s{sT}, {RED}")
        A(f"v_add_u32 v{vT+s}, s{sT}, v{vO16}")
    A(f"s_mov_b32 s{sI}, s{sCNT}")
    def qk(q, st, half):
        c = "0" if half == 0 else vr(S+16*q,16)
        return f"v_mfma_f32_32x32x16_bf16 {vr(S+16*q,16)}, {vr(KV+16*st+4*half,4)}, {vr(Q+8*q+4*half,4)}, {c}"
    def pv(q, st, half):
        return f"v_smfmac_f32_32x32x32_bf16 {vr(O+16*q,16)}, {vr(KV+16*st+8+4*half,4)}, {vr(S+16*q+8*half,8)}, v{vIDX}"
    def tile(st, first, last=False):
        nxt, prv = (st + 1) % 3, (st + 2) % 3
        for q in range(4):
            e = [f"v_exp_f32 v{S+16*q+r}, v{S+16*q+r}" for r in range(16)]
            qn, stn = (q + 1, st) if q < 3 else (0, nxt)
            qp, stp = (q - 1, st) if q > 0 else (3, prv)
            aft = {0: [], 1: [], 2: [], 3: []}
            if q == 0: aft[2] = [ldk(prv, 0)]; aft[3] = [setv]
            if q == 1: aft[1] = ["s_waitcnt vmcnt(5)"]; aft[2] = [ldk(prv, 1)]; aft[3] = adv[0:2]
            if q == 2: aft[0] = [adv[2]]; aft[2] = [ldv(prv, 0)]; aft[3] = [f"s_sub_u32 s{sI}, s{sI}, 1", "s_waitcnt vmcnt(5)"]
            if q == 3: aft[2] = [ldv(prv, 1)]; aft[3] = [f"s_cmp_eq_u32 s{sI}, 1"]
            ms = [qk(qn, stn, 0), qk(qn, stn, 1), pv(qp, stp, 0), pv(qp, stp, 1)]
            if first and q == 0:
                A("s_waitcnt lgkmcnt(0)")
                ms[2] = ms[3] = None
            if first:
                aft = {0: [], 1: [], 2: [], 3: []}
                if q == 1: aft[1] = ["s_waitcnt vmcnt(9)"]
                if q == 2: aft[3] = [f"s_sub_u32 s{sI}, s{sI}, 1", "s_waitcnt vmcnt(7)"]
                if q == 3: aft[2] = ["s_waitcnt vmcnt(0)"]; aft[3] = [f"v_cmp_eq_u64 vcc, s[6:7], {vr(vT+10,2)}"]
            if last:
                wr = lambda s_, g: f"ds_write_b128 v{vT+s_}, {vr(O+16*s_+4*g,4)} offset:{4096*s_+1024*g}"
                aft = {0: [], 1: [], 2: [], 3: []}
                if q == 1: aft[1] = ["s_waitcnt vmcnt(4)"]
                if q == 2: aft[2] = [wr(0, 0)]; aft[3] = [wr(0, 1)]
                if q == 3:
                    ms[0] = ms[1] = None
                    aft[0] = [wr(0, 2)]; aft[1] = [wr(0, 3)]; aft[2] = [wr(1, 0)]; aft[3] = [wr(1, 1)]
            for k in range(4):
                if ms[k]: A(ms[k])
                for y in aft[k]: A(y)
                for x in e[4*k:4*k+4]: A(x)
    ST.at(0)
    A("s_waitcnt vmcnt(11) lgkmcnt(6)")
    ST.at(1)
    A(qk(0, 0, 0)); A(qk(0, 0, 1))
    A("s_nop 9")
    tile(0, True)
    A("s_cmp_lg_u64 vcc, -1")
    if not os.environ.get("NOPOLL"): A("s_cbranch_scc1 k2_pb0")
    loop_start = A.mark()
    A("k2_loop:")
    if DIAG:
        A("s_waitcnt lgkmcnt(0)")
        for i in (11,): A(f"s_mov_b32 s{70+2*i}, s{68+2*i}")
        ST.at(10)
    for st in (1, 2, 0):
        tile(st, False)
        A(f"s_cbranch_scc1 k2_x{(st + 1) % 3}" if st != 0 else "s_cbranch_scc0 k2_loop")
    loop_end = A.mark()
    for st in (1, 2, 0):
        A(f"k2_x{st}:")
        tile(st, False, True)
        A(f"ds_write_b128 v{vT+1}, {vr(O+16+8,4)} offset:{4096+2048}")
        A(pv(3, st, 0))
        A(f"ds_write_b128 v{vT+1}, {vr(O+16+12,4)} offset:{4096+3072}")
        A(pv(3, st, 1))
        if st != 0: A("s_branch k2_red")
    A("k2_red:")
    ST.at(2)
    A(f"s_lshl_b32 s{sT2}, s{sQB}, 2")
    A(f"s_add_u32 s{sT2}, s{sT2}, s{sW}")
    for g in range(4): A(f"ds_write_b128 v{vT+2}, {vr(O+32+4*g,4)} offset:{8192+1024*g}")
    A(f"s_mul_i32 s{sT}, s{sW}, 12288")
    A(f"s_add_u32 s{sT}, s{sT}, {RED}")
    A(f"v_add_u32 v{vT+1}, s{sT}, v{vO16}")
    A(f"s_lshl_b32 s{sT}, s{sW}, 2")
    A(f"s_add_u32 s{sT}, s{sT}, {K2_LDS-128}")
    A(f"v_mov_b32 v{vT+14}, s{sT}")
    A(f"s_lshl_b32 s{sT2}, s{sT2}, 4")
    A(f"s_add_u32 s{sT2}, s{sT2}, s{sHD}")
    A(f"s_lshl_b32 s{sKO}, s{sT2}, 11")
    A(f"s_add_u32 s{sKO}, s{sKO}, {WS_O}")
    A(f"s_lshl_b32 s{sVO}, s{sT2}, 7")
    A(f"s_add_u32 s{sVO}, s{sVO}, {WS_FO}")
    A("s_waitcnt vmcnt(0) lgkmcnt(0)")
    ST.at(3)
    A("s_barrier")
    ST.at(4)
    for g in (3, 0, 1, 2):
        for s in range(3):
            A(f"ds_read_b128 {vr(S+16*s+4*g,4)}, v{vT+1} offset:{4096*s+1024*g}")
    A(f"v_cmp_lt_u32 s[38:39], 31, v{vL}")
    R = O + 48
    def addg(g):
        for r in range(4*g, 4*g+4): A(f"v_add_f32 v{S+r}, v{S+r}, v{S+16+r}")
        for r in range(4*g, 4*g+4): A(f"v_add_f32 v{R+r}, v{R+r}, v{S+32+r}")
        for r in range(4*g, 4*g+4): A(f"v_add_f32 v{R+r}, v{R+r}, v{S+r}")
    A("s_waitcnt lgkmcnt(9)")
    addg(3)
    A(f"v_mov_b32 v{vT+4}, v{R+12}")
    A(f"v_mov_b32 v{vT+5}, v{R+12}")
    A("s_waitcnt lgkmcnt(6)")
    A(f"v_permlane32_swap_b32 v{vT+4}, v{vT+5}")
    A(f"v_rcp_f32 v{vT+6}, v{vT+5}")
    addg(0)
    A("s_waitcnt lgkmcnt(3)")
    addg(1)
    A("s_waitcnt lgkmcnt(0)")
    addg(2)
    A(f"s_cmp_lg_u32 s{sOK}, 0")
    A(f"s_mov_b32 s{sPUB}, 0")
    A("s_cbranch_scc1 k2_apart")
    for t in range(2):
        for r in range(8): A(f"v_mul_f32 v{S+8*t+r}, v{R+8*t+r}, v{vT+6}")
        for r in range(4): A(f"v_cvt_pk_bf16_f32 v{S+16+4*t+r}, v{S+8*t+2*r}, v{S+8*t+2*r+1}")
        if t == 1:
            A(f"v_cndmask_b32 v{S+22}, v{S+22}, 0, s[38:39]")
            A(f"v_cndmask_b32 v{S+23}, v{S+23}, 0, s[38:39]")
        A(f"buffer_store_dwordx4 {vr(S+16+4*t,4)}, v{vO16}, {sr(sWS,4)}, s{sKO} offen offset:{1024*t} sc1")
    A(f"v_add_f32 v{vT+7}, abs(v{R}), abs(v{R+1})")
    for r in range(2, 16): A(f"v_add_f32 v{vT+7}, v{vT+7}, abs(v{R+r})")
    A(f"v_cmp_nle_f32 vcc, {hex(f2u(2.0**-60))}, v{vT+5}")
    A(f"s_mov_b64 s[36:37], vcc")
    A(f"v_cmp_nge_f32 vcc, {hex(f2u(2.0**60))}, v{vT+5}")
    A(f"s_or_b64 s[36:37], s[36:37], vcc")
    A(f"v_cmp_nge_f32 vcc, {hex(f2u(2.0**120))}, v{vT+7}")
    A(f"s_or_b64 s[36:37], s[36:37], vcc")
    A(f"s_cselect_b32 s{sOK}, 0, 1")
    A(f"s_or_b32 s{sOK}, s{sOK}, s{sPASS}")
    A(f"s_mov_b32 s{sPUB}, s{sOK}" if not os.environ.get("NOPOLL") else f"s_mov_b32 s{sPUB}, 1")
    A("k2_apart:")
    A("s_barrier")
    def publish(lab, younger=0):
        A(f"s_cmp_eq_u32 s{sPUB}, 0")
        A(f"v_mov_b32 v{vT+4}, 0")
        A(f"s_waitcnt vmcnt({younger})")
        A(f"s_cbranch_scc1 {lab}")
        A("s_mov_b64 exec, 1")
        A(f"buffer_store_dwordx2 {vr(vTAG,2)}, v{vT+4}, {sr(sWS,4)}, s{sVO} offen sc1")
        A("s_mov_b64 exec, -1")
        A(f"{lab}:")
    AA, AB, OF, LB = 0, 96, 160, 32
    vG3, vZ3, vF3, vW3, vOA, vX = 228, 229, 230, 232, 234, 235
    sKH, sB3, sB, sOB, sOA = 54, 55, 56, 61, 62
    A(f"s_lshr_b32 s{sKH}, s{sW}, 1")
    A(f"s_and_b32 s{sB3}, s{sW}, 1")
    A(f"v_lshrrev_b32 v{vT+10}, 5, v{vL}")
    A(f"v_bfe_u32 v{vT+11}, v{vL}, 2, 2")
    A(f"v_bfe_u32 v{vT+12}, v{vL}, 4, 1")
    A(f"v_lshlrev_b32 v{vT+12}, 5, v{vT+12}")
    A(f"v_and_b32 v{vT+13}, 3, v{vL}")
    A(f"v_lshl_add_u32 v{vT+12}, v{vT+13}, 3, v{vT+12}")
    A(f"v_lshl_add_u32 v{vT+12}, v{vT+11}, 7, v{vT+12}")
    A(f"v_lshrrev_b32 v{vT+11}, 1, v{vT+11}")
    A(f"v_lshl_add_u32 v{vT+12}, v{vT+11}, 6, v{vT+12}")
    A(f"s_lshl_b32 s{sT}, s{sB3}, 6")
    A(f"v_xor_b32 v{vZ3}, s{sT}, v{vT+12}")
    A(f"v_lshl_add_u32 v{vZ3}, v{vT+10}, 10, v{vZ3}")
    A(f"s_mul_i32 s{sT2}, s{sKH}, {14*2048}")
    A(f"s_add_u32 s{sT}, s{sT2}, {LZ}")
    A(f"v_add_u32 v{vZ3}, s{sT}, v{vZ3}")
    A(f"s_lshl_b32 s{sT}, s{sKH}, 10")
    A(f"s_add_u32 s{sT}, s{sT}, s{sT2}")
    A(f"v_add_u32 v{vF3}, s{sT}, v{vO16}")
    A(f"v_xor_b32 v{vF3+1}, 1024, v{vF3}")
    A(f"s_lshl_b32 s{sT}, s{sMT}, 1")
    A(f"s_add_u32 s{sB}, s{sT}, s{sB3}")
    A(f"s_lshl_b32 s{sT}, s{sB}, 7")
    A(f"s_add_u32 s{sT}, s{sT}, {WS_G}")
    A(f"buffer_load_dword v{vG3}, v{vT+9}, {sr(sWS,4)}, s{sT} offen sc1")
    A(f"s_lshl_b32 s{sT}, s{sKH}, 6")
    A(f"v_xor_b32 v{vW3}, s{sT}, v{vT+12}")
    A(f"v_lshl_add_u32 v{vW3}, v{vT+10}, 9, v{vW3}")
    A(f"s_mul_i32 s{sT}, s{sKH}, {224*128}")
    A(f"s_add_u32 s{sT}, s{sT}, {LW}")
    A(f"v_add_u32 v{vW3}, s{sT}, v{vW3}")
    A(f"v_xor_b32 v{vW3+1}, 64, v{vW3}")
    A(f"s_lshl_b32 s{sT}, s{sW}, 12")
    A(f"v_add_u32 v{vX}, s{sT}, v{vO16}")
    A(f"v_xor_b32 v{vX+1}, 8192, v{vX}")
    A(f"s_lshl_b32 s{sT}, s{sB}, 1")
    A(f"s_add_u32 s{sT}, s{sT}, s{sKH}")
    A(f"s_lshl_b32 s{sT}, s{sT}, 14")
    A(f"s_add_u32 s{sOB}, s{sT}, {WS_O}")
    A(f"v_lshrrev_b32 v{vT+3}, 2, v{vT+9}")
    A(f"v_mul_u32_u24 v{vOA}, 57344, v{vT+3}")
    A(f"v_lshl_add_u32 v{vOA}, v{vT+10}, 4, v{vOA}")
    A(f"s_mul_i32 s{sOA}, s{sB}, 896")
    A(f"s_lshl_b32 s{sT}, s{sNT}, 7")
    A(f"s_add_u32 s{sOA}, s{sOA}, s{sT}")
    A(f"s_lshl_b32 s{sT}, s{sKH}, 6")
    A(f"s_add_u32 s{sOA}, s{sOA}, s{sT}")
    A(f"s_mov_b32 s{sOUT+2}, 1835008")
    A(f"s_mov_b32 s{sOUT+3}, 0x20000")
    publish("k2_np0")
    A("k2_pub:")
    ST.at(5)
    A(f"v_mov_b32 v{vT+5}, s{sOK}")
    A(f"ds_write_b32 v{vT+14}, v{vT+5}")
    A("k2_chk:")
    A(f"v_mov_b32 v{vT+8}, {K2_LDS-128}")
    A("s_waitcnt lgkmcnt(0)")
    A("s_barrier")
    A(f"ds_read_b128 {vr(vT+4,4)}, v{vT+8}")
    A("s_waitcnt lgkmcnt(0)")
    A("s_barrier")
    A(f"v_and_b32 v{vT+4}, v{vT+4}, v{vT+5}")
    A(f"v_and_b32 v{vT+6}, v{vT+6}, v{vT+7}")
    A(f"v_and_b32 v{vT+4}, v{vT+4}, v{vT+6}")
    A(f"v_readfirstlane_b32 s{sT}, v{vT+4}")
    A(f"s_cmp_eq_u32 s{sT}, 0")
    if not os.environ.get("NOPOLL"): A("s_cbranch_scc1 k2_fail")
    A("k2_p3:")
    A("s_cmp_ge_u32 s2, 224")
    A("s_cbranch_scc1 k2_dump" if DIAG else "s_cbranch_scc1 k2_end")
    A(f"s_cmp_ge_u32 s{sW}, 4")
    A("s_cbranch_scc1 k2_auxp3")
    steps = []
    HO = [3, 4, 5, 6, 7, 0, 1, 2]
    OFr = lambda m: (OF + 4*m) if m < 12 else (128 + 4*(m-12))
    for n in range(30):
        buf = LB + 12 * (n % 4)
        if n < 14:
            rd = [f"ds_read_b64_tr_b16 {vr(buf+2*x,2)}, v{vZ3} offset:{2048*n+512*x}" for x in range(2)]
            rd += [f"ds_read_b128 {vr(buf+4+4*k,4)}, v{vF3+k} offset:{2048*n}" for k in range(2)]
            mm = [f"v_mfma_f32_32x32x16_bf16 {vr(AA+16*k,16)}, {vr(buf+4+4*k,4)}, {vr(buf,4)}, {'0' if n == 0 else vr(AA+16*k,16)}" for k in range(2)]
        else:
            m = n - 14; hd, t = HO[m >> 1], m & 1
            rd = [f"ds_read_b64_tr_b16 {vr(buf+4+4*k+2*x,2)}, v{vW3+k} offset:{(28*hd+16*t)*128+1024*x}" for k in range(2) for x in range(2)]
            ks = (1, 0)
            mm = [f"v_mfma_f32_32x32x16_bf16 {vr(AB+16*k,16)}, {vr(buf+4+4*k,4)}, {vr(OFr(m),4)}, {'0' if m == 0 else vr(AB+16*k,16)}" for k in ks]
        steps.append((rd, mm))
    for x in steps[0][0] + steps[1][0] + steps[2][0]: A(x)
    A(f"v_mul_f32 v{vG3}, {hex(f2u(-math.log2(math.e)))}, v{vG3}")
    A(f"v_exp_f32 v{vG3}, v{vG3}")
    A("s_nop 0")
    A(f"v_add_f32 v{vG3}, 1.0, v{vG3}")
    A(f"v_rcp_f32 v{vG3}, v{vG3}")
    A("s_nop 0")
    A(f"v_sub_f32 v{vG3+10}, 1.0, v{vG3}")
    for n in range(14):
        if n == 0: ST.at(10)
        if n == 7: ST.at(11)
        A(f"s_waitcnt lgkmcnt({4 * min(2, 13 - n)})")
        rd = steps[n+3][0] if n + 3 < 14 else [None] * 4
        for k in range(2):
            A(steps[n][1][k])
            for x in rd[2*k:2*k+2]:
                if x: A(x)
    ST.at(6)
    A("s_barrier")
    ST.at(7)
    def old(m):
        hd = HO[m >> 1]
        if m % 2 == 0 and (m == 0 or hd % 2 == 0 or hd == 0): A(f"s_add_u32 s{sI}, s{sOB}, {4096*(hd>>1)}")
        A(f"buffer_load_dwordx4 {vr(OFr(m),4)}, v{vO16}, {sr(sWS,4)}, s{sI} offen offset:{2048*(hd&1)+1024*(m&1)} sc1")
    NO = int(os.environ.get("NO", 10))
    for m in range(NO): old(m)
    for x in steps[14][0] + steps[15][0] + steps[16][0]: A(x)
    for r in range(32): A(f"v_mul_f32 v{AA+r}, v{vG3}, v{AA+r}")
    for n in range(14, 30):
        m = n - 14
        if NO + m < 16: old(NO + m)
        if m == 7: A("s_barrier")
        A(f"s_waitcnt vmcnt({min(NO + m + 1, 16) - m - 1}) lgkmcnt({4 * min(2, 29 - n)})")
        if m == 0: ST.at(8)
        rd = steps[n+3][0] if n + 3 < 30 else [None] * 4
        for k in range(2):
            if m < 12 or k == 0: A(steps[n][1][k])
            for x in rd[2*k:2*k+2]:
                if x: A(x)
    ST.at(9)
    A(steps[26][1][1]); A(steps[27][1][1])
    A("s_nop 8")
    for g in range(4):
        for r in range(4*g, 4*g+4): A(f"v_fma_f32 v{AB+16+r}, v{vG3+10}, v{AB+16+r}, v{AA+16+r}")
        if g < 2: A(steps[28 + g][1][1])
        A(f"ds_write_b128 v{vX}, {vr(AB+16+4*g,4)} offset:{1024*g}")
    A("s_waitcnt lgkmcnt(0)")
    A("s_barrier")
    for g in range(4): A(f"ds_read_b128 {vr(AA+16+4*g,4)}, v{vX+1} offset:{1024*g}")
    for r in range(16): A(f"v_fma_f32 v{AB+r}, v{vG3+10}, v{AB+r}, v{AA+r}")
    for g in range(4):
        A(f"s_waitcnt lgkmcnt({3-g})")
        for r in range(4*g, 4*g+4): A(f"v_add_f32 v{AB+r}, v{AB+r}, v{AA+16+r}")
        for r in range(2*g, 2*g+2): A(f"v_cvt_pk_bf16_f32 v{LB+r}, v{AB+2*r}, v{AB+2*r+1}")
        if g & 1:
            t = g >> 1
            A(f"v_permlane32_swap_b32 v{LB+4*t}, v{LB+4*t+2}")
            A(f"v_permlane32_swap_b32 v{LB+4*t+1}, v{LB+4*t+3}")
            A(f"buffer_store_dwordx4 {vr(LB+4*t,4)}, v{vOA}, {sr(sOUT,4)}, s{sOA} offen offset:{32*t} {os.environ.get('OUTF', '')}")
    A("s_branch k2_dump" if DIAG else "s_endpgm")

    A("k2_fail:")
    A(f"s_cmp_ge_u32 s{sW}, 4")
    A("s_cbranch_scc1 k2_auxfb")
    A("s_branch k2_fb")
    A("k2_pb0:")
    A(f"s_mov_b32 s{sT2}, {SPIN}")
    A(f"s_mov_b32 s{sT}, {WS_F1}")
    A("k2_pb:")
    A(f"buffer_load_dwordx2 {vr(vT+10,2)}, v{vT+12}, {sr(sWS,4)}, s{sT} offen sc1")
    A("s_waitcnt vmcnt(0)")
    A(f"v_cmp_eq_u64 vcc, s[6:7], {vr(vT+10,2)}")
    A("s_nop 1")
    A("s_cmp_eq_u64 vcc, -1")
    A("s_cbranch_scc1 k2_loop")
    A(f"s_sub_u32 s{sT2}, s{sT2}, 1")
    A("s_sleep 2")
    A(f"s_cmp_lg_u32 s{sT2}, 0")
    A("s_cbranch_scc1 k2_pb")
    A("s_branch k2_loop")
    A("k2_fb:")
    A(f"s_mov_b32 s{sPASS}, 1")
    A("s_waitcnt vmcnt(0)")
    A("s_barrier")
    for q in range(4): A(f"v_mov_b32 v{O+q}, 0xff800000")
    A(f"s_mov_b32 s{sKO}, s{sK0}")
    A(f"s_add_u32 s{sT2}, s{sK0}, {3*2048}")
    A(f"s_mov_b32 s{sI}, s{sCNT}")
    A("k2_maxloop:")
    A(ldk(0, 0)); A(ldk(0, 1))
    A("s_waitcnt vmcnt(0)")
    for q in range(4): A(qk(q, 0, 0)); A(qk(q, 0, 1))
    A("s_nop 15")
    for q in range(4):
        for r in range(8): A(f"v_max3_f32 v{O+q}, v{O+q}, v{S+16*q+2*r}, v{S+16*q+2*r+1}")
    A(f"s_add_u32 s{sKO}, s{sKO}, 2048")
    A(f"s_cmp_eq_u32 s{sKO}, s{sT2}")
    A(f"s_cselect_b32 s{sKO}, s{sLO2}, s{sKO}")
    A(f"s_cselect_b32 s{sT2}, 0, s{sT2}")
    A(f"s_sub_u32 s{sI}, s{sI}, 1")
    A(f"s_cmp_lg_u32 s{sI}, 0")
    A("s_cbranch_scc1 k2_maxloop")
    A(f"s_lshl_b32 s{sT}, s{sW}, 8")
    A(f"s_add_u32 s{sT}, s{sT}, {RED}")
    A(f"v_lshl_add_u32 v{vT}, v{vL}, 2, s{sT}")
    A(f"v_and_b32 v{vT+1}, 31, v{vL}")
    A(f"v_lshlrev_b32 v{vT+1}, 2, v{vT+1}")
    A(f"v_add_u32 v{vT+1}, {RED}, v{vT+1}")
    for s in range(4):
        A(f"s_lshl_b32 s{sT}, s{sQ+s}, 10")
        A(f"v_add_u32 v{vT+2}, s{sT}, v{vT}")
        A(f"v_add_u32 v{vT+4+s}, s{sT}, v{vT+1}")
        A(f"ds_write_b32 v{vT+2}, v{O+s}")
    A("s_waitcnt lgkmcnt(0)")
    A("s_barrier")
    for s in range(4):
        for k in range(8): A(f"ds_read_b32 v{S+8*s+k}, v{vT+4+s} offset:{128*k}")
        A("s_waitcnt lgkmcnt(0)")
    A("s_barrier")
    A(f"v_cmp_lt_u32 vcc, 31, v{vL}")
    for q in range(4):
        m = S + 8 * q
        A(f"v_max3_f32 v{m}, v{m}, v{m+1}, v{m+2}")
        A(f"v_max3_f32 v{m}, v{m}, v{m+3}, v{m+4}")
        A(f"v_max3_f32 v{m}, v{m}, v{m+5}, v{m+6}")
        A(f"v_max_f32 v{m}, v{m}, v{m+7}")
        A(f"v_xor_b32 v{m}, 0x80000000, v{m}")
        A(f"v_and_b32 v{m+1}, 0xffff0000, v{m}")
        A(f"v_sub_f32 v{m+2}, v{m}, v{m+1}")
        A(f"v_and_b32 v{m+3}, 0xffff0000, v{m+2}")
        A(f"v_sub_f32 v{m+4}, v{m+2}, v{m+3}")
        A(f"v_lshrrev_b32 v{m+1}, 16, v{m+1}")
        A(f"v_or_b32 v{m+1}, v{m+1}, v{m+3}")
        A(f"v_lshrrev_b32 v{m+4}, 16, v{m+4}")
        A(f"v_cndmask_b32 v{Q+8*q+6}, v{Q+8*q+6}, v{m+1}, vcc")
        A(f"v_cndmask_b32 v{Q+8*q+7}, v{Q+8*q+7}, v{m+4}, vcc")
    A("s_branch k2_pass")


    A("k2_aux:")
    sCOL, sTS = 27, 40
    A(f"s_getpc_b64 {sr(sTS,2)}")
    A(f"s_add_u32 s{sTS}, s{sTS}, tab_small@rel32@lo+4")
    A(f"s_addc_u32 s{sTS+1}, s{sTS+1}, tab_small@rel32@hi+12")
    A(f"s_mov_b32 s{sTS+2}, {TS_BYTES}")
    A(f"s_mov_b32 s{sTS+3}, 0x20000")
    A(f"s_mov_b32 s{sX+2}, 401408")
    A(f"s_mov_b32 s{sX+3}, 0x20000")
    A(f"s_mul_i32 s{sCOL}, s{sXC}, 28")
    A(f"s_add_u32 s{sCOL}, s{sCOL}, s{sJ}")
    A(f"s_cmp_eq_u32 s2, 224")
    A(f"s_cselect_b32 s{sCOL}, 224, s{sCOL}")
    C_ = lambda kind, mt, u: 48 * mt + 16 * kind + 4 * u
    X = 96
    YF = 160
    U0 = 192
    WT = 212
    TM = 244
    vG = 210
    A(f"v_lshrrev_b32 v{TM}, 2, v{vL}")
    A(f"v_mul_u32_u24 v{vG+1}, {WP}, v{TM}")
    A(f"v_mul_u32_u24 v{TM}, {YB}, v{TM}")
    A(f"v_and_b32 v{TM+1}, 3, v{vL}")
    A(f"v_lshl_add_u32 v{vG}, v{TM+1}, 4, v{TM}")
    A(f"v_lshl_add_u32 v{vG+1}, v{TM+1}, 4, v{vG+1}")
    A(f"s_lshr_b32 s{sT}, s{sCOL}, 5")
    A(f"s_lshl_b32 s{sT}, s{sT}, 12")
    A(f"s_and_b32 s{sT2}, s{sCOL}, 31")
    A(f"s_lshl_b32 s{sT2}, s{sT2}, 6")
    A(f"s_add_u32 s{sT}, s{sT}, s{sT2}")
    A(f"s_lshl_b32 s{sKO}, s{sCOL}, 6")
    A(f"v_lshrrev_b32 v{TM}, 5, v{vL}")
    A(f"v_bfe_u32 v{TM+1}, v{vL}, 2, 2")
    A(f"v_lshl_add_u32 v{TM}, v{TM}, 2, v{TM+1}")
    A(f"v_lshlrev_b32 v{TM}, 6, v{TM}")
    A(f"v_bfe_u32 v{TM+1}, v{vL}, 4, 1")
    A(f"v_lshl_add_u32 v{TM}, v{TM+1}, 5, v{TM}")
    A(f"v_and_b32 v{TM+1}, 3, v{vL}")
    A(f"v_lshl_add_u32 v{TM}, v{TM+1}, 3, v{TM}")
    A(f"v_add_u32 v{TM}, {LDS_Y}, v{TM}")
    A(f"s_cmp_eq_u32 s{sW}, 5")
    A("s_cbranch_scc1 k2_help")
    def cld(dst, off):
        A(f"s_mov_b32 s{sT2}, {off}")
        for f in range(4): A(f"buffer_load_dwordx4 {vr(dst+4*f,4)}, v{vO16}, {sr(sTS,4)}, s{sT2} offen offset:{1024*f}")
    LC = LDS_Y + 8192
    for mt in range(2):
        for kind in range(3): cld(C_(kind, mt, 0), TS_F64 + kind * 8192 + 4096 * mt)
    for f in range(22):
        if f % 4 == 0:
            A(f"s_mov_b32 m0, {LC + 1024*f}")
            A(f"s_mov_b32 s{sT2}, {TS_F32 + 1024*f}")
        A(f"buffer_load_dwordx4 v{vO16}, {sr(sTS,4)}, s{sT2} offen offset:{1024*(f%4)} lds")
    sFI = 44
    FE = os.environ.get("FE", "0")
    def fimg():
        A(f"s_mul_i32 s{sFI}, s{sNT}, {2*28672}")
        A(f"s_mov_b32 s{sFI+1}, 0")
        A("k2_fi:")
        A(f"s_lshl_b32 m0, s{sFI+1}, 1")
        A(f"s_add_u32 s{sT2}, s{sFI}, s{sFI+1}")
        A(f"buffer_load_dwordx4 v{vO16}, {sr(sTB,4)}, s{sT2} offen lds")
        A(f"s_add_u32 s{sT2}, s{sT2}, {28672-1024}")
        A(f"buffer_load_dwordx4 v{vO16}, {sr(sTB,4)}, s{sT2} offen offset:1024 lds")
        A(f"s_add_u32 s{sFI+1}, s{sFI+1}, 1024")
        A(f"s_waitcnt vmcnt({os.environ.get('DF', 12)})")
        A(f"s_cmp_lt_u32 s{sFI+1}, 28672")
        A("s_cbranch_scc1 k2_fi")
    if FE == "1":
        A("s_cmp_ge_u32 s2, 224")
        A("s_cbranch_scc1 k2_nfi")
        fimg()
        A("k2_nfi:")
    A(f"s_lshr_b32 s{sI}, s{sCOL}, 6")
    A(f"s_add_u32 s{sI}, s{sI}, 12")
    A(f"s_and_b32 s{sVO}, s{sI}, 1")
    A(f"v_bfe_u32 v100, v{vL}, 1, 1")
    A(f"v_xor_b32 v100, s{sVO}, v100")
    A(f"v_lshrrev_b32 v101, 2, v{vL}")
    A(f"v_and_b32 v102, 1, v{vL}")
    A(f"v_mov_b32 v103, s{sI}")
    A(f"s_bfe_u32 s{sI}, s{sCOL}, 0x10005")
    flag_index(98, 100, 101, 102, 103, f"s{sI}")
    A(f"s_lshr_b32 s{sVO}, s{sCOL}, 6")
    A(f"s_lshl_b32 s{sVO}, s{sVO}, 10")
    A(f"s_add_u32 s{sVO}, s{sVO}, {WS_F1 + 512}")
    A(f"v_lshlrev_b32 v100, 12, v{vL}")
    A("s_waitcnt lgkmcnt(0)")
    A("s_barrier")
    A("s_cmp_gt_u32 s2, 224")
    A("s_cbranch_scc1 k2_auxb1")
    A(f"s_mov_b32 s{sI}, {SPIN}")
    A(f"s_mov_b32 s{sT2}, {WS_F1}")
    A("k2_py:")
    A(f"buffer_load_dwordx2 v[104:105], v98, {sr(sWS,4)}, s{sT2} offen sc1")
    A(f"buffer_load_dwordx2 v[106:107], v100, {sr(sWS,4)}, s{sVO} offen sc1")
    A(f"buffer_load_dwordx2 v[108:109], v100, {sr(sWS,4)}, s{sVO} offen offset:128 sc1")
    A("s_waitcnt vmcnt(0)")
    A("v_cmp_ne_u64 vcc, s[6:7], v[104:105]")
    A("v_cmp_ne_u64 s[36:37], s[6:7], v[106:107]")
    A("v_cmp_ne_u64 s[38:39], s[6:7], v[108:109]")
    A("s_nop 1")
    A("s_or_b64 vcc, vcc, s[36:37]")
    A("s_or_b64 vcc, vcc, s[38:39]")
    A("s_and_b64 exec, exec, vcc")
    A("s_cbranch_scc0 k2_py_done")
    A(f"s_sub_u32 s{sI}, s{sI}, 1")
    A("s_sleep 4")
    A(f"s_cmp_gt_i32 s{sI}, 0")
    A("s_cbranch_scc1 k2_py")
    A("k2_py_done:")
    A("s_mov_b64 exec, -1")
    ST.at(12)
    A("s_setprio 3")
    def ydma(n):
        A(f"s_mov_b32 m0, {LDS_Y + 1024*n}")
        A(f"s_add_u32 s{sT2}, s{sT}, {WS_Y + (n>>2)*2048 + (n&3)*16*YB}")
        A(f"buffer_load_dwordx4 v{vG}, {sr(sWS,4)}, s{sT2} offen sc1 lds")
    def wld(f):
        return [f"s_add_u32 s{sT2}, s{sKO}, {WS_W + f*16*WP}",
                f"buffer_load_dwordx4 {vr(WT+4*f,4)}, v{vG+1}, {sr(sWS,4)}, s{sT2} offen sc1"]
    for n in range(8): ydma(n)
    for f in range(8):
        for x in wld(f): A(x)
    ST.at(0)
    A("s_waitcnt vmcnt(8)")
    ST.at(1)
    for p in range(2):
        for u in range(4):
            A(f"ds_read_b64_tr_b16 {vr(YF+16*p+4*u,2)}, v{TM} offset:{4096*p+1024*u}")
            A(f"ds_read_b64_tr_b16 {vr(YF+16*p+4*u+2,2)}, v{TM} offset:{4096*p+1024*u+512}")
    A("s_waitcnt lgkmcnt(0)")
    Yr = lambda u: vr(YF+4*u,4)
    Yi = lambda u: vr(YF+16+4*u,4)
    mf = lambda d, a, b, first=False: f"v_mfma_f32_32x32x16_bf16 {vr(d,16)}, {a}, {b}, {'0' if first else vr(d,16)}"
    cf = lambda kind, mt, u: vr(C_(kind, mt, u), 4)
    def p3(mt):
        L = []
        for u in range(4):
            L += [mf(X+32*mt, cf(0, mt, u), Yr(u), u == 0), mf(X+32*mt+16, cf(0, mt, u), Yi(u), u == 0)]
        for u in range(4):
            L += [mf(X+32*mt, cf(1, mt, u), Yi(u)), mf(X+32*mt+16, cf(2, mt, u), Yr(u))]
        return L
    Ur = lambda u: (U0 + 4*u) if u < 2 else (YF + 4*u)
    Ui = lambda u: (U0 + 8 + 4*u) if u < 2 else (YF + 16 + 4*u)
    def cmul_pack(xr0, xi0, cr, ci, dr, di):
        L = []
        for i in range(4):
            L += [f"v_mul_f32 v{TM+8+i}, v{xr0+i}, v{cr(i)}", f"v_mul_f32 v{xr0+i}, v{xr0+i}, v{ci(i)}"]
        for i in range(4):
            L += [f"v_fma_f32 v{TM+8+i}, -v{xi0+i}, v{ci(i)}, v{TM+8+i}", f"v_fma_f32 v{xr0+i}, v{xi0+i}, v{cr(i)}, v{xr0+i}"]
        L += [f"v_cvt_pk_bf16_f32 v{dr}, v{TM+8}, v{TM+9}", f"v_cvt_pk_bf16_f32 v{dr+1}, v{TM+10}, v{TM+11}",
              f"v_cvt_pk_bf16_f32 v{di}, v{xr0}, v{xr0+1}", f"v_cvt_pk_bf16_f32 v{di+1}, v{xr0+2}, v{xr0+3}"]
        return L
    def wmul(mt):
        L = []
        for g in range(4):
            w = WT + 4 * (4 * mt + g)
            for i in range(4):
                op = "v_and_b32 v{}, 0xffff0000, v{}" if i & 1 else "v_lshlrev_b32 v{}, 16, v{}"
                L += [op.format(TM + i, w + (i >> 1)), op.format(TM + 4 + i, w + 2 + (i >> 1))]
            u = 2 * mt + (g >> 1)
            L += cmul_pack(X+32*mt+4*g, X+32*mt+16+4*g, lambda i: TM + i, lambda i: TM + 4 + i, Ur(u) + 2*(g&1), Ui(u) + 2*(g&1))
        return L
    def p4(nt, us):
        L = []
        for u in us:
            L += [mf(X+32*nt, vr(Ur(u),4), cf(0, nt, u), u == 0), mf(X+32*nt+16, vr(Ui(u),4), cf(0, nt, u), u == 0)]
        for u in us:
            L += [mf(X+32*nt, vr(Ui(u),4), cf(2, nt, u)), mf(X+32*nt+16, vr(Ur(u),4), cf(1, nt, u))]
        return L
    Tr = lambda nt: YF if nt == 0 else U0
    Ti = lambda nt: YF + 16 if nt == 0 else U0 + 8
    TW = lambda nt: 48 * nt
    F32 = WT
    def twid(nt):
        L = []
        for g in range(4):
            L += cmul_pack(X+32*nt+4*g, X+32*nt+16+4*g, lambda i: TW(nt) + 4*g + i, lambda i: TW(nt) + 16 + 4*g + i, Tr(nt) + 2*g, Ti(nt) + 2*g)
        return L
    def p5(nt):
        L = []
        for t in range(2):
            L += [mf(X+32*nt, vr(F32+4*t,4), vr(Tr(nt)+4*t,4), t == 0), mf(X+32*nt+16, vr(F32+4*t,4), vr(Ti(nt)+4*t,4), t == 0)]
        for t in range(2):
            L += [mf(X+32*nt, vr(F32+16+4*t,4), vr(Ti(nt)+4*t,4)), mf(X+32*nt+16, vr(F32+8+4*t,4), vr(Tr(nt)+4*t,4))]
        return L
    sZR, sZI = 29, 30
    def outp(nt):
        L = []
        for p in range(2):
            z = X + 32*nt + 16*p; P = TW(nt) + 8*p
            for r in range(8): L.append(f"v_cvt_pk_bf16_f32 v{P+r}, v{z+2*r}, v{z+2*r+1}")
            L.append("s_nop 1")
            for t in range(2):
                L += [f"v_permlane32_swap_b32 v{P+4*t}, v{P+4*t+2}", f"v_permlane32_swap_b32 v{P+4*t+1}, v{P+4*t+3}"]
            for t in range(2):
                L.append(f"ds_write_b128 v{vG}, {vr(P+4*t,4)} offset:{4096*p+2048*nt+32*t}")
        return L
    def outst():
        A("s_waitcnt lgkmcnt(0)")
        for k in range(8): A(f"ds_read_b128 {vr(X+4*k,4)}, v{vG+1} offset:{1024*k}")
        for k in range(8):
            A(f"s_waitcnt lgkmcnt({7-k})")
            A(f"buffer_store_dwordx4 {vr(X+4*k,4)}, v{vO16}, {sr(sWS,4)}, s{sZR+(k>>2)} offen offset:{1024*(k&3)} sc1")
    for x in p3(0): A(x)
    ST.at(2)
    A("s_waitcnt vmcnt(4)")
    A("s_nop 7")
    for x in merge(p3(1), wmul(0)): A(x)
    A("s_waitcnt vmcnt(0)")
    A("s_nop 7")
    for x in merge(p4(0, (0, 1)), wmul(1)): A(x)
    for x in p4(0, (2, 3)): A(x)
    ST.at(3)
    A(f"v_add_u32 v{vG+1}, {LDS_Y}, v{vO16}")
    def lcd(dst, off, n):
        for f in range(n): A(f"ds_read_b128 {vr(dst+4*f,4)}, v{vG+1} offset:{8192 + off - TS_F32 + 1024*f}")
    lcd(TW(0), TS_TW, 8); lcd(F32, TS_F32, 6)
    A(f"s_lshr_b32 s{sT}, s{sCOL}, 1")
    A(f"s_and_b32 s{sT2}, s{sCOL}, 1")
    A(f"s_mul_i32 s{sT2}, s{sT2}, 224")
    A(f"s_add_u32 s{sT}, s{sT}, s{sT2}")
    A(f"s_mul_i32 s{sT}, s{sT}, {ZP}")
    A(f"s_add_u32 s{sZR}, s{sT}, {WS_Z}")
    A(f"s_add_u32 s{sZI}, s{sZR}, {112*ZP}")
    A(f"s_cmp_eq_u32 s{sCOL}, 0")
    A(f"s_cselect_b32 s{sZI}, {WS_G + 0x4000}, s{sZI}")
    A(f"s_cmp_eq_u32 s{sCOL}, 224")
    A(f"s_cselect_b32 s{sZI}, {WS_G + 0x6000}, s{sZI}")
    A(f"v_and_b32 v{vG}, 31, v{vL}")
    A(f"v_lshlrev_b32 v{vG}, 6, v{vG}")
    A(f"v_lshrrev_b32 v{TM}, 5, v{vL}")
    A(f"v_lshl_add_u32 v{vG}, v{TM}, 4, v{vG}")
    A(f"v_add_u32 v{vG}, {LDS_Y}, v{vG}")
    A("s_waitcnt lgkmcnt(6)")
    for x in merge(p4(1, (0, 1, 2, 3)), twid(0)): A(x)
    lcd(TW(1), TS_TW + 8192, 8)
    ST.at(4)
    A("s_waitcnt lgkmcnt(0)")
    for x in merge(p5(0), twid(1)): A(x)
    A("s_nop 1")
    for x in merge(p5(1), outp(0)): A(x)
    A("s_nop 7")
    for x in outp(1): A(x)
    outst()
    ST.at(5)
    A("s_setprio 0")
    A(f"s_lshl_b32 s{sT}, s{sCOL}, 7")
    A(f"s_add_u32 s{sT}, s{sT}, {WS_FZ}")
    A(f"v_mov_b32 v{TM+4}, 0")
    A(f"v_mov_b32 v{TM+6}, s6")
    A(f"v_mov_b32 v{TM+7}, s7")
    A("s_mov_b64 exec, 1")
    A("s_waitcnt vmcnt(0)")
    ST.at(6)
    A(f"buffer_store_dwordx2 {vr(TM+6,2)}, v{TM+4}, {sr(sWS,4)}, s{sT} offen sc1")
    A("s_mov_b64 exec, -1")
    A("s_cmp_ge_u32 s2, 224")
    A("s_cbranch_scc1 k2_auxw")
    A(f"v_lshrrev_b32 v{TM}, 3, v{vL}")
    A(f"v_and_b32 v{TM+1}, 7, v{vL}")
    A(f"v_bfe_u32 v{TM+2}, v{vL}, 4, 1")
    A(f"v_lshlrev_b32 v{TM+2}, 2, v{TM+2}")
    A(f"v_xor_b32 v{TM+1}, v{TM+1}, v{TM+2}")
    A(f"v_lshlrev_b32 v{TM+1}, 4, v{TM+1}")
    A(f"v_mul_u32_u24 v{TM+2}, {ZP}, v{TM}")
    A(f"v_add_u32 v{TM+2}, v{TM+2}, v{TM+1}")
    def image(name, lds, vaddr, srd, pitch, flag, depth):
        A(f"s_mov_b32 s{sI}, {lds}")
        A(f"{name}:")
        A(f"s_mov_b32 m0, s{sI}")
        for i in range(4):
            if i: A(f"s_add_u32 s{sT}, s{sT}, {8*pitch-1024}")
            else: A("s_nop 0")
            A(f"buffer_load_dwordx4 v{vaddr}, {srd}, s{sT} offen offset:{1024*i} {flag} lds")
        A(f"s_add_u32 s{sT}, s{sT}, {8*pitch+3072}")
        A(f"s_add_u32 s{sI}, s{sI}, 4096")
        A(f"s_waitcnt vmcnt({depth})")
        A(f"s_cmp_lt_u32 s{sI}, {lds+57344}")
        A(f"s_cbranch_scc1 {name}")
    def poll(name, lines, sl):
        A(f"s_mov_b32 s{sI}, {SPIN}")
        A(f"{name}:")
        for x in lines: A(x)
        A("s_cmp_eq_u64 vcc, -1")
        A(f"s_cbranch_scc1 {name}_done")
        A(f"s_sub_u32 s{sI}, s{sI}, 1")
        A(f"s_sleep {sl}")
        A(f"s_cmp_lg_u32 s{sI}, 0")
        A(f"s_cbranch_scc1 {name}")
        A(f"{name}_done:")
    ST.at(7)
    A(f"s_sleep {os.environ.get('ZD', 6)}")
    A(f"v_lshlrev_b32 v4, 7, v{vL}")
    A(f"v_add_u32 v5, 0x6000, v4")
    A(f"v_min_u32 v5, {224*128}, v5")
    A(f"s_lshr_b32 s{sT}, s{sMT}, 1")
    A(f"s_and_b32 s{sT2}, s{sT}, 3")
    A(f"s_add_u32 s{sT2}, s{sT2}, 28")
    A(f"s_lshl_b32 s{sT2}, s{sT2}, 2")
    A(f"s_lshr_b32 s{sT}, s{sT}, 2")
    A(f"s_add_u32 s{sT2}, s{sT2}, s{sT}")
    A(f"s_lshl_b32 s{sT2}, s{sT2}, 11")
    A(f"s_add_u32 s{sT2}, s{sT2}, {WS_F1 - WS_FZ + 1024 + 256}")
    A(f"v_writelane_b32 v5, s{sT2}, 62")
    A(f"s_add_u32 s{sT2}, s{sT2}, 128")
    A(f"v_writelane_b32 v5, s{sT2}, 63")
    A(f"s_mov_b32 s{sI}, {SPIN}")
    A(f"s_mov_b32 s{sT}, {WS_FZ}")
    A(f"s_mov_b32 s{sT2}, {WS_FZ + 0x2000}")
    A(f"s_mov_b32 s{sKO}, {WS_FZ + 0x4000}")
    A("k2_pz:")
    A(f"buffer_load_dwordx2 v[12:13], v4, {sr(sWS,4)}, s{sT} offen sc1")
    A(f"buffer_load_dwordx2 v[14:15], v4, {sr(sWS,4)}, s{sT2} offen sc1")
    A(f"buffer_load_dwordx2 v[16:17], v4, {sr(sWS,4)}, s{sKO} offen sc1")
    A(f"buffer_load_dwordx2 v[18:19], v5, {sr(sWS,4)}, s{sT} offen sc1")
    A("s_waitcnt vmcnt(0)")
    A("v_cmp_ne_u64 vcc, s[6:7], v[12:13]")
    A("v_cmp_ne_u64 s[36:37], s[6:7], v[14:15]")
    A("v_cmp_ne_u64 s[38:39], s[6:7], v[16:17]")
    A("v_cmp_ne_u64 s[62:63], s[6:7], v[18:19]")
    A("s_nop 1")
    A("s_or_b64 vcc, vcc, s[36:37]")
    A("s_or_b64 vcc, vcc, s[38:39]")
    A("s_or_b64 vcc, vcc, s[62:63]")
    A("s_and_b64 exec, exec, vcc")
    A("s_cbranch_scc0 k2_pz_done")
    A(f"s_sub_u32 s{sI}, s{sI}, 1")
    A(f"s_sleep {os.environ.get('ZSL', 6)}")
    A(f"s_cmp_gt_i32 s{sI}, 0")
    A("s_cbranch_scc1 k2_pz")
    A("k2_pz_done:")
    A("s_mov_b64 exec, -1")
    ST.at(8)
    A(f"s_lshl_b32 s{sT}, s{sMT}, 7")
    A(f"s_add_u32 s{sT}, s{sT}, {WS_Z}")
    image("k2_imz", LZ, TM+2, sr(sWS,4), ZP, os.environ.get("ZF", "sc1"), int(os.environ.get("DZ", 56)))
    A("k2_auxw:")
    ST.at(9)
    A("k2_auxb1:")
    A(f"v_lshrrev_b32 v{vWD}, 3, v{vL}")
    A(f"v_and_b32 v{vT+6}, 7, v{vL}")
    A(f"v_bfe_u32 v{vT+7}, v{vL}, 4, 1")
    A(f"v_lshlrev_b32 v{vT+7}, 2, v{vT+7}")
    A(f"v_xor_b32 v{vT+6}, v{vT+6}, v{vT+7}")
    A(f"v_mul_u32_u24 v{vWD}, 896, v{vWD}")
    A(f"v_lshl_add_u32 v{vWD}, v{vT+6}, 4, v{vWD}")
    A("s_barrier")
    A("s_barrier")
    A("s_cmp_ge_u32 s2, 224")
    A("s_cbranch_scc1 k2_chk")
    A(f"s_lshl_b32 s{sT}, s{sNT}, 7")
    A(f"s_add_u32 s{sT}, s{sT}, {64*896}")
    for i in range(48):
        if i % 4 == 0: A(f"s_mov_b32 m0, {RED + 1024*i}")
        if i: A(f"s_add_u32 s{sT}, s{sT}, {8*896-1024 if i % 4 else 8*896+3072}")
        if i == 47: A("s_mov_b32 exec_hi, 0x00ffffff")
        A(f"buffer_load_dwordx4 v{vWD}, {sr(sX,4)}, s{sT} offen offset:{1024*(i%4)} lds")
    A("s_mov_b32 exec_hi, -1")
    A(f"s_mov_b32 s{sWS_}, s{sT}")
    A("s_waitcnt vmcnt(48)")
    A("s_branch k2_chk")
    A("k2_auxfb:")
    A("s_waitcnt vmcnt(0)")
    A("s_barrier")
    A("s_barrier")
    A("s_barrier")
    A("s_branch k2_auxb1")
    A("k2_auxp3:")
    A(f"v_and_b32 v4, 31, v{vL}")
    A("v_lshlrev_b32 v4, 7, v4")
    A(f"s_lshl_b32 s{sT}, s{sMT}, 12")
    A(f"s_add_u32 s{sT}, s{sT}, {WS_FO}")
    ST.at(10)
    A(f"s_mov_b32 s{sKO}, s{sT}")
    if int(os.environ.get("OD", 0)): A(f"s_sleep {os.environ.get('OD')}")
    A(f"buffer_load_dwordx2 v[0:1], v4, {sr(sWS,4)}, s{sKO} offen sc1")
    A(f"s_mov_b32 m0, {RED + 1024*44}")
    A("s_mov_b32 exec_lo, 0")
    A("s_mov_b32 exec_hi, 0xff000000")
    A(f"buffer_load_dwordx4 v{vWD}, {sr(sX,4)}, s{sWS_} offen offset:3072 lds")
    A("s_mov_b64 exec, -1")
    A(f"s_mov_b32 s{sT}, s{sKO}")
    A("s_waitcnt vmcnt(0)")
    A("v_cmp_eq_u64 vcc, s[6:7], v[0:1]")
    A("s_nop 1")
    A("s_cmp_eq_u64 vcc, -1")
    A("s_cbranch_scc1 k2_po_done")
    poll("k2_po", [f"buffer_load_dwordx2 v[0:1], v4, {sr(sWS,4)}, s{sT} offen sc1", "s_waitcnt vmcnt(0)", "v_cmp_eq_u64 vcc, s[6:7], v[0:1]", "s_nop 1"], int(os.environ.get("OSL", 2)))
    ST.at(11)
    A("s_barrier")
    A(f"s_lshl_b32 s{sT}, s{sNT}, 7")
    for i in range(8):
        if i % 4 == 0: A(f"s_mov_b32 m0, {LW + 1024*i}")
        if i: A(f"s_add_u32 s{sT}, s{sT}, {8*896-1024 if i % 4 else 8*896+3072}")
        A(f"buffer_load_dwordx4 v{vWD}, {sr(sX,4)}, s{sT} offen offset:{1024*(i%4)} lds")
    A("s_waitcnt vmcnt(0)")
    A("s_barrier")
    A("s_branch k2_dump" if DIAG else "s_endpgm")
    A("k2_help:")
    A("s_waitcnt lgkmcnt(0)")
    A("s_barrier")
    A("s_cmp_ge_u32 s2, 224")
    A("s_cbranch_scc1 k2_end")
    A(f"s_sleep {os.environ.get('HD', 40)}")
    fimg()
    A(f"s_and_b32 s{sT}, s{sJ}, 3")
    A(f"s_mul_i32 s{sT}, s{sT}, {112*896}")
    A(f"s_lshl_b32 s{sT2}, s{sNT}, 7")
    A(f"s_add_u32 s{sT}, s{sT}, s{sT2}")
    A(f"v_mul_u32_u24 v8, 896, v{vL}")
    A(f"buffer_load_dword v9, v8, {sr(sX,4)}, s{sT} offen")
    A(f"s_add_u32 s{sT}, s{sT}, {48*896}")
    A(f"buffer_load_dword v10, v8, {sr(sX,4)}, s{sT} offen")
    A("s_waitcnt vmcnt(0)")
    A("s_endpgm")
    if DIAG: A("k2_dump:")
    ST.dump(sWS, sW, 5, 250)
    A("k2_end:")
    A("s_endpgm")
    body = A.L[loop_start:loop_end]
    rep = check_seq(body + body)
    assert not rep, rep
    return A.L, NV, 102 if DIAG else 64
```

```python
from asmlib import *
import math, os, struct
WS_Q, WS_K, WS_V, WS_Y, WS_W, WS_O, WS_Z, WS_G = 0x0, 0x200000, 0x400000, 0x600000, 0x840000, 0xA80000, 0xC80000, 0xE50000
WS_FO, WS_FZ, WS_F1 = 0xE60000, 0xE90000, 0xEA0000
SPIN = 200000
YB, WP, ZP = 32896, 16512, 4224
WS_BYTES = 0x1000000
def f2u(x): return struct.unpack("<I", struct.pack("<f", x))[0]
QSCALE = f2u(28 ** -0.5 * math.log2(math.e))
STF = os.environ.get('STF', 'sc1')
STF0 = os.environ.get('STF0', STF)
STFW = os.environ.get('STFW', STF)
WB = int(os.environ.get('WB', -1))
LA = 114688
NB = int(os.environ.get('NB', 12))
K1_LDS = 163840
WPOS = int(os.environ.get("WPOS", 5))

def get_tag(A, lab, stmp, vt):
    A("s_load_dwordx2 s[6:7], s[4:5], 0")
    A(f"s_mov_b32 s{stmp}, {SPIN}")
    A("s_waitcnt lgkmcnt(0)")
    A("s_cmp_lg_u32 s6, 0")
    A(f"s_cbranch_scc1 {lab}_done")
    A(f"v_mov_b32 v{vt}, 0")
    A(f"{lab}:")
    A(f"global_load_dwordx2 {vr(vt+2,2)}, v{vt}, s[4:5] sc1")
    A(f"s_sub_u32 s{stmp}, s{stmp}, 1")
    A("s_waitcnt vmcnt(0)")
    A(f"v_readfirstlane_b32 s6, v{vt+2}")
    A(f"v_readfirstlane_b32 s7, v{vt+3}")
    A("s_cmp_lg_u32 s6, 0")
    A(f"s_cbranch_scc1 {lab}_done")
    A("s_sleep 4")
    A(f"s_cmp_lg_u32 s{stmp}, 0")
    A(f"s_cbranch_scc1 {lab}")
    A(f"{lab}_done:")

def gen_k1():
    A = Asm()
    sX, sB, sWS, sWR, sWI = 8, 12, 16, 20, 24
    sPC = 28
    sW, sMT, sNT, sC, sCA, sCB, sPITCH, sP4, sT, sT2, sBB = 30, 31, 32, 33, 34, 35, 36, 37, 38, 39, 40
    sGS, sLA, sLB, sP64, sP384, sJ, sW8 = 41, 42, 43, 44, 45, 46, 47
    sW0, sWST, sC0 = 48, 52, 53
    sGW, sPAR, sB2 = 60, 58, 59
    sDB = 4
    vL, vA0, vA1, vB = 64, 65, 66, 67
    vRA, vRB = 68, 72
    FR = 76
    MB = 124
    WL, vGW = 76, 112
    vT = 172
    vWO, vST = 188, 189
    PK = 192
    vPF = 224
    NV = 228
    D = 3

    A("s_cmp_ge_u32 s2, 256")
    A("s_cbranch_scc1 k2_end")
    ST = Stamps(A, 0); ST.begin()
    A(f"s_load_dwordx2 {sr(sX,2)}, s[0:1], 0")
    A(f"s_load_dwordx2 {sr(sB,2)}, s[0:1], 32")
    A(f"s_load_dwordx2 {sr(sWS,2)}, s[0:1], 72")
    A(f"s_load_dwordx2 {sr(sWR,2)}, s[0:1], 8")
    A(f"s_load_dwordx2 {sr(sWI,2)}, s[0:1], 16")
    A(f"s_load_dwordx2 {sr(sGW,2)}, s[0:1], 48")
    A(f"s_load_dwordx2 {sr(sDB,2)}, s[0:1], 64")
    A(f"s_getpc_b64 {sr(sPC,2)}")
    A("k1_pc:")
    A(f"v_and_b32 v{vL}, 63, v0")
    A(f"v_lshrrev_b32 v{vT}, 6, v0")
    A(f"v_mul_u32_u24 v{vT+1}, 24, v{vT}")
    A(f"v_add_lshl_u32 v{vT+1}, v{vT+1}, v{vL}, 7")
    A("s_mov_b64 exec, 0xffffff")
    A(f"global_load_dword v{vPF}, v{vT+1}, {sr(sPC,2)}")
    A("s_mov_b64 exec, -1")
    A(f"v_readfirstlane_b32 s{sW8}, v{vT}")
    A(f"s_lshr_b32 s{sJ}, s2, 3")
    A(f"s_and_b32 s{sT}, s{sJ}, 3")
    A(f"s_lshr_b32 s{sT2}, s{sJ}, 2")
    A(f"s_bfe_u32 s{sMT}, s2, 0x20001")
    A(f"s_lshl_b32 s{sMT}, s{sMT}, 2")
    A(f"s_add_u32 s{sMT}, s{sMT}, s{sT}")
    A(f"s_and_b32 s{sNT}, s2, 1")
    A(f"s_lshl_b32 s{sNT}, s{sNT}, 3")
    A(f"s_add_u32 s{sNT}, s{sNT}, s{sT2}")
    A(f"s_and_b32 s{sPAR}, s{sT2}, 1")
    A(f"s_lshr_b32 s{sT2}, s{sT2}, 1")
    A(f"s_add_u32 s{sC}, s{sT}, s{sT2}")
    A(f"s_lshl_b32 s{sC}, s{sC}, 1")
    A(f"s_cmp_ge_u32 s{sC}, 7")
    A(f"s_cselect_b32 s{sT}, 7, 0")
    A(f"s_sub_u32 s{sC}, s{sC}, s{sT}")
    R1 = os.environ.get("R1", "full")
    if R1 == "none": A(f"s_mov_b32 s{sC}, 0")
    if R1 == "two":
        A(f"s_and_b32 s{sC}, s{sJ}, 1")
        A(f"s_mul_i32 s{sC}, s{sC}, 3")
    if R1 == "one":
        A(f"s_and_b32 s{sC}, s{sJ}, 1")
    if R1 == "xcd":
        A(f"s_and_b32 s{sC}, s2, 7")
        A(f"s_min_u32 s{sC}, s{sC}, 6")
    A(f"s_and_b32 s{sW}, s{sW8}, 3")
    A(f"s_lshl_b32 s{sBB}, s{sMT}, 1")
    A(f"s_add_u32 s{sBB}, s{sBB}, s{sPAR}")
    A(f"s_lshl_b32 s{sBB}, s{sBB}, 1")
    A(f"s_and_b32 s{sT}, s{sW}, 1")
    A(f"s_add_u32 s{sBB}, s{sBB}, s{sT}")
    A(f"s_xor_b32 s{sB2}, s{sBB}, 2")
    A(f"s_movk_i32 s{sPITCH}, 1024")
    A(f"s_cmp_ge_u32 s{sNT}, 12")
    A(f"s_cselect_b32 s{sPITCH}, s{sPITCH}, 2688")
    A(f"s_cselect_b32 s{sGS}, 64, 56")
    A(f"s_lshl_b32 s{sLA}, s{sT}, 12")
    A(f"s_add_u32 s{sLA}, s{sLA}, {LA}")
    A(f"s_cmp_lt_u32 s{sW8}, 4")
    A("s_cbranch_scc1 k1_comp")
    A(f"s_mul_i32 s{sCA}, s{sBB}, 896")
    A(f"s_lshl_b32 s{sT}, s{sC}, 7")
    A(f"s_add_u32 s{sCA}, s{sCA}, s{sT}")
    A(f"v_lshrrev_b32 v{vT}, 3, v{vL}")
    A(f"v_mul_u32_u24 v{vA0}, 57344, v{vT}")
    A(f"v_lshrrev_b32 v{vT+1}, 4, v{vL}")
    A(f"v_and_b32 v{vT+3}, 7, v{vL}")
    A(f"v_xor_b32 v{vT+3}, v{vT+3}, v{vT+1}")
    A(f"v_lshl_add_u32 v{vA0}, v{vT+3}, 4, v{vA0}")
    A(f"v_xor_b32 v{vA1}, 64, v{vA0}")
    A(f"s_mov_b32 s{sX+2}, 1835008")
    A(f"s_mov_b32 s{sX+3}, 0x20000")
    A(f"s_mul_i32 s{sT}, s{sNT}, 224")
    A(f"s_lshl_b32 s{sT2}, s{sNT}, 8")
    A(f"s_sub_u32 s{sT2}, s{sT2}, 3072")
    A(f"s_cmp_ge_u32 s{sNT}, 12")
    A(f"s_cselect_b32 s{sCB}, s{sT2}, s{sT}")
    A(f"s_lshl_b32 s{sP4}, s{sPITCH}, 2")
    A(f"s_sub_u32 s{sP4}, s{sP4}, 1024")
    A(f"s_lshl_b32 s{sT}, s{sC}, 1")
    A(f"s_add_u32 s{sT}, s{sT}, s{sW}")
    A(f"s_lshl_b32 s{sT}, s{sT}, 5")
    A(f"s_mul_i32 s{sT}, s{sT}, s{sPITCH}")
    A(f"s_add_u32 s{sCB}, s{sCB}, s{sT}")
    A(f"s_lshl_b32 s{sLB}, s{sW}, 13")
    A(f"v_mul_u32_u24 v{vB}, s{sPITCH}, v{vT+1}")
    A(f"v_bfe_u32 v{vT+3}, v{vL}, 2, 2")
    A(f"v_xor_b32 v{vT+3}, v{vT+3}, v{vT+1}")
    A(f"v_lshlrev_b32 v{vT+3}, 2, v{vT+3}")
    A(f"v_and_or_b32 v{vT+3}, v{vL}, 3, v{vT+3}")
    A(f"v_lshl_add_u32 v{vB}, v{vT+3}, 4, v{vB}")
    A(f"s_getpc_b64 {sr(56,2)}")
    A("s_add_u32 s56, s56, tab_fwd@rel32@lo+4")
    A("s_addc_u32 s57, s57, tab_fwd@rel32@hi+12")
    A(f"s_mov_b32 s{sB+2}, 458752")
    A(f"s_mov_b32 s{sB+3}, 0x20000")
    A(f"s_cmp_ge_u32 s{sNT}, 12")
    A(f"s_cselect_b32 s{sT}, 16, 14")
    A(f"s_cmp_eq_u32 s{sNT}, 15")
    A(f"s_cselect_b32 s{sT}, 12, s{sT}")
    A(f"v_cmp_gt_u32 s[54:55], s{sT}, v{vT+3}")
    A(f"s_mov_b32 s{sC0}, s{sC}")
    A(f"s_lshl_b32 s{sP64}, s{sPITCH}, 6")
    A(f"s_mul_i32 s{sP384}, s{sP64}, 7")
    A("s_waitcnt lgkmcnt(0) ; WSB")
    A(f"s_cmp_ge_u32 s{sNT}, 12")
    A(f"s_cselect_b32 s{sB}, s56, s{sB}")
    A(f"s_cselect_b32 s{sB+1}, s57, s{sB+1}")
    A(f"s_cselect_b32 s{sB+2}, s{sB+2}, 1204224")
    Q = []
    def issue(n):
        A(f"s_add_u32 m0, s{sLA}, {8192*(n%6)}")
        for i in range(4):
            A(f"s_add_u32 s{sT}, s{sCA}, {457728*i}")
            A(f"buffer_load_dwordx4 v{vA0 + (i&1)}, {sr(sX,4)}, s{sT} offen offset:{1024*i} lds")
        Q.extend([n] * 4)
        if n < 7:
            A("s_mov_b64 exec, s[54:55]")
            for i in range(8):
                if i % 4 == 0: A(f"s_add_u32 m0, s{sLB}, {16384*n + 1024*i}")
                if i == 0: A(f"s_mov_b32 s{sT}, s{sCB}")
                else: A(f"s_add_u32 s{sT}, s{sT}, s{sP4}")
                if i == 4: A(f"s_add_u32 s{sT}, s{sT}, 4096")
                A(f"buffer_load_dwordx4 v{vB}, {sr(sB,4)}, s{sT} offen offset:{1024*(i%4)} lds")
            A("s_mov_b64 exec, -1")
            Q.extend([n] * 8)
        if n == 13: return
        A(f"s_add_u32 s{sCA}, s{sCA}, 128")
        if n < 6: A(f"s_add_u32 s{sCB}, s{sCB}, s{sP64}")
        A(f"s_add_u32 s{sC}, s{sC}, 1")
        A(f"s_cmp_eq_u32 s{sC}, 7")
        A(f"s_cselect_b32 s{sT}, 896, 0")
        if n < 6: A(f"s_cselect_b32 s{sT2}, s{sP384}, 0")
        A(f"s_cselect_b32 s{sC}, 0, s{sC}")
        A(f"s_sub_u32 s{sCA}, s{sCA}, s{sT}")
        if n < 6: A(f"s_sub_u32 s{sCB}, s{sCB}, s{sT2}")
        if n == 6:
            A(f"s_mul_i32 s{sT}, s{sPAR}, {-4*896}")
            A(f"s_add_u32 s{sCA}, s{sCA}, s{sT}")
            A(f"s_add_u32 s{sCA}, s{sCA}, {2*896}")
    def wait_for(tag):
        if tag not in Q: return
        last = max(i for i, t in enumerate(Q) if t == tag)
        A(f"s_waitcnt vmcnt({len(Q) - 1 - last})")
        del Q[:last + 1]
    ST.at(0)
    issue(0)
    A(f"s_mov_b32 s{sGW+2}, 896")
    A(f"s_mov_b32 s{sGW+3}, 0x20000")
    A(f"s_cmp_lg_u32 s{sNT}, 15")
    A("s_cbranch_scc1 k1_nog")
    A(f"v_and_b32 v{vT+4}, 31, v{vL}")
    A(f"v_lshlrev_b32 v{vT+5}, 1, v{vT+4}")
    A(f"s_lshl_b32 s{sT}, s{sW}, 6")
    A(f"s_lshl_b32 s{sT2}, s{sC0}, 7")
    A(f"s_add_u32 s{sT}, s{sT}, s{sT2}")
    for i in range(7):
        A(f"buffer_load_ushort v{vGW+i}, v{vT+5}, {sr(sGW,4)}, s{sT} offen")
        if i < 6:
            A(f"s_add_u32 s{sT}, s{sT}, 128")
            A(f"s_cmp_ge_u32 s{sT}, 896")
            A(f"s_cselect_b32 s{sT2}, 896, 0")
            A(f"s_sub_u32 s{sT}, s{sT}, s{sT2}")
    A(f"v_and_b32 v{vT+5}, 3, v{vL}")
    A(f"v_xor_b32 v{vT+5}, 3, v{vT+5}")
    A(f"v_lshlrev_b32 v{vT+5}, 6, v{vT+5}")
    A(f"v_lshl_add_u32 v{vGW+8}, v{vT+4}, 8, v{vT+5}")
    A(f"v_add_u32 v{vGW+8}, s{sLB}, v{vGW+8}")
    A(f"v_add_u32 v{vGW+9}, 0x10000, v{vGW+8}")
    A("k1_nog:")
    issue(1)
    ST.at(1)
    for r in (sWS, sWR, sWI):
        A(f"s_mov_b32 s{r+2}, {WS_BYTES if r == sWS else 921600}")
        A(f"s_mov_b32 s{r+3}, 0x20000")
    A(f"s_lshr_b32 s{sT}, s2, 4")
    A(f"s_bfe_u32 s{sT2}, s2, 0x20002")
    A(f"s_lshl_b32 s{sT2}, s{sT2}, 1")
    A(f"s_and_b32 s{sW0}, s{sW}, 1")
    A(f"s_add_u32 s{sT2}, s{sT2}, s{sW0}")
    A(f"s_lshl_b32 s{sWST}, s{sT}, 3")
    A(f"s_add_u32 s{sWST}, s{sWST}, s{sT2}")
    A(f"s_mul_i32 s{sWST}, s{sWST}, {WP}")
    A(f"s_lshl_b32 s{sW0}, s{sT}, 5")
    A(f"s_add_u32 s{sW0}, s{sW0}, s{sT2}")
    A(f"s_mul_i32 s{sW0}, s{sW0}, 1800")
    A(f"s_and_b32 s{sT}, s2, 3")
    A(f"s_lshl_b32 s{sGS}, s{sT}, 1")
    A(f"s_lshl_b32 s{sT2}, s{sGS}, 6")
    A(f"s_add_u32 s{sW0}, s{sW0}, s{sT2}")
    for i in range(1, 4): A(f"s_add_u32 s{sW0+i}, s{sW0}, {14400*i}")
    A(f"s_lshl_b32 s{sT2}, s{sGS}, 11")
    A(f"s_add_u32 s{sWST}, s{sWST}, s{sT2}")
    A(f"s_add_u32 s{sWST}, s{sWST}, {WS_W}")
    A(f"v_lshrrev_b32 v{vT}, 5, v{vL}")
    A(f"v_mul_u32_u24 v{vT}, 900, v{vT}")
    A(f"v_and_b32 v{vWO}, 31, v{vL}")
    A(f"v_lshl_add_u32 v{vWO}, v{vWO}, 1, v{vT}")
    A(f"v_lshlrev_b32 v{vST}, 4, v{vL}")
    A(f"v_and_b32 v{vT+6}, 3, v{vL}")
    A(f"v_lshlrev_b32 v{vT+6}, 6, v{vT+6}")
    A(f"v_and_or_b32 v{vT+6}, v{vL}, 60, v{vT+6}")
    A(f"s_and_b32 s{sT}, s{sNT}, 3")
    A(f"s_lshl_b32 s{sT}, s{sT}, 8")
    A(f"s_lshl_b32 s{sT2}, s{sMT}, 1")
    A(f"s_add_u32 s{sT2}, s{sT2}, s{sW}")
    A(f"s_cmp_ge_u32 s{sNT}, 4")
    A(f"s_cselect_b32 s{sT2}, s{sT2}, s{sBB}")
    A(f"s_add_u32 s{sT}, s{sT}, s{sT2}")
    A(f"s_lshl_b32 s{sT}, s{sT}, 11")
    A(f"s_lshr_b32 s{sT2}, s{sNT}, 2")
    A(f"s_lshl_b32 s{sT2}, s{sT2}, 21")
    A(f"s_add_u32 s{sB2}, s{sT}, s{sT2}")
    A(f"s_lshl_b32 s{sT}, s{sNT}, 13")
    A(f"s_mul_i32 s{sT2}, s{sBB}, {YB}")
    A(f"s_add_u32 s{sT}, s{sT}, s{sT2}")
    A(f"s_add_u32 s{sT}, s{sT}, {WS_Y - 12*8192}")
    A(f"s_movk_i32 s{sC0}, 2048")
    A(f"s_cmp_ge_u32 s{sNT}, 12")
    A(f"s_cselect_b32 s{sB2}, s{sT}, s{sB2}")
    A(f"s_cselect_b32 s{sC0}, s{sC0}, {64*2048}")
    A(f"s_lshl_b32 s{sT}, s{sW}, 12")
    A(f"v_add_u32 v{vT+7}, s{sT}, v{vST}")
    def prefetches():
        A(f"s_load_dwordx2 {sr(sGW,2)}, s[0:1], 40")
        A(f"s_getpc_b64 {sr(56,2)}")
        A("s_add_u32 s56, s56, tab_inv@rel32@lo+4")
        A("s_addc_u32 s57, s57, tab_inv@rel32@hi+12")
        A(f"s_mov_b32 s{sGW+2}, 401408")
        A(f"s_mul_i32 s{sT}, s2, {13*128}")
        A(f"v_lshl_add_u32 v{vT}, v{vL}, 7, s{sT}")
        A("s_waitcnt lgkmcnt(0)")
        A(f"s_bitcmp1_b32 s{sW}, 0")
        A(f"s_cselect_b32 s{sGW}, s56, s{sGW}")
        A(f"s_cselect_b32 s{sGW+1}, s57, s{sGW+1}")
        A("s_mov_b64 exec, 0x1fff")
        A(f"buffer_load_dword v{vPF+2}, v{vT}, {sr(sGW,4)}, 0 offen")
        A("s_mov_b64 exec, -1")
        Q.append("p")
        A(f"s_cmp_lg_u32 s{sW8}, 4")
        A("s_cbranch_scc1 k1_npf")
        A(f"s_cmp_ge_u32 s{sJ}, 8")
        A("s_cbranch_scc1 k1_npf")
        A(f"s_getpc_b64 {sr(56,2)}")
        A("s_add_u32 s56, s56, tab_small@rel32@lo+4")
        A("s_addc_u32 s57, s57, tab_small@rel32@hi+12")
        A(f"s_getpc_b64 {sr(62,2)}")
        A("s_add_u32 s62, s62, k2_start@rel32@lo+1028")
        A("s_addc_u32 s63, s63, k2_start@rel32@hi+1036")
        A(f"s_cmp_ge_u32 s{sJ}, 6")
        A(f"s_cselect_b32 s56, s62, s56")
        A(f"s_cselect_b32 s57, s63, s57")
        A(f"s_cselect_b32 s{sT}, 6, 0")
        A(f"s_sub_u32 s{sT}, s{sJ}, s{sT}")
        A(f"s_lshl_b32 s{sT}, s{sT}, 13")
        A(f"v_lshl_add_u32 v{vT}, v{vL}, 7, s{sT}")
        A(f"global_load_dword v{vPF+3}, v{vT}, s[56:57]")
        A("k1_npf:")
    PFP = int(os.environ.get('PFP', WPOS))
    if PFP < 0: prefetches()
    if os.environ.get("TOUCH", "0") == "1":
        A("s_mov_b64 exec, 1")
        A(f"buffer_load_dword v{vPF+1}, v{vST}, {sr(sWS,4)}, s{sWST} offen")
        A("s_mov_b64 exec, -1")
        Q.append("t")
    def wloads():
        for r in range(2):
            for kk in range(2):
                for p, srd in enumerate((sWR, sWI)):
                    for i in range(4):
                        A(f"buffer_load_ushort v{WL+16*r+8*kk+4*p+i}, v{vWO}, {sr(srd,4)}, s{sW0+i} offen offset:{450*kk+64*r}")
        Q.extend(["w"] * 32)
    def wstore():
        if "w" in Q: A("s_waitcnt vmcnt(0)")
        for r in range(2):
            W_ = WL + 16 * r
            for kk in range(2):
                for p in range(4):
                    A(f"v_lshl_or_b32 v{W_+8*kk+p}, v{W_+8*kk+2*p+1}, 16, v{W_+8*kk+2*p}")
            for p in range(4): A(f"v_permlane16_swap_b32 v{W_+p}, v{W_+8+p}")
            for kk in range(2):
                for p in range(4): A(f"ds_bpermute_b32 v{W_+8*kk+4+p}, v{vT+6}, v{W_+8*kk+p}")
        A(f"s_cmp_eq_u32 s{sGS}, 6")
        A("s_cselect_b64 s[54:55], 0xff, -1")
        A("s_cselect_b64 s[56:57], 1, -1")
        A("s_waitcnt lgkmcnt(0)")
        for k in range(4):
            if k >= 2: A(f"s_mov_b64 exec, s[{54+2*(k&1)}:{55+2*(k&1)}]")
            A(f"buffer_store_dwordx4 {vr(WL+8*k+4,4)}, v{vST}, {sr(sWS,4)}, s{sWST} offen offset:{1024*k} {STFW}")
        A("s_mov_b64 exec, -1")
    for n in range(NB):
        wait_for(n if n < NB - 1 else 13)
        if n == 0:
            A(f"s_cmp_lg_u32 s{sNT}, 15")
            A("s_cbranch_scc1 k1_ng")
            for i in range(7): A(f"ds_write_b16 v{vGW+8+(i>>2)}, v{vGW+i} offset:{16384*(i&3)}")
            A("s_waitcnt lgkmcnt(0)")
            A("k1_ng:")
        A("s_barrier")
        if n < 12: ST.at(2 + n)
        if n <= 4: issue(n + 2)
        if n == 4: issue(7); issue(8)
        if 5 <= n <= 9: issue(n + 4)
        if n == NB - 2: A(f"s_load_dwordx2 s[28:29], {sr(sDB,2)}, 0")
        if n == WPOS: wloads()
        if n == PFP: prefetches()
    for k in range(8): A(f"ds_read_b128 {vr(PK+4*k,4)}, v{vT+7} offset:{8192*(k>>2)+1024*(k&3)}")
    A(f"s_cmp_eq_u32 s{sNT}, 15")
    A("s_cselect_b64 s[54:55], 0xff, -1")
    A("s_cselect_b64 s[56:57], 0xff, -1")
    for k in range(8):
        A(f"s_waitcnt lgkmcnt({7-k})")
        if k >= 4: A(f"s_mov_b64 exec, s[{54+2*(k&1)}:{55+2*(k&1)}]")
        if k and k % 2 == 0: A(f"s_add_u32 s{sB2}, s{sB2}, s{sC0}")
        A(f"buffer_store_dwordx4 {vr(PK+4*k,4)}, v{vST}, {sr(sWS,4)}, s{sB2} offen offset:{1024*(k&1)} {STF0}")
    A("s_mov_b64 exec, -1")
    wstore()
    A("s_branch k1_pf")

    A("k1_comp:")
    A(f"s_mov_b32 s{sWS+2}, {WS_BYTES}")
    A(f"s_mov_b32 s{sWS+3}, 0x20000")
    A(f"s_or_b32 s{sT}, s2, s{sW}")
    A(f"s_cmp_lg_u32 s{sT}, 0")
    A("s_cbranch_scc1 k1_ntag")
    A("s_memrealtime s[62:63]")
    A(f"s_mov_b32 s{sDB+2}, 256")
    A(f"s_mov_b32 s{sDB+3}, 0x20000")
    A(f"v_mov_b32 v{vT}, 0")
    A("s_waitcnt lgkmcnt(0)")
    A("s_or_b32 s62, s62, 1")
    A(f"v_mov_b32 v{vT+2}, s62")
    A(f"v_mov_b32 v{vT+3}, s63")
    A("s_mov_b64 exec, 1")
    A(f"buffer_store_dwordx2 {vr(vT+2,2)}, v{vT}, {sr(sDB,4)}, 0 offen sc1")
    A("s_mov_b64 exec, -1")
    A("k1_ntag:")
    A(f"v_lshlrev_b32 v{vST}, 4, v{vL}")
    A(f"v_and_b32 v{vT}, 31, v{vL}")
    A(f"v_lshrrev_b32 v{vT+1}, 5, v{vL}")
    A(f"v_bfe_u32 v{vT+2}, v{vL}, 1, 3")
    A(f"v_xor_b32 v{vT+2}, v{vT+2}, v{vT+1}")
    A(f"v_lshlrev_b32 v{vT+2}, 4, v{vT+2}")
    A(f"v_lshl_add_u32 v{vT+2}, v{vT}, 7, v{vT+2}")
    A(f"v_add_u32 v{vRA}, s{sLA}, v{vT+2}")
    for u in range(1, 4): A(f"v_xor_b32 v{vRA+u}, {32*u}, v{vRA}")
    A(f"v_bfe_u32 v{vT+2}, v{vL}, 2, 2")
    A(f"v_lshl_add_u32 v{vT+3}, v{vT+1}, 3, v{vT+2}")
    A(f"v_lshlrev_b32 v{vT+3}, 8, v{vT+3}")
    A(f"v_bfe_u32 v{vT+4}, v{vL}, 4, 1")
    A(f"v_lshlrev_b32 v{vT+4}, 5, v{vT+4}")
    A(f"v_and_b32 v{vT+5}, 3, v{vL}")
    A(f"v_lshl_add_u32 v{vT+4}, v{vT+5}, 3, v{vT+4}")
    A(f"s_and_b32 s{sT}, s{sW}, 2")
    A(f"s_mul_i32 s{sT}, s{sT}, s{sGS}")
    A(f"v_add_u32 v{vT+4}, s{sT}, v{vT+4}")
    A(f"v_lshlrev_b32 v{vT+2}, 6, v{vT+2}")
    for g in range(2):
        A(f"v_xor_b32 v{vT+5}, v{vT+4}, v{vT+2}")
        A(f"v_add_u32 v{vRB+g}, v{vT+5}, v{vT+3}")
        A(f"v_add_u32 v{vRB+2+g}, 0x10000, v{vRB+g}")
        if g == 0: A(f"v_add_u32 v{vT+4}, s{sGS}, v{vT+4}")
    MC = lambda p: MB + 24 * p
    A(f"s_cmp_lt_u32 s{sNT}, 12")
    A("s_cbranch_scc1 k1_nom")
    A(f"v_cvt_f32_u32 v{vT+3}, v{vT}")
    A(f"v_mul_f32 v{vT+3}, {hex(f2u(1/32))}, v{vT+3}")
    for p in range(2):
        A(f"v_lshl_add_u32 v{vT+2}, v{vT+1}, 8, s{sBB if p == 0 else sB2}")
        A(f"v_mul_u32_u24 v{vT+2}, v{vT+2}, v{vT}")
        A(f"v_cvt_f32_u32 v{vT+2}, v{vT+2}")
        A(f"v_mul_f32 v{vT+2}, {hex(f2u(1/2048))}, v{vT+2}")
        for t in range(2):
            for jp in range(4):
                for e in range(2):
                    j = 2 * jp + e
                    n = 16 * t + 8 * (j >> 2) + (j & 3)
                    A(f"v_fmamk_f32 v{vT+4+e}, v{vT+3}, {hex(f2u(float(n)))}, v{vT+2}")
                    A(f"v_fract_f32 v{vT+4+e}, v{vT+4+e}")
                A(f"v_cos_f32 v{vT+6}, v{vT+4}")
                A(f"v_cos_f32 v{vT+7}, v{vT+5}")
                A(f"v_sin_f32 v{vT+8}, v{vT+4}")
                A(f"v_sin_f32 v{vT+9}, v{vT+5}")
                A(f"v_cvt_pk_bf16_f32 v{MC(p)+4*t+jp}, v{vT+6}, v{vT+7}")
                A(f"v_cvt_pk_bf16_f32 v{MC(p)+8+4*t+jp}, v{vT+8}, v{vT+9}")
                A(f"v_cvt_pk_bf16_f32 v{MC(p)+16+4*t+jp}, -v{vT+8}, -v{vT+9}")
    A("k1_nom:")
    if int(os.environ.get("CP", 0)): A(f"s_setprio {os.environ.get('CP')}")
    A("s_waitcnt lgkmcnt(0) ; WSB")

    def reads(m):
        n, u = m // 4, m % 4; i = n % 7; buf = FR + 12 * (m % 4)
        L = [f"ds_read_b128 {vr(buf,4)}, v{vRA+u} offset:{8192*(n%6)}"]
        for g in range(2):
            off = 16384 * (i & 3) + 4096 * u
            L += [f"ds_read_b64_tr_b16 {vr(buf+4+4*g+2*x,2)}, v{vRB+2*(i>>2)+g} offset:{off+1024*x}" for x in range(2)]
        return L
    def steps(m0, m1, swap, fill):
        k = 0; done = 0; nm = 20 + 8 * (NB - 12)
        for m in range(m0, m1):
            n, u = m // 4, m % 4; acc = 32 * (m // 28); buf = FR + 12 * (m % 4)
            A(f"s_waitcnt lgkmcnt({5 * min(D - 1, 55 - m)})")
            if u == 4 - D and n + 1 < NB:
                if n + 1 == NB - 1:
                    assert done == len(fill)
                    A("s_waitcnt lgkmcnt(5)")
                A("s_barrier")
                if n + 1 < 8: ST.at(2 + n + 1)
            rd = reads(m + D) if m + D < 56 else [None] * 5
            for g in range(2):
                a_, b_ = vr(buf,4), vr(buf+4+4*g,4)
                if swap: a_, b_ = b_, a_
                A(f"v_mfma_f32_32x32x16_bf16 {vr(acc+16*g,16)}, {a_}, {b_}, {'0' if m % 28 == 0 else vr(acc+16*g,16)}")
                if m >= m0 + 2 and fill:
                    k += 1; k2 = min(len(fill), -(-len(fill) * k // nm))
                    while done < k2 and not (fill[done].startswith("ds_write") and m < 34):
                        A(fill[done]); done += 1
                for x in (rd[:3] if g == 0 else rd[3:]):
                    if x: A(x)
        assert done == len(fill)
    def touch(step):
        if os.environ.get("TOUCH", "0") != "1": return
        A(f"s_sub_u32 s{sT}, s{sO[1]}, s{sO[0]}")
        A(f"v_and_b32 v{vT+10}, 1, v{vL}")
        A(f"v_mul_u32_u24 v{vT+10}, {step}, v{vT+10}")
        A(f"v_bfe_u32 v{vT+11}, v{vL}, 1, 1")
        A(f"v_mul_lo_u32 v{vT+11}, v{vT+11}, s{sT}")
        A(f"v_add3_u32 v{vT+10}, v{vT+10}, v{vT+11}, s{sO[0]}")
        A("s_mov_b64 exec, 15")
        A(f"buffer_load_dword v{vPF+1}, v{vT+10}, {sr(sWS,4)}, 0 offen")
        A("s_mov_b64 exec, -1")
    def pass0(swap):
        A("s_waitcnt lgkmcnt(0)")
        A("s_barrier")
        ST.at(2)
        for x in reads(0) + reads(1) + reads(2): A(x)
        steps(0, 28, swap, [])
        ST.at(10)
    st = lambda r, so, off: f"buffer_store_dwordx4 {vr(r,4)}, v{vST}, {sr(sWS,4)}, s{so} offen offset:{off} {STF0 if so == sCA else STF}"
    sO = [sCA, sCB]
    def out(p, g, P):
        if p == 0: return []
        return ([f"s_add_u32 s{sO[p]}, s{sO[p]}, {64*2048}"] if g else []) + [st(P, sO[p], 0), st(P + 4, sO[p], 1024)]
    def wr(p):
        return [f"ds_write_b128 v{vT+8}, {vr(PK+4*k,4)} offset:{1024*k}" for k in range(4)] if p == 0 else []
    def qkv_addr(base):
        A(f"s_and_b32 s{sT}, s{sNT}, 3")
        A(f"s_lshl_b32 s{sT}, s{sT}, 2")
        A(f"s_and_b32 s{sT2}, s{sW}, 2")
        A(f"s_add_u32 s{sT}, s{sT}, s{sT2}")
        A(f"s_lshl_b32 s{sT}, s{sT}, 6")
        A(f"s_lshl_b32 s{sT2}, s{sMT}, 1")
        A(f"s_and_b32 s{sO[1]}, s{sW}, 1")
        A(f"s_add_u32 s{sT2}, s{sT2}, s{sO[1]}")
        A(f"s_add_u32 s{sT2}, s{sT2}, 32")
        A(f"s_cmp_ge_u32 s{sNT}, 4")
        A(f"s_cselect_b32 s{sT2}, s{sT2}, s{sB2}")
        A(f"s_add_u32 s{sO[1]}, s{sT}, s{sT2}")
        A(f"s_lshl_b32 s{sO[1]}, s{sO[1]}, 11")
        A(f"s_add_u32 s{sO[1]}, s{sO[1]}, {base}")

    A(f"s_cmp_ge_u32 s{sNT}, 8")
    A("s_cbranch_scc1 k1_vd")
    A(f"s_cmp_ge_u32 s{sNT}, 4")
    A(f"s_cselect_b32 s{sP4}, {WS_K}, {WS_Q}")
    A(f"s_cselect_b32 s{sP64}, {hex(QSCALE)}, 1.0")
    A(f"s_cselect_b32 s{sLA}, 0x3f803f80, 0")
    A(f"s_cselect_b32 s{sLB}, 0x3f80, 0")
    A(f"s_cselect_b32 s{sC}, 12, 0")
    qkv_addr(f"s{sP4}")
    A(f"v_mov_b32 v{vT+6}, s{sLA}")
    A(f"v_mov_b32 v{vT+7}, s{sLB}")
    A(f"v_lshrrev_b32 v{vT}, 1, v{vL}")
    A(f"v_xor_b32 v{vT}, v{vT}, v{vL}")
    A(f"v_and_b32 v{vT}, 4, v{vT}")
    A(f"v_mul_u32_u24 v{vT}, 3, v{vT}")
    A(f"v_and_b32 v{vT}, s{sC}, v{vT}")
    A(f"v_xor_b32 v{vT}, v{vT}, v{vL}")
    A(f"v_lshlrev_b32 v{vST}, 4, v{vT}")
    A(f"v_cmp_lt_u32 vcc, 31, v{vL}")
    def epi_qk(p):
        L = []
        for g in range(2):
            acc = 32 * p + 16 * g; P = PK + 16 * p + 8 * g
            M = [f"v_mul_f32 v{acc+r}, s{sP64}, v{acc+r}" for r in range(16)]
            if p == 1: M = ["s_nop 10" if g == 0 else "s_nop 0", f"s_cmp_lt_u32 s{sNT}, 4", f"s_cbranch_scc1 k1_nm{g}"] + M + [f"k1_nm{g}:"]
            L += M
            L += [f"v_cvt_pk_bf16_f32 v{P+r}, v{acc+2*r}, v{acc+2*r+1}" for r in range(8)]
            L += [f"v_cndmask_b32 v{P+6}, v{P+6}, v{vT+6}, vcc", f"v_cndmask_b32 v{P+7}, v{P+7}, v{vT+7}, vcc"]
            L += out(p, g, P)
        return L + wr(p)
    A(f"s_lshl_b32 s{sT}, s{sW}, 12")
    A(f"v_add_u32 v{vT+8}, s{sT}, v{vST}")
    pass0(True)
    steps(28, 56, True, epi_qk(0))
    ST.at(11)
    for x in epi_qk(1): A(x)
    A("s_branch k1_pf")
    A("k1_vd:")
    qkv_addr(WS_V)
    A(f"v_and_b32 v{vT}, 31, v{vL}")
    A(f"v_cmp_eq_u32 vcc, 28, v{vT}")
    A(f"v_mov_b32 v{vT+6}, 0x3f803f80")
    A(f"v_cndmask_b32 v{vT+6}, 0, v{vT+6}, vcc")
    A(f"v_cmp_lt_u32 vcc, 27, v{vT}")
    A(f"s_cmp_lt_u32 s{sNT}, 12")
    A("s_cbranch_scc1 k1_vt")
    A(f"s_lshl_b32 s{sT}, s{sNT}, 1")
    A(f"s_lshr_b32 s{sT2}, s{sW}, 1")
    A(f"s_add_u32 s{sC}, s{sT}, s{sT2}")
    A(f"s_lshl_b32 s{sT}, s{sC}, 12")
    for p in range(2):
        A(f"s_mul_i32 s{sO[p]}, s{sBB if p == 0 else sB2}, {YB}")
        A(f"s_add_u32 s{sO[p]}, s{sO[p]}, s{sT}")
        A(f"s_add_u32 s{sO[p]}, s{sO[p]}, {WS_Y - 24*4096}")
    A("k1_vt:")
    pass0(False)
    A(f"s_cmp_ge_u32 s{sNT}, 12")
    A("s_cbranch_scc1 k1_dft")
    def epi_v(p):
        L = []
        for g in range(2):
            acc = 32 * p + 16 * g; P = PK + 16 * p + 8 * g
            L += [f"v_cvt_pk_bf16_f32 v{P+r}, v{acc+2*r}, v{acc+2*r+1}" for r in range(8)]
            L += [f"v_cndmask_b32 v{P+r}, v{P+r}, v{vT+6}, vcc" for r in range(8)]
            L += out(p, g, P)
        return L + wr(p)
    A(f"s_lshl_b32 s{sT}, s{sW}, 12")
    A(f"v_add_u32 v{vT+8}, s{sT}, v{vST}")
    steps(28, 56, False, epi_v(0))
    ST.at(11)
    for x in epi_v(1): A(x)
    A("s_branch k1_pf")
    A("k1_dft:")
    A(f"s_cmp_eq_u32 s{sC}, 31")
    A("s_cselect_b64 s[54:55], 0xff, -1")
    A("s_cselect_b64 s[56:57], 0xff, -1")
    A(f"s_lshl_b32 s{sT2}, s{sW}, 12")
    A(f"v_lshlrev_b32 v{vT}, 6, v{vT}")
    A(f"v_lshl_add_u32 v{vT}, v{vT+1}, 4, v{vT}")
    A(f"v_add_u32 v{vT}, s{sT2}, v{vT}")
    A(f"v_add_u32 v{vT+2}, s{sT2}, v{vST}")
    A(f"v_lshlrev_b32 v{vT+3}, 4, v{vT+1}")
    def epi_dft(p):
        xr, xi = PK + 16 * p, PK + 16 * p + 8; yr, yi = 32 * p, 32 * p + 16; M = MC(p)
        L = [f"v_cvt_pk_bf16_f32 v{xr+r}, v{yr+2*r}, v{yr+2*r+1}" for r in range(8)]
        L += [f"v_cvt_pk_bf16_f32 v{xi+r}, v{yi+2*r}, v{yi+2*r+1}" for r in range(8)]
        G = [f"s_cmp_lg_u32 s{sC}, 31", f"s_cbranch_scc1 k1_ngs{p}"] + [f"v_mov_b32 v{228+r}, v{yi+r}" for r in range(16)]
        G += [f"v_mov_b32 v{xi+r}, 0" for r in range(8)] + ["s_nop 1", f"k1_ngs{p}:"]
        L.append("\n".join(G))
        mf = lambda d, a, b, first=False: f"v_mfma_f32_32x32x16_bf16 {vr(d,16)}, {vr(a,4)}, {vr(b,4)}, {'0' if first else vr(d,16)}"
        L += [mf(yr, M + 4*t, xr + 4*t, t == 0) for t in range(2)] + [mf(yr, M + 8 + 4*t, xi + 4*t) for t in range(2)]
        L += [mf(yi, M + 4*t, xi + 4*t, t == 0) for t in range(2)] + [mf(yi, M + 16 + 4*t, xr + 4*t) for t in range(2)]
        L += ["s_nop 0"] * (6 if p == 0 else 0)
        for part, (y, P) in enumerate(((yr, PK + 16 - 16 * p), (yi, PK + 24 - 16 * p))):
            L += [f"v_cvt_pk_bf16_f32 v{P+r}, v{y+2*r}, v{y+2*r+1}" for r in range(8)]
            L.append("s_nop 0")
            for t in range(2): L += [f"v_permlane32_swap_b32 v{P+4*t}, v{P+4*t+2}", f"v_permlane32_swap_b32 v{P+4*t+1}, v{P+4*t+3}"]
            L += [f"ds_write_b128 v{vT}, {vr(P+4*t,4)} offset:{16384*p+2048*part+32*t}" for t in range(2)]
            if part == 0:
                G = [f"s_cmp_lg_u32 s{sC}, 31", f"s_cbranch_scc1 k1_ngw{p}", "s_mov_b32 exec_lo, 1", "s_mov_b32 exec_hi, 1"]
                G += [f"ds_write_b128 v{vT}, {vr(228+4*g,4)} offset:{16384*p+1024+32*g}" for g in range(4)]
                G += ["s_mov_b64 exec, -1", f"k1_ngw{p}:"]
                L.append("\n".join(G))
            if p == 1:
                L.append("s_waitcnt lgkmcnt(0)")
                L += [f"ds_read_b128 {vr(P+4*k,4)}, v{vT+2} offset:{16384+2048*part+1024*k}" for k in range(2)]
        if p == 1:
            for part, P in enumerate((PK + 16 - 16 * p, PK + 24 - 16 * p)):
                for k in range(2):
                    L += [f"s_waitcnt lgkmcnt({1 - k if part else 2})", f"s_mov_b64 exec, s[{54+2*k}:{55+2*k}]", st(P + 4*k, sO[p], 2048*part + 1024*k)]
        return L
    steps(28, 56, False, epi_dft(0))
    ST.at(11)
    for x in epi_dft(1): A(x)
    A("s_mov_b64 exec, -1")
    A("k1_pf:")
    if DIAG:
        A(f"s_cmp_lt_u32 s{sW8}, 4")
        A("s_cbranch_scc0 k1_nst")
        A("s_memtime s[96:97]")
        A("k1_nst:")
    get_tag(A, "k1_tagl", sT, vT)
    A(f"s_lshl_b32 s{sT}, s2, 3")
    A(f"s_add_u32 s{sT}, s{sT}, s{sW8}")
    A(f"s_lshl_b32 s{sT}, s{sT}, 7")
    A(f"s_add_u32 s{sT}, s{sT}, {WS_F1}")
    A(f"v_mov_b32 v{vT}, 0")
    A(f"v_mov_b32 v{vT+2}, s6")
    A(f"v_mov_b32 v{vT+3}, s7")
    A("s_mov_b64 exec, 1")
    A("s_waitcnt vmcnt(0)")
    A(f"buffer_store_dwordx2 {vr(vT+2,2)}, v{vT}, {sr(sWS,4)}, s{sT} offen sc1")
    A("s_mov_b64 exec, -1")
    A("s_barrier")
    ST.dump(sWS, sW8, 8, vT+10, False)
    return A.L, NV, 102 if DIAG else 64
```

```python
from asmlib import *
from k1 import WS_Q, WS_K, WS_V, WS_Y, WS_W, WS_O, WS_Z, WS_G, WS_BYTES, WS_FO, WS_FZ, WS_F1, f2u, YB, WP, ZP
import math, os
TS_F64, TS_F32, TS_TW, TS_BYTES = 0, 24576, 30720, 47104
LF, LZ, RED = 0, 57344, 114688
LW = RED - 8192
LDS_Y, LDS_Q = LZ, RED + 8192
K2_LDS = 163840
TAB_INV_BYTES = 401408
from k1 import SPIN
N0 = int(os.environ.get("N0", 13)); N1 = (64 - N0) // 3
assert N0 + 3 * N1 == 64
OST = os.environ.get("OST", "")

def merge(ms, vs, lead=0):
    out = []; n = len(ms); k = 0
    for i, m in enumerate(ms):
        out.append(m)
        k2 = (len(vs) * (i + 1)) // n
        out += vs[k:k2]; k = k2
    return out

def gen_k2():
    A = Asm()
    sWS, sX, sTB = 8, 12, 16
    sW, sJ, sXC, sHD, sQB, sT, sT2, sCNT, sI, sKO, sLO, sHI, sVO, sPASS = 20, 21, 22, 23, 24, 25, 26, 27, 28, 29, 30, 31, 32, 33
    sK0, sOK, sQ, sOUT = 34, 35, 40, 48
    sMT, sNT, sPUB, sLO2 = 52, 53, 57, 58
    O, S, Q, KV = 0, 64, 128, 160
    vL, vO16, vIDX, vT = 208, 209, 210, 212
    NV = 256
    vWD, sWM, sWS_ = 237, 59, 60
    vTAG = 240
    A("k2_start:")
    ST = Stamps(A, 1); ST.begin()
    A(f"s_load_dwordx2 {sr(sX,2)}, s[0:1], 40")
    A(f"s_load_dwordx2 {sr(sOUT,2)}, s[0:1], 56")
    A(f"s_mov_b32 s{sWS}, s16")
    A(f"s_mov_b32 s{sWS+1}, s17")
    A(f"s_mov_b32 s{sWS+2}, {WS_BYTES}")
    A(f"s_mov_b32 s{sWS+3}, 0x20000")
    A(f"s_mov_b32 s{sW}, s47")
    A(f"v_mov_b32 v{vL}, v64")
    A(f"v_mov_b32 v{vTAG}, s6")
    A(f"v_mov_b32 v{vTAG+1}, s7")
    A(f"v_lshlrev_b32 v{vO16}, 4, v{vL}")
    A(f"v_and_b32 v{vT+9}, 31, v{vL}")
    A(f"v_lshlrev_b32 v{vT+9}, 2, v{vT+9}")
    A(f"s_and_b32 s{sXC}, s2, 7")
    A(f"s_lshr_b32 s{sJ}, s2, 3")
    A(f"s_and_b32 s{sT}, s{sJ}, 3")
    A(f"s_lshl_b32 s{sMT}, s{sXC}, 2")
    A(f"s_add_u32 s{sMT}, s{sMT}, s{sT}")
    A(f"s_lshr_b32 s{sNT}, s{sJ}, 2")
    A(f"s_getpc_b64 {sr(sTB,2)}")
    A(f"s_add_u32 s{sTB}, s{sTB}, tab_inv@rel32@lo+4")
    A(f"s_addc_u32 s{sTB+1}, s{sTB+1}, tab_inv@rel32@hi+12")
    A(f"s_mov_b32 s{sTB+2}, {TAB_INV_BYTES}")
    A(f"s_mov_b32 s{sTB+3}, 0x20000")
    def flag_index(d, vpass, vmt, ve, vnt, shh):
        A(f"v_and_b32 v{d}, 7, v{vnt}")
        A(f"v_lshlrev_b32 v{d}, 2, v{d}")
        A(f"v_and_or_b32 v{d}, v{vmt}, 3, v{d}")
        A(f"v_lshrrev_b32 v{d+1}, 2, v{vmt}")
        A(f"v_lshl_add_u32 v{d}, v{d}, 2, v{d+1}")
        A(f"v_lshrrev_b32 v{d+1}, 3, v{vnt}")
        A(f"v_lshl_add_u32 v{d}, v{d}, 1, v{d+1}")
        A(f"v_xor_b32 v{d+1}, 1, v{vpass}")
        A(f"v_lshl_add_u32 v{d}, v{d}, 1, v{d+1}")
        A(f"v_and_b32 v{d+1}, {shh}, v{vpass}")
        A(f"v_lshl_add_u32 v{d}, v{d}, 1, v{d+1}")
        A(f"v_lshl_add_u32 v{d}, v{d}, 1, v{ve}")
        A(f"v_lshlrev_b32 v{d}, 7, v{d}")
    A(f"s_cmp_ge_u32 s{sW}, 4")
    A("s_cbranch_scc1 k2_aux")
    A(f"s_lshr_b32 s{sHD}, s{sJ}, 4")
    A(f"s_lshl_b32 s{sHD}, s{sHD}, 3")
    A(f"s_add_u32 s{sHD}, s{sHD}, s{sXC}")
    A(f"s_and_b32 s{sQB}, s{sJ}, 15")
    A(f"s_cmp_eq_u32 s{sW}, 0")
    A(f"s_cselect_b32 s{sCNT}, {N0}, {N1}")
    A(f"s_mul_i32 s{sT}, s{sW}, {N1}")
    A(f"s_sub_u32 s{sT}, s{sT}, {N1-N0}")
    A(f"s_max_i32 s{sT}, s{sT}, 0")
    A(f"s_lshl_b32 s{sT2}, s{sW}, 4")
    A(f"s_cmp_le_u32 s2, 224")
    A(f"s_cselect_b32 s{sCNT}, s{sCNT}, 16")
    A(f"s_cselect_b32 s{sT}, s{sT}, s{sT2}")
    A(f"s_mul_i32 s{sK0}, s{sW}, 3")
    A(f"s_sub_u32 s{sLO}, s{sT}, s{sK0}")
    A(f"s_add_u32 s{sLO}, s{sLO}, 9")
    A(f"v_lshrrev_b32 v2, 1, v{vL}")
    A(f"s_sub_u32 s{sT2}, s{sCNT}, 1")
    A(f"v_min_u32 v2, s{sT2}, v2")
    A(f"v_add_u32 v3, s{sK0}, v2")
    A(f"v_add_u32 v4, s{sLO}, v2")
    A("v_cmp_gt_u32 vcc, 3, v2")
    A(f"s_lshr_b32 s{sT2}, s{sHD}, 2")
    A(f"s_and_b32 s{sI}, s{sT2}, 1")
    A("v_cndmask_b32 v3, v4, v3, vcc")
    A("v_lshrrev_b32 v4, 5, v3")
    A("v_bfe_u32 v5, v3, 1, 4")
    A("v_and_b32 v6, 1, v3")
    A(f"v_and_b32 v7, 1, v{vL}")
    A(f"v_lshl_add_u32 v7, v7, 2, s{sT2}")
    A("v_add_u32 v7, 4, v7")
    A(f"v_cmp_lt_u32 vcc, 33, v{vL}")
    A(f"s_lshr_b32 s{sKO}, s{sW}, 1")
    A(f"s_xor_b32 s{sKO}, s{sKO}, s{sI}")
    A(f"s_and_b32 s{sVO}, s{sW}, 1")
    A(f"v_mov_b32 v8, s{sKO}")
    A(f"v_mov_b32 v9, s{sQB}")
    A(f"v_mov_b32 v10, s{sVO}")
    A(f"v_mov_b32 v11, s{sT2}")
    for k in range(4): A(f"v_cndmask_b32 v{4+k}, v{4+k}, v{8+k}, vcc")
    A(f"s_bfe_u32 s{sI}, s{sHD}, 0x10001")
    flag_index(2, 4, 5, 6, 7, f"s{sI}")
    A(f"s_lshl_b32 s{sT2}, s{sHD}, 6")
    A(f"s_add_u32 s{sK0}, s{sK0}, s{sT2}")
    A(f"s_lshl_b32 s{sK0}, s{sK0}, 11")
    A(f"s_add_u32 s{sK0}, s{sK0}, {WS_K}")
    A(f"s_add_u32 s{sLO2}, s{sLO}, s{sT2}")
    A(f"s_add_u32 s{sHI}, s{sLO2}, s{sCNT}")
    A(f"s_add_u32 s{sLO2}, s{sLO2}, 3")
    A(f"s_lshl_b32 s{sLO2}, s{sLO2}, 11")
    A(f"s_add_u32 s{sLO2}, s{sLO2}, {WS_K}")
    A(f"s_lshl_b32 s{sHI}, s{sHI}, 11")
    A(f"s_add_u32 s{sHI}, s{sHI}, {WS_K}")
    A(f"s_lshl_b32 s{sT}, s{sQB}, 2")
    A(f"s_add_u32 s{sT}, s{sT}, s{sT2}")
    for s in range(4):
        A(f"s_add_u32 s{sQ+s}, s{sW}, {s+1}")
        A(f"s_and_b32 s{sQ+s}, s{sQ+s}, 3")
        A(f"s_add_u32 s{sT2}, s{sQ+s}, s{sT}")
        A(f"s_lshl_b32 s{sQ+4+s}, s{sT2}, 11")
    A(f"s_mov_b32 s{sKO}, s{sK0}")
    A(f"s_add_u32 s{sVO}, s{sKO}, {WS_V - WS_K}")
    ST.at(12)
    A(f"s_mov_b32 s{sI}, {SPIN}")
    A(f"s_mov_b32 s{sT}, {WS_F1}")
    A("s_mov_b32 exec_lo, 0x3f")
    A("s_mov_b32 exec_hi, 4")
    if os.environ.get("NOPOLL"): A("s_branch k2_pa_done")
    if int(os.environ.get("PD", 10)): A(f"s_sleep {os.environ.get('PD', 10)}")
    A("k2_pa:")
    A(f"buffer_load_dwordx2 v[4:5], v2, {sr(sWS,4)}, s{sT} offen sc1")
    A("s_waitcnt vmcnt(0)")
    A("v_cmp_ne_u64 vcc, s[6:7], v[4:5]")
    A("s_nop 1")
    A("s_and_b64 exec, exec, vcc")
    A("s_cbranch_scc0 k2_pa_done")
    A(f"s_sub_u32 s{sI}, s{sI}, 1")
    A(f"s_sleep {os.environ.get('PSL', 1)}")
    A(f"s_cmp_gt_i32 s{sI}, 0")
    A("s_cbranch_scc1 k2_pa")
    A("k2_pa_done:")
    A("s_mov_b64 exec, -1")
    ST.at(13)
    def ldk(st, t): return f"buffer_load_dwordx4 {vr(KV+16*st+4*t,4)}, v{vO16}, {sr(sWS,4)}, s{sKO} offen offset:{1024*t} sc1"
    def ldv(st, t): return f"buffer_load_dwordx4 {vr(KV+16*st+8+4*t,4)}, v{vO16}, {sr(sWS,4)}, s{sVO} offen offset:{1024*t} sc1"
    def ldq(s, t): return f"buffer_load_dwordx4 {vr(Q+8*s+4*t,4)}, v{vO16}, {sr(sWS,4)}, s{sQ+4+s} offen offset:{1024*t}"
    adv = [f"s_add_u32 s{sKO}, s{sKO}, 2048", f"s_cmp_ge_u32 s{sKO}, s{sHI}", f"s_cselect_b32 s{sKO}, s{sLO2}, s{sKO}"]
    setv = f"s_add_u32 s{sVO}, s{sKO}, {WS_V - WS_K}"
    A(f"s_lshl_b32 s{sT}, s{sW}, 11")
    A(f"s_add_u32 m0, s{sT}, {LDS_Q}")
    A(ldk(0, 0))
    A(f"buffer_load_dwordx4 v{vO16}, {sr(sWS,4)}, s{sQ+7} offen sc1 lds")
    A(f"buffer_load_dwordx4 v{vO16}, {sr(sWS,4)}, s{sQ+7} offen offset:1024 sc1 lds")
    A(ldk(0, 1))
    for r in range(64): A(f"v_mov_b32 v{O+r}, 0") if r not in (2,) else None
    for x in [ldv(0, 0), ldv(0, 1)]: A(x)
    A(f"s_mov_b32 s{sPASS}, 0")
    A(f"s_mov_b32 s{sOK}, 0")
    A("s_branch k2_first")
    A("k2_pass:")
    A(f"s_mov_b32 s{sKO}, s{sK0}")
    A(setv)
    for x in [ldk(0, 0), ldk(0, 1), ldv(0, 0), ldv(0, 1)]: A(x)
    A("s_waitcnt vmcnt(0)")
    A("k2_first:")
    for x in adv[:1] + [setv, ldk(1, 0), ldk(1, 1), ldv(1, 0), ldv(1, 1)] + adv[:1] + [setv, ldk(2, 0), ldk(2, 1), ldv(2, 0), ldv(2, 1)]: A(x)
    A(f"s_sub_u32 s{sT}, s{sCNT}, 3")
    A(f"s_mul_i32 s{sT}, s{sT}, s{sQB}")
    A(f"s_lshr_b32 s{sT}, s{sT}, 4")
    A(f"s_lshl_b32 s{sT}, s{sT}, 11")
    A(f"s_add_u32 s{sKO}, s{sLO2}, s{sT}")
    A(f"s_cmp_lg_u32 s{sPASS}, 0")
    A("s_cbranch_scc1 k2_nobar")
    A(f"v_mov_b32 v{vT+12}, v2")
    A(f"s_mov_b32 s{sT}, {WS_F1}")
    A(f"buffer_load_dwordx2 {vr(vT+10,2)}, v2, {sr(sWS,4)}, s{sT} offen sc1")
    A("v_mov_b32 v2, 0")
    A(f"v_mov_b32 v{vIDX}, 0xdddddddd")
    for s_ in range(4):
        A(f"s_lshl_b32 s{sT}, s{sQ+s_}, 11")
        A(f"s_add_u32 s{sT}, s{sT}, {LDS_Q}")
        A(f"v_add_u32 v{vT+2+s_}, s{sT}, v{vO16}")
    A("s_waitcnt vmcnt(12)")
    A("s_barrier")
    for s_ in range(4):
        for t in range(2): A(f"ds_read_b128 {vr(Q+8*s_+4*t,4)}, v{vT+2+s_} offset:{1024*t}")
    A("s_branch k2_go")
    A("k2_nobar:")
    A("s_waitcnt vmcnt(0)")
    A(f"v_mov_b32 v{vT+10}, s6")
    A(f"v_mov_b32 v{vT+11}, s7")
    for r in range(64): A(f"v_mov_b32 v{O+r}, 0")
    A("k2_go:")
    for s in range(3):
        A(f"s_mul_i32 s{sT}, s{sQ+s}, 12288")
        A(f"s_add_u32 s{sT}, s{sT}, {RED}")
        A(f"v_add_u32 v{vT+s}, s{sT}, v{vO16}")
    A(f"s_mov_b32 s{sI}, s{sCNT}")
    def qk(q, st, half):
        c = "0" if half == 0 else vr(S+16*q,16)
        return f"v_mfma_f32_32x32x16_bf16 {vr(S+16*q,16)}, {vr(KV+16*st+4*half,4)}, {vr(Q+8*q+4*half,4)}, {c}"
    def pv(q, st, half):
        return f"v_smfmac_f32_32x32x32_bf16 {vr(O+16*q,16)}, {vr(KV+16*st+8+4*half,4)}, {vr(S+16*q+8*half,8)}, v{vIDX}"
    def tile(st, first, last=False):
        nxt, prv = (st + 1) % 3, (st + 2) % 3
        for q in range(4):
            e = [f"v_exp_f32 v{S+16*q+r}, v{S+16*q+r}" for r in range(16)]
            qn, stn = (q + 1, st) if q < 3 else (0, nxt)
            qp, stp = (q - 1, st) if q > 0 else (3, prv)
            aft = {0: [], 1: [], 2: [], 3: []}
            if q == 0: aft[2] = [ldk(prv, 0)]; aft[3] = [setv]
            if q == 1: aft[1] = ["s_waitcnt vmcnt(5)"]; aft[2] = [ldk(prv, 1)]; aft[3] = adv[0:2]
            if q == 2: aft[0] = [adv[2]]; aft[2] = [ldv(prv, 0)]; aft[3] = [f"s_sub_u32 s{sI}, s{sI}, 1", "s_waitcnt vmcnt(5)"]
            if q == 3: aft[2] = [ldv(prv, 1)]; aft[3] = [f"s_cmp_eq_u32 s{sI}, 1"]
            ms = [qk(qn, stn, 0), qk(qn, stn, 1), pv(qp, stp, 0), pv(qp, stp, 1)]
            if first and q == 0:
                A("s_waitcnt lgkmcnt(0)")
                ms[2] = ms[3] = None
            if first:
                aft = {0: [], 1: [], 2: [], 3: []}
                if q == 1: aft[1] = ["s_waitcnt vmcnt(9)"]
                if q == 2: aft[3] = [f"s_sub_u32 s{sI}, s{sI}, 1", "s_waitcnt vmcnt(7)"]
                if q == 3: aft[2] = ["s_waitcnt vmcnt(0)"]; aft[3] = [f"v_cmp_eq_u64 vcc, s[6:7], {vr(vT+10,2)}"]
            if last:
                wr = lambda s_, g: f"ds_write_b128 v{vT+s_}, {vr(O+16*s_+4*g,4)} offset:{4096*s_+1024*g}"
                aft = {0: [], 1: [], 2: [], 3: []}
                if q == 1: aft[1] = ["s_waitcnt vmcnt(4)"]
                if q == 2: aft[2] = [wr(0, 0)]; aft[3] = [wr(0, 1)]
                if q == 3:
                    ms[0] = ms[1] = None
                    aft[0] = [wr(0, 2)]; aft[1] = [wr(0, 3)]; aft[2] = [wr(1, 0)]; aft[3] = [wr(1, 1)]
            for k in range(4):
                if ms[k]: A(ms[k])
                for y in aft[k]: A(y)
                for x in e[4*k:4*k+4]: A(x)
    ST.at(0)
    A("s_waitcnt vmcnt(11) lgkmcnt(6)")
    ST.at(1)
    A(qk(0, 0, 0)); A(qk(0, 0, 1))
    A("s_nop 9")
    tile(0, True)
    A("s_cmp_lg_u64 vcc, -1")
    if not os.environ.get("NOPOLL"): A("s_cbranch_scc1 k2_pb0")
    loop_start = A.mark()
    A("k2_loop:")
    if DIAG:
        A("s_waitcnt lgkmcnt(0)")
        for i in (11,): A(f"s_mov_b32 s{70+2*i}, s{68+2*i}")
        ST.at(10)
    for st in (1, 2, 0):
        tile(st, False)
        A(f"s_cbranch_scc1 k2_x{(st + 1) % 3}" if st != 0 else "s_cbranch_scc0 k2_loop")
    loop_end = A.mark()
    for st in (1, 2, 0):
        A(f"k2_x{st}:")
        tile(st, False, True)
        A(f"ds_write_b128 v{vT+1}, {vr(O+16+8,4)} offset:{4096+2048}")
        A(pv(3, st, 0))
        A(f"ds_write_b128 v{vT+1}, {vr(O+16+12,4)} offset:{4096+3072}")
        A(pv(3, st, 1))
        if st != 0: A("s_branch k2_red")
    A("k2_red:")
    ST.at(2)
    A(f"s_lshl_b32 s{sT2}, s{sQB}, 2")
    A(f"s_add_u32 s{sT2}, s{sT2}, s{sW}")
    for g in range(4): A(f"ds_write_b128 v{vT+2}, {vr(O+32+4*g,4)} offset:{8192+1024*g}")
    A(f"s_mul_i32 s{sT}, s{sW}, 12288")
    A(f"s_add_u32 s{sT}, s{sT}, {RED}")
    A(f"v_add_u32 v{vT+1}, s{sT}, v{vO16}")
    A(f"s_lshl_b32 s{sT}, s{sW}, 2")
    A(f"s_add_u32 s{sT}, s{sT}, {K2_LDS-128}")
    A(f"v_mov_b32 v{vT+14}, s{sT}")
    A(f"s_lshl_b32 s{sT2}, s{sT2}, 4")
    A(f"s_add_u32 s{sT2}, s{sT2}, s{sHD}")
    A(f"s_lshl_b32 s{sKO}, s{sT2}, 11")
    A(f"s_add_u32 s{sKO}, s{sKO}, {WS_O}")
    A(f"s_lshl_b32 s{sVO}, s{sT2}, 7")
    A(f"s_add_u32 s{sVO}, s{sVO}, {WS_FO}")
    A("s_waitcnt vmcnt(0) lgkmcnt(0)")
    ST.at(3)
    A("s_barrier")
    ST.at(4)
    for g in (3, 0, 1, 2):
        for s in range(3):
            A(f"ds_read_b128 {vr(S+16*s+4*g,4)}, v{vT+1} offset:{4096*s+1024*g}")
    A(f"v_cmp_lt_u32 s[38:39], 31, v{vL}")
    R = O + 48
    def addg(g):
        for r in range(4*g, 4*g+4): A(f"v_add_f32 v{S+r}, v{S+r}, v{S+16+r}")
        for r in range(4*g, 4*g+4): A(f"v_add_f32 v{R+r}, v{R+r}, v{S+32+r}")
        for r in range(4*g, 4*g+4): A(f"v_add_f32 v{R+r}, v{R+r}, v{S+r}")
    A("s_waitcnt lgkmcnt(9)")
    addg(3)
    A(f"v_mov_b32 v{vT+4}, v{R+12}")
    A(f"v_mov_b32 v{vT+5}, v{R+12}")
    A("s_waitcnt lgkmcnt(6)")
    A(f"v_permlane32_swap_b32 v{vT+4}, v{vT+5}")
    A(f"v_rcp_f32 v{vT+6}, v{vT+5}")
    addg(0)
    A("s_waitcnt lgkmcnt(3)")
    addg(1)
    A("s_waitcnt lgkmcnt(0)")
    addg(2)
    A(f"s_cmp_lg_u32 s{sOK}, 0")
    A(f"s_mov_b32 s{sPUB}, 0")
    A("s_cbranch_scc1 k2_apart")
    for t in range(2):
        for r in range(8): A(f"v_mul_f32 v{S+8*t+r}, v{R+8*t+r}, v{vT+6}")
        for r in range(4): A(f"v_cvt_pk_bf16_f32 v{S+16+4*t+r}, v{S+8*t+2*r}, v{S+8*t+2*r+1}")
        if t == 1:
            A(f"v_cndmask_b32 v{S+22}, v{S+22}, 0, s[38:39]")
            A(f"v_cndmask_b32 v{S+23}, v{S+23}, 0, s[38:39]")
        A(f"buffer_store_dwordx4 {vr(S+16+4*t,4)}, v{vO16}, {sr(sWS,4)}, s{sKO} offen offset:{1024*t} sc1")
    A(f"v_add_f32 v{vT+7}, abs(v{R}), abs(v{R+1})")
    for r in range(2, 16): A(f"v_add_f32 v{vT+7}, v{vT+7}, abs(v{R+r})")
    A(f"v_cmp_nle_f32 vcc, {hex(f2u(2.0**-60))}, v{vT+5}")
    A(f"s_mov_b64 s[36:37], vcc")
    A(f"v_cmp_nge_f32 vcc, {hex(f2u(2.0**60))}, v{vT+5}")
    A(f"s_or_b64 s[36:37], s[36:37], vcc")
    A(f"v_cmp_nge_f32 vcc, {hex(f2u(2.0**120))}, v{vT+7}")
    A(f"s_or_b64 s[36:37], s[36:37], vcc")
    A(f"s_cselect_b32 s{sOK}, 0, 1")
    A(f"s_or_b32 s{sOK}, s{sOK}, s{sPASS}")
    A(f"s_mov_b32 s{sPUB}, s{sOK}" if not os.environ.get("NOPOLL") else f"s_mov_b32 s{sPUB}, 1")
    A("k2_apart:")
    A("s_barrier")
    def publish(lab, younger=0):
        A(f"s_cmp_eq_u32 s{sPUB}, 0")
        A(f"v_mov_b32 v{vT+4}, 0")
        A(f"s_waitcnt vmcnt({younger})")
        A(f"s_cbranch_scc1 {lab}")
        A("s_mov_b64 exec, 1")
        A(f"buffer_store_dwordx2 {vr(vTAG,2)}, v{vT+4}, {sr(sWS,4)}, s{sVO} offen sc1")
        A("s_mov_b64 exec, -1")
        A(f"{lab}:")
    AA, AB, OF, LB = 0, 96, 160, 32
    vG3, vZ3, vF3, vW3, vOA, vX = 228, 229, 230, 232, 234, 235
    sKH, sB3, sB, sOB, sOA = 54, 55, 56, 61, 62
    A(f"s_lshr_b32 s{sKH}, s{sW}, 1")
    A(f"s_and_b32 s{sB3}, s{sW}, 1")
    A(f"v_lshrrev_b32 v{vT+10}, 5, v{vL}")
    A(f"v_bfe_u32 v{vT+11}, v{vL}, 2, 2")
    A(f"v_bfe_u32 v{vT+12}, v{vL}, 4, 1")
    A(f"v_lshlrev_b32 v{vT+12}, 5, v{vT+12}")
    A(f"v_and_b32 v{vT+13}, 3, v{vL}")
    A(f"v_lshl_add_u32 v{vT+12}, v{vT+13}, 3, v{vT+12}")
    A(f"v_lshl_add_u32 v{vT+12}, v{vT+11}, 7, v{vT+12}")
    A(f"v_lshrrev_b32 v{vT+11}, 1, v{vT+11}")
    A(f"v_lshl_add_u32 v{vT+12}, v{vT+11}, 6, v{vT+12}")
    A(f"s_lshl_b32 s{sT}, s{sB3}, 6")
    A(f"v_xor_b32 v{vZ3}, s{sT}, v{vT+12}")
    A(f"v_lshl_add_u32 v{vZ3}, v{vT+10}, 10, v{vZ3}")
    A(f"s_mul_i32 s{sT2}, s{sKH}, {14*2048}")
    A(f"s_add_u32 s{sT}, s{sT2}, {LZ}")
    A(f"v_add_u32 v{vZ3}, s{sT}, v{vZ3}")
    A(f"s_lshl_b32 s{sT}, s{sKH}, 10")
    A(f"s_add_u32 s{sT}, s{sT}, s{sT2}")
    A(f"v_add_u32 v{vF3}, s{sT}, v{vO16}")
    A(f"v_xor_b32 v{vF3+1}, 1024, v{vF3}")
    A(f"s_lshl_b32 s{sT}, s{sMT}, 1")
    A(f"s_add_u32 s{sB}, s{sT}, s{sB3}")
    A(f"s_mul_i32 s{sT}, s{sB}, {YB}")
    A(f"s_add_u32 s{sT}, s{sT}, {WS_Y + 7*4096 + 1024}")
    A(f"buffer_load_dword v{vG3}, v{vT+9}, {sr(sWS,4)}, s{sT} offen sc1")
    A(f"s_lshl_b32 s{sT}, s{sKH}, 6")
    A(f"v_xor_b32 v{vW3}, s{sT}, v{vT+12}")
    A(f"v_lshl_add_u32 v{vW3}, v{vT+10}, 9, v{vW3}")
    A(f"s_mul_i32 s{sT}, s{sKH}, {224*128}")
    A(f"s_add_u32 s{sT}, s{sT}, {LW}")
    A(f"v_add_u32 v{vW3}, s{sT}, v{vW3}")
    A(f"v_xor_b32 v{vW3+1}, 64, v{vW3}")
    A(f"s_lshl_b32 s{sT}, s{sW}, 12")
    A(f"v_add_u32 v{vX}, s{sT}, v{vO16}")
    A(f"v_xor_b32 v{vX+1}, 8192, v{vX}")
    A(f"s_lshl_b32 s{sT}, s{sB}, 1")
    A(f"s_add_u32 s{sT}, s{sT}, s{sKH}")
    A(f"s_lshl_b32 s{sT}, s{sT}, 14")
    A(f"s_add_u32 s{sOB}, s{sT}, {WS_O}")
    A(f"v_lshrrev_b32 v{vT+3}, 2, v{vT+9}")
    A(f"v_mul_u32_u24 v{vOA}, 57344, v{vT+3}")
    A(f"v_lshl_add_u32 v{vOA}, v{vT+10}, 4, v{vOA}")
    A(f"s_mul_i32 s{sOA}, s{sB}, 896")
    A(f"s_lshl_b32 s{sT}, s{sNT}, 7")
    A(f"s_add_u32 s{sOA}, s{sOA}, s{sT}")
    A(f"s_lshl_b32 s{sT}, s{sKH}, 6")
    A(f"s_add_u32 s{sOA}, s{sOA}, s{sT}")
    A(f"s_mov_b32 s{sOUT+2}, 1835008")
    A(f"s_mov_b32 s{sOUT+3}, 0x20000")
    publish("k2_np0")
    A("k2_pub:")
    ST.at(5)
    A(f"v_mov_b32 v{vT+5}, s{sOK}")
    A(f"ds_write_b32 v{vT+14}, v{vT+5}")
    A("k2_chk:")
    A(f"v_mov_b32 v{vT+8}, {K2_LDS-128}")
    A("s_waitcnt lgkmcnt(0)")
    A("s_barrier")
    A(f"ds_read_b128 {vr(vT+4,4)}, v{vT+8}")
    A("s_waitcnt lgkmcnt(0)")
    A("s_barrier")
    A(f"v_and_b32 v{vT+4}, v{vT+4}, v{vT+5}")
    A(f"v_and_b32 v{vT+6}, v{vT+6}, v{vT+7}")
    A(f"v_and_b32 v{vT+4}, v{vT+4}, v{vT+6}")
    A(f"v_readfirstlane_b32 s{sT}, v{vT+4}")
    A(f"s_cmp_eq_u32 s{sT}, 0")
    if not os.environ.get("NOPOLL"): A("s_cbranch_scc1 k2_fail")
    A("k2_p3:")
    A("s_cmp_ge_u32 s2, 224")
    A("s_cbranch_scc1 k2_dump" if DIAG else "s_cbranch_scc1 k2_end")
    A(f"s_cmp_ge_u32 s{sW}, 4")
    A("s_cbranch_scc1 k2_auxp3")
    steps = []
    HO = [3, 4, 5, 6, 7, 0, 1, 2]
    OFr = lambda m: (OF + 4*m) if m < 12 else (128 + 4*(m-12))
    for n in range(30):
        buf = LB + 12 * (n % 4)
        if n < 14:
            rd = [f"ds_read_b64_tr_b16 {vr(buf+2*x,2)}, v{vZ3} offset:{2048*n+512*x}" for x in range(2)]
            rd += [f"ds_read_b128 {vr(buf+4+4*k,4)}, v{vF3+k} offset:{2048*n}" for k in range(2)]
            mm = [f"v_mfma_f32_32x32x16_bf16 {vr(AA+16*k,16)}, {vr(buf+4+4*k,4)}, {vr(buf,4)}, {'0' if n == 0 else vr(AA+16*k,16)}" for k in range(2)]
        else:
            m = n - 14; hd, t = HO[m >> 1], m & 1
            rd = [f"ds_read_b64_tr_b16 {vr(buf+4+4*k+2*x,2)}, v{vW3+k} offset:{(28*hd+16*t)*128+1024*x}" for k in range(2) for x in range(2)]
            ks = (1, 0)
            mm = [f"v_mfma_f32_32x32x16_bf16 {vr(AB+16*k,16)}, {vr(buf+4+4*k,4)}, {vr(OFr(m),4)}, {'0' if m == 0 else vr(AB+16*k,16)}" for k in ks]
        steps.append((rd, mm))
    for x in steps[0][0] + steps[1][0] + steps[2][0]: A(x)
    A(f"v_mul_f32 v{vG3}, {hex(f2u(-math.log2(math.e)))}, v{vG3}")
    A(f"v_exp_f32 v{vG3}, v{vG3}")
    A("s_nop 0")
    A(f"v_add_f32 v{vG3}, 1.0, v{vG3}")
    A(f"v_rcp_f32 v{vG3}, v{vG3}")
    A("s_nop 0")
    A(f"v_sub_f32 v{vG3+10}, 1.0, v{vG3}")
    for n in range(14):
        if n == 0: ST.at(10)
        if n == 7: ST.at(11)
        A(f"s_waitcnt lgkmcnt({4 * min(2, 13 - n)})")
        rd = steps[n+3][0] if n + 3 < 14 else [None] * 4
        for k in range(2):
            A(steps[n][1][k])
            for x in rd[2*k:2*k+2]:
                if x: A(x)
    ST.at(6)
    A("s_barrier")
    ST.at(7)
    def old(m):
        hd = HO[m >> 1]
        if m % 2 == 0 and (m == 0 or hd % 2 == 0 or hd == 0): A(f"s_add_u32 s{sI}, s{sOB}, {4096*(hd>>1)}")
        A(f"buffer_load_dwordx4 {vr(OFr(m),4)}, v{vO16}, {sr(sWS,4)}, s{sI} offen offset:{2048*(hd&1)+1024*(m&1)} sc1")
    NO = int(os.environ.get("NO", 10))
    for m in range(NO): old(m)
    for x in steps[14][0] + steps[15][0] + steps[16][0]: A(x)
    for r in range(32): A(f"v_mul_f32 v{AA+r}, v{vG3}, v{AA+r}")
    for n in range(14, 30):
        m = n - 14
        if NO + m < 16: old(NO + m)
        if m == 7: A("s_barrier")
        A(f"s_waitcnt vmcnt({min(NO + m + 1, 16) - m - 1}) lgkmcnt({4 * min(2, 29 - n)})")
        if m == 0: ST.at(8)
        rd = steps[n+3][0] if n + 3 < 30 else [None] * 4
        for k in range(2):
            if m < 12 or k == 0: A(steps[n][1][k])
            for x in rd[2*k:2*k+2]:
                if x: A(x)
    ST.at(9)
    A(steps[26][1][1]); A(steps[27][1][1])
    A("s_nop 8")
    for g in range(4):
        for r in range(4*g, 4*g+4): A(f"v_fma_f32 v{AB+16+r}, v{vG3+10}, v{AB+16+r}, v{AA+16+r}")
        if g < 2: A(steps[28 + g][1][1])
        A(f"ds_write_b128 v{vX}, {vr(AB+16+4*g,4)} offset:{1024*g}")
    A("s_waitcnt lgkmcnt(0)")
    A("s_barrier")
    for g in range(4): A(f"ds_read_b128 {vr(AA+16+4*g,4)}, v{vX+1} offset:{1024*g}")
    for r in range(16): A(f"v_fma_f32 v{AB+r}, v{vG3+10}, v{AB+r}, v{AA+r}")
    for g in range(4):
        A(f"s_waitcnt lgkmcnt({3-g})")
        for r in range(4*g, 4*g+4): A(f"v_add_f32 v{AB+r}, v{AB+r}, v{AA+16+r}")
        for r in range(2*g, 2*g+2): A(f"v_cvt_pk_bf16_f32 v{LB+r}, v{AB+2*r}, v{AB+2*r+1}")
        if g & 1:
            t = g >> 1
            A(f"v_permlane32_swap_b32 v{LB+4*t}, v{LB+4*t+2}")
            A(f"v_permlane32_swap_b32 v{LB+4*t+1}, v{LB+4*t+3}")
            A(f"buffer_store_dwordx4 {vr(LB+4*t,4)}, v{vOA}, {sr(sOUT,4)}, s{sOA} offen offset:{32*t} {os.environ.get('OUTF', '')}")
    A("s_branch k2_dump" if DIAG else "s_endpgm")

    A("k2_fail:")
    A(f"s_cmp_ge_u32 s{sW}, 4")
    A("s_cbranch_scc1 k2_auxfb")
    A("s_branch k2_fb")
    A("k2_pb0:")
    A(f"s_mov_b32 s{sT2}, {SPIN}")
    A(f"s_mov_b32 s{sT}, {WS_F1}")
    A("k2_pb:")
    A(f"buffer_load_dwordx2 {vr(vT+10,2)}, v{vT+12}, {sr(sWS,4)}, s{sT} offen sc1")
    A("s_waitcnt vmcnt(0)")
    A(f"v_cmp_eq_u64 vcc, s[6:7], {vr(vT+10,2)}")
    A("s_nop 1")
    A("s_cmp_eq_u64 vcc, -1")
    A("s_cbranch_scc1 k2_loop")
    A(f"s_sub_u32 s{sT2}, s{sT2}, 1")
    A("s_sleep 2")
    A(f"s_cmp_lg_u32 s{sT2}, 0")
    A("s_cbranch_scc1 k2_pb")
    A("s_branch k2_loop")
    A("k2_fb:")
    A(f"s_mov_b32 s{sPASS}, 1")
    A("s_waitcnt vmcnt(0)")
    A("s_barrier")
    for q in range(4): A(f"v_mov_b32 v{O+q}, 0xff800000")
    A(f"s_mov_b32 s{sKO}, s{sK0}")
    A(f"s_add_u32 s{sT2}, s{sK0}, {3*2048}")
    A(f"s_mov_b32 s{sI}, s{sCNT}")
    A("k2_maxloop:")
    A(ldk(0, 0)); A(ldk(0, 1))
    A("s_waitcnt vmcnt(0)")
    for q in range(4): A(qk(q, 0, 0)); A(qk(q, 0, 1))
    A("s_nop 15")
    for q in range(4):
        for r in range(8): A(f"v_max3_f32 v{O+q}, v{O+q}, v{S+16*q+2*r}, v{S+16*q+2*r+1}")
    A(f"s_add_u32 s{sKO}, s{sKO}, 2048")
    A(f"s_cmp_eq_u32 s{sKO}, s{sT2}")
    A(f"s_cselect_b32 s{sKO}, s{sLO2}, s{sKO}")
    A(f"s_cselect_b32 s{sT2}, 0, s{sT2}")
    A(f"s_sub_u32 s{sI}, s{sI}, 1")
    A(f"s_cmp_lg_u32 s{sI}, 0")
    A("s_cbranch_scc1 k2_maxloop")
    A(f"s_lshl_b32 s{sT}, s{sW}, 8")
    A(f"s_add_u32 s{sT}, s{sT}, {RED}")
    A(f"v_lshl_add_u32 v{vT}, v{vL}, 2, s{sT}")
    A(f"v_and_b32 v{vT+1}, 31, v{vL}")
    A(f"v_lshlrev_b32 v{vT+1}, 2, v{vT+1}")
    A(f"v_add_u32 v{vT+1}, {RED}, v{vT+1}")
    for s in range(4):
        A(f"s_lshl_b32 s{sT}, s{sQ+s}, 10")
        A(f"v_add_u32 v{vT+2}, s{sT}, v{vT}")
        A(f"v_add_u32 v{vT+4+s}, s{sT}, v{vT+1}")
        A(f"ds_write_b32 v{vT+2}, v{O+s}")
    A("s_waitcnt lgkmcnt(0)")
    A("s_barrier")
    for s in range(4):
        for k in range(8): A(f"ds_read_b32 v{S+8*s+k}, v{vT+4+s} offset:{128*k}")
        A("s_waitcnt lgkmcnt(0)")
    A("s_barrier")
    A(f"v_cmp_lt_u32 vcc, 31, v{vL}")
    for q in range(4):
        m = S + 8 * q
        A(f"v_max3_f32 v{m}, v{m}, v{m+1}, v{m+2}")
        A(f"v_max3_f32 v{m}, v{m}, v{m+3}, v{m+4}")
        A(f"v_max3_f32 v{m}, v{m}, v{m+5}, v{m+6}")
        A(f"v_max_f32 v{m}, v{m}, v{m+7}")
        A(f"v_xor_b32 v{m}, 0x80000000, v{m}")
        A(f"v_and_b32 v{m+1}, 0xffff0000, v{m}")
        A(f"v_sub_f32 v{m+2}, v{m}, v{m+1}")
        A(f"v_and_b32 v{m+3}, 0xffff0000, v{m+2}")
        A(f"v_sub_f32 v{m+4}, v{m+2}, v{m+3}")
        A(f"v_lshrrev_b32 v{m+1}, 16, v{m+1}")
        A(f"v_or_b32 v{m+1}, v{m+1}, v{m+3}")
        A(f"v_lshrrev_b32 v{m+4}, 16, v{m+4}")
        A(f"v_cndmask_b32 v{Q+8*q+6}, v{Q+8*q+6}, v{m+1}, vcc")
        A(f"v_cndmask_b32 v{Q+8*q+7}, v{Q+8*q+7}, v{m+4}, vcc")
    A("s_branch k2_pass")


    A("k2_aux:")
    sCOL, sTS = 27, 40
    A(f"s_getpc_b64 {sr(sTS,2)}")
    A(f"s_add_u32 s{sTS}, s{sTS}, tab_small@rel32@lo+4")
    A(f"s_addc_u32 s{sTS+1}, s{sTS+1}, tab_small@rel32@hi+12")
    A(f"s_mov_b32 s{sTS+2}, {TS_BYTES}")
    A(f"s_mov_b32 s{sTS+3}, 0x20000")
    A(f"s_mov_b32 s{sX+2}, 401408")
    A(f"s_mov_b32 s{sX+3}, 0x20000")
    A(f"s_mul_i32 s{sCOL}, s{sXC}, 28")
    A(f"s_add_u32 s{sCOL}, s{sCOL}, s{sJ}")
    A(f"s_cmp_eq_u32 s2, 224")
    A(f"s_cselect_b32 s{sCOL}, 224, s{sCOL}")
    C_ = lambda kind, mt, u: 48 * mt + 16 * kind + 4 * u
    X = 96
    YF = 160
    U0 = 192
    WT = 212
    TM = 244
    vG = 210
    A(f"v_lshrrev_b32 v{TM}, 2, v{vL}")
    A(f"v_mul_u32_u24 v{vG+1}, {WP}, v{TM}")
    A(f"v_mul_u32_u24 v{TM}, {YB}, v{TM}")
    A(f"v_and_b32 v{TM+1}, 3, v{vL}")
    A(f"v_lshl_add_u32 v{vG}, v{TM+1}, 4, v{TM}")
    A(f"v_lshl_add_u32 v{vG+1}, v{TM+1}, 4, v{vG+1}")
    A(f"s_lshr_b32 s{sT}, s{sCOL}, 5")
    A(f"s_lshl_b32 s{sT}, s{sT}, 12")
    A(f"s_and_b32 s{sT2}, s{sCOL}, 31")
    A(f"s_lshl_b32 s{sT2}, s{sT2}, 6")
    A(f"s_add_u32 s{sT}, s{sT}, s{sT2}")
    A(f"s_lshl_b32 s{sKO}, s{sCOL}, 6")
    A(f"v_lshrrev_b32 v{TM}, 5, v{vL}")
    A(f"v_bfe_u32 v{TM+1}, v{vL}, 2, 2")
    A(f"v_lshl_add_u32 v{TM}, v{TM}, 2, v{TM+1}")
    A(f"v_lshlrev_b32 v{TM}, 6, v{TM}")
    A(f"v_bfe_u32 v{TM+1}, v{vL}, 4, 1")
    A(f"v_lshl_add_u32 v{TM}, v{TM+1}, 5, v{TM}")
    A(f"v_and_b32 v{TM+1}, 3, v{vL}")
    A(f"v_lshl_add_u32 v{TM}, v{TM+1}, 3, v{TM}")
    A(f"v_add_u32 v{TM}, {LDS_Y}, v{TM}")
    A(f"s_cmp_eq_u32 s{sW}, 5")
    A("s_cbranch_scc1 k2_help")
    def cld(dst, off):
        A(f"s_mov_b32 s{sT2}, {off}")
        for f in range(4): A(f"buffer_load_dwordx4 {vr(dst+4*f,4)}, v{vO16}, {sr(sTS,4)}, s{sT2} offen offset:{1024*f}")
    LC = LDS_Y + 8192
    for mt in range(2):
        for kind in range(3): cld(C_(kind, mt, 0), TS_F64 + kind * 8192 + 4096 * mt)
    for f in range(22):
        if f % 4 == 0:
            A(f"s_mov_b32 m0, {LC + 1024*f}")
            A(f"s_mov_b32 s{sT2}, {TS_F32 + 1024*f}")
        A(f"buffer_load_dwordx4 v{vO16}, {sr(sTS,4)}, s{sT2} offen offset:{1024*(f%4)} lds")
    sFI = 44
    FE = os.environ.get("FE", "0")
    def fimg():
        A(f"s_mul_i32 s{sFI}, s{sNT}, {2*28672}")
        A(f"s_mov_b32 s{sFI+1}, 0")
        A("k2_fi:")
        A(f"s_lshl_b32 m0, s{sFI+1}, 1")
        A(f"s_add_u32 s{sT2}, s{sFI}, s{sFI+1}")
        A(f"buffer_load_dwordx4 v{vO16}, {sr(sTB,4)}, s{sT2} offen lds")
        A(f"s_add_u32 s{sT2}, s{sT2}, {28672-1024}")
        A(f"buffer_load_dwordx4 v{vO16}, {sr(sTB,4)}, s{sT2} offen offset:1024 lds")
        A(f"s_add_u32 s{sFI+1}, s{sFI+1}, 1024")
        A(f"s_waitcnt vmcnt({os.environ.get('DF', 12)})")
        A(f"s_cmp_lt_u32 s{sFI+1}, 28672")
        A("s_cbranch_scc1 k2_fi")
    if FE == "1":
        A("s_cmp_ge_u32 s2, 224")
        A("s_cbranch_scc1 k2_nfi")
        fimg()
        A("k2_nfi:")
    A(f"s_lshr_b32 s{sI}, s{sCOL}, 6")
    A(f"s_add_u32 s{sI}, s{sI}, 12")
    A(f"s_and_b32 s{sVO}, s{sI}, 1")
    A(f"v_bfe_u32 v100, v{vL}, 1, 1")
    A(f"v_xor_b32 v100, s{sVO}, v100")
    A(f"v_lshrrev_b32 v101, 2, v{vL}")
    A(f"v_and_b32 v102, 1, v{vL}")
    A(f"v_mov_b32 v103, s{sI}")
    A(f"s_bfe_u32 s{sI}, s{sCOL}, 0x10005")
    flag_index(98, 100, 101, 102, 103, f"s{sI}")
    A(f"s_lshr_b32 s{sVO}, s{sCOL}, 6")
    A(f"s_lshl_b32 s{sVO}, s{sVO}, 10")
    A(f"s_add_u32 s{sVO}, s{sVO}, {WS_F1 + 512}")
    A(f"v_lshlrev_b32 v100, 12, v{vL}")
    A("s_waitcnt lgkmcnt(0)")
    A("s_barrier")
    A("s_cmp_gt_u32 s2, 224")
    A("s_cbranch_scc1 k2_auxb1")
    A(f"s_mov_b32 s{sI}, {SPIN}")
    A(f"s_mov_b32 s{sT2}, {WS_F1}")
    A("k2_py:")
    A(f"buffer_load_dwordx2 v[104:105], v98, {sr(sWS,4)}, s{sT2} offen sc1")
    A(f"buffer_load_dwordx2 v[106:107], v100, {sr(sWS,4)}, s{sVO} offen sc1")
    A(f"buffer_load_dwordx2 v[108:109], v100, {sr(sWS,4)}, s{sVO} offen offset:128 sc1")
    A("s_waitcnt vmcnt(0)")
    A("v_cmp_ne_u64 vcc, s[6:7], v[104:105]")
    A("v_cmp_ne_u64 s[36:37], s[6:7], v[106:107]")
    A("v_cmp_ne_u64 s[38:39], s[6:7], v[108:109]")
    A("s_nop 1")
    A("s_or_b64 vcc, vcc, s[36:37]")
    A("s_or_b64 vcc, vcc, s[38:39]")
    A("s_and_b64 exec, exec, vcc")
    A("s_cbranch_scc0 k2_py_done")
    A(f"s_sub_u32 s{sI}, s{sI}, 1")
    A("s_sleep 4")
    A(f"s_cmp_gt_i32 s{sI}, 0")
    A("s_cbranch_scc1 k2_py")
    A("k2_py_done:")
    A("s_mov_b64 exec, -1")
    ST.at(12)
    A("s_setprio 3")
    def ydma(n):
        A(f"s_mov_b32 m0, {LDS_Y + 1024*n}")
        A(f"s_add_u32 s{sT2}, s{sT}, {WS_Y + (n>>2)*2048 + (n&3)*16*YB}")
        A(f"buffer_load_dwordx4 v{vG}, {sr(sWS,4)}, s{sT2} offen sc1 lds")
    def wld(f):
        return [f"s_add_u32 s{sT2}, s{sKO}, {WS_W + f*16*WP}",
                f"buffer_load_dwordx4 {vr(WT+4*f,4)}, v{vG+1}, {sr(sWS,4)}, s{sT2} offen sc1"]
    for n in range(8): ydma(n)
    for f in range(8):
        for x in wld(f): A(x)
    ST.at(0)
    A("s_waitcnt vmcnt(8)")
    ST.at(1)
    for p in range(2):
        for u in range(4):
            A(f"ds_read_b64_tr_b16 {vr(YF+16*p+4*u,2)}, v{TM} offset:{4096*p+1024*u}")
            A(f"ds_read_b64_tr_b16 {vr(YF+16*p+4*u+2,2)}, v{TM} offset:{4096*p+1024*u+512}")
    A("s_waitcnt lgkmcnt(0)")
    Yr = lambda u: vr(YF+4*u,4)
    Yi = lambda u: vr(YF+16+4*u,4)
    mf = lambda d, a, b, first=False: f"v_mfma_f32_32x32x16_bf16 {vr(d,16)}, {a}, {b}, {'0' if first else vr(d,16)}"
    cf = lambda kind, mt, u: vr(C_(kind, mt, u), 4)
    def p3(mt):
        L = []
        for u in range(4):
            L += [mf(X+32*mt, cf(0, mt, u), Yr(u), u == 0), mf(X+32*mt+16, cf(0, mt, u), Yi(u), u == 0)]
        for u in range(4):
            L += [mf(X+32*mt, cf(1, mt, u), Yi(u)), mf(X+32*mt+16, cf(2, mt, u), Yr(u))]
        return L
    Ur = lambda u: (U0 + 4*u) if u < 2 else (YF + 4*u)
    Ui = lambda u: (U0 + 8 + 4*u) if u < 2 else (YF + 16 + 4*u)
    def cmul_pack(xr0, xi0, cr, ci, dr, di):
        L = []
        for i in range(4):
            L += [f"v_mul_f32 v{TM+8+i}, v{xr0+i}, v{cr(i)}", f"v_mul_f32 v{xr0+i}, v{xr0+i}, v{ci(i)}"]
        for i in range(4):
            L += [f"v_fma_f32 v{TM+8+i}, -v{xi0+i}, v{ci(i)}, v{TM+8+i}", f"v_fma_f32 v{xr0+i}, v{xi0+i}, v{cr(i)}, v{xr0+i}"]
        L += [f"v_cvt_pk_bf16_f32 v{dr}, v{TM+8}, v{TM+9}", f"v_cvt_pk_bf16_f32 v{dr+1}, v{TM+10}, v{TM+11}",
              f"v_cvt_pk_bf16_f32 v{di}, v{xr0}, v{xr0+1}", f"v_cvt_pk_bf16_f32 v{di+1}, v{xr0+2}, v{xr0+3}"]
        return L
    def wmul(mt):
        L = []
        for g in range(4):
            w = WT + 4 * (4 * mt + g)
            for i in range(4):
                op = "v_and_b32 v{}, 0xffff0000, v{}" if i & 1 else "v_lshlrev_b32 v{}, 16, v{}"
                L += [op.format(TM + i, w + (i >> 1)), op.format(TM + 4 + i, w + 2 + (i >> 1))]
            u = 2 * mt + (g >> 1)
            L += cmul_pack(X+32*mt+4*g, X+32*mt+16+4*g, lambda i: TM + i, lambda i: TM + 4 + i, Ur(u) + 2*(g&1), Ui(u) + 2*(g&1))
        return L
    def p4(nt, us):
        L = []
        for u in us:
            L += [mf(X+32*nt, vr(Ur(u),4), cf(0, nt, u), u == 0), mf(X+32*nt+16, vr(Ui(u),4), cf(0, nt, u), u == 0)]
        for u in us:
            L += [mf(X+32*nt, vr(Ui(u),4), cf(2, nt, u)), mf(X+32*nt+16, vr(Ur(u),4), cf(1, nt, u))]
        return L
    Tr = lambda nt: YF if nt == 0 else U0
    Ti = lambda nt: YF + 16 if nt == 0 else U0 + 8
    TW = lambda nt: 48 * nt
    F32 = WT
    def twid(nt):
        L = []
        for g in range(4):
            L += cmul_pack(X+32*nt+4*g, X+32*nt+16+4*g, lambda i: TW(nt) + 4*g + i, lambda i: TW(nt) + 16 + 4*g + i, Tr(nt) + 2*g, Ti(nt) + 2*g)
        return L
    def p5(nt):
        L = []
        for t in range(2):
            L += [mf(X+32*nt, vr(F32+4*t,4), vr(Tr(nt)+4*t,4), t == 0), mf(X+32*nt+16, vr(F32+4*t,4), vr(Ti(nt)+4*t,4), t == 0)]
        for t in range(2):
            L += [mf(X+32*nt, vr(F32+16+4*t,4), vr(Ti(nt)+4*t,4)), mf(X+32*nt+16, vr(F32+8+4*t,4), vr(Tr(nt)+4*t,4))]
        return L
    sZR, sZI = 29, 30
    def outp(nt):
        L = []
        for p in range(2):
            z = X + 32*nt + 16*p; P = TW(nt) + 8*p
            for r in range(8): L.append(f"v_cvt_pk_bf16_f32 v{P+r}, v{z+2*r}, v{z+2*r+1}")
            L.append("s_nop 1")
            for t in range(2):
                L += [f"v_permlane32_swap_b32 v{P+4*t}, v{P+4*t+2}", f"v_permlane32_swap_b32 v{P+4*t+1}, v{P+4*t+3}"]
            for t in range(2):
                L.append(f"ds_write_b128 v{vG}, {vr(P+4*t,4)} offset:{4096*p+2048*nt+32*t}")
        return L
    def outst():
        A("s_waitcnt lgkmcnt(0)")
        for k in range(8): A(f"ds_read_b128 {vr(X+4*k,4)}, v{vG+1} offset:{1024*k}")
        for k in range(8):
            A(f"s_waitcnt lgkmcnt({7-k})")
            A(f"buffer_store_dwordx4 {vr(X+4*k,4)}, v{vO16}, {sr(sWS,4)}, s{sZR+(k>>2)} offen offset:{1024*(k&3)} sc1")
    for x in p3(0): A(x)
    ST.at(2)
    A("s_waitcnt vmcnt(4)")
    A("s_nop 7")
    for x in merge(p3(1), wmul(0)): A(x)
    A("s_waitcnt vmcnt(0)")
    A("s_nop 7")
    for x in merge(p4(0, (0, 1)), wmul(1)): A(x)
    for x in p4(0, (2, 3)): A(x)
    ST.at(3)
    A(f"v_add_u32 v{vG+1}, {LDS_Y}, v{vO16}")
    def lcd(dst, off, n):
        for f in range(n): A(f"ds_read_b128 {vr(dst+4*f,4)}, v{vG+1} offset:{8192 + off - TS_F32 + 1024*f}")
    lcd(TW(0), TS_TW, 8); lcd(F32, TS_F32, 6)
    A(f"s_lshr_b32 s{sT}, s{sCOL}, 1")
    A(f"s_and_b32 s{sT2}, s{sCOL}, 1")
    A(f"s_mul_i32 s{sT2}, s{sT2}, 224")
    A(f"s_add_u32 s{sT}, s{sT}, s{sT2}")
    A(f"s_mul_i32 s{sT}, s{sT}, {ZP}")
    A(f"s_add_u32 s{sZR}, s{sT}, {WS_Z}")
    A(f"s_add_u32 s{sZI}, s{sZR}, {112*ZP}")
    A(f"s_cmp_eq_u32 s{sCOL}, 0")
    A(f"s_cselect_b32 s{sZI}, {WS_G + 0x4000}, s{sZI}")
    A(f"s_cmp_eq_u32 s{sCOL}, 224")
    A(f"s_cselect_b32 s{sZI}, {WS_G + 0x6000}, s{sZI}")
    A(f"v_and_b32 v{vG}, 31, v{vL}")
    A(f"v_lshlrev_b32 v{vG}, 6, v{vG}")
    A(f"v_lshrrev_b32 v{TM}, 5, v{vL}")
    A(f"v_lshl_add_u32 v{vG}, v{TM}, 4, v{vG}")
    A(f"v_add_u32 v{vG}, {LDS_Y}, v{vG}")
    A("s_waitcnt lgkmcnt(6)")
    for x in merge(p4(1, (0, 1, 2, 3)), twid(0)): A(x)
    lcd(TW(1), TS_TW + 8192, 8)
    ST.at(4)
    A("s_waitcnt lgkmcnt(0)")
    for x in merge(p5(0), twid(1)): A(x)
    A("s_nop 1")
    for x in merge(p5(1), outp(0)): A(x)
    A("s_nop 7")
    for x in outp(1): A(x)
    outst()
    ST.at(5)
    A("s_setprio 0")
    A(f"s_lshl_b32 s{sT}, s{sCOL}, 7")
    A(f"s_add_u32 s{sT}, s{sT}, {WS_FZ}")
    A(f"v_mov_b32 v{TM+4}, 0")
    A(f"v_mov_b32 v{TM+6}, s6")
    A(f"v_mov_b32 v{TM+7}, s7")
    A("s_mov_b64 exec, 1")
    A("s_waitcnt vmcnt(0)")
    ST.at(6)
    A(f"buffer_store_dwordx2 {vr(TM+6,2)}, v{TM+4}, {sr(sWS,4)}, s{sT} offen sc1")
    A("s_mov_b64 exec, -1")
    A("s_cmp_ge_u32 s2, 224")
    A("s_cbranch_scc1 k2_auxw")
    A(f"v_lshrrev_b32 v{TM}, 3, v{vL}")
    A(f"v_and_b32 v{TM+1}, 7, v{vL}")
    A(f"v_bfe_u32 v{TM+2}, v{vL}, 4, 1")
    A(f"v_lshlrev_b32 v{TM+2}, 2, v{TM+2}")
    A(f"v_xor_b32 v{TM+1}, v{TM+1}, v{TM+2}")
    A(f"v_lshlrev_b32 v{TM+1}, 4, v{TM+1}")
    A(f"v_mul_u32_u24 v{TM+2}, {ZP}, v{TM}")
    A(f"v_add_u32 v{TM+2}, v{TM+2}, v{TM+1}")
    def image(name, lds, vaddr, srd, pitch, flag, depth):
        for i in range(1, 4): A(f"v_add_u32 v{20+i}, {i*(8*pitch-1024)}, v{vaddr}")
        for gr in range(14):
            A(f"s_mov_b32 m0, {lds + 4096*gr}")
            A(f"s_add_u32 s{sT}, s{sT}, {32*pitch if gr else 0}")
            for i in range(4):
                A(f"buffer_load_dwordx4 v{vaddr if i == 0 else 20+i}, {srd}, s{sT} offen offset:{1024*i} {flag} lds")
    def poll(name, lines, sl):
        A(f"s_mov_b32 s{sI}, {SPIN}")
        A(f"{name}:")
        for x in lines: A(x)
        A("s_cmp_eq_u64 vcc, -1")
        A(f"s_cbranch_scc1 {name}_done")
        A(f"s_sub_u32 s{sI}, s{sI}, 1")
        A(f"s_sleep {sl}")
        A(f"s_cmp_lg_u32 s{sI}, 0")
        A(f"s_cbranch_scc1 {name}")
        A(f"{name}_done:")
    ST.at(7)
    A(f"s_sleep {os.environ.get('ZD', 6)}")
    A(f"v_lshlrev_b32 v4, 7, v{vL}")
    A(f"v_add_u32 v5, 0x6000, v4")
    A(f"v_min_u32 v5, {224*128}, v5")
    A(f"s_lshr_b32 s{sT}, s{sMT}, 1")
    A(f"s_and_b32 s{sT2}, s{sT}, 3")
    A(f"s_add_u32 s{sT2}, s{sT2}, 28")
    A(f"s_lshl_b32 s{sT2}, s{sT2}, 2")
    A(f"s_lshr_b32 s{sT}, s{sT}, 2")
    A(f"s_add_u32 s{sT2}, s{sT2}, s{sT}")
    A(f"s_lshl_b32 s{sT2}, s{sT2}, 11")
    A(f"s_and_b32 s{sT}, s{sMT}, 1")
    A(f"s_lshl_b32 s{sT}, s{sT}, 8")
    A(f"s_add_u32 s{sT2}, s{sT2}, s{sT}")
    A(f"s_add_u32 s{sT2}, s{sT2}, {WS_F1 - WS_FZ + 1024 + 256}")
    A(f"v_writelane_b32 v5, s{sT2}, 62")
    A(f"s_add_u32 s{sT2}, s{sT2}, 128")
    A(f"v_writelane_b32 v5, s{sT2}, 63")
    A(f"s_mov_b32 s{sI}, {SPIN}")
    A(f"s_mov_b32 s{sT}, {WS_FZ}")
    A(f"s_mov_b32 s{sT2}, {WS_FZ + 0x2000}")
    A(f"s_mov_b32 s{sKO}, {WS_FZ + 0x4000}")
    A("k2_pz:")
    A(f"buffer_load_dwordx2 v[12:13], v4, {sr(sWS,4)}, s{sT} offen sc1")
    A(f"buffer_load_dwordx2 v[14:15], v4, {sr(sWS,4)}, s{sT2} offen sc1")
    A(f"buffer_load_dwordx2 v[16:17], v4, {sr(sWS,4)}, s{sKO} offen sc1")
    A(f"buffer_load_dwordx2 v[18:19], v5, {sr(sWS,4)}, s{sT} offen sc1")
    A("s_waitcnt vmcnt(0)")
    A("v_cmp_ne_u64 vcc, s[6:7], v[12:13]")
    A("v_cmp_ne_u64 s[36:37], s[6:7], v[14:15]")
    A("v_cmp_ne_u64 s[38:39], s[6:7], v[16:17]")
    A("v_cmp_ne_u64 s[62:63], s[6:7], v[18:19]")
    A("s_nop 1")
    A("s_or_b64 vcc, vcc, s[36:37]")
    A("s_or_b64 vcc, vcc, s[38:39]")
    A("s_or_b64 vcc, vcc, s[62:63]")
    A("s_and_b64 exec, exec, vcc")
    A("s_cbranch_scc0 k2_pz_done")
    A(f"s_sub_u32 s{sI}, s{sI}, 1")
    A(f"s_sleep {os.environ.get('ZSL', 6)}")
    A(f"s_cmp_gt_i32 s{sI}, 0")
    A("s_cbranch_scc1 k2_pz")
    A("k2_pz_done:")
    A("s_mov_b64 exec, -1")
    ST.at(8)
    A(f"s_lshl_b32 s{sT}, s{sMT}, 7")
    A(f"s_add_u32 s{sT}, s{sT}, {WS_Z}")
    image("k2_imz", LZ, TM+2, sr(sWS,4), ZP, os.environ.get("ZF", "sc1"), int(os.environ.get("DZ", 56)))
    A("k2_auxw:")
    ST.at(9)
    A("k2_auxb1:")
    A(f"v_lshrrev_b32 v{vWD}, 3, v{vL}")
    A(f"v_and_b32 v{vT+6}, 7, v{vL}")
    A(f"v_bfe_u32 v{vT+7}, v{vL}, 4, 1")
    A(f"v_lshlrev_b32 v{vT+7}, 2, v{vT+7}")
    A(f"v_xor_b32 v{vT+6}, v{vT+6}, v{vT+7}")
    A(f"v_mul_u32_u24 v{vWD}, 896, v{vWD}")
    A(f"v_lshl_add_u32 v{vWD}, v{vT+6}, 4, v{vWD}")
    A("s_barrier")
    A("s_barrier")
    A("s_cmp_ge_u32 s2, 224")
    A("s_cbranch_scc1 k2_chk")
    A(f"s_lshl_b32 s{sT}, s{sNT}, 7")
    A(f"s_add_u32 s{sT}, s{sT}, {64*896}")
    for i in range(48):
        if i % 4 == 0: A(f"s_mov_b32 m0, {RED + 1024*i}")
        if i: A(f"s_add_u32 s{sT}, s{sT}, {8*896-1024 if i % 4 else 8*896+3072}")
        if i == 47: A("s_mov_b32 exec_hi, 0x00ffffff")
        A(f"buffer_load_dwordx4 v{vWD}, {sr(sX,4)}, s{sT} offen offset:{1024*(i%4)} lds")
    A("s_mov_b32 exec_hi, -1")
    A(f"s_mov_b32 s{sWS_}, s{sT}")
    A("s_waitcnt vmcnt(48)")
    A("s_branch k2_chk")
    A("k2_auxfb:")
    A("s_waitcnt vmcnt(0)")
    A("s_barrier")
    A("s_barrier")
    A("s_barrier")
    A("s_branch k2_auxb1")
    A("k2_auxp3:")
    A(f"v_and_b32 v4, 31, v{vL}")
    A("v_lshlrev_b32 v4, 7, v4")
    A(f"s_lshl_b32 s{sT}, s{sMT}, 12")
    A(f"s_add_u32 s{sT}, s{sT}, {WS_FO}")
    ST.at(10)
    A(f"s_mov_b32 s{sKO}, s{sT}")
    if int(os.environ.get("OD", 0)): A(f"s_sleep {os.environ.get('OD')}")
    A(f"buffer_load_dwordx2 v[0:1], v4, {sr(sWS,4)}, s{sKO} offen sc1")
    A(f"s_mov_b32 m0, {RED + 1024*44}")
    A("s_mov_b32 exec_lo, 0")
    A("s_mov_b32 exec_hi, 0xff000000")
    A(f"buffer_load_dwordx4 v{vWD}, {sr(sX,4)}, s{sWS_} offen offset:3072 lds")
    A("s_mov_b64 exec, -1")
    A(f"s_mov_b32 s{sT}, s{sKO}")
    A("s_waitcnt vmcnt(0)")
    A("v_cmp_eq_u64 vcc, s[6:7], v[0:1]")
    A("s_nop 1")
    A("s_cmp_eq_u64 vcc, -1")
    A("s_cbranch_scc1 k2_po_done")
    poll("k2_po", [f"buffer_load_dwordx2 v[0:1], v4, {sr(sWS,4)}, s{sT} offen sc1", "s_waitcnt vmcnt(0)", "v_cmp_eq_u64 vcc, s[6:7], v[0:1]", "s_nop 1"], int(os.environ.get("OSL", 2)))
    ST.at(11)
    A("s_barrier")
    A(f"s_lshl_b32 s{sT}, s{sNT}, 7")
    for i in range(8):
        if i % 4 == 0: A(f"s_mov_b32 m0, {LW + 1024*i}")
        if i: A(f"s_add_u32 s{sT}, s{sT}, {8*896-1024 if i % 4 else 8*896+3072}")
        A(f"buffer_load_dwordx4 v{vWD}, {sr(sX,4)}, s{sT} offen offset:{1024*(i%4)} lds")
    A("s_waitcnt vmcnt(0)")
    A("s_barrier")
    A("s_branch k2_dump" if DIAG else "s_endpgm")
    A("k2_help:")
    A("s_waitcnt lgkmcnt(0)")
    A("s_barrier")
    A("s_cmp_ge_u32 s2, 224")
    A("s_cbranch_scc1 k2_end")
    A(f"s_sleep {os.environ.get('HD', 40)}")
    fimg()
    A(f"s_and_b32 s{sT}, s{sJ}, 3")
    A(f"s_mul_i32 s{sT}, s{sT}, {112*896}")
    A(f"s_lshl_b32 s{sT2}, s{sNT}, 7")
    A(f"s_add_u32 s{sT}, s{sT}, s{sT2}")
    A(f"v_mul_u32_u24 v8, 896, v{vL}")
    A(f"buffer_load_dword v9, v8, {sr(sX,4)}, s{sT} offen")
    A(f"s_add_u32 s{sT}, s{sT}, {48*896}")
    A(f"buffer_load_dword v10, v8, {sr(sX,4)}, s{sT} offen")
    A("s_waitcnt vmcnt(0)")
    A("s_endpgm")
    if DIAG: A("k2_dump:")
    ST.dump(sWS, sW, 5, 250)
    A("k2_end:")
    A("s_endpgm")
    body = A.L[loop_start:loop_end]
    rep = check_seq(body + body)
    assert not rep, rep
    return A.L, NV, 102 if DIAG else 64
```

```python
from asmlib import *
import math, os, struct
WS_Q, WS_K, WS_V, WS_Y, WS_W, WS_O, WS_Z, WS_G = 0x0, 0x200000, 0x400000, 0x600000, 0x840000, 0xA80000, 0xC80000, 0xE50000
WS_FO, WS_FZ, WS_F1 = 0xE60000, 0xE90000, 0xEA0000
SPIN = 200000
YB, WP, ZP = 32896, 16512, 4224
WS_BYTES = 0x1000000
def f2u(x): return struct.unpack("<I", struct.pack("<f", x))[0]
QSCALE = f2u(28 ** -0.5 * math.log2(math.e))
STF = os.environ.get('STF', 'sc1')
STF0 = os.environ.get('STF0', STF)
STFW = os.environ.get('STFW', STF)
WB = int(os.environ.get('WB', -1))
LA = 114688
NB = int(os.environ.get('NB', 12))
K1_LDS = 163840
WPOS = int(os.environ.get("WPOS", 5))

def get_tag(A, lab, stmp, vt):
    A("s_load_dwordx2 s[6:7], s[4:5], 0")
    A(f"s_mov_b32 s{stmp}, {SPIN}")
    A("s_waitcnt lgkmcnt(0)")
    A("s_cmp_lg_u32 s6, 0")
    A(f"s_cbranch_scc1 {lab}_done")
    A(f"v_mov_b32 v{vt}, 0")
    A(f"{lab}:")
    A(f"global_load_dwordx2 {vr(vt+2,2)}, v{vt}, s[4:5] sc1")
    A(f"s_sub_u32 s{stmp}, s{stmp}, 1")
    A("s_waitcnt vmcnt(0)")
    A(f"v_readfirstlane_b32 s6, v{vt+2}")
    A(f"v_readfirstlane_b32 s7, v{vt+3}")
    A("s_cmp_lg_u32 s6, 0")
    A(f"s_cbranch_scc1 {lab}_done")
    A("s_sleep 4")
    A(f"s_cmp_lg_u32 s{stmp}, 0")
    A(f"s_cbranch_scc1 {lab}")
    A(f"{lab}_done:")

def gen_k1():
    A = Asm()
    sX, sB, sWS, sWR, sWI = 8, 12, 16, 20, 24
    sPC = 28
    sW, sMT, sNT, sC, sCA, sCB, sPITCH, sP4, sT, sT2, sBB = 30, 31, 32, 33, 34, 35, 36, 37, 38, 39, 40
    sGS, sLA, sLB, sP64, sP384, sJ, sW8 = 41, 42, 43, 44, 45, 46, 47
    sW0, sWST, sC0 = 48, 52, 53
    sGW, sPAR, sB2 = 60, 58, 59
    sDB = 4
    vL, vA0, vA1, vB = 64, 65, 66, 67
    vRA, vRB = 68, 72
    FR = 76
    MB = 124
    WL, vGW = 76, 112
    vT = 172
    vWO, vST = 188, 189
    PK = 192
    vPF = 224
    NV = 228
    D = 3

    A("s_cmp_ge_u32 s2, 256")
    A("s_cbranch_scc1 k2_end")
    ST = Stamps(A, 0); ST.begin()
    A(f"s_load_dwordx2 {sr(sX,2)}, s[0:1], 0")
    A(f"s_load_dwordx2 {sr(sB,2)}, s[0:1], 32")
    A(f"s_load_dwordx2 {sr(sWS,2)}, s[0:1], 72")
    A(f"s_load_dwordx2 {sr(sWR,2)}, s[0:1], 8")
    A(f"s_load_dwordx2 {sr(sWI,2)}, s[0:1], 16")
    A(f"s_load_dwordx2 {sr(sGW,2)}, s[0:1], 48")
    A(f"s_load_dwordx2 {sr(sDB,2)}, s[0:1], 64")
    A(f"s_getpc_b64 {sr(sPC,2)}")
    A("k1_pc:")
    A(f"v_and_b32 v{vL}, 63, v0")
    A(f"v_lshrrev_b32 v{vT}, 6, v0")
    A(f"v_mul_u32_u24 v{vT+1}, 24, v{vT}")
    A(f"v_add_lshl_u32 v{vT+1}, v{vT+1}, v{vL}, 7")
    A("s_mov_b64 exec, 0xffffff")
    A(f"global_load_dword v{vPF}, v{vT+1}, {sr(sPC,2)}")
    A("s_mov_b64 exec, -1")
    A(f"v_readfirstlane_b32 s{sW8}, v{vT}")
    A(f"s_lshr_b32 s{sJ}, s2, 3")
    A(f"s_and_b32 s{sT}, s{sJ}, 3")
    A(f"s_lshr_b32 s{sT2}, s{sJ}, 2")
    A(f"s_bfe_u32 s{sMT}, s2, 0x20001")
    A(f"s_lshl_b32 s{sMT}, s{sMT}, 2")
    A(f"s_add_u32 s{sMT}, s{sMT}, s{sT}")
    A(f"s_and_b32 s{sNT}, s2, 1")
    A(f"s_lshl_b32 s{sNT}, s{sNT}, 3")
    A(f"s_add_u32 s{sNT}, s{sNT}, s{sT2}")
    A(f"s_and_b32 s{sPAR}, s{sT2}, 1")
    A(f"s_lshr_b32 s{sT2}, s{sT2}, 1")
    A(f"s_add_u32 s{sC}, s{sT}, s{sT2}")
    A(f"s_lshl_b32 s{sC}, s{sC}, 1")
    A(f"s_cmp_ge_u32 s{sC}, 7")
    A(f"s_cselect_b32 s{sT}, 7, 0")
    A(f"s_sub_u32 s{sC}, s{sC}, s{sT}")
    R1 = os.environ.get("R1", "full")
    if R1 == "none": A(f"s_mov_b32 s{sC}, 0")
    if R1 == "two":
        A(f"s_and_b32 s{sC}, s{sJ}, 1")
        A(f"s_mul_i32 s{sC}, s{sC}, 3")
    if R1 == "one":
        A(f"s_and_b32 s{sC}, s{sJ}, 1")
    if R1 == "xcd":
        A(f"s_and_b32 s{sC}, s2, 7")
        A(f"s_min_u32 s{sC}, s{sC}, 6")
    A(f"s_and_b32 s{sW}, s{sW8}, 3")
    A(f"s_lshl_b32 s{sBB}, s{sMT}, 1")
    A(f"s_add_u32 s{sBB}, s{sBB}, s{sPAR}")
    A(f"s_lshl_b32 s{sBB}, s{sBB}, 1")
    A(f"s_and_b32 s{sT}, s{sW}, 1")
    A(f"s_add_u32 s{sBB}, s{sBB}, s{sT}")
    A(f"s_xor_b32 s{sB2}, s{sBB}, 2")
    A(f"s_movk_i32 s{sPITCH}, 1024")
    A(f"s_cmp_ge_u32 s{sNT}, 12")
    A(f"s_cselect_b32 s{sPITCH}, s{sPITCH}, 2688")
    A(f"s_cselect_b32 s{sGS}, 64, 56")
    A(f"s_lshl_b32 s{sLA}, s{sT}, 12")
    A(f"s_add_u32 s{sLA}, s{sLA}, {LA}")
    A(f"s_cmp_lt_u32 s{sW8}, 4")
    A("s_cbranch_scc1 k1_comp")
    A(f"s_mul_i32 s{sCA}, s{sBB}, 896")
    A(f"s_lshl_b32 s{sT}, s{sC}, 7")
    A(f"s_add_u32 s{sCA}, s{sCA}, s{sT}")
    A(f"v_lshrrev_b32 v{vT}, 3, v{vL}")
    A(f"v_mul_u32_u24 v{vA0}, 57344, v{vT}")
    A(f"v_lshrrev_b32 v{vT+1}, 4, v{vL}")
    A(f"v_and_b32 v{vT+3}, 7, v{vL}")
    A(f"v_xor_b32 v{vT+3}, v{vT+3}, v{vT+1}")
    A(f"v_lshl_add_u32 v{vA0}, v{vT+3}, 4, v{vA0}")
    A(f"v_xor_b32 v{vA1}, 64, v{vA0}")
    A(f"s_mov_b32 s{sX+2}, 1835008")
    A(f"s_mov_b32 s{sX+3}, 0x20000")
    A(f"s_mul_i32 s{sT}, s{sNT}, 224")
    A(f"s_lshl_b32 s{sT2}, s{sNT}, 8")
    A(f"s_sub_u32 s{sT2}, s{sT2}, 3072")
    A(f"s_cmp_ge_u32 s{sNT}, 12")
    A(f"s_cselect_b32 s{sCB}, s{sT2}, s{sT}")
    A(f"s_lshl_b32 s{sP4}, s{sPITCH}, 2")
    A(f"s_sub_u32 s{sP4}, s{sP4}, 1024")
    A(f"s_lshl_b32 s{sT}, s{sC}, 1")
    A(f"s_add_u32 s{sT}, s{sT}, s{sW}")
    A(f"s_lshl_b32 s{sT}, s{sT}, 5")
    A(f"s_mul_i32 s{sT}, s{sT}, s{sPITCH}")
    A(f"s_add_u32 s{sCB}, s{sCB}, s{sT}")
    A(f"s_lshl_b32 s{sLB}, s{sW}, 13")
    A(f"v_mul_u32_u24 v{vB}, s{sPITCH}, v{vT+1}")
    A(f"v_bfe_u32 v{vT+3}, v{vL}, 2, 2")
    A(f"v_xor_b32 v{vT+3}, v{vT+3}, v{vT+1}")
    A(f"v_lshlrev_b32 v{vT+3}, 2, v{vT+3}")
    A(f"v_and_or_b32 v{vT+3}, v{vL}, 3, v{vT+3}")
    A(f"v_lshl_add_u32 v{vB}, v{vT+3}, 4, v{vB}")
    A(f"s_getpc_b64 {sr(56,2)}")
    A("s_add_u32 s56, s56, tab_fwd@rel32@lo+4")
    A("s_addc_u32 s57, s57, tab_fwd@rel32@hi+12")
    A(f"s_mov_b32 s{sB+2}, 458752")
    A(f"s_mov_b32 s{sB+3}, 0x20000")
    A(f"s_cmp_ge_u32 s{sNT}, 12")
    A(f"s_cselect_b32 s{sT}, 16, 14")
    A(f"s_cmp_eq_u32 s{sNT}, 15")
    A(f"s_cselect_b32 s{sT}, 12, s{sT}")
    A(f"v_cmp_gt_u32 s[54:55], s{sT}, v{vT+3}")
    A(f"s_mov_b32 s{sC0}, s{sC}")
    A(f"s_lshl_b32 s{sP64}, s{sPITCH}, 6")
    A(f"s_mul_i32 s{sP384}, s{sP64}, 7")
    A("s_waitcnt lgkmcnt(0) ; WSB")
    A(f"s_cmp_ge_u32 s{sNT}, 12")
    A(f"s_cselect_b32 s{sB}, s56, s{sB}")
    A(f"s_cselect_b32 s{sB+1}, s57, s{sB+1}")
    A(f"s_cselect_b32 s{sB+2}, s{sB+2}, 1204224")
    Q = []
    def issue(n):
        A(f"s_add_u32 m0, s{sLA}, {8192*(n%6)}")
        for i in range(4):
            A(f"s_add_u32 s{sT}, s{sCA}, {457728*i}")
            A(f"buffer_load_dwordx4 v{vA0 + (i&1)}, {sr(sX,4)}, s{sT} offen offset:{1024*i} lds")
        Q.extend([n] * 4)
        if n < 7:
            A("s_mov_b64 exec, s[54:55]")
            for i in range(8):
                if i % 4 == 0: A(f"s_add_u32 m0, s{sLB}, {16384*n + 1024*i}")
                if i == 0: A(f"s_mov_b32 s{sT}, s{sCB}")
                else: A(f"s_add_u32 s{sT}, s{sT}, s{sP4}")
                if i == 4: A(f"s_add_u32 s{sT}, s{sT}, 4096")
                A(f"buffer_load_dwordx4 v{vB}, {sr(sB,4)}, s{sT} offen offset:{1024*(i%4)} lds")
            A("s_mov_b64 exec, -1")
            Q.extend([n] * 8)
        if n == 13: return
        A(f"s_add_u32 s{sCA}, s{sCA}, 128")
        if n < 6: A(f"s_add_u32 s{sCB}, s{sCB}, s{sP64}")
        A(f"s_add_u32 s{sC}, s{sC}, 1")
        A(f"s_cmp_eq_u32 s{sC}, 7")
        A(f"s_cselect_b32 s{sT}, 896, 0")
        if n < 6: A(f"s_cselect_b32 s{sT2}, s{sP384}, 0")
        A(f"s_cselect_b32 s{sC}, 0, s{sC}")
        A(f"s_sub_u32 s{sCA}, s{sCA}, s{sT}")
        if n < 6: A(f"s_sub_u32 s{sCB}, s{sCB}, s{sT2}")
        if n == 6:
            A(f"s_mul_i32 s{sT}, s{sPAR}, {-4*896}")
            A(f"s_add_u32 s{sCA}, s{sCA}, s{sT}")
            A(f"s_add_u32 s{sCA}, s{sCA}, {2*896}")
    def wait_for(tag):
        if tag not in Q: return
        last = max(i for i, t in enumerate(Q) if t == tag)
        A(f"s_waitcnt vmcnt({len(Q) - 1 - last})")
        del Q[:last + 1]
    ST.at(0)
    issue(0)
    A(f"s_mov_b32 s{sGW+2}, 896")
    A(f"s_mov_b32 s{sGW+3}, 0x20000")
    A(f"s_cmp_lg_u32 s{sNT}, 15")
    A("s_cbranch_scc1 k1_nog")
    A(f"v_and_b32 v{vT+4}, 31, v{vL}")
    A(f"v_lshlrev_b32 v{vT+5}, 1, v{vT+4}")
    A(f"s_lshl_b32 s{sT}, s{sW}, 6")
    A(f"s_lshl_b32 s{sT2}, s{sC0}, 7")
    A(f"s_add_u32 s{sT}, s{sT}, s{sT2}")
    for i in range(7):
        A(f"buffer_load_ushort v{vGW+i}, v{vT+5}, {sr(sGW,4)}, s{sT} offen")
        if i < 6:
            A(f"s_add_u32 s{sT}, s{sT}, 128")
            A(f"s_cmp_ge_u32 s{sT}, 896")
            A(f"s_cselect_b32 s{sT2}, 896, 0")
            A(f"s_sub_u32 s{sT}, s{sT}, s{sT2}")
    A(f"v_and_b32 v{vT+5}, 3, v{vL}")
    A(f"v_xor_b32 v{vT+5}, 3, v{vT+5}")
    A(f"v_lshlrev_b32 v{vT+5}, 6, v{vT+5}")
    A(f"v_lshl_add_u32 v{vGW+8}, v{vT+4}, 8, v{vT+5}")
    A(f"v_add_u32 v{vGW+8}, s{sLB}, v{vGW+8}")
    A(f"v_add_u32 v{vGW+9}, 0x10000, v{vGW+8}")
    A("k1_nog:")
    issue(1)
    ST.at(1)
    for r in (sWS, sWR, sWI):
        A(f"s_mov_b32 s{r+2}, {WS_BYTES if r == sWS else 921600}")
        A(f"s_mov_b32 s{r+3}, 0x20000")
    A(f"s_lshr_b32 s{sT}, s2, 4")
    A(f"s_bfe_u32 s{sT2}, s2, 0x20002")
    A(f"s_lshl_b32 s{sT2}, s{sT2}, 1")
    A(f"s_and_b32 s{sW0}, s{sW}, 1")
    A(f"s_add_u32 s{sT2}, s{sT2}, s{sW0}")
    A(f"s_lshl_b32 s{sWST}, s{sT}, 3")
    A(f"s_add_u32 s{sWST}, s{sWST}, s{sT2}")
    A(f"s_mul_i32 s{sWST}, s{sWST}, {WP}")
    A(f"s_lshl_b32 s{sW0}, s{sT}, 5")
    A(f"s_add_u32 s{sW0}, s{sW0}, s{sT2}")
    A(f"s_mul_i32 s{sW0}, s{sW0}, 1800")
    A(f"s_and_b32 s{sT}, s2, 3")
    A(f"s_lshl_b32 s{sGS}, s{sT}, 1")
    A(f"s_lshl_b32 s{sT2}, s{sGS}, 6")
    A(f"s_add_u32 s{sW0}, s{sW0}, s{sT2}")
    A(f"s_lshl_b32 s{sT2}, s{sGS}, 11")
    A(f"s_add_u32 s{sWST}, s{sWST}, s{sT2}")
    A(f"s_add_u32 s{sWST}, s{sWST}, {WS_W}")
    A(f"v_bfe_u32 v{vT}, v{vL}, 3, 2")
    A(f"v_lshlrev_b32 v{vT}, 5, v{vT}")
    A(f"v_lshrrev_b32 v{vWO}, 5, v{vL}")
    A(f"v_add_u32 v{vT}, v{vT}, v{vWO}")
    A(f"v_mul_u32_u24 v{vT}, 450, v{vT}")
    A(f"v_and_b32 v{vWO}, 7, v{vL}")
    A(f"v_lshl_add_u32 v{vWO}, v{vWO}, 4, v{vT}")
    A(f"v_lshlrev_b32 v{vST}, 4, v{vL}")
    A(f"v_and_b32 v{vT+6}, 3, v{vL}")
    A(f"v_lshlrev_b32 v{vT+6}, 6, v{vT+6}")
    A(f"v_and_or_b32 v{vT+6}, v{vL}, 60, v{vT+6}")
    A(f"s_and_b32 s{sT}, s{sNT}, 3")
    A(f"s_lshl_b32 s{sT}, s{sT}, 8")
    A(f"s_lshl_b32 s{sT2}, s{sMT}, 1")
    A(f"s_add_u32 s{sT2}, s{sT2}, s{sW}")
    A(f"s_cmp_ge_u32 s{sNT}, 4")
    A(f"s_cselect_b32 s{sT2}, s{sT2}, s{sBB}")
    A(f"s_add_u32 s{sT}, s{sT}, s{sT2}")
    A(f"s_lshl_b32 s{sT}, s{sT}, 11")
    A(f"s_lshr_b32 s{sT2}, s{sNT}, 2")
    A(f"s_lshl_b32 s{sT2}, s{sT2}, 21")
    A(f"s_add_u32 s{sB2}, s{sT}, s{sT2}")
    A(f"s_lshl_b32 s{sT}, s{sNT}, 13")
    A(f"s_mul_i32 s{sT2}, s{sBB}, {YB}")
    A(f"s_add_u32 s{sT}, s{sT}, s{sT2}")
    A(f"s_add_u32 s{sT}, s{sT}, {WS_Y - 12*8192}")
    A(f"s_movk_i32 s{sC0}, 2048")
    A(f"s_cmp_ge_u32 s{sNT}, 12")
    A(f"s_cselect_b32 s{sB2}, s{sT}, s{sB2}")
    A(f"s_cselect_b32 s{sC0}, s{sC0}, {64*2048}")
    A(f"s_lshl_b32 s{sT}, s{sW}, 12")
    A(f"v_add_u32 v{vT+7}, s{sT}, v{vST}")
    def prefetches():
        A(f"s_load_dwordx2 {sr(sGW,2)}, s[0:1], 40")
        A(f"s_getpc_b64 {sr(56,2)}")
        A("s_add_u32 s56, s56, tab_inv@rel32@lo+4")
        A("s_addc_u32 s57, s57, tab_inv@rel32@hi+12")
        A(f"s_mov_b32 s{sGW+2}, 401408")
        A(f"s_mul_i32 s{sT}, s2, {13*128}")
        A(f"v_lshl_add_u32 v{vT}, v{vL}, 7, s{sT}")
        A("s_waitcnt lgkmcnt(0)")
        A(f"s_bitcmp1_b32 s{sW}, 0")
        A(f"s_cselect_b32 s{sGW}, s56, s{sGW}")
        A(f"s_cselect_b32 s{sGW+1}, s57, s{sGW+1}")
        A("s_mov_b64 exec, 0x1fff")
        A(f"buffer_load_dword v{vPF+2}, v{vT}, {sr(sGW,4)}, 0 offen")
        A("s_mov_b64 exec, -1")
        Q.append("p")
        A(f"s_cmp_lg_u32 s{sW8}, 4")
        A("s_cbranch_scc1 k1_npf")
        A(f"s_cmp_ge_u32 s{sJ}, 8")
        A("s_cbranch_scc1 k1_npf")
        A(f"s_getpc_b64 {sr(56,2)}")
        A("s_add_u32 s56, s56, tab_small@rel32@lo+4")
        A("s_addc_u32 s57, s57, tab_small@rel32@hi+12")
        A(f"s_getpc_b64 {sr(62,2)}")
        A("s_add_u32 s62, s62, k2_start@rel32@lo+1028")
        A("s_addc_u32 s63, s63, k2_start@rel32@hi+1036")
        A(f"s_cmp_ge_u32 s{sJ}, 6")
        A(f"s_cselect_b32 s56, s62, s56")
        A(f"s_cselect_b32 s57, s63, s57")
        A(f"s_cselect_b32 s{sT}, 6, 0")
        A(f"s_sub_u32 s{sT}, s{sJ}, s{sT}")
        A(f"s_lshl_b32 s{sT}, s{sT}, 13")
        A(f"v_lshl_add_u32 v{vT}, v{vL}, 7, s{sT}")
        A(f"global_load_dword v{vPF+3}, v{vT}, s[56:57]")
        A("k1_npf:")
    PFP = int(os.environ.get('PFP', WPOS))
    if PFP < 0: prefetches()
    if os.environ.get("TOUCH", "0") == "1":
        A("s_mov_b64 exec, 1")
        A(f"buffer_load_dword v{vPF+1}, v{vST}, {sr(sWS,4)}, s{sWST} offen")
        A("s_mov_b64 exec, -1")
        Q.append("t")
    def wloads():
        for t in range(4): A(f"buffer_load_dwordx4 {vr(WL+4*t,4)}, v{vWO}, {sr(sWI if t >> 1 else sWR,4)}, s{sW0} offen offset:{900*(t&1)}")
        Q.extend(["w"] * 4)
        A(f"s_lshl_b32 s{sT}, s2, 1")
        A(f"s_add_u32 s{sT}, s{sT}, s{sW}")
        A(f"s_cmp_lg_u32 s{sT}, 511")
        A("s_cbranch_scc1 k1_wl")
        A(f"v_mov_b32 v{WL+34}, 921598")
        A(f"buffer_load_ushort v{WL+32}, v{WL+34}, {sr(sWR,4)}, 0 offen")
        A(f"buffer_load_ushort v{WL+33}, v{WL+34}, {sr(sWI,4)}, 0 offen")
        A("k1_wl:")
    def wstore():
        if "w" in Q: A("s_waitcnt vmcnt(0)")
        A(f"s_lshl_b32 s{sT}, s{sW}, 12")
        A(f"s_add_u32 s{sT}, s{sT}, 32768")
        A(f"v_add_u32 v{vT+8}, s{sT}, v{vST}")
        A(f"v_lshrrev_b32 v{vT+9}, 2, v{vL}")
        A(f"v_lshlrev_b32 v{vT+9}, 7, v{vT+9}")
        A(f"v_and_b32 v{vT+10}, 3, v{vL}")
        A(f"v_lshl_add_u32 v{vT+9}, v{vT+10}, 3, v{vT+9}")
        A(f"v_add_u32 v{vT+9}, s{sT}, v{vT+9}")
        for t in range(4): A(f"ds_write_b128 v{vT+8}, {vr(WL+4*t,4)} offset:{1024*t}")
        A(f"s_lshl_b32 s{sT}, s2, 1")
        A(f"s_add_u32 s{sT}, s{sT}, s{sW}")
        A(f"s_cmp_lg_u32 s{sT}, 511")
        A("s_cbranch_scc1 k1_wp")
        A(f"v_mov_b32 v{WL+34}, {32768 + 4096 + 15*128 + 64}")
        A(f"ds_write_b16 v{WL+34}, v{WL+32}")
        A(f"ds_write_b16 v{WL+34}, v{WL+33} offset:2048")
        A("k1_wp:")
        A("s_waitcnt lgkmcnt(0)")
        for k in range(4):
            for p in range(2): A(f"ds_read_b64_tr_b16 {vr(WL+8*k+2*p,2)}, v{vT+9} offset:{2048*p+32*k}")
        A("s_waitcnt lgkmcnt(0)")
        for k in range(4):
            for p in range(4): A(f"ds_bpermute_b32 v{WL+8*k+4+p}, v{vT+6}, v{WL+8*k+p}")
        A(f"s_cmp_eq_u32 s{sGS}, 6")
        A("s_cselect_b64 s[54:55], 0xff, -1")
        A("s_cselect_b64 s[56:57], 1, -1")
        A("s_waitcnt lgkmcnt(0)")
        for k in range(4):
            if k >= 2: A(f"s_mov_b64 exec, s[{54+2*(k&1)}:{55+2*(k&1)}]")
            A(f"buffer_store_dwordx4 {vr(WL+8*k+4,4)}, v{vST}, {sr(sWS,4)}, s{sWST} offen offset:{1024*k} {STFW}")
        A("s_mov_b64 exec, -1")
    for n in range(NB):
        wait_for(n if n < NB - 1 else 13)
        if n == 0:
            A(f"s_cmp_lg_u32 s{sNT}, 15")
            A("s_cbranch_scc1 k1_ng")
            for i in range(7): A(f"ds_write_b16 v{vGW+8+(i>>2)}, v{vGW+i} offset:{16384*(i&3)}")
            A("s_waitcnt lgkmcnt(0)")
            A("k1_ng:")
        A("s_barrier")
        if n < 12: ST.at(2 + n)
        if n <= 4: issue(n + 2)
        if n == 4: issue(7); issue(8)
        if 5 <= n <= 9: issue(n + 4)
        if n == NB - 2: A(f"s_load_dwordx2 s[28:29], {sr(sDB,2)}, 0")
        if n == WPOS: wloads()
        if n == PFP: prefetches()
    for k in range(8): A(f"ds_read_b128 {vr(PK+4*k,4)}, v{vT+7} offset:{8192*(k>>2)+1024*(k&3)}")
    A(f"s_cmp_eq_u32 s{sNT}, 15")
    A("s_cselect_b64 s[54:55], 0xff, -1")
    A("s_cselect_b64 s[56:57], 0xff, -1")
    for k in range(8):
        A(f"s_waitcnt lgkmcnt({7-k})")
        if k >= 4: A(f"s_mov_b64 exec, s[{54+2*(k&1)}:{55+2*(k&1)}]")
        if k and k % 2 == 0: A(f"s_add_u32 s{sB2}, s{sB2}, s{sC0}")
        A(f"buffer_store_dwordx4 {vr(PK+4*k,4)}, v{vST}, {sr(sWS,4)}, s{sB2} offen offset:{1024*(k&1)} {STF0}")
    A("s_mov_b64 exec, -1")
    wstore()
    A("s_branch k1_pf")

    A("k1_comp:")
    A(f"s_mov_b32 s{sWS+2}, {WS_BYTES}")
    A(f"s_mov_b32 s{sWS+3}, 0x20000")
    A(f"s_or_b32 s{sT}, s2, s{sW}")
    A(f"s_cmp_lg_u32 s{sT}, 0")
    A("s_cbranch_scc1 k1_ntag")
    A("s_memrealtime s[62:63]")
    A(f"s_mov_b32 s{sDB+2}, 256")
    A(f"s_mov_b32 s{sDB+3}, 0x20000")
    A(f"v_mov_b32 v{vT}, 0")
    A("s_waitcnt lgkmcnt(0)")
    A("s_or_b32 s62, s62, 1")
    A(f"v_mov_b32 v{vT+2}, s62")
    A(f"v_mov_b32 v{vT+3}, s63")
    A("s_mov_b64 exec, 1")
    A(f"buffer_store_dwordx2 {vr(vT+2,2)}, v{vT}, {sr(sDB,4)}, 0 offen sc1")
    A("s_mov_b64 exec, -1")
    A("k1_ntag:")
    A(f"v_lshlrev_b32 v{vST}, 4, v{vL}")
    A(f"v_and_b32 v{vT}, 31, v{vL}")
    A(f"v_lshrrev_b32 v{vT+1}, 5, v{vL}")
    A(f"v_bfe_u32 v{vT+2}, v{vL}, 1, 3")
    A(f"v_xor_b32 v{vT+2}, v{vT+2}, v{vT+1}")
    A(f"v_lshlrev_b32 v{vT+2}, 4, v{vT+2}")
    A(f"v_lshl_add_u32 v{vT+2}, v{vT}, 7, v{vT+2}")
    A(f"v_add_u32 v{vRA}, s{sLA}, v{vT+2}")
    for u in range(1, 4): A(f"v_xor_b32 v{vRA+u}, {32*u}, v{vRA}")
    A(f"v_bfe_u32 v{vT+2}, v{vL}, 2, 2")
    A(f"v_lshl_add_u32 v{vT+3}, v{vT+1}, 3, v{vT+2}")
    A(f"v_lshlrev_b32 v{vT+3}, 8, v{vT+3}")
    A(f"v_bfe_u32 v{vT+4}, v{vL}, 4, 1")
    A(f"v_lshlrev_b32 v{vT+4}, 5, v{vT+4}")
    A(f"v_and_b32 v{vT+5}, 3, v{vL}")
    A(f"v_lshl_add_u32 v{vT+4}, v{vT+5}, 3, v{vT+4}")
    A(f"s_and_b32 s{sT}, s{sW}, 2")
    A(f"s_mul_i32 s{sT}, s{sT}, s{sGS}")
    A(f"v_add_u32 v{vT+4}, s{sT}, v{vT+4}")
    A(f"v_lshlrev_b32 v{vT+2}, 6, v{vT+2}")
    for g in range(2):
        A(f"v_xor_b32 v{vT+5}, v{vT+4}, v{vT+2}")
        A(f"v_add_u32 v{vRB+g}, v{vT+5}, v{vT+3}")
        A(f"v_add_u32 v{vRB+2+g}, 0x10000, v{vRB+g}")
        if g == 0: A(f"v_add_u32 v{vT+4}, s{sGS}, v{vT+4}")
    MC = lambda p: MB + 24 * p
    A(f"s_cmp_lt_u32 s{sNT}, 12")
    A("s_cbranch_scc1 k1_nom")
    A(f"v_cvt_f32_u32 v{vT+3}, v{vT}")
    A(f"v_mul_f32 v{vT+3}, {hex(f2u(1/32))}, v{vT+3}")
    for p in range(2):
        A(f"v_lshl_add_u32 v{vT+2}, v{vT+1}, 8, s{sBB if p == 0 else sB2}")
        A(f"v_mul_u32_u24 v{vT+2}, v{vT+2}, v{vT}")
        A(f"v_cvt_f32_u32 v{vT+2}, v{vT+2}")
        A(f"v_mul_f32 v{vT+2}, {hex(f2u(1/2048))}, v{vT+2}")
        for t in range(2):
            for jp in range(4):
                for e in range(2):
                    j = 2 * jp + e
                    n = 16 * t + 8 * (j >> 2) + (j & 3)
                    A(f"v_fmamk_f32 v{vT+4+e}, v{vT+3}, {hex(f2u(float(n)))}, v{vT+2}")
                    A(f"v_fract_f32 v{vT+4+e}, v{vT+4+e}")
                A(f"v_cos_f32 v{vT+6}, v{vT+4}")
                A(f"v_cos_f32 v{vT+7}, v{vT+5}")
                A(f"v_sin_f32 v{vT+8}, v{vT+4}")
                A(f"v_sin_f32 v{vT+9}, v{vT+5}")
                A(f"v_cvt_pk_bf16_f32 v{MC(p)+4*t+jp}, v{vT+6}, v{vT+7}")
                A(f"v_cvt_pk_bf16_f32 v{MC(p)+8+4*t+jp}, v{vT+8}, v{vT+9}")
                A(f"v_cvt_pk_bf16_f32 v{MC(p)+16+4*t+jp}, -v{vT+8}, -v{vT+9}")
    A("k1_nom:")
    if int(os.environ.get("CP", 0)): A(f"s_setprio {os.environ.get('CP')}")
    A("s_waitcnt lgkmcnt(0) ; WSB")

    def reads(m):
        n, u = m // 4, m % 4; i = n % 7; buf = FR + 12 * (m % 4)
        L = [f"ds_read_b128 {vr(buf,4)}, v{vRA+u} offset:{8192*(n%6)}"]
        for g in range(2):
            off = 16384 * (i & 3) + 4096 * u
            L += [f"ds_read_b64_tr_b16 {vr(buf+4+4*g+2*x,2)}, v{vRB+2*(i>>2)+g} offset:{off+1024*x}" for x in range(2)]
        return L
    def steps(m0, m1, swap, fill):
        k = 0; done = 0; nm = 20 + 8 * (NB - 12)
        for m in range(m0, m1):
            n, u = m // 4, m % 4; acc = 32 * (m // 28); buf = FR + 12 * (m % 4)
            A(f"s_waitcnt lgkmcnt({5 * min(D - 1, 55 - m)})")
            if u == 4 - D and n + 1 < NB:
                if n + 1 == NB - 1:
                    assert done == len(fill)
                    A("s_waitcnt lgkmcnt(5)")
                A("s_barrier")
                if n + 1 < 8: ST.at(2 + n + 1)
            rd = reads(m + D) if m + D < 56 else [None] * 5
            for g in range(2):
                a_, b_ = vr(buf,4), vr(buf+4+4*g,4)
                if swap: a_, b_ = b_, a_
                A(f"v_mfma_f32_32x32x16_bf16 {vr(acc+16*g,16)}, {a_}, {b_}, {'0' if m % 28 == 0 else vr(acc+16*g,16)}")
                if m >= m0 + 2 and fill:
                    k += 1; k2 = min(len(fill), -(-len(fill) * k // nm))
                    while done < k2 and not (fill[done].startswith("ds_write") and m < 34):
                        A(fill[done]); done += 1
                for x in (rd[:3] if g == 0 else rd[3:]):
                    if x: A(x)
        assert done == len(fill)
    def touch(step):
        if os.environ.get("TOUCH", "0") != "1": return
        A(f"s_sub_u32 s{sT}, s{sO[1]}, s{sO[0]}")
        A(f"v_and_b32 v{vT+10}, 1, v{vL}")
        A(f"v_mul_u32_u24 v{vT+10}, {step}, v{vT+10}")
        A(f"v_bfe_u32 v{vT+11}, v{vL}, 1, 1")
        A(f"v_mul_lo_u32 v{vT+11}, v{vT+11}, s{sT}")
        A(f"v_add3_u32 v{vT+10}, v{vT+10}, v{vT+11}, s{sO[0]}")
        A("s_mov_b64 exec, 15")
        A(f"buffer_load_dword v{vPF+1}, v{vT+10}, {sr(sWS,4)}, 0 offen")
        A("s_mov_b64 exec, -1")
    def pass0(swap):
        A("s_waitcnt lgkmcnt(0)")
        A("s_barrier")
        ST.at(2)
        for x in reads(0) + reads(1) + reads(2): A(x)
        steps(0, 28, swap, [])
        ST.at(10)
    st = lambda r, so, off: f"buffer_store_dwordx4 {vr(r,4)}, v{vST}, {sr(sWS,4)}, s{so} offen offset:{off} {STF0 if so == sCA else STF}"
    sO = [sCA, sCB]
    def out(p, g, P):
        if p == 0: return []
        return ([f"s_add_u32 s{sO[p]}, s{sO[p]}, {64*2048}"] if g else []) + [st(P, sO[p], 0), st(P + 4, sO[p], 1024)]
    def wr(p):
        return [f"ds_write_b128 v{vT+8}, {vr(PK+4*k,4)} offset:{1024*k}" for k in range(4)] if p == 0 else []
    def qkv_addr(base):
        A(f"s_and_b32 s{sT}, s{sNT}, 3")
        A(f"s_lshl_b32 s{sT}, s{sT}, 2")
        A(f"s_and_b32 s{sT2}, s{sW}, 2")
        A(f"s_add_u32 s{sT}, s{sT}, s{sT2}")
        A(f"s_lshl_b32 s{sT}, s{sT}, 6")
        A(f"s_lshl_b32 s{sT2}, s{sMT}, 1")
        A(f"s_and_b32 s{sO[1]}, s{sW}, 1")
        A(f"s_add_u32 s{sT2}, s{sT2}, s{sO[1]}")
        A(f"s_add_u32 s{sT2}, s{sT2}, 32")
        A(f"s_cmp_ge_u32 s{sNT}, 4")
        A(f"s_cselect_b32 s{sT2}, s{sT2}, s{sB2}")
        A(f"s_add_u32 s{sO[1]}, s{sT}, s{sT2}")
        A(f"s_lshl_b32 s{sO[1]}, s{sO[1]}, 11")
        A(f"s_add_u32 s{sO[1]}, s{sO[1]}, {base}")

    A(f"s_cmp_ge_u32 s{sNT}, 8")
    A("s_cbranch_scc1 k1_vd")
    A(f"s_cmp_ge_u32 s{sNT}, 4")
    A(f"s_cselect_b32 s{sP4}, {WS_K}, {WS_Q}")
    A(f"s_cselect_b32 s{sP64}, {hex(QSCALE)}, 1.0")
    A(f"s_cselect_b32 s{sLA}, 0x3f803f80, 0")
    A(f"s_cselect_b32 s{sLB}, 0x3f80, 0")
    A(f"s_cselect_b32 s{sC}, 12, 0")
    qkv_addr(f"s{sP4}")
    A(f"v_mov_b32 v{vT+6}, s{sLA}")
    A(f"v_mov_b32 v{vT+7}, s{sLB}")
    A(f"v_lshrrev_b32 v{vT}, 1, v{vL}")
    A(f"v_xor_b32 v{vT}, v{vT}, v{vL}")
    A(f"v_and_b32 v{vT}, 4, v{vT}")
    A(f"v_mul_u32_u24 v{vT}, 3, v{vT}")
    A(f"v_and_b32 v{vT}, s{sC}, v{vT}")
    A(f"v_xor_b32 v{vT}, v{vT}, v{vL}")
    A(f"v_lshlrev_b32 v{vST}, 4, v{vT}")
    A(f"v_cmp_lt_u32 vcc, 31, v{vL}")
    def epi_qk(p):
        L = []
        for g in range(2):
            acc = 32 * p + 16 * g; P = PK + 16 * p + 8 * g
            M = [f"v_mul_f32 v{acc+r}, s{sP64}, v{acc+r}" for r in range(16)]
            if p == 1: M = ["s_nop 10" if g == 0 else "s_nop 0", f"s_cmp_lt_u32 s{sNT}, 4", f"s_cbranch_scc1 k1_nm{g}"] + M + [f"k1_nm{g}:"]
            L += M
            L += [f"v_cvt_pk_bf16_f32 v{P+r}, v{acc+2*r}, v{acc+2*r+1}" for r in range(8)]
            L += [f"v_cndmask_b32 v{P+6}, v{P+6}, v{vT+6}, vcc", f"v_cndmask_b32 v{P+7}, v{P+7}, v{vT+7}, vcc"]
            L += out(p, g, P)
        return L + wr(p)
    A(f"s_lshl_b32 s{sT}, s{sW}, 12")
    A(f"v_add_u32 v{vT+8}, s{sT}, v{vST}")
    pass0(True)
    steps(28, 56, True, epi_qk(0))
    ST.at(11)
    for x in epi_qk(1): A(x)
    A("s_branch k1_pf")
    A("k1_vd:")
    qkv_addr(WS_V)
    A(f"v_and_b32 v{vT}, 31, v{vL}")
    A(f"v_cmp_eq_u32 vcc, 28, v{vT}")
    A(f"v_mov_b32 v{vT+6}, 0x3f803f80")
    A(f"v_cndmask_b32 v{vT+6}, 0, v{vT+6}, vcc")
    A(f"v_cmp_lt_u32 vcc, 27, v{vT}")
    A(f"s_cmp_lt_u32 s{sNT}, 12")
    A("s_cbranch_scc1 k1_vt")
    A(f"s_lshl_b32 s{sT}, s{sNT}, 1")
    A(f"s_lshr_b32 s{sT2}, s{sW}, 1")
    A(f"s_add_u32 s{sC}, s{sT}, s{sT2}")
    A(f"s_lshl_b32 s{sT}, s{sC}, 12")
    for p in range(2):
        A(f"s_mul_i32 s{sO[p]}, s{sBB if p == 0 else sB2}, {YB}")
        A(f"s_add_u32 s{sO[p]}, s{sO[p]}, s{sT}")
        A(f"s_add_u32 s{sO[p]}, s{sO[p]}, {WS_Y - 24*4096}")
    A("k1_vt:")
    pass0(False)
    A(f"s_cmp_ge_u32 s{sNT}, 12")
    A("s_cbranch_scc1 k1_dft")
    def epi_v(p):
        L = []
        for g in range(2):
            acc = 32 * p + 16 * g; P = PK + 16 * p + 8 * g
            L += [f"v_cvt_pk_bf16_f32 v{P+r}, v{acc+2*r}, v{acc+2*r+1}" for r in range(8)]
            L += [f"v_cndmask_b32 v{P+r}, v{P+r}, v{vT+6}, vcc" for r in range(8)]
            L += out(p, g, P)
        return L + wr(p)
    A(f"s_lshl_b32 s{sT}, s{sW}, 12")
    A(f"v_add_u32 v{vT+8}, s{sT}, v{vST}")
    steps(28, 56, False, epi_v(0))
    ST.at(11)
    for x in epi_v(1): A(x)
    A("s_branch k1_pf")
    A("k1_dft:")
    A(f"s_cmp_eq_u32 s{sC}, 31")
    A("s_cselect_b64 s[54:55], 0xff, -1")
    A("s_cselect_b64 s[56:57], 0xff, -1")
    A(f"s_lshl_b32 s{sT2}, s{sW}, 12")
    A(f"v_lshlrev_b32 v{vT}, 6, v{vT}")
    A(f"v_lshl_add_u32 v{vT}, v{vT+1}, 4, v{vT}")
    A(f"v_add_u32 v{vT}, s{sT2}, v{vT}")
    A(f"v_add_u32 v{vT+2}, s{sT2}, v{vST}")
    A(f"v_lshlrev_b32 v{vT+3}, 4, v{vT+1}")
    def epi_dft(p):
        xr, xi = PK + 16 * p, PK + 16 * p + 8; yr, yi = 32 * p, 32 * p + 16; M = MC(p)
        L = [f"v_cvt_pk_bf16_f32 v{xr+r}, v{yr+2*r}, v{yr+2*r+1}" for r in range(8)]
        L += [f"v_cvt_pk_bf16_f32 v{xi+r}, v{yi+2*r}, v{yi+2*r+1}" for r in range(8)]
        G = [f"s_cmp_lg_u32 s{sC}, 31", f"s_cbranch_scc1 k1_ngs{p}"] + [f"v_mov_b32 v{228+r}, v{yi+r}" for r in range(16)]
        G += [f"v_mov_b32 v{xi+r}, 0" for r in range(8)] + ["s_nop 1", f"k1_ngs{p}:"]
        L.append("\n".join(G))
        mf = lambda d, a, b, first=False: f"v_mfma_f32_32x32x16_bf16 {vr(d,16)}, {vr(a,4)}, {vr(b,4)}, {'0' if first else vr(d,16)}"
        L += [mf(yr, M + 4*t, xr + 4*t, t == 0) for t in range(2)] + [mf(yr, M + 8 + 4*t, xi + 4*t) for t in range(2)]
        L += [mf(yi, M + 4*t, xi + 4*t, t == 0) for t in range(2)] + [mf(yi, M + 16 + 4*t, xr + 4*t) for t in range(2)]
        L += ["s_nop 0"] * (6 if p == 0 else 0)
        for part, (y, P) in enumerate(((yr, PK + 16 - 16 * p), (yi, PK + 24 - 16 * p))):
            L += [f"v_cvt_pk_bf16_f32 v{P+r}, v{y+2*r}, v{y+2*r+1}" for r in range(8)]
            L.append("s_nop 0")
            for t in range(2): L += [f"v_permlane32_swap_b32 v{P+4*t}, v{P+4*t+2}", f"v_permlane32_swap_b32 v{P+4*t+1}, v{P+4*t+3}"]
            L += [f"ds_write_b128 v{vT}, {vr(P+4*t,4)} offset:{16384*p+2048*part+32*t}" for t in range(2)]
            if part == 0:
                G = [f"s_cmp_lg_u32 s{sC}, 31", f"s_cbranch_scc1 k1_ngw{p}", "s_mov_b32 exec_lo, 1", "s_mov_b32 exec_hi, 1"]
                G += [f"ds_write_b128 v{vT}, {vr(228+4*g,4)} offset:{16384*p+1024+32*g}" for g in range(4)]
                G += ["s_mov_b64 exec, -1", f"k1_ngw{p}:"]
                L.append("\n".join(G))
            if p == 1:
                L.append("s_waitcnt lgkmcnt(0)")
                L += [f"ds_read_b128 {vr(P+4*k,4)}, v{vT+2} offset:{16384+2048*part+1024*k}" for k in range(2)]
        if p == 1:
            for part, P in enumerate((PK + 16 - 16 * p, PK + 24 - 16 * p)):
                for k in range(2):
                    L += [f"s_waitcnt lgkmcnt({1 - k if part else 2})", f"s_mov_b64 exec, s[{54+2*k}:{55+2*k}]", st(P + 4*k, sO[p], 2048*part + 1024*k)]
        return L
    steps(28, 56, False, epi_dft(0))
    ST.at(11)
    for x in epi_dft(1): A(x)
    A("s_mov_b64 exec, -1")
    A("k1_pf:")
    if DIAG:
        A(f"s_cmp_lt_u32 s{sW8}, 4")
        A("s_cbranch_scc0 k1_nst")
        A("s_memtime s[96:97]")
        A("k1_nst:")
    get_tag(A, "k1_tagl", sT, vT)
    A(f"s_lshl_b32 s{sT}, s2, 3")
    A(f"s_add_u32 s{sT}, s{sT}, s{sW8}")
    A(f"s_lshl_b32 s{sT}, s{sT}, 7")
    A(f"s_add_u32 s{sT}, s{sT}, {WS_F1}")
    A(f"v_mov_b32 v{vT}, 0")
    A(f"v_mov_b32 v{vT+2}, s6")
    A(f"v_mov_b32 v{vT+3}, s7")
    A("s_mov_b64 exec, 1")
    A("s_waitcnt vmcnt(0)")
    A(f"buffer_store_dwordx2 {vr(vT+2,2)}, v{vT}, {sr(sWS,4)}, s{sT} offen sc1")
    A("s_mov_b64 exec, -1")
    A("s_barrier")
    ST.dump(sWS, sW8, 8, vT+10, False)
    return A.L, NV, 102 if DIAG else 64
```

```python
from asmlib import *
from k1 import WS_Q, WS_K, WS_V, WS_Y, WS_W, WS_O, WS_Z, WS_G, WS_BYTES, WS_FO, WS_FZ, WS_F1, f2u, YB, WP, ZP
import math, os
TS_F64, TS_F32, TS_TW, TS_BYTES = 0, 24576, 30720, 47104
LF, LZ, RED = 0, 57344, 114688
LW = RED - 8192
LDS_Y, LDS_Q = LZ, RED + 8192
K2_LDS = 163840
TAB_INV_BYTES = 401408
from k1 import SPIN
N0 = int(os.environ.get("N0", 13)); N1 = (64 - N0) // 3
assert N0 + 3 * N1 == 64
OST = os.environ.get("OST", "")

def merge(ms, vs, lead=0):
    out = []; n = len(ms); k = 0
    for i, m in enumerate(ms):
        out.append(m)
        k2 = (len(vs) * (i + 1)) // n
        out += vs[k:k2]; k = k2
    return out

def gen_k2():
    A = Asm()
    sWS, sX, sTB = 8, 12, 16
    sW, sJ, sXC, sHD, sQB, sT, sT2, sCNT, sI, sKO, sLO, sHI, sVO, sPASS = 20, 21, 22, 23, 24, 25, 26, 27, 28, 29, 30, 31, 32, 33
    sK0, sOK, sQ, sOUT = 34, 35, 40, 48
    sMT, sNT, sPUB, sLO2 = 52, 53, 57, 58
    O, S, Q, KV = 0, 64, 128, 160
    vL, vO16, vIDX, vT = 208, 209, 210, 212
    NV = 256
    vWD, sWM, sWS_ = 237, 59, 60
    vTAG = 240
    A("k2_start:")
    ST = Stamps(A, 1); ST.begin()
    A(f"s_load_dwordx2 {sr(sX,2)}, s[0:1], 40")
    A(f"s_load_dwordx2 {sr(sOUT,2)}, s[0:1], 56")
    A(f"s_mov_b32 s{sWS}, s16")
    A(f"s_mov_b32 s{sWS+1}, s17")
    A(f"s_mov_b32 s{sWS+2}, {WS_BYTES}")
    A(f"s_mov_b32 s{sWS+3}, 0x20000")
    A(f"s_mov_b32 s{sW}, s47")
    A(f"v_mov_b32 v{vL}, v64")
    A(f"v_mov_b32 v{vTAG}, s6")
    A(f"v_mov_b32 v{vTAG+1}, s7")
    A(f"v_lshlrev_b32 v{vO16}, 4, v{vL}")
    A(f"v_and_b32 v{vT+9}, 31, v{vL}")
    A(f"v_lshlrev_b32 v{vT+9}, 2, v{vT+9}")
    A(f"s_and_b32 s{sXC}, s2, 7")
    A(f"s_lshr_b32 s{sJ}, s2, 3")
    A(f"s_and_b32 s{sT}, s{sJ}, 3")
    A(f"s_lshl_b32 s{sMT}, s{sXC}, 2")
    A(f"s_add_u32 s{sMT}, s{sMT}, s{sT}")
    A(f"s_lshr_b32 s{sNT}, s{sJ}, 2")
    A(f"s_getpc_b64 {sr(sTB,2)}")
    A(f"s_add_u32 s{sTB}, s{sTB}, tab_inv@rel32@lo+4")
    A(f"s_addc_u32 s{sTB+1}, s{sTB+1}, tab_inv@rel32@hi+12")
    A(f"s_mov_b32 s{sTB+2}, {TAB_INV_BYTES}")
    A(f"s_mov_b32 s{sTB+3}, 0x20000")
    def flag_index(d, vpass, vmt, ve, vnt, shh):
        A(f"v_and_b32 v{d}, 7, v{vnt}")
        A(f"v_lshlrev_b32 v{d}, 2, v{d}")
        A(f"v_and_or_b32 v{d}, v{vmt}, 3, v{d}")
        A(f"v_lshrrev_b32 v{d+1}, 2, v{vmt}")
        A(f"v_lshl_add_u32 v{d}, v{d}, 2, v{d+1}")
        A(f"v_lshrrev_b32 v{d+1}, 3, v{vnt}")
        A(f"v_lshl_add_u32 v{d}, v{d}, 1, v{d+1}")
        A(f"v_xor_b32 v{d+1}, 1, v{vpass}")
        A(f"v_lshl_add_u32 v{d}, v{d}, 1, v{d+1}")
        A(f"v_and_b32 v{d+1}, {shh}, v{vpass}")
        A(f"v_lshl_add_u32 v{d}, v{d}, 1, v{d+1}")
        A(f"v_lshl_add_u32 v{d}, v{d}, 1, v{ve}")
        A(f"v_lshlrev_b32 v{d}, 7, v{d}")
    A(f"s_cmp_ge_u32 s{sW}, 4")
    A("s_cbranch_scc1 k2_aux")
    A(f"s_lshr_b32 s{sHD}, s{sJ}, 4")
    A(f"s_lshl_b32 s{sHD}, s{sHD}, 3")
    A(f"s_add_u32 s{sHD}, s{sHD}, s{sXC}")
    A(f"s_and_b32 s{sQB}, s{sJ}, 15")
    A(f"s_cmp_eq_u32 s{sW}, 0")
    A(f"s_cselect_b32 s{sCNT}, {N0}, {N1}")
    A(f"s_mul_i32 s{sT}, s{sW}, {N1}")
    A(f"s_sub_u32 s{sT}, s{sT}, {N1-N0}")
    A(f"s_max_i32 s{sT}, s{sT}, 0")
    A(f"s_lshl_b32 s{sT2}, s{sW}, 4")
    A(f"s_cmp_le_u32 s2, 224")
    A(f"s_cselect_b32 s{sCNT}, s{sCNT}, 16")
    A(f"s_cselect_b32 s{sT}, s{sT}, s{sT2}")
    A(f"s_mul_i32 s{sK0}, s{sW}, 3")
    A(f"s_sub_u32 s{sLO}, s{sT}, s{sK0}")
    A(f"s_add_u32 s{sLO}, s{sLO}, 9")
    A(f"v_lshrrev_b32 v2, 1, v{vL}")
    A(f"s_sub_u32 s{sT2}, s{sCNT}, 1")
    A(f"v_min_u32 v2, s{sT2}, v2")
    A(f"v_add_u32 v3, s{sK0}, v2")
    A(f"v_add_u32 v4, s{sLO}, v2")
    A("v_cmp_gt_u32 vcc, 3, v2")
    A(f"s_lshr_b32 s{sT2}, s{sHD}, 2")
    A(f"s_and_b32 s{sI}, s{sT2}, 1")
    A("v_cndmask_b32 v3, v4, v3, vcc")
    A("v_lshrrev_b32 v4, 5, v3")
    A("v_bfe_u32 v5, v3, 1, 4")
    A("v_and_b32 v6, 1, v3")
    A(f"v_and_b32 v7, 1, v{vL}")
    A(f"v_lshl_add_u32 v7, v7, 2, s{sT2}")
    A("v_add_u32 v7, 4, v7")
    A(f"v_cmp_lt_u32 vcc, 33, v{vL}")
    A(f"s_lshr_b32 s{sKO}, s{sW}, 1")
    A(f"s_xor_b32 s{sKO}, s{sKO}, s{sI}")
    A(f"s_and_b32 s{sVO}, s{sW}, 1")
    A(f"v_mov_b32 v8, s{sKO}")
    A(f"v_mov_b32 v9, s{sQB}")
    A(f"v_mov_b32 v10, s{sVO}")
    A(f"v_mov_b32 v11, s{sT2}")
    for k in range(4): A(f"v_cndmask_b32 v{4+k}, v{4+k}, v{8+k}, vcc")
    A(f"s_bfe_u32 s{sI}, s{sHD}, 0x10001")
    flag_index(2, 4, 5, 6, 7, f"s{sI}")
    A(f"s_lshl_b32 s{sT2}, s{sHD}, 6")
    A(f"s_add_u32 s{sK0}, s{sK0}, s{sT2}")
    A(f"s_lshl_b32 s{sK0}, s{sK0}, 11")
    A(f"s_add_u32 s{sK0}, s{sK0}, {WS_K}")
    A(f"s_add_u32 s{sLO2}, s{sLO}, s{sT2}")
    A(f"s_add_u32 s{sHI}, s{sLO2}, s{sCNT}")
    A(f"s_add_u32 s{sLO2}, s{sLO2}, 3")
    A(f"s_lshl_b32 s{sLO2}, s{sLO2}, 11")
    A(f"s_add_u32 s{sLO2}, s{sLO2}, {WS_K}")
    A(f"s_lshl_b32 s{sHI}, s{sHI}, 11")
    A(f"s_add_u32 s{sHI}, s{sHI}, {WS_K}")
    A(f"s_lshl_b32 s{sT}, s{sQB}, 2")
    A(f"s_add_u32 s{sT}, s{sT}, s{sT2}")
    for s in range(4):
        A(f"s_add_u32 s{sQ+s}, s{sW}, {s+1}")
        A(f"s_and_b32 s{sQ+s}, s{sQ+s}, 3")
        A(f"s_add_u32 s{sT2}, s{sQ+s}, s{sT}")
        A(f"s_lshl_b32 s{sQ+4+s}, s{sT2}, 11")
    A(f"s_mov_b32 s{sKO}, s{sK0}")
    A(f"s_add_u32 s{sVO}, s{sKO}, {WS_V - WS_K}")
    ST.at(12)
    A(f"s_mov_b32 s{sI}, {SPIN}")
    A(f"s_mov_b32 s{sT}, {WS_F1}")
    A("s_mov_b32 exec_lo, 0x3f")
    A("s_mov_b32 exec_hi, 4")
    if os.environ.get("NOPOLL"): A("s_branch k2_pa_done")
    if int(os.environ.get("PD", 10)): A(f"s_sleep {os.environ.get('PD', 10)}")
    A("k2_pa:")
    A(f"buffer_load_dwordx2 v[4:5], v2, {sr(sWS,4)}, s{sT} offen sc1")
    A("s_waitcnt vmcnt(0)")
    A("v_cmp_ne_u64 vcc, s[6:7], v[4:5]")
    A("s_nop 1")
    A("s_and_b64 exec, exec, vcc")
    A("s_cbranch_scc0 k2_pa_done")
    A(f"s_sub_u32 s{sI}, s{sI}, 1")
    A(f"s_sleep {os.environ.get('PSL', 1)}")
    A(f"s_cmp_gt_i32 s{sI}, 0")
    A("s_cbranch_scc1 k2_pa")
    A("k2_pa_done:")
    A("s_mov_b64 exec, -1")
    ST.at(13)
    def ldk(st, t): return f"buffer_load_dwordx4 {vr(KV+16*st+4*t,4)}, v{vO16}, {sr(sWS,4)}, s{sKO} offen offset:{1024*t} sc1"
    def ldv(st, t): return f"buffer_load_dwordx4 {vr(KV+16*st+8+4*t,4)}, v{vO16}, {sr(sWS,4)}, s{sVO} offen offset:{1024*t} sc1"
    def ldq(s, t): return f"buffer_load_dwordx4 {vr(Q+8*s+4*t,4)}, v{vO16}, {sr(sWS,4)}, s{sQ+4+s} offen offset:{1024*t}"
    adv = [f"s_add_u32 s{sKO}, s{sKO}, 2048", f"s_cmp_ge_u32 s{sKO}, s{sHI}", f"s_cselect_b32 s{sKO}, s{sLO2}, s{sKO}"]
    setv = f"s_add_u32 s{sVO}, s{sKO}, {WS_V - WS_K}"
    A(f"s_lshl_b32 s{sT}, s{sW}, 11")
    A(f"s_add_u32 m0, s{sT}, {LDS_Q}")
    A(ldk(0, 0))
    A(f"buffer_load_dwordx4 v{vO16}, {sr(sWS,4)}, s{sQ+7} offen sc1 lds")
    A(f"buffer_load_dwordx4 v{vO16}, {sr(sWS,4)}, s{sQ+7} offen offset:1024 sc1 lds")
    A(ldk(0, 1))
    for r in range(64): A(f"v_mov_b32 v{O+r}, 0") if r not in (2,) else None
    for x in [ldv(0, 0), ldv(0, 1)]: A(x)
    A(f"s_mov_b32 s{sPASS}, 0")
    A(f"s_mov_b32 s{sOK}, 0")
    A("s_branch k2_first")
    A("k2_pass:")
    A(f"s_mov_b32 s{sKO}, s{sK0}")
    A(setv)
    for x in [ldk(0, 0), ldk(0, 1), ldv(0, 0), ldv(0, 1)]: A(x)
    A("s_waitcnt vmcnt(0)")
    A("k2_first:")
    for x in adv[:1] + [setv, ldk(1, 0), ldk(1, 1), ldv(1, 0), ldv(1, 1)] + adv[:1] + [setv, ldk(2, 0), ldk(2, 1), ldv(2, 0), ldv(2, 1)]: A(x)
    A(f"s_sub_u32 s{sT}, s{sCNT}, 3")
    A(f"s_mul_i32 s{sT}, s{sT}, s{sQB}")
    A(f"s_lshr_b32 s{sT}, s{sT}, 4")
    A(f"s_lshl_b32 s{sT}, s{sT}, 11")
    A(f"s_add_u32 s{sKO}, s{sLO2}, s{sT}")
    A(f"s_cmp_lg_u32 s{sPASS}, 0")
    A("s_cbranch_scc1 k2_nobar")
    A(f"v_mov_b32 v{vT+12}, v2")
    A(f"s_mov_b32 s{sT}, {WS_F1}")
    A(f"buffer_load_dwordx2 {vr(vT+10,2)}, v2, {sr(sWS,4)}, s{sT} offen sc1")
    A("v_mov_b32 v2, 0")
    A(f"v_mov_b32 v{vIDX}, 0xdddddddd")
    for s_ in range(4):
        A(f"s_lshl_b32 s{sT}, s{sQ+s_}, 11")
        A(f"s_add_u32 s{sT}, s{sT}, {LDS_Q}")
        A(f"v_add_u32 v{vT+2+s_}, s{sT}, v{vO16}")
    A("s_waitcnt vmcnt(12)")
    A("s_barrier")
    for s_ in range(4):
        for t in range(2): A(f"ds_read_b128 {vr(Q+8*s_+4*t,4)}, v{vT+2+s_} offset:{1024*t}")
    A("s_branch k2_go")
    A("k2_nobar:")
    A("s_waitcnt vmcnt(0)")
    A(f"v_mov_b32 v{vT+10}, s6")
    A(f"v_mov_b32 v{vT+11}, s7")
    for r in range(64): A(f"v_mov_b32 v{O+r}, 0")
    A("k2_go:")
    for s in range(3):
        A(f"s_mul_i32 s{sT}, s{sQ+s}, 12288")
        A(f"s_add_u32 s{sT}, s{sT}, {RED}")
        A(f"v_add_u32 v{vT+s}, s{sT}, v{vO16}")
    A(f"s_mov_b32 s{sI}, s{sCNT}")
    def qk(q, st, half):
        c = "0" if half == 0 else vr(S+16*q,16)
        return f"v_mfma_f32_32x32x16_bf16 {vr(S+16*q,16)}, {vr(KV+16*st+4*half,4)}, {vr(Q+8*q+4*half,4)}, {c}"
    def pv(q, st, half):
        return f"v_smfmac_f32_32x32x32_bf16 {vr(O+16*q,16)}, {vr(KV+16*st+8+4*half,4)}, {vr(S+16*q+8*half,8)}, v{vIDX}"
    def tile(st, first, last=False):
        nxt, prv = (st + 1) % 3, (st + 2) % 3
        for q in range(4):
            e = [f"v_exp_f32 v{S+16*q+r}, v{S+16*q+r}" for r in range(16)]
            qn, stn = (q + 1, st) if q < 3 else (0, nxt)
            qp, stp = (q - 1, st) if q > 0 else (3, prv)
            aft = {0: [], 1: [], 2: [], 3: []}
            if q == 0: aft[2] = [ldk(prv, 0)]; aft[3] = [setv]
            if q == 1: aft[1] = ["s_waitcnt vmcnt(5)"]; aft[2] = [ldk(prv, 1)]; aft[3] = adv[0:2]
            if q == 2: aft[0] = [adv[2]]; aft[2] = [ldv(prv, 0)]; aft[3] = [f"s_sub_u32 s{sI}, s{sI}, 1", "s_waitcnt vmcnt(5)"]
            if q == 3: aft[2] = [ldv(prv, 1)]; aft[3] = [f"s_cmp_eq_u32 s{sI}, 1"]
            ms = [qk(qn, stn, 0), qk(qn, stn, 1), pv(qp, stp, 0), pv(qp, stp, 1)]
            if first and q == 0:
                A("s_waitcnt lgkmcnt(0)")
                ms[2] = ms[3] = None
            if first:
                aft = {0: [], 1: [], 2: [], 3: []}
                if q == 1: aft[1] = ["s_waitcnt vmcnt(9)"]
                if q == 2: aft[3] = [f"s_sub_u32 s{sI}, s{sI}, 1", "s_waitcnt vmcnt(7)"]
                if q == 3: aft[2] = ["s_waitcnt vmcnt(0)"]; aft[3] = [f"v_cmp_eq_u64 vcc, s[6:7], {vr(vT+10,2)}"]
            if last:
                wr = lambda s_, g: f"ds_write_b128 v{vT+s_}, {vr(O+16*s_+4*g,4)} offset:{4096*s_+1024*g}"
                aft = {0: [], 1: [], 2: [], 3: []}
                if q == 1: aft[1] = ["s_waitcnt vmcnt(4)"]
                if q == 2: aft[2] = [wr(0, 0)]; aft[3] = [wr(0, 1)]
                if q == 3:
                    ms[0] = ms[1] = None
                    aft[0] = [wr(0, 2)]; aft[1] = [wr(0, 3)]; aft[2] = [wr(1, 0)]; aft[3] = [wr(1, 1)]
            for k in range(4):
                if ms[k]: A(ms[k])
                for y in aft[k]: A(y)
                for x in e[4*k:4*k+4]: A(x)
    ST.at(0)
    A("s_waitcnt vmcnt(11) lgkmcnt(6)")
    ST.at(1)
    A(qk(0, 0, 0)); A(qk(0, 0, 1))
    A("s_nop 9")
    tile(0, True)
    A("s_cmp_lg_u64 vcc, -1")
    if not os.environ.get("NOPOLL"): A("s_cbranch_scc1 k2_pb0")
    loop_start = A.mark()
    A("k2_loop:")
    if DIAG:
        A("s_waitcnt lgkmcnt(0)")
        for i in (11,): A(f"s_mov_b32 s{70+2*i}, s{68+2*i}")
        ST.at(10)
    for st in (1, 2, 0):
        tile(st, False)
        A(f"s_cbranch_scc1 k2_x{(st + 1) % 3}" if st != 0 else "s_cbranch_scc0 k2_loop")
    loop_end = A.mark()
    for st in (1, 2, 0):
        A(f"k2_x{st}:")
        tile(st, False, True)
        A(f"ds_write_b128 v{vT+1}, {vr(O+16+8,4)} offset:{4096+2048}")
        A(pv(3, st, 0))
        A(f"ds_write_b128 v{vT+1}, {vr(O+16+12,4)} offset:{4096+3072}")
        A(pv(3, st, 1))
        if st != 0: A("s_branch k2_red")
    A("k2_red:")
    ST.at(2)
    A(f"s_lshl_b32 s{sT2}, s{sQB}, 2")
    A(f"s_add_u32 s{sT2}, s{sT2}, s{sW}")
    for g in range(4): A(f"ds_write_b128 v{vT+2}, {vr(O+32+4*g,4)} offset:{8192+1024*g}")
    A(f"s_mul_i32 s{sT}, s{sW}, 12288")
    A(f"s_add_u32 s{sT}, s{sT}, {RED}")
    A(f"v_add_u32 v{vT+1}, s{sT}, v{vO16}")
    A(f"s_lshl_b32 s{sT}, s{sW}, 2")
    A(f"s_add_u32 s{sT}, s{sT}, {K2_LDS-128}")
    A(f"v_mov_b32 v{vT+14}, s{sT}")
    A(f"s_lshl_b32 s{sT2}, s{sT2}, 4")
    A(f"s_add_u32 s{sT2}, s{sT2}, s{sHD}")
    A(f"s_lshl_b32 s{sKO}, s{sT2}, 11")
    A(f"s_add_u32 s{sKO}, s{sKO}, {WS_O}")
    A(f"s_lshl_b32 s{sVO}, s{sT2}, 7")
    A(f"s_add_u32 s{sVO}, s{sVO}, {WS_FO}")
    A("s_waitcnt vmcnt(0) lgkmcnt(0)")
    ST.at(3)
    A("s_barrier")
    ST.at(4)
    for g in (3, 0, 1, 2):
        for s in range(3):
            A(f"ds_read_b128 {vr(S+16*s+4*g,4)}, v{vT+1} offset:{4096*s+1024*g}")
    A(f"v_cmp_lt_u32 s[38:39], 31, v{vL}")
    R = O + 48
    def addg(g):
        for r in range(4*g, 4*g+4): A(f"v_add_f32 v{S+r}, v{S+r}, v{S+16+r}")
        for r in range(4*g, 4*g+4): A(f"v_add_f32 v{R+r}, v{R+r}, v{S+32+r}")
        for r in range(4*g, 4*g+4): A(f"v_add_f32 v{R+r}, v{R+r}, v{S+r}")
    A("s_waitcnt lgkmcnt(9)")
    addg(3)
    A(f"v_mov_b32 v{vT+4}, v{R+12}")
    A(f"v_mov_b32 v{vT+5}, v{R+12}")
    A("s_waitcnt lgkmcnt(6)")
    A(f"v_permlane32_swap_b32 v{vT+4}, v{vT+5}")
    A(f"v_rcp_f32 v{vT+6}, v{vT+5}")
    addg(0)
    A("s_waitcnt lgkmcnt(3)")
    addg(1)
    A("s_waitcnt lgkmcnt(0)")
    addg(2)
    A(f"s_cmp_lg_u32 s{sOK}, 0")
    A(f"s_mov_b32 s{sPUB}, 0")
    A("s_cbranch_scc1 k2_apart")
    for t in range(2):
        for r in range(8): A(f"v_mul_f32 v{S+8*t+r}, v{R+8*t+r}, v{vT+6}")
        for r in range(4): A(f"v_cvt_pk_bf16_f32 v{S+16+4*t+r}, v{S+8*t+2*r}, v{S+8*t+2*r+1}")
        if t == 1:
            A(f"v_cndmask_b32 v{S+22}, v{S+22}, 0, s[38:39]")
            A(f"v_cndmask_b32 v{S+23}, v{S+23}, 0, s[38:39]")
        A(f"buffer_store_dwordx4 {vr(S+16+4*t,4)}, v{vO16}, {sr(sWS,4)}, s{sKO} offen offset:{1024*t} sc1")
    A(f"v_add_f32 v{vT+7}, abs(v{R}), abs(v{R+1})")
    for r in range(2, 16): A(f"v_add_f32 v{vT+7}, v{vT+7}, abs(v{R+r})")
    A(f"v_cmp_nle_f32 vcc, {hex(f2u(2.0**-60))}, v{vT+5}")
    A(f"s_mov_b64 s[36:37], vcc")
    A(f"v_cmp_nge_f32 vcc, {hex(f2u(2.0**60))}, v{vT+5}")
    A(f"s_or_b64 s[36:37], s[36:37], vcc")
    A(f"v_cmp_nge_f32 vcc, {hex(f2u(2.0**120))}, v{vT+7}")
    A(f"s_or_b64 s[36:37], s[36:37], vcc")
    A(f"s_cselect_b32 s{sOK}, 0, 1")
    A(f"s_or_b32 s{sOK}, s{sOK}, s{sPASS}")
    A(f"s_mov_b32 s{sPUB}, s{sOK}" if not os.environ.get("NOPOLL") else f"s_mov_b32 s{sPUB}, 1")
    A("k2_apart:")
    A("s_barrier")
    def publish(lab, younger=0):
        A(f"s_cmp_eq_u32 s{sPUB}, 0")
        A(f"v_mov_b32 v{vT+4}, 0")
        A(f"s_waitcnt vmcnt({younger})")
        A(f"s_cbranch_scc1 {lab}")
        A("s_mov_b64 exec, 1")
        A(f"buffer_store_dwordx2 {vr(vTAG,2)}, v{vT+4}, {sr(sWS,4)}, s{sVO} offen sc1")
        A("s_mov_b64 exec, -1")
        A(f"{lab}:")
    AA, AB, OF, LB = 0, 96, 160, 32
    vG3, vZ3, vF3, vW3, vOA, vX = 228, 229, 230, 232, 234, 235
    sKH, sB3, sB, sOB, sOA = 54, 55, 56, 61, 62
    A(f"s_lshr_b32 s{sKH}, s{sW}, 1")
    A(f"s_and_b32 s{sB3}, s{sW}, 1")
    A(f"v_lshrrev_b32 v{vT+10}, 5, v{vL}")
    A(f"v_bfe_u32 v{vT+11}, v{vL}, 2, 2")
    A(f"v_bfe_u32 v{vT+12}, v{vL}, 4, 1")
    A(f"v_lshlrev_b32 v{vT+12}, 5, v{vT+12}")
    A(f"v_and_b32 v{vT+13}, 3, v{vL}")
    A(f"v_lshl_add_u32 v{vT+12}, v{vT+13}, 3, v{vT+12}")
    A(f"v_lshl_add_u32 v{vT+12}, v{vT+11}, 7, v{vT+12}")
    A(f"v_lshrrev_b32 v{vT+11}, 1, v{vT+11}")
    A(f"v_lshl_add_u32 v{vT+12}, v{vT+11}, 6, v{vT+12}")
    A(f"s_lshl_b32 s{sT}, s{sB3}, 6")
    A(f"v_xor_b32 v{vZ3}, s{sT}, v{vT+12}")
    A(f"v_lshl_add_u32 v{vZ3}, v{vT+10}, 10, v{vZ3}")
    A(f"s_mul_i32 s{sT2}, s{sKH}, {14*2048}")
    A(f"s_add_u32 s{sT}, s{sT2}, {LZ}")
    A(f"v_add_u32 v{vZ3}, s{sT}, v{vZ3}")
    A(f"s_lshl_b32 s{sT}, s{sKH}, 10")
    A(f"s_add_u32 s{sT}, s{sT}, s{sT2}")
    A(f"v_add_u32 v{vF3}, s{sT}, v{vO16}")
    A(f"v_xor_b32 v{vF3+1}, 1024, v{vF3}")
    A(f"s_lshl_b32 s{sT}, s{sMT}, 1")
    A(f"s_add_u32 s{sB}, s{sT}, s{sB3}")
    A(f"s_mul_i32 s{sT}, s{sB}, {YB}")
    A(f"s_add_u32 s{sT}, s{sT}, {WS_Y + 7*4096 + 1024}")
    A(f"buffer_load_dword v{vG3}, v{vT+9}, {sr(sWS,4)}, s{sT} offen sc1")
    A(f"s_lshl_b32 s{sT}, s{sKH}, 6")
    A(f"v_xor_b32 v{vW3}, s{sT}, v{vT+12}")
    A(f"v_lshl_add_u32 v{vW3}, v{vT+10}, 9, v{vW3}")
    A(f"s_mul_i32 s{sT}, s{sKH}, {224*128}")
    A(f"s_add_u32 s{sT}, s{sT}, {LW}")
    A(f"v_add_u32 v{vW3}, s{sT}, v{vW3}")
    A(f"v_xor_b32 v{vW3+1}, 64, v{vW3}")
    A(f"s_lshl_b32 s{sT}, s{sW}, 12")
    A(f"v_add_u32 v{vX}, s{sT}, v{vO16}")
    A(f"v_xor_b32 v{vX+1}, 8192, v{vX}")
    A(f"s_lshl_b32 s{sT}, s{sB}, 1")
    A(f"s_add_u32 s{sT}, s{sT}, s{sKH}")
    A(f"s_lshl_b32 s{sT}, s{sT}, 14")
    A(f"s_add_u32 s{sOB}, s{sT}, {WS_O}")
    A(f"v_lshrrev_b32 v{vT+3}, 2, v{vT+9}")
    A(f"v_mul_u32_u24 v{vOA}, 57344, v{vT+3}")
    A(f"v_lshl_add_u32 v{vOA}, v{vT+10}, 4, v{vOA}")
    A(f"s_mul_i32 s{sOA}, s{sB}, 896")
    A(f"s_lshl_b32 s{sT}, s{sNT}, 7")
    A(f"s_add_u32 s{sOA}, s{sOA}, s{sT}")
    A(f"s_lshl_b32 s{sT}, s{sKH}, 6")
    A(f"s_add_u32 s{sOA}, s{sOA}, s{sT}")
    A(f"s_mov_b32 s{sOUT+2}, 1835008")
    A(f"s_mov_b32 s{sOUT+3}, 0x20000")
    publish("k2_np0")
    A("k2_pub:")
    ST.at(5)
    A(f"v_mov_b32 v{vT+5}, s{sOK}")
    A(f"ds_write_b32 v{vT+14}, v{vT+5}")
    A("k2_chk:")
    A(f"v_mov_b32 v{vT+8}, {K2_LDS-128}")
    A("s_waitcnt lgkmcnt(0)")
    A("s_barrier")
    A(f"ds_read_b128 {vr(vT+4,4)}, v{vT+8}")
    A("s_waitcnt lgkmcnt(0)")
    A("s_barrier")
    A(f"v_and_b32 v{vT+4}, v{vT+4}, v{vT+5}")
    A(f"v_and_b32 v{vT+6}, v{vT+6}, v{vT+7}")
    A(f"v_and_b32 v{vT+4}, v{vT+4}, v{vT+6}")
    A(f"v_readfirstlane_b32 s{sT}, v{vT+4}")
    A(f"s_cmp_eq_u32 s{sT}, 0")
    if not os.environ.get("NOPOLL"): A("s_cbranch_scc1 k2_fail")
    A("k2_p3:")
    A("s_cmp_ge_u32 s2, 224")
    A("s_cbranch_scc1 k2_dump" if DIAG else "s_cbranch_scc1 k2_end")
    A(f"s_cmp_ge_u32 s{sW}, 4")
    A("s_cbranch_scc1 k2_auxp3")
    steps = []
    HO = [3, 4, 5, 6, 7, 0, 1, 2]
    OFr = lambda m: (OF + 4*m) if m < 12 else (128 + 4*(m-12))
    for n in range(30):
        buf = LB + 12 * (n % 4)
        if n < 14:
            rd = [f"ds_read_b64_tr_b16 {vr(buf+2*x,2)}, v{vZ3} offset:{2048*n+512*x}" for x in range(2)]
            rd += [f"ds_read_b128 {vr(buf+4+4*k,4)}, v{vF3+k} offset:{2048*n}" for k in range(2)]
            mm = [f"v_mfma_f32_32x32x16_bf16 {vr(AA+16*k,16)}, {vr(buf+4+4*k,4)}, {vr(buf,4)}, {'0' if n == 0 else vr(AA+16*k,16)}" for k in range(2)]
        else:
            m = n - 14; hd, t = HO[m >> 1], m & 1
            rd = [f"ds_read_b64_tr_b16 {vr(buf+4+4*k+2*x,2)}, v{vW3+k} offset:{(28*hd+16*t)*128+1024*x}" for k in range(2) for x in range(2)]
            ks = (1, 0)
            mm = [f"v_mfma_f32_32x32x16_bf16 {vr(AB+16*k,16)}, {vr(buf+4+4*k,4)}, {vr(OFr(m),4)}, {'0' if m == 0 else vr(AB+16*k,16)}" for k in ks]
        steps.append((rd, mm))
    for x in steps[0][0] + steps[1][0] + steps[2][0]: A(x)
    A(f"v_mul_f32 v{vG3}, {hex(f2u(-math.log2(math.e)))}, v{vG3}")
    A(f"v_exp_f32 v{vG3}, v{vG3}")
    A("s_nop 0")
    A(f"v_add_f32 v{vG3}, 1.0, v{vG3}")
    A(f"v_rcp_f32 v{vG3}, v{vG3}")
    A("s_nop 0")
    A(f"v_sub_f32 v{vG3+10}, 1.0, v{vG3}")
    for n in range(14):
        if n == 0: ST.at(10)
        if n == 7: ST.at(11)
        A(f"s_waitcnt lgkmcnt({4 * min(2, 13 - n)})")
        rd = steps[n+3][0] if n + 3 < 14 else [None] * 4
        for k in range(2):
            A(steps[n][1][k])
            for x in rd[2*k:2*k+2]:
                if x: A(x)
    ST.at(6)
    A("s_barrier")
    ST.at(7)
    def old(m):
        hd = HO[m >> 1]
        if m % 2 == 0 and (m == 0 or hd % 2 == 0 or hd == 0): A(f"s_add_u32 s{sI}, s{sOB}, {4096*(hd>>1)}")
        A(f"buffer_load_dwordx4 {vr(OFr(m),4)}, v{vO16}, {sr(sWS,4)}, s{sI} offen offset:{2048*(hd&1)+1024*(m&1)} sc1")
    NO = int(os.environ.get("NO", 10))
    for m in range(NO): old(m)
    for x in steps[14][0] + steps[15][0] + steps[16][0]: A(x)
    LIN = os.environ.get("LIN", "0") == "1"
    if LIN:
        A(f"s_lshl_b32 s{sT}, s{sB3}, 12")
        A(f"s_add_u32 s{sT}, s{sT}, 16384")
        A(f"v_and_b32 v{vT}, 31, v{vL}")
        A(f"v_lshl_add_u32 v{vT+1}, s{sKH}, 2, v{vT+10}")
        A(f"v_and_b32 v{vT+5}, 7, v{vL}")
        A(f"v_xor_b32 v{vT+1}, v{vT+1}, v{vT+5}")
        A(f"v_lshlrev_b32 v{vT+1}, 4, v{vT+1}")
        A(f"v_lshl_add_u32 v{vT+2}, v{vT}, 7, v{vT+1}")
        A(f"v_add_u32 v{vT+2}, s{sT}, v{vT+2}")
        A(f"v_xor_b32 v{vT+3}, 32, v{vT+2}")
        A(f"v_lshrrev_b32 v{vT}, 3, v{vL}")
        A(f"v_xor_b32 v{vT+1}, v{vT}, v{vT+5}")
        A(f"v_lshlrev_b32 v{vT+1}, 4, v{vT+1}")
        A(f"v_lshl_add_u32 v{vT+4}, v{vT}, 7, v{vT+1}")
        A(f"s_lshl_b32 s{sT2}, s{sKH}, 11")
        A(f"s_add_u32 s{sT}, s{sT}, s{sT2}")
        A(f"v_add_u32 v{vT+4}, s{sT}, v{vT+4}")
        A(f"v_mul_u32_u24 v{vOA}, 57344, v{vT}")
        A(f"v_lshl_add_u32 v{vOA}, v{vT+5}, 4, v{vOA}")
        A(f"s_mul_i32 s{sT}, s{sKH}, {16*57344 - 64}")
        A(f"s_add_u32 s{sOA}, s{sOA}, s{sT}")
    for r in range(32): A(f"v_mul_f32 v{AA+r}, v{vG3}, v{AA+r}")
    for n in range(14, 30):
        m = n - 14
        if NO + m < 16: old(NO + m)
        if m == 7: A("s_barrier")
        A(f"s_waitcnt vmcnt({min(NO + m + 1, 16) - m - 1}) lgkmcnt({4 * min(2, 29 - n)})")
        if m == 0: ST.at(8)
        rd = steps[n+3][0] if n + 3 < 30 else [None] * 4
        for k in range(2):
            if m < 12 or k == 0: A(steps[n][1][k])
            for x in rd[2*k:2*k+2]:
                if x: A(x)
    ST.at(9)
    A(steps[26][1][1]); A(steps[27][1][1])
    A("s_nop 8")
    for g in range(4):
        for r in range(4*g, 4*g+4): A(f"v_fma_f32 v{AB+16+r}, v{vG3+10}, v{AB+16+r}, v{AA+16+r}")
        if g < 2: A(steps[28 + g][1][1])
        A(f"ds_write_b128 v{vX}, {vr(AB+16+4*g,4)} offset:{1024*g}")
    A("s_waitcnt lgkmcnt(0)")
    A("s_barrier")
    for g in range(4): A(f"ds_read_b128 {vr(AA+16+4*g,4)}, v{vX+1} offset:{1024*g}")
    for r in range(16): A(f"v_fma_f32 v{AB+r}, v{vG3+10}, v{AB+r}, v{AA+r}")
    for g in range(4):
        A(f"s_waitcnt lgkmcnt({3-g})")
        for r in range(4*g, 4*g+4): A(f"v_add_f32 v{AB+r}, v{AB+r}, v{AA+16+r}")
        for r in range(2*g, 2*g+2): A(f"v_cvt_pk_bf16_f32 v{LB+r}, v{AB+2*r}, v{AB+2*r+1}")
        if g & 1:
            t = g >> 1
            A(f"v_permlane32_swap_b32 v{LB+4*t}, v{LB+4*t+2}")
            A(f"v_permlane32_swap_b32 v{LB+4*t+1}, v{LB+4*t+3}")
            if LIN: A(f"ds_write_b128 v{vT+2+t}, {vr(LB+4*t,4)}")
            else: A(f"buffer_store_dwordx4 {vr(LB+4*t,4)}, v{vOA}, {sr(sOUT,4)}, s{sOA} offen offset:{32*t} {os.environ.get('OUTF', '')}")
    if LIN:
        A("s_waitcnt lgkmcnt(0)")
        A("s_barrier")
        for k in range(2): A(f"ds_read_b128 {vr(LB+8+4*k,4)}, v{vT+4} offset:{1024*k}")
        A(f"s_add_u32 s{sT}, s{sOA}, {8*57344}")
        for k in range(2):
            A(f"s_waitcnt lgkmcnt({1-k})")
            A(f"buffer_store_dwordx4 {vr(LB+8+4*k,4)}, v{vOA}, {sr(sOUT,4)}, s{sT if k else sOA} offen {os.environ.get('OUTF', '')}")
    A("s_branch k2_dump" if DIAG else "s_endpgm")

    A("k2_fail:")
    A(f"s_cmp_ge_u32 s{sW}, 4")
    A("s_cbranch_scc1 k2_auxfb")
    A("s_branch k2_fb")
    A("k2_pb0:")
    A(f"s_mov_b32 s{sT2}, {SPIN}")
    A(f"s_mov_b32 s{sT}, {WS_F1}")
    A("k2_pb:")
    A(f"buffer_load_dwordx2 {vr(vT+10,2)}, v{vT+12}, {sr(sWS,4)}, s{sT} offen sc1")
    A("s_waitcnt vmcnt(0)")
    A(f"v_cmp_eq_u64 vcc, s[6:7], {vr(vT+10,2)}")
    A("s_nop 1")
    A("s_cmp_eq_u64 vcc, -1")
    A("s_cbranch_scc1 k2_loop")
    A(f"s_sub_u32 s{sT2}, s{sT2}, 1")
    A("s_sleep 2")
    A(f"s_cmp_lg_u32 s{sT2}, 0")
    A("s_cbranch_scc1 k2_pb")
    A("s_branch k2_loop")
    A("k2_fb:")
    A(f"s_mov_b32 s{sPASS}, 1")
    A("s_waitcnt vmcnt(0)")
    A("s_barrier")
    for q in range(4): A(f"v_mov_b32 v{O+q}, 0xff800000")
    A(f"s_mov_b32 s{sKO}, s{sK0}")
    A(f"s_add_u32 s{sT2}, s{sK0}, {3*2048}")
    A(f"s_mov_b32 s{sI}, s{sCNT}")
    A("k2_maxloop:")
    A(ldk(0, 0)); A(ldk(0, 1))
    A("s_waitcnt vmcnt(0)")
    for q in range(4): A(qk(q, 0, 0)); A(qk(q, 0, 1))
    A("s_nop 15")
    for q in range(4):
        for r in range(8): A(f"v_max3_f32 v{O+q}, v{O+q}, v{S+16*q+2*r}, v{S+16*q+2*r+1}")
    A(f"s_add_u32 s{sKO}, s{sKO}, 2048")
    A(f"s_cmp_eq_u32 s{sKO}, s{sT2}")
    A(f"s_cselect_b32 s{sKO}, s{sLO2}, s{sKO}")
    A(f"s_cselect_b32 s{sT2}, 0, s{sT2}")
    A(f"s_sub_u32 s{sI}, s{sI}, 1")
    A(f"s_cmp_lg_u32 s{sI}, 0")
    A("s_cbranch_scc1 k2_maxloop")
    A(f"s_lshl_b32 s{sT}, s{sW}, 8")
    A(f"s_add_u32 s{sT}, s{sT}, {RED}")
    A(f"v_lshl_add_u32 v{vT}, v{vL}, 2, s{sT}")
    A(f"v_and_b32 v{vT+1}, 31, v{vL}")
    A(f"v_lshlrev_b32 v{vT+1}, 2, v{vT+1}")
    A(f"v_add_u32 v{vT+1}, {RED}, v{vT+1}")
    for s in range(4):
        A(f"s_lshl_b32 s{sT}, s{sQ+s}, 10")
        A(f"v_add_u32 v{vT+2}, s{sT}, v{vT}")
        A(f"v_add_u32 v{vT+4+s}, s{sT}, v{vT+1}")
        A(f"ds_write_b32 v{vT+2}, v{O+s}")
    A("s_waitcnt lgkmcnt(0)")
    A("s_barrier")
    for s in range(4):
        for k in range(8): A(f"ds_read_b32 v{S+8*s+k}, v{vT+4+s} offset:{128*k}")
        A("s_waitcnt lgkmcnt(0)")
    A("s_barrier")
    A(f"v_cmp_lt_u32 vcc, 31, v{vL}")
    for q in range(4):
        m = S + 8 * q
        A(f"v_max3_f32 v{m}, v{m}, v{m+1}, v{m+2}")
        A(f"v_max3_f32 v{m}, v{m}, v{m+3}, v{m+4}")
        A(f"v_max3_f32 v{m}, v{m}, v{m+5}, v{m+6}")
        A(f"v_max_f32 v{m}, v{m}, v{m+7}")
        A(f"v_xor_b32 v{m}, 0x80000000, v{m}")
        A(f"v_and_b32 v{m+1}, 0xffff0000, v{m}")
        A(f"v_sub_f32 v{m+2}, v{m}, v{m+1}")
        A(f"v_and_b32 v{m+3}, 0xffff0000, v{m+2}")
        A(f"v_sub_f32 v{m+4}, v{m+2}, v{m+3}")
        A(f"v_lshrrev_b32 v{m+1}, 16, v{m+1}")
        A(f"v_or_b32 v{m+1}, v{m+1}, v{m+3}")
        A(f"v_lshrrev_b32 v{m+4}, 16, v{m+4}")
        A(f"v_cndmask_b32 v{Q+8*q+6}, v{Q+8*q+6}, v{m+1}, vcc")
        A(f"v_cndmask_b32 v{Q+8*q+7}, v{Q+8*q+7}, v{m+4}, vcc")
    A("s_branch k2_pass")


    A("k2_aux:")
    sCOL, sTS = 27, 40
    A(f"s_getpc_b64 {sr(sTS,2)}")
    A(f"s_add_u32 s{sTS}, s{sTS}, tab_small@rel32@lo+4")
    A(f"s_addc_u32 s{sTS+1}, s{sTS+1}, tab_small@rel32@hi+12")
    A(f"s_mov_b32 s{sTS+2}, {TS_BYTES}")
    A(f"s_mov_b32 s{sTS+3}, 0x20000")
    A(f"s_mov_b32 s{sX+2}, 401408")
    A(f"s_mov_b32 s{sX+3}, 0x20000")
    A(f"s_mul_i32 s{sCOL}, s{sXC}, 28")
    A(f"s_add_u32 s{sCOL}, s{sCOL}, s{sJ}")
    A(f"s_cmp_eq_u32 s2, 224")
    A(f"s_cselect_b32 s{sCOL}, 224, s{sCOL}")
    C_ = lambda kind, mt, u: 48 * mt + 16 * kind + 4 * u
    X = 96
    YF = 160
    U0 = 192
    WT = 212
    TM = 244
    vG = 210
    A(f"v_lshrrev_b32 v{TM}, 2, v{vL}")
    A(f"v_mul_u32_u24 v{vG+1}, {WP}, v{TM}")
    A(f"v_mul_u32_u24 v{TM}, {YB}, v{TM}")
    A(f"v_and_b32 v{TM+1}, 3, v{vL}")
    A(f"v_lshl_add_u32 v{vG}, v{TM+1}, 4, v{TM}")
    A(f"v_lshl_add_u32 v{vG+1}, v{TM+1}, 4, v{vG+1}")
    A(f"s_lshr_b32 s{sT}, s{sCOL}, 5")
    A(f"s_lshl_b32 s{sT}, s{sT}, 12")
    A(f"s_and_b32 s{sT2}, s{sCOL}, 31")
    A(f"s_lshl_b32 s{sT2}, s{sT2}, 6")
    A(f"s_add_u32 s{sT}, s{sT}, s{sT2}")
    A(f"s_lshl_b32 s{sKO}, s{sCOL}, 6")
    A(f"v_lshrrev_b32 v{TM}, 5, v{vL}")
    A(f"v_bfe_u32 v{TM+1}, v{vL}, 2, 2")
    A(f"v_lshl_add_u32 v{TM}, v{TM}, 2, v{TM+1}")
    A(f"v_lshlrev_b32 v{TM}, 6, v{TM}")
    A(f"v_bfe_u32 v{TM+1}, v{vL}, 4, 1")
    A(f"v_lshl_add_u32 v{TM}, v{TM+1}, 5, v{TM}")
    A(f"v_and_b32 v{TM+1}, 3, v{vL}")
    A(f"v_lshl_add_u32 v{TM}, v{TM+1}, 3, v{TM}")
    A(f"v_add_u32 v{TM}, {LDS_Y}, v{TM}")
    A(f"s_cmp_eq_u32 s{sW}, 5")
    A("s_cbranch_scc1 k2_help")
    def cld(dst, off):
        A(f"s_mov_b32 s{sT2}, {off}")
        for f in range(4): A(f"buffer_load_dwordx4 {vr(dst+4*f,4)}, v{vO16}, {sr(sTS,4)}, s{sT2} offen offset:{1024*f}")
    LC = LDS_Y + 8192
    for mt in range(2):
        for kind in range(3): cld(C_(kind, mt, 0), TS_F64 + kind * 8192 + 4096 * mt)
    for f in range(22):
        if f % 4 == 0:
            A(f"s_mov_b32 m0, {LC + 1024*f}")
            A(f"s_mov_b32 s{sT2}, {TS_F32 + 1024*f}")
        A(f"buffer_load_dwordx4 v{vO16}, {sr(sTS,4)}, s{sT2} offen offset:{1024*(f%4)} lds")
    sFI = 44
    FE = os.environ.get("FE", "0")
    def fimg():
        A(f"s_mul_i32 s{sFI}, s{sNT}, {2*28672}")
        A(f"s_mov_b32 s{sFI+1}, 0")
        A("k2_fi:")
        A(f"s_lshl_b32 m0, s{sFI+1}, 1")
        A(f"s_add_u32 s{sT2}, s{sFI}, s{sFI+1}")
        A(f"buffer_load_dwordx4 v{vO16}, {sr(sTB,4)}, s{sT2} offen lds")
        A(f"s_add_u32 s{sT2}, s{sT2}, {28672-1024}")
        A(f"buffer_load_dwordx4 v{vO16}, {sr(sTB,4)}, s{sT2} offen offset:1024 lds")
        A(f"s_add_u32 s{sFI+1}, s{sFI+1}, 1024")
        A(f"s_waitcnt vmcnt({os.environ.get('DF', 12)})")
        A(f"s_cmp_lt_u32 s{sFI+1}, 28672")
        A("s_cbranch_scc1 k2_fi")
    if FE == "1":
        A("s_cmp_ge_u32 s2, 224")
        A("s_cbranch_scc1 k2_nfi")
        fimg()
        A("k2_nfi:")
    A(f"s_lshr_b32 s{sI}, s{sCOL}, 6")
    A(f"s_add_u32 s{sI}, s{sI}, 12")
    A(f"s_and_b32 s{sVO}, s{sI}, 1")
    A(f"v_bfe_u32 v100, v{vL}, 1, 1")
    A(f"v_xor_b32 v100, s{sVO}, v100")
    A(f"v_lshrrev_b32 v101, 2, v{vL}")
    A(f"v_and_b32 v102, 1, v{vL}")
    A(f"v_mov_b32 v103, s{sI}")
    A(f"s_bfe_u32 s{sI}, s{sCOL}, 0x10005")
    flag_index(98, 100, 101, 102, 103, f"s{sI}")
    A(f"s_lshr_b32 s{sVO}, s{sCOL}, 6")
    A(f"s_lshl_b32 s{sVO}, s{sVO}, 10")
    A(f"s_add_u32 s{sVO}, s{sVO}, {WS_F1 + 512}")
    A(f"v_lshlrev_b32 v100, 12, v{vL}")
    A("s_waitcnt lgkmcnt(0)")
    A("s_barrier")
    A("s_cmp_gt_u32 s2, 224")
    A("s_cbranch_scc1 k2_auxb1")
    A(f"s_mov_b32 s{sI}, {SPIN}")
    A(f"s_mov_b32 s{sT2}, {WS_F1}")
    A("k2_py:")
    A(f"buffer_load_dwordx2 v[104:105], v98, {sr(sWS,4)}, s{sT2} offen sc1")
    A(f"buffer_load_dwordx2 v[106:107], v100, {sr(sWS,4)}, s{sVO} offen sc1")
    A(f"buffer_load_dwordx2 v[108:109], v100, {sr(sWS,4)}, s{sVO} offen offset:128 sc1")
    A("s_waitcnt vmcnt(0)")
    A("v_cmp_ne_u64 vcc, s[6:7], v[104:105]")
    A("v_cmp_ne_u64 s[36:37], s[6:7], v[106:107]")
    A("v_cmp_ne_u64 s[38:39], s[6:7], v[108:109]")
    A("s_nop 1")
    A("s_or_b64 vcc, vcc, s[36:37]")
    A("s_or_b64 vcc, vcc, s[38:39]")
    A("s_and_b64 exec, exec, vcc")
    A("s_cbranch_scc0 k2_py_done")
    A(f"s_sub_u32 s{sI}, s{sI}, 1")
    A("s_sleep 4")
    A(f"s_cmp_gt_i32 s{sI}, 0")
    A("s_cbranch_scc1 k2_py")
    A("k2_py_done:")
    A("s_mov_b64 exec, -1")
    ST.at(12)
    A("s_setprio 3")
    def ydma(n):
        A(f"s_mov_b32 m0, {LDS_Y + 1024*n}")
        A(f"s_add_u32 s{sT2}, s{sT}, {WS_Y + (n>>2)*2048 + (n&3)*16*YB}")
        A(f"buffer_load_dwordx4 v{vG}, {sr(sWS,4)}, s{sT2} offen sc1 lds")
    def wld(f):
        return [f"s_add_u32 s{sT2}, s{sKO}, {WS_W + f*16*WP}",
                f"buffer_load_dwordx4 {vr(WT+4*f,4)}, v{vG+1}, {sr(sWS,4)}, s{sT2} offen sc1"]
    for n in range(8): ydma(n)
    for f in range(8):
        for x in wld(f): A(x)
    ST.at(0)
    A("s_waitcnt vmcnt(8)")
    ST.at(1)
    for p in range(2):
        for u in range(4):
            A(f"ds_read_b64_tr_b16 {vr(YF+16*p+4*u,2)}, v{TM} offset:{4096*p+1024*u}")
            A(f"ds_read_b64_tr_b16 {vr(YF+16*p+4*u+2,2)}, v{TM} offset:{4096*p+1024*u+512}")
    A("s_waitcnt lgkmcnt(0)")
    Yr = lambda u: vr(YF+4*u,4)
    Yi = lambda u: vr(YF+16+4*u,4)
    mf = lambda d, a, b, first=False: f"v_mfma_f32_32x32x16_bf16 {vr(d,16)}, {a}, {b}, {'0' if first else vr(d,16)}"
    cf = lambda kind, mt, u: vr(C_(kind, mt, u), 4)
    def p3(mt):
        L = []
        for u in range(4):
            L += [mf(X+32*mt, cf(0, mt, u), Yr(u), u == 0), mf(X+32*mt+16, cf(0, mt, u), Yi(u), u == 0)]
        for u in range(4):
            L += [mf(X+32*mt, cf(1, mt, u), Yi(u)), mf(X+32*mt+16, cf(2, mt, u), Yr(u))]
        return L
    Ur = lambda u: (U0 + 4*u) if u < 2 else (YF + 4*u)
    Ui = lambda u: (U0 + 8 + 4*u) if u < 2 else (YF + 16 + 4*u)
    def cmul_pack(xr0, xi0, cr, ci, dr, di):
        L = []
        for i in range(4):
            L += [f"v_mul_f32 v{TM+8+i}, v{xr0+i}, v{cr(i)}", f"v_mul_f32 v{xr0+i}, v{xr0+i}, v{ci(i)}"]
        for i in range(4):
            L += [f"v_fma_f32 v{TM+8+i}, -v{xi0+i}, v{ci(i)}, v{TM+8+i}", f"v_fma_f32 v{xr0+i}, v{xi0+i}, v{cr(i)}, v{xr0+i}"]
        L += [f"v_cvt_pk_bf16_f32 v{dr}, v{TM+8}, v{TM+9}", f"v_cvt_pk_bf16_f32 v{dr+1}, v{TM+10}, v{TM+11}",
              f"v_cvt_pk_bf16_f32 v{di}, v{xr0}, v{xr0+1}", f"v_cvt_pk_bf16_f32 v{di+1}, v{xr0+2}, v{xr0+3}"]
        return L
    def wmul(mt):
        L = []
        for g in range(4):
            w = WT + 4 * (4 * mt + g)
            for i in range(4):
                op = "v_and_b32 v{}, 0xffff0000, v{}" if i & 1 else "v_lshlrev_b32 v{}, 16, v{}"
                L += [op.format(TM + i, w + (i >> 1)), op.format(TM + 4 + i, w + 2 + (i >> 1))]
            u = 2 * mt + (g >> 1)
            L += cmul_pack(X+32*mt+4*g, X+32*mt+16+4*g, lambda i: TM + i, lambda i: TM + 4 + i, Ur(u) + 2*(g&1), Ui(u) + 2*(g&1))
        return L
    def p4(nt, us):
        L = []
        for u in us:
            L += [mf(X+32*nt, vr(Ur(u),4), cf(0, nt, u), u == 0), mf(X+32*nt+16, vr(Ui(u),4), cf(0, nt, u), u == 0)]
        for u in us:
            L += [mf(X+32*nt, vr(Ui(u),4), cf(2, nt, u)), mf(X+32*nt+16, vr(Ur(u),4), cf(1, nt, u))]
        return L
    Tr = lambda nt: YF if nt == 0 else U0
    Ti = lambda nt: YF + 16 if nt == 0 else U0 + 8
    TW = lambda nt: 48 * nt
    F32 = WT
    def twid(nt):
        L = []
        for g in range(4):
            L += cmul_pack(X+32*nt+4*g, X+32*nt+16+4*g, lambda i: TW(nt) + 4*g + i, lambda i: TW(nt) + 16 + 4*g + i, Tr(nt) + 2*g, Ti(nt) + 2*g)
        return L
    def p5(nt):
        L = []
        for t in range(2):
            L += [mf(X+32*nt, vr(F32+4*t,4), vr(Tr(nt)+4*t,4), t == 0), mf(X+32*nt+16, vr(F32+4*t,4), vr(Ti(nt)+4*t,4), t == 0)]
        for t in range(2):
            L += [mf(X+32*nt, vr(F32+16+4*t,4), vr(Ti(nt)+4*t,4)), mf(X+32*nt+16, vr(F32+8+4*t,4), vr(Tr(nt)+4*t,4))]
        return L
    sZR, sZI = 29, 30
    def outp(nt):
        L = []
        for p in range(2):
            z = X + 32*nt + 16*p; P = TW(nt) + 8*p
            for r in range(8): L.append(f"v_cvt_pk_bf16_f32 v{P+r}, v{z+2*r}, v{z+2*r+1}")
            L.append("s_nop 1")
            for t in range(2):
                L += [f"v_permlane32_swap_b32 v{P+4*t}, v{P+4*t+2}", f"v_permlane32_swap_b32 v{P+4*t+1}, v{P+4*t+3}"]
            for t in range(2):
                L.append(f"ds_write_b128 v{vG}, {vr(P+4*t,4)} offset:{4096*p+2048*nt+32*t}")
        return L
    def outst():
        A("s_waitcnt lgkmcnt(0)")
        for k in range(8): A(f"ds_read_b128 {vr(X+4*k,4)}, v{vG+1} offset:{1024*k}")
        for k in range(8):
            A(f"s_waitcnt lgkmcnt({7-k})")
            A(f"buffer_store_dwordx4 {vr(X+4*k,4)}, v{vO16}, {sr(sWS,4)}, s{sZR+(k>>2)} offen offset:{1024*(k&3)} sc1")
    for x in p3(0): A(x)
    ST.at(2)
    A("s_waitcnt vmcnt(4)")
    A("s_nop 7")
    for x in merge(p3(1), wmul(0)): A(x)
    A("s_waitcnt vmcnt(0)")
    A("s_nop 7")
    for x in merge(p4(0, (0, 1)), wmul(1)): A(x)
    for x in p4(0, (2, 3)): A(x)
    ST.at(3)
    A(f"v_add_u32 v{vG+1}, {LDS_Y}, v{vO16}")
    def lcd(dst, off, n):
        for f in range(n): A(f"ds_read_b128 {vr(dst+4*f,4)}, v{vG+1} offset:{8192 + off - TS_F32 + 1024*f}")
    lcd(TW(0), TS_TW, 8); lcd(F32, TS_F32, 6)
    A(f"s_lshr_b32 s{sT}, s{sCOL}, 1")
    A(f"s_and_b32 s{sT2}, s{sCOL}, 1")
    A(f"s_mul_i32 s{sT2}, s{sT2}, 224")
    A(f"s_add_u32 s{sT}, s{sT}, s{sT2}")
    A(f"s_mul_i32 s{sT}, s{sT}, {ZP}")
    A(f"s_add_u32 s{sZR}, s{sT}, {WS_Z}")
    A(f"s_add_u32 s{sZI}, s{sZR}, {112*ZP}")
    A(f"s_cmp_eq_u32 s{sCOL}, 0")
    A(f"s_cselect_b32 s{sZI}, {WS_G + 0x4000}, s{sZI}")
    A(f"s_cmp_eq_u32 s{sCOL}, 224")
    A(f"s_cselect_b32 s{sZI}, {WS_G + 0x6000}, s{sZI}")
    A(f"v_and_b32 v{vG}, 31, v{vL}")
    A(f"v_lshlrev_b32 v{vG}, 6, v{vG}")
    A(f"v_lshrrev_b32 v{TM}, 5, v{vL}")
    A(f"v_lshl_add_u32 v{vG}, v{TM}, 4, v{vG}")
    A(f"v_add_u32 v{vG}, {LDS_Y}, v{vG}")
    A("s_waitcnt lgkmcnt(6)")
    for x in merge(p4(1, (0, 1, 2, 3)), twid(0)): A(x)
    lcd(TW(1), TS_TW + 8192, 8)
    ST.at(4)
    A("s_waitcnt lgkmcnt(0)")
    for x in merge(p5(0), twid(1)): A(x)
    A("s_nop 1")
    for x in merge(p5(1), outp(0)): A(x)
    A("s_nop 7")
    for x in outp(1): A(x)
    outst()
    ST.at(5)
    A("s_setprio 0")
    A(f"s_lshl_b32 s{sT}, s{sCOL}, 7")
    A(f"s_add_u32 s{sT}, s{sT}, {WS_FZ}")
    A(f"v_mov_b32 v{TM+4}, 0")
    A(f"v_mov_b32 v{TM+6}, s6")
    A(f"v_mov_b32 v{TM+7}, s7")
    A("s_mov_b64 exec, 1")
    A("s_waitcnt vmcnt(0)")
    ST.at(6)
    A(f"buffer_store_dwordx2 {vr(TM+6,2)}, v{TM+4}, {sr(sWS,4)}, s{sT} offen sc1")
    A("s_mov_b64 exec, -1")
    A("s_cmp_ge_u32 s2, 224")
    A("s_cbranch_scc1 k2_auxw")
    A(f"v_lshrrev_b32 v{TM}, 3, v{vL}")
    A(f"v_and_b32 v{TM+1}, 7, v{vL}")
    A(f"v_bfe_u32 v{TM+2}, v{vL}, 4, 1")
    A(f"v_lshlrev_b32 v{TM+2}, 2, v{TM+2}")
    A(f"v_xor_b32 v{TM+1}, v{TM+1}, v{TM+2}")
    A(f"v_lshlrev_b32 v{TM+1}, 4, v{TM+1}")
    A(f"v_mul_u32_u24 v{TM+2}, {ZP}, v{TM}")
    A(f"v_add_u32 v{TM+2}, v{TM+2}, v{TM+1}")
    def image(name, lds, vaddr, srd, pitch, flag, depth):
        for i in range(1, 4): A(f"v_add_u32 v{20+i}, {i*(8*pitch-1024)}, v{vaddr}")
        for gr in range(14):
            A(f"s_mov_b32 m0, {lds + 4096*gr}")
            A(f"s_add_u32 s{sT}, s{sT}, {32*pitch if gr else 0}")
            for i in range(4):
                A(f"buffer_load_dwordx4 v{vaddr if i == 0 else 20+i}, {srd}, s{sT} offen offset:{1024*i} {flag} lds")
    def poll(name, lines, sl):
        A(f"s_mov_b32 s{sI}, {SPIN}")
        A(f"{name}:")
        for x in lines: A(x)
        A("s_cmp_eq_u64 vcc, -1")
        A(f"s_cbranch_scc1 {name}_done")
        A(f"s_sub_u32 s{sI}, s{sI}, 1")
        A(f"s_sleep {sl}")
        A(f"s_cmp_lg_u32 s{sI}, 0")
        A(f"s_cbranch_scc1 {name}")
        A(f"{name}_done:")
    ST.at(7)
    A(f"s_sleep {os.environ.get('ZD', 6)}")
    A(f"v_lshlrev_b32 v4, 7, v{vL}")
    A(f"v_add_u32 v5, 0x6000, v4")
    A(f"v_min_u32 v5, {224*128}, v5")
    A(f"s_lshr_b32 s{sT}, s{sMT}, 1")
    A(f"s_and_b32 s{sT2}, s{sT}, 3")
    A(f"s_add_u32 s{sT2}, s{sT2}, 28")
    A(f"s_lshl_b32 s{sT2}, s{sT2}, 2")
    A(f"s_lshr_b32 s{sT}, s{sT}, 2")
    A(f"s_add_u32 s{sT2}, s{sT2}, s{sT}")
    A(f"s_lshl_b32 s{sT2}, s{sT2}, 11")
    A(f"s_and_b32 s{sT}, s{sMT}, 1")
    A(f"s_lshl_b32 s{sT}, s{sT}, 8")
    A(f"s_add_u32 s{sT2}, s{sT2}, s{sT}")
    A(f"s_add_u32 s{sT2}, s{sT2}, {WS_F1 - WS_FZ + 1024 + 256}")
    A(f"v_writelane_b32 v5, s{sT2}, 62")
    A(f"s_add_u32 s{sT2}, s{sT2}, 128")
    A(f"v_writelane_b32 v5, s{sT2}, 63")
    A(f"s_mov_b32 s{sI}, {SPIN}")
    A(f"s_mov_b32 s{sT}, {WS_FZ}")
    A(f"s_mov_b32 s{sT2}, {WS_FZ + 0x2000}")
    A(f"s_mov_b32 s{sKO}, {WS_FZ + 0x4000}")
    A("k2_pz:")
    A(f"buffer_load_dwordx2 v[12:13], v4, {sr(sWS,4)}, s{sT} offen sc1")
    A(f"buffer_load_dwordx2 v[14:15], v4, {sr(sWS,4)}, s{sT2} offen sc1")
    A(f"buffer_load_dwordx2 v[16:17], v4, {sr(sWS,4)}, s{sKO} offen sc1")
    A(f"buffer_load_dwordx2 v[18:19], v5, {sr(sWS,4)}, s{sT} offen sc1")
    A("s_waitcnt vmcnt(0)")
    A("v_cmp_ne_u64 vcc, s[6:7], v[12:13]")
    A("v_cmp_ne_u64 s[36:37], s[6:7], v[14:15]")
    A("v_cmp_ne_u64 s[38:39], s[6:7], v[16:17]")
    A("v_cmp_ne_u64 s[62:63], s[6:7], v[18:19]")
    A("s_nop 1")
    A("s_or_b64 vcc, vcc, s[36:37]")
    A("s_or_b64 vcc, vcc, s[38:39]")
    A("s_or_b64 vcc, vcc, s[62:63]")
    A("s_and_b64 exec, exec, vcc")
    A("s_cbranch_scc0 k2_pz_done")
    A(f"s_sub_u32 s{sI}, s{sI}, 1")
    A(f"s_sleep {os.environ.get('ZSL', 6)}")
    A(f"s_cmp_gt_i32 s{sI}, 0")
    A("s_cbranch_scc1 k2_pz")
    A("k2_pz_done:")
    A("s_mov_b64 exec, -1")
    ST.at(8)
    A(f"s_lshl_b32 s{sT}, s{sMT}, 7")
    A(f"s_add_u32 s{sT}, s{sT}, {WS_Z}")
    image("k2_imz", LZ, TM+2, sr(sWS,4), ZP, os.environ.get("ZF", "sc1"), int(os.environ.get("DZ", 56)))
    A("k2_auxw:")
    ST.at(9)
    A("k2_auxb1:")
    A(f"v_lshrrev_b32 v{vWD}, 3, v{vL}")
    A(f"v_and_b32 v{vT+6}, 7, v{vL}")
    A(f"v_bfe_u32 v{vT+7}, v{vL}, 4, 1")
    A(f"v_lshlrev_b32 v{vT+7}, 2, v{vT+7}")
    A(f"v_xor_b32 v{vT+6}, v{vT+6}, v{vT+7}")
    A(f"v_mul_u32_u24 v{vWD}, 896, v{vWD}")
    A(f"v_lshl_add_u32 v{vWD}, v{vT+6}, 4, v{vWD}")
    A("s_barrier")
    A("s_barrier")
    A("s_cmp_ge_u32 s2, 224")
    A("s_cbranch_scc1 k2_chk")
    A(f"s_lshl_b32 s{sT}, s{sNT}, 7")
    A(f"s_add_u32 s{sT}, s{sT}, {64*896}")
    for i in range(48):
        if i % 4 == 0: A(f"s_mov_b32 m0, {RED + 1024*i}")
        if i: A(f"s_add_u32 s{sT}, s{sT}, {8*896-1024 if i % 4 else 8*896+3072}")
        if i == 47: A("s_mov_b32 exec_hi, 0x00ffffff")
        A(f"buffer_load_dwordx4 v{vWD}, {sr(sX,4)}, s{sT} offen offset:{1024*(i%4)} lds")
    A("s_mov_b32 exec_hi, -1")
    A(f"s_mov_b32 s{sWS_}, s{sT}")
    A("s_waitcnt vmcnt(48)")
    A("s_branch k2_chk")
    A("k2_auxfb:")
    A("s_waitcnt vmcnt(0)")
    A("s_barrier")
    A("s_barrier")
    A("s_barrier")
    A("s_branch k2_auxb1")
    A("k2_auxp3:")
    A(f"v_and_b32 v4, 31, v{vL}")
    A("v_lshlrev_b32 v4, 7, v4")
    A(f"s_lshl_b32 s{sT}, s{sMT}, 12")
    A(f"s_add_u32 s{sT}, s{sT}, {WS_FO}")
    ST.at(10)
    A(f"s_mov_b32 s{sKO}, s{sT}")
    if int(os.environ.get("OD", 0)): A(f"s_sleep {os.environ.get('OD')}")
    A(f"buffer_load_dwordx2 v[0:1], v4, {sr(sWS,4)}, s{sKO} offen sc1")
    A(f"s_mov_b32 m0, {RED + 1024*44}")
    A("s_mov_b32 exec_lo, 0")
    A("s_mov_b32 exec_hi, 0xff000000")
    A(f"buffer_load_dwordx4 v{vWD}, {sr(sX,4)}, s{sWS_} offen offset:3072 lds")
    A("s_mov_b64 exec, -1")
    A(f"s_mov_b32 s{sT}, s{sKO}")
    A("s_waitcnt vmcnt(0)")
    A("v_cmp_eq_u64 vcc, s[6:7], v[0:1]")
    A("s_nop 1")
    A("s_cmp_eq_u64 vcc, -1")
    A("s_cbranch_scc1 k2_po_done")
    poll("k2_po", [f"buffer_load_dwordx2 v[0:1], v4, {sr(sWS,4)}, s{sT} offen sc1", "s_waitcnt vmcnt(0)", "v_cmp_eq_u64 vcc, s[6:7], v[0:1]", "s_nop 1"], int(os.environ.get("OSL", 2)))
    ST.at(11)
    A("s_barrier")
    A(f"s_lshl_b32 s{sT}, s{sNT}, 7")
    for i in range(8):
        if i % 4 == 0: A(f"s_mov_b32 m0, {LW + 1024*i}")
        if i: A(f"s_add_u32 s{sT}, s{sT}, {8*896-1024 if i % 4 else 8*896+3072}")
        A(f"buffer_load_dwordx4 v{vWD}, {sr(sX,4)}, s{sT} offen offset:{1024*(i%4)} lds")
    A("s_waitcnt vmcnt(0)")
    A("s_barrier")
    A("s_branch k2_dump" if DIAG else "s_endpgm")
    A("k2_help:")
    A("s_waitcnt lgkmcnt(0)")
    A("s_barrier")
    A("s_cmp_ge_u32 s2, 224")
    A("s_cbranch_scc1 k2_end")
    A(f"s_sleep {os.environ.get('HD', 40)}")
    fimg()
    A(f"s_and_b32 s{sT}, s{sJ}, 3")
    A(f"s_mul_i32 s{sT}, s{sT}, {112*896}")
    A(f"s_lshl_b32 s{sT2}, s{sNT}, 7")
    A(f"s_add_u32 s{sT}, s{sT}, s{sT2}")
    A(f"v_mul_u32_u24 v8, 896, v{vL}")
    A(f"buffer_load_dword v9, v8, {sr(sX,4)}, s{sT} offen")
    A(f"s_add_u32 s{sT}, s{sT}, {48*896}")
    A(f"buffer_load_dword v10, v8, {sr(sX,4)}, s{sT} offen")
    A("s_waitcnt vmcnt(0)")
    A("s_endpgm")
    if DIAG: A("k2_dump:")
    ST.dump(sWS, sW, 5, 250)
    A("k2_end:")
    A("s_endpgm")
    body = A.L[loop_start:loop_end]
    rep = check_seq(body + body)
    assert not rep, rep
    return A.L, NV, 102 if DIAG else 64
```

```python
from asmlib import *
from k1 import WS_Q, WS_K, WS_V, WS_Y, WS_W, WS_O, WS_Z, WS_G, WS_BYTES, WS_FO, WS_FZ, WS_F1, f2u, YB, WP, ZP
import math, os
TS_F64, TS_F32, TS_TW, TS_BYTES = 0, 24576, 30720, 47104
LF, LZ, RED = 0, 57344, 114688
LW = RED - 8192
LDS_Y, LDS_Q = LZ, RED + 8192
K2_LDS = 163840
TAB_INV_BYTES = 401408
from k1 import SPIN
N0 = int(os.environ.get("N0", 13)); N1 = (64 - N0) // 3
assert N0 + 3 * N1 == 64
OUTF = os.environ.get('OUTF', 'sc1')
OST = os.environ.get("OST", "")

def merge(ms, vs, lead=0):
    out = []; n = len(ms); k = 0
    for i, m in enumerate(ms):
        out.append(m)
        k2 = (len(vs) * (i + 1)) // n
        out += vs[k:k2]; k = k2
    return out

def gen_k2():
    A = Asm()
    sWS, sX, sTB = 8, 12, 16
    sW, sJ, sXC, sHD, sQB, sT, sT2, sCNT, sI, sKO, sLO, sHI, sVO, sPASS = 20, 21, 22, 23, 24, 25, 26, 27, 28, 29, 30, 31, 32, 33
    sK0, sOK, sQ, sOUT = 34, 35, 40, 48
    sMT, sNT, sPUB, sLO2 = 52, 53, 57, 58
    O, S, Q, KV = 0, 64, 128, 160
    vL, vO16, vIDX, vT = 208, 209, 210, 212
    NV = 256
    vWD, sWM, sWS_ = 237, 59, 60
    vTAG = 240
    A("k2_start:")
    ST = Stamps(A, 1); ST.begin()
    A(f"s_load_dwordx2 {sr(sX,2)}, s[0:1], 40")
    A(f"s_load_dwordx2 {sr(sOUT,2)}, s[0:1], 56")
    A(f"s_mov_b32 s{sWS}, s16")
    A(f"s_mov_b32 s{sWS+1}, s17")
    A(f"s_mov_b32 s{sWS+2}, {WS_BYTES}")
    A(f"s_mov_b32 s{sWS+3}, 0x20000")
    A(f"s_mov_b32 s{sW}, s47")
    A(f"v_mov_b32 v{vL}, v64")
    A(f"v_mov_b32 v{vTAG}, s6")
    A(f"v_mov_b32 v{vTAG+1}, s7")
    A(f"v_lshlrev_b32 v{vO16}, 4, v{vL}")
    A(f"v_and_b32 v{vT+9}, 31, v{vL}")
    A(f"v_lshlrev_b32 v{vT+9}, 2, v{vT+9}")
    A(f"s_and_b32 s{sXC}, s2, 7")
    A(f"s_lshr_b32 s{sJ}, s2, 3")
    A(f"s_and_b32 s{sT}, s{sJ}, 3")
    A(f"s_lshl_b32 s{sMT}, s{sXC}, 2")
    A(f"s_add_u32 s{sMT}, s{sMT}, s{sT}")
    A(f"s_lshr_b32 s{sNT}, s{sJ}, 2")
    A(f"s_getpc_b64 {sr(sTB,2)}")
    A(f"s_add_u32 s{sTB}, s{sTB}, tab_inv@rel32@lo+4")
    A(f"s_addc_u32 s{sTB+1}, s{sTB+1}, tab_inv@rel32@hi+12")
    A(f"s_mov_b32 s{sTB+2}, {TAB_INV_BYTES}")
    A(f"s_mov_b32 s{sTB+3}, 0x20000")
    def flag_index(d, vpass, vmt, ve, vnt, shh):
        A(f"v_and_b32 v{d}, 7, v{vnt}")
        A(f"v_lshlrev_b32 v{d}, 2, v{d}")
        A(f"v_and_or_b32 v{d}, v{vmt}, 3, v{d}")
        A(f"v_lshrrev_b32 v{d+1}, 2, v{vmt}")
        A(f"v_lshl_add_u32 v{d}, v{d}, 2, v{d+1}")
        A(f"v_lshrrev_b32 v{d+1}, 3, v{vnt}")
        A(f"v_lshl_add_u32 v{d}, v{d}, 1, v{d+1}")
        A(f"v_xor_b32 v{d+1}, 1, v{vpass}")
        A(f"v_lshl_add_u32 v{d}, v{d}, 1, v{d+1}")
        A(f"v_and_b32 v{d+1}, {shh}, v{vpass}")
        A(f"v_lshl_add_u32 v{d}, v{d}, 1, v{d+1}")
        A(f"v_lshl_add_u32 v{d}, v{d}, 1, v{ve}")
        A(f"v_lshlrev_b32 v{d}, 7, v{d}")
    A(f"s_cmp_ge_u32 s{sW}, 4")
    A("s_cbranch_scc1 k2_aux")
    A(f"s_lshr_b32 s{sHD}, s{sJ}, 4")
    A(f"s_lshl_b32 s{sHD}, s{sHD}, 3")
    A(f"s_add_u32 s{sHD}, s{sHD}, s{sXC}")
    A(f"s_and_b32 s{sQB}, s{sJ}, 15")
    A(f"s_cmp_eq_u32 s{sW}, 0")
    A(f"s_cselect_b32 s{sCNT}, {N0}, {N1}")
    A(f"s_mul_i32 s{sT}, s{sW}, {N1}")
    A(f"s_sub_u32 s{sT}, s{sT}, {N1-N0}")
    A(f"s_max_i32 s{sT}, s{sT}, 0")
    A(f"s_lshl_b32 s{sT2}, s{sW}, 4")
    A(f"s_cmp_le_u32 s2, 224")
    A(f"s_cselect_b32 s{sCNT}, s{sCNT}, 16")
    A(f"s_cselect_b32 s{sT}, s{sT}, s{sT2}")
    A(f"s_mul_i32 s{sK0}, s{sW}, 3")
    A(f"s_sub_u32 s{sLO}, s{sT}, s{sK0}")
    A(f"s_add_u32 s{sLO}, s{sLO}, 9")
    A(f"v_lshrrev_b32 v2, 1, v{vL}")
    A(f"s_sub_u32 s{sT2}, s{sCNT}, 1")
    A(f"v_min_u32 v2, s{sT2}, v2")
    A(f"v_add_u32 v3, s{sK0}, v2")
    A(f"v_add_u32 v4, s{sLO}, v2")
    A("v_cmp_gt_u32 vcc, 3, v2")
    A(f"s_lshr_b32 s{sT2}, s{sHD}, 2")
    A(f"s_and_b32 s{sI}, s{sT2}, 1")
    A("v_cndmask_b32 v3, v4, v3, vcc")
    A("v_lshrrev_b32 v4, 5, v3")
    A("v_bfe_u32 v5, v3, 1, 4")
    A("v_and_b32 v6, 1, v3")
    A(f"v_and_b32 v7, 1, v{vL}")
    A(f"v_lshl_add_u32 v7, v7, 2, s{sT2}")
    A("v_add_u32 v7, 4, v7")
    A(f"v_cmp_lt_u32 vcc, 33, v{vL}")
    A(f"s_lshr_b32 s{sKO}, s{sW}, 1")
    A(f"s_xor_b32 s{sKO}, s{sKO}, s{sI}")
    A(f"s_and_b32 s{sVO}, s{sW}, 1")
    A(f"v_mov_b32 v8, s{sKO}")
    A(f"v_mov_b32 v9, s{sQB}")
    A(f"v_mov_b32 v10, s{sVO}")
    A(f"v_mov_b32 v11, s{sT2}")
    for k in range(4): A(f"v_cndmask_b32 v{4+k}, v{4+k}, v{8+k}, vcc")
    A(f"s_bfe_u32 s{sI}, s{sHD}, 0x10001")
    flag_index(2, 4, 5, 6, 7, f"s{sI}")
    A(f"s_lshl_b32 s{sT2}, s{sHD}, 6")
    A(f"s_add_u32 s{sK0}, s{sK0}, s{sT2}")
    A(f"s_lshl_b32 s{sK0}, s{sK0}, 11")
    A(f"s_add_u32 s{sK0}, s{sK0}, {WS_K}")
    A(f"s_add_u32 s{sLO2}, s{sLO}, s{sT2}")
    A(f"s_add_u32 s{sHI}, s{sLO2}, s{sCNT}")
    A(f"s_add_u32 s{sLO2}, s{sLO2}, 3")
    A(f"s_lshl_b32 s{sLO2}, s{sLO2}, 11")
    A(f"s_add_u32 s{sLO2}, s{sLO2}, {WS_K}")
    A(f"s_lshl_b32 s{sHI}, s{sHI}, 11")
    A(f"s_add_u32 s{sHI}, s{sHI}, {WS_K}")
    A(f"s_lshl_b32 s{sT}, s{sQB}, 2")
    A(f"s_add_u32 s{sT}, s{sT}, s{sT2}")
    for s in range(4):
        A(f"s_add_u32 s{sQ+s}, s{sW}, {s+1}")
        A(f"s_and_b32 s{sQ+s}, s{sQ+s}, 3")
        A(f"s_add_u32 s{sT2}, s{sQ+s}, s{sT}")
        A(f"s_lshl_b32 s{sQ+4+s}, s{sT2}, 11")
    A(f"s_mov_b32 s{sKO}, s{sK0}")
    A(f"s_add_u32 s{sVO}, s{sKO}, {WS_V - WS_K}")
    ST.at(12)
    A(f"s_mov_b32 s{sI}, {SPIN}")
    A(f"s_mov_b32 s{sT}, {WS_F1}")
    A("s_mov_b32 exec_lo, 0x3f")
    A("s_mov_b32 exec_hi, 4")
    if os.environ.get("NOPOLL"): A("s_branch k2_pa_done")
    if int(os.environ.get("PD", 10)): A(f"s_sleep {os.environ.get('PD', 10)}")
    A("k2_pa:")
    A(f"buffer_load_dwordx2 v[4:5], v2, {sr(sWS,4)}, s{sT} offen sc1")
    A("s_waitcnt vmcnt(0)")
    A("v_cmp_ne_u64 vcc, s[6:7], v[4:5]")
    A("s_nop 1")
    A("s_and_b64 exec, exec, vcc")
    A("s_cbranch_scc0 k2_pa_done")
    A(f"s_sub_u32 s{sI}, s{sI}, 1")
    A(f"s_sleep {os.environ.get('PSL', 1)}")
    A(f"s_cmp_gt_i32 s{sI}, 0")
    A("s_cbranch_scc1 k2_pa")
    A("k2_pa_done:")
    A("s_mov_b64 exec, -1")
    ST.at(13)
    def ldk(st, t): return f"buffer_load_dwordx4 {vr(KV+16*st+4*t,4)}, v{vO16}, {sr(sWS,4)}, s{sKO} offen offset:{1024*t} sc1"
    def ldv(st, t): return f"buffer_load_dwordx4 {vr(KV+16*st+8+4*t,4)}, v{vO16}, {sr(sWS,4)}, s{sVO} offen offset:{1024*t} sc1"
    def ldq(s, t): return f"buffer_load_dwordx4 {vr(Q+8*s+4*t,4)}, v{vO16}, {sr(sWS,4)}, s{sQ+4+s} offen offset:{1024*t}"
    adv = [f"s_add_u32 s{sKO}, s{sKO}, 2048", f"s_cmp_ge_u32 s{sKO}, s{sHI}", f"s_cselect_b32 s{sKO}, s{sLO2}, s{sKO}"]
    setv = f"s_add_u32 s{sVO}, s{sKO}, {WS_V - WS_K}"
    A(f"s_lshl_b32 s{sT}, s{sW}, 11")
    A(f"s_add_u32 m0, s{sT}, {LDS_Q}")
    A(ldk(0, 0))
    A(f"buffer_load_dwordx4 v{vO16}, {sr(sWS,4)}, s{sQ+7} offen sc1 lds")
    A(f"buffer_load_dwordx4 v{vO16}, {sr(sWS,4)}, s{sQ+7} offen offset:1024 sc1 lds")
    A(ldk(0, 1))
    for r in range(64): A(f"v_mov_b32 v{O+r}, 0") if r not in (2,) else None
    for x in [ldv(0, 0), ldv(0, 1)]: A(x)
    A(f"s_mov_b32 s{sPASS}, 0")
    A(f"s_mov_b32 s{sOK}, 0")
    A("s_branch k2_first")
    A("k2_pass:")
    A(f"s_mov_b32 s{sKO}, s{sK0}")
    A(setv)
    for x in [ldk(0, 0), ldk(0, 1), ldv(0, 0), ldv(0, 1)]: A(x)
    A("s_waitcnt vmcnt(0)")
    A("k2_first:")
    for x in adv[:1] + [setv, ldk(1, 0), ldk(1, 1), ldv(1, 0), ldv(1, 1)] + adv[:1] + [setv, ldk(2, 0), ldk(2, 1), ldv(2, 0), ldv(2, 1)]: A(x)
    A(f"s_sub_u32 s{sT}, s{sCNT}, 3")
    A(f"s_mul_i32 s{sT}, s{sT}, s{sQB}")
    A(f"s_lshr_b32 s{sT}, s{sT}, 4")
    A(f"s_lshl_b32 s{sT}, s{sT}, 11")
    A(f"s_add_u32 s{sKO}, s{sLO2}, s{sT}")
    A(f"s_cmp_lg_u32 s{sPASS}, 0")
    A("s_cbranch_scc1 k2_nobar")
    A(f"v_mov_b32 v{vT+12}, v2")
    A(f"s_mov_b32 s{sT}, {WS_F1}")
    A(f"buffer_load_dwordx2 {vr(vT+10,2)}, v2, {sr(sWS,4)}, s{sT} offen sc1")
    A("v_mov_b32 v2, 0")
    A(f"v_mov_b32 v{vIDX}, 0xdddddddd")
    for s_ in range(4):
        A(f"s_lshl_b32 s{sT}, s{sQ+s_}, 11")
        A(f"s_add_u32 s{sT}, s{sT}, {LDS_Q}")
        A(f"v_add_u32 v{vT+2+s_}, s{sT}, v{vO16}")
    A("s_waitcnt vmcnt(12)")
    A("s_barrier")
    for s_ in range(4):
        for t in range(2): A(f"ds_read_b128 {vr(Q+8*s_+4*t,4)}, v{vT+2+s_} offset:{1024*t}")
    A("s_branch k2_go")
    A("k2_nobar:")
    A("s_waitcnt vmcnt(0)")
    A(f"v_mov_b32 v{vT+10}, s6")
    A(f"v_mov_b32 v{vT+11}, s7")
    for r in range(64): A(f"v_mov_b32 v{O+r}, 0")
    A("k2_go:")
    for s in range(3):
        A(f"s_mul_i32 s{sT}, s{sQ+s}, 12288")
        A(f"s_add_u32 s{sT}, s{sT}, {RED}")
        A(f"v_add_u32 v{vT+s}, s{sT}, v{vO16}")
    A(f"s_mov_b32 s{sI}, s{sCNT}")
    def qk(q, st, half):
        c = "0" if half == 0 else vr(S+16*q,16)
        return f"v_mfma_f32_32x32x16_bf16 {vr(S+16*q,16)}, {vr(KV+16*st+4*half,4)}, {vr(Q+8*q+4*half,4)}, {c}"
    def pv(q, st, half):
        return f"v_smfmac_f32_32x32x32_bf16 {vr(O+16*q,16)}, {vr(KV+16*st+8+4*half,4)}, {vr(S+16*q+8*half,8)}, v{vIDX}"
    def tile(st, first, last=False):
        nxt, prv = (st + 1) % 3, (st + 2) % 3
        for q in range(4):
            e = [f"v_exp_f32 v{S+16*q+r}, v{S+16*q+r}" for r in range(16)]
            qn, stn = (q + 1, st) if q < 3 else (0, nxt)
            qp, stp = (q - 1, st) if q > 0 else (3, prv)
            aft = {0: [], 1: [], 2: [], 3: []}
            if q == 0: aft[2] = [ldk(prv, 0)]; aft[3] = [setv]
            if q == 1: aft[1] = ["s_waitcnt vmcnt(5)"]; aft[2] = [ldk(prv, 1)]; aft[3] = adv[0:2]
            if q == 2: aft[0] = [adv[2]]; aft[2] = [ldv(prv, 0)]; aft[3] = [f"s_sub_u32 s{sI}, s{sI}, 1", "s_waitcnt vmcnt(5)"]
            if q == 3: aft[2] = [ldv(prv, 1)]; aft[3] = [f"s_cmp_eq_u32 s{sI}, 1"]
            ms = [qk(qn, stn, 0), qk(qn, stn, 1), pv(qp, stp, 0), pv(qp, stp, 1)]
            if first and q == 0:
                A("s_waitcnt lgkmcnt(0)")
                ms[2] = ms[3] = None
            if first:
                aft = {0: [], 1: [], 2: [], 3: []}
                if q == 1: aft[1] = ["s_waitcnt vmcnt(9)"]
                if q == 2: aft[3] = [f"s_sub_u32 s{sI}, s{sI}, 1", "s_waitcnt vmcnt(7)"]
                if q == 3: aft[2] = ["s_waitcnt vmcnt(0)"]; aft[3] = [f"v_cmp_eq_u64 vcc, s[6:7], {vr(vT+10,2)}"]
            if last:
                wr = lambda s_, g: f"ds_write_b128 v{vT+s_}, {vr(O+16*s_+4*g,4)} offset:{4096*s_+1024*g}"
                aft = {0: [], 1: [], 2: [], 3: []}
                if q == 1: aft[1] = ["s_waitcnt vmcnt(4)"]
                if q == 2: aft[2] = [wr(0, 0)]; aft[3] = [wr(0, 1)]
                if q == 3:
                    ms[0] = ms[1] = None
                    aft[0] = [wr(0, 2)]; aft[1] = [wr(0, 3)]; aft[2] = [wr(1, 0)]; aft[3] = [wr(1, 1)]
            for k in range(4):
                if ms[k]: A(ms[k])
                for y in aft[k]: A(y)
                for x in e[4*k:4*k+4]: A(x)
    ST.at(0)
    A("s_waitcnt vmcnt(11) lgkmcnt(6)")
    ST.at(1)
    A(qk(0, 0, 0)); A(qk(0, 0, 1))
    A("s_nop 9")
    tile(0, True)
    A("s_cmp_lg_u64 vcc, -1")
    if not os.environ.get("NOPOLL"): A("s_cbranch_scc1 k2_pb0")
    loop_start = A.mark()
    A("k2_loop:")
    if DIAG:
        A("s_waitcnt lgkmcnt(0)")
        for i in (11,): A(f"s_mov_b32 s{70+2*i}, s{68+2*i}")
        ST.at(10)
    for st in (1, 2, 0):
        tile(st, False)
        A(f"s_cbranch_scc1 k2_x{(st + 1) % 3}" if st != 0 else "s_cbranch_scc0 k2_loop")
    loop_end = A.mark()
    for st in (1, 2, 0):
        A(f"k2_x{st}:")
        tile(st, False, True)
        A(f"ds_write_b128 v{vT+1}, {vr(O+16+8,4)} offset:{4096+2048}")
        A(pv(3, st, 0))
        A(f"ds_write_b128 v{vT+1}, {vr(O+16+12,4)} offset:{4096+3072}")
        A(pv(3, st, 1))
        if st != 0: A("s_branch k2_red")
    A("k2_red:")
    ST.at(2)
    A(f"s_lshl_b32 s{sT2}, s{sQB}, 2")
    A(f"s_add_u32 s{sT2}, s{sT2}, s{sW}")
    for g in range(4): A(f"ds_write_b128 v{vT+2}, {vr(O+32+4*g,4)} offset:{8192+1024*g}")
    A(f"s_mul_i32 s{sT}, s{sW}, 12288")
    A(f"s_add_u32 s{sT}, s{sT}, {RED}")
    A(f"v_add_u32 v{vT+1}, s{sT}, v{vO16}")
    A(f"s_lshl_b32 s{sT}, s{sW}, 2")
    A(f"s_add_u32 s{sT}, s{sT}, {K2_LDS-128}")
    A(f"v_mov_b32 v{vT+14}, s{sT}")
    A(f"s_lshl_b32 s{sT2}, s{sT2}, 4")
    A(f"s_add_u32 s{sT2}, s{sT2}, s{sHD}")
    A(f"s_lshl_b32 s{sKO}, s{sT2}, 11")
    A(f"s_add_u32 s{sKO}, s{sKO}, {WS_O}")
    A(f"s_lshl_b32 s{sVO}, s{sT2}, 7")
    A(f"s_add_u32 s{sVO}, s{sVO}, {WS_FO}")
    A("s_waitcnt vmcnt(0) lgkmcnt(0)")
    ST.at(3)
    A("s_barrier")
    ST.at(4)
    for g in (3, 0, 1, 2):
        for s in range(3):
            A(f"ds_read_b128 {vr(S+16*s+4*g,4)}, v{vT+1} offset:{4096*s+1024*g}")
    A(f"v_cmp_lt_u32 s[38:39], 31, v{vL}")
    R = O + 48
    def addg(g):
        for r in range(4*g, 4*g+4): A(f"v_add_f32 v{S+r}, v{S+r}, v{S+16+r}")
        for r in range(4*g, 4*g+4): A(f"v_add_f32 v{R+r}, v{R+r}, v{S+32+r}")
        for r in range(4*g, 4*g+4): A(f"v_add_f32 v{R+r}, v{R+r}, v{S+r}")
    A("s_waitcnt lgkmcnt(9)")
    addg(3)
    A(f"v_mov_b32 v{vT+4}, v{R+12}")
    A(f"v_mov_b32 v{vT+5}, v{R+12}")
    A("s_waitcnt lgkmcnt(6)")
    A(f"v_permlane32_swap_b32 v{vT+4}, v{vT+5}")
    A(f"v_rcp_f32 v{vT+6}, v{vT+5}")
    addg(0)
    A("s_waitcnt lgkmcnt(3)")
    addg(1)
    A("s_waitcnt lgkmcnt(0)")
    addg(2)
    A(f"s_cmp_lg_u32 s{sOK}, 0")
    A(f"s_mov_b32 s{sPUB}, 0")
    A("s_cbranch_scc1 k2_apart")
    for t in range(2):
        for r in range(8): A(f"v_mul_f32 v{S+8*t+r}, v{R+8*t+r}, v{vT+6}")
        for r in range(4): A(f"v_cvt_pk_bf16_f32 v{S+16+4*t+r}, v{S+8*t+2*r}, v{S+8*t+2*r+1}")
        if t == 1:
            A(f"v_cndmask_b32 v{S+22}, v{S+22}, 0, s[38:39]")
            A(f"v_cndmask_b32 v{S+23}, v{S+23}, 0, s[38:39]")
        A(f"buffer_store_dwordx4 {vr(S+16+4*t,4)}, v{vO16}, {sr(sWS,4)}, s{sKO} offen offset:{1024*t} sc1")
    A(f"v_add_f32 v{vT+7}, abs(v{R}), abs(v{R+1})")
    for r in range(2, 16): A(f"v_add_f32 v{vT+7}, v{vT+7}, abs(v{R+r})")
    A(f"v_cmp_nle_f32 vcc, {hex(f2u(2.0**-60))}, v{vT+5}")
    A(f"s_mov_b64 s[36:37], vcc")
    A(f"v_cmp_nge_f32 vcc, {hex(f2u(2.0**60))}, v{vT+5}")
    A(f"s_or_b64 s[36:37], s[36:37], vcc")
    A(f"v_cmp_nge_f32 vcc, {hex(f2u(2.0**120))}, v{vT+7}")
    A(f"s_or_b64 s[36:37], s[36:37], vcc")
    A(f"s_cselect_b32 s{sOK}, 0, 1")
    A(f"s_or_b32 s{sOK}, s{sOK}, s{sPASS}")
    A(f"s_mov_b32 s{sPUB}, s{sOK}" if not os.environ.get("NOPOLL") else f"s_mov_b32 s{sPUB}, 1")
    A("k2_apart:")
    A("s_barrier")
    def publish(lab, younger=0):
        A(f"s_cmp_eq_u32 s{sPUB}, 0")
        A(f"v_mov_b32 v{vT+4}, 0")
        A(f"s_waitcnt vmcnt({younger})")
        A(f"s_cbranch_scc1 {lab}")
        A("s_mov_b64 exec, 1")
        A(f"buffer_store_dwordx2 {vr(vTAG,2)}, v{vT+4}, {sr(sWS,4)}, s{sVO} offen sc1")
        A("s_mov_b64 exec, -1")
        A(f"{lab}:")
    AA, AB, OF, LB = 0, 96, 160, 32
    vG3, vZ3, vF3, vW3, vOA, vX = 228, 229, 230, 232, 234, 235
    sKH, sB3, sB, sOB, sOA = 54, 55, 56, 61, 62
    A(f"s_lshr_b32 s{sKH}, s{sW}, 1")
    A(f"s_and_b32 s{sB3}, s{sW}, 1")
    A(f"v_lshrrev_b32 v{vT+10}, 5, v{vL}")
    A(f"v_bfe_u32 v{vT+11}, v{vL}, 2, 2")
    A(f"v_bfe_u32 v{vT+12}, v{vL}, 4, 1")
    A(f"v_lshlrev_b32 v{vT+12}, 5, v{vT+12}")
    A(f"v_and_b32 v{vT+13}, 3, v{vL}")
    A(f"v_lshl_add_u32 v{vT+12}, v{vT+13}, 3, v{vT+12}")
    A(f"v_lshl_add_u32 v{vT+12}, v{vT+11}, 7, v{vT+12}")
    A(f"v_lshrrev_b32 v{vT+11}, 1, v{vT+11}")
    A(f"v_lshl_add_u32 v{vT+12}, v{vT+11}, 6, v{vT+12}")
    A(f"s_lshl_b32 s{sT}, s{sB3}, 6")
    A(f"v_xor_b32 v{vZ3}, s{sT}, v{vT+12}")
    A(f"v_lshl_add_u32 v{vZ3}, v{vT+10}, 10, v{vZ3}")
    A(f"s_mul_i32 s{sT2}, s{sKH}, {14*2048}")
    A(f"s_add_u32 s{sT}, s{sT2}, {LZ}")
    A(f"v_add_u32 v{vZ3}, s{sT}, v{vZ3}")
    A(f"s_lshl_b32 s{sT}, s{sKH}, 10")
    A(f"s_add_u32 s{sT}, s{sT}, s{sT2}")
    A(f"v_add_u32 v{vF3}, s{sT}, v{vO16}")
    A(f"v_xor_b32 v{vF3+1}, 1024, v{vF3}")
    A(f"s_lshl_b32 s{sT}, s{sMT}, 1")
    A(f"s_add_u32 s{sB}, s{sT}, s{sB3}")
    A(f"s_mul_i32 s{sT}, s{sB}, {YB}")
    A(f"s_add_u32 s{sT}, s{sT}, {WS_Y + 7*4096 + 1024}")
    A(f"buffer_load_dword v{vG3}, v{vT+9}, {sr(sWS,4)}, s{sT} offen sc1")
    A(f"s_lshl_b32 s{sT}, s{sKH}, 6")
    A(f"v_xor_b32 v{vW3}, s{sT}, v{vT+12}")
    A(f"v_lshl_add_u32 v{vW3}, v{vT+10}, 9, v{vW3}")
    A(f"s_mul_i32 s{sT}, s{sKH}, {224*128}")
    A(f"s_add_u32 s{sT}, s{sT}, {LW}")
    A(f"v_add_u32 v{vW3}, s{sT}, v{vW3}")
    A(f"v_xor_b32 v{vW3+1}, 64, v{vW3}")
    A(f"s_lshl_b32 s{sT}, s{sW}, 12")
    A(f"v_add_u32 v{vX}, s{sT}, v{vO16}")
    A(f"v_xor_b32 v{vX+1}, 8192, v{vX}")
    A(f"s_lshl_b32 s{sT}, s{sB}, 1")
    A(f"s_add_u32 s{sT}, s{sT}, s{sKH}")
    A(f"s_lshl_b32 s{sT}, s{sT}, 14")
    A(f"s_add_u32 s{sOB}, s{sT}, {WS_O}")
    A(f"v_lshrrev_b32 v{vT+3}, 2, v{vT+9}")
    A(f"v_mul_u32_u24 v{vOA}, 57344, v{vT+3}")
    A(f"v_lshl_add_u32 v{vOA}, v{vT+10}, 4, v{vOA}")
    A(f"s_mul_i32 s{sOA}, s{sB}, 896")
    A(f"s_lshl_b32 s{sT}, s{sNT}, 7")
    A(f"s_add_u32 s{sOA}, s{sOA}, s{sT}")
    A(f"s_lshl_b32 s{sT}, s{sKH}, 6")
    A(f"s_add_u32 s{sOA}, s{sOA}, s{sT}")
    A(f"s_mov_b32 s{sOUT+2}, 1835008")
    A(f"s_mov_b32 s{sOUT+3}, 0x20000")
    publish("k2_np0")
    A("k2_pub:")
    ST.at(5)
    A(f"v_mov_b32 v{vT+5}, s{sOK}")
    A(f"ds_write_b32 v{vT+14}, v{vT+5}")
    A("k2_chk:")
    A(f"v_mov_b32 v{vT+8}, {K2_LDS-128}")
    A("s_waitcnt lgkmcnt(0)")
    A("s_barrier")
    A(f"ds_read_b128 {vr(vT+4,4)}, v{vT+8}")
    A("s_waitcnt lgkmcnt(0)")
    A("s_barrier")
    A(f"v_and_b32 v{vT+4}, v{vT+4}, v{vT+5}")
    A(f"v_and_b32 v{vT+6}, v{vT+6}, v{vT+7}")
    A(f"v_and_b32 v{vT+4}, v{vT+4}, v{vT+6}")
    A(f"v_readfirstlane_b32 s{sT}, v{vT+4}")
    A(f"s_cmp_eq_u32 s{sT}, 0")
    if not os.environ.get("NOPOLL"): A("s_cbranch_scc1 k2_fail")
    A("k2_p3:")
    A("s_cmp_ge_u32 s2, 224")
    A("s_cbranch_scc1 k2_dump" if DIAG else "s_cbranch_scc1 k2_end")
    A(f"s_cmp_ge_u32 s{sW}, 4")
    A("s_cbranch_scc1 k2_auxp3")
    steps = []
    HO = [3, 4, 5, 6, 7, 0, 1, 2]
    OFr = lambda m: (OF + 4*m) if m < 12 else (128 + 4*(m-12))
    for n in range(30):
        buf = LB + 12 * (n % 4)
        if n < 14:
            rd = [f"ds_read_b64_tr_b16 {vr(buf+2*x,2)}, v{vZ3} offset:{2048*n+512*x}" for x in range(2)]
            rd += [f"ds_read_b128 {vr(buf+4+4*k,4)}, v{vF3+k} offset:{2048*n}" for k in range(2)]
            mm = [f"v_mfma_f32_32x32x16_bf16 {vr(AA+16*k,16)}, {vr(buf+4+4*k,4)}, {vr(buf,4)}, {'0' if n == 0 else vr(AA+16*k,16)}" for k in range(2)]
        else:
            m = n - 14; hd, t = HO[m >> 1], m & 1
            rd = [f"ds_read_b64_tr_b16 {vr(buf+4+4*k+2*x,2)}, v{vW3+k} offset:{(28*hd+16*t)*128+1024*x}" for k in range(2) for x in range(2)]
            ks = (1, 0)
            mm = [f"v_mfma_f32_32x32x16_bf16 {vr(AB+16*k,16)}, {vr(buf+4+4*k,4)}, {vr(OFr(m),4)}, {'0' if m == 0 else vr(AB+16*k,16)}" for k in ks]
        steps.append((rd, mm))
    for x in steps[0][0] + steps[1][0] + steps[2][0]: A(x)
    A(f"v_mul_f32 v{vG3}, {hex(f2u(-math.log2(math.e)))}, v{vG3}")
    A(f"v_exp_f32 v{vG3}, v{vG3}")
    A("s_nop 0")
    A(f"v_add_f32 v{vG3}, 1.0, v{vG3}")
    A(f"v_rcp_f32 v{vG3}, v{vG3}")
    A("s_nop 0")
    A(f"v_sub_f32 v{vG3+10}, 1.0, v{vG3}")
    for n in range(14):
        if n == 0: ST.at(10)
        if n == 7: ST.at(11)
        A(f"s_waitcnt lgkmcnt({4 * min(2, 13 - n)})")
        rd = steps[n+3][0] if n + 3 < 14 else [None] * 4
        for k in range(2):
            A(steps[n][1][k])
            for x in rd[2*k:2*k+2]:
                if x: A(x)
    ST.at(6)
    A("s_barrier")
    ST.at(7)
    def old(m):
        hd = HO[m >> 1]
        if m % 2 == 0 and (m == 0 or hd % 2 == 0 or hd == 0): A(f"s_add_u32 s{sI}, s{sOB}, {4096*(hd>>1)}")
        A(f"buffer_load_dwordx4 {vr(OFr(m),4)}, v{vO16}, {sr(sWS,4)}, s{sI} offen offset:{2048*(hd&1)+1024*(m&1)} sc1")
    NO = int(os.environ.get("NO", 10))
    for m in range(NO): old(m)
    for x in steps[14][0] + steps[15][0] + steps[16][0]: A(x)
    LIN = os.environ.get("LIN", "1") == "1"
    if LIN:
        A(f"s_lshl_b32 s{sT}, s{sB3}, 12")
        A(f"s_add_u32 s{sT}, s{sT}, 16384")
        A(f"v_and_b32 v{vT}, 31, v{vL}")
        A(f"v_lshl_add_u32 v{vT+1}, s{sKH}, 2, v{vT+10}")
        A(f"v_and_b32 v{vT+5}, 7, v{vL}")
        A(f"v_xor_b32 v{vT+1}, v{vT+1}, v{vT+5}")
        A(f"v_lshlrev_b32 v{vT+1}, 4, v{vT+1}")
        A(f"v_lshl_add_u32 v{vT+2}, v{vT}, 7, v{vT+1}")
        A(f"v_add_u32 v{vT+2}, s{sT}, v{vT+2}")
        A(f"v_xor_b32 v{vT+3}, 32, v{vT+2}")
        A(f"v_lshrrev_b32 v{vT}, 3, v{vL}")
        A(f"v_xor_b32 v{vT+1}, v{vT}, v{vT+5}")
        A(f"v_lshlrev_b32 v{vT+1}, 4, v{vT+1}")
        A(f"v_lshl_add_u32 v{vT+4}, v{vT}, 7, v{vT+1}")
        A(f"s_lshl_b32 s{sT2}, s{sKH}, 11")
        A(f"s_add_u32 s{sT}, s{sT}, s{sT2}")
        A(f"v_add_u32 v{vT+4}, s{sT}, v{vT+4}")
        A(f"v_mul_u32_u24 v{vOA}, 57344, v{vT}")
        A(f"v_lshl_add_u32 v{vOA}, v{vT+5}, 4, v{vOA}")
        A(f"s_mul_i32 s{sT}, s{sKH}, {16*57344 - 64}")
        A(f"s_add_u32 s{sOA}, s{sOA}, s{sT}")
    for r in range(32): A(f"v_mul_f32 v{AA+r}, v{vG3}, v{AA+r}")
    for n in range(14, 30):
        m = n - 14
        if NO + m < 16: old(NO + m)
        if m == 7: A("s_barrier")
        A(f"s_waitcnt vmcnt({min(NO + m + 1, 16) - m - 1}) lgkmcnt({4 * min(2, 29 - n)})")
        if m == 0: ST.at(8)
        rd = steps[n+3][0] if n + 3 < 30 else [None] * 4
        for k in range(2):
            if m < 12 or k == 0: A(steps[n][1][k])
            for x in rd[2*k:2*k+2]:
                if x: A(x)
    ST.at(9)
    A(steps[26][1][1]); A(steps[27][1][1])
    A("s_nop 8")
    for g in range(4):
        for r in range(4*g, 4*g+4): A(f"v_fma_f32 v{AB+16+r}, v{vG3+10}, v{AB+16+r}, v{AA+16+r}")
        if g < 2: A(steps[28 + g][1][1])
        A(f"ds_write_b128 v{vX}, {vr(AB+16+4*g,4)} offset:{1024*g}")
    A("s_waitcnt lgkmcnt(0)")
    A("s_barrier")
    for g in range(4): A(f"ds_read_b128 {vr(AA+16+4*g,4)}, v{vX+1} offset:{1024*g}")
    for r in range(16): A(f"v_fma_f32 v{AB+r}, v{vG3+10}, v{AB+r}, v{AA+r}")
    for g in range(4):
        A(f"s_waitcnt lgkmcnt({3-g})")
        for r in range(4*g, 4*g+4): A(f"v_add_f32 v{AB+r}, v{AB+r}, v{AA+16+r}")
        for r in range(2*g, 2*g+2): A(f"v_cvt_pk_bf16_f32 v{LB+r}, v{AB+2*r}, v{AB+2*r+1}")
        if g & 1:
            t = g >> 1
            A(f"v_permlane32_swap_b32 v{LB+4*t}, v{LB+4*t+2}")
            A(f"v_permlane32_swap_b32 v{LB+4*t+1}, v{LB+4*t+3}")
            if LIN: A(f"ds_write_b128 v{vT+2+t}, {vr(LB+4*t,4)}")
            else: A(f"buffer_store_dwordx4 {vr(LB+4*t,4)}, v{vOA}, {sr(sOUT,4)}, s{sOA} offen offset:{32*t} {OUTF}")
    if LIN:
        A("s_waitcnt lgkmcnt(0)")
        A("s_barrier")
        for k in range(2): A(f"ds_read_b128 {vr(LB+8+4*k,4)}, v{vT+4} offset:{1024*k}")
        A(f"s_add_u32 s{sT}, s{sOA}, {8*57344}")
        for k in range(2):
            A(f"s_waitcnt lgkmcnt({1-k})")
            A(f"buffer_store_dwordx4 {vr(LB+8+4*k,4)}, v{vOA}, {sr(sOUT,4)}, s{sT if k else sOA} offen {OUTF}")
    A("s_branch k2_dump" if DIAG else "s_endpgm")

    A("k2_fail:")
    A(f"s_cmp_ge_u32 s{sW}, 4")
    A("s_cbranch_scc1 k2_auxfb")
    A("s_branch k2_fb")
    A("k2_pb0:")
    A(f"s_mov_b32 s{sT2}, {SPIN}")
    A(f"s_mov_b32 s{sT}, {WS_F1}")
    A("k2_pb:")
    A(f"buffer_load_dwordx2 {vr(vT+10,2)}, v{vT+12}, {sr(sWS,4)}, s{sT} offen sc1")
    A("s_waitcnt vmcnt(0)")
    A(f"v_cmp_eq_u64 vcc, s[6:7], {vr(vT+10,2)}")
    A("s_nop 1")
    A("s_cmp_eq_u64 vcc, -1")
    A("s_cbranch_scc1 k2_loop")
    A(f"s_sub_u32 s{sT2}, s{sT2}, 1")
    A("s_sleep 2")
    A(f"s_cmp_lg_u32 s{sT2}, 0")
    A("s_cbranch_scc1 k2_pb")
    A("s_branch k2_loop")
    A("k2_fb:")
    A(f"s_mov_b32 s{sPASS}, 1")
    A("s_waitcnt vmcnt(0)")
    A("s_barrier")
    for q in range(4): A(f"v_mov_b32 v{O+q}, 0xff800000")
    A(f"s_mov_b32 s{sKO}, s{sK0}")
    A(f"s_add_u32 s{sT2}, s{sK0}, {3*2048}")
    A(f"s_mov_b32 s{sI}, s{sCNT}")
    A("k2_maxloop:")
    A(ldk(0, 0)); A(ldk(0, 1))
    A("s_waitcnt vmcnt(0)")
    for q in range(4): A(qk(q, 0, 0)); A(qk(q, 0, 1))
    A("s_nop 15")
    for q in range(4):
        for r in range(8): A(f"v_max3_f32 v{O+q}, v{O+q}, v{S+16*q+2*r}, v{S+16*q+2*r+1}")
    A(f"s_add_u32 s{sKO}, s{sKO}, 2048")
    A(f"s_cmp_eq_u32 s{sKO}, s{sT2}")
    A(f"s_cselect_b32 s{sKO}, s{sLO2}, s{sKO}")
    A(f"s_cselect_b32 s{sT2}, 0, s{sT2}")
    A(f"s_sub_u32 s{sI}, s{sI}, 1")
    A(f"s_cmp_lg_u32 s{sI}, 0")
    A("s_cbranch_scc1 k2_maxloop")
    A(f"s_lshl_b32 s{sT}, s{sW}, 8")
    A(f"s_add_u32 s{sT}, s{sT}, {RED}")
    A(f"v_lshl_add_u32 v{vT}, v{vL}, 2, s{sT}")
    A(f"v_and_b32 v{vT+1}, 31, v{vL}")
    A(f"v_lshlrev_b32 v{vT+1}, 2, v{vT+1}")
    A(f"v_add_u32 v{vT+1}, {RED}, v{vT+1}")
    for s in range(4):
        A(f"s_lshl_b32 s{sT}, s{sQ+s}, 10")
        A(f"v_add_u32 v{vT+2}, s{sT}, v{vT}")
        A(f"v_add_u32 v{vT+4+s}, s{sT}, v{vT+1}")
        A(f"ds_write_b32 v{vT+2}, v{O+s}")
    A("s_waitcnt lgkmcnt(0)")
    A("s_barrier")
    for s in range(4):
        for k in range(8): A(f"ds_read_b32 v{S+8*s+k}, v{vT+4+s} offset:{128*k}")
        A("s_waitcnt lgkmcnt(0)")
    A("s_barrier")
    A(f"v_cmp_lt_u32 vcc, 31, v{vL}")
    for q in range(4):
        m = S + 8 * q
        A(f"v_max3_f32 v{m}, v{m}, v{m+1}, v{m+2}")
        A(f"v_max3_f32 v{m}, v{m}, v{m+3}, v{m+4}")
        A(f"v_max3_f32 v{m}, v{m}, v{m+5}, v{m+6}")
        A(f"v_max_f32 v{m}, v{m}, v{m+7}")
        A(f"v_xor_b32 v{m}, 0x80000000, v{m}")
        A(f"v_and_b32 v{m+1}, 0xffff0000, v{m}")
        A(f"v_sub_f32 v{m+2}, v{m}, v{m+1}")
        A(f"v_and_b32 v{m+3}, 0xffff0000, v{m+2}")
        A(f"v_sub_f32 v{m+4}, v{m+2}, v{m+3}")
        A(f"v_lshrrev_b32 v{m+1}, 16, v{m+1}")
        A(f"v_or_b32 v{m+1}, v{m+1}, v{m+3}")
        A(f"v_lshrrev_b32 v{m+4}, 16, v{m+4}")
        A(f"v_cndmask_b32 v{Q+8*q+6}, v{Q+8*q+6}, v{m+1}, vcc")
        A(f"v_cndmask_b32 v{Q+8*q+7}, v{Q+8*q+7}, v{m+4}, vcc")
    A("s_branch k2_pass")


    A("k2_aux:")
    sCOL, sTS = 27, 40
    A(f"s_getpc_b64 {sr(sTS,2)}")
    A(f"s_add_u32 s{sTS}, s{sTS}, tab_small@rel32@lo+4")
    A(f"s_addc_u32 s{sTS+1}, s{sTS+1}, tab_small@rel32@hi+12")
    A(f"s_mov_b32 s{sTS+2}, {TS_BYTES}")
    A(f"s_mov_b32 s{sTS+3}, 0x20000")
    A(f"s_mov_b32 s{sX+2}, 401408")
    A(f"s_mov_b32 s{sX+3}, 0x20000")
    A(f"s_mul_i32 s{sCOL}, s{sXC}, 28")
    A(f"s_add_u32 s{sCOL}, s{sCOL}, s{sJ}")
    A(f"s_cmp_eq_u32 s2, 224")
    A(f"s_cselect_b32 s{sCOL}, 224, s{sCOL}")
    C_ = lambda kind, mt, u: 48 * mt + 16 * kind + 4 * u
    X = 96
    YF = 160
    U0 = 192
    WT = 212
    TM = 244
    vG = 210
    A(f"v_lshrrev_b32 v{TM}, 2, v{vL}")
    A(f"v_mul_u32_u24 v{vG+1}, {WP}, v{TM}")
    A(f"v_mul_u32_u24 v{TM}, {YB}, v{TM}")
    A(f"v_and_b32 v{TM+1}, 3, v{vL}")
    A(f"v_lshl_add_u32 v{vG}, v{TM+1}, 4, v{TM}")
    A(f"v_lshl_add_u32 v{vG+1}, v{TM+1}, 4, v{vG+1}")
    A(f"s_lshr_b32 s{sT}, s{sCOL}, 5")
    A(f"s_lshl_b32 s{sT}, s{sT}, 12")
    A(f"s_and_b32 s{sT2}, s{sCOL}, 31")
    A(f"s_lshl_b32 s{sT2}, s{sT2}, 6")
    A(f"s_add_u32 s{sT}, s{sT}, s{sT2}")
    A(f"s_lshl_b32 s{sKO}, s{sCOL}, 6")
    A(f"v_lshrrev_b32 v{TM}, 5, v{vL}")
    A(f"v_bfe_u32 v{TM+1}, v{vL}, 2, 2")
    A(f"v_lshl_add_u32 v{TM}, v{TM}, 2, v{TM+1}")
    A(f"v_lshlrev_b32 v{TM}, 6, v{TM}")
    A(f"v_bfe_u32 v{TM+1}, v{vL}, 4, 1")
    A(f"v_lshl_add_u32 v{TM}, v{TM+1}, 5, v{TM}")
    A(f"v_and_b32 v{TM+1}, 3, v{vL}")
    A(f"v_lshl_add_u32 v{TM}, v{TM+1}, 3, v{TM}")
    A(f"v_add_u32 v{TM}, {LDS_Y}, v{TM}")
    A(f"s_cmp_eq_u32 s{sW}, 5")
    A("s_cbranch_scc1 k2_help")
    def cld(dst, off):
        A(f"s_mov_b32 s{sT2}, {off}")
        for f in range(4): A(f"buffer_load_dwordx4 {vr(dst+4*f,4)}, v{vO16}, {sr(sTS,4)}, s{sT2} offen offset:{1024*f}")
    LC = LDS_Y + 8192
    for mt in range(2):
        for kind in range(3): cld(C_(kind, mt, 0), TS_F64 + kind * 8192 + 4096 * mt)
    for f in range(22):
        if f % 4 == 0:
            A(f"s_mov_b32 m0, {LC + 1024*f}")
            A(f"s_mov_b32 s{sT2}, {TS_F32 + 1024*f}")
        A(f"buffer_load_dwordx4 v{vO16}, {sr(sTS,4)}, s{sT2} offen offset:{1024*(f%4)} lds")
    sFI = 44
    FE = os.environ.get("FE", "0")
    def fimg():
        A(f"s_mul_i32 s{sFI}, s{sNT}, {2*28672}")
        A(f"s_mov_b32 s{sFI+1}, 0")
        A("k2_fi:")
        A(f"s_lshl_b32 m0, s{sFI+1}, 1")
        A(f"s_add_u32 s{sT2}, s{sFI}, s{sFI+1}")
        A(f"buffer_load_dwordx4 v{vO16}, {sr(sTB,4)}, s{sT2} offen lds")
        A(f"s_add_u32 s{sT2}, s{sT2}, {28672-1024}")
        A(f"buffer_load_dwordx4 v{vO16}, {sr(sTB,4)}, s{sT2} offen offset:1024 lds")
        A(f"s_add_u32 s{sFI+1}, s{sFI+1}, 1024")
        A(f"s_waitcnt vmcnt({os.environ.get('DF', 12)})")
        A(f"s_cmp_lt_u32 s{sFI+1}, 28672")
        A("s_cbranch_scc1 k2_fi")
    if FE == "1":
        A("s_cmp_ge_u32 s2, 224")
        A("s_cbranch_scc1 k2_nfi")
        fimg()
        A("k2_nfi:")
    A(f"s_lshr_b32 s{sI}, s{sCOL}, 6")
    A(f"s_add_u32 s{sI}, s{sI}, 12")
    A(f"s_and_b32 s{sVO}, s{sI}, 1")
    A(f"v_bfe_u32 v100, v{vL}, 1, 1")
    A(f"v_xor_b32 v100, s{sVO}, v100")
    A(f"v_lshrrev_b32 v101, 2, v{vL}")
    A(f"v_and_b32 v102, 1, v{vL}")
    A(f"v_mov_b32 v103, s{sI}")
    A(f"s_bfe_u32 s{sI}, s{sCOL}, 0x10005")
    flag_index(98, 100, 101, 102, 103, f"s{sI}")
    A(f"s_lshr_b32 s{sVO}, s{sCOL}, 6")
    A(f"s_lshl_b32 s{sVO}, s{sVO}, 10")
    A(f"s_add_u32 s{sVO}, s{sVO}, {WS_F1 + 512}")
    A(f"v_lshlrev_b32 v100, 12, v{vL}")
    A("s_waitcnt lgkmcnt(0)")
    A("s_barrier")
    A("s_cmp_gt_u32 s2, 224")
    A("s_cbranch_scc1 k2_auxb1")
    A(f"s_mov_b32 s{sI}, {SPIN}")
    A(f"s_mov_b32 s{sT2}, {WS_F1}")
    A("k2_py:")
    A(f"buffer_load_dwordx2 v[104:105], v98, {sr(sWS,4)}, s{sT2} offen sc1")
    A(f"buffer_load_dwordx2 v[106:107], v100, {sr(sWS,4)}, s{sVO} offen sc1")
    A(f"buffer_load_dwordx2 v[108:109], v100, {sr(sWS,4)}, s{sVO} offen offset:128 sc1")
    A("s_waitcnt vmcnt(0)")
    A("v_cmp_ne_u64 vcc, s[6:7], v[104:105]")
    A("v_cmp_ne_u64 s[36:37], s[6:7], v[106:107]")
    A("v_cmp_ne_u64 s[38:39], s[6:7], v[108:109]")
    A("s_nop 1")
    A("s_or_b64 vcc, vcc, s[36:37]")
    A("s_or_b64 vcc, vcc, s[38:39]")
    A("s_and_b64 exec, exec, vcc")
    A("s_cbranch_scc0 k2_py_done")
    A(f"s_sub_u32 s{sI}, s{sI}, 1")
    A("s_sleep 4")
    A(f"s_cmp_gt_i32 s{sI}, 0")
    A("s_cbranch_scc1 k2_py")
    A("k2_py_done:")
    A("s_mov_b64 exec, -1")
    ST.at(12)
    A("s_setprio 3")
    def ydma(n):
        A(f"s_mov_b32 m0, {LDS_Y + 1024*n}")
        A(f"s_add_u32 s{sT2}, s{sT}, {WS_Y + (n>>2)*2048 + (n&3)*16*YB}")
        A(f"buffer_load_dwordx4 v{vG}, {sr(sWS,4)}, s{sT2} offen sc1 lds")
    def wld(f):
        return [f"s_add_u32 s{sT2}, s{sKO}, {WS_W + f*16*WP}",
                f"buffer_load_dwordx4 {vr(WT+4*f,4)}, v{vG+1}, {sr(sWS,4)}, s{sT2} offen sc1"]
    for n in range(8): ydma(n)
    for f in range(8):
        for x in wld(f): A(x)
    ST.at(0)
    A("s_waitcnt vmcnt(8)")
    ST.at(1)
    for p in range(2):
        for u in range(4):
            A(f"ds_read_b64_tr_b16 {vr(YF+16*p+4*u,2)}, v{TM} offset:{4096*p+1024*u}")
            A(f"ds_read_b64_tr_b16 {vr(YF+16*p+4*u+2,2)}, v{TM} offset:{4096*p+1024*u+512}")
    A("s_waitcnt lgkmcnt(0)")
    Yr = lambda u: vr(YF+4*u,4)
    Yi = lambda u: vr(YF+16+4*u,4)
    mf = lambda d, a, b, first=False: f"v_mfma_f32_32x32x16_bf16 {vr(d,16)}, {a}, {b}, {'0' if first else vr(d,16)}"
    cf = lambda kind, mt, u: vr(C_(kind, mt, u), 4)
    def p3(mt):
        L = []
        for u in range(4):
            L += [mf(X+32*mt, cf(0, mt, u), Yr(u), u == 0), mf(X+32*mt+16, cf(0, mt, u), Yi(u), u == 0)]
        for u in range(4):
            L += [mf(X+32*mt, cf(1, mt, u), Yi(u)), mf(X+32*mt+16, cf(2, mt, u), Yr(u))]
        return L
    Ur = lambda u: (U0 + 4*u) if u < 2 else (YF + 4*u)
    Ui = lambda u: (U0 + 8 + 4*u) if u < 2 else (YF + 16 + 4*u)
    def cmul_pack(xr0, xi0, cr, ci, dr, di):
        L = []
        for i in range(4):
            L += [f"v_mul_f32 v{TM+8+i}, v{xr0+i}, v{cr(i)}", f"v_mul_f32 v{xr0+i}, v{xr0+i}, v{ci(i)}"]
        for i in range(4):
            L += [f"v_fma_f32 v{TM+8+i}, -v{xi0+i}, v{ci(i)}, v{TM+8+i}", f"v_fma_f32 v{xr0+i}, v{xi0+i}, v{cr(i)}, v{xr0+i}"]
        L += [f"v_cvt_pk_bf16_f32 v{dr}, v{TM+8}, v{TM+9}", f"v_cvt_pk_bf16_f32 v{dr+1}, v{TM+10}, v{TM+11}",
              f"v_cvt_pk_bf16_f32 v{di}, v{xr0}, v{xr0+1}", f"v_cvt_pk_bf16_f32 v{di+1}, v{xr0+2}, v{xr0+3}"]
        return L
    def wmul(mt):
        L = []
        for g in range(4):
            w = WT + 4 * (4 * mt + g)
            for i in range(4):
                op = "v_and_b32 v{}, 0xffff0000, v{}" if i & 1 else "v_lshlrev_b32 v{}, 16, v{}"
                L += [op.format(TM + i, w + (i >> 1)), op.format(TM + 4 + i, w + 2 + (i >> 1))]
            u = 2 * mt + (g >> 1)
            L += cmul_pack(X+32*mt+4*g, X+32*mt+16+4*g, lambda i: TM + i, lambda i: TM + 4 + i, Ur(u) + 2*(g&1), Ui(u) + 2*(g&1))
        return L
    def p4(nt, us):
        L = []
        for u in us:
            L += [mf(X+32*nt, vr(Ur(u),4), cf(0, nt, u), u == 0), mf(X+32*nt+16, vr(Ui(u),4), cf(0, nt, u), u == 0)]
        for u in us:
            L += [mf(X+32*nt, vr(Ui(u),4), cf(2, nt, u)), mf(X+32*nt+16, vr(Ur(u),4), cf(1, nt, u))]
        return L
    Tr = lambda nt: YF if nt == 0 else U0
    Ti = lambda nt: YF + 16 if nt == 0 else U0 + 8
    TW = lambda nt: 48 * nt
    F32 = WT
    def twid(nt):
        L = []
        for g in range(4):
            L += cmul_pack(X+32*nt+4*g, X+32*nt+16+4*g, lambda i: TW(nt) + 4*g + i, lambda i: TW(nt) + 16 + 4*g + i, Tr(nt) + 2*g, Ti(nt) + 2*g)
        return L
    def p5(nt):
        L = []
        for t in range(2):
            L += [mf(X+32*nt, vr(F32+4*t,4), vr(Tr(nt)+4*t,4), t == 0), mf(X+32*nt+16, vr(F32+4*t,4), vr(Ti(nt)+4*t,4), t == 0)]
        for t in range(2):
            L += [mf(X+32*nt, vr(F32+16+4*t,4), vr(Ti(nt)+4*t,4)), mf(X+32*nt+16, vr(F32+8+4*t,4), vr(Tr(nt)+4*t,4))]
        return L
    sZR, sZI = 29, 30
    def outp(nt):
        L = []
        for p in range(2):
            z = X + 32*nt + 16*p; P = TW(nt) + 8*p
            for r in range(8): L.append(f"v_cvt_pk_bf16_f32 v{P+r}, v{z+2*r}, v{z+2*r+1}")
            L.append("s_nop 1")
            for t in range(2):
                L += [f"v_permlane32_swap_b32 v{P+4*t}, v{P+4*t+2}", f"v_permlane32_swap_b32 v{P+4*t+1}, v{P+4*t+3}"]
            for t in range(2):
                L.append(f"ds_write_b128 v{vG}, {vr(P+4*t,4)} offset:{4096*p+2048*nt+32*t}")
        return L
    def outst():
        A("s_waitcnt lgkmcnt(0)")
        for k in range(8): A(f"ds_read_b128 {vr(X+4*k,4)}, v{vG+1} offset:{1024*k}")
        for k in range(8):
            A(f"s_waitcnt lgkmcnt({7-k})")
            A(f"buffer_store_dwordx4 {vr(X+4*k,4)}, v{vO16}, {sr(sWS,4)}, s{sZR+(k>>2)} offen offset:{1024*(k&3)} sc1")
    for x in p3(0): A(x)
    ST.at(2)
    A("s_waitcnt vmcnt(4)")
    A("s_nop 7")
    for x in merge(p3(1), wmul(0)): A(x)
    A("s_waitcnt vmcnt(0)")
    A("s_nop 7")
    for x in merge(p4(0, (0, 1)), wmul(1)): A(x)
    for x in p4(0, (2, 3)): A(x)
    ST.at(3)
    A(f"v_add_u32 v{vG+1}, {LDS_Y}, v{vO16}")
    def lcd(dst, off, n):
        for f in range(n): A(f"ds_read_b128 {vr(dst+4*f,4)}, v{vG+1} offset:{8192 + off - TS_F32 + 1024*f}")
    lcd(TW(0), TS_TW, 8); lcd(F32, TS_F32, 6)
    A(f"s_lshr_b32 s{sT}, s{sCOL}, 1")
    A(f"s_and_b32 s{sT2}, s{sCOL}, 1")
    A(f"s_mul_i32 s{sT2}, s{sT2}, 224")
    A(f"s_add_u32 s{sT}, s{sT}, s{sT2}")
    A(f"s_mul_i32 s{sT}, s{sT}, {ZP}")
    A(f"s_add_u32 s{sZR}, s{sT}, {WS_Z}")
    A(f"s_add_u32 s{sZI}, s{sZR}, {112*ZP}")
    A(f"s_cmp_eq_u32 s{sCOL}, 0")
    A(f"s_cselect_b32 s{sZI}, {WS_G + 0x4000}, s{sZI}")
    A(f"s_cmp_eq_u32 s{sCOL}, 224")
    A(f"s_cselect_b32 s{sZI}, {WS_G + 0x6000}, s{sZI}")
    A(f"v_and_b32 v{vG}, 31, v{vL}")
    A(f"v_lshlrev_b32 v{vG}, 6, v{vG}")
    A(f"v_lshrrev_b32 v{TM}, 5, v{vL}")
    A(f"v_lshl_add_u32 v{vG}, v{TM}, 4, v{vG}")
    A(f"v_add_u32 v{vG}, {LDS_Y}, v{vG}")
    A("s_waitcnt lgkmcnt(6)")
    for x in merge(p4(1, (0, 1, 2, 3)), twid(0)): A(x)
    lcd(TW(1), TS_TW + 8192, 8)
    ST.at(4)
    A("s_waitcnt lgkmcnt(0)")
    for x in merge(p5(0), twid(1)): A(x)
    A("s_nop 1")
    for x in merge(p5(1), outp(0)): A(x)
    A("s_nop 7")
    for x in outp(1): A(x)
    outst()
    ST.at(5)
    A("s_setprio 0")
    A(f"s_lshl_b32 s{sT}, s{sCOL}, 7")
    A(f"s_add_u32 s{sT}, s{sT}, {WS_FZ}")
    A(f"v_mov_b32 v{TM+4}, 0")
    A(f"v_mov_b32 v{TM+6}, s6")
    A(f"v_mov_b32 v{TM+7}, s7")
    A("s_mov_b64 exec, 1")
    A("s_waitcnt vmcnt(0)")
    ST.at(6)
    A(f"buffer_store_dwordx2 {vr(TM+6,2)}, v{TM+4}, {sr(sWS,4)}, s{sT} offen sc1")
    A("s_mov_b64 exec, -1")
    A("s_cmp_ge_u32 s2, 224")
    A("s_cbranch_scc1 k2_auxw")
    A(f"v_lshrrev_b32 v{TM}, 3, v{vL}")
    A(f"v_and_b32 v{TM+1}, 7, v{vL}")
    A(f"v_bfe_u32 v{TM+2}, v{vL}, 4, 1")
    A(f"v_lshlrev_b32 v{TM+2}, 2, v{TM+2}")
    A(f"v_xor_b32 v{TM+1}, v{TM+1}, v{TM+2}")
    A(f"v_lshlrev_b32 v{TM+1}, 4, v{TM+1}")
    A(f"v_mul_u32_u24 v{TM+2}, {ZP}, v{TM}")
    A(f"v_add_u32 v{TM+2}, v{TM+2}, v{TM+1}")
    def image(name, lds, vaddr, srd, pitch, flag, depth):
        for i in range(1, 4): A(f"v_add_u32 v{20+i}, {i*(8*pitch-1024)}, v{vaddr}")
        for gr in range(14):
            A(f"s_mov_b32 m0, {lds + 4096*gr}")
            A(f"s_add_u32 s{sT}, s{sT}, {32*pitch if gr else 0}")
            for i in range(4):
                A(f"buffer_load_dwordx4 v{vaddr if i == 0 else 20+i}, {srd}, s{sT} offen offset:{1024*i} {flag} lds")
    def poll(name, lines, sl):
        A(f"s_mov_b32 s{sI}, {SPIN}")
        A(f"{name}:")
        for x in lines: A(x)
        A("s_cmp_eq_u64 vcc, -1")
        A(f"s_cbranch_scc1 {name}_done")
        A(f"s_sub_u32 s{sI}, s{sI}, 1")
        A(f"s_sleep {sl}")
        A(f"s_cmp_lg_u32 s{sI}, 0")
        A(f"s_cbranch_scc1 {name}")
        A(f"{name}_done:")
    ST.at(7)
    A(f"s_sleep {os.environ.get('ZD', 6)}")
    A(f"v_lshlrev_b32 v4, 7, v{vL}")
    A(f"v_add_u32 v5, 0x6000, v4")
    A(f"v_min_u32 v5, {224*128}, v5")
    A(f"s_lshr_b32 s{sT}, s{sMT}, 1")
    A(f"s_and_b32 s{sT2}, s{sT}, 3")
    A(f"s_add_u32 s{sT2}, s{sT2}, 28")
    A(f"s_lshl_b32 s{sT2}, s{sT2}, 2")
    A(f"s_lshr_b32 s{sT}, s{sT}, 2")
    A(f"s_add_u32 s{sT2}, s{sT2}, s{sT}")
    A(f"s_lshl_b32 s{sT2}, s{sT2}, 11")
    A(f"s_and_b32 s{sT}, s{sMT}, 1")
    A(f"s_lshl_b32 s{sT}, s{sT}, 8")
    A(f"s_add_u32 s{sT2}, s{sT2}, s{sT}")
    A(f"s_add_u32 s{sT2}, s{sT2}, {WS_F1 - WS_FZ + 1024 + 256}")
    A(f"v_writelane_b32 v5, s{sT2}, 62")
    A(f"s_add_u32 s{sT2}, s{sT2}, 128")
    A(f"v_writelane_b32 v5, s{sT2}, 63")
    A(f"s_mov_b32 s{sI}, {SPIN}")
    A(f"s_mov_b32 s{sT}, {WS_FZ}")
    A(f"s_mov_b32 s{sT2}, {WS_FZ + 0x2000}")
    A(f"s_mov_b32 s{sKO}, {WS_FZ + 0x4000}")
    A("k2_pz:")
    A(f"buffer_load_dwordx2 v[12:13], v4, {sr(sWS,4)}, s{sT} offen sc1")
    A(f"buffer_load_dwordx2 v[14:15], v4, {sr(sWS,4)}, s{sT2} offen sc1")
    A(f"buffer_load_dwordx2 v[16:17], v4, {sr(sWS,4)}, s{sKO} offen sc1")
    A(f"buffer_load_dwordx2 v[18:19], v5, {sr(sWS,4)}, s{sT} offen sc1")
    A("s_waitcnt vmcnt(0)")
    A("v_cmp_ne_u64 vcc, s[6:7], v[12:13]")
    A("v_cmp_ne_u64 s[36:37], s[6:7], v[14:15]")
    A("v_cmp_ne_u64 s[38:39], s[6:7], v[16:17]")
    A("v_cmp_ne_u64 s[62:63], s[6:7], v[18:19]")
    A("s_nop 1")
    A("s_or_b64 vcc, vcc, s[36:37]")
    A("s_or_b64 vcc, vcc, s[38:39]")
    A("s_or_b64 vcc, vcc, s[62:63]")
    A("s_and_b64 exec, exec, vcc")
    A("s_cbranch_scc0 k2_pz_done")
    A(f"s_sub_u32 s{sI}, s{sI}, 1")
    A(f"s_sleep {os.environ.get('ZSL', 6)}")
    A(f"s_cmp_gt_i32 s{sI}, 0")
    A("s_cbranch_scc1 k2_pz")
    A("k2_pz_done:")
    A("s_mov_b64 exec, -1")
    ST.at(8)
    A(f"s_lshl_b32 s{sT}, s{sMT}, 7")
    A(f"s_add_u32 s{sT}, s{sT}, {WS_Z}")
    image("k2_imz", LZ, TM+2, sr(sWS,4), ZP, os.environ.get("ZF", "sc1"), int(os.environ.get("DZ", 56)))
    A("k2_auxw:")
    ST.at(9)
    A("k2_auxb1:")
    A(f"v_lshrrev_b32 v{vWD}, 3, v{vL}")
    A(f"v_and_b32 v{vT+6}, 7, v{vL}")
    A(f"v_bfe_u32 v{vT+7}, v{vL}, 4, 1")
    A(f"v_lshlrev_b32 v{vT+7}, 2, v{vT+7}")
    A(f"v_xor_b32 v{vT+6}, v{vT+6}, v{vT+7}")
    A(f"v_mul_u32_u24 v{vWD}, 896, v{vWD}")
    A(f"v_lshl_add_u32 v{vWD}, v{vT+6}, 4, v{vWD}")
    A("s_barrier")
    A("s_barrier")
    A("s_cmp_ge_u32 s2, 224")
    A("s_cbranch_scc1 k2_chk")
    A(f"s_lshl_b32 s{sT}, s{sNT}, 7")
    A(f"s_add_u32 s{sT}, s{sT}, {64*896}")
    for i in range(48):
        if i % 4 == 0: A(f"s_mov_b32 m0, {RED + 1024*i}")
        if i: A(f"s_add_u32 s{sT}, s{sT}, {8*896-1024 if i % 4 else 8*896+3072}")
        if i == 47: A("s_mov_b32 exec_hi, 0x00ffffff")
        A(f"buffer_load_dwordx4 v{vWD}, {sr(sX,4)}, s{sT} offen offset:{1024*(i%4)} lds")
    A("s_mov_b32 exec_hi, -1")
    A(f"s_mov_b32 s{sWS_}, s{sT}")
    A("s_waitcnt vmcnt(48)")
    A("s_branch k2_chk")
    A("k2_auxfb:")
    A("s_waitcnt vmcnt(0)")
    A("s_barrier")
    A("s_barrier")
    A("s_barrier")
    A("s_branch k2_auxb1")
    A("k2_auxp3:")
    A(f"v_and_b32 v4, 31, v{vL}")
    A("v_lshlrev_b32 v4, 7, v4")
    A(f"s_lshl_b32 s{sT}, s{sMT}, 12")
    A(f"s_add_u32 s{sT}, s{sT}, {WS_FO}")
    ST.at(10)
    A(f"s_mov_b32 s{sKO}, s{sT}")
    if int(os.environ.get("OD", 0)): A(f"s_sleep {os.environ.get('OD')}")
    A(f"buffer_load_dwordx2 v[0:1], v4, {sr(sWS,4)}, s{sKO} offen sc1")
    A(f"s_mov_b32 m0, {RED + 1024*44}")
    A("s_mov_b32 exec_lo, 0")
    A("s_mov_b32 exec_hi, 0xff000000")
    A(f"buffer_load_dwordx4 v{vWD}, {sr(sX,4)}, s{sWS_} offen offset:3072 lds")
    A("s_mov_b64 exec, -1")
    A(f"s_mov_b32 s{sT}, s{sKO}")
    A("s_waitcnt vmcnt(0)")
    A("v_cmp_eq_u64 vcc, s[6:7], v[0:1]")
    A("s_nop 1")
    A("s_cmp_eq_u64 vcc, -1")
    A("s_cbranch_scc1 k2_po_done")
    poll("k2_po", [f"buffer_load_dwordx2 v[0:1], v4, {sr(sWS,4)}, s{sT} offen sc1", "s_waitcnt vmcnt(0)", "v_cmp_eq_u64 vcc, s[6:7], v[0:1]", "s_nop 1"], int(os.environ.get("OSL", 2)))
    ST.at(11)
    A("s_barrier")
    A(f"s_lshl_b32 s{sT}, s{sNT}, 7")
    for i in range(8):
        if i % 4 == 0: A(f"s_mov_b32 m0, {LW + 1024*i}")
        if i: A(f"s_add_u32 s{sT}, s{sT}, {8*896-1024 if i % 4 else 8*896+3072}")
        A(f"buffer_load_dwordx4 v{vWD}, {sr(sX,4)}, s{sT} offen offset:{1024*(i%4)} lds")
    A("s_waitcnt vmcnt(0)")
    A("s_barrier")
    A("s_branch k2_dump" if DIAG else "s_endpgm")
    A("k2_help:")
    A("s_waitcnt lgkmcnt(0)")
    A("s_barrier")
    A("s_cmp_ge_u32 s2, 224")
    A("s_cbranch_scc1 k2_end")
    A(f"s_sleep {os.environ.get('HD', 40)}")
    fimg()
    A(f"s_and_b32 s{sT}, s{sJ}, 3")
    A(f"s_mul_i32 s{sT}, s{sT}, {112*896}")
    A(f"s_lshl_b32 s{sT2}, s{sNT}, 7")
    A(f"s_add_u32 s{sT}, s{sT}, s{sT2}")
    A(f"v_mul_u32_u24 v8, 896, v{vL}")
    A(f"buffer_load_dword v9, v8, {sr(sX,4)}, s{sT} offen")
    A(f"s_add_u32 s{sT}, s{sT}, {48*896}")
    A(f"buffer_load_dword v10, v8, {sr(sX,4)}, s{sT} offen")
    A("s_waitcnt vmcnt(0)")
    A("s_endpgm")
    if DIAG: A("k2_dump:")
    ST.dump(sWS, sW, 5, 250)
    A("k2_end:")
    A("s_endpgm")
    body = A.L[loop_start:loop_end]
    rep = check_seq(body + body)
    assert not rep, rep
    return A.L, NV, 102 if DIAG else 64
```

```python
from asmlib import *
from k1 import WS_Q, WS_K, WS_V, WS_Y, WS_W, WS_O, WS_Z, WS_G, WS_BYTES, WS_FO, WS_FZ, WS_F1, f2u, YB, WP, ZP
import math, os
TS_F64, TS_F32, TS_TW, TS_BYTES = 0, 24576, 30720, 47104
LF, LZ, RED = 0, 57344, 114688
LW = RED - 8192
LDS_Y, LDS_Q = LZ, RED + 8192
K2_LDS = 163840
TAB_INV_BYTES = 401408
from k1 import SPIN
N0 = int(os.environ.get("N0", 13)); N1 = (64 - N0) // 3
assert N0 + 3 * N1 == 64
OUTF = os.environ.get('OUTF', 'sc1')
OST = os.environ.get("OST", "")

def merge(ms, vs, lead=0):
    out = []; n = len(ms); k = 0
    for i, m in enumerate(ms):
        out.append(m)
        k2 = (len(vs) * (i + 1)) // n
        out += vs[k:k2]; k = k2
    return out

def gen_k2():
    A = Asm()
    sWS, sX, sTB = 8, 12, 16
    sW, sJ, sXC, sHD, sQB, sT, sT2, sCNT, sI, sKO, sLO, sHI, sVO, sPASS = 20, 21, 22, 23, 24, 25, 26, 27, 28, 29, 30, 31, 32, 33
    sK0, sOK, sQ, sOUT = 34, 35, 40, 48
    sMT, sNT, sPUB, sLO2 = 52, 53, 57, 58
    O, S, Q, KV = 0, 64, 128, 160
    vL, vO16, vIDX, vT = 208, 209, 210, 212
    NV = 256
    vWD, sWM, sWS_ = 237, 59, 60
    vTAG = 240
    A("k2_start:")
    ST = Stamps(A, 1); ST.begin()
    A(f"s_load_dwordx2 {sr(sX,2)}, s[0:1], 40")
    A(f"s_load_dwordx2 {sr(sOUT,2)}, s[0:1], 56")
    A(f"s_mov_b32 s{sWS}, s16")
    A(f"s_mov_b32 s{sWS+1}, s17")
    A(f"s_mov_b32 s{sWS+2}, {WS_BYTES}")
    A(f"s_mov_b32 s{sWS+3}, 0x20000")
    A(f"s_mov_b32 s{sW}, s47")
    A(f"v_mov_b32 v{vL}, v64")
    A(f"v_mov_b32 v{vTAG}, s6")
    A(f"v_mov_b32 v{vTAG+1}, s7")
    A(f"v_lshlrev_b32 v{vO16}, 4, v{vL}")
    A(f"v_and_b32 v{vT+9}, 31, v{vL}")
    A(f"v_lshlrev_b32 v{vT+9}, 2, v{vT+9}")
    A(f"s_and_b32 s{sXC}, s2, 7")
    A(f"s_lshr_b32 s{sJ}, s2, 3")
    A(f"s_and_b32 s{sT}, s{sJ}, 3")
    A(f"s_lshl_b32 s{sMT}, s{sXC}, 2")
    A(f"s_add_u32 s{sMT}, s{sMT}, s{sT}")
    A(f"s_lshr_b32 s{sNT}, s{sJ}, 2")
    A(f"s_getpc_b64 {sr(sTB,2)}")
    A(f"s_add_u32 s{sTB}, s{sTB}, tab_inv@rel32@lo+4")
    A(f"s_addc_u32 s{sTB+1}, s{sTB+1}, tab_inv@rel32@hi+12")
    A(f"s_mov_b32 s{sTB+2}, {TAB_INV_BYTES}")
    A(f"s_mov_b32 s{sTB+3}, 0x20000")
    def flag_index(d, vpass, vmt, ve, vnt, shh):
        A(f"v_and_b32 v{d}, 7, v{vnt}")
        A(f"v_lshlrev_b32 v{d}, 2, v{d}")
        A(f"v_and_or_b32 v{d}, v{vmt}, 3, v{d}")
        A(f"v_lshrrev_b32 v{d+1}, 2, v{vmt}")
        A(f"v_lshl_add_u32 v{d}, v{d}, 2, v{d+1}")
        A(f"v_lshrrev_b32 v{d+1}, 3, v{vnt}")
        A(f"v_lshl_add_u32 v{d}, v{d}, 1, v{d+1}")
        A(f"v_xor_b32 v{d+1}, 1, v{vpass}")
        A(f"v_lshl_add_u32 v{d}, v{d}, 1, v{d+1}")
        A(f"v_and_b32 v{d+1}, {shh}, v{vpass}")
        A(f"v_lshl_add_u32 v{d}, v{d}, 1, v{d+1}")
        A(f"v_lshl_add_u32 v{d}, v{d}, 1, v{ve}")
        A(f"v_lshlrev_b32 v{d}, 7, v{d}")
    A(f"s_cmp_ge_u32 s{sW}, 4")
    A("s_cbranch_scc1 k2_aux")
    A(f"s_lshr_b32 s{sHD}, s{sJ}, 4")
    A(f"s_lshl_b32 s{sHD}, s{sHD}, 3")
    A(f"s_add_u32 s{sHD}, s{sHD}, s{sXC}")
    A(f"s_and_b32 s{sQB}, s{sJ}, 15")
    A(f"s_cmp_eq_u32 s{sW}, 0")
    A(f"s_cselect_b32 s{sCNT}, {N0}, {N1}")
    A(f"s_mul_i32 s{sT}, s{sW}, {N1}")
    A(f"s_sub_u32 s{sT}, s{sT}, {N1-N0}")
    A(f"s_max_i32 s{sT}, s{sT}, 0")
    A(f"s_lshl_b32 s{sT2}, s{sW}, 4")
    A(f"s_cmp_le_u32 s2, 224")
    A(f"s_cselect_b32 s{sCNT}, s{sCNT}, 16")
    A(f"s_cselect_b32 s{sT}, s{sT}, s{sT2}")
    A(f"s_mul_i32 s{sK0}, s{sW}, 3")
    A(f"s_sub_u32 s{sLO}, s{sT}, s{sK0}")
    A(f"s_add_u32 s{sLO}, s{sLO}, 9")
    A(f"v_lshrrev_b32 v2, 1, v{vL}")
    A(f"s_sub_u32 s{sT2}, s{sCNT}, 1")
    A(f"v_min_u32 v2, s{sT2}, v2")
    A(f"v_add_u32 v3, s{sK0}, v2")
    A(f"v_add_u32 v4, s{sLO}, v2")
    A("v_cmp_gt_u32 vcc, 3, v2")
    A(f"s_lshr_b32 s{sT2}, s{sHD}, 2")
    A(f"s_and_b32 s{sI}, s{sT2}, 1")
    A("v_cndmask_b32 v3, v4, v3, vcc")
    A("v_lshrrev_b32 v4, 5, v3")
    A("v_bfe_u32 v5, v3, 1, 4")
    A("v_and_b32 v6, 1, v3")
    A(f"v_and_b32 v7, 1, v{vL}")
    A(f"v_lshl_add_u32 v7, v7, 2, s{sT2}")
    A("v_add_u32 v7, 4, v7")
    A(f"v_cmp_lt_u32 vcc, 33, v{vL}")
    A(f"s_lshr_b32 s{sKO}, s{sW}, 1")
    A(f"s_xor_b32 s{sKO}, s{sKO}, s{sI}")
    A(f"s_and_b32 s{sVO}, s{sW}, 1")
    A(f"v_mov_b32 v8, s{sKO}")
    A(f"v_mov_b32 v9, s{sQB}")
    A(f"v_mov_b32 v10, s{sVO}")
    A(f"v_mov_b32 v11, s{sT2}")
    for k in range(4): A(f"v_cndmask_b32 v{4+k}, v{4+k}, v{8+k}, vcc")
    A(f"s_bfe_u32 s{sI}, s{sHD}, 0x10001")
    flag_index(2, 4, 5, 6, 7, f"s{sI}")
    A(f"s_lshl_b32 s{sT2}, s{sHD}, 6")
    A(f"s_add_u32 s{sK0}, s{sK0}, s{sT2}")
    A(f"s_lshl_b32 s{sK0}, s{sK0}, 11")
    A(f"s_add_u32 s{sK0}, s{sK0}, {WS_K}")
    A(f"s_add_u32 s{sLO2}, s{sLO}, s{sT2}")
    A(f"s_add_u32 s{sHI}, s{sLO2}, s{sCNT}")
    A(f"s_add_u32 s{sLO2}, s{sLO2}, 3")
    A(f"s_lshl_b32 s{sLO2}, s{sLO2}, 11")
    A(f"s_add_u32 s{sLO2}, s{sLO2}, {WS_K}")
    A(f"s_lshl_b32 s{sHI}, s{sHI}, 11")
    A(f"s_add_u32 s{sHI}, s{sHI}, {WS_K}")
    A(f"s_lshl_b32 s{sT}, s{sQB}, 2")
    A(f"s_add_u32 s{sT}, s{sT}, s{sT2}")
    for s in range(4):
        A(f"s_add_u32 s{sQ+s}, s{sW}, {s+1}")
        A(f"s_and_b32 s{sQ+s}, s{sQ+s}, 3")
        A(f"s_add_u32 s{sT2}, s{sQ+s}, s{sT}")
        A(f"s_lshl_b32 s{sQ+4+s}, s{sT2}, 11")
    A(f"s_mov_b32 s{sKO}, s{sK0}")
    A(f"s_add_u32 s{sVO}, s{sKO}, {WS_V - WS_K}")
    ST.at(12)
    A(f"s_mov_b32 s{sI}, {SPIN}")
    A(f"s_mov_b32 s{sT}, {WS_F1}")
    A("s_mov_b32 exec_lo, 0x3f")
    A("s_mov_b32 exec_hi, 4")
    if os.environ.get("NOPOLL"): A("s_branch k2_pa_done")
    if int(os.environ.get("PD", 10)): A(f"s_sleep {os.environ.get('PD', 10)}")
    A("k2_pa:")
    A(f"buffer_load_dwordx2 v[4:5], v2, {sr(sWS,4)}, s{sT} offen sc1")
    A("s_waitcnt vmcnt(0)")
    A("v_cmp_ne_u64 vcc, s[6:7], v[4:5]")
    A("s_nop 1")
    A("s_and_b64 exec, exec, vcc")
    A("s_cbranch_scc0 k2_pa_done")
    A(f"s_sub_u32 s{sI}, s{sI}, 1")
    A(f"s_sleep {os.environ.get('PSL', 1)}")
    A(f"s_cmp_gt_i32 s{sI}, 0")
    A("s_cbranch_scc1 k2_pa")
    A("k2_pa_done:")
    A("s_mov_b64 exec, -1")
    ST.at(13)
    def ldk(st, t): return f"buffer_load_dwordx4 {vr(KV+16*st+4*t,4)}, v{vO16}, {sr(sWS,4)}, s{sKO} offen offset:{1024*t} sc1"
    def ldv(st, t): return f"buffer_load_dwordx4 {vr(KV+16*st+8+4*t,4)}, v{vO16}, {sr(sWS,4)}, s{sVO} offen offset:{1024*t} sc1"
    def ldq(s, t): return f"buffer_load_dwordx4 {vr(Q+8*s+4*t,4)}, v{vO16}, {sr(sWS,4)}, s{sQ+4+s} offen offset:{1024*t}"
    adv = [f"s_add_u32 s{sKO}, s{sKO}, 2048", f"s_cmp_ge_u32 s{sKO}, s{sHI}", f"s_cselect_b32 s{sKO}, s{sLO2}, s{sKO}"]
    setv = f"s_add_u32 s{sVO}, s{sKO}, {WS_V - WS_K}"
    A(f"s_lshl_b32 s{sT}, s{sW}, 11")
    A(f"s_add_u32 m0, s{sT}, {LDS_Q}")
    A(ldk(0, 0))
    A(f"buffer_load_dwordx4 v{vO16}, {sr(sWS,4)}, s{sQ+7} offen sc1 lds")
    A(f"buffer_load_dwordx4 v{vO16}, {sr(sWS,4)}, s{sQ+7} offen offset:1024 sc1 lds")
    A(ldk(0, 1))
    for r in range(64): A(f"v_mov_b32 v{O+r}, 0") if r not in (2,) else None
    for x in [ldv(0, 0), ldv(0, 1)]: A(x)
    A(f"s_mov_b32 s{sPASS}, 0")
    A(f"s_mov_b32 s{sOK}, 0")
    A("s_branch k2_first")
    A("k2_pass:")
    A(f"s_mov_b32 s{sKO}, s{sK0}")
    A(setv)
    for x in [ldk(0, 0), ldk(0, 1), ldv(0, 0), ldv(0, 1)]: A(x)
    A("s_waitcnt vmcnt(0)")
    A("k2_first:")
    for x in adv[:1] + [setv, ldk(1, 0), ldk(1, 1), ldv(1, 0), ldv(1, 1)] + adv[:1] + [setv, ldk(2, 0), ldk(2, 1), ldv(2, 0), ldv(2, 1)]: A(x)
    A(f"s_sub_u32 s{sT}, s{sCNT}, 3")
    A(f"s_mul_i32 s{sT}, s{sT}, s{sQB}")
    A(f"s_lshr_b32 s{sT}, s{sT}, 4")
    A(f"s_lshl_b32 s{sT}, s{sT}, 11")
    A(f"s_add_u32 s{sKO}, s{sLO2}, s{sT}")
    A(f"s_cmp_lg_u32 s{sPASS}, 0")
    A("s_cbranch_scc1 k2_nobar")
    A(f"v_mov_b32 v{vT+12}, v2")
    A(f"s_mov_b32 s{sT}, {WS_F1}")
    A(f"buffer_load_dwordx2 {vr(vT+10,2)}, v2, {sr(sWS,4)}, s{sT} offen sc1")
    A("v_mov_b32 v2, 0")
    A(f"v_mov_b32 v{vIDX}, 0xdddddddd")
    for s_ in range(4):
        A(f"s_lshl_b32 s{sT}, s{sQ+s_}, 11")
        A(f"s_add_u32 s{sT}, s{sT}, {LDS_Q}")
        A(f"v_add_u32 v{vT+2+s_}, s{sT}, v{vO16}")
    A("s_waitcnt vmcnt(12)")
    A("s_barrier")
    for s_ in range(4):
        for t in range(2): A(f"ds_read_b128 {vr(Q+8*s_+4*t,4)}, v{vT+2+s_} offset:{1024*t}")
    A("s_branch k2_go")
    A("k2_nobar:")
    A("s_waitcnt vmcnt(0)")
    A(f"v_mov_b32 v{vT+10}, s6")
    A(f"v_mov_b32 v{vT+11}, s7")
    for r in range(64): A(f"v_mov_b32 v{O+r}, 0")
    A("k2_go:")
    for s in range(3):
        A(f"s_mul_i32 s{sT}, s{sQ+s}, 12288")
        A(f"s_add_u32 s{sT}, s{sT}, {RED}")
        A(f"v_add_u32 v{vT+s}, s{sT}, v{vO16}")
    A(f"s_mov_b32 s{sI}, s{sCNT}")
    def qk(q, st, half):
        c = "0" if half == 0 else vr(S+16*q,16)
        return f"v_mfma_f32_32x32x16_bf16 {vr(S+16*q,16)}, {vr(KV+16*st+4*half,4)}, {vr(Q+8*q+4*half,4)}, {c}"
    def pv(q, st, half):
        return f"v_smfmac_f32_32x32x32_bf16 {vr(O+16*q,16)}, {vr(KV+16*st+8+4*half,4)}, {vr(S+16*q+8*half,8)}, v{vIDX}"
    def tile(st, first, last=False):
        nxt, prv = (st + 1) % 3, (st + 2) % 3
        for q in range(4):
            e = [f"v_exp_f32 v{S+16*q+r}, v{S+16*q+r}" for r in range(16)]
            qn, stn = (q + 1, st) if q < 3 else (0, nxt)
            qp, stp = (q - 1, st) if q > 0 else (3, prv)
            aft = {0: [], 1: [], 2: [], 3: []}
            if q == 0: aft[2] = [ldk(prv, 0)]; aft[3] = [setv]
            if q == 1: aft[1] = ["s_waitcnt vmcnt(5)"]; aft[2] = [ldk(prv, 1)]; aft[3] = adv[0:2]
            if q == 2: aft[0] = [adv[2]]; aft[2] = [ldv(prv, 0)]; aft[3] = [f"s_sub_u32 s{sI}, s{sI}, 1", "s_waitcnt vmcnt(5)"]
            if q == 3: aft[2] = [ldv(prv, 1)]; aft[3] = [f"s_cmp_eq_u32 s{sI}, 1"]
            ms = [qk(qn, stn, 0), qk(qn, stn, 1), pv(qp, stp, 0), pv(qp, stp, 1)]
            if first and q == 0:
                A("s_waitcnt lgkmcnt(0)")
                ms[2] = ms[3] = None
            if first:
                aft = {0: [], 1: [], 2: [], 3: []}
                if q == 1: aft[1] = ["s_waitcnt vmcnt(9)"]
                if q == 2: aft[3] = [f"s_sub_u32 s{sI}, s{sI}, 1", "s_waitcnt vmcnt(7)"]
                if q == 3: aft[2] = ["s_waitcnt vmcnt(0)"]; aft[3] = [f"v_cmp_eq_u64 vcc, s[6:7], {vr(vT+10,2)}"]
            if last:
                wr = lambda s_, g: f"ds_write_b128 v{vT+s_}, {vr(O+16*s_+4*g,4)} offset:{4096*s_+1024*g}"
                aft = {0: [], 1: [], 2: [], 3: []}
                if q == 1: aft[1] = ["s_waitcnt vmcnt(4)"]
                if q == 2: aft[2] = [wr(0, 0)]; aft[3] = [wr(0, 1)]
                if q == 3:
                    ms[0] = ms[1] = None
                    aft[0] = [wr(0, 2)]; aft[1] = [wr(0, 3)]; aft[2] = [wr(1, 0)]; aft[3] = [wr(1, 1)]
            for k in range(4):
                if ms[k]: A(ms[k])
                for y in aft[k]: A(y)
                for x in e[4*k:4*k+4]: A(x)
    ST.at(0)
    A("s_waitcnt vmcnt(11) lgkmcnt(6)")
    ST.at(1)
    A(qk(0, 0, 0)); A(qk(0, 0, 1))
    A("s_nop 9")
    tile(0, True)
    A("s_cmp_lg_u64 vcc, -1")
    if not os.environ.get("NOPOLL"): A("s_cbranch_scc1 k2_pb0")
    loop_start = A.mark()
    A("k2_loop:")
    if DIAG:
        A("s_waitcnt lgkmcnt(0)")
        for i in (11,): A(f"s_mov_b32 s{70+2*i}, s{68+2*i}")
        ST.at(10)
    for st in (1, 2, 0):
        tile(st, False)
        A(f"s_cbranch_scc1 k2_x{(st + 1) % 3}" if st != 0 else "s_cbranch_scc0 k2_loop")
    loop_end = A.mark()
    for st in (1, 2, 0):
        A(f"k2_x{st}:")
        tile(st, False, True)
        A(f"ds_write_b128 v{vT+1}, {vr(O+16+8,4)} offset:{4096+2048}")
        A(pv(3, st, 0))
        A(f"ds_write_b128 v{vT+1}, {vr(O+16+12,4)} offset:{4096+3072}")
        A(pv(3, st, 1))
        if st != 0: A("s_branch k2_red")
    A("k2_red:")
    ST.at(2)
    A(f"s_lshl_b32 s{sT2}, s{sQB}, 2")
    A(f"s_add_u32 s{sT2}, s{sT2}, s{sW}")
    for g in range(4): A(f"ds_write_b128 v{vT+2}, {vr(O+32+4*g,4)} offset:{8192+1024*g}")
    A(f"s_mul_i32 s{sT}, s{sW}, 12288")
    A(f"s_add_u32 s{sT}, s{sT}, {RED}")
    A(f"v_add_u32 v{vT+1}, s{sT}, v{vO16}")
    A(f"s_lshl_b32 s{sT}, s{sW}, 2")
    A(f"s_add_u32 s{sT}, s{sT}, {K2_LDS-128}")
    A(f"v_mov_b32 v{vT+14}, s{sT}")
    A(f"s_lshl_b32 s{sT2}, s{sT2}, 4")
    A(f"s_add_u32 s{sT2}, s{sT2}, s{sHD}")
    A(f"s_lshl_b32 s{sKO}, s{sT2}, 11")
    A(f"s_add_u32 s{sKO}, s{sKO}, {WS_O}")
    A(f"s_lshl_b32 s{sVO}, s{sT2}, 7")
    A(f"s_add_u32 s{sVO}, s{sVO}, {WS_FO}")
    A("s_waitcnt vmcnt(0) lgkmcnt(0)")
    ST.at(3)
    A("s_barrier")
    ST.at(4)
    for g in (3, 0, 1, 2):
        for s in range(3):
            A(f"ds_read_b128 {vr(S+16*s+4*g,4)}, v{vT+1} offset:{4096*s+1024*g}")
    A(f"v_cmp_lt_u32 s[38:39], 31, v{vL}")
    R = O + 48
    def addg(g):
        for r in range(4*g, 4*g+4): A(f"v_add_f32 v{S+r}, v{S+r}, v{S+16+r}")
        for r in range(4*g, 4*g+4): A(f"v_add_f32 v{R+r}, v{R+r}, v{S+32+r}")
        for r in range(4*g, 4*g+4): A(f"v_add_f32 v{R+r}, v{R+r}, v{S+r}")
    A("s_waitcnt lgkmcnt(9)")
    addg(3)
    A(f"v_mov_b32 v{vT+4}, v{R+12}")
    A(f"v_mov_b32 v{vT+5}, v{R+12}")
    A("s_waitcnt lgkmcnt(6)")
    A(f"v_permlane32_swap_b32 v{vT+4}, v{vT+5}")
    A(f"v_rcp_f32 v{vT+6}, v{vT+5}")
    addg(0)
    A("s_waitcnt lgkmcnt(3)")
    addg(1)
    A("s_waitcnt lgkmcnt(0)")
    addg(2)
    A(f"s_cmp_lg_u32 s{sOK}, 0")
    A(f"s_mov_b32 s{sPUB}, 0")
    A("s_cbranch_scc1 k2_apart")
    for t in range(2):
        for r in range(8): A(f"v_mul_f32 v{S+8*t+r}, v{R+8*t+r}, v{vT+6}")
        for r in range(4): A(f"v_cvt_pk_bf16_f32 v{S+16+4*t+r}, v{S+8*t+2*r}, v{S+8*t+2*r+1}")
        if t == 1:
            A(f"v_cndmask_b32 v{S+22}, v{S+22}, 0, s[38:39]")
            A(f"v_cndmask_b32 v{S+23}, v{S+23}, 0, s[38:39]")
        A(f"buffer_store_dwordx4 {vr(S+16+4*t,4)}, v{vO16}, {sr(sWS,4)}, s{sKO} offen offset:{1024*t} sc1")
    A(f"v_add_f32 v{vT+7}, abs(v{R}), abs(v{R+1})")
    for r in range(2, 16): A(f"v_add_f32 v{vT+7}, v{vT+7}, abs(v{R+r})")
    A(f"v_cmp_nle_f32 vcc, {hex(f2u(2.0**-60))}, v{vT+5}")
    A(f"s_mov_b64 s[36:37], vcc")
    A(f"v_cmp_nge_f32 vcc, {hex(f2u(2.0**60))}, v{vT+5}")
    A(f"s_or_b64 s[36:37], s[36:37], vcc")
    A(f"v_cmp_nge_f32 vcc, {hex(f2u(2.0**120))}, v{vT+7}")
    A(f"s_or_b64 s[36:37], s[36:37], vcc")
    A(f"s_cselect_b32 s{sOK}, 0, 1")
    A(f"s_or_b32 s{sOK}, s{sOK}, s{sPASS}")
    A(f"s_mov_b32 s{sPUB}, s{sOK}" if not os.environ.get("NOPOLL") else f"s_mov_b32 s{sPUB}, 1")
    A("k2_apart:")
    A("s_barrier")
    def publish(lab, younger=0):
        A(f"s_cmp_eq_u32 s{sPUB}, 0")
        A(f"v_mov_b32 v{vT+4}, 0")
        A(f"s_waitcnt vmcnt({younger})")
        A(f"s_cbranch_scc1 {lab}")
        A("s_mov_b64 exec, 1")
        A(f"buffer_store_dwordx2 {vr(vTAG,2)}, v{vT+4}, {sr(sWS,4)}, s{sVO} offen sc1")
        A("s_mov_b64 exec, -1")
        A(f"{lab}:")
    AA, AB, OF, LB = 0, 96, 160, 32
    vG3, vZ3, vF3, vW3, vOA, vX = 228, 229, 230, 232, 234, 235
    sKH, sB3, sB, sOB, sOA = 54, 55, 56, 61, 62
    A(f"s_lshr_b32 s{sKH}, s{sW}, 1")
    A(f"s_and_b32 s{sB3}, s{sW}, 1")
    A(f"v_lshrrev_b32 v{vT+10}, 5, v{vL}")
    A(f"v_bfe_u32 v{vT+11}, v{vL}, 2, 2")
    A(f"v_bfe_u32 v{vT+12}, v{vL}, 4, 1")
    A(f"v_lshlrev_b32 v{vT+12}, 5, v{vT+12}")
    A(f"v_and_b32 v{vT+13}, 3, v{vL}")
    A(f"v_lshl_add_u32 v{vT+12}, v{vT+13}, 3, v{vT+12}")
    A(f"v_lshl_add_u32 v{vT+12}, v{vT+11}, 7, v{vT+12}")
    A(f"v_lshrrev_b32 v{vT+11}, 1, v{vT+11}")
    A(f"v_lshl_add_u32 v{vT+12}, v{vT+11}, 6, v{vT+12}")
    A(f"s_lshl_b32 s{sT}, s{sB3}, 6")
    A(f"v_xor_b32 v{vZ3}, s{sT}, v{vT+12}")
    A(f"v_lshl_add_u32 v{vZ3}, v{vT+10}, 10, v{vZ3}")
    A(f"s_mul_i32 s{sT2}, s{sKH}, {14*2048}")
    A(f"s_add_u32 s{sT}, s{sT2}, {LZ}")
    A(f"v_add_u32 v{vZ3}, s{sT}, v{vZ3}")
    A(f"s_lshl_b32 s{sT}, s{sKH}, 10")
    A(f"s_add_u32 s{sT}, s{sT}, s{sT2}")
    A(f"v_add_u32 v{vF3}, s{sT}, v{vO16}")
    A(f"v_xor_b32 v{vF3+1}, 1024, v{vF3}")
    A(f"s_lshl_b32 s{sT}, s{sMT}, 1")
    A(f"s_add_u32 s{sB}, s{sT}, s{sB3}")
    A(f"s_mul_i32 s{sT}, s{sB}, {YB}")
    A(f"s_add_u32 s{sT}, s{sT}, {WS_Y + 7*4096 + 1024}")
    A(f"buffer_load_dword v{vG3}, v{vT+9}, {sr(sWS,4)}, s{sT} offen sc1")
    A(f"s_lshl_b32 s{sT}, s{sKH}, 6")
    A(f"v_xor_b32 v{vW3}, s{sT}, v{vT+12}")
    A(f"v_lshl_add_u32 v{vW3}, v{vT+10}, 9, v{vW3}")
    A(f"s_mul_i32 s{sT}, s{sKH}, {224*128}")
    A(f"s_add_u32 s{sT}, s{sT}, {LW}")
    A(f"v_add_u32 v{vW3}, s{sT}, v{vW3}")
    A(f"v_xor_b32 v{vW3+1}, 64, v{vW3}")
    A(f"s_lshl_b32 s{sT}, s{sW}, 12")
    A(f"v_add_u32 v{vX}, s{sT}, v{vO16}")
    A(f"v_xor_b32 v{vX+1}, 8192, v{vX}")
    A(f"s_lshl_b32 s{sT}, s{sB}, 1")
    A(f"s_add_u32 s{sT}, s{sT}, s{sKH}")
    A(f"s_lshl_b32 s{sT}, s{sT}, 14")
    A(f"s_add_u32 s{sOB}, s{sT}, {WS_O}")
    A(f"v_lshrrev_b32 v{vT+3}, 2, v{vT+9}")
    A(f"v_mul_u32_u24 v{vOA}, 57344, v{vT+3}")
    A(f"v_lshl_add_u32 v{vOA}, v{vT+10}, 4, v{vOA}")
    A(f"s_mul_i32 s{sOA}, s{sB}, 896")
    A(f"s_lshl_b32 s{sT}, s{sNT}, 7")
    A(f"s_add_u32 s{sOA}, s{sOA}, s{sT}")
    A(f"s_lshl_b32 s{sT}, s{sKH}, 6")
    A(f"s_add_u32 s{sOA}, s{sOA}, s{sT}")
    A(f"s_mov_b32 s{sOUT+2}, 1835008")
    A(f"s_mov_b32 s{sOUT+3}, 0x20000")
    publish("k2_np0")
    A("k2_pub:")
    ST.at(5)
    A(f"v_mov_b32 v{vT+5}, s{sOK}")
    A(f"ds_write_b32 v{vT+14}, v{vT+5}")
    A("k2_chk:")
    A(f"v_mov_b32 v{vT+8}, {K2_LDS-128}")
    A("s_waitcnt lgkmcnt(0)")
    A("s_barrier")
    A(f"ds_read_b128 {vr(vT+4,4)}, v{vT+8}")
    A("s_waitcnt lgkmcnt(0)")
    A("s_barrier")
    A(f"v_and_b32 v{vT+4}, v{vT+4}, v{vT+5}")
    A(f"v_and_b32 v{vT+6}, v{vT+6}, v{vT+7}")
    A(f"v_and_b32 v{vT+4}, v{vT+4}, v{vT+6}")
    A(f"v_readfirstlane_b32 s{sT}, v{vT+4}")
    A(f"s_cmp_eq_u32 s{sT}, 0")
    if not os.environ.get("NOPOLL"): A("s_cbranch_scc1 k2_fail")
    A("k2_p3:")
    A("s_cmp_ge_u32 s2, 224")
    A("s_cbranch_scc1 k2_dump" if DIAG else "s_cbranch_scc1 k2_end")
    A(f"s_cmp_ge_u32 s{sW}, 4")
    A("s_cbranch_scc1 k2_auxp3")
    steps = []
    HO = [3, 4, 5, 6, 7, 0, 1, 2]
    OFr = lambda m: (OF + 4*m) if m < 12 else (128 + 4*(m-12))
    for n in range(30):
        buf = LB + 12 * (n % 4)
        if n < 14:
            rd = [f"ds_read_b64_tr_b16 {vr(buf+2*x,2)}, v{vZ3} offset:{2048*n+512*x}" for x in range(2)]
            rd += [f"ds_read_b128 {vr(buf+4+4*k,4)}, v{vF3+k} offset:{2048*n}" for k in range(2)]
            mm = [f"v_mfma_f32_32x32x16_bf16 {vr(AA+16*k,16)}, {vr(buf+4+4*k,4)}, {vr(buf,4)}, {'0' if n == 0 else vr(AA+16*k,16)}" for k in range(2)]
        else:
            m = n - 14; hd, t = HO[m >> 1], m & 1
            rd = [f"ds_read_b64_tr_b16 {vr(buf+4+4*k+2*x,2)}, v{vW3+k} offset:{(28*hd+16*t)*128+1024*x}" for k in range(2) for x in range(2)]
            ks = (1, 0)
            mm = [f"v_mfma_f32_32x32x16_bf16 {vr(AB+16*k,16)}, {vr(buf+4+4*k,4)}, {vr(OFr(m),4)}, {'0' if m == 0 else vr(AB+16*k,16)}" for k in ks]
        steps.append((rd, mm))
    for x in steps[0][0] + steps[1][0] + steps[2][0]: A(x)
    A(f"v_mul_f32 v{vG3}, {hex(f2u(-math.log2(math.e)))}, v{vG3}")
    A(f"v_exp_f32 v{vG3}, v{vG3}")
    A("s_nop 0")
    A(f"v_add_f32 v{vG3}, 1.0, v{vG3}")
    A(f"v_rcp_f32 v{vG3}, v{vG3}")
    A("s_nop 0")
    A(f"v_sub_f32 v{vG3+10}, 1.0, v{vG3}")
    for n in range(14):
        if n == 0: ST.at(10)
        if n == 7: ST.at(11)
        A(f"s_waitcnt lgkmcnt({4 * min(2, 13 - n)})")
        rd = steps[n+3][0] if n + 3 < 14 else [None] * 4
        for k in range(2):
            A(steps[n][1][k])
            for x in rd[2*k:2*k+2]:
                if x: A(x)
    ST.at(6)
    A("s_barrier")
    ST.at(7)
    def old(m):
        hd = HO[m >> 1]
        if m % 2 == 0 and (m == 0 or hd % 2 == 0 or hd == 0): A(f"s_add_u32 s{sI}, s{sOB}, {4096*(hd>>1)}")
        A(f"buffer_load_dwordx4 {vr(OFr(m),4)}, v{vO16}, {sr(sWS,4)}, s{sI} offen offset:{2048*(hd&1)+1024*(m&1)} sc1")
    NO = int(os.environ.get("NO", 10))
    for m in range(NO): old(m)
    for x in steps[14][0] + steps[15][0] + steps[16][0]: A(x)
    LIN = os.environ.get("LIN", "1") == "1"
    if LIN:
        A(f"s_lshl_b32 s{sT}, s{sB3}, 12")
        A(f"s_add_u32 s{sT}, s{sT}, 16384")
        A(f"v_and_b32 v{vT}, 31, v{vL}")
        A(f"v_lshl_add_u32 v{vT+1}, s{sKH}, 2, v{vT+10}")
        A(f"v_and_b32 v{vT+5}, 7, v{vL}")
        A(f"v_xor_b32 v{vT+1}, v{vT+1}, v{vT+5}")
        A(f"v_lshlrev_b32 v{vT+1}, 4, v{vT+1}")
        A(f"v_lshl_add_u32 v{vT+2}, v{vT}, 7, v{vT+1}")
        A(f"v_add_u32 v{vT+2}, s{sT}, v{vT+2}")
        A(f"v_xor_b32 v{vT+3}, 32, v{vT+2}")
        A(f"v_lshrrev_b32 v{vT}, 3, v{vL}")
        A(f"v_xor_b32 v{vT+1}, v{vT}, v{vT+5}")
        A(f"v_lshlrev_b32 v{vT+1}, 4, v{vT+1}")
        A(f"v_lshl_add_u32 v{vT+4}, v{vT}, 7, v{vT+1}")
        A(f"s_lshl_b32 s{sT2}, s{sKH}, 11")
        A(f"s_add_u32 s{sT}, s{sT}, s{sT2}")
        A(f"v_add_u32 v{vT+4}, s{sT}, v{vT+4}")
        A(f"v_mul_u32_u24 v{vOA}, 57344, v{vT}")
        A(f"v_lshl_add_u32 v{vOA}, v{vT+5}, 4, v{vOA}")
        A(f"s_mul_i32 s{sT}, s{sKH}, {16*57344 - 64}")
        A(f"s_add_u32 s{sOA}, s{sOA}, s{sT}")
    for r in range(32): A(f"v_mul_f32 v{AA+r}, v{vG3}, v{AA+r}")
    for n in range(14, 30):
        m = n - 14
        if NO + m < 16: old(NO + m)
        if m == 7: A("s_barrier")
        A(f"s_waitcnt vmcnt({min(NO + m + 1, 16) - m - 1}) lgkmcnt({4 * min(2, 29 - n)})")
        if m == 0: ST.at(8)
        rd = steps[n+3][0] if n + 3 < 30 else [None] * 4
        for k in range(2):
            if m < 12 or k == 0: A(steps[n][1][k])
            for x in rd[2*k:2*k+2]:
                if x: A(x)
    ST.at(9)
    A(steps[26][1][1]); A(steps[27][1][1])
    A("s_nop 8")
    for g in range(4):
        for r in range(4*g, 4*g+4): A(f"v_fma_f32 v{AB+16+r}, v{vG3+10}, v{AB+16+r}, v{AA+16+r}")
        if g < 2: A(steps[28 + g][1][1])
        A(f"ds_write_b128 v{vX}, {vr(AB+16+4*g,4)} offset:{1024*g}")
    A("s_waitcnt lgkmcnt(0)")
    A("s_barrier")
    for g in range(4): A(f"ds_read_b128 {vr(AA+16+4*g,4)}, v{vX+1} offset:{1024*g}")
    for r in range(16): A(f"v_fma_f32 v{AB+r}, v{vG3+10}, v{AB+r}, v{AA+r}")
    for g in range(4):
        A(f"s_waitcnt lgkmcnt({3-g})")
        for r in range(4*g, 4*g+4): A(f"v_add_f32 v{AB+r}, v{AB+r}, v{AA+16+r}")
        for r in range(2*g, 2*g+2): A(f"v_cvt_pk_bf16_f32 v{LB+r}, v{AB+2*r}, v{AB+2*r+1}")
        if g & 1:
            t = g >> 1
            A(f"v_permlane32_swap_b32 v{LB+4*t}, v{LB+4*t+2}")
            A(f"v_permlane32_swap_b32 v{LB+4*t+1}, v{LB+4*t+3}")
            if LIN: A(f"ds_write_b128 v{vT+2+t}, {vr(LB+4*t,4)}")
            else: A(f"buffer_store_dwordx4 {vr(LB+4*t,4)}, v{vOA}, {sr(sOUT,4)}, s{sOA} offen offset:{32*t} {OUTF}")
    if LIN:
        A("s_waitcnt lgkmcnt(0)")
        A("s_barrier")
        for k in range(2): A(f"ds_read_b128 {vr(LB+8+4*k,4)}, v{vT+4} offset:{1024*k}")
        A(f"s_add_u32 s{sT}, s{sOA}, {8*57344}")
        for k in range(2):
            A(f"s_waitcnt lgkmcnt({1-k})")
            A(f"buffer_store_dwordx4 {vr(LB+8+4*k,4)}, v{vOA}, {sr(sOUT,4)}, s{sT if k else sOA} offen {OUTF}")
    A("s_branch k2_dump" if DIAG else "s_endpgm")

    A("k2_fail:")
    A(f"s_cmp_ge_u32 s{sW}, 4")
    A("s_cbranch_scc1 k2_auxfb")
    A("s_branch k2_fb")
    A("k2_pb0:")
    A(f"s_mov_b32 s{sT2}, {SPIN}")
    A(f"s_mov_b32 s{sT}, {WS_F1}")
    A("k2_pb:")
    A(f"buffer_load_dwordx2 {vr(vT+10,2)}, v{vT+12}, {sr(sWS,4)}, s{sT} offen sc1")
    A("s_waitcnt vmcnt(0)")
    A(f"v_cmp_eq_u64 vcc, s[6:7], {vr(vT+10,2)}")
    A("s_nop 1")
    A("s_cmp_eq_u64 vcc, -1")
    A("s_cbranch_scc1 k2_loop")
    A(f"s_sub_u32 s{sT2}, s{sT2}, 1")
    A("s_sleep 2")
    A(f"s_cmp_lg_u32 s{sT2}, 0")
    A("s_cbranch_scc1 k2_pb")
    A("s_branch k2_loop")
    A("k2_fb:")
    A(f"s_mov_b32 s{sPASS}, 1")
    A("s_waitcnt vmcnt(0)")
    A("s_barrier")
    for q in range(4): A(f"v_mov_b32 v{O+q}, 0xff800000")
    A(f"s_mov_b32 s{sKO}, s{sK0}")
    A(f"s_add_u32 s{sT2}, s{sK0}, {3*2048}")
    A(f"s_mov_b32 s{sI}, s{sCNT}")
    A("k2_maxloop:")
    A(ldk(0, 0)); A(ldk(0, 1))
    A("s_waitcnt vmcnt(0)")
    for q in range(4): A(qk(q, 0, 0)); A(qk(q, 0, 1))
    A("s_nop 15")
    for q in range(4):
        for r in range(8): A(f"v_max3_f32 v{O+q}, v{O+q}, v{S+16*q+2*r}, v{S+16*q+2*r+1}")
    A(f"s_add_u32 s{sKO}, s{sKO}, 2048")
    A(f"s_cmp_eq_u32 s{sKO}, s{sT2}")
    A(f"s_cselect_b32 s{sKO}, s{sLO2}, s{sKO}")
    A(f"s_cselect_b32 s{sT2}, 0, s{sT2}")
    A(f"s_sub_u32 s{sI}, s{sI}, 1")
    A(f"s_cmp_lg_u32 s{sI}, 0")
    A("s_cbranch_scc1 k2_maxloop")
    A(f"s_lshl_b32 s{sT}, s{sW}, 8")
    A(f"s_add_u32 s{sT}, s{sT}, {RED}")
    A(f"v_lshl_add_u32 v{vT}, v{vL}, 2, s{sT}")
    A(f"v_and_b32 v{vT+1}, 31, v{vL}")
    A(f"v_lshlrev_b32 v{vT+1}, 2, v{vT+1}")
    A(f"v_add_u32 v{vT+1}, {RED}, v{vT+1}")
    for s in range(4):
        A(f"s_lshl_b32 s{sT}, s{sQ+s}, 10")
        A(f"v_add_u32 v{vT+2}, s{sT}, v{vT}")
        A(f"v_add_u32 v{vT+4+s}, s{sT}, v{vT+1}")
        A(f"ds_write_b32 v{vT+2}, v{O+s}")
    A("s_waitcnt lgkmcnt(0)")
    A("s_barrier")
    for s in range(4):
        for k in range(8): A(f"ds_read_b32 v{S+8*s+k}, v{vT+4+s} offset:{128*k}")
        A("s_waitcnt lgkmcnt(0)")
    A("s_barrier")
    A(f"v_cmp_lt_u32 vcc, 31, v{vL}")
    for q in range(4):
        m = S + 8 * q
        A(f"v_max3_f32 v{m}, v{m}, v{m+1}, v{m+2}")
        A(f"v_max3_f32 v{m}, v{m}, v{m+3}, v{m+4}")
        A(f"v_max3_f32 v{m}, v{m}, v{m+5}, v{m+6}")
        A(f"v_max_f32 v{m}, v{m}, v{m+7}")
        A(f"v_xor_b32 v{m}, 0x80000000, v{m}")
        A(f"v_and_b32 v{m+1}, 0xffff0000, v{m}")
        A(f"v_sub_f32 v{m+2}, v{m}, v{m+1}")
        A(f"v_and_b32 v{m+3}, 0xffff0000, v{m+2}")
        A(f"v_sub_f32 v{m+4}, v{m+2}, v{m+3}")
        A(f"v_lshrrev_b32 v{m+1}, 16, v{m+1}")
        A(f"v_or_b32 v{m+1}, v{m+1}, v{m+3}")
        A(f"v_lshrrev_b32 v{m+4}, 16, v{m+4}")
        A(f"v_cndmask_b32 v{Q+8*q+6}, v{Q+8*q+6}, v{m+1}, vcc")
        A(f"v_cndmask_b32 v{Q+8*q+7}, v{Q+8*q+7}, v{m+4}, vcc")
    A("s_branch k2_pass")


    A("k2_aux:")
    sCOL, sTS = 27, 40
    A(f"s_getpc_b64 {sr(sTS,2)}")
    A(f"s_add_u32 s{sTS}, s{sTS}, tab_small@rel32@lo+4")
    A(f"s_addc_u32 s{sTS+1}, s{sTS+1}, tab_small@rel32@hi+12")
    A(f"s_mov_b32 s{sTS+2}, {TS_BYTES}")
    A(f"s_mov_b32 s{sTS+3}, 0x20000")
    A(f"s_mov_b32 s{sX+2}, 401408")
    A(f"s_mov_b32 s{sX+3}, 0x20000")
    A(f"s_mul_i32 s{sCOL}, s{sXC}, 28")
    A(f"s_add_u32 s{sCOL}, s{sCOL}, s{sJ}")
    A(f"s_cmp_eq_u32 s2, 224")
    A(f"s_cselect_b32 s{sCOL}, 224, s{sCOL}")
    C_ = lambda kind, mt, u: 48 * mt + 16 * kind + 4 * u
    X = 96
    YF = 160
    U0 = 192
    WT = 212
    TM = 244
    vG = 210
    A(f"v_lshrrev_b32 v{TM}, 2, v{vL}")
    A(f"v_mul_u32_u24 v{vG+1}, {WP}, v{TM}")
    A(f"v_mul_u32_u24 v{TM}, {YB}, v{TM}")
    A(f"v_and_b32 v{TM+1}, 3, v{vL}")
    A(f"v_lshl_add_u32 v{vG}, v{TM+1}, 4, v{TM}")
    A(f"v_lshl_add_u32 v{vG+1}, v{TM+1}, 4, v{vG+1}")
    A(f"s_lshr_b32 s{sT}, s{sCOL}, 5")
    A(f"s_lshl_b32 s{sT}, s{sT}, 12")
    A(f"s_and_b32 s{sT2}, s{sCOL}, 31")
    A(f"s_lshl_b32 s{sT2}, s{sT2}, 6")
    A(f"s_add_u32 s{sT}, s{sT}, s{sT2}")
    A(f"s_lshl_b32 s{sKO}, s{sCOL}, 6")
    A(f"v_lshrrev_b32 v{TM}, 5, v{vL}")
    A(f"v_bfe_u32 v{TM+1}, v{vL}, 2, 2")
    A(f"v_lshl_add_u32 v{TM}, v{TM}, 2, v{TM+1}")
    A(f"v_lshlrev_b32 v{TM}, 6, v{TM}")
    A(f"v_bfe_u32 v{TM+1}, v{vL}, 4, 1")
    A(f"v_lshl_add_u32 v{TM}, v{TM+1}, 5, v{TM}")
    A(f"v_and_b32 v{TM+1}, 3, v{vL}")
    A(f"v_lshl_add_u32 v{TM}, v{TM+1}, 3, v{TM}")
    A(f"v_add_u32 v{TM}, {LDS_Y}, v{TM}")
    A(f"s_cmp_eq_u32 s{sW}, 5")
    A("s_cbranch_scc1 k2_help")
    def cld(dst, off):
        A(f"s_mov_b32 s{sT2}, {off}")
        for f in range(4): A(f"buffer_load_dwordx4 {vr(dst+4*f,4)}, v{vO16}, {sr(sTS,4)}, s{sT2} offen offset:{1024*f}")
    LC = LDS_Y + 8192
    for mt in range(2):
        for kind in range(3): cld(C_(kind, mt, 0), TS_F64 + kind * 8192 + 4096 * mt)
    for f in range(22):
        if f % 4 == 0:
            A(f"s_mov_b32 m0, {LC + 1024*f}")
            A(f"s_mov_b32 s{sT2}, {TS_F32 + 1024*f}")
        A(f"buffer_load_dwordx4 v{vO16}, {sr(sTS,4)}, s{sT2} offen offset:{1024*(f%4)} lds")
    sFI = 44
    FE = os.environ.get("FE", "0")
    def fimg():
        A(f"s_mul_i32 s{sFI}, s{sNT}, {2*28672}")
        A(f"s_mov_b32 s{sFI+1}, 0")
        A("k2_fi:")
        A(f"s_lshl_b32 m0, s{sFI+1}, 1")
        A(f"s_add_u32 s{sT2}, s{sFI}, s{sFI+1}")
        A(f"buffer_load_dwordx4 v{vO16}, {sr(sTB,4)}, s{sT2} offen lds")
        A(f"s_add_u32 s{sT2}, s{sT2}, {28672-1024}")
        A(f"buffer_load_dwordx4 v{vO16}, {sr(sTB,4)}, s{sT2} offen offset:1024 lds")
        A(f"s_add_u32 s{sFI+1}, s{sFI+1}, 1024")
        A(f"s_waitcnt vmcnt({os.environ.get('DF', 12)})")
        A(f"s_cmp_lt_u32 s{sFI+1}, 28672")
        A("s_cbranch_scc1 k2_fi")
    if FE == "1":
        A("s_cmp_ge_u32 s2, 224")
        A("s_cbranch_scc1 k2_nfi")
        fimg()
        A("k2_nfi:")
    A(f"s_lshr_b32 s{sI}, s{sCOL}, 6")
    A(f"s_add_u32 s{sI}, s{sI}, 12")
    A(f"s_and_b32 s{sVO}, s{sI}, 1")
    A(f"v_bfe_u32 v100, v{vL}, 1, 1")
    A(f"v_xor_b32 v100, s{sVO}, v100")
    A(f"v_lshrrev_b32 v101, 2, v{vL}")
    A(f"v_and_b32 v102, 1, v{vL}")
    A(f"v_mov_b32 v103, s{sI}")
    A(f"s_bfe_u32 s{sI}, s{sCOL}, 0x10005")
    flag_index(98, 100, 101, 102, 103, f"s{sI}")
    A(f"s_lshr_b32 s{sVO}, s{sCOL}, 6")
    A(f"s_lshl_b32 s{sVO}, s{sVO}, 10")
    A(f"s_add_u32 s{sVO}, s{sVO}, {WS_F1 + 512}")
    A(f"v_lshlrev_b32 v100, 12, v{vL}")
    A("s_waitcnt lgkmcnt(0)")
    A("s_barrier")
    A("s_cmp_gt_u32 s2, 224")
    A("s_cbranch_scc1 k2_auxb1")
    A(f"s_mov_b32 s{sI}, {SPIN}")
    A(f"s_mov_b32 s{sT2}, {WS_F1}")
    A("k2_py:")
    A(f"buffer_load_dwordx2 v[104:105], v98, {sr(sWS,4)}, s{sT2} offen sc1")
    A(f"buffer_load_dwordx2 v[106:107], v100, {sr(sWS,4)}, s{sVO} offen sc1")
    A(f"buffer_load_dwordx2 v[108:109], v100, {sr(sWS,4)}, s{sVO} offen offset:128 sc1")
    A("s_waitcnt vmcnt(0)")
    A("v_cmp_ne_u64 vcc, s[6:7], v[104:105]")
    A("v_cmp_ne_u64 s[36:37], s[6:7], v[106:107]")
    A("v_cmp_ne_u64 s[38:39], s[6:7], v[108:109]")
    A("s_nop 1")
    A("s_or_b64 vcc, vcc, s[36:37]")
    A("s_or_b64 vcc, vcc, s[38:39]")
    A("s_and_b64 exec, exec, vcc")
    A("s_cbranch_scc0 k2_py_done")
    A(f"s_sub_u32 s{sI}, s{sI}, 1")
    A("s_sleep 4")
    A(f"s_cmp_gt_i32 s{sI}, 0")
    A("s_cbranch_scc1 k2_py")
    A("k2_py_done:")
    A("s_mov_b64 exec, -1")
    ST.at(12)
    A("s_setprio 3")
    def ydma(n):
        A(f"s_mov_b32 m0, {LDS_Y + 1024*n}")
        A(f"s_add_u32 s{sT2}, s{sT}, {WS_Y + (n>>2)*2048 + (n&3)*16*YB}")
        A(f"buffer_load_dwordx4 v{vG}, {sr(sWS,4)}, s{sT2} offen sc1 lds")
    def wld(f):
        return [f"s_add_u32 s{sT2}, s{sKO}, {WS_W + f*16*WP}",
                f"buffer_load_dwordx4 {vr(WT+4*f,4)}, v{vG+1}, {sr(sWS,4)}, s{sT2} offen sc1"]
    for n in range(8): ydma(n)
    for f in range(8):
        for x in wld(f): A(x)
    ST.at(0)
    A("s_waitcnt vmcnt(8)")
    ST.at(1)
    for p in range(2):
        for u in range(4):
            A(f"ds_read_b64_tr_b16 {vr(YF+16*p+4*u,2)}, v{TM} offset:{4096*p+1024*u}")
            A(f"ds_read_b64_tr_b16 {vr(YF+16*p+4*u+2,2)}, v{TM} offset:{4096*p+1024*u+512}")
    A("s_waitcnt lgkmcnt(0)")
    Yr = lambda u: vr(YF+4*u,4)
    Yi = lambda u: vr(YF+16+4*u,4)
    mf = lambda d, a, b, first=False: f"v_mfma_f32_32x32x16_bf16 {vr(d,16)}, {a}, {b}, {'0' if first else vr(d,16)}"
    cf = lambda kind, mt, u: vr(C_(kind, mt, u), 4)
    def p3(mt):
        L = []
        for u in range(4):
            L += [mf(X+32*mt, cf(0, mt, u), Yr(u), u == 0), mf(X+32*mt+16, cf(0, mt, u), Yi(u), u == 0)]
        for u in range(4):
            L += [mf(X+32*mt, cf(1, mt, u), Yi(u)), mf(X+32*mt+16, cf(2, mt, u), Yr(u))]
        return L
    Ur = lambda u: (U0 + 4*u) if u < 2 else (YF + 4*u)
    Ui = lambda u: (U0 + 8 + 4*u) if u < 2 else (YF + 16 + 4*u)
    def cmul_pack(xr0, xi0, cr, ci, dr, di):
        L = []
        for i in range(4):
            L += [f"v_mul_f32 v{TM+8+i}, v{xr0+i}, v{cr(i)}", f"v_mul_f32 v{xr0+i}, v{xr0+i}, v{ci(i)}"]
        for i in range(4):
            L += [f"v_fma_f32 v{TM+8+i}, -v{xi0+i}, v{ci(i)}, v{TM+8+i}", f"v_fma_f32 v{xr0+i}, v{xi0+i}, v{cr(i)}, v{xr0+i}"]
        L += [f"v_cvt_pk_bf16_f32 v{dr}, v{TM+8}, v{TM+9}", f"v_cvt_pk_bf16_f32 v{dr+1}, v{TM+10}, v{TM+11}",
              f"v_cvt_pk_bf16_f32 v{di}, v{xr0}, v{xr0+1}", f"v_cvt_pk_bf16_f32 v{di+1}, v{xr0+2}, v{xr0+3}"]
        return L
    def wmul(mt):
        L = []
        for g in range(4):
            w = WT + 4 * (4 * mt + g)
            for i in range(4):
                op = "v_and_b32 v{}, 0xffff0000, v{}" if i & 1 else "v_lshlrev_b32 v{}, 16, v{}"
                L += [op.format(TM + i, w + (i >> 1)), op.format(TM + 4 + i, w + 2 + (i >> 1))]
            u = 2 * mt + (g >> 1)
            L += cmul_pack(X+32*mt+4*g, X+32*mt+16+4*g, lambda i: TM + i, lambda i: TM + 4 + i, Ur(u) + 2*(g&1), Ui(u) + 2*(g&1))
        return L
    def p4(nt, us):
        L = []
        for u in us:
            L += [mf(X+32*nt, vr(Ur(u),4), cf(0, nt, u), u == 0), mf(X+32*nt+16, vr(Ui(u),4), cf(0, nt, u), u == 0)]
        for u in us:
            L += [mf(X+32*nt, vr(Ui(u),4), cf(2, nt, u)), mf(X+32*nt+16, vr(Ur(u),4), cf(1, nt, u))]
        return L
    Tr = lambda nt: YF if nt == 0 else U0
    Ti = lambda nt: YF + 16 if nt == 0 else U0 + 8
    TW = lambda nt: 48 * nt
    F32 = WT
    def twid(nt):
        L = []
        for g in range(4):
            L += cmul_pack(X+32*nt+4*g, X+32*nt+16+4*g, lambda i: TW(nt) + 4*g + i, lambda i: TW(nt) + 16 + 4*g + i, Tr(nt) + 2*g, Ti(nt) + 2*g)
        return L
    def p5(nt):
        L = []
        for t in range(2):
            L += [mf(X+32*nt, vr(F32+4*t,4), vr(Tr(nt)+4*t,4), t == 0), mf(X+32*nt+16, vr(F32+4*t,4), vr(Ti(nt)+4*t,4), t == 0)]
        for t in range(2):
            L += [mf(X+32*nt, vr(F32+16+4*t,4), vr(Ti(nt)+4*t,4)), mf(X+32*nt+16, vr(F32+8+4*t,4), vr(Tr(nt)+4*t,4))]
        return L
    sZR, sZI = 29, 30
    def outp(nt):
        L = []
        for p in range(2):
            z = X + 32*nt + 16*p; P = TW(nt) + 8*p
            for r in range(8): L.append(f"v_cvt_pk_bf16_f32 v{P+r}, v{z+2*r}, v{z+2*r+1}")
            L.append("s_nop 1")
            for t in range(2):
                L += [f"v_permlane32_swap_b32 v{P+4*t}, v{P+4*t+2}", f"v_permlane32_swap_b32 v{P+4*t+1}, v{P+4*t+3}"]
            for t in range(2):
                L.append(f"ds_write_b128 v{vG}, {vr(P+4*t,4)} offset:{4096*p+2048*nt+32*t}")
        return L
    def outst():
        A("s_waitcnt lgkmcnt(0)")
        for k in range(8): A(f"ds_read_b128 {vr(X+4*k,4)}, v{vG+1} offset:{1024*k}")
        for k in range(8):
            A(f"s_waitcnt lgkmcnt({7-k})")
            A(f"buffer_store_dwordx4 {vr(X+4*k,4)}, v{vO16}, {sr(sWS,4)}, s{sZR+(k>>2)} offen offset:{1024*(k&3)} sc1")
    for x in p3(0): A(x)
    ST.at(2)
    A("s_waitcnt vmcnt(4)")
    A("s_nop 7")
    for x in merge(p3(1), wmul(0)): A(x)
    A("s_waitcnt vmcnt(0)")
    A("s_nop 7")
    for x in merge(p4(0, (0, 1)), wmul(1)): A(x)
    for x in p4(0, (2, 3)): A(x)
    ST.at(3)
    A(f"v_add_u32 v{vG+1}, {LDS_Y}, v{vO16}")
    def lcd(dst, off, n):
        for f in range(n): A(f"ds_read_b128 {vr(dst+4*f,4)}, v{vG+1} offset:{8192 + off - TS_F32 + 1024*f}")
    lcd(TW(0), TS_TW, 8); lcd(F32, TS_F32, 6)
    A(f"s_lshr_b32 s{sT}, s{sCOL}, 1")
    A(f"s_and_b32 s{sT2}, s{sCOL}, 1")
    A(f"s_mul_i32 s{sT2}, s{sT2}, 224")
    A(f"s_add_u32 s{sT}, s{sT}, s{sT2}")
    A(f"s_mul_i32 s{sT}, s{sT}, {ZP}")
    A(f"s_add_u32 s{sZR}, s{sT}, {WS_Z}")
    A(f"s_add_u32 s{sZI}, s{sZR}, {112*ZP}")
    A(f"s_cmp_eq_u32 s{sCOL}, 0")
    A(f"s_cselect_b32 s{sZI}, {WS_G + 0x4000}, s{sZI}")
    A(f"s_cmp_eq_u32 s{sCOL}, 224")
    A(f"s_cselect_b32 s{sZI}, {WS_G + 0x6000}, s{sZI}")
    A(f"v_and_b32 v{vG}, 31, v{vL}")
    A(f"v_lshlrev_b32 v{vG}, 6, v{vG}")
    A(f"v_lshrrev_b32 v{TM}, 5, v{vL}")
    A(f"v_lshl_add_u32 v{vG}, v{TM}, 4, v{vG}")
    A(f"v_add_u32 v{vG}, {LDS_Y}, v{vG}")
    A("s_waitcnt lgkmcnt(6)")
    for x in merge(p4(1, (0, 1, 2, 3)), twid(0)): A(x)
    lcd(TW(1), TS_TW + 8192, 8)
    ST.at(4)
    A("s_waitcnt lgkmcnt(0)")
    for x in merge(p5(0), twid(1)): A(x)
    A("s_nop 1")
    for x in merge(p5(1), outp(0)): A(x)
    A("s_nop 7")
    for x in outp(1): A(x)
    outst()
    ST.at(5)
    A("s_setprio 0")
    A(f"s_lshl_b32 s{sT}, s{sCOL}, 7")
    A(f"s_add_u32 s{sT}, s{sT}, {WS_FZ}")
    A(f"v_mov_b32 v{TM+4}, 0")
    A(f"v_mov_b32 v{TM+6}, s6")
    A(f"v_mov_b32 v{TM+7}, s7")
    A("s_mov_b64 exec, 1")
    A("s_waitcnt vmcnt(0)")
    ST.at(6)
    A(f"buffer_store_dwordx2 {vr(TM+6,2)}, v{TM+4}, {sr(sWS,4)}, s{sT} offen sc1")
    A("s_mov_b64 exec, -1")
    A("s_cmp_ge_u32 s2, 224")
    A("s_cbranch_scc1 k2_auxw")
    A(f"v_lshrrev_b32 v{TM}, 3, v{vL}")
    A(f"v_and_b32 v{TM+1}, 7, v{vL}")
    A(f"v_bfe_u32 v{TM+2}, v{vL}, 4, 1")
    A(f"v_lshlrev_b32 v{TM+2}, 2, v{TM+2}")
    A(f"v_xor_b32 v{TM+1}, v{TM+1}, v{TM+2}")
    A(f"v_lshlrev_b32 v{TM+1}, 4, v{TM+1}")
    A(f"v_mul_u32_u24 v{TM+2}, {ZP}, v{TM}")
    A(f"v_add_u32 v{TM+2}, v{TM+2}, v{TM+1}")
    def image(name, lds, vaddr, srd, pitch, flag, depth):
        for i in range(1, 4): A(f"v_add_u32 v{20+i}, {i*(8*pitch-1024)}, v{vaddr}")
        for gr in range(14):
            A(f"s_mov_b32 m0, {lds + 4096*gr}")
            A(f"s_add_u32 s{sT}, s{sT}, {32*pitch if gr else 0}")
            for i in range(4):
                A(f"buffer_load_dwordx4 v{vaddr if i == 0 else 20+i}, {srd}, s{sT} offen offset:{1024*i} {flag} lds")
    def poll(name, lines, sl):
        A(f"s_mov_b32 s{sI}, {SPIN}")
        A(f"{name}:")
        for x in lines: A(x)
        A("s_cmp_eq_u64 vcc, -1")
        A(f"s_cbranch_scc1 {name}_done")
        A(f"s_sub_u32 s{sI}, s{sI}, 1")
        A(f"s_sleep {sl}")
        A(f"s_cmp_lg_u32 s{sI}, 0")
        A(f"s_cbranch_scc1 {name}")
        A(f"{name}_done:")
    ST.at(7)
    A(f"s_sleep {os.environ.get('ZD', 6)}")
    A(f"v_lshlrev_b32 v4, 7, v{vL}")
    A(f"v_add_u32 v5, 0x6000, v4")
    A(f"v_min_u32 v5, {224*128}, v5")
    A(f"s_lshr_b32 s{sT}, s{sMT}, 1")
    A(f"s_and_b32 s{sT2}, s{sT}, 3")
    A(f"s_add_u32 s{sT2}, s{sT2}, 28")
    A(f"s_lshl_b32 s{sT2}, s{sT2}, 2")
    A(f"s_lshr_b32 s{sT}, s{sT}, 2")
    A(f"s_add_u32 s{sT2}, s{sT2}, s{sT}")
    A(f"s_lshl_b32 s{sT2}, s{sT2}, 11")
    A(f"s_and_b32 s{sT}, s{sMT}, 1")
    A(f"s_lshl_b32 s{sT}, s{sT}, 8")
    A(f"s_add_u32 s{sT2}, s{sT2}, s{sT}")
    A(f"s_add_u32 s{sT2}, s{sT2}, {WS_F1 - WS_FZ + 1024 + 256}")
    A(f"v_writelane_b32 v5, s{sT2}, 62")
    A(f"s_add_u32 s{sT2}, s{sT2}, 128")
    A(f"v_writelane_b32 v5, s{sT2}, 63")
    A(f"s_mov_b32 s{sI}, {SPIN}")
    A(f"s_mov_b32 s{sT}, {WS_FZ}")
    A(f"s_mov_b32 s{sT2}, {WS_FZ + 0x2000}")
    A(f"s_mov_b32 s{sKO}, {WS_FZ + 0x4000}")
    A("k2_pz:")
    A(f"buffer_load_dwordx2 v[12:13], v4, {sr(sWS,4)}, s{sT} offen sc1")
    A(f"buffer_load_dwordx2 v[14:15], v4, {sr(sWS,4)}, s{sT2} offen sc1")
    A(f"buffer_load_dwordx2 v[16:17], v4, {sr(sWS,4)}, s{sKO} offen sc1")
    A(f"buffer_load_dwordx2 v[18:19], v5, {sr(sWS,4)}, s{sT} offen sc1")
    A("s_waitcnt vmcnt(0)")
    A("v_cmp_ne_u64 vcc, s[6:7], v[12:13]")
    A("v_cmp_ne_u64 s[36:37], s[6:7], v[14:15]")
    A("v_cmp_ne_u64 s[38:39], s[6:7], v[16:17]")
    A("v_cmp_ne_u64 s[62:63], s[6:7], v[18:19]")
    A("s_nop 1")
    A("s_or_b64 vcc, vcc, s[36:37]")
    A("s_or_b64 vcc, vcc, s[38:39]")
    A("s_or_b64 vcc, vcc, s[62:63]")
    A("s_and_b64 exec, exec, vcc")
    A("s_cbranch_scc0 k2_pz_done")
    A(f"s_sub_u32 s{sI}, s{sI}, 1")
    A(f"s_sleep {os.environ.get('ZSL', 6)}")
    A(f"s_cmp_gt_i32 s{sI}, 0")
    A("s_cbranch_scc1 k2_pz")
    A("k2_pz_done:")
    A("s_mov_b64 exec, -1")
    ST.at(8)
    A(f"s_lshl_b32 s{sT}, s{sMT}, 7")
    A(f"s_add_u32 s{sT}, s{sT}, {WS_Z}")
    image("k2_imz", LZ, TM+2, sr(sWS,4), ZP, os.environ.get("ZF", "sc1"), int(os.environ.get("DZ", 56)))
    A("k2_auxw:")
    ST.at(9)
    A("k2_auxb1:")
    A(f"v_lshrrev_b32 v{vWD}, 3, v{vL}")
    A(f"v_and_b32 v{vT+6}, 7, v{vL}")
    A(f"v_bfe_u32 v{vT+7}, v{vL}, 4, 1")
    A(f"v_lshlrev_b32 v{vT+7}, 2, v{vT+7}")
    A(f"v_xor_b32 v{vT+6}, v{vT+6}, v{vT+7}")
    A(f"v_mul_u32_u24 v{vWD}, 896, v{vWD}")
    A(f"v_lshl_add_u32 v{vWD}, v{vT+6}, 4, v{vWD}")
    A("s_barrier")
    A("s_barrier")
    A("s_cmp_ge_u32 s2, 224")
    A("s_cbranch_scc1 k2_chk")
    A(f"s_lshl_b32 s{sT}, s{sNT}, 7")
    A(f"s_add_u32 s{sT}, s{sT}, {64*896}")
    for i in range(48):
        if i % 4 == 0: A(f"s_mov_b32 m0, {RED + 1024*i}")
        if i: A(f"s_add_u32 s{sT}, s{sT}, {8*896-1024 if i % 4 else 8*896+3072}")
        if i == 47: A("s_mov_b32 exec_hi, 0x00ffffff")
        A(f"buffer_load_dwordx4 v{vWD}, {sr(sX,4)}, s{sT} offen offset:{1024*(i%4)} lds")
    A("s_mov_b32 exec_hi, -1")
    A(f"s_mov_b32 s{sWS_}, s{sT}")
    A("s_waitcnt vmcnt(48)")
    A("s_branch k2_chk")
    A("k2_auxfb:")
    A("s_waitcnt vmcnt(0)")
    A("s_barrier")
    A("s_barrier")
    A("s_barrier")
    A("s_branch k2_auxb1")
    A("k2_auxp3:")
    A(f"v_and_b32 v4, 31, v{vL}")
    A("v_lshlrev_b32 v4, 7, v4")
    A(f"s_lshl_b32 s{sT}, s{sMT}, 12")
    A(f"s_add_u32 s{sT}, s{sT}, {WS_FO}")
    ST.at(10)
    A(f"s_mov_b32 s{sKO}, s{sT}")
    if int(os.environ.get("OD", 0)): A(f"s_sleep {os.environ.get('OD')}")
    A(f"buffer_load_dwordx2 v[0:1], v4, {sr(sWS,4)}, s{sKO} offen sc1")
    A(f"s_mov_b32 m0, {RED + 1024*44}")
    A("s_mov_b32 exec_lo, 0")
    A("s_mov_b32 exec_hi, 0xff000000")
    A(f"buffer_load_dwordx4 v{vWD}, {sr(sX,4)}, s{sWS_} offen offset:3072 lds")
    A("s_mov_b64 exec, -1")
    A(f"s_mov_b32 s{sT}, s{sKO}")
    A("s_waitcnt vmcnt(0)")
    A("v_cmp_eq_u64 vcc, s[6:7], v[0:1]")
    A("s_nop 1")
    A("s_cmp_eq_u64 vcc, -1")
    A("s_cbranch_scc1 k2_po_done")
    poll("k2_po", [f"buffer_load_dwordx2 v[0:1], v4, {sr(sWS,4)}, s{sT} offen sc1", "s_waitcnt vmcnt(0)", "v_cmp_eq_u64 vcc, s[6:7], v[0:1]", "s_nop 1"], int(os.environ.get("OSL", 2)))
    ST.at(11)
    A("s_barrier")
    A(f"s_lshl_b32 s{sT}, s{sNT}, 7")
    for i in range(8):
        if i % 4 == 0: A(f"s_mov_b32 m0, {LW + 1024*i}")
        if i: A(f"s_add_u32 s{sT}, s{sT}, {8*896-1024 if i % 4 else 8*896+3072}")
        A(f"buffer_load_dwordx4 v{vWD}, {sr(sX,4)}, s{sT} offen offset:{1024*(i%4)} lds")
    A("s_waitcnt vmcnt(0)")
    A("s_barrier")
    A("s_branch k2_dump" if DIAG else "s_endpgm")
    A("k2_help:")
    A("s_waitcnt lgkmcnt(0)")
    A("s_barrier")
    A("s_cmp_ge_u32 s2, 224")
    A("s_cbranch_scc1 k2_end")
    A(f"s_sleep {os.environ.get('HD', 40)}")
    fimg()
    A(f"s_and_b32 s{sT}, s{sJ}, 3")
    A(f"s_mul_i32 s{sT}, s{sT}, {112*896}")
    A(f"s_lshl_b32 s{sT2}, s{sNT}, 7")
    A(f"s_add_u32 s{sT}, s{sT}, s{sT2}")
    A(f"v_mul_u32_u24 v8, 896, v{vL}")
    A(f"buffer_load_dword v9, v8, {sr(sX,4)}, s{sT} offen")
    A(f"s_add_u32 s{sT}, s{sT}, {48*896}")
    A(f"buffer_load_dword v10, v8, {sr(sX,4)}, s{sT} offen")
    if os.environ.get("PRE", "0") == "1":
        A(f"s_mov_b32 s{sOUT+2}, 1835008")
        A(f"s_mov_b32 s{sOUT+3}, 0x20000")
        A(f"v_lshrrev_b32 v12, 3, v{vL}")
        A("v_mul_u32_u24 v12, 57344, v12")
        A(f"v_and_b32 v13, 7, v{vL}")
        A("v_lshl_add_u32 v12, v13, 4, v12")
        for r in range(4): A(f"v_mov_b32 v{16+r}, 0")
        A(f"s_mul_i32 s{sT}, s{sMT}, 1792")
        A(f"s_lshl_b32 s{sT2}, s{sNT}, 7")
        A(f"s_add_u32 s{sT}, s{sT}, s{sT2}")
        for k in range(8):
            A(f"s_add_u32 s{sT2}, s{sT}, {(k&3)*8*57344 + (k>>2)*896}")
            A(f"buffer_store_dwordx4 v[16:19], v12, {sr(sOUT,4)}, s{sT2} offen sc1")
    A("s_waitcnt vmcnt(0)")
    A("s_endpgm")
    if DIAG: A("k2_dump:")
    ST.dump(sWS, sW, 5, 250)
    A("k2_end:")
    A("s_endpgm")
    body = A.L[loop_start:loop_end]
    rep = check_seq(body + body)
    assert not rep, rep
    return A.L, NV, 102 if DIAG else 64
```
